```python
import torch

def _softmax(x, axis=-1):
    return torch.softmax(x, dim=axis)
def _gelu(x):
    return torch.nn.functional.gelu(x, approximate="tanh")
def _silu(x):
    return torch.nn.functional.silu(x)
def _sigmoid(x):
    return torch.sigmoid(x)
def _layernorm(x, axis=-1, eps=1e-5):
    m = x.mean(dim=axis, keepdim=True)
    v = x.var(dim=axis, keepdim=True, unbiased=False)
    return (x - m) / torch.sqrt(v + eps)
def _scatter_add(tgt, idx, src, axis=0):
    return tgt.clone().index_add_(axis, idx, src)
def _segment_sum(src, seg, n):
    out = torch.zeros((n,) + src.shape[1:], dtype=src.dtype)
    return out.index_add_(0, seg, src)
def _pad(x, pw):
    flat = tuple(v for pair in reversed(pw) for v in pair)
    return torch.nn.functional.pad(x, flat)

kernel_name = 'concat_heads__linear_kernel_hedgehog__ssm_conv_s4__prompt'

def setup_inputs():

    _w = (lambda a: (lambda t: t.to(torch.bfloat16) if t.is_floating_point() else t)(torch.as_tensor(a)))
    def _A_setup():
        B, S, D, H = 1, 2048, 640, 32
        Dh = D // H
        return {
            "x": _w((lambda *s: torch.randn(*s, dtype=torch.bfloat16) * 0.4)(B, S, D)),
            "wqkv": _w((lambda *s: torch.randn(*s, dtype=torch.bfloat16) * 0.4)(D, 3 * D)),
            "w_phi": _w((lambda *s: torch.randn(*s, dtype=torch.bfloat16) * 0.4)(H, Dh, Dh) * (Dh ** -0.5)),
            "wo": _w((lambda *s: torch.randn(*s, dtype=torch.bfloat16) * 0.05)(D, D)),
        }
    _A_in = _A_setup()

    def _B_setup():
        B, L, D, N = 1, 2048, 640, 128
        A_re = -(lambda _x: torch.exp(torch.as_tensor(_x)))((lambda *s: torch.randn(*s, dtype=torch.bfloat16) * 3.2)(D, N))
        A_im = torch.pi * (lambda *s: torch.randn(*s, dtype=torch.bfloat16) * 0.2)(D, N)
        B_re = (lambda *s: torch.randn(*s, dtype=torch.bfloat16) * 0.4)(D, N)
        B_im = (lambda *s: torch.randn(*s, dtype=torch.bfloat16) * 0.4)(D, N)
        C_re = (lambda *s: torch.randn(*s, dtype=torch.bfloat16) * 0.4)(D, N)
        C_im = (lambda *s: torch.randn(*s, dtype=torch.bfloat16) * 0.4)(D, N)
        log_dt = (lambda *s: torch.randn(*s, dtype=torch.bfloat16) * 0.2)(D) * 0.5 - 4.0
        Dskip = (lambda *s: torch.randn(*s, dtype=torch.bfloat16) * 0.4)(D)
        return {
            "u": _w((lambda *s: torch.randn(*s, dtype=torch.bfloat16) * 0.05)(B, L, D)),
            "A_re": _w(A_re),
            "A_im": _w(A_im),
            "B_re": _w(B_re),
            "B_im": _w(B_im),
            "C_re": _w(C_re),
            "C_im": _w(C_im),
            "log_dt": _w(log_dt),
            "Dskip": _w(Dskip),
        }
    _B_in = _B_setup()

    return {
        "A_x": _A_in["x"],
        "A_wqkv": _A_in["wqkv"],
        "A_w_phi": _A_in["w_phi"],
        "A_wo": _A_in["wo"],
        "B_u": _B_in["u"],
        "B_A_re": _B_in["A_re"],
        "B_A_im": _B_in["A_im"],
        "B_B_re": _B_in["B_re"],
        "B_B_im": _B_in["B_im"],
        "B_C_re": _B_in["C_re"],
        "B_C_im": _B_in["C_im"],
        "B_log_dt": _B_in["log_dt"],
        "B_Dskip": _B_in["Dskip"],
    }

def reference(A_x, A_wqkv, A_w_phi, A_wo, B_u, B_A_re, B_A_im, B_B_re, B_B_im, B_C_re, B_C_im, B_log_dt, B_Dskip):
    def _A_ref(x, wqkv, w_phi, wo):
        B, S, D = x.shape
        H = 32; Dh = D // H
        qkv = (lambda x, *d: x.permute(*d))((x @ wqkv).reshape(B, S, 3, H, Dh), 2, 0, 3, 1, 4)
        q, k, v = qkv[0], qkv[1], qkv[2]
        pq = torch.einsum("bhsd,hdf->bhsf", q, w_phi)
        pk = torch.einsum("bhsd,hdf->bhsf", k, w_phi)
        phi_q = torch.concatenate([_softmax(pq, axis=-1), _softmax(-pq, axis=-1)], axis=-1)
        phi_k = torch.concatenate([_softmax(pk, axis=-1), _softmax(-pk, axis=-1)], axis=-1)
        kv = torch.einsum("bhsf,bhsd->bhfd", phi_k, v)
        z  = torch.einsum("bhsf->bhf", phi_k)
        num = torch.einsum("bhqf,bhfd->bhqd", phi_q, kv)
        den = torch.einsum("bhqf,bhf->bhq", phi_q, z)[..., None] + 1e-6
        o = num / den
        return (lambda x, *d: x.permute(*d))(o, 0, 2, 1, 3).reshape(B, S, D) @ wo

    def _B_ref(u, A_re, A_im, B_re, B_im, C_re, C_im, log_dt, Dskip):
        Bsz, L, D = u.shape
        dt = torch.exp(log_dt)[:, None]
        A = A_re + 1j * A_im
        Bc = B_re + 1j * B_im
        Cc = C_re + 1j * C_im
        logdA = dt * A
        dB = dt * Bc
        l = (lambda x, dt: x.to(dt))(torch.arange(L), A_re.dtype)
        P = torch.exp(logdA[:, :, None] * l[None, None, :])
        K = torch.einsum("dn,dnl,dn->dl", Cc, P, dB).real
        L2 = 2 * L
        Kp = _pad(K, ((0, 0), (0, L)))
        up = (lambda x, *d: x.permute(*d))(u, 0, 2, 1)
        up = _pad(up, ((0, 0), (0, 0), (0, L)))
        Kf = (lambda x, axes=(-2,-1): torch.fft.rfft2(x.float(), dim=axes))(Kp[:, None, :], axes=(-2, -1))
        Uf = (lambda x, axes=(-2,-1): torch.fft.rfft2(x.float(), dim=axes))(up[:, :, None, :], axes=(-2, -1))
        Yf = Uf * Kf[None, :, :, :]
        y = (lambda x, s, axes=(-2,-1): torch.fft.irfft2(x, s=s, dim=axes).to(torch.bfloat16))(Yf, (1, L2), axes=(-2, -1))[:, :, 0, :L]
        y = (lambda x, *d: x.permute(*d))(y, 0, 2, 1) + u * Dskip[None, None, :]
        return y

    a = _A_ref(A_x, A_wqkv, A_w_phi, A_wo)
    b = _B_ref(B_u, B_A_re, B_A_im, B_B_re, B_B_im, B_C_re, B_C_im, B_log_dt, B_Dskip)
    return torch.concatenate([a, b], axis=-1)
```

```python
import re

def v(n, c=1): return f"v{n}" if c == 1 else f"v[{n}:{n+c-1}]"
def s(n, c=1): return f"s{n}" if c == 1 else f"s[{n}:{n+c-1}]"

_MOD = re.compile(r"\s+(?:(?:op_sel|op_sel_hi|neg_lo|neg_hi):\[[^\]]*\]|offset\d?:\S+|offen|idxen|lds|sc0|sc1|nt|glc|clamp|mul:\d|div:\d|row_\w+:\S+|quad_perm:\[[^\]]*\]|row_mask:\S+|bank_mask:\S+|bound_ctrl:\S+|wave_\w+:\S+|row_mirror|row_half_mirror)(?=\s|$)")
TRANS = ("v_exp_f32", "v_log_f32", "v_rcp_f32", "v_rsq_f32", "v_sqrt_f32", "v_sin_f32", "v_cos_f32")

def regs_of(op):
    op = op.strip()
    op = op.lstrip("-")
    m = re.fullmatch(r"(?:abs\()?\|?([vs])(\d+)\|?\)?", op)
    if m: return [(m.group(1), int(m.group(2)))]
    m = re.fullmatch(r"([vs])\[(\d+):(\d+)\]", op)
    if m: return [(m.group(1), i) for i in range(int(m.group(2)), int(m.group(3)) + 1)]
    if op == "vcc": return [("s", 106), ("s", 107)]
    if op == "vcc_lo": return [("s", 106)]
    if op == "vcc_hi": return [("s", 107)]
    if op == "exec": return [("s", 126), ("s", 127)]
    if op == "m0": return [("s", 124)]
    return []

class Ins:
    def __init__(self, text):
        self.text = text
        t = text.split(";")[0].strip()
        parts = t.split(None, 1)
        self.op = parts[0]
        rest = " " + (parts[1] if len(parts) > 1 else "")
        self.is_lds_dma = bool(re.search(r"\slds(\s|$)", rest)) or self.op.startswith("global_load_lds")
        self.dpp = bool(re.search(r"(row_\w+:|quad_perm|wave_\w+:|row_mirror|row_half_mirror)", rest))
        prev = None
        while prev != rest:
            prev = rest
            rest = _MOD.sub("", rest)
        ops = [o.strip() for o in rest.split(",")] if rest.strip() else []
        self.ops = ops
        op = self.op
        R = [regs_of(o) for o in ops]
        self.kind = None
        self.w = []; self.r = []
        self.srcc = []; self.ab = []
        base = op.replace("_e32", "").replace("_e64", "").replace("_dpp", "")
        self.base = base
        if op.startswith("v_mfma"):
            self.kind = "mfma"
            self.w = R[0]; self.ab = R[1] + R[2]; self.srcc = R[3]; self.r = self.ab + self.srcc
            self.passes = 8 if "32x32x16" in op else 4
            assert "32x32x16" in op or "16x16x32" in op
        elif op.startswith("v_"):
            self.kind = "valu"
            self.w = list(R[0]); self.r = [x for l in R[1:] for x in l]
            if base.startswith("v_permlane") and "swap" in base:
                self.w = R[0] + R[1]; self.r = R[0] + R[1]
            if base in ("v_fmac_f32", "v_dot2c_f32_bf16", "v_pk_fmac_f16", "v_writelane_b32") or self.dpp:
                self.r += R[0]
            if base in ("v_add_co_u32", "v_sub_co_u32", "v_addc_co_u32"):
                self.w = R[0] + R[1]; self.r = [x for l in R[2:] for x in l]
        elif op.startswith("ds_"):
            self.kind = "ds"
            if op.startswith("ds_read") or op.startswith("ds_bpermute") or op.startswith("ds_swizzle"):
                self.w = R[0]; self.r = [x for l in R[1:] for x in l]
                if "d16" in op: self.r += R[0]
            else:
                self.r = [x for l in R for x in l]
        elif op.startswith("buffer_") or op.startswith("global_"):
            self.kind = "vmem"
            if "load" in op and not self.is_lds_dma:
                self.w = R[0]; self.r = [x for l in R[1:] for x in l]
                if "d16" in op: self.r += R[0]
            else:
                self.r = [x for l in R for x in l]
                if self.is_lds_dma: self.r.append(("s", 124))
            self.wide_store = None
            if "store" in op and ("x4" in op or "x3" in op):
                self.wide_store = R[0] if op.startswith("buffer_") else R[1]
        elif (op.startswith("s_load") or op.startswith("s_buffer_load")) or op.startswith("s_memtime") or op.startswith("s_memrealtime"):
            self.kind = "smem"; self.w = R[0]; self.r = [x for l in R[1:] for x in l]
        elif op.startswith("s_"):
            self.kind = "salu"
            if op.startswith("s_cmp") or op.startswith("s_cbranch") or op in ("s_branch", "s_barrier", "s_nop", "s_waitcnt", "s_endpgm", "s_setprio", "s_sleep", "s_bitcmp1_b32", "s_bitcmp0_b32", "s_setpc_b64"):
                self.r = [x for l in R for x in l]
            else:
                self.w = R[0] if R else []; self.r = [x for l in R[1:] for x in l]
                if "saveexec" in op: self.w = self.w + [("s", 126), ("s", 127)]
        else:
            raise ValueError("unknown op " + text)

class Emitter:
    def __init__(self):
        self.out = []
        self.reset()
        self.nops = 0
        self.count = 0
    def reset(self):
        self.pos = 0
        self.valu_w = {}; self.trans_w = {}; self.mfma_w = {}; self.mfma_c = {}; self.salu_w = {}; self.store_d = {}
        self.vmq = []; self.lgq = []
    def raw(self, text): self.out.append(text)
    def comment(self, text): self.out.append("    ; " + text)
    def label(self, name): self.out.append(name + ":")
    def _put(self, text, states=1):
        self.out.append("    " + text); self.pos += states; self.count += 1
    def _wait(self, vm=None, lg=None):
        parts = []
        if vm is not None:
            vm = min(vm, 63); parts.append(f"vmcnt({vm})"); self.vmq = self.vmq[len(self.vmq) - vm:] if vm < len(self.vmq) else self.vmq
            if vm == 0: self.vmq = []
        if lg is not None:
            lg = min(lg, 15); parts.append(f"lgkmcnt({lg})"); self.lgq = self.lgq[len(self.lgq) - lg:] if lg < len(self.lgq) else self.lgq
            if lg == 0: self.lgq = []
        self._put("s_waitcnt " + " ".join(parts))
    def wait_vm(self, tag=None):
        if tag is None:
            self._wait(vm=0); return
        idx = [i for i, e in enumerate(self.vmq) if e[0] == tag]
        if idx: self._wait(vm=len(self.vmq) - 1 - idx[-1])
    def wait_lg(self, tag=None):
        if tag is None:
            self._wait(lg=0); return
        idx = [i for i, e in enumerate(self.lgq) if e[0] == tag]
        if idx: self._wait(lg=len(self.lgq) - 1 - idx[-1])
    def nop(self, n):
        while n > 0:
            k = min(n, 16); self._put(f"s_nop {k-1}", k); self.nops += 1; n -= k
    def __call__(self, text, tag=None):
        if isinstance(text, (list, tuple)) and not isinstance(text, str):
            self.items(text); return
        I = Ins(text)
        touched = set(I.r) | set(I.w)
        vm = lg = None
        for i, e in enumerate(self.vmq):
            if e[1] & touched: vm = len(self.vmq) - 1 - i
        for i, e in enumerate(self.lgq):
            if e[1] & touched: lg = len(self.lgq) - 1 - i
        if lg is not None and any(e[0] == "__smem" for e in self.lgq): lg = 0
        if vm is not None or lg is not None: self._wait(vm, lg)
        need = 0
        def req(tab, regs, ws):
            nonlocal need
            for r in regs:
                if r in tab: need = max(need, ws - (self.pos - tab[r] - 1))
        vr = [r for r in I.r if r[0] == "v"]; sr = [r for r in I.r if r[0] == "s"]
        vw = [r for r in I.w if r[0] == "v"]
        if I.kind == "mfma":
            req(self.valu_w, vr, 2)
            for r in I.ab:
                if r in self.mfma_w:
                    p, ps, d = self.mfma_w[r]; need = max(need, (8 if ps == 4 else 12) - (self.pos - p - 1))
            for r in list(I.srcc) + list(I.w):
                if r in self.mfma_w:
                    p, ps, d = self.mfma_w[r]
                    if d == tuple(I.srcc) and ps == I.passes and tuple(I.w) == d: continue
                    need = max(need, (8 if ps == 4 else 12) - (self.pos - p - 1))
        elif I.kind in ("valu", "ds", "vmem"):
            for r in vr + vw:
                if r in self.mfma_w:
                    p, ps, d = self.mfma_w[r]; need = max(need, (8 if ps == 4 else 12) - (self.pos - p - 1))
            for r in vw:
                if r in self.mfma_c:
                    p, ps = self.mfma_c[r]; need = max(need, (3 if ps == 4 else 7) - (self.pos - p - 1))
            req(self.store_d, vw, 2)
            if I.kind == "valu":
                if I.base not in TRANS: req(self.trans_w, vr, 1)
                if I.base.startswith("v_permlane") or I.dpp: req(self.valu_w, vr, 2)
                if I.base in ("v_readfirstlane_b32", "v_readlane_b32"): req(self.valu_w, vr, 1)
                req(self.valu_w, sr, 4 if I.base in ("v_readlane_b32", "v_writelane_b32") else 2)
                if I.base == "v_cndmask_b32" and len(I.ops) == 3: req(self.valu_w, [("s", 106)], 2)
            else:
                req(self.trans_w, vr, 1)
            if I.kind == "vmem":
                req(self.valu_w, sr, 5)
                if I.is_lds_dma: req(self.salu_w, [("s", 124)], 1)
        elif I.kind == "salu":
            req(self.valu_w, sr, 1)
        if need > 0: self.nop(need)
        states = 1
        if I.op == "s_nop": states = int(I.ops[0], 0) + 1
        p = self.pos
        self._put(text, states)
        for r in I.w:
            for tab in (self.valu_w, self.trans_w, self.mfma_w, self.salu_w):
                tab.pop(r, None)
        if I.kind == "mfma":
            for r in I.w: self.mfma_w[r] = (p, I.passes, tuple(I.w))
            for r in I.srcc: self.mfma_c[r] = (p, I.passes)
        elif I.kind == "valu":
            for r in I.w:
                self.valu_w[r] = p
                if I.base in TRANS: self.trans_w[r] = p
        elif I.kind == "salu":
            for r in I.w: self.salu_w[r] = p
        elif I.kind == "ds":
            self.lgq.append((tag, set(I.w)))
        elif I.kind == "smem":
            self.lgq.append(("__smem", set(I.w) - {("s", 93), ("s", 23)}))
        elif I.kind == "vmem":
            self.vmq.append((tag, set(I.w)))
            if I.wide_store:
                for r in I.wide_store: self.store_d[r] = p
    def items(self, L):
        for it in L:
            if isinstance(it, str): self(it)
            elif callable(it): it(self)
            elif it[0] == "tag": self(it[1], tag=it[2])
            elif it[0] == "waitvm": self.wait_vm(it[1])
            elif it[0] == "waitlg": self.wait_lg(it[1])
            elif it[0] == "group": self.items(it[1])
            else: raise ValueError(it)
    def text(self): return "\n".join(self.out) + "\n"

def merge(a, b, lead=0):
    out = list(b[:lead]); b = b[lead:]
    na, nb = len(a), len(b)
    j = 0
    for i, x in enumerate(a):
        out.append(x)
        while j < nb and (j + 1) * na <= (i + 1) * nb + (na - 1) * 0 :
            out.append(b[j]); j += 1
    out += b[j:]
    return out
```

```python
import math
from asmlib import *

def gen_A(E, G):
    f32, Alloc, srd, spin, newlabel = G.f32, G.Alloc, G.srd, G.spin, G.newlabel
    rWS, rOUT, rDBG, rIN, rW, rWO, rPHI = G.rWS, G.rOUT, G.rDBG, G.rIN, G.rW, G.rWO, G.rPHI
    sN = G.sN
    E.reset()
    E.lgq = [("__smem", set())]
    ST = G.Stamps(24)
    sW, sR, sP, sPQ, sTBo, sCT, sROT = 76, 77, 78, 79, 80, 81, 82
    sT0, sT1, sT2, sXB, sGRP = 4, 5, 6, 7, 8
    RING = 0; SLOT = 10240; BNC = 40960; PHK = 57344; TAB = 77824; ZTAB = TAB + 3200
    KVT = 71680; ZKV = KVT + 3360
    MF = "v_mfma_f32_16x16x32_bf16"
    E(f"s_cmp_ge_u32 s2, {G.NB + G.NA}")
    E("s_cbranch_scc0 L_goA")
    E("s_endpgm")
    E.label("L_goA")
    E("s_setprio 2")
    A = Alloc(1, 256)
    vL = A(); vG = A(); vC = A()
    X = A(160, 4)
    ACC = A(24, 4)
    WF = A(16, 4)
    TM = A(40, 4)
    vWo = [A(), A(), A()]
    vXo = A()
    vBw = A(); vBr = A()
    vWk = A()
    vWv = A(); vWc = A()
    vMn = A(); MP = A(2, 2)
    vt = [TM + 32 + i for i in range(8)]
    E(f"v_and_b32 v{vL}, 63, v0")
    E(f"v_lshrrev_b32 v{vt[0]}, 6, v0")
    E(f"v_lshrrev_b32 v{vG}, 4, v{vL}")
    E(f"v_readfirstlane_b32 s{sW}, v{vt[0]}")
    E(f"v_and_b32 v{vC}, 15, v{vL}")
    E(f"s_sub_u32 s{sT2}, s2, {G.NB}")
    E(f"s_and_b32 s{sT0}, s{sT2}, 7")
    E(f"s_lshr_b32 s{sT1}, s{sT2}, 3")
    E(f"s_lshr_b32 s{sCT}, s{sT1}, 2")
    E(f"s_and_b32 s{sT1}, s{sT1}, 3")
    E(f"s_lshl_b32 s{sTBo}, s{sT0}, 2")
    E(f"s_add_u32 s{sTBo}, s{sTBo}, s{sT1}")
    E(f"s_lshr_b32 s{sR}, s{sT0}, 1")
    E(f"s_lshl_b32 s{sR}, s{sR}, 2")
    E(f"s_add_u32 s{sR}, s{sR}, s{sT1}")
    E(f"s_and_b32 s{sP}, s{sT0}, 1")
    E(f"s_lshl_b32 s{sP}, s{sP}, 3")
    E(f"s_add_u32 s{sP}, s{sP}, s{sCT}")
    E(f"s_xor_b32 s{sPQ}, s{sP}, 1")
    E(f"s_mul_i32 s{sROT}, s{sT1}, 3")
    E(f"s_add_u32 s{sROT}, s{sROT}, s{sCT}")
    E(f"s_sub_u32 s{sT0}, s{sROT}, 10")
    E(f"s_cmp_ge_u32 s{sROT}, 10")
    E(f"s_cselect_b32 s{sROT}, s{sT0}, s{sROT}")
    E(f"v_lshrrev_b32 v{vt[0]}, 3, v{vL}")
    E(f"v_and_b32 v{vt[1]}, 7, v{vL}")
    E(f"v_mul_u32_u24 v{vXo}, 1280, v{vt[0]}")
    E(f"v_lshl_add_u32 v{vXo}, v{vt[1]}, 4, v{vXo}")
    E(f"s_lshl_b32 s{sXB}, s{sR}, 2")
    E(f"s_add_u32 s{sXB}, s{sXB}, s{sW}")
    E(f"s_mul_i32 s{sXB}, s{sXB}, {32*1280}")
    for m in range(3):
        E(f"v_add_u32 v{vt[2]}, {64*m}, v{vL}")
        E(f"v_mul_u32_u24 v{vt[3]}, 0x3334, v{vt[2]}")
        E(f"v_lshrrev_b32 v{vt[3]}, 16, v{vt[3]}")
        E(f"v_mul_u32_u24 v{vt[4]}, 5, v{vt[3]}")
        E(f"v_sub_u32 v{vt[2]}, v{vt[2]}, v{vt[4]}")
        E(f"v_bfe_u32 v{vt[4]}, v{vt[3]}, 2, 2")
        E(f"v_and_b32 v{vt[5]}, 3, v{vt[3]}")
        E(f"v_lshl_add_u32 v{vt[5]}, v{vt[4]}, 3, v{vt[5]}")
        E(f"v_bfe_u32 v{vt[4]}, v{vt[3]}, 4, 1")
        E(f"v_lshl_add_u32 v{vt[5]}, v{vt[4]}, 2, v{vt[5]}")
        E(f"v_mul_u32_u24 v{vWo[m]}, 3840, v{vt[5]}")
        E(f"v_lshl_add_u32 v{vWo[m]}, v{vt[2]}, 4, v{vWo[m]}")
    E.wait_lg()
    ST(E, "start")
    srd(E, rIN, G.pX, 2621440)
    srd(E, rW, G.pW, 2457600)

    def grp(dst, k):
        return [f"s_add_u32 s{dst}, s{sROT}, {k}", f"s_sub_u32 s9, s{dst}, 10", f"s_cmp_ge_u32 s{dst}, 10", f"s_cselect_b32 s{dst}, s9, s{dst}"]
    sWH, sWL, sWM = 12, 3, 11
    E(f"s_lshr_b32 s{sWH}, s{sW}, 1")
    E(f"s_and_b32 s{sWL}, s{sW}, 1")
    E(f"s_mul_i32 s{sWL}, s{sWL}, {32*3840}")
    E(f"s_mul_i32 s{sWM}, s{sW}, 2560")
    sSEC = [100, 101, 99]
    E(f"s_mul_i32 s{sT0}, s{sP}, 80")
    E(f"s_add_u32 s{sT0}, s{sT0}, s{sWL}")
    E(f"s_add_u32 s{sSEC[0]}, s{sT0}, 1280")
    E(f"s_add_u32 s{sSEC[1]}, s{sT0}, 2560")
    E(f"s_mul_i32 s{sT0}, s{sPQ}, 80")
    E(f"s_add_u32 s{sSEC[2]}, s{sT0}, s{sWL}")
    def issueW(sig):
        ph, st = divmod(sig, 5)
        L = [f"s_add_u32 s{sGRP}, s{sROT}, s{sWH}", f"s_add_u32 s{sGRP}, s{sGRP}, {2*st}",
             f"s_sub_u32 s9, s{sGRP}, 10", f"s_cmp_ge_u32 s{sGRP}, 10", f"s_cselect_b32 s{sGRP}, s9, s{sGRP}",
             f"s_mul_i32 s{sGRP}, s{sGRP}, {64*3840}", f"s_add_u32 s{sGRP}, s{sGRP}, s{sSEC[ph]}"]
        g = []
        for m in range(3):
            g.append(f"s_add_u32 m0, s{sWM}, {RING + SLOT*(sig%4) + 1024*m}")
            if m == 2: g.append("s_mov_b32 exec_hi, 0")
            g.append(("tag", f"buffer_load_dwordx4 v{vWo[m]}, s[{rW}:{rW+3}], s{sGRP} offen lds", f"W{sig}"))
            if m == 2: g.append("s_mov_b64 exec, -1")
        return [("group", L + g)]
    def issueX(u):
        L = grp(sT0, u) + [f"s_lshl_b32 s{sT0}, s{sT0}, 7", f"s_add_u32 s{sT0}, s{sT0}, s{sXB}"]
        for i in range(4):
            L.append(f"s_add_u32 s{sT1}, s{sT0}, {8*1280*i}")
            L.append(f"buffer_load_dwordx4 {v(X+16*u+4*i,4)}, v{vXo}, s[{rIN}:{rIN+3}], s{sT1} offen")
        return [("group", L)]
    E(issueW(0)); E(issueX(0)); E(issueX(1))
    srd(E, rPHI, G.pPHI, 25600)
    E(f"s_lshr_b32 s{sT0}, s{sP}, 1")
    E(f"s_mul_i32 s{sT0}, s{sT0}, 3200")
    E(f"v_lshlrev_b32 v{vt[2]}, 4, v0")
    E(f"v_cmp_gt_u32 vcc, 200, v0")
    E(f"v_mov_b32 v{vt[3]}, 0x100000")
    E(f"v_cndmask_b32 v{vt[2]}, v{vt[3]}, v{vt[2]}, vcc")
    E(f"s_lshl_b32 s{sT1}, s{sW}, 10")
    E(f"s_add_u32 m0, s{sT1}, {TAB}")
    E(f"buffer_load_dwordx4 v{vt[2]}, s[{rPHI}:{rPHI+3}], s{sT0} offen lds", tag="phi")
    srd(E, rWS, G.pWS, G.WS_SIZE)
    srd(E, rOUT, G.pOUT, 5242880)
    srd(E, rDBG, G.pDBG, 256)
    srd(E, rWO, G.pWO, 819200)
    E(f"s_lshl_b32 s{sT0}, s{sW}, 12")
    E(f"s_add_u32 s{sT0}, s{sT0}, {BNC}")
    E(f"v_xor_b32 v{vt[2]}, v{vt[0]}, v{vt[1]}")
    E(f"v_lshlrev_b32 v{vBw}, 7, v{vt[0]}")
    E(f"v_lshl_add_u32 v{vBw}, v{vt[2]}, 4, v{vBw}")
    E(f"v_add_u32 v{vBw}, s{sT0}, v{vBw}")
    E(f"v_xor_b32 v{vt[2]}, v{vG}, v{vt[1]}")
    E(f"v_lshlrev_b32 v{vBr}, 7, v{vC}")
    E(f"v_lshl_add_u32 v{vBr}, v{vt[2]}, 4, v{vBr}")
    E(f"v_add_u32 v{vBr}, s{sT0}, v{vBr}")
    vBr2 = TM + 31
    E(f"v_xor_b32 v{vBr2}, 64, v{vBr}")
    E(f"v_lshrrev_b32 v{vt[2]}, 2, v{vL}")
    E(f"v_mul_u32_u24 v{vt[2]}, 80, v{vt[2]}")
    E(f"v_and_b32 v{vt[3]}, 3, v{vL}")
    E(f"v_lshl_add_u32 v{vWv}, v{vt[3]}, 3, v{vt[2]}")
    E(f"v_and_b32 v{vt[4]}, 1, v{vL}")
    E(f"v_mul_u32_u24 v{vt[4]}, 40, v{vt[4]}")
    E(f"v_add_u32 v{vWc}, v{vt[2]}, v{vt[4]}")
    E(f"v_bfe_u32 v{vt[5]}, v{vL}, 1, 1")
    E(f"v_lshl_add_u32 v{vWk}, v{vt[5]}, 3, v{vWc}")

    def gemm_stage(sig):
        ph, st = divmod(sig, 5)
        seq = []
        for ks in range(4):
            sx = 4 * st + ks
            for T in range(3):
                base = RING + SLOT * (sig % 4) + 2560 * ks
                b = WF + 4 * ((3 * ks + T) % 4)
                if ph == 1:
                    a, off = (vWv, 40 * T) if T < 2 else (vWc, 32)
                else:
                    a, off = vWk, 16 * T
                rd = [f"ds_read_b64_tr_b16 {v(b+2*h,2)}, v{a} offset:{base + off + 1280*h}" for h in range(2)]
                mm = []
                for tau in range(2):
                    xf = v(X + 16 * (sx // 2) + 8 * tau + 4 * (sx % 2), 4)
                    d = v(ACC + 8 * T + 4 * tau, 4)
                    c = d if sx else "0"
                    mm.append(f"{MF} {d}, {xf}, {v(b,4)}, {c}" if ph == 1 else f"{MF} {d}, {v(b,4)}, {xf}, {c}")
                seq.append((rd, mm))
        L = seq[0][0] + seq[1][0] + seq[2][0]
        for i in range(12):
            if i + 3 < 12: L += seq[i + 3][0]
            L += seq[i][1]
        return L
    def bounce(u):
        L = [f"ds_write_b128 v{vBw}, {v(X+16*u+4*i,4)} offset:{1024*i}" for i in range(4)]
        for tau in range(2):
            for sp in range(2):
                L.append(f"ds_read_b128 {v(X+16*u+8*tau+4*sp,4)}, v{vBr if sp == 0 else vBr2} offset:{2048*tau}")
        return L
    for st in range(5):
        E(issueW(st + 1))
        if st < 4:
            E(issueX(2 * st + 2)); E(issueX(2 * st + 3))
        else:
            E(issueW(6))
        E(bounce(2 * st)); E(bounce(2 * st + 1))
        E.wait_vm(f"W{st}")
        if st == 0: E.wait_vm("phi")
        E("s_barrier")
        if st == 0: ST(E, "first")
        E(gemm_stage(st))
    ST(E, "Kgemm")
    vNon = vXo; vFl = TM + 24
    nld = G.nonce_load(E, vNon)

    L2E = math.log2(math.e)
    QB = TM + 20
    PP = TM
    EE = TM + 20
    vPa = vBw
    vM = vBr
    def phi_addr(hsel_sgpr_expr):
        return [f"v_and_b32 v{vt[0]}, 1, v{vG}",
                f"v_add_u32 v{vt[0]}, {hsel_sgpr_expr}, v{vt[0]}",
                f"v_mul_u32_u24 v{vt[0]}, 800, v{vt[0]}",
                f"v_bfe_u32 v{vt[1]}, v{vL}, 2, 2",
                f"v_mul_u32_u24 v{vt[1]}, 40, v{vt[1]}",
                f"v_add3_u32 v{vt[0]}, v{vt[0]}, v{vt[1]}, s{sT2}",
                f"v_and_b32 v{vt[1]}, 3, v{vL}",
                f"v_cmp_eq_u32 vcc, v{vt[1]}, v{vG}",
                f"v_mov_b32 v{vPa}, {ZTAB}",
                f"v_cndmask_b32 v{vPa}, v{vPa}, v{vt[0]}, vcc"]
    def pre_softmax(pair_sgpr):
        E(f"s_and_b32 s{sT0}, s{pair_sgpr}, 1")
        E(f"s_lshl_b32 s{sT0}, s{sT0}, 1")
        E(f"s_mov_b32 s{sT2}, {TAB}")
        E(phi_addr(f"s{sT0}"))
        frs = [(Tq, c) for c in range(3) for Tq in range(5)]
        def rd(i):
            Tq, c = frs[i]; b = WF + 4 * (i % 4)
            L = [f"ds_read_b64_tr_b16 {v(b,2)}, v{vPa} offset:{320*c + 8*Tq}"]
            if c < 2: L.append(f"ds_read_b64_tr_b16 {v(b+2,2)}, v{vPa} offset:{320*c + 160 + 8*Tq}")
            return L
        E(rd(0) + rd(1) + rd(2))
        for T in range(3):
            for tau in range(2):
                for e in range(2):
                    a = ACC + 8 * T + 4 * tau + 2 * e
                    E(f"v_cvt_pk_bf16_f32 v{QB+4*T+2*tau+e}, v{a}, v{a+1}")
        for T in range(3):
            for e in range(2):
                E(f"v_permlane32_swap_b32 v{QB+4*T+e}, v{QB+4*T+2+e}")
        E(f"v_mov_b32 v{QB+10}, 0"); E(f"v_mov_b32 v{QB+11}, 0")
        for i in range(15):
            if i + 3 < 15: E(rd(i + 3))
            Tq, c = frs[i]
            d = v(PP + 4 * Tq, 4)
            E(f"{MF} {d}, {v(WF+4*(i%4),4)}, {v(QB+4*c,4)}, {d if c else 0}")
    def softmax(out_plus, out_minus, after_plus, mpair):
        mx, mn = mpair, vMn
        L = [f"v_max3_f32 v{mx}, v{PP}, v{PP+1}, v{PP+2}", f"v_min3_f32 v{mn}, v{PP}, v{PP+1}, v{PP+2}"]
        for i in range(3, 19, 2):
            L += [f"v_max3_f32 v{mx}, v{mx}, v{PP+i}, v{PP+i+1}", f"v_min3_f32 v{mn}, v{mn}, v{PP+i}, v{PP+i+1}"]
        L += [f"v_max_f32 v{mx}, v{mx}, v{PP+19}", f"v_min_f32 v{mn}, v{mn}, v{PP+19}"]
        m = mpair
        for sgn, dst, src, outp in ((1, EE, mx, out_plus), (-1, PP, mn, out_minus)):
            L.append(f"v_mul_f32 v{m}, s94, v{src}")
            neg = "neg_lo:[0,0,1] neg_hi:[0,0,1]" if sgn > 0 else "neg_lo:[1,0,0] neg_hi:[1,0,0]"
            for i in range(10):
                L.append(f"v_pk_fma_f32 {v(dst+2*i,2)}, {v(PP+2*i,2)}, s[94:95], {v(m,2)} op_sel_hi:[1,1,0] {neg}")
            for i in range(20):
                L.append(f"v_exp_f32 v{dst+i}, v{dst+i}")
            L.append(f"v_pk_add_f32 {v(m,2)}, {v(dst,2)}, {v(dst+2,2)}")
            for i in range(2, 10):
                L.append(f"v_pk_add_f32 {v(m,2)}, {v(m,2)}, {v(dst+2*i,2)}")
            L += [f"v_add_f32 v{m}, v{m}, v{m+1}", f"v_rcp_f32 v{m}, v{m}"]
            for i in range(10):
                L.append(f"v_pk_mul_f32 {v(dst+2*i,2)}, {v(dst+2*i,2)}, {v(m,2)} op_sel_hi:[1,0]")
                L.append(f"v_cvt_pk_bf16_f32 v{outp+i}, v{dst+2*i}, v{dst+2*i+1}")
            if sgn > 0: L += after_plus
        return L
    E(f"s_mov_b32 s94, {f32(L2E)}"); E(f"s_mov_b32 s95, {f32(L2E)}")
    pre_softmax(sP)
    vPk = vBr
    E(f"v_and_b32 v{MP}, 1, v{vG}")
    E(f"v_mul_u32_u24 v{vPk}, 10240, v{MP}")
    E(f"v_lshrrev_b32 v{MP}, 1, v{vG}")
    E(f"v_lshl_add_u32 v{MP}, v{MP}, 4, v{vC}")
    E(f"v_mul_u32_u24 v{MP}, 80, v{MP}")
    E(f"s_add_u32 s{sT0}, s{sWM}, {PHK}")
    E(f"v_add3_u32 v{vPk}, v{vPk}, v{MP}, s{sT0}")
    ST(E, "pk")
    wp = [f"ds_write_b128 v{vPk}, {v(EE,4)}", f"ds_write_b128 v{vPk}, {v(EE+4,4)} offset:16", f"ds_write_b64 v{vPk}, {v(EE+8,2)} offset:32"]
    wm = [f"ds_write_b64 v{vPk}, {v(PP,2)} offset:40", f"ds_write_b128 v{vPk}, {v(PP+2,4)} offset:48", f"ds_write_b128 v{vPk}, {v(PP+6,4)} offset:64"]
    sm = softmax(EE, PP, wp, MP) + wm
    n5 = (len(sm) + 4) // 5
    for st in range(5):
        sig = 5 + st
        E.wait_vm(f"W{sig}")
        E("s_barrier")
        E(issueW(sig + 2))
        E(merge(gemm_stage(sig), sm[n5 * st:n5 * (st + 1)]))
    ST(E, "Vgemm")
    G.nonce_get(E, nld, vNon)
    E(f"v_min_u32 v{vt[0]}, 39, v{vL}")
    E(f"v_lshrrev_b32 v{vt[1]}, 1, v{vt[0]}")
    E(f"v_and_b32 v{vt[0]}, 1, v{vt[0]}")
    E(f"v_lshlrev_b32 v{vt[0]}, 4, v{vt[0]}")
    E(f"v_lshl_add_u32 v{vt[7]}, v{vt[1]}, 7, v{vt[0]}")
    E(f"s_mov_b32 s98, {G.FLAG_BASE}")
    fld = f"buffer_load_dwordx4 {v(vFl,4)}, v{vt[7]}, s[{rWS}:{rWS+3}], s98 offen sc1"
    E(fld, tag="flags")
    VP = TM
    for T in range(3):
        for tau in range(2):
            for e in range(2):
                a = ACC + 8 * T + 4 * tau + 2 * e
                E(f"v_cvt_pk_bf16_f32 v{VP+4*T+2*tau+e}, v{a}, v{a+1}")
    E(f"v_cmp_lt_u32 vcc, 7, v{vC}")
    E(f"v_mov_b32 v{vt[0]}, 0x3f803f80")
    for i in range(4): E(f"v_cndmask_b32 v{VP+8+i}, v{VP+8+i}, v{vt[0]}, vcc")
    E(f"s_mul_i32 s{sT0}, s{sW}, 3072")
    E(f"s_add_u32 s{sT0}, s{sT0}, {BNC}")
    E(f"v_lshl_add_u32 v{vt[0]}, v{vL}, 4, s{sT0}")
    for T in range(3): E(f"ds_write_b128 v{vt[0]}, {v(VP+4*T,4)} offset:{1024*T}")
    sH, sVT = 96, 97
    E(f"s_and_b32 s{sH}, s{sW}, 1")
    E(f"s_lshr_b32 s{sVT}, s{sW}, 1")
    E(f"s_cmp_eq_u32 s{sVT}, 0")
    E(f"s_cselect_b32 s{sT0}, s{sH}, 2")
    E(f"s_lshl_b32 s{sT0}, s{sT0}, 10")
    E(f"s_add_u32 s{sT0}, s{sT0}, {BNC}")
    vVb, vA0, vA2 = vt[1], vt[2], vt[3]
    E(f"v_lshl_add_u32 v{vVb}, v{vL}, 4, s{sT0}")
    E(f"s_mul_i32 s{sT0}, s{sH}, 10240")
    E(f"s_add_u32 s{sT0}, s{sT0}, {PHK}")
    E(f"v_add_u32 v{vA2}, s{sT0}, v{vWv}")
    E(f"v_and_b32 v{vt[4]}, 3, v{vL}")
    E(f"v_lshl_add_u32 v{vA0}, v{vt[4]}, 3, v{vA2}")
    vD = vt[4]; vS1 = vt[5]; vS2 = vt[6]
    E(f"s_lshl_b32 s{sT0}, s{sH}, 2")
    E(f"v_subrev_u32 v{vS1}, s{sT0}, v{vC}")
    E(f"v_add_u32 v{vD}, 16, v{vS1}")
    E(f"v_cmp_gt_u32 vcc, 4, v{vS1}")
    E(f"v_mov_b32 v{vS2}, 0x400000")
    E(f"v_cndmask_b32 v{vD}, v{vS2}, v{vD}, vcc")
    E(f"s_cmp_eq_u32 s{sVT}, 0")
    E(f"s_cselect_b64 vcc, -1, 0")
    E(f"v_cndmask_b32 v{vD}, v{vD}, v{vC}, vcc")
    E(f"s_lshl_b32 s{sT0}, s{sH}, 4")
    E(f"v_add_u32 v{vD}, s{sT0}, v{vD}")
    E(f"v_subrev_u32 v{vS1}, 20, v{vD}")
    E(f"v_min_u32 v{vD}, v{vD}, v{vS1}")
    E(f"s_cmp_eq_u32 s{sVT}, 0")
    E(f"s_cselect_b32 s{sT0}, 64, 8")
    E(f"v_cmp_eq_u32 vcc, s{sT0}, v{vC}")
    E(f"v_mov_b32 v{vS1}, 20")
    E(f"v_cndmask_b32 v{vD}, v{vD}, v{vS1}, vcc")
    E(f"v_lshlrev_b32 v{vD}, 4, v{vD}")
    E(f"v_mul_u32_u24 v{vS1}, 336, v{vG}")
    E(f"v_add_u32 v{vS1}, v{vS1}, v{vD}")
    E(f"v_lshl_add_u32 v{vS2}, v{vG}, 3, v{vD}")
    E(f"v_cmp_gt_u32 vcc, 2, v{vG}")
    E(f"v_mov_b32 v{vD}, 0x4000000")
    E(f"v_cndmask_b32 v{vS2}, v{vD}, v{vS2}, vcc")
    E(f"s_lshl_b32 s{sT0}, s{sP}, 4")
    E(f"s_add_u32 s{sT0}, s{sT0}, s{sR}")
    E(f"s_mul_i32 s{sT0}, s{sT0}, {G.P_PITCH}")
    E(f"s_mul_i32 s{sT1}, s{sH}, 1680")
    E(f"s_add_u32 s{sT0}, s{sT0}, s{sT1}")
    E(f"s_add_u32 s{sT2}, s{sT0}, {G.P_BASE}")
    E.wait_lg()
    E("s_barrier")
    VB = TM
    KD = ACC
    for j in range(4): E(f"ds_read_b128 {v(VB+4*j,4)}, v{vVb} offset:{3072*j}")
    fr = [(j, ft) for j in range(4) for ft in range(3)]
    def rdk(i):
        j, ft = fr[i]; b = WF + 4 * (i % 4)
        a, off = (vA0, 8 * ft) if ft < 2 else (vA2, 64)
        return [f"ds_read_b64_tr_b16 {v(b+2*h,2)}, v{a} offset:{2560*j + 1280*h + off}" for h in range(2)]
    E(rdk(0) + rdk(1) + rdk(2))
    for i in range(12):
        if i + 3 < 12: E(rdk(i + 3))
        j, ft = fr[i]; d = v(KD + 4 * ft, 4)
        E(f"{MF} {d}, {v(WF+4*(i%4),4)}, {v(VB+4*j,4)}, {d if j else 0}")
    spin(E, [fld], [f"v_xor_b32 v{vFl}, s{sN}, v{vFl}", f"v_xor_b32 v{vFl+1}, s{sN}, v{vFl+1}", f"v_xor_b32 v{vFl+2}, s{sN}, v{vFl+2}",
                    f"v_xor_b32 v{vFl+3}, s{sN}, v{vFl+3}", f"v_or3_b32 v{vFl}, v{vFl}, v{vFl+1}, v{vFl+2}", f"v_or_b32 v{vFl}, v{vFl}, v{vFl+3}",
                    f"v_cmp_ne_u32 vcc, 0, v{vFl}"], "flags")
    KP = TM + 16
    for i in range(6):
        E(f"v_cvt_pk_bf16_f32 v{KP+i}, v{KD+2*i}, v{KD+2*i+1}")
        E(f"v_min_u32 v{KP+i}, -2, v{KP+i}")
    E(f"buffer_store_dwordx4 {v(KP,4)}, v{vS1}, s[{rWS}:{rWS+3}], s{sT2} offen sc1")
    E(f"buffer_store_dwordx2 {v(KP+4,2)}, v{vS2}, s[{rWS}:{rWS+3}], s{sT2} offen offset:1344 sc1")
    ST(E, "T0")
    vOo = [vWv, vWc, vXo]
    def wo_setup():
        L = []
        for m in range(3):
            L += [f"v_add_u32 v{vt[2]}, {64*m}, v{vL}",
                  f"v_mul_u32_u24 v{vt[3]}, 0x199a, v{vt[2]}",
                  f"v_lshrrev_b32 v{vt[3]}, 16, v{vt[3]}",
                  f"v_mul_u32_u24 v{vt[4]}, 10, v{vt[3]}",
                  f"v_sub_u32 v{vt[2]}, v{vt[2]}, v{vt[4]}",
                  f"v_lshrrev_b32 v{vt[4]}, 2, v{vt[3]}",
                  f"v_and_b32 v{vt[3]}, 3, v{vt[3]}",
                  f"v_lshl_add_u32 v{vt[3]}, v{vt[4]}, 3, v{vt[3]}",
                  f"v_mul_u32_u24 v{vOo[m]}, 1280, v{vt[3]}",
                  f"v_lshl_add_u32 v{vOo[m]}, v{vt[2]}, 4, v{vOo[m]}"]
        L += [f"s_lshl_b32 s100, s{sVT}, 3", f"s_add_u32 s100, s100, s{sH}", f"s_mul_i32 s100, s100, {4*1280}",
              f"s_mul_i32 s9, s{sCT}, 160", f"s_add_u32 s100, s100, s9"]
        return L
    def wo_slot(stage): return BNC + 10240 * (stage % 7) if (stage < 3 or stage >= 7) else 10240 * (stage - 3)
    def issueO(stage):
        g = [f"s_add_u32 s{sGRP}, s100, {64*1280*stage}"]
        for m in range(3):
            g.append(f"s_add_u32 m0, s{sWM}, {wo_slot(stage) + 1024*m}")
            if m == 2: g.append("s_mov_b32 exec_hi, 0")
            g.append(("tag", f"buffer_load_dwordx4 v{vOo[m]}, s[{rWO}:{rWO+3}], s{sGRP} offen lds", f"O{stage}"))
            if m == 2: g.append("s_mov_b64 exec, -1")
        return [("group", g)]
    E(wo_setup())
    for st in range(5):
        sig = 10 + st
        E.wait_vm(f"W{sig}")
        E("s_barrier")
        if sig + 2 < 15: E(issueW(sig + 2))
        if st >= 2: E(issueO(st - 2))
        if st == 0:
            E(f"v_lshlrev_b32 v{vt[0]}, 3, v0")
            E(f"v_add_u32 v{vt[0]}, {ZKV}, v{vt[0]}")
            E(f"v_mov_b32 v{vt[2]}, 0"); E(f"v_mov_b32 v{vt[3]}, 0")
            E(f"ds_write_b64 v{vt[0]}, {v(vt[2],2)}")
        E(gemm_stage(sig))
    ST(E, "Qgemm")
    PL = X
    PH = X + 64
    vPi = X + 84
    E(f"v_min_u32 v{vPi}, 209, v0")
    E(f"v_lshlrev_b32 v{vPi}, 4, v{vPi}")
    E(f"s_mul_i32 s101, s{sPQ}, {16*G.P_PITCH}")
    E(f"s_add_u32 s101, s101, {G.P_BASE}")
    pld = []
    for r in range(16):
        pld += [f"s_add_u32 s9, s101, {G.P_PITCH*r}", f"buffer_load_dwordx4 {v(PL+4*r,4)}, v{vPi}, s[{rWS}:{rWS+3}], s9 offen sc1"]
    for t in pld: E(t, tag="part" if t.startswith("buffer") else None)
    pre_softmax(sPQ)
    E(softmax(PH, PH + 10, [], MP))
    ST(E, "phiq")
    vCk = X + 85
    chk = [f"v_max3_u32 v{vCk}, v{PL}, v{PL+1}, v{PL+2}"]
    for i in range(3, 63, 2): chk.append(f"v_max3_u32 v{vCk}, v{vCk}, v{PL+i}, v{PL+i+1}")
    chk += [f"v_max_u32 v{vCk}, v{vCk}, v{PL+63}", f"v_cmp_eq_u32 vcc, -1, v{vCk}"]
    spin(E, pld, chk, "part")
    ST(E, "part")
    SM = TM
    for r in range(16):
        for e in range(4):
            src = PL + 4 * r + e
            if r == 0:
                E(f"v_lshlrev_b32 v{SM+2*e}, 16, v{src}"); E(f"v_and_b32 v{SM+2*e+1}, 0xffff0000, v{src}")
            else:
                t = SM + 8 + 2 * (e % 2)
                E(f"v_lshlrev_b32 v{t}, 16, v{src}"); E(f"v_and_b32 v{t+1}, 0xffff0000, v{src}")
                E(f"v_pk_add_f32 {v(SM+2*e,2)}, {v(SM+2*e,2)}, {v(t,2)}")
    for e in range(4): E(f"v_cvt_pk_bf16_f32 v{SM+12+e}, v{SM+2*e}, v{SM+2*e+1}")
    E(f"v_add_u32 v{vPi}, {KVT}, v{vPi}")
    E(f"ds_write_b128 v{vPi}, {v(SM+12,4)}")
    vKa = X + 86
    E(f"v_and_b32 v{vt[0]}, 1, v{vG}")
    E(f"v_mul_u32_u24 v{vt[1]}, 1680, v{vt[0]}")
    E(f"v_and_b32 v{vt[2]}, 3, v{vL}")
    E(f"v_lshl_add_u32 v{vt[1]}, v{vt[2]}, 4, v{vt[1]}")
    E(f"v_add_u32 v{vt[1]}, {KVT}, v{vt[1]}")
    E(f"v_lshrrev_b32 v{vt[2]}, 2, v{vC}")
    E(f"v_cmp_eq_u32 vcc, v{vt[2]}, v{vG}")
    E(f"v_mov_b32 v{vKa}, {ZKV}")
    E(f"v_cndmask_b32 v{vKa}, v{vKa}, v{vt[1]}, vcc")
    vO1, vO3 = X + 87, X + 88
    E(f"v_lshrrev_b32 v{vt[1]}, 1, v{vG}")
    E(f"v_mul_u32_u24 v{vt[1]}, 20480, v{vt[1]}")
    E(f"v_lshl_add_u32 v{vt[1]}, v{vC}, 4, v{vt[1]}")
    E(f"v_mul_u32_u24 v{vO1}, 768, v{vt[0]}")
    E(f"v_add_u32 v{vO1}, v{vO1}, v{vt[1]}")
    E(f"v_lshl_add_u32 v{vO3}, v{vt[0]}, 3, v{vt[1]}")
    E(f"s_lshl_b32 s{sT0}, s{sR}, 2")
    E(f"s_add_u32 s{sT0}, s{sT0}, s{sW}")
    E(f"s_mul_i32 s{sT0}, s{sT0}, 40960")
    E(f"s_mul_i32 s{sT1}, s{sPQ}, 1280")
    E(f"s_add_u32 s{sT0}, s{sT0}, s{sT1}")
    E(f"s_add_u32 s{sT2}, s{sT0}, {G.O_BASE}")
    E.wait_vm("O2")
    E.wait_lg()
    E("s_barrier")
    for stg in range(3, 7): E(issueO(stg))
    OD = ACC
    fo = [(c, T) for c in range(5) for T in (5, 0, 1, 2, 3, 4)]
    AF = TM
    def rdo(i):
        c, T = fo[i]
        return [f"ds_read_b128 {v(AF+4*(i%8),4)}, v{vKa} offset:{336*c + 64*T}"]
    for i in range(7): E(rdo(i))
    for i in range(30):
        if i + 7 < 30: E(rdo(i + 7))
        c, T = fo[i]; d = v(OD + 4 * T, 4)
        E(f"{MF} {d}, {v(AF+4*(i%8),4)}, {v(PH+4*c,4)}, {d if c else 0}")
    E(f"v_add_f32 v{MP}, {f32(1e-6)}, v{OD+20}")
    E(f"v_rcp_f32 v{MP}, v{MP}")
    OP = TM + 20
    for i in range(10):
        E(f"v_pk_mul_f32 {v(OD+2*i,2)}, {v(OD+2*i,2)}, {v(MP,2)} op_sel_hi:[1,0]")
        E(f"v_cvt_pk_bf16_f32 v{OP+i}, v{OD+2*i}, v{OD+2*i+1}")
        E(f"v_min_u32 v{OP+i}, -2, v{OP+i}")
    E(f"buffer_store_dwordx4 {v(OP,4)}, v{vO1}, s[{rWS}:{rWS+3}], s{sT2} offen sc1")
    E(f"buffer_store_dwordx4 {v(OP+4,4)}, v{vO1}, s[{rWS}:{rWS+3}], s{sT2} offen offset:256 sc1")
    E(f"buffer_store_dwordx2 {v(OP+8,2)}, v{vO3}, s[{rWS}:{rWS+3}], s{sT2} offen offset:512 sc1")
    ST(E, "opub")
    WR = X
    OF = X + 120
    def of(ks): return OF + 4 * ks if ks < 10 else TM + 4 * (ks - 10)
    vWr = vWk; vWr2 = vBw
    E(f"v_lshrrev_b32 v{vWr}, 2, v{vL}")
    E(f"v_mul_u32_u24 v{vWr}, 160, v{vWr}")
    E(f"v_and_b32 v{MP}, 3, v{vL}")
    E(f"v_mul_u32_u24 v{MP}, 40, v{MP}")
    E(f"v_add_u32 v{vWr}, v{vWr}, v{MP}")
    E(f"v_add_u32 v{vWr2}, {BNC}, v{vWr}")
    def wo_rd(ks, T, dst):
        base = wo_slot(ks // 2) + 5120 * (ks % 2)
        a = vWr
        if base >= BNC: a, base = vWr2, base - BNC
        return [f"ds_read_b64_tr_b16 {v(dst+2*h,2)}, v{a} offset:{base + 2560*h + 8*T}" for h in range(2)]
    for ks in range(6):
        for T in range(5): E(wo_rd(ks, T, WR + 20 * ks + 4 * T))
    E.wait_lg()
    E("s_barrier")
    for stg in range(7, 10): E(issueO(stg))
    vL16 = vBr
    E(f"v_lshlrev_b32 v{vL16}, 4, v{vL}")
    E(f"s_lshl_b32 s{sT0}, s{sTBo}, 2")
    E(f"s_add_u32 s{sT0}, s{sT0}, s{sW}")
    E(f"s_mul_i32 s101, s{sT0}, 20480")
    E(f"s_add_u32 s101, s101, {G.O_BASE}")
    old = []
    for ks in range(20):
        if ks % 4 == 0: old.append(f"s_add_u32 s9, s101, {4096*(ks//4)}")
        old.append(f"buffer_load_dwordx4 {v(of(ks),4)}, v{vL16}, s[{rWS}:{rWS+3}], s9 offen offset:{1024*(ks%4)} sc1")
    for t in old: E(t, tag="ofr" if t.startswith("buffer") else None)
    regs = [of(ks) + e for ks in range(20) for e in range(4)]
    chk = [f"v_max_u32 v{MP}, v{regs[0]}, v{regs[1]}"]
    for i in range(2, 80, 2): chk.append(f"v_max3_u32 v{MP}, v{MP}, v{regs[i]}, v{regs[i+1]}")
    chk.append(f"v_cmp_eq_u32 vcc, -1, v{MP}")
    spin(E, old, chk, "ofr")
    ST(E, "ofr")
    E.wait_vm()
    E("s_barrier")
    seq = [(ks, T) for ks in range(6, 20) for T in range(5)]
    for i in range(3): E(wo_rd(*seq[i], WF + 4 * (i % 4)))
    for ks in range(6):
        for T in range(5):
            d = v(ACC + 4 * T, 4)
            E(f"{MF} {d}, {v(WR+20*ks+4*T,4)}, {v(of(ks),4)}, {d if ks else 0}")
    for i, (ks, T) in enumerate(seq):
        if i + 3 < len(seq): E(wo_rd(*seq[i + 3], WF + 4 * ((i + 3) % 4)))
        d = v(ACC + 4 * T, 4)
        E(f"{MF} {d}, {v(WF+4*(i%4),4)}, {v(of(ks),4)}, {d}")
    ST(E, "ogemm")
    E("s_barrier")
    RP = X
    E(f"v_mul_u32_u24 v{MP}, 160, v{vC}")
    E(f"v_mul_u32_u24 v{MP+1}, 40, v{vG}")
    E(f"v_add3_u32 v{MP}, v{MP}, v{MP+1}, s{sWM}")
    for T in range(5):
        E(f"v_cvt_pk_bf16_f32 v{RP+2*T}, v{ACC+4*T}, v{ACC+4*T+1}")
        E(f"v_cvt_pk_bf16_f32 v{RP+2*T+1}, v{ACC+4*T+2}, v{ACC+4*T+3}")
        E(f"ds_write_b64 v{MP}, {v(RP+2*T,2)} offset:{8*T}")
    E(f"v_add_u32 v{MP+1}, s{sWM}, v{vL16}")
    for m in range(3): E(f"ds_read_b128 {v(RP+12+4*m,4)}, v{MP+1} offset:{1024*m}")
    E(f"s_lshl_b32 s{sT0}, s{sTBo}, 2")
    E(f"s_add_u32 s{sT0}, s{sT0}, s{sW}")
    E(f"s_mul_i32 s{sT0}, s{sT0}, {16*2560}")
    E(f"s_mul_i32 s{sT1}, s{sCT}, 160")
    E(f"s_add_u32 s{sT0}, s{sT0}, s{sT1}")
    for m in range(3):
        t = RP + 24
        E(f"v_add_u32 v{t}, {64*m}, v{vL}")
        E(f"v_mul_u32_u24 v{t+1}, 0x199a, v{t}")
        E(f"v_lshrrev_b32 v{t+1}, 16, v{t+1}")
        E(f"v_lshlrev_b32 v{t}, 4, v{t}")
        E(f"v_mul_u32_u24 v{t+1}, 2400, v{t+1}")
        E(f"v_add_u32 v{t+2+m}, v{t}, v{t+1}")
        if m == 2: E("s_mov_b32 exec_hi, 0")
        E(f"buffer_store_dwordx4 {v(RP+12+4*m,4)}, v{t+2+m}, s[{rOUT}:{rOUT+3}], s{sT0} offen")
    E("s_mov_b64 exec, -1")
    if G.PROFILE:
        E.wait_vm()
        ST(E, "end")
    ST.dump(E, sW, X + 40)
    E("s_endpgm")
    return ST
```

```python
import sys, struct, math
from asmlib import *

NAME = "concat_heads__linear_kernel_hedgehog__ssm_conv_s4__prompt"
NB, NA = 160, 256
UT_BASE = 0
O_BASE = 4 << 20
P_BASE = O_BASE + 2621440
P_PITCH = 3584
WS_SIZE = 16 << 20
STAMP_BASE = 12 << 20
SPIN_MAX = 200000
FLAG_BASE = 11 << 20
sN = 83

def f32(x): return "0x%08x" % struct.unpack("<I", struct.pack("<f", x))[0]
def f32val(x): return struct.unpack("<f", struct.pack("<f", x))[0]

class Alloc:
    def __init__(self, start, end): self.n = start; self.end = end
    def __call__(self, c=1, al=None):
        al = al or (2 if c >= 2 else 1)
        self.n = (self.n + al - 1) // al * al
        r = self.n; self.n += c
        assert self.n <= self.end, f"out of registers {self.n}"
        return r

pX, pW, pPHI, pWO, pU, pARE, pAIM, pBRE, pBIM, pCRE, pCIM, pLDT, pDSK, pOUT, pDBG, pWS = [16 + 2 * i for i in range(16)]
rWS, rOUT, rDBG, rIN, rW, rWO, rPHI = 48, 52, 56, 60, 64, 68, 72

def srd(E, r, p, size):
    E(f"s_mov_b32 s{r}, s{p}")
    E(f"s_and_b32 s{r+1}, s{p+1}, 0xffff")
    E(f"s_mov_b32 s{r+2}, {size}")
    E(f"s_mov_b32 s{r+3}, 0x00020000")

PROFILE = False
class Stamps:
    def __init__(self, first): self.first = first; self.n = 0; self.names = []
    def __call__(self, E, name):
        if not PROFILE: return
        r = self.first + self.n
        E("s_memtime s[14:15]" if "--cyc" in sys.argv else "s_memrealtime s[14:15]")
        E.wait_lg()
        E(f"s_mov_b32 s{r}, s14")
        self.n += 1; self.names.append(name)
    def dump(self, E, sW, vt):
        if not PROFILE: return
        E(f"v_mov_b32 v{vt}, 0")
        for i in range(self.n):
            E(f"v_writelane_b32 v{vt}, s{self.first+i}, {i}")
        E(f"s_lshl_b32 s3, s2, 2")
        E(f"s_add_u32 s3, s3, s{sW}")
        E(f"s_lshl_b32 s3, s3, 6")
        E(f"s_add_u32 s3, s3, {STAMP_BASE}")
        E(f"v_and_b32 v{vt+1}, 63, v0")
        E(f"v_lshlrev_b32 v{vt+1}, 2, v{vt+1}")
        E("s_mov_b64 exec, 0xffff")
        E(f"buffer_store_dword v{vt}, v{vt+1}, s[{rWS}:{rWS+3}], s3 offen")
        E("s_mov_b64 exec, -1")

_lbl = [0]
def newlabel(p):
    _lbl[0] += 1
    return f"L_{p}_{_lbl[0]}"

def poll_check(E, load_text, vdst, expect_sgpr_or_const, first_tag):
    ok = newlabel("ok"); sp = newlabel("spin")
    E.wait_vm(first_tag)
    E(f"v_cmp_ne_u32 vcc, {expect_sgpr_or_const}, v{vdst}")
    E(f"s_cbranch_vccz {ok}")
    E(f"s_mov_b32 s13, 0")
    E.label(sp)
    E.raw("    " + load_text)
    E.raw("    s_add_u32 s13, s13, 1")
    E.raw(f"    s_cmp_gt_u32 s13, {SPIN_MAX}")
    E.raw(f"    s_cbranch_scc1 {ok}")
    E.raw("    s_waitcnt vmcnt(0)")
    E.raw(f"    v_cmp_ne_u32 vcc, {expect_sgpr_or_const}, v{vdst}")
    E.raw(f"    s_cbranch_vccnz {sp}")
    E.label(ok)

def spin(E, load_texts, check_texts, first_tag):
    ok = newlabel("ok"); sp = newlabel("spin")
    E.wait_vm(first_tag)
    E(check_texts)
    E(f"s_cbranch_vccz {ok}")
    E(f"s_mov_b32 s13, 0")
    E.label(sp)
    for t in load_texts: E.raw("    " + t)
    E.raw("    s_add_u32 s13, s13, 1")
    E.raw(f"    s_cmp_gt_u32 s13, {SPIN_MAX}")
    E.raw(f"    s_cbranch_scc1 {ok}")
    E.raw("    s_waitcnt vmcnt(0)")
    for t in check_texts: E.raw("    " + t)
    E.raw(f"    s_cbranch_vccnz {sp}")
    E.label(ok)

def nonce_load(E, vd):
    ld = f"buffer_load_dword v{vd}, off, s[{rDBG}:{rDBG+3}], 0 sc1"
    E(ld, tag="nonce")
    return ld
def nonce_get(E, ld, vd):
    spin(E, [ld], [f"v_cmp_eq_u32 vcc, 0, v{vd}"], "nonce")
    E(f"v_readfirstlane_b32 s{sN}, v{vd}")

def cmul(dst, a, b, t):
    return [f"v_pk_mul_f32 {v(t,2)}, {v(a,2)}, {v(b,2)} op_sel:[0,0] op_sel_hi:[1,0]",
            f"v_pk_fma_f32 {v(dst,2)}, {v(a,2)}, {v(b,2)}, {v(t,2)} op_sel:[1,1,0] op_sel_hi:[0,1,1] neg_lo:[0,1,0]"]

def zipl(*ls):
    out = []
    for i in range(max(len(l) for l in ls)):
        for l in ls:
            if i < len(l): out.append(l[i])
    return out

def gen_B(E):
    E.reset()
    ST = Stamps(84)
    sW, sCG, sD, sTB, sCB, sSC, sKT, sT0, sT1, sT2 = 76, 77, 78, 79, 80, 81, 82, 4, 5, 6
    U_IMG = 2048; KT_BASE = 18432; KT_SZ = 2560; SC_BASE = 28672; SC_SZ = 11424; PITCH = 544
    Y_PITCH = 4096 + 64
    A = Alloc(1, 256)
    vL = A(); vG = A(); vC = A()
    vt = [A() for _ in range(8)]
    big = A(160, 4)
    E(f"v_and_b32 v{vL}, 63, v0")
    E(f"v_lshrrev_b32 v{vt[0]}, 6, v0")
    E(f"v_lshrrev_b32 v{vG}, 4, v{vL}")
    E(f"v_readfirstlane_b32 s{sW}, v{vt[0]}")
    E(f"v_and_b32 v{vC}, 15, v{vL}")
    E(f"s_and_b32 s{sT0}, s2, 7")
    E(f"s_lshr_b32 s{sT1}, s2, 3")
    E(f"s_mul_i32 s{sCG}, s{sT0}, 20")
    E(f"s_add_u32 s{sCG}, s{sCG}, s{sT1}")
    E(f"s_lshl_b32 s{sD}, s{sCG}, 2")
    E(f"s_add_u32 s{sD}, s{sD}, s{sW}")
    E(f"s_mul_hi_u32 s{sTB}, s2, 0x33333334")
    E(f"s_mul_i32 s{sT0}, s{sTB}, 5")
    E(f"s_sub_u32 s{sCB}, s2, s{sT0}")
    E(f"s_mul_i32 s{sSC}, s{sW}, {SC_SZ}")
    E(f"s_add_u32 s{sSC}, s{sSC}, {SC_BASE}")
    E(f"s_mul_i32 s{sKT}, s{sW}, {KT_SZ}")
    E(f"s_add_u32 s{sKT}, s{sKT}, {KT_BASE}")
    vPo = A(); vSo = A(); vL16 = A()
    E(f"s_lshl_b32 s{sT0}, s{sD}, 8")
    E(f"v_lshlrev_b32 v{vPo}, 2, v{vL}")
    E(f"v_add_u32 v{vPo}, s{sT0}, v{vPo}")
    E(f"s_lshl_b32 s{sT0}, s{sD}, 1")
    E(f"v_mov_b32 v{vt[1]}, s{sT0}")
    E(f"v_mul_u32_u24 v{vSo}, 1280, v{vG}")
    E(f"v_lshl_add_u32 v{vSo}, v{vC}, 4, v{vSo}")
    E(f"v_lshlrev_b32 v{vL16}, 4, v{vL}")
    E.wait_lg()
    ST(E, "start")
    srd(E, rDBG, pDBG, 256)
    vZero = A()
    E(f"v_mov_b32 v{vZero}, 0")
    skip = newlabel("nonce")
    E(f"s_or_b32 s{sT0}, s2, s{sW}")
    E(f"s_cbranch_scc1 {skip}")
    E.raw("    s_or_b32 s10, s10, 1")
    E.raw(f"    v_mov_b32 v{vt[0]}, s10")
    E.raw("    s_mov_b64 exec, 1")
    E.raw(f"    buffer_store_dword v{vt[0]}, v{vZero}, s[{rDBG}:{rDBG+3}], 0 offen sc1")
    E.raw("    s_mov_b64 exec, -1")
    E.label(skip)
    srd(E, rIN, pU, 2621440)
    E(f"s_lshl_b32 s{sT0}, s{sTB}, 6")
    E(f"s_lshl_b32 s{sT1}, s{sW}, 4")
    E(f"s_add_u32 s{sT0}, s{sT0}, s{sT1}")
    E(f"s_mul_i32 s{sT0}, s{sT0}, 1280")
    E(f"s_lshl_b32 s{sT1}, s{sCB}, 8")
    E(f"s_add_u32 s{sT0}, s{sT0}, s{sT1}")
    for i in range(4):
        E(f"s_add_u32 m0, s{sSC}, {1024*i}")
        E(f"s_add_u32 s{sT1}, s{sT0}, {4*1280*i}")
        E(f"buffer_load_dwordx4 v{vSo}, s[{rIN}:{rIN+3}], s{sT1} offen lds", tag="slab")
    P = [A() for _ in range(8)]
    for k, p in enumerate((pARE, pAIM, pBRE, pBIM, pCRE, pCIM)):
        E(f"global_load_dword v{P[k]}, v{vPo}, s[{p}:{p+1}]")
    E(f"global_load_ushort v{P[6]}, v{vt[1]}, s[{pLDT}:{pLDT+1}]")
    E(f"global_load_ushort v{P[7]}, v{vt[1]}, s[{pDSK}:{pDSK+1}]")
    srd(E, rWS, pWS, WS_SIZE)
    srd(E, rOUT, pOUT, 5242880)
    vM1 = big + 140
    for i in range(4): E(f"v_mov_b32 v{vM1+i}, -1")
    E(f"s_mul_i32 s{sT0}, s2, 24576")
    E(f"s_mul_i32 s{sT1}, s{sW}, 6144")
    E(f"s_add_u32 s{sT0}, s{sT0}, s{sT1}")
    E(f"s_add_u32 s{sT0}, s{sT0}, {O_BASE}")
    E(f"s_add_u32 s{sT1}, s{sT0}, 3072")
    for i in range(6):
        E(f"buffer_store_dwordx4 {v(vM1,4)}, v{vL16}, s[{rWS}:{rWS+3}], s{sT0 if i < 3 else sT1} offen offset:{1024*(i%3)} sc1")
    vZ = big + 144
    E(f"v_mov_b32 v{vZ}, 0"); E(f"v_mov_b32 v{vZ+1}, 0")
    E(f"v_lshlrev_b32 v{vt[0]}, 3, v0")
    E(f"ds_write_b64 v{vt[0]}, {v(vZ,2)}")
    E(f"v_and_b32 v{vt[0]}, 7, v{vL}")
    E(f"v_lshl_add_u32 v{vt[0]}, v{vt[0]}, 2, s{sKT}")
    E(f"ds_write_b32 v{vt[0]}, v{vZ}")
    vLm = A()
    E(f"v_lshlrev_b32 v{vt[0]}, 3, v{vG}")
    E(f"v_sub_u32 v{vLm}, v{vC}, v{vt[0]}")
    E(f"v_add_u32 v{vLm}, 33, v{vLm}")
    vLf = A()
    E(f"v_cvt_f32_u32 v{vLf}, v{vLm}")
    E(f"s_mov_b32 s7, 0x0202")
    E(f"s_mov_b32 s8, 0x10001")
    vK1 = A()
    E(f"v_mov_b32 v{vK1}, 0x01000100")
    sel = {}; adr = {}
    for name, srep, js in (("d", 5, [3]), ("1", 9, [3, 2]), ("2", 17, [3, 2, 1, 0]), ("3", 33, [3, 2, 1, 0])):
        base = 32 * srep - 24
        vb = vt[2]
        for j in js:
            r = A(); sel[(name, j)] = r
            E(f"v_add_f32 v{vt[0]}, {f32(base + 7 - 2*j)}, v{vLf}")
            E(f"v_add_f32 v{vt[1]}, {f32(base + 6 - 2*j)}, v{vLf}")
            E(f"v_cvt_pk_bf16_f32 v{r}, v{vt[0]}, v{vt[1]}")
            if j == 3:
                E(f"v_lshrrev_b32 v{vt[3]}, 17, v{r}")
                E(f"v_lshlrev_b32 v{vt[3]}, 1, v{vt[3]}")
                E(f"v_mul_u32_u24 v{vb}, s8, v{vt[3]}")
                a = A(); adr[name] = a
                if name == "d":
                    E(f"v_and_b32 v{a}, -2, v{vLm}")
                    E(f"v_lshl_add_u32 v{a}, v{a}, 1, s{sKT}")
                    E(f"v_subrev_u32 v{a}, 16, v{a}")
                else:
                    E(f"v_lshl_add_u32 v{a}, v{vt[3]}, 1, s{sKT}")
                    E(f"v_subrev_u32 v{a}, {2*(0x4300-272)}, v{a}")
            E(f"v_sub_u32 v{r}, v{r}, v{vb}")
            E(f"v_mad_u32_u24 v{r}, v{r}, s7, v{vK1}")
    vMa = A(); vMb = A(); vMw = A()
    E(f"v_lshlrev_b32 v{vt[0]}, 1, v{vL}")
    E(f"v_add_u32 v{vt[1]}, 256, v{vt[0]}")
    E(f"v_add_u32 v{vt[2]}, {496-32}, v{vt[0]}")
    E(f"v_cmp_lt_u32 vcc, 15, v{vL}")
    E(f"v_cndmask_b32 v{vt[1]}, v{vt[1]}, v{vt[2]}, vcc")
    E(f"v_add_u32 v{vt[2]}, {1008-80}, v{vt[0]}")
    E(f"v_cmp_lt_u32 vcc, 39, v{vL}")
    E(f"v_cndmask_b32 v{vt[1]}, v{vt[1]}, v{vt[2]}, vcc")
    E(f"v_cvt_f32_u32 v{vt[1]}, v{vt[1]}")
    E(f"v_add_f32 v{vt[2]}, 1.0, v{vt[1]}")
    E(f"v_cvt_pk_bf16_f32 v{vt[1]}, v{vt[1]}, v{vt[2]}")
    E(f"s_sub_u32 s{sT0}, s{sKT}, {2*(0x4300-272)}")
    E(f"v_and_b32 v{vMa}, 0xffff, v{vt[1]}")
    E(f"v_lshl_add_u32 v{vMa}, v{vMa}, 1, s{sT0}")
    E(f"v_lshrrev_b32 v{vMb}, 16, v{vt[1]}")
    E(f"v_lshl_add_u32 v{vMb}, v{vMb}, 1, s{sT0}")
    E(f"v_lshl_add_u32 v{vMw}, v{vL}, 2, s{sKT}")
    vTa = vt[4]; vUo = vt[5]
    E(f"v_and_b32 v{vt[0]}, 1, v{vG}")
    E(f"v_lshrrev_b32 v{vt[1]}, 1, v{vG}")
    E(f"v_lshrrev_b32 v{vt[2]}, 2, v{vC}")
    E(f"v_and_b32 v{vt[3]}, 3, v{vC}")
    E(f"v_lshl_add_u32 v{vTa}, v{vt[0]}, 3, v{vt[2]}")
    E(f"v_lshlrev_b32 v{vTa}, 8, v{vTa}")
    E(f"v_lshl_add_u32 v{vTa}, v{vt[1]}, 5, v{vTa}")
    E(f"v_lshl_add_u32 v{vTa}, v{vt[3]}, 3, v{vTa}")
    E(f"v_add_u32 v{vTa}, s{sSC}, v{vTa}")
    E(f"s_lshl_b32 s{sT0}, s{sTB}, 1")
    E(f"s_lshr_b32 s{sT1}, s{sW}, 1")
    E(f"s_add_u32 s{sT0}, s{sT0}, s{sT1}")
    E(f"v_add_u32 v{vt[3]}, s{sT0}, v{vt[3]}")
    E(f"v_and_b32 v{vt[3]}, 3, v{vt[3]}")
    E(f"v_lshl_add_u32 v{vUo}, v{vt[1]}, 2, v{vt[2]}")
    E(f"v_lshlrev_b32 v{vUo}, 14, v{vUo}")
    E(f"v_lshl_add_u32 v{vUo}, v{vt[0]}, 6, v{vUo}")
    E(f"v_lshl_add_u32 v{vUo}, v{vt[3]}, 4, v{vUo}")
    E(f"s_lshl_b32 s{sT0}, s{sCB}, 19")
    E(f"s_lshl_b32 s{sT1}, s{sTB}, 9")
    E(f"s_add_u32 s{sT0}, s{sT0}, s{sT1}")
    E(f"s_lshl_b32 s{sT1}, s{sW}, 7")
    E(f"s_add_u32 s{sT0}, s{sT0}, s{sT1}")
    if UT_BASE: E(f"s_add_u32 s{sT0}, s{sT0}, {UT_BASE}")
    E.wait_vm("slab")
    ST(E, "slab")
    for i in range(4):
        E(f"ds_read_b64_tr_b16 {v(big+4*i,2)}, v{vTa} offset:{64*i}")
        E(f"ds_read_b64_tr_b16 {v(big+4*i+2,2)}, v{vTa} offset:{64*i+1024}")
    for i in range(4):
        E(f"s_add_u32 s{sT1}, s{sT0}, {8*16384*i}")
        E(f"buffer_store_dwordx4 {v(big+4*i,4)}, v{vUo}, s[{rWS}:{rWS+3}], s{sT1} offen sc1")
    vNon = A()
    nld = nonce_load(E, vNon)
    L2E = math.log2(math.e); L2Eh = f32val(L2E); L2El = L2E - L2Eh
    I2P = 1 / (2 * math.pi); I2Ph = f32val(I2P); I2Pl = I2P - I2Ph
    vDt = A(); vDsk = A()
    E(f"s_mov_b32 s7, {f32(L2Eh)}")
    E(f"s_mov_b32 s8, {f32(I2Ph)}")
    E(f"v_lshlrev_b32 v{vt[0]}, 16, v{P[6]}")
    E(f"v_mul_f32 v{vt[1]}, s7, v{vt[0]}")
    E(f"v_fma_f32 v{vt[2]}, v{vt[0]}, s7, -v{vt[1]}")
    E(f"v_fmac_f32 v{vt[2]}, {f32(L2El)}, v{vt[0]}")
    E(f"v_exp_f32 v{vt[1]}, v{vt[1]}")
    E(f"v_mul_f32 v{vt[2]}, {f32(math.log(2))}, v{vt[2]}")
    E(f"v_fma_f32 v{vt[1]}, v{vt[1]}, v{vt[2]}, v{vt[1]}")
    E(f"v_cvt_pk_bf16_f32 v{vt[1]}, v{vt[1]}, v{vt[1]}")
    E(f"v_and_b32 v{vDt}, 0xffff0000, v{vt[1]}")
    E(f"v_lshlrev_b32 v{vDsk}, 16, v{P[7]}")
    KG = A(40, 4); A2 = Alloc(KG, KG + 40)
    W1 = [A2(2), A2(2)]; W8 = [A2(2), A2(2)]; W256 = [A2(2), A2(2)]
    XS = [[A2(2) for _ in range(4)] for _ in range(2)]
    XC = [A2(2), A2(2)]; TT = [A2(2), A2(2)]; PK = [A2(2), A2(2)]
    tmp = big + 100
    per_n = []
    for n in range(2):
        t = [tmp + 12 * n + i for i in range(12)]
        un = (lambda d, src: f"v_lshlrev_b32 v{d}, 16, v{src}") if n == 0 else (lambda d, src: f"v_and_b32 v{d}, 0xffff0000, v{src}")
        L = []
        for k in range(6): L.append(un(t[k], P[k]))
        L += [f"v_mul_f32 v{t[0]}, v{vDt}, v{t[0]}",
              f"v_mul_f32 v{t[1]}, v{vDt}, v{t[1]}",
              f"v_mul_f32 v{t[2]}, v{vDt}, v{t[2]}",
              f"v_mul_f32 v{t[3]}, v{vDt}, v{t[3]}",
              f"v_mul_f32 v{t[0]}, s7, v{t[0]}",
              f"v_mul_f32 v{t[6]}, s8, v{t[1]}",
              f"v_fma_f32 v{t[7]}, v{t[1]}, s8, -v{t[6]}",
              f"v_fmac_f32 v{t[7]}, {f32(I2Pl)}, v{t[1]}"]
        L += cmul(XS[n][0], t[4], t[2], TT[n])
        for e, Wd in ((1, W1[n]), (8, W8[n]), (256, W256[n])):
            if e == 1:
                L += [f"v_exp_f32 v{t[8]}, v{t[0]}", f"v_fract_f32 v{t[9]}, v{t[6]}", f"v_add_f32 v{t[9]}, v{t[9]}, v{t[7]}"]
            else:
                L += [f"v_mul_f32 v{t[8]}, {f32(e)}, v{t[0]}", f"v_mul_f32 v{t[9]}, {f32(e)}, v{t[6]}",
                      f"v_exp_f32 v{t[8]}, v{t[8]}", f"v_fract_f32 v{t[9]}, v{t[9]}", f"v_fmac_f32 v{t[9]}, {f32(e)}, v{t[7]}"]
            L += [f"v_cos_f32 v{t[10]}, v{t[9]}", f"v_sin_f32 v{t[11]}, v{t[9]}",
                  f"v_mul_f32 v{Wd}, v{t[8]}, v{t[10]}", f"v_mul_f32 v{Wd+1}, v{t[8]}, v{t[11]}"]
        per_n.append(L)
    assert tmp % 2 == 0
    E(zipl(*per_n))
    vWa = A(); vRa = A()
    E(f"v_lshl_add_u32 v{vWa}, v{vL}, 3, s{sSC}")
    E(f"v_mul_u32_u24 v{vRa}, {PITCH}, v{vC}")
    E(f"v_lshl_add_u32 v{vRa}, v{vG}, 4, v{vRa}")
    E(f"v_add_u32 v{vRa}, s{sSC}, v{vRa}")
    pkc = [0]
    def put_row(row, regs, neg):
        p = PK[pkc[0] % 2]; pkc[0] += 1
        sg = "-" if neg else ""
        return [f"v_cvt_pk_bf16_f32 v{p}, v{regs[0]}, {sg}v{regs[0]+1}",
                f"v_cvt_pk_bf16_f32 v{p+1}, v{regs[1]}, {sg}v{regs[1]+1}",
                f"ds_write_b64 v{vWa}, {v(p,2)} offset:{row*PITCH}"]
    def step(dst, src, mul):
        return zipl(cmul(dst[0], src[0], mul[0], TT[0]), cmul(dst[1], src[1], mul[1], TT[1]))
    XSi = lambda i: [XS[0][i], XS[1][i]]
    L = put_row(0, XSi(0), True)
    cur = XSi(0)
    for e in range(1, 8):
        dst = XSi(e // 2) if e % 2 == 0 else XC
        L += step(dst, cur, W1) + put_row(e, dst, True); cur = dst
    for i in range(4):
        L += step(XSi(i), XSi(i), W256) + put_row(8 + i, XSi(i), True)
    for r0 in (12, 14):
        for k, i in enumerate((0, 2)):
            L += step(XSi(i), XSi(i), W256) + put_row(r0 + k, XSi(i), True)
    for r in range(16, 21):
        L += step(XSi(0), XSi(0), W256) + put_row(r, XSi(0), True)
    E(L)
    XF = big + 16
    YF = big + 80
    KD = big + 112
    for tI in range(2):
        for k in range(8):
            E(f"ds_read_b128 {v(XF+32*tI+4*k,4)}, v{vRa} offset:{16*tI*PITCH + 64*k}")
    ST(E, "X")
    nonce_get(E, nld, vNon)
    E.wait_vm()
    E("s_barrier")
    E(f"s_lshl_b32 s{sT0}, s{sCB}, 9")
    E(f"s_lshr_b32 s{sT1}, s{sTB}, 3")
    E(f"s_lshl_b32 s{sT1}, s{sT1}, 7")
    E(f"s_add_u32 s{sT0}, s{sT0}, s{sT1}")
    E(f"s_and_b32 s{sT1}, s{sTB}, 7")
    E(f"s_lshl_b32 s{sT1}, s{sT1}, 2")
    E(f"s_add_u32 s{sT0}, s{sT0}, s{sT1}")
    E(f"s_add_u32 s{sT0}, s{sT0}, {FLAG_BASE}")
    skip = newlabel("noack")
    E(f"s_cmp_lg_u32 s{sW}, 0")
    E(f"s_cbranch_scc1 {skip}")
    E("s_mov_b64 exec, 1")
    E.raw(f"    buffer_store_dword v{vNon}, v{vZero}, s[{rWS}:{rWS+3}], s{sT0} offen sc1")
    E("s_mov_b64 exec, -1")
    E.label(skip)
    ST(E, "ack")
    Yc = XC
    def yhalf(h):
        L = []
        for j in range(16):
            jj = 16 * h + j
            if jj == 0:
                L += [f"v_mov_b32 v{Yc[0]}, 1.0", f"v_mov_b32 v{Yc[0]+1}, 0", f"v_mov_b32 v{Yc[1]}, 1.0", f"v_mov_b32 v{Yc[1]+1}, 0"]
            else:
                L += step(Yc, Yc, W8)
            L += put_row(j, Yc, False)
        return L
    def yread(): return [f"ds_read_b128 {v(YF+4*k,4)}, v{vRa} offset:{64*k}" for k in range(8)]
    def kmfma(h):
        L = []
        for k in range(8):
            for tI in range(2):
                d = KD + 8 * h + 4 * tI
                L.append(f"v_mfma_f32_16x16x32_bf16 {v(d,4)}, {v(XF+32*tI+4*k,4)}, {v(YF+4*k,4)}, {v(d,4) if k else 0}")
        return L
    E(yhalf(0)); E(yread())
    y1 = yhalf(1)
    E(y1[:28]); E(merge(y1[28:], kmfma(0)))
    vAk = vt[6]; vAo = vt[7]
    E(f"s_lshr_b32 s{sT2}, s{sCG}, 5")
    E(f"s_lshl_b32 s{sT2}, s{sT2}, 9")
    E(f"s_add_u32 s{sT2}, s{sT2}, {FLAG_BASE}")
    E(f"v_bfe_u32 v{vAk}, v{vL}, 3, 2")
    E(f"v_and_b32 v{vAo}, 7, v{vL}")
    E(f"v_lshlrev_b32 v{vAo}, 2, v{vAo}")
    E(f"v_lshl_add_u32 v{vAo}, v{vAk}, 7, v{vAo}")
    ld = f"buffer_load_dword v{vAk}, v{vAo}, s[{rWS}:{rWS+3}], s{sT2} offen sc1"
    E(ld, tag="ack")
    E(yread()); E(kmfma(1))
    ST(E, "Y")
    spin(E, [ld], [f"v_cmp_ne_u32 vcc, s{sN}, v{vAk}"], "ack")
    ST(E, "polled")
    E(f"s_lshl_b32 s{sT0}, s{sCG}, 14")
    E(f"s_lshl_b32 s{sT1}, s{sW}, 12")
    E(f"s_add_u32 s{sT0}, s{sT0}, s{sT1}")
    if UT_BASE: E(f"s_add_u32 s{sT0}, s{sT0}, {UT_BASE}")
    E(f"s_add_u32 m0, s{sT1}, {U_IMG}")
    for i in range(4):
        E(f"buffer_load_dwordx4 v{vL16}, s[{rWS}:{rWS+3}], s{sT0} offen offset:{1024*i} sc1 lds", tag="uimg")
    E(f"v_cmp_eq_u32 vcc, 0, v{vL}")
    E(f"v_cndmask_b32 v{vDsk}, 0, v{vDsk}, vcc")
    E(f"v_add_f32 v{KD}, v{KD}, v{vDsk}")
    a0, a1, st = vt[0], vt[1], vt[2]
    E(f"v_lshlrev_b32 v{a0}, 4, v{vC}")
    E(f"v_lshl_add_u32 v{a0}, v{vG}, 3, v{a0}")
    E(f"v_add_u32 v{a0}, 32, v{a0}")
    E(f"v_mov_b32 v{st}, 256")
    E(f"v_lshlrev_b32 v{vt[3]}, 3, v{vC}")
    E(f"v_add_u32 v{vt[3]}, 800, v{vt[3]}")
    E(f"v_mov_b32 v{vt[4]}, 128")
    E(f"v_cmp_eq_u32 vcc, 2, v{vG}")
    E(f"v_cndmask_b32 v{a0}, v{a0}, v{vt[3]}, vcc")
    E(f"v_cndmask_b32 v{st}, v{st}, v{vt[4]}, vcc")
    E(f"v_lshlrev_b32 v{vt[3]}, 2, v{vC}")
    E(f"v_add_u32 v{vt[3]}, 1056, v{vt[3]}")
    E(f"v_mov_b32 v{vt[5]}, 64")
    E(f"v_cmp_eq_u32 vcc, 3, v{vG}")
    E(f"v_cndmask_b32 v{a0}, v{a0}, v{vt[3]}, vcc")
    E(f"v_cndmask_b32 v{st}, v{st}, v{vt[5]}, vcc")
    E(f"v_cndmask_b32 v{a1}, 4, v{vt[4]}, vcc")
    E(f"v_add_u32 v{a0}, s{sKT}, v{a0}")
    E(f"v_add_u32 v{a1}, v{a0}, v{a1}")
    a2 = vt[3]
    E(f"v_lshlrev_b32 v{a2}, 8, v{vG}")
    E(f"v_lshl_add_u32 v{a2}, v{vC}, 1, v{a2}")
    E(f"v_add_u32 v{a2}, s{sKT}, v{a2}")
    for h in range(2):
        d0 = KD + 8 * h; d1 = d0 + 4
        p = YF + 4 * h
        E(f"v_cvt_pk_bf16_f32 v{p}, v{d0}, v{d0+1}")
        E(f"v_cvt_pk_bf16_f32 v{p+1}, v{d0+2}, v{d0+3}")
        E(f"v_cvt_pk_bf16_f32 v{p+2}, v{d1}, v{d1+1}")
        E(f"v_cvt_pk_bf16_f32 v{p+3}, v{d1+2}, v{d1+3}")
        if h == 1:
            E(f"v_add_u32 v{a0}, v{a0}, v{st}")
            E(f"v_add_u32 v{a1}, v{a1}, v{st}")
        E(f"ds_write_b32 v{a0}, v{p}")
        E(f"ds_write_b32 v{a1}, v{p+1}")
        for rho in range(4):
            op = "ds_write_b16" if rho % 2 == 0 else "ds_write_b16_d16_hi"
            E(f"{op} v{a2}, v{p+2+rho//2} offset:{2*656 + 64*rho + 32*h}")
    E(f"ds_read_u16 v{vt[5]}, v{vMa}")
    E(f"ds_read_u16 v{vt[4]}, v{vMb}")
    E(f"v_lshl_or_b32 v{vt[5]}, v{vt[4]}, 16, v{vt[5]}")
    E(f"ds_write_b32 v{vMw}, v{vt[5]} offset:544")
    ACC = KG
    Hs = [big, big + 32]; Fs = [big + 64, big + 96]; RAW = big + 128
    vH = [vt[0], vt[1]]
    vTb = vt[2]
    E(f"v_lshl_add_u32 v{vTb}, v{vC}, 1, v{vG}")
    E(f"v_add_u32 v{vTb}, 30, v{vTb}")
    def prepF(s0, buf):
        rd = []; pm = []
        r = RAW
        for m in range(8):
            sx = s0 + 8 * m
            F = Fs[buf] + 4 * m
            if sx <= 8 or sx == 16 or sx == 32:
                o = {16: 152, 32: 176}.get(sx, 16 * sx)
                rd += [f"ds_read2_b32 {v(r,2)}, v{adr['d']} offset0:{o} offset1:{o+1}",
                       f"ds_read2_b32 {v(r+2,2)}, v{adr['d']} offset0:{o+2} offset1:{o+3}",
                       f"ds_read_b32 v{r+4}, v{adr['d']} offset:{4*(o+4)}"]
                pm += [f"v_perm_b32 v{F+j}, v{r+4-j}, v{r+3-j}, v{sel[('d',3)]}" for j in (3, 2, 1, 0)]
                r += 6
            elif sx < 16:
                o = 8 * (sx - 9)
                rd += [f"ds_read2_b32 {v(r,2)}, v{adr['1']} offset0:{o} offset1:{o+1}",
                       f"ds_read_b32 v{r+2}, v{adr['1']} offset:{4*(o+2)}"]
                pm += [f"v_perm_b32 v{F+3}, v{r+1}, v{r}, v{sel[('1',3)]}", f"v_perm_b32 v{F+2}, v{r+1}, v{r}, v{sel[('1',2)]}",
                       f"v_perm_b32 v{F+1}, v{r+2}, v{r+1}, v{sel[('1',3)]}", f"v_perm_b32 v{F}, v{r+2}, v{r+1}, v{sel[('1',2)]}"]
                r += 4
            else:
                nm, o = ("2", 4 * (sx - 17)) if sx < 32 else ("3", 2 * (sx - 33))
                rd += [f"ds_read2_b32 {v(r,2)}, v{adr[nm]} offset0:{o} offset1:{o+1}"]
                pm += [f"v_perm_b32 v{F+j}, v{r+1}, v{r}, v{sel[(nm,j)]}" for j in (3, 2, 1, 0)]
                r += 2
        assert r <= big + 160
        return rd, pm
    def prepH(s0, buf):
        a = vH[buf]; t = vt[3]
        L = [f"v_subrev_u32 v{a}, {4*s0}, v{vTb}",
             f"v_lshrrev_b32 v{t}, 2, v{a}",
             f"v_add_u32 v{t}, s{sW}, v{t}",
             f"v_and_b32 v{t}, 3, v{t}",
             f"v_lshlrev_b32 v{a}, 6, v{a}",
             f"v_lshl_add_u32 v{a}, v{t}, 4, v{a}"]
        return L, [f"ds_read_b128 {v(Hs[buf]+4*dl,4)}, v{a} offset:{2048*dl}" for dl in range(8)]
    rd, pm = prepF(0, 0)
    ha, hr = prepH(0, 0)
    E(rd); E(ha); E(pm)
    ST(E, "tables")
    E.wait_vm("uimg")
    E.wait_lg()
    E("s_barrier")
    ST(E, "uimg")
    E(hr)
    for s0 in range(8):
        b = s0 % 2
        M = []
        for m in range(8):
            for dl in range(8 - m):
                q = m + dl
                c = v(ACC + 4 * q, 4) if (s0 or m) else "0"
                M.append(f"v_mfma_f32_16x16x32_bf16 {v(ACC+4*q,4)}, {v(Fs[b]+4*m,4)}, {v(Hs[b]+4*dl,4)}, {c}")
        if s0 < 7:
            rd, pm = prepF(s0 + 1, 1 - b)
            ha, hr = prepH(s0 + 1, 1 - b)
            E(merge(M, rd + ha + hr + pm))
        else:
            E(M)
    ST(E, "conv")
    ya = vt[0]
    E(f"s_mul_i32 s{sT0}, s{sW}, {Y_PITCH}")
    E(f"s_add_u32 s{sT0}, s{sT0}, {SC_BASE}")
    E(f"v_lshlrev_b32 v{ya}, 5, v{vC}")
    E(f"v_lshl_add_u32 v{ya}, v{vG}, 3, v{ya}")
    E(f"v_add_u32 v{ya}, s{sT0}, v{ya}")
    for q in range(8):
        E(f"v_cvt_pk_bf16_f32 v{big+2*q}, v{ACC+4*q}, v{ACC+4*q+1}")
        E(f"v_cvt_pk_bf16_f32 v{big+2*q+1}, v{ACC+4*q+2}, v{ACC+4*q+3}")
        E(f"ds_write_b64 v{ya}, {v(big+2*q,2)} offset:{512*q}")
    yr, yo = vt[1], vt[2]
    E(f"v_lshrrev_b32 v{vt[3]}, 2, v{vC}")
    E(f"v_mul_u32_u24 v{yr}, {Y_PITCH}, v{vt[3]}")
    E(f"v_and_b32 v{vt[3]}, 3, v{vC}")
    E(f"v_lshl_add_u32 v{yr}, v{vt[3]}, 3, v{yr}")
    E(f"v_lshl_add_u32 v{yr}, v{vG}, 5, v{yr}")
    E(f"s_lshl_b32 s{sT0}, s{sW}, 10")
    E(f"s_add_u32 s{sT0}, s{sT0}, {SC_BASE}")
    E(f"v_add_u32 v{yr}, s{sT0}, v{yr}")
    E(f"v_mul_u32_u24 v{yo}, 2560, v{vL}")
    E(f"s_mul_i32 s{sT0}, s{sW}, {512*2560}")
    E(f"s_lshl_b32 s{sT1}, s{sCG}, 3")
    E(f"s_add_u32 s{sT0}, s{sT0}, s{sT1}")
    E(f"s_add_u32 s{sT0}, s{sT0}, 1280")
    E.wait_lg()
    E("s_barrier")
    for i in range(8):
        E(f"ds_read_b64_tr_b16 {v(big+32+2*i,2)}, v{yr} offset:{128*i}")
    for i in range(8):
        E(f"s_add_u32 s{sT1}, s{sT0}, {64*2560*i}")
        E(f"buffer_store_dwordx2 {v(big+32+2*i,2)}, v{yo}, s[{rOUT}:{rOUT+3}], s{sT1} offen")
    if PROFILE:
        ST(E, "stores issued")
        E.wait_vm()
        ST(E, "end")
    ST.dump(E, sW, big)
    E("s_endpgm")
    return ST

def main():
    global PROFILE
    PROFILE = "--profile" in sys.argv
    head = open(f"cdna_kernels/{NAME}.s.ref").read().split("\n")
    hdr = [l for l in head if l.startswith(";") and "@launch" not in l]
    E = Emitter()
    for l in hdr: E.raw(l)
    E.raw(f"; @launch grid=({NB+NA},1,1) block=(256,1,1) lds=81920")
    E.raw('.amdgcn_target "amdgcn-amd-amdhsa--gfx950"')
    E.raw(".text")
    E.raw(f".globl {NAME}_kernel")
    E.raw(".p2align 8")
    E.raw(f".type {NAME}_kernel,@function")
    E.label(f"{NAME}_kernel")
    E("s_load_dwordx16 s[16:31], s[0:1], 0")
    E("s_load_dwordx16 s[32:47], s[0:1], 64")
    E("s_memrealtime s[10:11]")
    E(f"s_cmp_ge_u32 s2, {NB}")
    E("s_cbranch_scc1 L_roleA")
    E.lgq = [("__smem", set())]
    lg = list(E.lgq)
    stB = gen_B(E)
    E.label("L_roleA")
    try:
        from genA import gen_A
        stA = gen_A(E, sys.modules[__name__])
    except ImportError:
        stA = None
        E("s_endpgm")
    E.raw('.section .rodata,"a"')
    E.raw(".p2align 6")
    E.raw(f".amdhsa_kernel {NAME}_kernel")
    for l in ("next_free_vgpr 256", "next_free_sgpr 102", "accum_offset 256", "group_segment_fixed_size 0", "kernarg_size 128",
              "user_sgpr_count 2", "user_sgpr_kernarg_segment_ptr 1", "system_sgpr_workgroup_id_x 1"):
        E.raw("  .amdhsa_" + l)
    E.raw(".end_amdhsa_kernel")
    outp = [a for a in sys.argv[1:] if not a.startswith("--")]
    open(outp[0] if outp else "k.s", "w").write(E.text())
    print("instrs", E.count, "nops", E.nops, file=sys.stderr)
    import json
    json.dump({"B": stB.names, "A": stA.names if stA else []}, open("stamps.json", "w"))

if __name__ == "__main__":
    main()
```

```python
import sys, struct, math
from asmlib import *

NAME = "concat_heads__linear_kernel_hedgehog__ssm_conv_s4__prompt"
NB, NA = 160, 256
UT_BASE = 0
O_BASE = 4 << 20
P_BASE = O_BASE + 2621440
P_PITCH = 3584
WS_SIZE = 16 << 20
STAMP_BASE = 12 << 20
SPIN_MAX = 200000
FLAG_BASE = 11 << 20
sN = 83

def f32(x): return "0x%08x" % struct.unpack("<I", struct.pack("<f", x))[0]
def f32val(x): return struct.unpack("<f", struct.pack("<f", x))[0]

class Alloc:
    def __init__(self, start, end): self.n = start; self.end = end
    def __call__(self, c=1, al=None):
        al = al or (2 if c >= 2 else 1)
        self.n = (self.n + al - 1) // al * al
        r = self.n; self.n += c
        assert self.n <= self.end, f"out of registers {self.n}"
        return r

pX, pW, pPHI, pWO, pU, pARE, pAIM, pBRE, pBIM, pCRE, pCIM, pLDT, pDSK, pOUT, pDBG, pWS = [16 + 2 * i for i in range(16)]
rWS, rOUT, rDBG, rIN, rW, rWO, rPHI = 48, 52, 56, 60, 64, 68, 72

def srd(E, r, p, size):
    E(f"s_mov_b32 s{r}, s{p}")
    E(f"s_and_b32 s{r+1}, s{p+1}, 0xffff")
    E(f"s_mov_b32 s{r+2}, {size}")
    E(f"s_mov_b32 s{r+3}, 0x00020000")

PROFILE = False
class Stamps:
    def __init__(self, first): self.first = first; self.n = 0; self.names = []
    def __call__(self, E, name):
        if not PROFILE: return
        r = self.first + self.n
        E("s_memtime s[14:15]" if "--cyc" in sys.argv else "s_memrealtime s[14:15]")
        E.wait_lg()
        E(f"s_mov_b32 s{r}, s14")
        self.n += 1; self.names.append(name)
    def dump(self, E, sW, vt):
        if not PROFILE: return
        E(f"v_mov_b32 v{vt}, 0")
        for i in range(self.n):
            E(f"v_writelane_b32 v{vt}, s{self.first+i}, {i}")
        E(f"s_lshl_b32 s3, s2, 2")
        E(f"s_add_u32 s3, s3, s{sW}")
        E(f"s_lshl_b32 s3, s3, 6")
        E(f"s_add_u32 s3, s3, {STAMP_BASE}")
        E(f"v_and_b32 v{vt+1}, 63, v0")
        E(f"v_lshlrev_b32 v{vt+1}, 2, v{vt+1}")
        E("s_mov_b64 exec, 0xffff")
        E(f"buffer_store_dword v{vt}, v{vt+1}, s[{rWS}:{rWS+3}], s3 offen")
        if "--dbg" in sys.argv:
            E(f"v_subrev_u32 v{vt}, s{sN}, v{vt}")
            E(f"v_add_u32 v{vt}, 1000, v{vt}")
            if self.first == 84:
                E(f"s_mov_b64 exec, {1 << (self.n - 1)}")
                E(f"buffer_atomic_umax v{vt}, off, s[{rDBG}:{rDBG+3}], 0 offset:4")
            else:
                E(f"s_mov_b64 exec, {(1 << self.n) - 1}")
                E(f"buffer_atomic_umax v{vt}, v{vt+1}, s[{rDBG}:{rDBG+3}], 0 offen offset:8")
        E("s_mov_b64 exec, -1")

_lbl = [0]
def newlabel(p):
    _lbl[0] += 1
    return f"L_{p}_{_lbl[0]}"

def poll_check(E, load_text, vdst, expect_sgpr_or_const, first_tag):
    ok = newlabel("ok"); sp = newlabel("spin")
    E.wait_vm(first_tag)
    E(f"v_cmp_ne_u32 vcc, {expect_sgpr_or_const}, v{vdst}")
    E(f"s_cbranch_vccz {ok}")
    E(f"s_mov_b32 s13, 0")
    E.label(sp)
    E.raw("    " + load_text)
    E.raw("    s_add_u32 s13, s13, 1")
    E.raw(f"    s_cmp_gt_u32 s13, {SPIN_MAX}")
    E.raw(f"    s_cbranch_scc1 {ok}")
    E.raw("    s_waitcnt vmcnt(0)")
    E.raw(f"    v_cmp_ne_u32 vcc, {expect_sgpr_or_const}, v{vdst}")
    E.raw(f"    s_cbranch_vccnz {sp}")
    E.label(ok)

def spin(E, load_texts, check_texts, first_tag):
    ok = newlabel("ok"); sp = newlabel("spin")
    E.wait_vm(first_tag)
    E(check_texts)
    E(f"s_cbranch_vccz {ok}")
    E(f"s_mov_b32 s13, 0")
    E.label(sp)
    for t in load_texts: E.raw("    " + t)
    E.raw("    s_add_u32 s13, s13, 1")
    E.raw(f"    s_cmp_gt_u32 s13, {SPIN_MAX}")
    E.raw(f"    s_cbranch_scc1 {ok}")
    E.raw("    s_waitcnt vmcnt(0)")
    for t in check_texts: E.raw("    " + t)
    E.raw(f"    s_cbranch_vccnz {sp}")
    E.label(ok)

def nonce_load(E, vd):
    ld = f"buffer_load_dword v{vd}, off, s[{rDBG}:{rDBG+3}], 0 sc1"
    E(ld, tag="nonce")
    return ld
def nonce_get(E, ld, vd):
    spin(E, [ld], [f"v_cmp_eq_u32 vcc, 0, v{vd}"], "nonce")
    E(f"v_readfirstlane_b32 s{sN}, v{vd}")

def cmul(dst, a, b, t):
    return [f"v_pk_mul_f32 {v(t,2)}, {v(a,2)}, {v(b,2)} op_sel:[0,0] op_sel_hi:[1,0]",
            f"v_pk_fma_f32 {v(dst,2)}, {v(a,2)}, {v(b,2)}, {v(t,2)} op_sel:[1,1,0] op_sel_hi:[0,1,1] neg_lo:[0,1,0]"]

def zipl(*ls):
    out = []
    for i in range(max(len(l) for l in ls)):
        for l in ls:
            if i < len(l): out.append(l[i])
    return out

def gen_B(E):
    E.reset()
    ST = Stamps(84)
    sW, sCG, sD, sTB, sCB, sSC, sKT, sT0, sT1, sT2 = 76, 77, 78, 79, 80, 81, 82, 4, 5, 6
    U_IMG = 2048; KT_BASE = 18432; KT_SZ = 2560; SC_BASE = 28672; SC_SZ = 11424; PITCH = 544
    Y_PITCH = 4096 + 64
    A = Alloc(1, 256)
    vL = A(); vG = A(); vC = A()
    vt = [A() for _ in range(8)]
    big = A(160, 4)
    E(f"v_and_b32 v{vL}, 63, v0")
    E(f"v_lshrrev_b32 v{vt[0]}, 6, v0")
    E(f"v_lshrrev_b32 v{vG}, 4, v{vL}")
    E(f"v_readfirstlane_b32 s{sW}, v{vt[0]}")
    E(f"v_and_b32 v{vC}, 15, v{vL}")
    E(f"s_and_b32 s{sT0}, s2, 7")
    E(f"s_lshr_b32 s{sT1}, s2, 3")
    E(f"s_mul_i32 s{sCG}, s{sT0}, 20")
    E(f"s_add_u32 s{sCG}, s{sCG}, s{sT1}")
    E(f"s_lshl_b32 s{sD}, s{sCG}, 2")
    E(f"s_add_u32 s{sD}, s{sD}, s{sW}")
    E(f"s_mul_hi_u32 s{sTB}, s2, 0x33333334")
    E(f"s_mul_i32 s{sT0}, s{sTB}, 5")
    E(f"s_sub_u32 s{sCB}, s2, s{sT0}")
    E(f"s_mul_i32 s{sSC}, s{sW}, {SC_SZ}")
    E(f"s_add_u32 s{sSC}, s{sSC}, {SC_BASE}")
    E(f"s_mul_i32 s{sKT}, s{sW}, {KT_SZ}")
    E(f"s_add_u32 s{sKT}, s{sKT}, {KT_BASE}")
    vPo = A(); vSo = A(); vL16 = A()
    E(f"s_lshl_b32 s{sT0}, s{sD}, 8")
    E(f"v_lshlrev_b32 v{vPo}, 2, v{vL}")
    E(f"v_add_u32 v{vPo}, s{sT0}, v{vPo}")
    E(f"s_lshl_b32 s{sT0}, s{sD}, 1")
    E(f"v_mov_b32 v{vt[1]}, s{sT0}")
    E(f"v_mul_u32_u24 v{vSo}, 1280, v{vG}")
    E(f"v_lshl_add_u32 v{vSo}, v{vC}, 4, v{vSo}")
    E(f"v_lshlrev_b32 v{vL16}, 4, v{vL}")
    E.wait_lg()
    ST(E, "start")
    srd(E, rDBG, pDBG, 256)
    vZero = A()
    E(f"v_mov_b32 v{vZero}, 0")
    skip = newlabel("nonce")
    E(f"s_or_b32 s{sT0}, s2, s{sW}")
    E(f"s_cbranch_scc1 {skip}")
    E.raw("    s_or_b32 s10, s10, 1")
    E.raw(f"    v_mov_b32 v{vt[0]}, s10")
    E.raw("    s_mov_b64 exec, 1")
    E.raw(f"    buffer_store_dword v{vt[0]}, v{vZero}, s[{rDBG}:{rDBG+3}], 0 offen sc1")
    E.raw("    s_mov_b64 exec, -1")
    E.label(skip)
    srd(E, rIN, pU, 2621440)
    E(f"s_lshl_b32 s{sT0}, s{sTB}, 6")
    E(f"s_lshl_b32 s{sT1}, s{sW}, 4")
    E(f"s_add_u32 s{sT0}, s{sT0}, s{sT1}")
    E(f"s_mul_i32 s{sT0}, s{sT0}, 1280")
    E(f"s_lshl_b32 s{sT1}, s{sCB}, 8")
    E(f"s_add_u32 s{sT0}, s{sT0}, s{sT1}")
    for i in range(4):
        E(f"s_add_u32 m0, s{sSC}, {1024*i}")
        E(f"s_add_u32 s{sT1}, s{sT0}, {4*1280*i}")
        E(f"buffer_load_dwordx4 v{vSo}, s[{rIN}:{rIN+3}], s{sT1} offen lds", tag="slab")
    P = [A() for _ in range(8)]
    for k, p in enumerate((pARE, pAIM, pBRE, pBIM, pCRE, pCIM)):
        E(f"global_load_dword v{P[k]}, v{vPo}, s[{p}:{p+1}]")
    E(f"global_load_ushort v{P[6]}, v{vt[1]}, s[{pLDT}:{pLDT+1}]")
    E(f"global_load_ushort v{P[7]}, v{vt[1]}, s[{pDSK}:{pDSK+1}]")
    srd(E, rWS, pWS, WS_SIZE)
    srd(E, rOUT, pOUT, 5242880)
    vM1 = big + 140
    for i in range(4): E(f"v_mov_b32 v{vM1+i}, -1")
    E(f"s_mul_i32 s{sT0}, s2, 24576")
    E(f"s_mul_i32 s{sT1}, s{sW}, 6144")
    E(f"s_add_u32 s{sT0}, s{sT0}, s{sT1}")
    E(f"s_add_u32 s{sT0}, s{sT0}, {O_BASE}")
    E(f"s_add_u32 s{sT1}, s{sT0}, 3072")
    for i in range(6):
        E(f"buffer_store_dwordx4 {v(vM1,4)}, v{vL16}, s[{rWS}:{rWS+3}], s{sT0 if i < 3 else sT1} offen offset:{1024*(i%3)} sc1")
    vZ = big + 144
    E(f"v_mov_b32 v{vZ}, 0"); E(f"v_mov_b32 v{vZ+1}, 0")
    E(f"v_lshlrev_b32 v{vt[0]}, 3, v0")
    E(f"ds_write_b64 v{vt[0]}, {v(vZ,2)}")
    E(f"v_and_b32 v{vt[0]}, 7, v{vL}")
    E(f"v_lshl_add_u32 v{vt[0]}, v{vt[0]}, 2, s{sKT}")
    E(f"ds_write_b32 v{vt[0]}, v{vZ}")
    vLm = A()
    E(f"v_lshlrev_b32 v{vt[0]}, 3, v{vG}")
    E(f"v_sub_u32 v{vLm}, v{vC}, v{vt[0]}")
    E(f"v_add_u32 v{vLm}, 33, v{vLm}")
    vLf = A()
    E(f"v_cvt_f32_u32 v{vLf}, v{vLm}")
    E(f"s_mov_b32 s7, 0x0202")
    E(f"s_mov_b32 s8, 0x10001")
    vK1 = A()
    E(f"v_mov_b32 v{vK1}, 0x01000100")
    sel = {}; adr = {}
    for name, srep, js in (("d", 5, [3]), ("1", 9, [3, 2]), ("2", 17, [3, 2, 1, 0]), ("3", 33, [3, 2, 1, 0])):
        base = 32 * srep - 24
        vb = vt[2]
        for j in js:
            r = A(); sel[(name, j)] = r
            E(f"v_add_f32 v{vt[0]}, {f32(base + 7 - 2*j)}, v{vLf}")
            E(f"v_add_f32 v{vt[1]}, {f32(base + 6 - 2*j)}, v{vLf}")
            E(f"v_cvt_pk_bf16_f32 v{r}, v{vt[0]}, v{vt[1]}")
            if j == 3:
                E(f"v_lshrrev_b32 v{vt[3]}, 17, v{r}")
                E(f"v_lshlrev_b32 v{vt[3]}, 1, v{vt[3]}")
                E(f"v_mul_u32_u24 v{vb}, s8, v{vt[3]}")
                a = A(); adr[name] = a
                if name == "d":
                    E(f"v_and_b32 v{a}, -2, v{vLm}")
                    E(f"v_lshl_add_u32 v{a}, v{a}, 1, s{sKT}")
                    E(f"v_subrev_u32 v{a}, 16, v{a}")
                else:
                    E(f"v_lshl_add_u32 v{a}, v{vt[3]}, 1, s{sKT}")
                    E(f"v_subrev_u32 v{a}, {2*(0x4300-272)}, v{a}")
            E(f"v_sub_u32 v{r}, v{r}, v{vb}")
            E(f"v_mad_u32_u24 v{r}, v{r}, s7, v{vK1}")
    vMa = A(); vMb = A(); vMw = A()
    E(f"v_lshlrev_b32 v{vt[0]}, 1, v{vL}")
    E(f"v_add_u32 v{vt[1]}, 256, v{vt[0]}")
    E(f"v_add_u32 v{vt[2]}, {496-32}, v{vt[0]}")
    E(f"v_cmp_lt_u32 vcc, 15, v{vL}")
    E(f"v_cndmask_b32 v{vt[1]}, v{vt[1]}, v{vt[2]}, vcc")
    E(f"v_add_u32 v{vt[2]}, {1008-80}, v{vt[0]}")
    E(f"v_cmp_lt_u32 vcc, 39, v{vL}")
    E(f"v_cndmask_b32 v{vt[1]}, v{vt[1]}, v{vt[2]}, vcc")
    E(f"v_cvt_f32_u32 v{vt[1]}, v{vt[1]}")
    E(f"v_add_f32 v{vt[2]}, 1.0, v{vt[1]}")
    E(f"v_cvt_pk_bf16_f32 v{vt[1]}, v{vt[1]}, v{vt[2]}")
    E(f"s_sub_u32 s{sT0}, s{sKT}, {2*(0x4300-272)}")
    E(f"v_and_b32 v{vMa}, 0xffff, v{vt[1]}")
    E(f"v_lshl_add_u32 v{vMa}, v{vMa}, 1, s{sT0}")
    E(f"v_lshrrev_b32 v{vMb}, 16, v{vt[1]}")
    E(f"v_lshl_add_u32 v{vMb}, v{vMb}, 1, s{sT0}")
    E(f"v_lshl_add_u32 v{vMw}, v{vL}, 2, s{sKT}")
    vTa = vt[4]; vUo = vt[5]
    E(f"v_and_b32 v{vt[0]}, 1, v{vG}")
    E(f"v_lshrrev_b32 v{vt[1]}, 1, v{vG}")
    E(f"v_lshrrev_b32 v{vt[2]}, 2, v{vC}")
    E(f"v_and_b32 v{vt[3]}, 3, v{vC}")
    E(f"v_lshl_add_u32 v{vTa}, v{vt[0]}, 3, v{vt[2]}")
    E(f"v_lshlrev_b32 v{vTa}, 8, v{vTa}")
    E(f"v_lshl_add_u32 v{vTa}, v{vt[1]}, 5, v{vTa}")
    E(f"v_lshl_add_u32 v{vTa}, v{vt[3]}, 3, v{vTa}")
    E(f"v_add_u32 v{vTa}, s{sSC}, v{vTa}")
    E(f"s_lshl_b32 s{sT0}, s{sTB}, 1")
    E(f"s_lshr_b32 s{sT1}, s{sW}, 1")
    E(f"s_add_u32 s{sT0}, s{sT0}, s{sT1}")
    E(f"v_add_u32 v{vt[3]}, s{sT0}, v{vt[3]}")
    E(f"v_and_b32 v{vt[3]}, 3, v{vt[3]}")
    E(f"v_lshl_add_u32 v{vUo}, v{vt[1]}, 2, v{vt[2]}")
    E(f"v_lshlrev_b32 v{vUo}, 14, v{vUo}")
    E(f"v_lshl_add_u32 v{vUo}, v{vt[0]}, 6, v{vUo}")
    E(f"v_lshl_add_u32 v{vUo}, v{vt[3]}, 4, v{vUo}")
    E(f"s_lshl_b32 s{sT0}, s{sCB}, 19")
    E(f"s_lshl_b32 s{sT1}, s{sTB}, 9")
    E(f"s_add_u32 s{sT0}, s{sT0}, s{sT1}")
    E(f"s_lshl_b32 s{sT1}, s{sW}, 7")
    E(f"s_add_u32 s{sT0}, s{sT0}, s{sT1}")
    if UT_BASE: E(f"s_add_u32 s{sT0}, s{sT0}, {UT_BASE}")
    E.wait_vm("slab")
    ST(E, "slab")
    for i in range(4):
        E(f"ds_read_b64_tr_b16 {v(big+4*i,2)}, v{vTa} offset:{64*i}")
        E(f"ds_read_b64_tr_b16 {v(big+4*i+2,2)}, v{vTa} offset:{64*i+1024}")
    for i in range(4):
        E(f"s_add_u32 s{sT1}, s{sT0}, {8*16384*i}")
        E(f"buffer_store_dwordx4 {v(big+4*i,4)}, v{vUo}, s[{rWS}:{rWS+3}], s{sT1} offen sc1")
    vNon = A()
    nld = nonce_load(E, vNon)
    L2E = math.log2(math.e); L2Eh = f32val(L2E); L2El = L2E - L2Eh
    I2P = 1 / (2 * math.pi); I2Ph = f32val(I2P); I2Pl = I2P - I2Ph
    vDt = A(); vDsk = A()
    E(f"s_mov_b32 s7, {f32(L2Eh)}")
    E(f"s_mov_b32 s8, {f32(I2Ph)}")
    E(f"v_lshlrev_b32 v{vt[0]}, 16, v{P[6]}")
    E(f"v_mul_f32 v{vt[1]}, s7, v{vt[0]}")
    E(f"v_fma_f32 v{vt[2]}, v{vt[0]}, s7, -v{vt[1]}")
    E(f"v_fmac_f32 v{vt[2]}, {f32(L2El)}, v{vt[0]}")
    E(f"v_exp_f32 v{vt[1]}, v{vt[1]}")
    E(f"v_mul_f32 v{vt[2]}, {f32(math.log(2))}, v{vt[2]}")
    E(f"v_fma_f32 v{vt[1]}, v{vt[1]}, v{vt[2]}, v{vt[1]}")
    E(f"v_cvt_pk_bf16_f32 v{vt[1]}, v{vt[1]}, v{vt[1]}")
    E(f"v_and_b32 v{vDt}, 0xffff0000, v{vt[1]}")
    E(f"v_lshlrev_b32 v{vDsk}, 16, v{P[7]}")
    KG = A(40, 4); A2 = Alloc(KG, KG + 40)
    W1 = [A2(2), A2(2)]; W8 = [A2(2), A2(2)]; W256 = [A2(2), A2(2)]
    XS = [[A2(2) for _ in range(4)] for _ in range(2)]
    XC = [A2(2), A2(2)]; TT = [A2(2), A2(2)]; PK = [A2(2), A2(2)]
    tmp = big + 100
    per_n = []
    for n in range(2):
        t = [tmp + 12 * n + i for i in range(12)]
        un = (lambda d, src: f"v_lshlrev_b32 v{d}, 16, v{src}") if n == 0 else (lambda d, src: f"v_and_b32 v{d}, 0xffff0000, v{src}")
        L = []
        for k in range(6): L.append(un(t[k], P[k]))
        L += [f"v_mul_f32 v{t[0]}, v{vDt}, v{t[0]}",
              f"v_mul_f32 v{t[1]}, v{vDt}, v{t[1]}",
              f"v_mul_f32 v{t[2]}, v{vDt}, v{t[2]}",
              f"v_mul_f32 v{t[3]}, v{vDt}, v{t[3]}",
              f"v_mul_f32 v{t[0]}, s7, v{t[0]}",
              f"v_mul_f32 v{t[6]}, s8, v{t[1]}",
              f"v_fma_f32 v{t[7]}, v{t[1]}, s8, -v{t[6]}",
              f"v_fmac_f32 v{t[7]}, {f32(I2Pl)}, v{t[1]}"]
        L += cmul(XS[n][0], t[4], t[2], TT[n])
        for e, Wd in ((1, W1[n]), (8, W8[n]), (256, W256[n])):
            if e == 1:
                L += [f"v_exp_f32 v{t[8]}, v{t[0]}", f"v_fract_f32 v{t[9]}, v{t[6]}", f"v_add_f32 v{t[9]}, v{t[9]}, v{t[7]}"]
            else:
                L += [f"v_mul_f32 v{t[8]}, {f32(e)}, v{t[0]}", f"v_mul_f32 v{t[9]}, {f32(e)}, v{t[6]}",
                      f"v_exp_f32 v{t[8]}, v{t[8]}", f"v_fract_f32 v{t[9]}, v{t[9]}", f"v_fmac_f32 v{t[9]}, {f32(e)}, v{t[7]}"]
            L += [f"v_cos_f32 v{t[10]}, v{t[9]}", f"v_sin_f32 v{t[11]}, v{t[9]}",
                  f"v_mul_f32 v{Wd}, v{t[8]}, v{t[10]}", f"v_mul_f32 v{Wd+1}, v{t[8]}, v{t[11]}"]
        per_n.append(L)
    assert tmp % 2 == 0
    E(zipl(*per_n))
    vWa = A(); vRa = A()
    E(f"v_lshl_add_u32 v{vWa}, v{vL}, 3, s{sSC}")
    E(f"v_mul_u32_u24 v{vRa}, {PITCH}, v{vC}")
    E(f"v_lshl_add_u32 v{vRa}, v{vG}, 4, v{vRa}")
    E(f"v_add_u32 v{vRa}, s{sSC}, v{vRa}")
    pkc = [0]
    def put_row(row, regs, neg):
        p = PK[pkc[0] % 2]; pkc[0] += 1
        sg = "-" if neg else ""
        return [f"v_cvt_pk_bf16_f32 v{p}, v{regs[0]}, {sg}v{regs[0]+1}",
                f"v_cvt_pk_bf16_f32 v{p+1}, v{regs[1]}, {sg}v{regs[1]+1}",
                f"ds_write_b64 v{vWa}, {v(p,2)} offset:{row*PITCH}"]
    def step(dst, src, mul):
        return zipl(cmul(dst[0], src[0], mul[0], TT[0]), cmul(dst[1], src[1], mul[1], TT[1]))
    XSi = lambda i: [XS[0][i], XS[1][i]]
    L = put_row(0, XSi(0), True)
    cur = XSi(0)
    for e in range(1, 8):
        dst = XSi(e // 2) if e % 2 == 0 else XC
        L += step(dst, cur, W1) + put_row(e, dst, True); cur = dst
    for i in range(4):
        L += step(XSi(i), XSi(i), W256) + put_row(8 + i, XSi(i), True)
    for r0 in (12, 14):
        for k, i in enumerate((0, 2)):
            L += step(XSi(i), XSi(i), W256) + put_row(r0 + k, XSi(i), True)
    for r in range(16, 21):
        L += step(XSi(0), XSi(0), W256) + put_row(r, XSi(0), True)
    E(L)
    XF = big + 16
    YF = big + 80
    KD = big + 112
    for tI in range(2):
        for k in range(8):
            E(f"ds_read_b128 {v(XF+32*tI+4*k,4)}, v{vRa} offset:{16*tI*PITCH + 64*k}")
    ST(E, "X")
    nonce_get(E, nld, vNon)
    E.wait_vm()
    E("s_barrier")
    E(f"s_lshl_b32 s{sT0}, s{sCB}, 9")
    E(f"s_lshr_b32 s{sT1}, s{sTB}, 3")
    E(f"s_lshl_b32 s{sT1}, s{sT1}, 7")
    E(f"s_add_u32 s{sT0}, s{sT0}, s{sT1}")
    E(f"s_and_b32 s{sT1}, s{sTB}, 7")
    E(f"s_lshl_b32 s{sT1}, s{sT1}, 2")
    E(f"s_add_u32 s{sT0}, s{sT0}, s{sT1}")
    E(f"s_add_u32 s{sT0}, s{sT0}, {FLAG_BASE}")
    skip = newlabel("noack")
    E(f"s_cmp_lg_u32 s{sW}, 0")
    E(f"s_cbranch_scc1 {skip}")
    E("s_mov_b64 exec, 1")
    E.raw(f"    buffer_store_dword v{vNon}, v{vZero}, s[{rWS}:{rWS+3}], s{sT0} offen sc1")
    E("s_mov_b64 exec, -1")
    E.label(skip)
    ST(E, "ack")
    if "--noB" in sys.argv:
        ST.dump(E, sW, big)
        E("s_endpgm")
        return ST
    Yc = XC
    def yhalf(h):
        L = []
        for j in range(16):
            jj = 16 * h + j
            if jj == 0:
                L += [f"v_mov_b32 v{Yc[0]}, 1.0", f"v_mov_b32 v{Yc[0]+1}, 0", f"v_mov_b32 v{Yc[1]}, 1.0", f"v_mov_b32 v{Yc[1]+1}, 0"]
            else:
                L += step(Yc, Yc, W8)
            L += put_row(j, Yc, False)
        return L
    def yread(): return [f"ds_read_b128 {v(YF+4*k,4)}, v{vRa} offset:{64*k}" for k in range(8)]
    def kmfma(h):
        L = []
        for k in range(8):
            for tI in range(2):
                d = KD + 8 * h + 4 * tI
                L.append(f"v_mfma_f32_16x16x32_bf16 {v(d,4)}, {v(XF+32*tI+4*k,4)}, {v(YF+4*k,4)}, {v(d,4) if k else 0}")
        return L
    E(yhalf(0)); E(yread())
    y1 = yhalf(1)
    E(y1[:28]); E(merge(y1[28:], kmfma(0)))
    vAk = vt[6]; vAo = vt[7]
    E(f"s_lshr_b32 s{sT2}, s{sCG}, 5")
    E(f"s_lshl_b32 s{sT2}, s{sT2}, 9")
    E(f"s_add_u32 s{sT2}, s{sT2}, {FLAG_BASE}")
    E(f"v_bfe_u32 v{vAk}, v{vL}, 3, 2")
    E(f"v_and_b32 v{vAo}, 7, v{vL}")
    E(f"v_lshlrev_b32 v{vAo}, 2, v{vAo}")
    E(f"v_lshl_add_u32 v{vAo}, v{vAk}, 7, v{vAo}")
    ld = f"buffer_load_dword v{vAk}, v{vAo}, s[{rWS}:{rWS+3}], s{sT2} offen sc1"
    E(ld, tag="ack")
    E(yread()); E(kmfma(1))
    ST(E, "Y")
    spin(E, [ld], [f"v_cmp_ne_u32 vcc, s{sN}, v{vAk}"], "ack")
    ST(E, "polled")
    E(f"s_lshl_b32 s{sT0}, s{sCG}, 14")
    E(f"s_lshl_b32 s{sT1}, s{sW}, 12")
    E(f"s_add_u32 s{sT0}, s{sT0}, s{sT1}")
    if UT_BASE: E(f"s_add_u32 s{sT0}, s{sT0}, {UT_BASE}")
    E(f"s_add_u32 m0, s{sT1}, {U_IMG}")
    for i in range(4):
        E(f"buffer_load_dwordx4 v{vL16}, s[{rWS}:{rWS+3}], s{sT0} offen offset:{1024*i} sc1 lds", tag="uimg")
    E(f"v_cmp_eq_u32 vcc, 0, v{vL}")
    E(f"v_cndmask_b32 v{vDsk}, 0, v{vDsk}, vcc")
    E(f"v_add_f32 v{KD}, v{KD}, v{vDsk}")
    a0, a1, st = vt[0], vt[1], vt[2]
    E(f"v_lshlrev_b32 v{a0}, 4, v{vC}")
    E(f"v_lshl_add_u32 v{a0}, v{vG}, 3, v{a0}")
    E(f"v_add_u32 v{a0}, 32, v{a0}")
    E(f"v_mov_b32 v{st}, 256")
    E(f"v_lshlrev_b32 v{vt[3]}, 3, v{vC}")
    E(f"v_add_u32 v{vt[3]}, 800, v{vt[3]}")
    E(f"v_mov_b32 v{vt[4]}, 128")
    E(f"v_cmp_eq_u32 vcc, 2, v{vG}")
    E(f"v_cndmask_b32 v{a0}, v{a0}, v{vt[3]}, vcc")
    E(f"v_cndmask_b32 v{st}, v{st}, v{vt[4]}, vcc")
    E(f"v_lshlrev_b32 v{vt[3]}, 2, v{vC}")
    E(f"v_add_u32 v{vt[3]}, 1056, v{vt[3]}")
    E(f"v_mov_b32 v{vt[5]}, 64")
    E(f"v_cmp_eq_u32 vcc, 3, v{vG}")
    E(f"v_cndmask_b32 v{a0}, v{a0}, v{vt[3]}, vcc")
    E(f"v_cndmask_b32 v{st}, v{st}, v{vt[5]}, vcc")
    E(f"v_cndmask_b32 v{a1}, 4, v{vt[4]}, vcc")
    E(f"v_add_u32 v{a0}, s{sKT}, v{a0}")
    E(f"v_add_u32 v{a1}, v{a0}, v{a1}")
    a2 = vt[3]
    E(f"v_lshlrev_b32 v{a2}, 8, v{vG}")
    E(f"v_lshl_add_u32 v{a2}, v{vC}, 1, v{a2}")
    E(f"v_add_u32 v{a2}, s{sKT}, v{a2}")
    for h in range(2):
        d0 = KD + 8 * h; d1 = d0 + 4
        p = YF + 4 * h
        E(f"v_cvt_pk_bf16_f32 v{p}, v{d0}, v{d0+1}")
        E(f"v_cvt_pk_bf16_f32 v{p+1}, v{d0+2}, v{d0+3}")
        E(f"v_cvt_pk_bf16_f32 v{p+2}, v{d1}, v{d1+1}")
        E(f"v_cvt_pk_bf16_f32 v{p+3}, v{d1+2}, v{d1+3}")
        if h == 1:
            E(f"v_add_u32 v{a0}, v{a0}, v{st}")
            E(f"v_add_u32 v{a1}, v{a1}, v{st}")
        E(f"ds_write_b32 v{a0}, v{p}")
        E(f"ds_write_b32 v{a1}, v{p+1}")
        for rho in range(4):
            op = "ds_write_b16" if rho % 2 == 0 else "ds_write_b16_d16_hi"
            E(f"{op} v{a2}, v{p+2+rho//2} offset:{2*656 + 64*rho + 32*h}")
    E(f"ds_read_u16 v{vt[5]}, v{vMa}")
    E(f"ds_read_u16 v{vt[4]}, v{vMb}")
    E(f"v_lshl_or_b32 v{vt[5]}, v{vt[4]}, 16, v{vt[5]}")
    E(f"ds_write_b32 v{vMw}, v{vt[5]} offset:544")
    ACC = KG
    Hs = [big, big + 32]; Fs = [big + 64, big + 96]; RAW = big + 128
    vH = [vt[0], vt[1]]
    vTb = vt[2]
    E(f"v_lshl_add_u32 v{vTb}, v{vC}, 1, v{vG}")
    E(f"v_add_u32 v{vTb}, 30, v{vTb}")
    def prepF(s0, buf):
        rd = []; pm = []
        r = RAW
        for m in range(8):
            sx = s0 + 8 * m
            F = Fs[buf] + 4 * m
            if sx <= 8 or sx == 16 or sx == 32:
                o = {16: 152, 32: 176}.get(sx, 16 * sx)
                rd += [f"ds_read2_b32 {v(r,2)}, v{adr['d']} offset0:{o} offset1:{o+1}",
                       f"ds_read2_b32 {v(r+2,2)}, v{adr['d']} offset0:{o+2} offset1:{o+3}",
                       f"ds_read_b32 v{r+4}, v{adr['d']} offset:{4*(o+4)}"]
                pm += [f"v_perm_b32 v{F+j}, v{r+4-j}, v{r+3-j}, v{sel[('d',3)]}" for j in (3, 2, 1, 0)]
                r += 6
            elif sx < 16:
                o = 8 * (sx - 9)
                rd += [f"ds_read2_b32 {v(r,2)}, v{adr['1']} offset0:{o} offset1:{o+1}",
                       f"ds_read_b32 v{r+2}, v{adr['1']} offset:{4*(o+2)}"]
                pm += [f"v_perm_b32 v{F+3}, v{r+1}, v{r}, v{sel[('1',3)]}", f"v_perm_b32 v{F+2}, v{r+1}, v{r}, v{sel[('1',2)]}",
                       f"v_perm_b32 v{F+1}, v{r+2}, v{r+1}, v{sel[('1',3)]}", f"v_perm_b32 v{F}, v{r+2}, v{r+1}, v{sel[('1',2)]}"]
                r += 4
            else:
                nm, o = ("2", 4 * (sx - 17)) if sx < 32 else ("3", 2 * (sx - 33))
                rd += [f"ds_read2_b32 {v(r,2)}, v{adr[nm]} offset0:{o} offset1:{o+1}"]
                pm += [f"v_perm_b32 v{F+j}, v{r+1}, v{r}, v{sel[(nm,j)]}" for j in (3, 2, 1, 0)]
                r += 2
        assert r <= big + 160
        return rd, pm
    def prepH(s0, buf):
        a = vH[buf]; t = vt[3]
        L = [f"v_subrev_u32 v{a}, {4*s0}, v{vTb}",
             f"v_lshrrev_b32 v{t}, 2, v{a}",
             f"v_add_u32 v{t}, s{sW}, v{t}",
             f"v_and_b32 v{t}, 3, v{t}",
             f"v_lshlrev_b32 v{a}, 6, v{a}",
             f"v_lshl_add_u32 v{a}, v{t}, 4, v{a}"]
        return L, [f"ds_read_b128 {v(Hs[buf]+4*dl,4)}, v{a} offset:{2048*dl}" for dl in range(8)]
    rd, pm = prepF(0, 0)
    ha, hr = prepH(0, 0)
    E(rd); E(ha); E(pm)
    ST(E, "tables")
    E.wait_vm("uimg")
    E.wait_lg()
    E("s_barrier")
    ST(E, "uimg")
    E(hr)
    for s0 in range(8):
        b = s0 % 2
        M = []
        for m in range(8):
            for dl in range(8 - m):
                q = m + dl
                c = v(ACC + 4 * q, 4) if (s0 or m) else "0"
                M.append(f"v_mfma_f32_16x16x32_bf16 {v(ACC+4*q,4)}, {v(Fs[b]+4*m,4)}, {v(Hs[b]+4*dl,4)}, {c}")
        if s0 < 7:
            rd, pm = prepF(s0 + 1, 1 - b)
            ha, hr = prepH(s0 + 1, 1 - b)
            E(merge(M, rd + ha + hr + pm))
        else:
            E(M)
    ST(E, "conv")
    ya = vt[0]
    E(f"s_mul_i32 s{sT0}, s{sW}, {Y_PITCH}")
    E(f"s_add_u32 s{sT0}, s{sT0}, {SC_BASE}")
    E(f"v_lshlrev_b32 v{ya}, 5, v{vC}")
    E(f"v_lshl_add_u32 v{ya}, v{vG}, 3, v{ya}")
    E(f"v_add_u32 v{ya}, s{sT0}, v{ya}")
    for q in range(8):
        E(f"v_cvt_pk_bf16_f32 v{big+2*q}, v{ACC+4*q}, v{ACC+4*q+1}")
        E(f"v_cvt_pk_bf16_f32 v{big+2*q+1}, v{ACC+4*q+2}, v{ACC+4*q+3}")
        E(f"ds_write_b64 v{ya}, {v(big+2*q,2)} offset:{512*q}")
    yr, yo = vt[1], vt[2]
    E(f"v_lshrrev_b32 v{vt[3]}, 2, v{vC}")
    E(f"v_mul_u32_u24 v{yr}, {Y_PITCH}, v{vt[3]}")
    E(f"v_and_b32 v{vt[3]}, 3, v{vC}")
    E(f"v_lshl_add_u32 v{yr}, v{vt[3]}, 3, v{yr}")
    E(f"v_lshl_add_u32 v{yr}, v{vG}, 5, v{yr}")
    E(f"s_lshl_b32 s{sT0}, s{sW}, 10")
    E(f"s_add_u32 s{sT0}, s{sT0}, {SC_BASE}")
    E(f"v_add_u32 v{yr}, s{sT0}, v{yr}")
    E(f"v_mul_u32_u24 v{yo}, 2560, v{vL}")
    E(f"s_mul_i32 s{sT0}, s{sW}, {512*2560}")
    E(f"s_lshl_b32 s{sT1}, s{sCG}, 3")
    E(f"s_add_u32 s{sT0}, s{sT0}, s{sT1}")
    E(f"s_add_u32 s{sT0}, s{sT0}, 1280")
    E.wait_lg()
    E("s_barrier")
    for i in range(8):
        E(f"ds_read_b64_tr_b16 {v(big+32+2*i,2)}, v{yr} offset:{128*i}")
    for i in range(8):
        E(f"s_add_u32 s{sT1}, s{sT0}, {64*2560*i}")
        E(f"buffer_store_dwordx2 {v(big+32+2*i,2)}, v{yo}, s[{rOUT}:{rOUT+3}], s{sT1} offen")
    if PROFILE:
        ST(E, "stores issued")
        E.wait_vm()
        ST(E, "end")
    ST.dump(E, sW, big)
    E("s_endpgm")
    return ST

def main():
    global PROFILE
    PROFILE = "--profile" in sys.argv
    head = open(f"cdna_kernels/{NAME}.s.ref").read().split("\n")
    hdr = [l for l in head if l.startswith(";") and "@launch" not in l]
    E = Emitter()
    for l in hdr: E.raw(l)
    E.raw(f"; @launch grid=({NB+NA},1,1) block=(256,1,1) lds=81920")
    E.raw('.amdgcn_target "amdgcn-amd-amdhsa--gfx950"')
    E.raw(".text")
    E.raw(f".globl {NAME}_kernel")
    E.raw(".p2align 8")
    E.raw(f".type {NAME}_kernel,@function")
    E.label(f"{NAME}_kernel")
    E("s_load_dwordx16 s[16:31], s[0:1], 0")
    E("s_load_dwordx16 s[32:47], s[0:1], 64")
    E("s_memrealtime s[10:11]")
    E(f"s_cmp_ge_u32 s2, {NB}")
    E("s_cbranch_scc1 L_roleA")
    E.lgq = [("__smem", set())]
    lg = list(E.lgq)
    stB = gen_B(E)
    E.label("L_roleA")
    try:
        from genA import gen_A
        stA = gen_A(E, sys.modules[__name__])
    except ImportError:
        stA = None
        E("s_endpgm")
    E.raw('.section .rodata,"a"')
    E.raw(".p2align 6")
    E.raw(f".amdhsa_kernel {NAME}_kernel")
    for l in ("next_free_vgpr 256", "next_free_sgpr 102", "accum_offset 256", "group_segment_fixed_size 0", "kernarg_size 128",
              "user_sgpr_count 2", "user_sgpr_kernarg_segment_ptr 1", "system_sgpr_workgroup_id_x 1"):
        E.raw("  .amdhsa_" + l)
    E.raw(".end_amdhsa_kernel")
    outp = [a for a in sys.argv[1:] if not a.startswith("--")]
    open(outp[0] if outp else "k.s", "w").write(E.text())
    print("instrs", E.count, "nops", E.nops, file=sys.stderr)
    import json
    json.dump({"B": stB.names, "A": stA.names if stA else []}, open("stamps.json", "w"))

if __name__ == "__main__":
    main()
```

```python
import math, sys
from asmlib import *

TA = [[(0, 0), (0, 2), (0, 4), (1, 4)], [(0, 1), (0, 3), (1, 3), (2, 3)], [(1, 0), (1, 2), (2, 2), (2, 4)], [(1, 1), (2, 0), (2, 1), None]]
M16 = "v_mfma_f32_16x16x32_bf16"; M32 = "v_mfma_f32_32x32x16_bf16"

def div_const(dst, src, d):
    return [f"v_mul_u32_u24 v{dst}, {(65536 + d - 1)//d}, v{src}", f"v_lshrrev_b32 v{dst}, 16, v{dst}"]

def put_flag(E, G, sW, vNon, saddr):
    skip = G.newlabel("nofl")
    E(f"s_cmp_lg_u32 s{sW}, 0")
    E(f"s_cbranch_scc1 {skip}")
    E("s_mov_b64 exec, 1")
    E.raw(f"    buffer_store_dword v{vNon}, off, s[{G.rWS}:{G.rWS+3}], s{saddr} sc1")
    E("s_mov_b64 exec, -1")
    E.label(skip)

def flag_addr(dst, idx, base, t):
    return [f"s_lshr_b32 s{dst}, s{idx}, 3", f"s_lshl_b32 s{dst}, s{dst}, 7", f"s_and_b32 s{t}, s{idx}, 7", f"s_lshl_b32 s{t}, s{t}, 2",
            f"s_add_u32 s{dst}, s{dst}, s{t}", f"s_add_u32 s{dst}, s{dst}, {base}"]

def piece_voff(E, vL, dst, t, pitch):
    for m in range(3):
        if m: E(f"v_add_u32 v{t}, {64*m}, v{vL}")
        ci = t if m else vL
        E(div_const(t + 1, ci, 20))
        E(f"v_mul_u32_u24 v{t+1}, {pitch - 320}, v{t+1}")
        E(f"v_lshl_add_u32 v{dst[m]}, v{vL}, 4, v{t+1}")

def gen_C(E, G):
    rWS, rDBG, rWO = G.rWS, G.rDBG, G.rWO
    E.reset(); E.lgq = [("__smem", set())]
    sW, sU = 76, 77
    vL, vo, t, vT, vS, D, vNon = 1, [2, 3, 4], 6, [8, 9, 10], [11, 12, 13], 16, 14
    E(f"v_and_b32 v{vL}, 63, v0")
    E(f"v_lshrrev_b32 v{t}, 6, v0")
    E(f"s_sub_u32 s{sU}, s2, {G.NB + G.NA}")
    E(f"v_readfirstlane_b32 s{sW}, v{t}")
    piece_voff(E, vL, vo, t, 1280)
    E(f"s_mul_i32 s4, s{sU}, {8*1280}")
    E(f"s_mul_i32 s5, s{sW}, 320")
    E(f"s_add_u32 s4, s4, s5")
    E(f"s_lshl_b32 s6, s{sW}, 12")
    E(f"s_mov_b32 m0, s6")
    E.wait_lg()
    G.srd(E, rWO, G.pWO, 819200)
    for m in range(3):
        if m == 2: E("s_mov_b32 exec_hi, 0")
        E(f"buffer_load_dwordx4 v{vo[m]}, s[{rWO}:{rWO+3}], s4 offen offset:{1024*m} lds")
    E("s_mov_b64 exec, -1")
    G.srd(E, rWS, G.pWS, G.WS_SIZE)
    G.srd(E, rDBG, G.pDBG, 256)
    for m in range(3):
        E(f"v_lshrrev_b32 v{t}, 4, v{vL}")
        E(f"v_add_u32 v{t}, {4*m}, v{t}")
        E(f"v_min_u32 v{t}, 9, v{t}")
        E(f"v_cmp_lt_u32 vcc, 4, v{t}")
        E(f"v_lshlrev_b32 v{vT[m]}, 3, v{t}")
        E(f"v_add_u32 v{t+1}, 120, v{vT[m]}")
        E(f"v_cndmask_b32 v{vT[m]}, v{vT[m]}, v{t+1}, vcc")
        E(f"v_lshlrev_b32 v{vS[m]}, 10, v{t}")
        E(f"v_add_u32 v{t+1}, {95*1024}, v{vS[m]}")
        E(f"v_cndmask_b32 v{vS[m]}, v{vS[m]}, v{t+1}, vcc")
        E(f"v_and_b32 v{t}, 3, v{vL}")
        E(f"v_mul_u32_u24 v{t}, 40, v{t}")
        E(f"v_bfe_u32 v{t+1}, v{vL}, 2, 2")
        E(f"v_mul_u32_u24 v{t+1}, 320, v{t+1}")
        E(f"v_add3_u32 v{vT[m]}, v{vT[m]}, v{t}, v{t+1}")
        E(f"v_add_u32 v{vT[m]}, s6, v{vT[m]}")
        E(f"v_and_b32 v{t}, 15, v{vL}")
        E(f"v_lshl_add_u32 v{vS[m]}, v{t}, 4, v{vS[m]}")
    E(f"s_mul_i32 s4, s{sW}, {200*1024}")
    E(f"s_lshr_b32 s5, s{sU}, 2")
    E(f"s_mul_i32 s5, s5, 5120")
    E(f"s_add_u32 s4, s4, s5")
    E(f"s_and_b32 s5, s{sU}, 3")
    E(f"s_lshl_b32 s5, s5, 8")
    E(f"s_add_u32 s4, s4, s5")
    E(f"s_add_u32 s4, s4, {G.PWO_BASE}")
    E(flag_addr(7, sU, G.FLAGC_BASE, 5))
    E.wait_vm()
    for m in range(3):
        for a in range(2): E(f"ds_read_b64_tr_b16 {v(D+4*m+2*a,2)}, v{vT[m]} offset:{1280*a}")
    for m in range(3):
        if m == 2:
            E.wait_lg()
            E("s_mov_b32 exec_hi, 0")
        E(f"buffer_store_dwordx4 {v(D+4*m,4)}, v{vS[m]}, s[{rWS}:{rWS+3}], s4 offen sc1")
    E("s_mov_b64 exec, -1")
    nld = G.nonce_load(E, vNon)
    G.nonce_get(E, nld, vNon)
    E.wait_vm()
    E("s_barrier")
    put_flag(E, G, sW, vNon, 7)
    E("s_endpgm")

def gen_A(E, G):
    f32, Alloc, srd, spin, newlabel = G.f32, G.Alloc, G.srd, G.spin, G.newlabel
    rWS, rOUT, rDBG, rIN, rW, rPHI = G.rWS, G.rOUT, G.rDBG, G.rIN, G.rW, G.rPHI
    sN = G.sN
    E.reset()
    E(f"s_cmp_lt_u32 s2, {G.NB + G.NA}")
    E("s_cbranch_scc1 L_goA")
    E(f"s_cmp_lt_u32 s2, {G.NB + G.NA + G.NC}")
    E("s_cbranch_scc1 L_goC")
    E("s_endpgm")
    E.label("L_goC")
    gen_C(E, G)
    E.label("L_goA")
    E.reset()
    E.lgq = [("__smem", set())]
    ST = G.Stamps(24)
    sW, sR, sP, sPQ, sTBo, sCT, sROT = 76, 77, 78, 79, 80, 81, 82
    sT0, sT1, sT2 = 4, 5, 6
    sWO, sXO, sWE, sXE = 84, 85, 86, 87
    sW4, sXR, sH, sFT = 88, 89, 90, 91
    sPS, sOS, sFO, sPL, sOL, sWL, sFC, sOUT, sFP, sF1, sF2 = 96, 97, 98, 99, 100, 101, 70, 71, 92, 68, 69
    XR = 49152
    TAB = 36864; ZTAB = TAB + 3200; KVT = 45056; ZKV = ZTAB
    def wslot(sig): return 16384 * ((sig + 1) % 3)
    E(f"s_setprio {G.APRIO}")
    A = Alloc(1, 256)
    vL = A(); vHH = A(); vL16 = A()
    ACC = A(64, 4)
    WF = A(32, 4)
    XF = A(32, 4)
    PF = A(48, 4)
    TM = A(36, 4)
    ID = A(4, 4)
    vXo = [A() for _ in range(4)]
    vWo = [A() for _ in range(4)]
    vWt = [A() for _ in range(4)]
    vXrs = [A() for _ in range(4)]
    MP = A(); vMn = A(); vNon = A()
    vPk = A(); vVw = A(); vA = A(); vB = A(); vS1 = A(); vS2 = A(); vPi = A(); vKa = A(); vO1 = A(); vO3 = A(); vC4 = A()
    vRw = A(); vSo = [A() for _ in range(3)]
    vFl = A(); vFc = A()
    vt = [TM + 20 + i for i in range(12)]
    vG, vC, vGam, vR4 = vt[8], vt[9], vt[10], vt[11]
    E(f"v_and_b32 v{vL}, 63, v0")
    E(f"v_lshrrev_b32 v{vt[0]}, 6, v0")
    E(f"v_lshrrev_b32 v{vG}, 4, v{vL}")
    E(f"v_readfirstlane_b32 s{sW}, v{vt[0]}")
    E(f"s_sub_u32 s{sT2}, s2, {G.NB}")
    E(f"s_and_b32 s{sT0}, s{sT2}, 7")
    E(f"s_lshr_b32 s{sT1}, s{sT2}, 3")
    E(f"s_lshr_b32 s{sCT}, s{sT1}, 2")
    E(f"s_and_b32 s{sT1}, s{sT1}, 3")
    E(f"s_lshl_b32 s{sTBo}, s{sT0}, 2")
    E(f"s_add_u32 s{sTBo}, s{sTBo}, s{sT1}")
    E(f"s_lshr_b32 s{sR}, s{sT0}, 1")
    E(f"s_lshl_b32 s{sR}, s{sR}, 2")
    E(f"s_add_u32 s{sR}, s{sR}, s{sT1}")
    E(f"s_lshl_b32 s{sT2}, s{sCT}, 2")
    E(f"s_lshr_b32 s{sT2}, 0x75206431, s{sT2}")
    E(f"s_and_b32 s{sT2}, s{sT2}, 7")
    E(f"s_and_b32 s{sP}, s{sT0}, 1")
    E(f"s_lshl_b32 s{sP}, s{sP}, 3")
    E(f"s_add_u32 s{sP}, s{sP}, s{sT2}")
    E(f"s_xor_b32 s{sPQ}, s{sP}, 1")
    E(f"s_mul_i32 s{sROT}, s{sT1}, 3")
    E(f"s_add_u32 s{sROT}, s{sROT}, s{sT2}")
    E(f"s_sub_u32 s{sT0}, s{sROT}, 10")
    E(f"s_cmp_ge_u32 s{sROT}, 10")
    E(f"s_cselect_b32 s{sROT}, s{sT0}, s{sROT}")
    E(f"s_mul_i32 s{sT0}, s{sPQ}, 80")
    E(f"s_mul_i32 s{sT1}, s{sP}, 80")
    E(f"s_sub_u32 s{sT2}, s{sT1}, s{sT0}")
    E(f"s_add_u32 s{sT2}, s{sT2}, {1280-80}")
    for m in range(4):
        if m: E(f"v_add_u32 v{vt[0]}, {64*m}, v{vL}")
        ci = vt[0] if m else vL
        if m == 3: E(f"v_min_u32 v{vt[0]}, 239, v{vt[0]}")
        E(f"v_mul_u32_u24 v{vt[1]}, 0x1112, v{ci}")
        E(f"v_lshrrev_b32 v{vt[1]}, 16, v{vt[1]}")
        E(f"v_mul_u32_u24 v{vt[2]}, 15, v{vt[1]}")
        E(f"v_sub_u32 v{vt[2]}, v{ci}, v{vt[2]}")
        E(f"v_and_b32 v{vt[3]}, 3, v{vt[1]}")
        E(f"v_lshrrev_b32 v{vt[1]}, 2, v{vt[1]}")
        E(f"v_lshl_add_u32 v{vt[1]}, v{vt[3]}, 2, v{vt[1]}")
        E(f"v_cmp_lt_u32 vcc, 4, v{vt[2]}")
        E(f"v_mul_u32_u24 v{vt[1]}, 3840, v{vt[1]}")
        E(f"v_lshl_add_u32 v{vt[1]}, v{vt[2]}, 4, v{vt[1]}")
        E(f"v_add_u32 v{vt[3]}, s{sT2}, v{vt[1]}")
        E(f"v_cndmask_b32 v{vt[1]}, v{vt[1]}, v{vt[3]}, vcc")
        E(f"v_cmp_lt_u32 vcc, 9, v{vt[2]}")
        E(f"v_add_u32 v{vt[3]}, 1200, v{vt[1]}")
        E(f"v_cndmask_b32 v{vt[1]}, v{vt[1]}, v{vt[3]}, vcc")
        E(f"v_add_u32 v{vWo[m]}, {3072 - 1024*m}, v{vt[1]}")
    E(f"v_lshrrev_b32 v{vt[0]}, 3, v{vL}")
    E(f"v_and_b32 v{vt[1]}, 7, v{vL}")
    E(f"v_xor_b32 v{vt[1]}, v{vt[1]}, v{vG}")
    E(f"v_mul_u32_u24 v{vt[0]}, 1280, v{vt[0]}")
    E(f"v_lshl_add_u32 v{vXo[0]}, v{vt[1]}, 4, v{vt[0]}")
    E(f"v_xor_b32 v{vt[1]}, 4, v{vt[1]}")
    E(f"v_lshl_add_u32 v{vXo[1]}, v{vt[1]}, 4, v{vt[0]}")
    E(f"v_add_u32 v{vXo[2]}, {2*(8*1280-1024)}, v{vXo[0]}")
    E(f"v_add_u32 v{vXo[3]}, {3*(8*1280-1024)}, v{vXo[1]}")
    E(f"v_add_u32 v{vXo[1]}, {1*(8*1280-1024)}, v{vXo[1]}")
    E(f"s_mul_i32 s{sWE}, s{sW}, {16*3840}")
    E(f"s_add_u32 s{sWE}, s{sWE}, s{sT0}")
    E(f"s_mul_i32 s{sWO}, s{sROT}, {64*3840}")
    E(f"s_add_u32 s{sWO}, s{sWO}, s{sWE}")
    E(f"s_add_u32 s{sWE}, s{sWE}, {640*3840}")
    E(f"s_lshl_b32 s{sXE}, s{sR}, 2")
    E(f"s_add_u32 s{sXE}, s{sXE}, s{sW}")
    E(f"s_mul_i32 s{sXE}, s{sXE}, {32*1280}")
    E(f"s_lshl_b32 s{sXO}, s{sROT}, 7")
    E(f"s_add_u32 s{sXO}, s{sXO}, s{sXE}")
    E(f"s_add_u32 s{sXE}, s{sXE}, 1280")
    E(f"s_lshl_b32 s{sW4}, s{sW}, 12")
    E(f"s_lshl_b32 s{sXR}, s{sW}, 13")
    E(f"s_add_u32 s{sXR}, s{sXR}, {XR}")
    E.wait_lg()
    ST(E, "start")
    E(f"s_sub_u32 s{G.pW}, s{G.pW}, 3072")
    E(f"s_subb_u32 s{G.pW+1}, s{G.pW+1}, 0")
    srd(E, rW, G.pW, 2457600 + 3072)
    srd(E, rIN, G.pX, 2621440)

    def dmaW(sig):
        L = []
        for m in range(4):
            g = []
            if m == 0: g.append(f"s_add_u32 m0, s{sW4}, {wslot(sig)}")
            g.append(("tag", f"buffer_load_dwordx4 v{vWo[m]}, s[{rW}:{rW+3}], s{sWO} offen offset:{1024*m} lds", f"S{sig}"))
            if m == 3: g += [f"s_add_u32 s{sWO}, s{sWO}, {64*3840}", f"s_cmp_ge_u32 s{sWO}, s{sWE}", f"s_cselect_b32 s9, {640*3840}, 0", f"s_sub_u32 s{sWO}, s{sWO}, s9"]
            L.append(("group", g))
        return L
    def dmaX(sig):
        L = []
        for i in range(4):
            g = []
            if i == 0: g.append(f"s_add_u32 m0, s{sXR}, {4096*(sig%2)}")
            g.append(("tag", f"buffer_load_dwordx4 v{vXo[i]}, s[{rIN}:{rIN+3}], s{sXO} offen offset:{1024*i} lds", f"S{sig}"))
            if i == 3: g += [f"s_add_u32 s{sXO}, s{sXO}, 128", f"s_cmp_ge_u32 s{sXO}, s{sXE}", f"s_cselect_b32 s9, 1280, 0", f"s_sub_u32 s{sXO}, s{sXO}, s9"]
            L.append(("group", g))
        return L
    E(dmaW(0)); E(dmaX(0)); E(dmaW(1)); E(dmaX(1))
    srd(E, rWS, G.pWS, G.WS_SIZE)
    PN = TM + 32
    for i in range(4): E(f"v_mov_b32 v{PN+i}, -1")
    E(f"v_lshlrev_b32 v{vL16}, 4, v{vL}")
    E(f"s_lshl_b32 s{sPL}, s{sPQ}, 16")
    E(f"s_add_u32 s{sPL}, s{sPL}, {G.P_BASE}")
    E(f"s_lshl_b32 s{sPS}, s{sP}, 4")
    E(f"s_add_u32 s{sPS}, s{sPS}, s{sR}")
    E(f"s_lshl_b32 s{sPS}, s{sPS}, 12")
    E(f"s_add_u32 s{sPS}, s{sPS}, {G.P_BASE}")
    E(f"s_lshl_b32 s{sT0}, s{sW}, 10")
    E(f"s_add_u32 s{sT0}, s{sT0}, s{sPS}")
    E(f"buffer_store_dwordx4 {v(PN,4)}, v{vL16}, s[{rWS}:{rWS+3}], s{sT0} offen sc1")
    srd(E, rDBG, G.pDBG, 256)
    srd(E, rPHI, G.pPHI, 25600)
    srd(E, rOUT, G.pOUT, 5242880)
    E(f"v_and_b32 v{vC}, 15, v{vL}")
    E(f"v_bfe_u32 v{vGam}, v{vL}, 4, 1")
    E(f"v_bfe_u32 v{vt[0]}, v{vL}, 1, 1")
    E(f"v_lshl_add_u32 v{vGam}, v{vGam}, 1, v{vt[0]}")
    E(f"v_bfe_u32 v{vR4}, v{vL}, 2, 2")
    E(f"v_lshrrev_b32 v{vHH}, 5, v{vL}")
    E(f"v_lshlrev_b32 v{vt[0]}, 3, v{vGam}")
    E(f"v_and_b32 v{vt[1]}, 1, v{vL}")
    E(f"v_mul_u32_u24 v{vt[1]}, 5, v{vt[1]}")
    E(f"v_lshl_add_u32 v{vt[2]}, v{vR4}, 1, v{vHH}")
    E(f"v_mul_u32_u24 v{vt[2]}, 480, v{vt[2]}")
    for T in range(4):
        pk = sum((30 if e is None else 10 * e[0] + e[1]) << (8 * i) for i, e in enumerate(TA[T]))
        E(f"s_mov_b32 s9, {pk}")
        E(f"v_bfe_u32 v{vt[3]}, s9, v{vt[0]}, 8")
        E(f"v_add_u32 v{vt[3]}, v{vt[3]}, v{vt[1]}")
        E(f"v_min_u32 v{vt[3]}, 31, v{vt[3]}")
        E(f"v_lshl_add_u32 v{vWt[T]}, v{vt[3]}, 3, v{vt[2]}")
    E(f"v_and_b32 v{vt[0]}, 31, v{vL}")
    E(f"v_bfe_u32 v{vt[1]}, v{vL}, 1, 3")
    E(f"v_xor_b32 v{vt[1]}, v{vt[1]}, v{vHH}")
    E(f"v_lshlrev_b32 v{vt[0]}, 7, v{vt[0]}")
    E(f"v_lshl_add_u32 v{vt[0]}, v{vt[1]}, 4, v{vt[0]}")
    for j in range(4):
        E(f"v_xor_b32 v{vXrs[j]}, {32*j}, v{vt[0]}")
        E(f"v_add_u32 v{vXrs[j]}, s{sXR}, v{vXrs[j]}")
    E(f"s_and_b32 s{sH}, s{sW}, 1")
    E(f"s_lshr_b32 s{sFT}, s{sW}, 1")
    E(f"s_mov_b32 s94, {f32(math.log2(math.e))}")
    vPa = [TM + 16, TM + 17]; vPhi = TM + 18
    E(f"v_mul_u32_u24 v{vt[0]}, 800, v{vHH}")
    E(f"v_mul_u32_u24 v{vt[1]}, 40, v{vR4}")
    E(f"v_lshl_add_u32 v{vt[1]}, v{vGam}, 3, v{vt[1]}")
    E(f"v_and_b32 v{vt[2]}, 1, v{vL}")
    E(f"v_cmp_eq_u32 vcc, v{vt[2]}, v{vHH}")
    for i, sp in enumerate((sP, sPQ)):
        E(f"s_and_b32 s{sT0}, s{sp}, 1")
        E(f"s_mul_i32 s{sT0}, s{sT0}, 1600")
        E(f"v_add3_u32 v{vt[3]}, v{vt[0]}, v{vt[1]}, s{sT0}")
        E(f"v_mov_b32 v{vPa[i]}, 3200")
        E(f"v_cndmask_b32 v{vPa[i]}, v{vPa[i]}, v{vt[3]}, vcc")
    E(f"v_lshlrev_b32 v{vPhi}, 4, v0")
    E(f"v_cmp_gt_u32 vcc, 200, v0")
    E(f"v_mov_b32 v{vPhi+1}, 0x100000")
    E(f"v_cndmask_b32 v{vPhi}, v{vPhi+1}, v{vPhi}, vcc")
    for i in range(2):
        for t in range(2):
            E(f"v_mov_b32 v{PF+24*i+16+4*t+2}, 0"); E(f"v_mov_b32 v{PF+24*i+16+4*t+3}, 0")
    E(f"v_mul_u32_u24 v{vPk}, 80, v{vL}")
    E(f"v_add_u32 v{vPk}, s{sXR}, v{vPk}")
    E(f"v_mul_u32_u24 v{vVw}, 48, v{vL}")
    E(f"v_add_u32 v{vVw}, s{sXR}, v{vVw}")
    E(f"v_lshl_add_u32 v{vt[0]}, v{vHH}, 3, v{vR4}")
    E(f"v_bfe_u32 v{vt[1]}, v{vL}, 4, 1")
    E(f"v_lshlrev_b32 v{vt[1]}, 2, v{vt[1]}")
    E(f"v_and_b32 v{vt[2]}, 1, v{vL}")
    E(f"v_lshl_add_u32 v{vt[2]}, v{vt[2]}, 1, v{vt[1]}")
    E(f"v_bfe_u32 v{vt[3]}, v{vL}, 1, 1")
    E(f"v_add_u32 v{vt[2]}, v{vt[2]}, v{vt[3]}")
    E(f"v_mul_u32_u24 v{vA}, 80, v{vt[0]}")
    E(f"v_lshl_add_u32 v{vA}, v{vt[2]}, 3, v{vA}")
    E(f"s_mul_i32 s{sT0}, s{sH}, 2560")
    E(f"s_lshl_b32 s{sT1}, s{sFT}, 6")
    E(f"s_add_u32 s{sT0}, s{sT0}, s{sT1}")
    E(f"s_add_u32 s{sT0}, s{sT0}, {XR}")
    E(f"v_add_u32 v{vA}, s{sT0}, v{vA}")
    E(f"v_and_b32 v{vt[2]}, 3, v{vL}")
    E(f"v_add_u32 v{vt[2]}, v{vt[2]}, v{vt[1]}")
    E(f"v_mul_u32_u24 v{vB}, 48, v{vt[0]}")
    E(f"v_lshl_add_u32 v{vB}, v{vt[2]}, 3, v{vB}")
    E(f"s_mul_i32 s{sT0}, s{sH}, 1536")
    E(f"s_add_u32 s{sT0}, s{sT0}, {XR+5120}")
    E(f"v_add_u32 v{vB}, s{sT0}, v{vB}")
    E(f"v_and_b32 v{vt[0]}, 31, v{vL}")
    E(f"s_lshl_b32 s{sT0}, s{sH}, 4")
    E(f"v_add_u32 v{vt[1]}, s{sT0}, v{vt[0]}")
    E(f"v_subrev_u32 v{vt[2]}, 20, v{vt[1]}")
    E(f"v_min_u32 v{vt[1]}, v{vt[1]}, v{vt[2]}")
    E(f"v_cmp_gt_u32 vcc, 20, v{vt[0]}")
    E(f"v_mov_b32 v{vt[3]}, 0x4000000")
    E(f"v_cndmask_b32 v{vt[1]}, v{vt[0]}, v{vt[1]}, vcc")
    E(f"v_lshlrev_b32 v{vt[1]}, 4, v{vt[1]}")
    E(f"v_cmp_gt_u32 vcc, 21, v{vt[0]}")
    E(f"s_cmp_eq_u32 s{sFT}, 0")
    E(f"s_mov_b32 s9, 0x4000000")
    E(f"s_cselect_b32 s{sT0}, 336, s9")
    E(f"s_cselect_b32 s{sT1}, 672, s9")
    E(f"v_cndmask_b32 v{vt[1]}, v{vt[3]}, v{vt[1]}, vcc")
    E(f"v_mul_lo_u32 v{vS1}, v{vHH}, s{sT0}")
    E(f"v_add_u32 v{vS1}, v{vS1}, v{vt[1]}")
    E(f"v_add_u32 v{vS2}, s{sT1}, v{vS1}")
    E(f"s_mul_i32 s{sT0}, s{sH}, 1680")
    E(f"s_mul_i32 s{sT1}, s{sFT}, 1344")
    E(f"s_add_u32 s{sPS}, s{sPS}, s{sT0}")
    E(f"s_add_u32 s{sPS}, s{sPS}, s{sT1}")
    E(f"v_min_u32 v{vPi}, 209, v0")
    E(f"v_lshlrev_b32 v{vPi}, 4, v{vPi}")
    E(f"v_bfe_u32 v{vt[0]}, v{vL}, 3, 2")
    E(f"v_and_b32 v{vt[1]}, 3, v{vL}")
    E(f"v_lshl_add_u32 v{vt[0]}, v{vt[0]}, 2, v{vt[1]}")
    E(f"v_mul_u32_u24 v{vt[1]}, 1680, v{vHH}")
    E(f"v_lshl_add_u32 v{vt[2]}, v{vt[0]}, 4, v{vt[1]}")
    E(f"v_add_u32 v{vt[2]}, {KVT}, v{vt[2]}")
    E(f"v_bfe_u32 v{vt[1]}, v{vL}, 2, 1")
    E(f"v_cmp_eq_u32 vcc, v{vt[1]}, v{vHH}")
    E(f"v_mov_b32 v{vKa}, {ZKV}")
    E(f"v_cndmask_b32 v{vKa}, v{vKa}, v{vt[2]}, vcc")
    E(f"v_cndmask_b32 v{vt[0]}, 64, v{vt[0]}, vcc")
    E(f"v_and_b32 v{vt[1]}, 1, v{vt[0]}")
    E(f"v_lshlrev_b32 v{vt[1]}, 4, v{vt[1]}")
    E(f"v_mov_b32 v{vt[2]}, 0x3f80")
    E(f"v_lshlrev_b32 v{vt[1]}, v{vt[1]}, v{vt[2]}")
    E(f"v_lshrrev_b32 v{vt[0]}, 1, v{vt[0]}")
    for i in range(4):
        E(f"v_cmp_eq_u32 vcc, {i}, v{vt[0]}")
        E(f"v_cndmask_b32 v{ID+i}, 0, v{vt[1]}, vcc")
    E(f"v_and_b32 v{vt[1]}, 1, v{vG}")
    E(f"v_mul_u32_u24 v{vt[1]}, 20480, v{vt[1]}")
    E(f"v_lshl_add_u32 v{vt[1]}, v{vC}, 4, v{vt[1]}")
    E(f"v_mul_u32_u24 v{vO1}, 768, v{vHH}")
    E(f"v_add_u32 v{vO1}, v{vO1}, v{vt[1]}")
    E(f"v_lshl_add_u32 v{vO3}, v{vHH}, 3, v{vt[1]}")
    E(f"s_lshl_b32 s{sT0}, s{sR}, 2")
    E(f"s_add_u32 s{sT0}, s{sT0}, s{sW}")
    E(f"s_mul_i32 s{sT0}, s{sT0}, 40960")
    E(f"s_mul_i32 s{sT1}, s{sPQ}, 1280")
    E(f"s_add_u32 s{sT0}, s{sT0}, s{sT1}")
    E(f"s_add_u32 s{sOS}, s{sT0}, {G.O_BASE}")
    E(f"v_lshlrev_b32 v{vC4}, 2, v{vC}")
    E(f"s_lshr_b32 s{sFO}, s{sTBo}, 1")
    E(f"s_lshl_b32 s{sFO}, s{sFO}, 7")
    E(f"s_add_u32 s{sFO}, s{sFO}, {G.FLAGO_BASE}")
    E(f"s_mul_i32 s{sOL}, s{sTBo}, 81920")
    E(f"s_mul_i32 s{sT0}, s{sW}, 5120")
    E(f"s_add_u32 s{sOL}, s{sOL}, s{sT0}")
    E(f"s_add_u32 s{sOL}, s{sOL}, {G.O_BASE}")
    E(f"s_lshl_b32 s{sWL}, s{sCT}, 2")
    E(f"s_add_u32 s{sWL}, s{sWL}, s{sW}")
    E(f"s_mul_i32 s{sWL}, s{sWL}, 25600")
    E(f"s_add_u32 s{sWL}, s{sWL}, {G.PWO_BASE}")
    E(f"v_mul_u32_u24 v{vRw}, 160, v{vC}")
    E(f"v_mul_u32_u24 v{vt[1]}, 40, v{vG}")
    E(f"s_mul_i32 s93, s{sW}, 2560")
    E(f"s_add_u32 s{sT0}, s93, 30720")
    E(f"v_add3_u32 v{vRw}, v{vRw}, v{vt[1]}, s{sT0}")
    for m in range(3):
        E(f"v_add_u32 v{vt[0]}, {64*m}, v{vL}")
        E(div_const(vt[1], vt[0], 10))
        E(f"v_mul_u32_u24 v{vt[1]}, 2400, v{vt[1]}")
        E(f"v_lshl_add_u32 v{vSo[m]}, v{vt[0]}, 4, v{vt[1]}")
    E(f"s_lshl_b32 s{sOUT}, s{sTBo}, 2")
    E(f"s_add_u32 s{sOUT}, s{sOUT}, s{sW}")
    E(f"s_mul_i32 s{sOUT}, s{sOUT}, {16*2560}")
    E(f"s_mul_i32 s{sT1}, s{sCT}, 160")
    E(f"s_add_u32 s{sOUT}, s{sOUT}, s{sT1}")
    E(f"s_lshl_b32 s{sF1}, s{sP}, 7")
    E(f"s_lshl_b32 s{sT1}, s{sR}, 2")
    E(f"s_add_u32 s{sF1}, s{sF1}, s{sT1}")
    E(f"s_add_u32 s{sF1}, s{sF1}, {G.FLAGW_BASE}")
    E(f"s_lshl_b32 s{sFP}, s{sPQ}, 7")
    E(f"s_add_u32 s{sFP}, s{sFP}, {G.FLAGW_BASE}")
    E(f"s_lshl_b32 s{sF2}, s{sR}, 7")
    E(f"s_lshl_b32 s{sT1}, s{sPQ}, 2")
    E(f"s_add_u32 s{sF2}, s{sF2}, s{sT1}")
    E(f"s_add_u32 s{sF2}, s{sF2}, {G.FLAGO_BASE}")
    vCo = TM + 15
    E(f"s_mul_i32 s{sT0}, s{sW}, 20")
    E(f"v_min_u32 v{vt[0]}, 19, v{vL}")
    E(f"v_add_u32 v{vt[0]}, s{sT0}, v{vt[0]}")
    E(f"v_lshrrev_b32 v{vt[1]}, 3, v{vt[0]}")
    E(f"v_and_b32 v{vt[0]}, 7, v{vt[0]}")
    E(f"v_lshlrev_b32 v{vt[0]}, 2, v{vt[0]}")
    E(f"v_lshl_add_u32 v{vCo}, v{vt[1]}, 7, v{vt[0]}")
    E(f"s_mov_b32 s{sFC}, {G.FLAGC_BASE}")

    def rdW(sig, ks):
        b = WF + 16 * (ks % 2)
        return [f"ds_read_b64_tr_b16 {v(b+4*T+2*a,2)}, v{vWt[T]} offset:{wslot(sig) + 4096*ks + 240*a}" for T in range(4) for a in range(2)]
    def rdX(sig):
        return [f"ds_read_b128 {v(XF+16*(sig%2)+4*j,4)}, v{vXrs[j]} offset:{4096*(sig%2)}" for j in range(4)]
    def mm(sig, ks):
        L = []
        for T in range(4):
            d = v(ACC + 16 * T, 16)
            L.append(f"{M32} {d}, {v(WF+16*(ks%2)+4*T,4)}, {v(XF+16*(sig%2)+4*ks,4)}, {d if (sig or ks) else 0}")
        return L
    def weave(M, rd, vm):
        out = []
        n = (len(rd) + 2) // 3
        for i, x in enumerate(M):
            out.append(x)
            if i < 3: out += rd[n * i:n * (i + 1)]
            if i == 1 and len(vm) > 0: out.append(vm[0])
            if i == 3 and len(vm) > 1: out += vm[1:]
        return out
    dphi = [("group", [f"s_lshr_b32 s{sT0}, s{sP}, 1", f"s_mul_i32 s{sT0}, s{sT0}, 3200", f"s_lshl_b32 s{sT1}, s{sW}, 10", f"s_add_u32 m0, s{sT1}, {TAB}",
                       ("tag", f"buffer_load_dwordx4 v{vPhi}, s[{rPHI}:{rPHI+3}], s{sT0} offen lds", "S9")]),
            ("group", [f"s_add_u32 m0, s{sT1}, {TAB+4096}",
                       ("tag", f"buffer_load_dwordx4 v{vPhi+1}, s[{rPHI}:{rPHI+3}], 0 offen lds", "S9")])]
    rphi = []
    for i in range(2):
        for c in range(3):
            for t in range(2):
                b = PF + 24 * i + 8 * c + 4 * t
                rphi.append(f"ds_read_b64_tr_b16 {v(b,2)}, v{vPa[i]} offset:{TAB + 320*c + 32*t}")
                if c < 2: rphi.append(f"ds_read_b64_tr_b16 {v(b+2,2)}, v{vPa[i]} offset:{TAB + 320*c + 160 + 32*t}")
    nld = f"buffer_load_dword v{vNon}, off, s[{rDBG}:{rDBG+3}], 0 sc1"
    fld = f"buffer_load_dword v{vFl}, v{vC4}, s[{rWS}:{rWS+3}], s{sFP} offen sc1"
    cld = f"buffer_load_dword v{vFc}, v{vWo[0]}, s[{rWS}:{rWS+3}], s{sFC} offen sc1"
    opois = [f"buffer_store_dwordx4 {v(PN,4)}, v{vO1}, s[{rWS}:{rWS+3}], s{sOS} offen sc1",
             f"buffer_store_dwordx4 {v(PN,4)}, v{vO1}, s[{rWS}:{rWS+3}], s{sOS} offen offset:256 sc1",
             f"buffer_store_dwordx2 {v(PN,2)}, v{vO3}, s[{rWS}:{rWS+3}], s{sOS} offen offset:512 sc1"]
    E.wait_vm("S0")
    E("s_barrier")
    ST(E, "first")
    E(rdX(0)); E(rdW(0, 0))
    w2 = dmaW(2)
    E(w2[:2])
    pendW = w2[2:]
    for sig in range(10):
        xn = dmaX(sig + 2) if sig + 2 < 10 else []
        if sig == 8: pendW = dphi; xn = opois
        extra = [[], [], []]
        if sig == 9:
            extra = [rphi[:7], rphi[7:14], rphi[14:]]
            pendW = [("tag", fld, "flags"), ("group", [f"v_mov_b32 v{vWo[0]}, v{vCo}", ("tag", cld, "cfl")])]
        if sig == 3: pendW = pendW + [("tag", nld, "nonce")]
        E(weave(mm(sig, 0), rdW(sig, 1) + extra[0], pendW))
        E(weave(mm(sig, 1), rdW(sig, 2) + extra[1], xn[:2]))
        E(weave(mm(sig, 2), rdW(sig, 3) + extra[2], xn[2:]))
        if sig < 9:
            E.wait_vm(f"S{sig+1}")
            E.wait_lg()
            if sig == 4: G.nonce_get(E, nld, vNon)
            E("s_barrier")
            if sig == 4: put_flag(E, G, sW, vNon, sF1)
            wn = dmaW(sig + 3) if sig + 3 < 10 else []
            E(weave(mm(sig, 3), rdX(sig + 1)[:1] + rdW(sig + 1, 0) + rdX(sig + 1)[1:], wn[:2]))
            pendW = wn[2:]
        else:
            E(mm(sig, 3))
    ST(E, "gemm")
    if "--gemmonly" in sys.argv:
        ST.dump(E, sW, ACC)
        E("s_endpgm")
        return ST

    def acc(sec, j):
        for T in range(4):
            for g_, e in enumerate(TA[T]):
                if e == (sec, j): return ACC + 16 * T + 4 * g_
    QB = XF
    PD = WF
    EE = TM
    def pack(sec, dst):
        return [f"v_cvt_pk_bf16_f32 v{dst+2*j+e}, v{acc(sec,j)+2*e}, v{acc(sec,j)+2*e+1}" for j in range(5) for e in range(2)]
    def premm(qb, i):
        L = []
        for c in range(3):
            for t in range(2):
                d = v(PD + 16 * t, 16)
                L.append(f"{M32} {d}, {v(PF+24*i+8*c+4*t,4)}, {v(qb+4*c,4)}, {d if c else 0}")
        return L
    def softmax(out_plus, out_minus, after_plus):
        PP = PD
        mx, mn, m = MP, vMn, MP
        L = [f"v_max3_f32 v{mx}, v{PP}, v{PP+1}, v{PP+2}", f"v_min3_f32 v{mn}, v{PP}, v{PP+1}, v{PP+2}"]
        for i in range(3, 19, 2):
            L += [f"v_max3_f32 v{mx}, v{mx}, v{PP+i}, v{PP+i+1}", f"v_min3_f32 v{mn}, v{mn}, v{PP+i}, v{PP+i+1}"]
        L += [f"v_max_f32 v{mx}, v{mx}, v{PP+19}", f"v_min_f32 v{mn}, v{mn}, v{PP+19}"]
        for sgn, dst, src, outp in ((1, EE, mx, out_plus), (-1, PP, mn, out_minus)):
            L.append(f"v_mul_f32 v{m}, s94, v{src}")
            for i in range(20):
                L.append(f"v_fma_f32 v{dst+i}, v{PP+i}, s94, -v{m}" if sgn > 0 else f"v_fma_f32 v{dst+i}, -v{PP+i}, s94, v{m}")
            for i in range(20):
                L.append(f"v_exp_f32 v{dst+i}, v{dst+i}")
                if i == 2: L.append(f"v_add_f32 v{m}, v{dst}, v{dst+1}")
                if i > 2: L.append(f"v_add_f32 v{m}, v{m}, v{dst+i-1}")
            L += [f"v_add_f32 v{m}, v{m}, v{dst+19}", f"v_rcp_f32 v{m}, v{m}"]
            for i in range(10):
                L.append(f"v_mul_f32 v{dst+2*i}, v{m}, v{dst+2*i}")
                L.append(f"v_mul_f32 v{dst+2*i+1}, v{m}, v{dst+2*i+1}")
                L.append(f"v_cvt_pk_bf16_f32 v{outp+i}, v{dst+2*i}, v{dst+2*i+1}")
            if sgn > 0: L += after_plus
        return L
    E(f"v_mov_b32 v{QB+10}, 0"); E(f"v_mov_b32 v{QB+11}, 0")
    E(pack(1, QB))
    VP = XF + 12
    QB2 = TM + 20
    side = pack(2, VP) + [f"v_mov_b32 v{VP+10}, 0x3f80", f"v_mov_b32 v{VP+11}, 0"] + \
           [f"ds_write_b128 v{vVw}, {v(VP+4*i,4)} offset:{5120+16*i}" for i in range(3)] + \
           pack(0, QB2) + [f"v_mov_b32 v{QB2+10}, 0", f"v_mov_b32 v{QB2+11}, 0"]
    E(merge(premm(QB, 0), side[:15])); E(side[15:])
    PHK = XF + 12
    E(softmax(PHK, PHK + 10, [f"ds_write_b128 v{vPk}, {v(PHK,4)}", f"ds_write_b128 v{vPk}, {v(PHK+4,4)} offset:16"]))
    for i in range(2, 5): E(f"ds_write_b128 v{vPk}, {v(PHK+4*i,4)} offset:{16*i}")
    ST(E, "phik")
    E(premm(QB2, 1))
    E.wait_vm()
    E.wait_lg()
    E("s_barrier")
    KA = ACC; KB = ACC + 32
    KD = XF
    def rdk(i):
        j, k2 = divmod(i, 2)
        L = []
        for a in range(2):
            L.append(f"ds_read_b64_tr_b16 {v(KA+4*i+2*a,2)}, v{vA} offset:{8192*j + 80*(16*k2+4*a)}")
        for a in range(2):
            L.append(f"ds_read_b64_tr_b16 {v(KB+4*i+2*a,2)}, v{vB} offset:{8192*j + 48*(16*k2+4*a)}")
        return L
    E(rdk(0) + rdk(1) + rdk(2))
    for i in range(8):
        if i + 3 < 8: E(rdk(i + 3))
        d = v(KD, 16)
        E(f"{M32} {d}, {v(KA+4*i,4)}, {v(KB+4*i,4)}, {d if i else 0}")
    PH = PF
    smq = softmax(PH, PH + 10, [])
    E(smq[:10])
    KP = XF + 16
    for i in range(8):
        E(f"v_cvt_pk_bf16_f32 v{KP+i}, v{KD+2*i}, v{KD+2*i+1}")
        E(f"v_min_u32 v{KP+i}, -2, v{KP+i}")
        if i == 3: E(f"buffer_store_dwordx4 {v(KP,4)}, v{vS1}, s[{rWS}:{rWS+3}], s{sPS} offen sc1")
    E(f"buffer_store_dwordx4 {v(KP+4,4)}, v{vS2}, s[{rWS}:{rWS+3}], s{sPS} offen sc1")
    ST(E, "T0")
    put_flag(E, G, sW, vNon, sF2)
    spin(E, [cld], [f"v_cmp_ne_u32 vcc, s{sN}, v{vFc}"], "cfl")
    free1 = [PF + 20 + 4 * i for i in range(7)] + [TM + 20 + 4 * i for i in range(4)] + [XF + 4 * i for i in (0, 1, 2, 3, 6, 7, 4, 5)] + [vWo[0]]
    free2 = [TM + 4 * i for i in range(5)]
    WOr = free1 + free2
    assert len(WOr) == 25 and vWo[0] % 4 == 0
    def wo_ld(i):
        g = []
        if i % 4 == 0 or i == len(free1): g.append(f"s_add_u32 s8, s{sWL}, {4096*(i//4)}")
        g.append(f"buffer_load_dwordx4 {v(WOr[i],4)}, v{vL16}, s[{rWS}:{rWS+3}], s8 offen offset:{1024*(i%4)} sc1")
        return ("group", g)
    cutq = 10 + (len(smq) - 10) * 2 // 3
    E(merge(smq[10:cutq], [wo_ld(i) for i in range(len(free1))]))
    spin(E, [fld], [f"v_cmp_ne_u32 vcc, s{sN}, v{vFl}"], "flags")
    PL = ACC
    pld = []
    for r in range(16):
        pld.append(f"s_add_u32 s9, s{sPL}, {G.P_PITCH*r}")
        pld.append(f"buffer_load_dwordx4 {v(PL+4*r,4)}, v{vPi}, s[{rWS}:{rWS+3}], s9 offen sc1")
    E(merge(smq[cutq:], [("group", [pld[2*r], ("tag", pld[2*r+1], "part")]) for r in range(16)]))
    for i in range(len(free1), 25): E([wo_ld(i)])
    ST(E, "phiq")
    RD_ = WF
    vCk = MP
    def reduce_items():
        L = []
        for r in range(16):
            d = v(RD_, 16)
            L.append(f"{M32} {d}, {v(ID,4)}, {v(PL+4*r,4)}, {d if r else 0}")
            L.append(f"v_max3_u32 v{vCk}, v{PL+4*r}, v{PL+4*r+1}, {'v%d' % vCk if r else 0}")
            L.append(f"v_max3_u32 v{vCk}, v{PL+4*r+2}, v{PL+4*r+3}, v{vCk}")
        L.append(f"v_cmp_eq_u32 vcc, -1, v{vCk}")
        return L
    ok = newlabel("pok"); sp = newlabel("psp")
    E(reduce_items())
    E(f"s_cbranch_vccz {ok}")
    E.raw("    s_mov_b32 s13, 0")
    E.label(sp)
    for t in ["s_nop 15"] + pld + ["s_add_u32 s13, s13, 1", f"s_cmp_gt_u32 s13, {G.SPIN_MAX}", f"s_cbranch_scc1 {ok}", "s_waitcnt vmcnt(0)"] + reduce_items() + [f"s_cbranch_vccnz {sp}"]:
        E.raw("    " + t)
    E.label(ok)
    ST(E, "part")
    SM = WF + 16
    for e in range(4): E(f"v_cvt_pk_bf16_f32 v{SM+e}, v{RD_+2*e}, v{RD_+2*e+1}")
    E(f"ds_write_b128 v{vPi}, {v(SM,4)} offset:{KVT}")
    E.wait_lg()
    E("s_barrier")
    OD = WF
    AF = ACC
    fo = [(c, t) for c in range(5) for t in (1, 0)]
    for i, (c, t) in enumerate(fo): E(f"ds_read_b128 {v(AF+4*i,4)}, v{vKa} offset:{336*c + 256*t}")
    fld2 = f"buffer_load_dword v{vMn}, v{vC4}, s[{rWS}:{rWS+3}], s{sFO} offen sc1"
    E(fld2, tag="flags2")
    for i, (c, t) in enumerate(fo):
        d = v(OD + 16 * t, 16)
        E(f"{M32} {d}, {v(AF+4*i,4)}, {v(PH+4*c,4)}, {d if c else 0}")
    E(f"v_add_f32 v{MP}, {f32(1e-6)}, v{OD+20}")
    E(f"v_rcp_f32 v{MP}, v{MP}")
    OP = ACC + 40
    for i in (8, 9, 0, 1, 2, 3, 4, 5, 6, 7):
        E(f"v_mul_f32 v{OD+2*i}, v{MP}, v{OD+2*i}"); E(f"v_mul_f32 v{OD+2*i+1}, v{MP}, v{OD+2*i+1}")
        E(f"v_cvt_pk_bf16_f32 v{OP+i}, v{OD+2*i}, v{OD+2*i+1}")
        E(f"v_min_u32 v{OP+i}, -2, v{OP+i}")
        if i == 9: E(f"buffer_store_dwordx2 {v(OP+8,2)}, v{vO3}, s[{rWS}:{rWS+3}], s{sOS} offen offset:512 sc1")
        if i == 3: E(f"buffer_store_dwordx4 {v(OP,4)}, v{vO1}, s[{rWS}:{rWS+3}], s{sOS} offen sc1")
    E(f"buffer_store_dwordx4 {v(OP+4,4)}, v{vO1}, s[{rWS}:{rWS+3}], s{sOS} offen offset:256 sc1")
    ST(E, "opub")
    OF = ACC
    OA = [[WF + 16 + 4 * T for T in range(4)] + [ID], [PF + 4 * T for T in range(5)]]
    spin(E, [fld2], [f"v_cmp_ne_u32 vcc, s{sN}, v{vMn}"], "flags2")
    sTile = [72, 73, 74, 75]
    for i in range(4):
        E(f"s_add_u32 s9, s{sW}, {i+1}")
        E(f"s_and_b32 s9, s9, 3")
        E(f"s_mul_i32 s{sTile[i]}, s9, 20480")
        E(f"s_add_u32 s{sTile[i]}, s{sTile[i]}, s{sOL}")
        E(f"s_cmp_ge_u32 s9, 2")
        E(f"s_cselect_b32 s8, 18432, 0")
        E(f"s_mul_i32 s9, s9, 15360")
        E(f"s_add_u32 s9, s9, s8")
        E(f"v_add_u32 v{vXrs[i]}, s9, v{vL16}")
    E(f"v_add_u32 v{vPk}, 4096, v{vL16}")
    def o_ld(i):
        return [f"buffer_load_dwordx4 {v(OF+20*i+4*k,4)}, v{vL16 if k < 4 else vPk}, s[{rWS}:{rWS+3}], s{sTile[i]} offen offset:{1024*(k%4)} sc1" for k in range(5)]
    for i in range(4):
        for t in o_ld(i): E(t, tag=f"of{i}")
    ST(E, "oreq")
    pend = []
    for i in range(4):
        b = OF + 20 * i
        chk = [f"v_max_u32 v{MP}, v{b}, v{b+1}"] + [f"v_max3_u32 v{MP}, v{MP}, v{b+e}, v{b+e+1}" for e in range(2, 20, 2)] + [f"v_cmp_eq_u32 vcc, -1, v{MP}"]
        spin(E, sum([o_ld(k) for k in range(i, 4)], []), chk, f"of{i}")
        if i == 0: ST(E, "ofr")
        M = []
        for k in range(5):
            for T in range(5):
                d = v(OA[i % 2][T], 4)
                M.append(f"{M16} {d}, {v(WOr[5*k+T],4)}, {v(b+4*k,4)}, {d if k else 0}")
        E(M[:6]); E(merge(M[6:], pend))
        pend = [f"ds_write_b128 v{vXrs[i]}, {v(OA[i%2][T],4)} offset:{5120*i + 1024*T}" for T in range(5)] if i < 3 else []
    ST(E, "ogemm")
    E.wait_lg()
    E("s_barrier")
    RR = ACC
    for j in range(3):
        for T in range(5): E(f"ds_read_b128 {v(RR+20*j+4*T,4)}, v{vXrs[3]} offset:{5120*j + 1024*T}")
    RP = XF
    for j in range(3):
        for T in range(5):
            for e in range(4): E(f"v_add_f32 v{OA[1][T]+e}, v{OA[1][T]+e}, v{RR+20*j+4*T+e}")
            if j == 2:
                E(f"v_cvt_pk_bf16_f32 v{RP+2*T}, v{OA[1][T]}, v{OA[1][T]+1}")
                E(f"v_cvt_pk_bf16_f32 v{RP+2*T+1}, v{OA[1][T]+2}, v{OA[1][T]+3}")
                E(f"ds_write_b64 v{vRw}, {v(RP+2*T,2)} offset:{8*T}")
    E(f"v_add_u32 v{vPk}, s93, v{vL16}")
    for m in range(3): E(f"ds_read_b128 {v(RP+12+4*m,4)}, v{vPk} offset:{30720 + 1024*m}")
    for m in range(3):
        if m == 2: E("s_mov_b32 exec_hi, 0")
        E(f"buffer_store_dwordx4 {v(RP+12+4*m,4)}, v{vSo[m]}, s[{rOUT}:{rOUT+3}], s{sOUT} offen")
    E("s_mov_b64 exec, -1")
    if G.PROFILE:
        E.wait_vm()
        ST(E, "end")
    ST.dump(E, sW, RP + 40)
    E("s_endpgm")
    return ST
```

```python
import sys, struct, math
from asmlib import *

NAME = "concat_heads__linear_kernel_hedgehog__ssm_conv_s4__prompt"
NB, NA, NC = 160, 256, 80
UT_BASE = 0
YT_BASE = 2621440
O_BASE = 2 * 2621440
PW_BASE = 3 * 2621440
PWO_BASE = 4 * 2621440
P_BASE = PWO_BASE + 819200
P_PITCH = 4096
WS_SIZE = 16 << 20
STAMP_BASE = 13 << 20
SPIN_MAX = 200000
FLAG_BASE = P_BASE + 256 * P_PITCH
FLAGY_BASE = FLAG_BASE + 4096
FLAGW_BASE = FLAG_BASE + 8192
FLAGC_BASE = FLAG_BASE + 16384
FLAGO_BASE = FLAG_BASE + 12288
sN = 83

def f32(x): return "0x%08x" % struct.unpack("<I", struct.pack("<f", x))[0]
def f32val(x): return struct.unpack("<f", struct.pack("<f", x))[0]

class Alloc:
    def __init__(self, start, end): self.n = start; self.end = end
    def __call__(self, c=1, al=None):
        al = al or (2 if c >= 2 else 1)
        self.n = (self.n + al - 1) // al * al
        r = self.n; self.n += c
        assert self.n <= self.end, f"out of registers {self.n}"
        return r

pX, pW, pPHI, pWO, pU, pARE, pAIM, pBRE, pBIM, pCRE, pCIM, pLDT, pDSK, pOUT, pDBG, pWS = [16 + 2 * i for i in range(16)]
rWS, rOUT, rDBG, rIN, rW, rWO, rPHI = 48, 52, 56, 60, 64, 68, 72

def srd(E, r, p, size):
    E(f"s_mov_b32 s{r}, s{p}")
    E(f"s_and_b32 s{r+1}, s{p+1}, 0xffff")
    E(f"s_mov_b32 s{r+2}, {size}")
    E(f"s_mov_b32 s{r+3}, 0x00020000")

PROFILE = False
BPRIO = int(([a[8:] for a in sys.argv if a.startswith('--bprio=')] + ['0'])[0])
APRIO = int(([a[8:] for a in sys.argv if a.startswith('--aprio=')] + ['2'])[0])
class Stamps:
    def __init__(self, first): self.first = first; self.n = 0; self.names = []
    def __call__(self, E, name):
        if not PROFILE: return
        r = self.first + self.n
        E("s_memtime s[14:15]" if "--cyc" in sys.argv else "s_memrealtime s[14:15]")
        E.wait_lg()
        E(f"s_mov_b32 s{r}, s14")
        self.n += 1; self.names.append(name)
    def dump(self, E, sW, vt):
        if not PROFILE: return
        E(f"v_mov_b32 v{vt}, 0")
        for i in range(self.n):
            E(f"v_writelane_b32 v{vt}, s{self.first+i}, {i}")
        E(f"s_lshl_b32 s3, s2, 2")
        E(f"s_add_u32 s3, s3, s{sW}")
        E(f"s_lshl_b32 s3, s3, 6")
        E(f"s_add_u32 s3, s3, {STAMP_BASE}")
        E(f"v_and_b32 v{vt+1}, 63, v0")
        E(f"v_lshlrev_b32 v{vt+1}, 2, v{vt+1}")
        E("s_mov_b64 exec, 0xffff")
        E(f"buffer_store_dword v{vt}, v{vt+1}, s[{rWS}:{rWS+3}], s3 offen")
        if "--dbg" in sys.argv:
            E(f"v_subrev_u32 v{vt}, s{sN}, v{vt}")
            E(f"v_add_u32 v{vt}, 1000, v{vt}")
            if self.first == 84:
                E(f"s_mov_b64 exec, {1 << (self.n - 1)}")
                E(f"buffer_atomic_umax v{vt}, off, s[{rDBG}:{rDBG+3}], 0 offset:4")
            else:
                E(f"s_mov_b64 exec, {(1 << self.n) - 1}")
                E(f"buffer_atomic_umax v{vt}, v{vt+1}, s[{rDBG}:{rDBG+3}], 0 offen offset:8")
        E("s_mov_b64 exec, -1")

_lbl = [0]
def newlabel(p):
    _lbl[0] += 1
    return f"L_{p}_{_lbl[0]}"

def poll_check(E, load_text, vdst, expect_sgpr_or_const, first_tag):
    ok = newlabel("ok"); sp = newlabel("spin")
    E.wait_vm(first_tag)
    E(f"v_cmp_ne_u32 vcc, {expect_sgpr_or_const}, v{vdst}")
    E(f"s_cbranch_vccz {ok}")
    E(f"s_mov_b32 s13, 0")
    E.label(sp)
    E.raw("    " + load_text)
    E.raw("    s_add_u32 s13, s13, 1")
    E.raw(f"    s_cmp_gt_u32 s13, {SPIN_MAX}")
    E.raw(f"    s_cbranch_scc1 {ok}")
    E.raw("    s_waitcnt vmcnt(0)")
    E.raw(f"    v_cmp_ne_u32 vcc, {expect_sgpr_or_const}, v{vdst}")
    E.raw(f"    s_cbranch_vccnz {sp}")
    E.label(ok)

def spin(E, load_texts, check_texts, first_tag):
    ok = newlabel("ok"); sp = newlabel("spin")
    E.wait_vm(first_tag)
    E(check_texts)
    E(f"s_cbranch_vccz {ok}")
    E(f"s_mov_b32 s13, 0")
    E.label(sp)
    for t in load_texts: E.raw("    " + t)
    E.raw("    s_add_u32 s13, s13, 1")
    E.raw(f"    s_cmp_gt_u32 s13, {SPIN_MAX}")
    E.raw(f"    s_cbranch_scc1 {ok}")
    E.raw("    s_waitcnt vmcnt(0)")
    for t in check_texts: E.raw("    " + t)
    E.raw(f"    s_cbranch_vccnz {sp}")
    E.label(ok)

def nonce_load(E, vd):
    ld = f"buffer_load_dword v{vd}, off, s[{rDBG}:{rDBG+3}], 0 sc1"
    E(ld, tag="nonce")
    return ld
def nonce_get(E, ld, vd):
    spin(E, [ld], [f"v_cmp_eq_u32 vcc, 0, v{vd}"], "nonce")
    E(f"v_readfirstlane_b32 s{sN}, v{vd}")

def touch(E, items):
    if "--touch" not in sys.argv: return
    for p, off in items:
        if off < (1 << 20): E(f"s_load_dword s93, s[{p}:{p+1}], {off}")
        else:
            E(f"s_mov_b32 s12, {off}")
            E(f"s_load_dword s93, s[{p}:{p+1}], s12")

def cmul(dst, a, b):
    assert dst != a
    return [f"v_mul_f32 v{dst}, v{a}, v{b}", f"v_mul_f32 v{dst+1}, v{a+1}, v{b}",
            f"v_fmac_f32 v{dst}, v{a+1}, v{b+2}", f"v_fmac_f32 v{dst+1}, v{a}, v{b+1}"]

def zipl(*ls):
    out = []
    for i in range(max(len(l) for l in ls)):
        for l in ls:
            if i < len(l): out.append(l[i])
    return out

def gen_B(E):
    E.reset()
    ST = Stamps(84)
    sW, sCG, sD, sTB, sCB, sSC, sKT, sT0, sT1, sT2 = 76, 77, 78, 79, 80, 81, 82, 4, 5, 6
    U_IMG = 2048; KT_BASE = 18432; KT_SZ = 2560; SC_BASE = 28672; SC_SZ = 11 * 1040
    Y_PITCH = 4096 + 64
    A = Alloc(1, 256)
    vL = A(); vG = A(); vC = A()
    vt = [A() for _ in range(8)]
    big = A(160, 4)
    E("s_setprio 3")
    E(f"v_and_b32 v{vL}, 63, v0")
    E(f"v_lshrrev_b32 v{vt[0]}, 6, v0")
    E(f"v_lshrrev_b32 v{vG}, 4, v{vL}")
    E(f"v_readfirstlane_b32 s{sW}, v{vt[0]}")
    E(f"v_and_b32 v{vC}, 15, v{vL}")
    E(f"s_and_b32 s{sT0}, s2, 7")
    E(f"s_lshr_b32 s{sT1}, s2, 3")
    E(f"s_mul_i32 s{sCG}, s{sT0}, 20")
    E(f"s_add_u32 s{sCG}, s{sCG}, s{sT1}")
    E(f"s_lshl_b32 s{sD}, s{sCG}, 2")
    E(f"s_add_u32 s{sD}, s{sD}, s{sW}")
    E(f"s_mul_hi_u32 s{sTB}, s2, 0x33333334")
    E(f"s_mul_i32 s{sT0}, s{sTB}, 5")
    E(f"s_sub_u32 s{sCB}, s2, s{sT0}")
    E(f"s_mul_i32 s{sSC}, s{sW}, {SC_SZ}")
    E(f"s_add_u32 s{sSC}, s{sSC}, {SC_BASE}")
    E(f"s_mul_i32 s{sKT}, s{sW}, {KT_SZ}")
    E(f"s_add_u32 s{sKT}, s{sKT}, {KT_BASE}")
    vPo = A(); vSo = A(); vL16 = A()
    E(f"s_lshl_b32 s{sT0}, s{sD}, 8")
    E(f"v_lshlrev_b32 v{vPo}, 2, v{vL}")
    E(f"v_add_u32 v{vPo}, s{sT0}, v{vPo}")
    E(f"s_lshl_b32 s{sT0}, s{sD}, 1")
    E(f"v_mov_b32 v{vt[1]}, s{sT0}")
    E(f"v_mul_u32_u24 v{vSo}, 1280, v{vG}")
    E(f"v_lshl_add_u32 v{vSo}, v{vC}, 4, v{vSo}")
    E(f"v_lshlrev_b32 v{vL16}, 4, v{vL}")
    E.wait_lg()
    ST(E, "start")
    touch(E, [(pU, 0), (pU, 2 << 20)] + [(p, 0) for p in (pARE, pAIM, pBRE, pBIM, pCRE, pCIM, pLDT, pDSK, pDBG)] + [(pWS, i << 21) for i in (0, 1, 4)])
    srd(E, rDBG, pDBG, 256)
    vZero = A()
    E(f"v_mov_b32 v{vZero}, 0")
    skip = newlabel("nonce")
    E(f"s_or_b32 s{sT0}, s2, s{sW}")
    E(f"s_cbranch_scc1 {skip}")
    E.raw("    s_or_b32 s10, s10, 1")
    E.raw(f"    v_mov_b32 v{vt[0]}, s10")
    E.raw("    s_mov_b64 exec, 1")
    E.raw(f"    buffer_store_dword v{vt[0]}, v{vZero}, s[{rDBG}:{rDBG+3}], 0 offen sc1")
    E.raw("    s_mov_b64 exec, -1")
    E.label(skip)
    if "--noB0" in sys.argv:
        srd(E, rWS, pWS, WS_SIZE)
        ST.dump(E, sW, big)
        E("s_endpgm")
        return ST
    srd(E, rIN, pU, 2621440)
    E(f"s_lshl_b32 s{sT0}, s{sTB}, 6")
    E(f"s_lshl_b32 s{sT1}, s{sW}, 4")
    E(f"s_add_u32 s{sT0}, s{sT0}, s{sT1}")
    E(f"s_mul_i32 s{sT0}, s{sT0}, 1280")
    E(f"s_lshl_b32 s{sT1}, s{sCB}, 8")
    E(f"s_add_u32 s{sT0}, s{sT0}, s{sT1}")
    for i in range(4):
        E(f"s_add_u32 m0, s{sSC}, {1024*i}")
        E(f"s_add_u32 s{sT1}, s{sT0}, {4*1280*i}")
        E(f"buffer_load_dwordx4 v{vSo}, s[{rIN}:{rIN+3}], s{sT1} offen lds", tag="slab")
    P = [A() for _ in range(8)]
    for k, p in enumerate((pARE, pAIM, pBRE, pBIM, pCRE, pCIM)):
        E(f"global_load_dword v{P[k]}, v{vPo}, s[{p}:{p+1}]")
    E(f"global_load_ushort v{P[6]}, v{vt[1]}, s[{pLDT}:{pLDT+1}]")
    E(f"global_load_ushort v{P[7]}, v{vt[1]}, s[{pDSK}:{pDSK+1}]")
    srd(E, rWS, pWS, WS_SIZE)
    srd(E, rOUT, pOUT, 5242880)
    E(f"s_setprio {BPRIO}")
    vZ = big + 124
    E(f"v_mov_b32 v{vZ}, 0"); E(f"v_mov_b32 v{vZ+1}, 0")
    E(f"v_lshlrev_b32 v{vt[0]}, 3, v0")
    E(f"ds_write_b64 v{vt[0]}, {v(vZ,2)}")
    E(f"v_and_b32 v{vt[0]}, 7, v{vL}")
    E(f"v_lshl_add_u32 v{vt[0]}, v{vt[0]}, 2, s{sKT}")
    E(f"ds_write_b32 v{vt[0]}, v{vZ}")
    vLm = A()
    E(f"v_lshlrev_b32 v{vt[0]}, 3, v{vG}")
    E(f"v_sub_u32 v{vLm}, v{vC}, v{vt[0]}")
    E(f"v_add_u32 v{vLm}, 33, v{vLm}")
    vLf = A()
    E(f"v_cvt_f32_u32 v{vLf}, v{vLm}")
    E(f"s_mov_b32 s7, 0x0202")
    E(f"s_mov_b32 s8, 0x10001")
    vK1 = A()
    E(f"v_mov_b32 v{vK1}, 0x01000100")
    sel = {}; adr = {}
    for name, srep, js in (("d", 5, [3]), ("1", 9, [3, 2]), ("2", 17, [3, 2, 1, 0]), ("3", 33, [3, 2, 1, 0])):
        base = 32 * srep - 24
        vb = vt[2]
        for j in js:
            r = A(); sel[(name, j)] = r
            E(f"v_add_f32 v{vt[0]}, {f32(base + 7 - 2*j)}, v{vLf}")
            E(f"v_add_f32 v{vt[1]}, {f32(base + 6 - 2*j)}, v{vLf}")
            E(f"v_cvt_pk_bf16_f32 v{r}, v{vt[0]}, v{vt[1]}")
            if j == 3:
                E(f"v_lshrrev_b32 v{vt[3]}, 17, v{r}")
                E(f"v_lshlrev_b32 v{vt[3]}, 1, v{vt[3]}")
                E(f"v_mul_u32_u24 v{vb}, s8, v{vt[3]}")
                a = A(); adr[name] = a
                if name == "d":
                    E(f"v_and_b32 v{a}, -2, v{vLm}")
                    E(f"v_lshl_add_u32 v{a}, v{a}, 1, s{sKT}")
                    E(f"v_subrev_u32 v{a}, 16, v{a}")
                else:
                    E(f"v_lshl_add_u32 v{a}, v{vt[3]}, 1, s{sKT}")
                    E(f"v_subrev_u32 v{a}, {2*(0x4300-272)}, v{a}")
            E(f"v_sub_u32 v{r}, v{r}, v{vb}")
            E(f"v_mad_u32_u24 v{r}, v{r}, s7, v{vK1}")
    vMa = A(); vMb = A(); vMw = A()
    E(f"v_lshlrev_b32 v{vt[0]}, 1, v{vL}")
    E(f"v_add_u32 v{vt[1]}, 256, v{vt[0]}")
    E(f"v_add_u32 v{vt[2]}, {496-32}, v{vt[0]}")
    E(f"v_cmp_lt_u32 vcc, 15, v{vL}")
    E(f"v_cndmask_b32 v{vt[1]}, v{vt[1]}, v{vt[2]}, vcc")
    E(f"v_add_u32 v{vt[2]}, {1008-80}, v{vt[0]}")
    E(f"v_cmp_lt_u32 vcc, 39, v{vL}")
    E(f"v_cndmask_b32 v{vt[1]}, v{vt[1]}, v{vt[2]}, vcc")
    E(f"v_cvt_f32_u32 v{vt[1]}, v{vt[1]}")
    E(f"v_add_f32 v{vt[2]}, 1.0, v{vt[1]}")
    E(f"v_cvt_pk_bf16_f32 v{vt[1]}, v{vt[1]}, v{vt[2]}")
    E(f"s_sub_u32 s{sT0}, s{sKT}, {2*(0x4300-272)}")
    E(f"v_and_b32 v{vMa}, 0xffff, v{vt[1]}")
    E(f"v_lshl_add_u32 v{vMa}, v{vMa}, 1, s{sT0}")
    E(f"v_lshrrev_b32 v{vMb}, 16, v{vt[1]}")
    E(f"v_lshl_add_u32 v{vMb}, v{vMb}, 1, s{sT0}")
    E(f"v_lshl_add_u32 v{vMw}, v{vL}, 2, s{sKT}")
    vTa = vt[4]; vUo = vt[5]
    E(f"v_and_b32 v{vt[0]}, 1, v{vG}")
    E(f"v_lshrrev_b32 v{vt[1]}, 1, v{vG}")
    E(f"v_lshrrev_b32 v{vt[2]}, 2, v{vC}")
    E(f"v_and_b32 v{vt[3]}, 3, v{vC}")
    E(f"v_lshl_add_u32 v{vTa}, v{vt[0]}, 3, v{vt[2]}")
    E(f"v_lshlrev_b32 v{vTa}, 8, v{vTa}")
    E(f"v_lshl_add_u32 v{vTa}, v{vt[1]}, 5, v{vTa}")
    E(f"v_lshl_add_u32 v{vTa}, v{vt[3]}, 3, v{vTa}")
    E(f"v_add_u32 v{vTa}, s{sSC}, v{vTa}")
    E(f"s_lshl_b32 s{sT0}, s{sTB}, 1")
    E(f"s_lshr_b32 s{sT1}, s{sW}, 1")
    E(f"s_add_u32 s{sT0}, s{sT0}, s{sT1}")
    E(f"v_add_u32 v{vt[3]}, s{sT0}, v{vt[3]}")
    E(f"v_and_b32 v{vt[3]}, 3, v{vt[3]}")
    E(f"v_lshl_add_u32 v{vUo}, v{vt[1]}, 2, v{vt[2]}")
    E(f"v_lshlrev_b32 v{vUo}, 14, v{vUo}")
    E(f"v_lshl_add_u32 v{vUo}, v{vt[0]}, 6, v{vUo}")
    E(f"v_lshl_add_u32 v{vUo}, v{vt[3]}, 4, v{vUo}")
    E(f"s_lshl_b32 s{sT0}, s{sCB}, 19")
    E(f"s_lshl_b32 s{sT1}, s{sTB}, 9")
    E(f"s_add_u32 s{sT0}, s{sT0}, s{sT1}")
    E(f"s_lshl_b32 s{sT1}, s{sW}, 7")
    E(f"s_add_u32 s{sT0}, s{sT0}, s{sT1}")
    if UT_BASE: E(f"s_add_u32 s{sT0}, s{sT0}, {UT_BASE}")
    E.wait_vm("slab")
    ST(E, "slab")
    for i in range(4):
        E(f"ds_read_b64_tr_b16 {v(big+4*i,2)}, v{vTa} offset:{64*i}")
        E(f"ds_read_b64_tr_b16 {v(big+4*i+2,2)}, v{vTa} offset:{64*i+1024}")
    E("s_setprio 3")
    for i in range(4):
        E(f"s_add_u32 s{sT1}, s{sT0}, {8*16384*i}")
        E(f"buffer_store_dwordx4 {v(big+4*i,4)}, v{vUo}, s[{rWS}:{rWS+3}], s{sT1} offen sc1")
    vNon = A()
    nld = nonce_load(E, vNon)
    E(f"s_setprio {BPRIO}")
    L2E = math.log2(math.e); L2Eh = f32val(L2E); L2El = L2E - L2Eh
    I2P = 1 / (2 * math.pi); I2Ph = f32val(I2P); I2Pl = I2P - I2Ph
    vDt = A(); vDsk = A()
    E(f"s_mov_b32 s7, {f32(L2Eh)}")
    E(f"s_mov_b32 s8, {f32(I2Ph)}")
    E(f"v_lshlrev_b32 v{vt[0]}, 16, v{P[6]}")
    E(f"v_mul_f32 v{vt[1]}, s7, v{vt[0]}")
    E(f"v_fma_f32 v{vt[2]}, v{vt[0]}, s7, -v{vt[1]}")
    E(f"v_fmac_f32 v{vt[2]}, {f32(L2El)}, v{vt[0]}")
    E(f"v_exp_f32 v{vt[1]}, v{vt[1]}")
    E(f"v_mul_f32 v{vt[2]}, {f32(math.log(2))}, v{vt[2]}")
    E(f"v_fma_f32 v{vt[1]}, v{vt[1]}, v{vt[2]}, v{vt[1]}")
    E(f"v_cvt_pk_bf16_f32 v{vt[1]}, v{vt[1]}, v{vt[1]}")
    E(f"v_and_b32 v{vDt}, 0xffff0000, v{vt[1]}")
    E(f"v_lshlrev_b32 v{vDsk}, 16, v{P[7]}")
    KG = A(40, 4); A2 = Alloc(KG, KG + 40)
    PK = [A2(4, 4), A2(4, 4)]
    W1 = [A2(3, 1), A2(3, 1)]; W8 = [A2(3, 1), A2(3, 1)]; W256 = [A2(3, 1), A2(3, 1)]
    A3 = Alloc(big + 128, big + 160)
    XS = [[A3(2) for _ in range(4)] for _ in range(2)]
    XU = [[A3(2) for _ in range(2)] for _ in range(2)]
    XC = [A3(2), A3(2)]; XD = [A3(2), A3(2)]
    tmp = big + 100
    per_n = []
    for n in range(2):
        t = [tmp + 12 * n + i for i in range(12)]
        un = (lambda d, src: f"v_lshlrev_b32 v{d}, 16, v{src}") if n == 0 else (lambda d, src: f"v_and_b32 v{d}, 0xffff0000, v{src}")
        L = []
        for k in range(6): L.append(un(t[k], P[k]))
        L += [f"v_mul_f32 v{t[0]}, v{vDt}, v{t[0]}",
              f"v_mul_f32 v{t[1]}, v{vDt}, v{t[1]}",
              f"v_mul_f32 v{t[2]}, v{vDt}, v{t[2]}",
              f"v_mul_f32 v{t[3]}, v{vDt}, v{t[3]}",
              f"v_mul_f32 v{t[0]}, s7, v{t[0]}",
              f"v_mul_f32 v{t[6]}, s8, v{t[1]}",
              f"v_fma_f32 v{t[7]}, v{t[1]}, s8, -v{t[6]}",
              f"v_fmac_f32 v{t[7]}, {f32(I2Pl)}, v{t[1]}"]
        c0 = XS[n][0]
        L += [f"v_mul_f32 v{c0}, v{t[4]}, v{t[2]}", f"v_mul_f32 v{c0+1}, v{t[5]}, v{t[2]}",
              f"v_fma_f32 v{c0}, -v{t[5]}, v{t[3]}, v{c0}", f"v_fmac_f32 v{c0+1}, v{t[4]}, v{t[3]}"]
        for e, Wd in ((1, W1[n]), (8, W8[n]), (256, W256[n])):
            if e == 1:
                L += [f"v_exp_f32 v{t[8]}, v{t[0]}", f"v_fract_f32 v{t[9]}, v{t[6]}", f"v_add_f32 v{t[9]}, v{t[9]}, v{t[7]}"]
            else:
                L += [f"v_mul_f32 v{t[8]}, {f32(e)}, v{t[0]}", f"v_mul_f32 v{t[9]}, {f32(e)}, v{t[6]}",
                      f"v_exp_f32 v{t[8]}, v{t[8]}", f"v_fract_f32 v{t[9]}, v{t[9]}", f"v_fmac_f32 v{t[9]}, {f32(e)}, v{t[7]}"]
            L += [f"v_cos_f32 v{t[10]}, v{t[9]}", f"v_sin_f32 v{t[11]}, v{t[9]}",
                  f"v_mul_f32 v{Wd}, v{t[8]}, v{t[10]}", f"v_mul_f32 v{Wd+1}, v{t[8]}, v{t[11]}", f"v_xor_b32 v{Wd+2}, 0x80000000, v{Wd+1}"]
        per_n.append(L)
    assert tmp % 2 == 0
    E(zipl(*per_n))
    PP2 = 1024 + 16
    vWa = A(); vRa = A()
    E(f"v_lshl_add_u32 v{vWa}, v{vL}, 4, s{sSC}")
    E(f"v_lshrrev_b32 v{vt[0]}, 1, v{vC}")
    E(f"v_mul_u32_u24 v{vRa}, {PP2}, v{vt[0]}")
    E(f"v_and_b32 v{vt[0]}, 1, v{vC}")
    E(f"v_lshl_add_u32 v{vRa}, v{vt[0]}, 3, v{vRa}")
    E(f"v_lshl_add_u32 v{vRa}, v{vG}, 5, v{vRa}")
    E(f"v_add_u32 v{vRa}, s{sSC}, v{vRa}")
    vRb = vPo
    E(f"v_add_u32 v{vRb}, {8*PP2}, v{vRa}")
    def put_row(row, regs, neg, last=False):
        p = PK[(row // 2) % 2]; q = p + 2 * (row % 2)
        sg = "-" if neg else ""
        L = [f"v_cvt_pk_bf16_f32 v{q}, v{regs[0]}, {sg}v{regs[0]+1}",
             f"v_cvt_pk_bf16_f32 v{q+1}, v{regs[1]}, {sg}v{regs[1]+1}"]
        if row % 2 or last: L.append(f"ds_write_b128 v{vWa}, {v(p,4)} offset:{(row//2)*PP2}")
        return L
    def step(dst, src, mul):
        return zipl(cmul(dst[0], src[0], mul[0]), cmul(dst[1], src[1], mul[1]))
    XSi = lambda i: [XS[0][i], XS[1][i]]
    XUi = lambda i: [XU[0][i], XU[1][i]]
    L = put_row(0, XSi(0), True)
    cur = XSi(0)
    for e in range(1, 8):
        dst = XSi(e // 2) if e % 2 == 0 else XC
        L += step(dst, cur, W1) + put_row(e, dst, True); cur = dst
    for i, dst in enumerate((XUi(0), XC, XUi(1), XC)):
        L += step(dst, XSi(i), W256) + put_row(8 + i, dst, True)
    for k in range(2): L += step(XSi(k), XUi(k), W256) + put_row(12 + k, XSi(k), True)
    for k in range(2): L += step(XUi(k), XSi(k), W256) + put_row(14 + k, XUi(k), True)
    cur = XUi(0)
    for r in range(16, 21):
        dst = XC if r % 2 == 0 else XD
        L += step(dst, cur, W256) + put_row(r, dst, True, last=(r == 20)); cur = dst
    E(L)
    XF = big + 16
    YF = big + 80
    KD = big + 112
    for tI in range(2):
        for k in range(8):
            E(f"ds_read2_b64 {v(XF+32*tI+4*k,4)}, v{vRb if tI else vRa} offset0:{16*k} offset1:{16*k+2}")
    ST(E, "X")
    E("s_setprio 3")
    nonce_get(E, nld, vNon)
    E.wait_vm()
    E("s_barrier")
    E(f"s_lshl_b32 s{sT0}, s{sCB}, 9")
    E(f"s_lshr_b32 s{sT1}, s{sTB}, 3")
    E(f"s_lshl_b32 s{sT1}, s{sT1}, 7")
    E(f"s_add_u32 s{sT0}, s{sT0}, s{sT1}")
    E(f"s_and_b32 s{sT1}, s{sTB}, 7")
    E(f"s_lshl_b32 s{sT1}, s{sT1}, 2")
    E(f"s_add_u32 s{sT0}, s{sT0}, s{sT1}")
    E(f"s_add_u32 s{sT0}, s{sT0}, {FLAG_BASE}")
    skip = newlabel("noack")
    E(f"s_cmp_lg_u32 s{sW}, 0")
    E(f"s_cbranch_scc1 {skip}")
    E("s_mov_b64 exec, 1")
    E.raw(f"    buffer_store_dword v{vNon}, v{vZero}, s[{rWS}:{rWS+3}], s{sT0} offen sc1")
    E("s_mov_b64 exec, -1")
    E.label(skip)
    E(f"s_setprio {BPRIO}")
    ST(E, "ack")
    if "--noB" in sys.argv:
        ST.dump(E, sW, big)
        E("s_endpgm")
        return ST
    def yhalf(h):
        L = []
        for j in range(16):
            jj = 16 * h + j
            Yc, Yp = (XC, XD) if jj % 2 == 0 else (XD, XC)
            if jj == 0:
                L += [f"v_mov_b32 v{Yc[0]}, 1.0", f"v_mov_b32 v{Yc[0]+1}, 0", f"v_mov_b32 v{Yc[1]}, 1.0", f"v_mov_b32 v{Yc[1]+1}, 0"]
            else:
                L += step(Yc, Yp, W8)
            L += put_row(j, Yc, False)
        return L
    def yread(): return [f"ds_read2_b64 {v(YF+4*k,4)}, v{vRa} offset0:{16*k} offset1:{16*k+2}" for k in range(8)]
    def kmfma(h):
        L = []
        for k in range(8):
            for tI in range(2):
                d = KD + 8 * h + 4 * tI
                L.append(f"v_mfma_f32_16x16x32_bf16 {v(d,4)}, {v(XF+32*tI+4*k,4)}, {v(YF+4*k,4)}, {v(d,4) if k else 0}")
        return L
    E(yhalf(0)); E(yread())
    y1 = yhalf(1)
    E(y1[:28]); E(merge(y1[28:], kmfma(0)))
    vAk = vt[6]; vAo = vt[7]
    E(f"s_lshr_b32 s{sT2}, s{sCG}, 5")
    E(f"s_lshl_b32 s{sT2}, s{sT2}, 9")
    E(f"s_add_u32 s{sT2}, s{sT2}, {FLAG_BASE}")
    E(f"v_bfe_u32 v{vAk}, v{vL}, 3, 2")
    E(f"v_and_b32 v{vAo}, 7, v{vL}")
    E(f"v_lshlrev_b32 v{vAo}, 2, v{vAo}")
    E(f"v_lshl_add_u32 v{vAo}, v{vAk}, 7, v{vAo}")
    ld = f"buffer_load_dword v{vAk}, v{vAo}, s[{rWS}:{rWS+3}], s{sT2} offen sc1"
    E("s_setprio 3")
    E(ld, tag="ack")
    E(f"s_setprio {BPRIO}")
    E(yread()); E(kmfma(1))
    ST(E, "Y")
    E("s_setprio 3")
    spin(E, [ld], [f"v_cmp_ne_u32 vcc, s{sN}, v{vAk}"], "ack")
    ST(E, "polled")
    E(f"s_lshl_b32 s{sT0}, s{sCG}, 14")
    E(f"s_lshl_b32 s{sT1}, s{sW}, 12")
    E(f"s_add_u32 s{sT0}, s{sT0}, s{sT1}")
    if UT_BASE: E(f"s_add_u32 s{sT0}, s{sT0}, {UT_BASE}")
    E(f"s_add_u32 m0, s{sT1}, {U_IMG}")
    for i in range(4):
        E(f"buffer_load_dwordx4 v{vL16}, s[{rWS}:{rWS+3}], s{sT0} offen offset:{1024*i} sc1 lds", tag="uimg")
    E(f"s_setprio {BPRIO}")
    E(f"v_cmp_eq_u32 vcc, 0, v{vL}")
    E(f"v_cndmask_b32 v{vDsk}, 0, v{vDsk}, vcc")
    E(f"v_add_f32 v{KD}, v{KD}, v{vDsk}")
    a0, a1, st = vt[0], vt[1], vt[2]
    E(f"v_lshlrev_b32 v{a0}, 4, v{vC}")
    E(f"v_lshl_add_u32 v{a0}, v{vG}, 3, v{a0}")
    E(f"v_add_u32 v{a0}, 32, v{a0}")
    E(f"v_mov_b32 v{st}, 256")
    E(f"v_lshlrev_b32 v{vt[3]}, 3, v{vC}")
    E(f"v_add_u32 v{vt[3]}, 800, v{vt[3]}")
    E(f"v_mov_b32 v{vt[4]}, 128")
    E(f"v_cmp_eq_u32 vcc, 2, v{vG}")
    E(f"v_cndmask_b32 v{a0}, v{a0}, v{vt[3]}, vcc")
    E(f"v_cndmask_b32 v{st}, v{st}, v{vt[4]}, vcc")
    E(f"v_lshlrev_b32 v{vt[3]}, 2, v{vC}")
    E(f"v_add_u32 v{vt[3]}, 1056, v{vt[3]}")
    E(f"v_mov_b32 v{vt[5]}, 64")
    E(f"v_cmp_eq_u32 vcc, 3, v{vG}")
    E(f"v_cndmask_b32 v{a0}, v{a0}, v{vt[3]}, vcc")
    E(f"v_cndmask_b32 v{st}, v{st}, v{vt[5]}, vcc")
    E(f"v_cndmask_b32 v{a1}, 4, v{vt[4]}, vcc")
    E(f"v_add_u32 v{a0}, s{sKT}, v{a0}")
    E(f"v_add_u32 v{a1}, v{a0}, v{a1}")
    a2 = vt[3]
    E(f"v_lshlrev_b32 v{a2}, 8, v{vG}")
    E(f"v_lshl_add_u32 v{a2}, v{vC}, 1, v{a2}")
    E(f"v_add_u32 v{a2}, s{sKT}, v{a2}")
    for h in range(2):
        d0 = KD + 8 * h; d1 = d0 + 4
        p = YF + 4 * h
        E(f"v_cvt_pk_bf16_f32 v{p}, v{d0}, v{d0+1}")
        E(f"v_cvt_pk_bf16_f32 v{p+1}, v{d0+2}, v{d0+3}")
        E(f"v_cvt_pk_bf16_f32 v{p+2}, v{d1}, v{d1+1}")
        E(f"v_cvt_pk_bf16_f32 v{p+3}, v{d1+2}, v{d1+3}")
        if h == 1:
            E(f"v_add_u32 v{a0}, v{a0}, v{st}")
            E(f"v_add_u32 v{a1}, v{a1}, v{st}")
        E(f"ds_write_b32 v{a0}, v{p}")
        E(f"ds_write_b32 v{a1}, v{p+1}")
        for rho in range(4):
            op = "ds_write_b16" if rho % 2 == 0 else "ds_write_b16_d16_hi"
            E(f"{op} v{a2}, v{p+2+rho//2} offset:{2*656 + 64*rho + 32*h}")
    E(f"ds_read_u16 v{vt[5]}, v{vMa}")
    E(f"ds_read_u16 v{vt[4]}, v{vMb}")
    E(f"v_lshl_or_b32 v{vt[5]}, v{vt[4]}, 16, v{vt[5]}")
    E(f"ds_write_b32 v{vMw}, v{vt[5]} offset:544")
    ACC = KG
    Hs = [big, big + 32]; Fs = [big + 64, big + 96]; RAW = big + 128
    vH = [vt[0], vt[1]]
    vTb = vt[2]
    E(f"v_lshl_add_u32 v{vTb}, v{vC}, 1, v{vG}")
    E(f"v_add_u32 v{vTb}, 30, v{vTb}")
    def prepF(s0, buf):
        rd = []; pm = []
        r = RAW
        for m in range(8):
            sx = s0 + 8 * m
            F = Fs[buf] + 4 * m
            if sx <= 8 or sx == 16 or sx == 32:
                o = {16: 152, 32: 176}.get(sx, 16 * sx)
                rd += [f"ds_read2_b32 {v(r,2)}, v{adr['d']} offset0:{o} offset1:{o+1}",
                       f"ds_read2_b32 {v(r+2,2)}, v{adr['d']} offset0:{o+2} offset1:{o+3}",
                       f"ds_read_b32 v{r+4}, v{adr['d']} offset:{4*(o+4)}"]
                pm += [f"v_perm_b32 v{F+j}, v{r+4-j}, v{r+3-j}, v{sel[('d',3)]}" for j in (3, 2, 1, 0)]
                r += 6
            elif sx < 16:
                o = 8 * (sx - 9)
                rd += [f"ds_read2_b32 {v(r,2)}, v{adr['1']} offset0:{o} offset1:{o+1}",
                       f"ds_read_b32 v{r+2}, v{adr['1']} offset:{4*(o+2)}"]
                pm += [f"v_perm_b32 v{F+3}, v{r+1}, v{r}, v{sel[('1',3)]}", f"v_perm_b32 v{F+2}, v{r+1}, v{r}, v{sel[('1',2)]}",
                       f"v_perm_b32 v{F+1}, v{r+2}, v{r+1}, v{sel[('1',3)]}", f"v_perm_b32 v{F}, v{r+2}, v{r+1}, v{sel[('1',2)]}"]
                r += 4
            else:
                nm, o = ("2", 4 * (sx - 17)) if sx < 32 else ("3", 2 * (sx - 33))
                rd += [f"ds_read2_b32 {v(r,2)}, v{adr[nm]} offset0:{o} offset1:{o+1}"]
                pm += [f"v_perm_b32 v{F+j}, v{r+1}, v{r}, v{sel[(nm,j)]}" for j in (3, 2, 1, 0)]
                r += 2
        assert r <= big + 160
        return rd, pm
    def prepH(s0, buf):
        a = vH[buf]; t = vt[3]
        L = [f"v_subrev_u32 v{a}, {4*s0}, v{vTb}",
             f"v_lshrrev_b32 v{t}, 2, v{a}",
             f"v_add_u32 v{t}, s{sW}, v{t}",
             f"v_and_b32 v{t}, 3, v{t}",
             f"v_lshlrev_b32 v{a}, 6, v{a}",
             f"v_lshl_add_u32 v{a}, v{t}, 4, v{a}"]
        return L, [f"ds_read_b128 {v(Hs[buf]+4*dl,4)}, v{a} offset:{2048*dl}" for dl in range(8)]
    rd, pm = prepF(0, 0)
    ha, hr = prepH(0, 0)
    E(rd); E(ha); E(pm)
    ST(E, "tables")
    E.wait_vm("uimg")
    E.wait_lg()
    E("s_barrier")
    ST(E, "uimg")
    E(hr)
    for s0 in range(8):
        b = s0 % 2
        M = []
        for m in range(8):
            for dl in range(8 - m):
                q = m + dl
                c = v(ACC + 4 * q, 4) if (s0 or m) else "0"
                M.append(f"v_mfma_f32_16x16x32_bf16 {v(ACC+4*q,4)}, {v(Fs[b]+4*m,4)}, {v(Hs[b]+4*dl,4)}, {c}")
        if s0 < 7:
            rd, pm = prepF(s0 + 1, 1 - b)
            ha, hr = prepH(s0 + 1, 1 - b)
            E(merge(M, rd + ha + hr + pm))
        else:
            E(M)
    ST(E, "conv")
    ya = vt[0]
    E(f"s_mul_i32 s{sT0}, s{sW}, {Y_PITCH}")
    E(f"s_add_u32 s{sT0}, s{sT0}, {SC_BASE}")
    E(f"v_lshlrev_b32 v{ya}, 5, v{vC}")
    E(f"v_lshl_add_u32 v{ya}, v{vG}, 3, v{ya}")
    E(f"v_add_u32 v{ya}, s{sT0}, v{ya}")
    for q in range(8):
        E(f"v_cvt_pk_bf16_f32 v{big+2*q}, v{ACC+4*q}, v{ACC+4*q+1}")
        E(f"v_cvt_pk_bf16_f32 v{big+2*q+1}, v{ACC+4*q+2}, v{ACC+4*q+3}")
        E(f"ds_write_b64 v{ya}, {v(big+2*q,2)} offset:{512*q}")
    yr, yo = vt[1], vt[2]
    E(f"v_lshrrev_b32 v{vt[3]}, 2, v{vC}")
    E(f"v_mul_u32_u24 v{yr}, {Y_PITCH}, v{vt[3]}")
    E(f"v_and_b32 v{vt[3]}, 3, v{vC}")
    E(f"v_lshl_add_u32 v{yr}, v{vt[3]}, 3, v{yr}")
    E(f"v_lshl_add_u32 v{yr}, v{vG}, 5, v{yr}")
    E(f"s_lshl_b32 s{sT0}, s{sW}, 10")
    E(f"s_add_u32 s{sT0}, s{sT0}, {SC_BASE}")
    E(f"v_add_u32 v{yr}, s{sT0}, v{yr}")
    E(f"v_lshlrev_b32 v{yo}, 3, v{vL}")
    E(f"s_lshl_b32 s{sT0}, s{sCG}, 14")
    E(f"s_lshl_b32 s{sT1}, s{sW}, 12")
    E(f"s_add_u32 s{sT0}, s{sT0}, s{sT1}")
    E(f"s_add_u32 s{sT0}, s{sT0}, {YT_BASE}")
    E.wait_lg()
    E("s_barrier")
    E("s_setprio 3")
    for i in range(8):
        E(f"ds_read_b64_tr_b16 {v(big+32+2*i,2)}, v{yr} offset:{128*i}")
    for i in range(8):
        E(f"buffer_store_dwordx2 {v(big+32+2*i,2)}, v{yo}, s[{rWS}:{rWS+3}], s{sT0} offen offset:{512*i} sc1")
    d0, d1, ra, so = vt[0], vt[1], vt[2], vt[3]
    E(f"v_lshrrev_b32 v{vt[4]}, 3, v{vL}")
    E(f"v_lshlrev_b32 v{vt[4]}, 14, v{vt[4]}")
    E(f"v_and_b32 v{vt[5]}, 7, v{vL}")
    E(f"v_xor_b32 v{vt[5]}, v{vt[5]}, v{vG}")
    E(f"v_lshl_add_u32 v{d0}, v{vt[5]}, 4, v{vt[4]}")
    E(f"v_xor_b32 v{d1}, 64, v{d0}")
    E(f"v_and_b32 v{vt[4]}, 7, v{vC}")
    E(f"v_lshrrev_b32 v{vt[5]}, 1, v{vG}")
    E(f"v_xor_b32 v{vt[4]}, v{vt[4]}, v{vt[5]}")
    E(f"v_lshlrev_b32 v{ra}, 8, v{vC}")
    E(f"v_lshl_add_u32 v{ra}, v{vt[4]}, 4, v{ra}")
    E(f"v_and_b32 v{vt[5]}, 1, v{vG}")
    E(f"v_lshl_add_u32 v{ra}, v{vt[5]}, 3, v{ra}")
    E(f"s_lshl_b32 s{sT1}, s{sW}, 12")
    E(f"s_add_u32 s{sKT}, s{sT1}, {U_IMG}")
    E(f"v_add_u32 v{ra}, s{sKT}, v{ra}")
    E(f"v_mul_u32_u24 v{so}, 2560, v{vG}")
    E(f"v_lshl_add_u32 v{so}, v{vC}, 4, v{so}")
    E(f"s_lshr_b32 s{sT1}, s{sCG}, 3")
    E(f"s_lshl_b32 s{sT1}, s{sT1}, 7")
    E(f"s_and_b32 s{sT0}, s{sCG}, 7")
    E(f"s_lshl_b32 s{sT0}, s{sT0}, 2")
    E(f"s_add_u32 s{sT0}, s{sT0}, s{sT1}")
    E(f"s_add_u32 s{sT0}, s{sT0}, {FLAGY_BASE}")
    E(f"s_lshl_b32 s{sT2}, s{sCB}, 9")
    E(f"s_add_u32 s{sT2}, s{sT2}, {FLAGY_BASE}")
    E.wait_vm()
    E("s_barrier")
    skip = newlabel("noy")
    E(f"s_cmp_lg_u32 s{sW}, 0")
    E(f"s_cbranch_scc1 {skip}")
    E("s_mov_b64 exec, 1")
    E.raw(f"    buffer_store_dword v{vNon}, off, s[{rWS}:{rWS+3}], s{sT0} sc1")
    E("s_mov_b64 exec, -1")
    E.label(skip)
    ST(E, "ypub")
    E(ld, tag="ack")
    spin(E, ["s_sleep 2", ld], [f"v_cmp_ne_u32 vcc, s{sN}, v{vAk}"], "ack")
    ST(E, "ypoll")
    E(f"s_lshl_b32 s{sT0}, s{sCB}, 19")
    E(f"s_lshl_b32 s{sT1}, s{sTB}, 9")
    E(f"s_add_u32 s{sT0}, s{sT0}, s{sT1}")
    E(f"s_lshl_b32 s{sT1}, s{sW}, 7")
    E(f"s_add_u32 s{sT0}, s{sT0}, s{sT1}")
    E(f"s_add_u32 s{sT0}, s{sT0}, {YT_BASE}")
    for i in range(4):
        E(f"s_add_u32 m0, s{sKT}, {1024*i}")
        E(f"s_add_u32 s{sT1}, s{sT0}, {8*16384*i}")
        E(f"buffer_load_dwordx4 v{d0 if i % 2 == 0 else d1}, s[{rWS}:{rWS+3}], s{sT1} offen sc1 lds")
    E(f"s_lshl_b32 s{sT0}, s{sTB}, 2")
    E(f"s_add_u32 s{sT0}, s{sT0}, s{sW}")
    E(f"s_mul_i32 s{sT0}, s{sT0}, {16*2560}")
    E(f"s_lshl_b32 s{sT1}, s{sCB}, 8")
    E(f"s_add_u32 s{sT0}, s{sT0}, s{sT1}")
    E(f"s_add_u32 s{sT0}, s{sT0}, 1280")
    for i in range(1, 4): E(f"v_xor_b32 v{big+60+i}, {32*i}, v{ra}")
    E.wait_vm()
    for i in range(4):
        E(f"ds_read2_b64 {v(big+4*i,4)}, v{ra if i == 0 else big+60+i} offset1:16")
    for i in range(4):
        E(f"s_add_u32 s{sT1}, s{sT0}, {4*2560*i}")
        E(f"buffer_store_dwordx4 {v(big+4*i,4)}, v{so}, s[{rOUT}:{rOUT+3}], s{sT1} offen")
    if PROFILE:
        ST(E, "stores issued")
        E.wait_vm()
        ST(E, "end")
    ST.dump(E, sW, big)
    E("s_endpgm")
    return ST

def main():
    global PROFILE
    PROFILE = "--profile" in sys.argv
    head = open(f"cdna_kernels/{NAME}.s.ref").read().split("\n")
    hdr = [l for l in head if l.startswith(";") and "@launch" not in l]
    E = Emitter()
    for l in hdr: E.raw(l)
    E.raw(f"; @launch grid=({NB+NA+NC},1,1) block=(256,1,1) lds=81920")
    E.raw('.amdgcn_target "amdgcn-amd-amdhsa--gfx950"')
    E.raw(".text")
    E.raw(f".globl {NAME}_kernel")
    E.raw(".p2align 8")
    E.raw(f".type {NAME}_kernel,@function")
    E.label(f"{NAME}_kernel")
    E("s_load_dwordx16 s[16:31], s[0:1], 0")
    E("s_load_dwordx16 s[32:47], s[0:1], 64")
    E("s_memrealtime s[10:11]")
    E(f"s_cmp_ge_u32 s2, {NB}")
    E("s_cbranch_scc1 L_roleA")
    E.lgq = [("__smem", set())]
    lg = list(E.lgq)
    stB = gen_B(E)
    E.label("L_roleA")
    try:
        from genA import gen_A
        stA = gen_A(E, sys.modules[__name__])
    except ImportError:
        stA = None
        E("s_endpgm")
    E.raw('.section .rodata,"a"')
    E.raw(".p2align 6")
    E.raw(f".amdhsa_kernel {NAME}_kernel")
    for l in ("next_free_vgpr 256", "next_free_sgpr 102", "accum_offset 256", "group_segment_fixed_size 0", "kernarg_size 128",
              "user_sgpr_count 2", "user_sgpr_kernarg_segment_ptr 1", "system_sgpr_workgroup_id_x 1"):
        E.raw("  .amdhsa_" + l)
    E.raw(".end_amdhsa_kernel")
    outp = [a for a in sys.argv[1:] if not a.startswith("--")]
    open(outp[0] if outp else "k.s", "w").write(E.text())
    print("instrs", E.count, "nops", E.nops, file=sys.stderr)
    import json
    json.dump({"B": stB.names, "A": stA.names if stA else []}, open((outp[0] if outp else "k.s") + ".json", "w"))

if __name__ == "__main__":
    main()
```

```python
import math, sys
from asmlib import *

TA = [[(0, 0), (0, 2), (0, 4), (1, 4)], [(0, 1), (0, 3), (1, 3), (2, 3)], [(1, 0), (1, 2), (2, 2), (2, 4)], [(1, 1), (2, 0), (2, 1), None]]
M16 = "v_mfma_f32_16x16x32_bf16"; M32 = "v_mfma_f32_32x32x16_bf16"

def div_const(dst, src, d):
    return [f"v_mul_u32_u24 v{dst}, {(65536 + d - 1)//d}, v{src}", f"v_lshrrev_b32 v{dst}, 16, v{dst}"]

def put_flag(E, G, sW, vNon, saddr):
    skip = G.newlabel("nofl")
    E(f"s_cmp_lg_u32 s{sW}, 0")
    E(f"s_cbranch_scc1 {skip}")
    E("s_mov_b64 exec, 1")
    E.raw(f"    buffer_store_dword v{vNon}, off, s[{G.rWS}:{G.rWS+3}], s{saddr} sc1")
    E("s_mov_b64 exec, -1")
    E.label(skip)

def flag_addr(dst, idx, base, t):
    return [f"s_lshr_b32 s{dst}, s{idx}, 3", f"s_lshl_b32 s{dst}, s{dst}, 7", f"s_and_b32 s{t}, s{idx}, 7", f"s_lshl_b32 s{t}, s{t}, 2",
            f"s_add_u32 s{dst}, s{dst}, s{t}", f"s_add_u32 s{dst}, s{dst}, {base}"]

def piece_voff(E, vL, dst, t, pitch):
    for m in range(3):
        if m: E(f"v_add_u32 v{t}, {64*m}, v{vL}")
        ci = t if m else vL
        E(div_const(t + 1, ci, 20))
        E(f"v_mul_u32_u24 v{t+1}, {pitch - 320}, v{t+1}")
        E(f"v_lshl_add_u32 v{dst[m]}, v{vL}, 4, v{t+1}")

def gen_C(E, G):
    rWS, rDBG, rWO = G.rWS, G.rDBG, G.rWO
    G.fresh(E)
    sW, sU = 76, 77
    vL, vo, t, vT, vS, D, vNon = 1, [2, 3, 4], 6, [8, 9, 10], [11, 12, 13], 16, 14
    E(f"v_and_b32 v{vL}, 63, v0")
    E(f"v_lshrrev_b32 v{t}, 6, v0")
    E(f"s_sub_u32 s{sU}, s2, {G.NB + G.NA}")
    E(f"v_readfirstlane_b32 s{sW}, v{t}")
    piece_voff(E, vL, vo, t, 1280)
    E(f"s_mul_i32 s4, s{sU}, {8*1280}")
    E(f"s_mul_i32 s5, s{sW}, 320")
    E(f"s_add_u32 s4, s4, s5")
    E(f"s_lshl_b32 s6, s{sW}, 12")
    E(f"s_mov_b32 m0, s6")
    E.wait_lg()
    G.srd(E, rWO, G.pWO, 819200)
    for m in range(3):
        if m == 2: E("s_mov_b32 exec_hi, 0")
        E(f"buffer_load_dwordx4 v{vo[m]}, s[{rWO}:{rWO+3}], s4 offen offset:{1024*m} lds")
    E("s_mov_b64 exec, -1")
    G.srd(E, rWS, G.pWS, G.WS_SIZE)
    G.srd(E, rDBG, G.pDBG, 256)
    for m in range(3):
        E(f"v_lshrrev_b32 v{t}, 4, v{vL}")
        E(f"v_add_u32 v{t}, {4*m}, v{t}")
        E(f"v_min_u32 v{t}, 9, v{t}")
        E(f"v_cmp_lt_u32 vcc, 4, v{t}")
        E(f"v_lshlrev_b32 v{vT[m]}, 3, v{t}")
        E(f"v_add_u32 v{t+1}, 120, v{vT[m]}")
        E(f"v_cndmask_b32 v{vT[m]}, v{vT[m]}, v{t+1}, vcc")
        E(f"v_lshlrev_b32 v{vS[m]}, 10, v{t}")
        E(f"v_add_u32 v{t+1}, {95*1024}, v{vS[m]}")
        E(f"v_cndmask_b32 v{vS[m]}, v{vS[m]}, v{t+1}, vcc")
        E(f"v_and_b32 v{t}, 3, v{vL}")
        E(f"v_mul_u32_u24 v{t}, 40, v{t}")
        E(f"v_bfe_u32 v{t+1}, v{vL}, 2, 2")
        E(f"v_mul_u32_u24 v{t+1}, 320, v{t+1}")
        E(f"v_add3_u32 v{vT[m]}, v{vT[m]}, v{t}, v{t+1}")
        E(f"v_add_u32 v{vT[m]}, s6, v{vT[m]}")
        E(f"v_and_b32 v{t}, 15, v{vL}")
        E(f"v_lshl_add_u32 v{vS[m]}, v{t}, 4, v{vS[m]}")
    E(f"s_mul_i32 s4, s{sW}, {200*1024}")
    E(f"s_lshr_b32 s5, s{sU}, 2")
    E(f"s_mul_i32 s5, s5, 5120")
    E(f"s_add_u32 s4, s4, s5")
    E(f"s_and_b32 s5, s{sU}, 3")
    E(f"s_lshl_b32 s5, s5, 8")
    E(f"s_add_u32 s4, s4, s5")
    E(f"s_add_u32 s4, s4, {G.PWO_BASE}")
    E(flag_addr(7, sU, G.FLAGC_BASE, 5))
    E.wait_vm()
    for m in range(3):
        for a in range(2): E(f"ds_read_b64_tr_b16 {v(D+4*m+2*a,2)}, v{vT[m]} offset:{1280*a}")
    for m in range(3):
        if m == 2:
            E.wait_lg()
            E("s_mov_b32 exec_hi, 0")
        E(f"buffer_store_dwordx4 {v(D+4*m,4)}, v{vS[m]}, s[{rWS}:{rWS+3}], s4 offen sc1")
    E("s_mov_b64 exec, -1")
    nld = G.nonce_load(E, vNon)
    G.nonce_get(E, nld, vNon)
    E.wait_vm()
    E("s_barrier")
    put_flag(E, G, sW, vNon, 7)
    E("s_endpgm")

def gen_A(E, G):
    f32, Alloc, srd, spin, newlabel = G.f32, G.Alloc, G.srd, G.spin, G.newlabel
    rWS, rOUT, rDBG, rIN, rW, rPHI = G.rWS, G.rOUT, G.rDBG, G.rIN, G.rW, G.rPHI
    sN = G.sN
    G.fresh(E)
    ST = G.Stamps(24)
    sW, sR, sP, sPQ, sTBo, sCT, sROT = 76, 77, 78, 79, 80, 81, 82
    sT0, sT1, sT2 = 4, 5, 6
    sWO, sXO, sWE, sXE = 84, 85, 86, 87
    sW4, sXR, sH, sFT = 88, 89, 90, 91
    sPS, sOS, sFO, sPL, sOL, sWL, sFC, sOUT, sFP, sF1, sF2 = 96, 97, 98, 99, 100, 101, 45, 46, 92, 47, 3
    XR = 49152
    TAB = 36864; ZTAB = TAB + 3200; KVT = 45056; ZKV = ZTAB
    def wslot(sig): return 16384 * ((sig + 1) % 3)
    E(f"s_setprio {G.APRIO}")
    A = Alloc(1, 256)
    vL = A(); vHH = A(); vL16 = A()
    ACC = A(64, 4)
    WF = A(32, 4)
    XF = A(32, 4)
    PF = A(48, 4)
    TM = A(36, 4)
    ID = A(4, 4)
    vXo = [A() for _ in range(4)]
    vWo = [A() for _ in range(4)]
    vWt = [A() for _ in range(4)]
    vXrs = [A() for _ in range(4)]
    MP = A(); vMn = A(); vNon = A()
    vPk = A(); vVw = A(); vA = A(); vB = A(); vS1 = A(); vS2 = A(); vPi = A(); vKa = A(); vO1 = A(); vO3 = A(); vC4 = A()
    vRw = A(); vSo = [A() for _ in range(3)]
    vFl = A(); vFc = A()
    vt = [TM + 20 + i for i in range(12)]
    vG, vC, vGam, vR4 = vt[8], vt[9], vt[10], vt[11]
    E(f"v_and_b32 v{vL}, 63, v0")
    E(f"v_lshrrev_b32 v{vt[0]}, 6, v0")
    E(f"v_lshrrev_b32 v{vG}, 4, v{vL}")
    E(f"v_readfirstlane_b32 s{sW}, v{vt[0]}")
    E(f"s_sub_u32 s{sT2}, s2, {G.NB}")
    E(f"s_and_b32 s{sT0}, s{sT2}, 7")
    E(f"s_lshr_b32 s{sT1}, s{sT2}, 3")
    E(f"s_lshr_b32 s{sCT}, s{sT1}, 2")
    E(f"s_and_b32 s{sT1}, s{sT1}, 3")
    E(f"s_lshl_b32 s{sTBo}, s{sT0}, 2")
    E(f"s_add_u32 s{sTBo}, s{sTBo}, s{sT1}")
    E(f"s_lshr_b32 s{sR}, s{sT0}, 1")
    E(f"s_lshl_b32 s{sR}, s{sR}, 2")
    E(f"s_add_u32 s{sR}, s{sR}, s{sT1}")
    E(f"s_lshl_b32 s{sT2}, s{sCT}, 2")
    E(f"s_lshr_b32 s{sT2}, 0x75206431, s{sT2}")
    E(f"s_and_b32 s{sT2}, s{sT2}, 7")
    E(f"s_and_b32 s{sP}, s{sT0}, 1")
    E(f"s_lshl_b32 s{sP}, s{sP}, 3")
    E(f"s_add_u32 s{sP}, s{sP}, s{sT2}")
    E(f"s_xor_b32 s{sPQ}, s{sP}, 1")
    E(f"s_mul_i32 s{sROT}, s{sT1}, 3")
    E(f"s_add_u32 s{sROT}, s{sROT}, s{sT2}")
    E(f"s_sub_u32 s{sT0}, s{sROT}, 10")
    E(f"s_cmp_ge_u32 s{sROT}, 10")
    E(f"s_cselect_b32 s{sROT}, s{sT0}, s{sROT}")
    E(f"s_mul_i32 s{sT0}, s{sPQ}, 80")
    E(f"s_mul_i32 s{sT1}, s{sP}, 80")
    E(f"s_sub_u32 s{sT2}, s{sT1}, s{sT0}")
    E(f"s_add_u32 s{sT2}, s{sT2}, {1280-80}")
    for m in range(4):
        if m: E(f"v_add_u32 v{vt[0]}, {64*m}, v{vL}")
        ci = vt[0] if m else vL
        if m == 3: E(f"v_min_u32 v{vt[0]}, 239, v{vt[0]}")
        E(f"v_mul_u32_u24 v{vt[1]}, 0x1112, v{ci}")
        E(f"v_lshrrev_b32 v{vt[1]}, 16, v{vt[1]}")
        E(f"v_mul_u32_u24 v{vt[2]}, 15, v{vt[1]}")
        E(f"v_sub_u32 v{vt[2]}, v{ci}, v{vt[2]}")
        E(f"v_and_b32 v{vt[3]}, 3, v{vt[1]}")
        E(f"v_lshrrev_b32 v{vt[1]}, 2, v{vt[1]}")
        E(f"v_lshl_add_u32 v{vt[1]}, v{vt[3]}, 2, v{vt[1]}")
        E(f"v_cmp_lt_u32 vcc, 4, v{vt[2]}")
        E(f"v_mul_u32_u24 v{vt[1]}, 3840, v{vt[1]}")
        E(f"v_lshl_add_u32 v{vt[1]}, v{vt[2]}, 4, v{vt[1]}")
        E(f"v_add_u32 v{vt[3]}, s{sT2}, v{vt[1]}")
        E(f"v_cndmask_b32 v{vt[1]}, v{vt[1]}, v{vt[3]}, vcc")
        E(f"v_cmp_lt_u32 vcc, 9, v{vt[2]}")
        E(f"v_add_u32 v{vt[3]}, 1200, v{vt[1]}")
        E(f"v_cndmask_b32 v{vt[1]}, v{vt[1]}, v{vt[3]}, vcc")
        E(f"v_add_u32 v{vWo[m]}, {3072 - 1024*m}, v{vt[1]}")
    E(f"v_lshrrev_b32 v{vt[0]}, 3, v{vL}")
    E(f"v_and_b32 v{vt[1]}, 7, v{vL}")
    E(f"v_xor_b32 v{vt[1]}, v{vt[1]}, v{vG}")
    E(f"v_mul_u32_u24 v{vt[0]}, 1280, v{vt[0]}")
    E(f"v_lshl_add_u32 v{vXo[0]}, v{vt[1]}, 4, v{vt[0]}")
    E(f"v_xor_b32 v{vt[1]}, 4, v{vt[1]}")
    E(f"v_lshl_add_u32 v{vXo[1]}, v{vt[1]}, 4, v{vt[0]}")
    E(f"v_add_u32 v{vXo[2]}, {2*(8*1280-1024)}, v{vXo[0]}")
    E(f"v_add_u32 v{vXo[3]}, {3*(8*1280-1024)}, v{vXo[1]}")
    E(f"v_add_u32 v{vXo[1]}, {1*(8*1280-1024)}, v{vXo[1]}")
    E(f"s_mul_i32 s{sWE}, s{sW}, {16*3840}")
    E(f"s_add_u32 s{sWE}, s{sWE}, s{sT0}")
    E(f"s_mul_i32 s{sWO}, s{sROT}, {64*3840}")
    E(f"s_add_u32 s{sWO}, s{sWO}, s{sWE}")
    E(f"s_add_u32 s{sWE}, s{sWE}, {640*3840}")
    E(f"s_lshl_b32 s{sXE}, s{sR}, 2")
    E(f"s_add_u32 s{sXE}, s{sXE}, s{sW}")
    E(f"s_mul_i32 s{sXE}, s{sXE}, {32*1280}")
    E(f"s_lshl_b32 s{sXO}, s{sROT}, 7")
    E(f"s_add_u32 s{sXO}, s{sXO}, s{sXE}")
    E(f"s_add_u32 s{sXE}, s{sXE}, 1280")
    E(f"s_lshl_b32 s{sW4}, s{sW}, 12")
    E(f"s_lshl_b32 s{sXR}, s{sW}, 13")
    E(f"s_add_u32 s{sXR}, s{sXR}, {XR}")
    E.wait_lg()
    ST(E, "start")
    E(f"s_sub_u32 s{G.pW}, s{G.pW}, 3072")
    E(f"s_subb_u32 s{G.pW+1}, s{G.pW+1}, 0")
    srd(E, rW, G.pW, 2457600 + 3072)
    srd(E, rIN, G.pX, 2621440)

    def dmaW(sig):
        L = []
        for m in range(4):
            g = []
            if m == 0: g.append(f"s_add_u32 m0, s{sW4}, {wslot(sig)}")
            g.append(("tag", f"buffer_load_dwordx4 v{vWo[m]}, s[{rW}:{rW+3}], s{sWO} offen offset:{1024*m} lds", f"S{sig}"))
            if m == 3: g += [f"s_add_u32 s{sWO}, s{sWO}, {64*3840}", f"s_cmp_ge_u32 s{sWO}, s{sWE}", f"s_cselect_b32 s9, {640*3840}, 0", f"s_sub_u32 s{sWO}, s{sWO}, s9"]
            L.append(("group", g))
        return L
    def dmaX(sig):
        L = []
        for i in range(4):
            g = []
            if i == 0: g.append(f"s_add_u32 m0, s{sXR}, {4096*(sig%2)}")
            g.append(("tag", f"buffer_load_dwordx4 v{vXo[i]}, s[{rIN}:{rIN+3}], s{sXO} offen offset:{1024*i} lds", f"S{sig}"))
            if i == 3: g += [f"s_add_u32 s{sXO}, s{sXO}, 128", f"s_cmp_ge_u32 s{sXO}, s{sXE}", f"s_cselect_b32 s9, 1280, 0", f"s_sub_u32 s{sXO}, s{sXO}, s9"]
            L.append(("group", g))
        return L
    E(dmaW(0)); E(dmaX(0))
    srd(E, rPHI, G.pPHI, 25600)
    vPhi = TM + 18
    E(f"v_lshlrev_b32 v{vPhi}, 4, v0")
    E(f"v_cmp_gt_u32 vcc, 200, v0")
    E(f"v_mov_b32 v{vPhi+1}, 0x100000")
    E(f"s_lshr_b32 s{sT0}, s{sP}, 1")
    E(f"s_mul_i32 s{sT0}, s{sT0}, 3200")
    E(f"v_cndmask_b32 v{vPhi+1}, v{vPhi+1}, v{vPhi}, vcc")
    E(f"buffer_load_dwordx4 {v(TM,4)}, v{vPhi+1}, s[{rPHI}:{rPHI+3}], s{sT0} offen")
    E(dmaW(1)); E(dmaX(1))
    srd(E, rWS, G.pWS, G.WS_SIZE)
    PN = TM + 32
    for i in range(4): E(f"v_mov_b32 v{PN+i}, -1")
    E(f"v_lshlrev_b32 v{vL16}, 4, v{vL}")
    E(f"s_lshl_b32 s{sPL}, s{sPQ}, 16")
    E(f"s_add_u32 s{sPL}, s{sPL}, {G.P_BASE}")
    E(f"s_lshl_b32 s{sPS}, s{sP}, 4")
    E(f"s_add_u32 s{sPS}, s{sPS}, s{sR}")
    E(f"s_lshl_b32 s{sPS}, s{sPS}, 12")
    E(f"s_add_u32 s{sPS}, s{sPS}, {G.P_BASE}")
    E(f"s_lshl_b32 s{sT0}, s{sW}, 10")
    E(f"s_add_u32 s95, s{sT0}, s{sPS}")
    srd(E, rDBG, G.pDBG, 256)
    srd(E, rOUT, G.pOUT, 5242880)
    E(f"v_and_b32 v{vC}, 15, v{vL}")
    E(f"v_bfe_u32 v{vGam}, v{vL}, 4, 1")
    E(f"v_bfe_u32 v{vt[0]}, v{vL}, 1, 1")
    E(f"v_lshl_add_u32 v{vGam}, v{vGam}, 1, v{vt[0]}")
    E(f"v_bfe_u32 v{vR4}, v{vL}, 2, 2")
    E(f"v_lshrrev_b32 v{vHH}, 5, v{vL}")
    E(f"v_lshlrev_b32 v{vt[0]}, 3, v{vGam}")
    E(f"v_and_b32 v{vt[1]}, 1, v{vL}")
    E(f"v_mul_u32_u24 v{vt[1]}, 5, v{vt[1]}")
    E(f"v_lshl_add_u32 v{vt[2]}, v{vR4}, 1, v{vHH}")
    E(f"v_mul_u32_u24 v{vt[2]}, 480, v{vt[2]}")
    for T in range(4):
        pk = sum((30 if e is None else 10 * e[0] + e[1]) << (8 * i) for i, e in enumerate(TA[T]))
        E(f"s_mov_b32 s9, {pk}")
        E(f"v_bfe_u32 v{vt[3]}, s9, v{vt[0]}, 8")
        E(f"v_add_u32 v{vt[3]}, v{vt[3]}, v{vt[1]}")
        E(f"v_min_u32 v{vt[3]}, 31, v{vt[3]}")
        E(f"v_lshl_add_u32 v{vWt[T]}, v{vt[3]}, 3, v{vt[2]}")
    E(f"v_and_b32 v{vt[0]}, 31, v{vL}")
    E(f"v_bfe_u32 v{vt[1]}, v{vL}, 1, 3")
    E(f"v_xor_b32 v{vt[1]}, v{vt[1]}, v{vHH}")
    E(f"v_lshlrev_b32 v{vt[0]}, 7, v{vt[0]}")
    E(f"v_lshl_add_u32 v{vt[0]}, v{vt[1]}, 4, v{vt[0]}")
    for j in range(4):
        E(f"v_xor_b32 v{vXrs[j]}, {32*j}, v{vt[0]}")
        E(f"v_add_u32 v{vXrs[j]}, s{sXR}, v{vXrs[j]}")
    E(f"s_and_b32 s{sH}, s{sW}, 1")
    E(f"s_lshr_b32 s{sFT}, s{sW}, 1")
    E(f"s_mov_b32 s94, {f32(math.log2(math.e))}")
    vPa = [TM + 16, TM + 17]
    E(f"v_mul_u32_u24 v{vt[0]}, 800, v{vHH}")
    E(f"v_mul_u32_u24 v{vt[1]}, 40, v{vR4}")
    E(f"v_lshl_add_u32 v{vt[1]}, v{vGam}, 3, v{vt[1]}")
    E(f"v_and_b32 v{vt[2]}, 1, v{vL}")
    E(f"v_cmp_eq_u32 vcc, v{vt[2]}, v{vHH}")
    for i, sp in enumerate((sP, sPQ)):
        E(f"s_and_b32 s{sT0}, s{sp}, 1")
        E(f"s_mul_i32 s{sT0}, s{sT0}, 1600")
        E(f"v_add3_u32 v{vt[3]}, v{vt[0]}, v{vt[1]}, s{sT0}")
        E(f"v_mov_b32 v{vPa[i]}, 3200")
        E(f"v_cndmask_b32 v{vPa[i]}, v{vPa[i]}, v{vt[3]}, vcc")
    E(f"v_lshlrev_b32 v{vPhi+1}, 2, v0")
    E(f"v_mov_b32 v{TM+4}, 0")
    for i in range(2):
        for t in range(2):
            E(f"v_mov_b32 v{PF+24*i+16+4*t+2}, 0"); E(f"v_mov_b32 v{PF+24*i+16+4*t+3}, 0")
    E(f"v_mul_u32_u24 v{vPk}, 80, v{vL}")
    E(f"v_add_u32 v{vPk}, s{sXR}, v{vPk}")
    E(f"v_mul_u32_u24 v{vVw}, 48, v{vL}")
    E(f"v_add_u32 v{vVw}, s{sXR}, v{vVw}")
    E(f"v_lshl_add_u32 v{vt[0]}, v{vHH}, 3, v{vR4}")
    E(f"v_bfe_u32 v{vt[1]}, v{vL}, 4, 1")
    E(f"v_lshlrev_b32 v{vt[1]}, 2, v{vt[1]}")
    E(f"v_and_b32 v{vt[2]}, 1, v{vL}")
    E(f"v_lshl_add_u32 v{vt[2]}, v{vt[2]}, 1, v{vt[1]}")
    E(f"v_bfe_u32 v{vt[3]}, v{vL}, 1, 1")
    E(f"v_add_u32 v{vt[2]}, v{vt[2]}, v{vt[3]}")
    E(f"v_mul_u32_u24 v{vA}, 80, v{vt[0]}")
    E(f"v_lshl_add_u32 v{vA}, v{vt[2]}, 3, v{vA}")
    E(f"s_mul_i32 s{sT0}, s{sH}, 2560")
    E(f"s_lshl_b32 s{sT1}, s{sFT}, 6")
    E(f"s_add_u32 s{sT0}, s{sT0}, s{sT1}")
    E(f"s_add_u32 s{sT0}, s{sT0}, {XR}")
    E(f"v_add_u32 v{vA}, s{sT0}, v{vA}")
    E(f"v_and_b32 v{vt[2]}, 3, v{vL}")
    E(f"v_add_u32 v{vt[2]}, v{vt[2]}, v{vt[1]}")
    E(f"v_mul_u32_u24 v{vB}, 48, v{vt[0]}")
    E(f"v_lshl_add_u32 v{vB}, v{vt[2]}, 3, v{vB}")
    E(f"s_mul_i32 s{sT0}, s{sH}, 1536")
    E(f"s_add_u32 s{sT0}, s{sT0}, {XR+5120}")
    E(f"v_add_u32 v{vB}, s{sT0}, v{vB}")
    E(f"v_and_b32 v{vt[0]}, 31, v{vL}")
    E(f"s_lshl_b32 s{sT0}, s{sH}, 4")
    E(f"v_add_u32 v{vt[1]}, s{sT0}, v{vt[0]}")
    E(f"v_subrev_u32 v{vt[2]}, 20, v{vt[1]}")
    E(f"v_min_u32 v{vt[1]}, v{vt[1]}, v{vt[2]}")
    E(f"v_cmp_gt_u32 vcc, 20, v{vt[0]}")
    E(f"v_mov_b32 v{vt[3]}, 0x4000000")
    E(f"v_cndmask_b32 v{vt[1]}, v{vt[0]}, v{vt[1]}, vcc")
    E(f"v_lshlrev_b32 v{vt[1]}, 4, v{vt[1]}")
    E(f"v_cmp_gt_u32 vcc, 24, v{vt[0]}")
    E(f"s_cmp_eq_u32 s{sFT}, 0")
    E(f"s_mov_b32 s9, 0x4000000")
    E(f"s_cselect_b32 s{sT0}, 384, s9")
    E(f"s_cselect_b32 s{sT1}, 768, s9")
    E(f"v_cndmask_b32 v{vt[1]}, v{vt[3]}, v{vt[1]}, vcc")
    E(f"v_mul_lo_u32 v{vS1}, v{vHH}, s{sT0}")
    E(f"v_add_u32 v{vS1}, v{vS1}, v{vt[1]}")
    E(f"v_add_u32 v{vS2}, s{sT1}, v{vS1}")
    E(f"s_mul_i32 s{sT0}, s{sH}, 1920")
    E(f"s_mul_i32 s{sT1}, s{sFT}, 1536")
    E(f"s_add_u32 s{sPS}, s{sPS}, s{sT0}")
    E(f"s_add_u32 s{sPS}, s{sPS}, s{sT1}")
    E(f"v_min_u32 v{vPi}, 239, v0")
    E(f"v_lshlrev_b32 v{vPi}, 4, v{vPi}")
    E(f"v_bfe_u32 v{vt[0]}, v{vL}, 3, 2")
    E(f"v_and_b32 v{vt[1]}, 3, v{vL}")
    E(f"v_lshl_add_u32 v{vt[0]}, v{vt[0]}, 2, v{vt[1]}")
    E(f"v_mul_u32_u24 v{vt[1]}, 1920, v{vHH}")
    E(f"v_lshl_add_u32 v{vt[2]}, v{vt[0]}, 4, v{vt[1]}")
    E(f"v_add_u32 v{vt[2]}, {KVT}, v{vt[2]}")
    E(f"v_bfe_u32 v{vt[1]}, v{vL}, 2, 1")
    E(f"v_cmp_eq_u32 vcc, v{vt[1]}, v{vHH}")
    E(f"v_mov_b32 v{vKa}, {ZKV}")
    E(f"v_cndmask_b32 v{vKa}, v{vKa}, v{vt[2]}, vcc")
    E(f"v_cndmask_b32 v{vt[0]}, 64, v{vt[0]}, vcc")
    E(f"v_and_b32 v{vt[1]}, 1, v{vt[0]}")
    E(f"v_lshlrev_b32 v{vt[1]}, 4, v{vt[1]}")
    E(f"v_mov_b32 v{vt[2]}, 0x3f80")
    E(f"v_lshlrev_b32 v{vt[1]}, v{vt[1]}, v{vt[2]}")
    E(f"v_lshrrev_b32 v{vt[0]}, 1, v{vt[0]}")
    for i in range(4):
        E(f"v_cmp_eq_u32 vcc, {i}, v{vt[0]}")
        E(f"v_cndmask_b32 v{ID+i}, 0, v{vt[1]}, vcc")
    E(f"v_and_b32 v{vt[1]}, 1, v{vG}")
    E(f"v_mul_u32_u24 v{vt[1]}, 20480, v{vt[1]}")
    E(f"v_lshl_add_u32 v{vt[1]}, v{vC}, 4, v{vt[1]}")
    E(f"v_mul_u32_u24 v{vO1}, 768, v{vHH}")
    E(f"v_add_u32 v{vO1}, v{vO1}, v{vt[1]}")
    E(f"v_lshl_add_u32 v{vO3}, v{vHH}, 26, v{vt[1]}")
    E(f"s_lshl_b32 s{sT0}, s{sR}, 2")
    E(f"s_add_u32 s{sT0}, s{sT0}, s{sW}")
    E(f"s_mul_i32 s{sT0}, s{sT0}, 40960")
    E(f"s_mul_i32 s{sT1}, s{sPQ}, 1280")
    E(f"s_add_u32 s{sT0}, s{sT0}, s{sT1}")
    E(f"s_add_u32 s{sOS}, s{sT0}, {G.O_BASE}")
    E(f"v_lshlrev_b32 v{vC4}, 2, v{vC}")
    E(f"s_lshl_b32 s{sFO}, s{sTBo}, 3")
    E(f"s_add_u32 s{sFO}, s{sFO}, s{sCT}")
    E(f"s_lshl_b32 s{sFO}, s{sFO}, 2")
    E(f"s_add_u32 s{sFO}, s{sFO}, s{sW}")
    E(f"s_lshl_b32 s{sFO}, s{sFO}, 7")
    E(f"s_add_u32 s{sFO}, s{sFO}, {G.FLAGO_BASE}")
    E(f"s_mul_i32 s{sOL}, s{sTBo}, 81920")
    E(f"s_mul_i32 s{sT0}, s{sW}, 5120")
    E(f"s_add_u32 s{sOL}, s{sOL}, s{sT0}")
    E(f"s_add_u32 s{sOL}, s{sOL}, {G.O_BASE}")
    E(f"s_lshl_b32 s{sWL}, s{sCT}, 2")
    E(f"s_add_u32 s{sWL}, s{sWL}, s{sW}")
    E(f"s_mul_i32 s{sWL}, s{sWL}, 25600")
    E(f"s_add_u32 s{sWL}, s{sWL}, {G.PWO_BASE}")
    E(f"v_mul_u32_u24 v{vRw}, 160, v{vC}")
    E(f"v_mul_u32_u24 v{vt[1]}, 40, v{vG}")
    E(f"s_mul_i32 s93, s{sW}, 2560")
    E(f"s_add_u32 s{sT0}, s93, 30720")
    E(f"v_add3_u32 v{vRw}, v{vRw}, v{vt[1]}, s{sT0}")
    for m in range(3):
        E(f"v_add_u32 v{vt[0]}, {64*m}, v{vL}")
        E(div_const(vt[1], vt[0], 10))
        E(f"v_mul_u32_u24 v{vt[1]}, 2400, v{vt[1]}")
        E(f"v_lshl_add_u32 v{vSo[m]}, v{vt[0]}, 4, v{vt[1]}")
    E(f"s_add_u32 s22, s{sW}, s{sCT}")
    E(f"s_and_b32 s22, s22, 3")
    E(f"s_lshl_b32 s{sOUT}, s{sTBo}, 2")
    E(f"s_add_u32 s{sOUT}, s{sOUT}, s22")
    E(f"s_mul_i32 s{sOUT}, s{sOUT}, {16*2560}")
    E(f"s_mul_i32 s{sT1}, s{sCT}, 160")
    E(f"s_add_u32 s{sOUT}, s{sOUT}, s{sT1}")
    E(f"s_lshl_b32 s{sF1}, s{sP}, 13")
    E(G.word_off(sF1, sR, 2, sT1))
    E(f"s_add_u32 s{sF1}, s{sF1}, {G.FLAGW_BASE}")
    E(f"s_lshl_b32 s{sFP}, s{sPQ}, 4")
    E(f"s_add_u32 s{sFP}, s{sFP}, s{sR}")
    E(f"s_lshl_b32 s{sFP}, s{sFP}, 9")
    E(f"s_add_u32 s{sFP}, s{sFP}, {G.FLAGW_BASE}")
    E(f"s_lshl_b32 s{sF2}, s{sR}, 1")
    E(f"s_add_u32 s{sF2}, s{sF2}, s{sFT}")
    E(f"s_lshl_b32 s{sF2}, s{sF2}, 12")
    E(G.word_off(sF2, sPQ, 2, sT1))
    E(f"s_add_u32 s{sF2}, s{sF2}, {G.FLAGO_BASE}")
    E(f"s_lshl_b32 s{sT1}, s{sW}, 7")
    E(f"s_add_u32 s{sFP}, s{sT1}, s{sFP}")
    for sa in (sFP, sFO): E(f"s_buffer_load_dword s23, s[{rWS}:{rWS+3}], s{sa} glc")
    vCo = TM + 15
    E(f"s_mul_i32 s{sT0}, s{sW}, 20")
    E(f"v_min_u32 v{vt[0]}, 19, v{vL}")
    E(f"v_add_u32 v{vt[0]}, s{sT0}, v{vt[0]}")
    E(f"v_lshrrev_b32 v{vt[1]}, 3, v{vt[0]}")
    E(f"v_and_b32 v{vt[0]}, 7, v{vt[0]}")
    E(f"v_lshlrev_b32 v{vt[0]}, 2, v{vt[0]}")
    E(f"v_lshl_add_u32 v{vCo}, v{vt[1]}, 7, v{vt[0]}")
    E(f"s_mov_b32 s{sFC}, {G.FLAGC_BASE}")
    sWk = [16, 17, 18, 19, 20]; sKo = [40, 41, 42, 43, 44]
    E(f"s_and_b32 s{sT0}, s{sTBo}, 3")
    for k in range(5):
        E(f"s_lshl_b32 s{sKo[k]}, s{sT0}, 10")
        E(f"s_mul_i32 s{sWk[k]}, s{sT0}, 5120")
        E(f"s_add_u32 s{sWk[k]}, s{sWk[k]}, s{sWL}")
        if k < 4:
            E(f"s_add_u32 s{sT0}, s{sT0}, 1")
            E(f"s_cmp_eq_u32 s{sT0}, 5")
            E(f"s_cselect_b32 s{sT0}, 0, s{sT0}")

    def rdW(sig, ks):
        b = WF + 16 * (ks % 2)
        return [f"ds_read_b64_tr_b16 {v(b+4*T+2*a,2)}, v{vWt[T]} offset:{wslot(sig) + 4096*ks + 240*a}" for T in range(4) for a in range(2)]
    def rdX(sig):
        return [f"ds_read_b128 {v(XF+16*(sig%2)+4*j,4)}, v{vXrs[j]} offset:{4096*(sig%2)}" for j in range(4)]
    def mm(sig, ks):
        L = []
        for T in range(4):
            d = v(ACC + 16 * T, 16)
            if "--nomfma" in sys.argv:
                L.append(f"v_mov_b32 v{ACC+T}, v{WF+16*(ks%2)+4*T+3}"); continue
            if "--m16" in sys.argv:
                L.append(("group", [f"{M16} {v(ACC+16*T+4*(2*(ks%2)+e),4)}, {v(WF+16*(ks%2)+4*T,4)}, {v(XF+16*(sig%2)+4*((ks+e)%4),4)}, {v(ACC+16*T+4*(2*(ks%2)+e),4)}" for e in range(2)])); continue
            L.append(f"{M32} {d}, {v(WF+16*(ks%2)+4*T,4)}, {v(XF+16*(sig%2)+4*ks,4)}, {d if (sig or ks) else 0}")
        return L
    def weave(M, rd, vm):
        out = []
        n = (len(rd) + 2) // 3
        for i, x in enumerate(M):
            out.append(x)
            if i < 3: out += rd[n * i:n * (i + 1)]
            if i == 1 and len(vm) > 0: out.append(vm[0])
            if i == 3 and len(vm) > 1: out += vm[1:]
        return out
    wphi = [f"ds_write_b128 v{vPhi}, {v(TM,4)} offset:{TAB}", f"ds_write_b32 v{vPhi+1}, v{TM+4} offset:{TAB+4096}"]
    rphi = []
    for i in range(2):
        for c in range(3):
            for t in range(2):
                b = PF + 24 * i + 8 * c + 4 * t
                rphi.append(f"ds_read_b64_tr_b16 {v(b,2)}, v{vPa[i]} offset:{TAB + 320*c + 32*t}")
                if c < 2: rphi.append(f"ds_read_b64_tr_b16 {v(b+2,2)}, v{vPa[i]} offset:{TAB + 320*c + 160 + 32*t}")
    nld = f"buffer_load_dword v{vNon}, off, s[{rDBG}:{rDBG+3}], 0 sc1"
    cld = f"buffer_load_dword v{vFc}, v{vCo}, s[{rWS}:{rWS+3}], s{sFC} offen sc1"
    opois = [f"buffer_store_dwordx4 {v(PN,4)}, v{vO1}, s[{rWS}:{rWS+3}], s{sOS} offen sc1",
             f"buffer_store_dwordx4 {v(PN,4)}, v{vO1}, s[{rWS}:{rWS+3}], s{sOS} offen offset:256 sc1",
             f"buffer_store_dwordx4 {v(PN,4)}, v{vO3}, s[{rWS}:{rWS+3}], s{sOS} offen offset:512 sc1"]
    allpois = [f"buffer_store_dwordx4 {v(PN,4)}, v{vL16}, s[{rWS}:{rWS+3}], s95 offen sc1"] + opois[:2] + [("tag", opois[2], "pois")]
    if "--earlypois" in sys.argv: E(allpois)
    E.wait_vm("S0")
    E("s_barrier")
    E(rdX(0)); E(rdW(0, 0))
    w2 = dmaW(2)
    E(w2[:2])
    pendW = w2[2:]
    for sig in range(10):
        xn = dmaX(sig + 2) if sig + 2 < 10 else []
        extra = [[], [], []]
        if sig == 8:
            extra = [wphi, [], []]
            pendW = [("tag", nld, "nonce"), ("tag", cld, "cfl")]
            if "--earlypois" not in sys.argv: xn = allpois
        if sig == 9:
            extra = [rphi[:7], rphi[7:14], rphi[14:]]
        E(weave(mm(sig, 0), rdW(sig, 1) + extra[0], pendW))
        E(weave(mm(sig, 1), rdW(sig, 2) + extra[1], xn[:2]))
        E(weave(mm(sig, 2), rdW(sig, 3) + extra[2], xn[2:]))
        if sig < 9:
            E.wait_vm(f"S{sig+1}")
            E.wait_lg()
            E("s_barrier")
            wn = dmaW(sig + 3) if sig + 3 < 10 else []
            E(weave(mm(sig, 3), rdX(sig + 1)[:1] + rdW(sig + 1, 0) + rdX(sig + 1)[1:], wn[:2]))
            pendW = wn[2:]
        else:
            E(mm(sig, 3))
    ST(E, "gemm")
    if "--gemmonly" in sys.argv:
        ST.dump(E, sW, ACC)
        E("s_endpgm")
        return ST

    def acc(sec, j):
        for T in range(4):
            for g_, e in enumerate(TA[T]):
                if e == (sec, j): return ACC + 16 * T + 4 * g_
    QB = XF
    PD = WF
    EE = TM
    def pack(sec, dst):
        return [f"v_cvt_pk_bf16_f32 v{dst+2*j+e}, v{acc(sec,j)+2*e}, v{acc(sec,j)+2*e+1}" for j in range(5) for e in range(2)]
    def premm(qb, i):
        L = []
        for c in range(3):
            for t in range(2):
                d = v(PD + 16 * t, 16)
                L.append(f"{M32} {d}, {v(PF+24*i+8*c+4*t,4)}, {v(qb+4*c,4)}, {d if c else 0}")
        return L
    def softmax(out_plus, out_minus, after_plus):
        PP = PD
        mx, mn, m = MP, vMn, MP
        L = [f"v_max3_f32 v{mx}, v{PP}, v{PP+1}, v{PP+2}", f"v_min3_f32 v{mn}, v{PP}, v{PP+1}, v{PP+2}"]
        for i in range(3, 19, 2):
            L += [f"v_max3_f32 v{mx}, v{mx}, v{PP+i}, v{PP+i+1}", f"v_min3_f32 v{mn}, v{mn}, v{PP+i}, v{PP+i+1}"]
        L += [f"v_max_f32 v{mx}, v{mx}, v{PP+19}", f"v_min_f32 v{mn}, v{mn}, v{PP+19}"]
        for sgn, dst, src, outp in ((1, EE, mx, out_plus), (-1, PP, mn, out_minus)):
            L.append(f"v_mul_f32 v{m}, s94, v{src}")
            for i in range(20):
                L.append(f"v_fma_f32 v{dst+i}, v{PP+i}, s94, -v{m}" if sgn > 0 else f"v_fma_f32 v{dst+i}, -v{PP+i}, s94, v{m}")
            for i in range(20):
                L.append(f"v_exp_f32 v{dst+i}, v{dst+i}")
                if i == 2: L.append(f"v_add_f32 v{m}, v{dst}, v{dst+1}")
                if i > 2: L.append(f"v_add_f32 v{m}, v{m}, v{dst+i-1}")
            L += [f"v_add_f32 v{m}, v{m}, v{dst+19}", f"v_rcp_f32 v{m}, v{m}"]
            for i in range(10):
                L.append(f"v_mul_f32 v{dst+2*i}, v{m}, v{dst+2*i}")
                L.append(f"v_mul_f32 v{dst+2*i+1}, v{m}, v{dst+2*i+1}")
                L.append(f"v_cvt_pk_bf16_f32 v{outp+i}, v{dst+2*i}, v{dst+2*i+1}")
            if sgn > 0: L += after_plus
        return L
    E(f"v_mov_b32 v{QB+10}, 0"); E(f"v_mov_b32 v{QB+11}, 0")
    E(pack(1, QB))
    VP = XF + 12
    QB2 = TM + 20
    side = pack(2, VP) + [f"v_mov_b32 v{VP+10}, 0x3f80", f"v_mov_b32 v{VP+11}, 0"] + \
           [f"ds_write_b128 v{vVw}, {v(VP+4*i,4)} offset:{5120+16*i}" for i in range(3)] + \
           pack(0, QB2) + [f"v_mov_b32 v{QB2+10}, 0", f"v_mov_b32 v{QB2+11}, 0"]
    E(merge(premm(QB, 0), side[:15])); E(side[15:])
    G.nonce_get(E, nld, vNon)
    spin(E, ["s_sleep 2", cld], [f"v_cmp_ne_u32 vcc, s{sN}, v{vFc}"], "cfl")
    WOr = [ACC + 4 * i for i in range(16)] + [vXo[0], vWo[0], vWt[0]] + [XF + 20 + 4 * i for i in range(3)] + [TM + 4 * i for i in range(3)]
    assert all(r % 4 == 0 for r in WOr)
    vL4k = vVw
    NW1, NW2 = [int(x) for x in ([a[5:] for a in sys.argv if a.startswith('--wo=')] + ['10,10'])[0].split(',')]
    E(f"v_add_u32 v{vL4k}, 4096, v{vL16}")
    def wo_ld(i):
        k, T = divmod(i, 5)
        return f"buffer_load_dwordx4 {v(WOr[i],4)}, v{vL16 if T < 4 else vL4k}, s[{rWS}:{rWS+3}], s{sWk[k]} offen offset:{1024*(T%4)} sc1"
    PHK = XF + 12
    smk = softmax(PHK, PHK + 10, [f"ds_write_b128 v{vPk}, {v(PHK,4)}", f"ds_write_b128 v{vPk}, {v(PHK+4,4)} offset:16"])
    E(merge(smk[:8*NW1], [wo_ld(i) for i in range(NW1)])); E(smk[8*NW1:])
    for i in range(2, 5): E(f"ds_write_b128 v{vPk}, {v(PHK+4*i,4)} offset:{16*i}")
    ST(E, "phik")
    E(premm(QB2, 1))
    E.wait_vm("pois")
    E.wait_lg()
    E("s_barrier")
    KQ = [PF + 4 * i for i in range(12)] + [TM + 20 + 4 * i for i in range(4)]
    KD = XF
    def rdk(i):
        j, k2 = divmod(i, 2)
        L = []
        for a in range(2):
            L.append(f"ds_read_b64_tr_b16 {v(KQ[2*i]+2*a,2)}, v{vA} offset:{8192*j + 80*(16*k2+4*a)}")
        for a in range(2):
            L.append(f"ds_read_b64_tr_b16 {v(KQ[2*i+1]+2*a,2)}, v{vB} offset:{8192*j + 48*(16*k2+4*a)}")
        return L
    E(rdk(0) + rdk(1) + rdk(2))
    for i in range(8):
        if i + 3 < 8: E(rdk(i + 3))
        d = v(KD, 16)
        E(f"{M32} {d}, {v(KQ[2*i],4)}, {v(KQ[2*i+1],4)}, {d if i else 0}")
    SFL = 60
    PH = XF
    smq = softmax(PH, PH + 10, [])
    E(smq[:10])
    KP = XF + 16
    for i in range(8):
        E(f"v_cvt_pk_bf16_f32 v{KP+i}, v{KD+2*i}, v{KD+2*i+1}")
        E(f"v_min_u32 v{KP+i}, -2, v{KP+i}")
        if i == 3: E(f"buffer_store_dwordx4 {v(KP,4)}, v{vS1}, s[{rWS}:{rWS+3}], s{sPS} offen sc1")
    E(f"buffer_store_dwordx4 {v(KP+4,4)}, v{vS2}, s[{rWS}:{rWS+3}], s{sPS} offen sc1")
    vPu = vA
    def push(cond, mask, saddr):
        skip = newlabel("nopush")
        E(cond)
        E(f"s_cbranch_scc1 {skip}")
        E(f"s_mov_b64 exec, {mask}")
        E.raw(f"    buffer_store_dword v{vNon}, v{vPu}, s[{rWS}:{rWS+3}], s{saddr} offen sc1")
        E("s_mov_b64 exec, -1")
        E.label(skip)
    E(f"v_lshlrev_b32 v{vPu}, 9, v{vL}")
    push(f"s_cmp_lg_u32 s{sW}, 0", 0xffff, sF1)
    ST(E, "T0")
    PLr = KQ
    pld = []
    E(f"s_and_b32 s21, s{sR}, 3")
    E(f"s_lshl_b32 s21, s21, 14")
    E(f"s_add_u32 s21, s21, s{sPL}")
    for r in range(16):
        pld.append(f"s_xor_b32 s9, s21, {G.P_PITCH*r}")
        pld.append(f"buffer_load_dwordx4 {v(PLr[r],4)}, v{vPi}, s[{rWS}:{rWS+3}], s9 offen sc1")
    pg = [("group", [pld[2*r], ("tag", pld[2*r+1], "part")]) for r in range(16)]
    E(merge(smq[10:-40], [wo_ld(i) for i in range(NW1, NW2)]))
    E(G.sflag_loads(sFP, 1, 4, SFL))
    E(smq[-40:])
    ok1 = newlabel("f1ok")
    E.wait_lg()
    E(G.sflag_check(4, SFL))
    E(f"s_cbranch_scc0 {ok1}")
    G.sflag_wait(E, sFP, 1, 4, SFL)
    E.label(ok1)
    E("s_barrier")
    ST(E, "f1ok")
    E(pg)
    ST(E, "phiq")
    RD_ = WF
    vCk = MP
    def reduce_items():
        L = []
        for r in range(16):
            d = v(RD_, 16); p = PLr[r]
            L.append(f"{M32} {d}, {v(ID,4)}, {v(p,4)}, {d if r else 0}")
            L.append(f"v_max3_u32 v{vCk}, v{p}, v{p+1}, {'v%d' % vCk if r else 0}")
            L.append(f"v_max3_u32 v{vCk}, v{p+2}, v{p+3}, v{vCk}")
        L.append(f"v_cmp_eq_u32 vcc, -1, v{vCk}")
        return L
    def retry(loads, check):
        ok = newlabel("rok"); sp = newlabel("rsp")
        E(f"s_cbranch_vccz {ok}")
        E.raw("    s_mov_b32 s13, 0")
        E.label(sp)
        for t in ["s_sleep 2"] + loads + ["s_add_u32 s13, s13, 1", f"s_cmp_gt_u32 s13, {G.SPIN_MAX}", f"s_cbranch_scc1 {ok}", "s_waitcnt vmcnt(0)"] + check + [f"s_cbranch_vccnz {sp}"]:
            E.raw("    " + t)
        E.label(ok)
    E(reduce_items())
    retry(pld, reduce_items())
    ST(E, "part")
    SM = WF + 16
    for e in range(4): E(f"v_cvt_pk_bf16_f32 v{SM+e}, v{RD_+2*e}, v{RD_+2*e+1}")
    E(f"ds_write_b128 v{vPi}, {v(SM,4)} offset:{KVT}")
    E.wait_lg()
    E("s_barrier")
    OD = WF
    AF = PF
    fo = [(c, t) for c in range(5) for t in (1, 0)]
    for i, (c, t) in enumerate(fo): E(f"ds_read_b128 {v(AF+4*i,4)}, v{vKa} offset:{384*c + 256*t}")
    sTile = [72, 73, 74, 75]
    vOk = [vPk, vS1, vS2, vPi, vMn]
    pre = []
    for i in range(4):
        pre += [("group", [f"s_add_u32 s9, s22, {i+1}", f"s_and_b32 s9, s9, 3", f"s_mul_i32 s{sTile[i]}, s9, 20480", f"s_add_u32 s{sTile[i]}, s{sTile[i]}, s{sOL}",
                f"s_cmp_ge_u32 s9, 2", f"s_cselect_b32 s8, 18432, 0", f"s_mul_i32 s9, s9, 15360", f"s_add_u32 s9, s9, s8",
                f"v_add_u32 v{vXrs[i]}, s9, v{vL16}"])]
    pre += [("group", [f"v_add_u32 v{vOk[k]}, s{sKo[k]}, v{vL16}" for k in range(5)])]
    om = []
    for i, (c, t) in enumerate(fo):
        d = v(OD + 16 * t, 16)
        om.append(f"{M32} {d}, {v(AF+4*i,4)}, {v(PH+4*c,4)}, {d if c else 0}")
    E(merge(om, pre))
    E(f"v_add_f32 v{MP}, {f32(1e-6)}, v{OD+20}")
    E(f"v_rcp_f32 v{MP}, v{MP}")
    OP = TM + 20
    for i in (8, 9, 0, 1, 2, 3, 4, 5, 6, 7):
        E(f"v_mul_f32 v{OD+2*i}, v{MP}, v{OD+2*i}"); E(f"v_mul_f32 v{OD+2*i+1}, v{MP}, v{OD+2*i+1}")
        E(f"v_cvt_pk_bf16_f32 v{OP+i}, v{OD+2*i}, v{OD+2*i+1}")
        E(f"v_min_u32 v{OP+i}, -2, v{OP+i}")
        if i == 0:
            E(f"v_permlane32_swap_b32 v{OP+8}, v{OP+10}"); E(f"v_permlane32_swap_b32 v{OP+9}, v{OP+11}")
            E(f"buffer_store_dwordx4 {v(OP+8,4)}, v{vO3}, s[{rWS}:{rWS+3}], s{sOS} offen offset:512 sc1")
        if i == 3: E(f"buffer_store_dwordx4 {v(OP,4)}, v{vO1}, s[{rWS}:{rWS+3}], s{sOS} offen sc1")
    E(f"buffer_store_dwordx4 {v(OP+4,4)}, v{vO1}, s[{rWS}:{rWS+3}], s{sOS} offen offset:256 sc1")
    push(f"s_cmp_lg_u32 s{sH}, 0", 0xff, sF2)
    ST(E, "opub")
    for i in range(NW2, 25): E(wo_ld(i))
    OFr = [PF + 4 * i for i in range(12)] + [WF + 4 * i for i in range(8)]
    OA = [[XF + 4 * T for T in range(5)], [TM + 12 + 4 * T for T in range(5)]]
    G.sflag_wait(E, sFO, 1, 4, SFL)
    ST(E, "f2ok")
    def o_ld(i):
        return [f"buffer_load_dwordx4 {v(OFr[5*i+k],4)}, v{vOk[k]}, s[{rWS}:{rWS+3}], s{sTile[i]} offen sc1" for k in range(5)]
    for i in range(4):
        for t in o_ld(i): E(t, tag=f"of{i}")
    ST(E, "oreq")
    pend = []
    for i in range(4):
        rg = [OFr[5 * i + k] + e for k in range(5) for e in range(4)]
        chk = [f"v_max_u32 v{MP}, v{rg[0]}, v{rg[1]}"] + [f"v_max3_u32 v{MP}, v{MP}, v{rg[e]}, v{rg[e+1]}" for e in range(2, 20, 2)] + [f"v_cmp_eq_u32 vcc, -1, v{MP}"]
        E(chk)
        retry(sum([o_ld(k) for k in range(i, 4)], []), chk)
        if i == 0: ST(E, "ofr")
        M = []
        for k in range(5):
            for T in range(5):
                d = v(OA[i % 2][T], 4)
                M.append(f"{M16} {d}, {v(WOr[5*k+T],4)}, {v(OFr[5*i+k],4)}, {d if k else 0}")
        E(M[:6]); E(merge(M[6:], pend))
        pend = [f"ds_write_b128 v{vXrs[i]}, {v(OA[i%2][T],4)} offset:{5120*i + 1024*T}" for T in range(5)] if i < 3 else []
    ST(E, "ogemm")
    E.wait_lg()
    E("s_barrier")
    RR = ACC
    for j in range(3):
        for T in range(5): E(f"ds_read_b128 {v(RR+20*j+4*T,4)}, v{vXrs[3]} offset:{5120*j + 1024*T}")
    RP = PF
    for j in range(3):
        for T in range(5):
            for e in range(4): E(f"v_add_f32 v{OA[1][T]+e}, v{OA[1][T]+e}, v{RR+20*j+4*T+e}")
            if j == 2:
                E(f"v_cvt_pk_bf16_f32 v{RP+2*T}, v{OA[1][T]}, v{OA[1][T]+1}")
                E(f"v_cvt_pk_bf16_f32 v{RP+2*T+1}, v{OA[1][T]+2}, v{OA[1][T]+3}")
                E(f"ds_write_b64 v{vRw}, {v(RP+2*T,2)} offset:{8*T}")
    E(f"v_add_u32 v{vPk}, s93, v{vL16}")
    for m in range(3): E(f"ds_read_b128 {v(RP+12+4*m,4)}, v{vPk} offset:{30720 + 1024*m}")
    for m in range(3):
        if m == 2: E("s_mov_b32 exec_hi, 0")
        E(f"buffer_store_dwordx4 {v(RP+12+4*m,4)}, v{vSo[m]}, s[{rOUT}:{rOUT+3}], s{sOUT} offen")
    E("s_mov_b64 exec, -1")
    if G.PROFILE:
        E.wait_vm()
        ST(E, "end")
    ST.dump(E, sW, RP + 40)
    E("s_endpgm")
    return ST
```

```python
import math, sys
from asmlib import *
M16 = "v_mfma_f32_16x16x32_bf16"

def gen_B(E, G):
    f32, f32val, Alloc, srd, spin, newlabel, cmul, zipl = G.f32, G.f32val, G.Alloc, G.srd, G.spin, G.newlabel, G.cmul, G.zipl
    rWS, rOUT, rDBG, rIN = G.rWS, G.rOUT, G.rDBG, G.rIN
    sN = G.sN
    G.fresh(E)
    ST = G.Stamps(84)
    sW, sCG, sD, sTB, sCB, sSC, sKT, sT0, sT1, sT2 = 76, 77, 78, 79, 80, 81, 82, 4, 5, 6
    sUS, sUT, sFU, sFUp, sFY, sFYp, sUI, sYS, sYL, sYO = 64, 65, 66, 67, 68, 69, 70, 71, 72, 73
    U_IMG = 2048; KT_BASE = 18432; KT_SZ = 2560; SC_BASE = 28672; SC_SZ = 11 * 1040
    Y_OFF = 6144; Y_PITCH = SC_SZ + 144
    SIG_SZ = 2176
    A = Alloc(1, 256)
    vL = A(); vG = A(); vC = A()
    vt = [A() for _ in range(8)]
    big = A(160, 4)
    KG = A(32, 4)
    BN = A(8, 4)
    E("s_setprio 3")
    E(f"v_and_b32 v{vL}, 63, v0")
    E(f"v_lshrrev_b32 v{vt[0]}, 6, v0")
    E(f"v_lshrrev_b32 v{vG}, 4, v{vL}")
    E(f"v_readfirstlane_b32 s{sW}, v{vt[0]}")
    E(f"v_and_b32 v{vC}, 15, v{vL}")
    E(f"s_mov_b32 s{sCG}, s2")
    E(f"s_lshl_b32 s{sD}, s{sCG}, 2")
    E(f"s_add_u32 s{sD}, s{sD}, s{sW}")
    E(f"s_mul_hi_u32 s{sTB}, s2, 0x33333334")
    E(f"s_mul_i32 s{sT0}, s{sTB}, 5")
    E(f"s_sub_u32 s{sCB}, s2, s{sT0}")
    vPo = vt[2]; vSo = A(); vL16 = A()
    SLAB = int(([a[7:] for a in sys.argv if a.startswith('--slab=')] + ['1'])[0])
    def slab_in():
        if "--xnomem" in sys.argv: return
        E("s_setprio 3")
        for i in range(4):
            E(f"s_add_u32 m0, s{sUS}, {1024*i}")
            E(f"s_add_u32 s{sT1}, s74, {4*1280*i}")
            E(f"buffer_load_dwordx4 v{vSo}, s[{rIN}:{rIN+3}], s{sT1} offen lds", tag="slab")
        E(f"s_setprio {G.BPRIO}")
    E(f"s_lshl_b32 s{sT0}, s{sD}, 8")
    E(f"v_lshl_add_u32 v{vPo}, v{vL}, 2, s{sT0}")
    E(f"s_lshl_b32 s{sT0}, s{sD}, 1")
    E(f"v_mov_b32 v{vt[1]}, s{sT0}")
    E(f"v_mul_u32_u24 v{vSo}, 1280, v{vG}")
    E(f"v_lshl_add_u32 v{vSo}, v{vC}, 4, v{vSo}")
    E(f"s_lshl_b32 s{sT0}, s{sTB}, 2")
    E(f"s_add_u32 s{sT0}, s{sT0}, s{sW}")
    E(f"s_mul_i32 s{sYO}, s{sT0}, {16*2560}")
    E(f"s_mul_i32 s{sT0}, s{sT0}, {16*1280}")
    E(f"s_lshl_b32 s{sT1}, s{sCB}, 8")
    E(f"s_add_u32 s74, s{sT0}, s{sT1}")
    E(f"s_add_u32 s{sYO}, s{sYO}, s{sT1}")
    E(f"s_add_u32 s{sYO}, s{sYO}, 1280")
    E(f"s_lshl_b32 s{sUS}, s{sW}, 12")
    E(f"s_add_u32 s{sUS}, s{sUS}, {U_IMG}")
    E.wait_lg()
    ST(E, "start")
    P = [big + 124 + i for i in range(8)]
    if "--noB0" not in sys.argv:
        E(f"global_load_ushort v{P[6]}, v{vt[1]}, s[{G.pLDT}:{G.pLDT+1}]")
        for k, p in enumerate((G.pARE, G.pAIM, G.pBRE, G.pBIM, G.pCRE, G.pCIM)):
            E(f"global_load_dword v{P[k]}, v{vPo}, s[{p}:{p+1}]")
        E(f"global_load_ushort v{P[7]}, v{vt[1]}, s[{G.pDSK}:{G.pDSK+1}]")
        srd(E, rIN, G.pU, 2621440)
        if SLAB in (0, 3): slab_in()
    srd(E, rDBG, G.pDBG, 256)
    skip = newlabel("nonce")
    E(f"s_or_b32 s{sT0}, s2, s{sW}")
    E(f"s_cbranch_scc1 {skip}")
    E.raw("    s_or_b32 s10, s10, 1")
    E.raw(f"    v_mov_b32 v{vt[0]}, s10")
    E.raw("    s_mov_b64 exec, 1")
    E.raw(f"    buffer_store_dword v{vt[0]}, off, s[{rDBG}:{rDBG+3}], 0 sc1")
    E.raw("    s_mov_b64 exec, -1")
    E.label(skip)
    srd(E, rWS, G.pWS, G.WS_SIZE)
    if "--noB0" in sys.argv:
        ST.dump(E, sW, big)
        E("s_endpgm")
        return ST
    srd(E, rOUT, G.pOUT, 5242880)
    E(f"s_setprio {G.BPRIO}")
    E(f"s_mul_i32 s{sSC}, s{sW}, {SC_SZ}")
    E(f"s_add_u32 s{sSC}, s{sSC}, {SC_BASE}")
    E(f"s_mul_i32 s{sKT}, s{sW}, {KT_SZ}")
    E(f"s_add_u32 s{sKT}, s{sKT}, {KT_BASE}")
    E(f"v_lshlrev_b32 v{vL16}, 4, v{vL}")
    vZ = big + 132
    E(f"v_mov_b32 v{vZ}, 0"); E(f"v_mov_b32 v{vZ+1}, 0")
    E(f"v_lshlrev_b32 v{vt[0]}, 3, v0")
    E(f"ds_write_b64 v{vt[0]}, {v(vZ,2)}")
    E(f"v_min_u32 v{vt[0]}, 8, v{vC}")
    E(f"v_lshl_add_u32 v{vt[0]}, v{vt[0]}, 2, s{sKT}")
    TA_POS = 672; TB_POS = TA_POS + 272
    for o in (0, 2 * TA_POS, 2 * TB_POS): E(f"ds_write_b32 v{vt[0]}, v{vZ} offset:{o}")
    vLm = vt[7]
    E(f"v_lshlrev_b32 v{vt[0]}, 3, v{vG}")
    E(f"v_sub_u32 v{vLm}, v{vC}, v{vt[0]}")
    E(f"v_add_u32 v{vLm}, 33, v{vLm}")
    vLf = vt[6]; vK1 = vt[5]
    E(f"v_cvt_f32_u32 v{vLf}, v{vLm}")
    E(f"s_mov_b32 s7, 0x0202")
    E(f"s_mov_b32 s8, 0x10001")
    E(f"v_mov_b32 v{vK1}, 0x01000100")
    sel = {}; adr = {}
    for name, srep, js in (("d", 5, [3]), ("1", 9, [3, 2]), ("2", 17, [3, 2, 1, 0])):
        base = 32 * srep - 24
        vb = vt[2]
        for j in js:
            r = A(); sel[(name, j)] = r
            E(f"v_add_f32 v{vt[0]}, {f32(base + 7 - 2*j)}, v{vLf}")
            E(f"v_add_f32 v{vt[1]}, {f32(base + 6 - 2*j)}, v{vLf}")
            E(f"v_cvt_pk_bf16_f32 v{r}, v{vt[0]}, v{vt[1]}")
            if j == 3:
                E(f"v_lshrrev_b32 v{vt[3]}, 17, v{r}")
                E(f"v_lshlrev_b32 v{vt[3]}, 1, v{vt[3]}")
                E(f"v_mul_u32_u24 v{vb}, s8, v{vt[3]}")
                a = A(); adr[name] = a
                if name == "d":
                    E(f"v_and_b32 v{a}, -2, v{vLm}")
                    E(f"v_lshl_add_u32 v{a}, v{a}, 1, s{sKT}")
                    E(f"v_subrev_u32 v{a}, 16, v{a}")
                else:
                    E(f"v_lshl_add_u32 v{a}, v{vt[3]}, 1, s{sKT}")
                    E(f"v_subrev_u32 v{a}, {2*(0x4300-272)}, v{a}")
            E(f"v_sub_u32 v{r}, v{r}, v{vb}")
            E(f"v_mad_u32_u24 v{r}, v{r}, s7, v{vK1}")
    E(f"v_subrev_u32 v{vt[0]}, 9, v{vLm}")
    E(f"v_min_u32 v{vt[0]}, 31, v{vt[0]}")
    E(f"s_movk_i32 s7, 0x3f80")
    for bI, mask in enumerate((0x1ff << 15, 0x7f << 16)):
        E(f"s_mov_b32 s8, {mask}")
        E(f"v_lshrrev_b32 v{vt[1]}, v{vt[0]}, s8")
        for j in range(4):
            E(f"v_bfe_u32 v{vt[2]}, v{vt[1]}, {7-2*j}, 1")
            E(f"v_bfe_u32 v{vt[3]}, v{vt[1]}, {6-2*j}, 1")
            E(f"v_lshl_or_b32 v{vt[2]}, v{vt[3]}, 16, v{vt[2]}")
            E(f"v_mul_u32_u24 v{BN+4*bI+j}, s7, v{vt[2]}")
    aT = A(); aS = A(); aW = A()
    E(f"v_and_b32 v{vt[0]}, 1, v{vG}")
    E(f"v_lshrrev_b32 v{vt[1]}, 1, v{vG}")
    E(f"v_lshlrev_b32 v{vt[2]}, 3, v{vt[0]}")
    E(f"v_sub_u32 v{aT}, v{vC}, v{vt[2]}")
    E(f"v_add_u32 v{aT}, {TA_POS + 11}, v{aT}")
    E(f"v_and_b32 v{aT}, -2, v{aT}")
    E(f"v_mul_u32_u24 v{vt[2]}, 272, v{vt[1]}")
    E(f"v_add_u32 v{aT}, v{aT}, v{vt[2]}")
    E(f"v_lshl_add_u32 v{aT}, v{aT}, 1, s{sKT}")
    E(f"v_lshlrev_b32 v{aS}, 8, v{vt[0]}")
    E(f"v_lshl_add_u32 v{aS}, v{vC}, 3, v{aS}")
    E(f"v_mul_u32_u24 v{vt[2]}, {SIG_SZ - 16}, v{vt[1]}")
    E(f"v_add3_u32 v{aS}, v{aS}, v{vt[2]}, s{sSC}")
    E(f"v_lshlrev_b32 v{aW}, 5, v{vC}")
    E(f"v_lshl_add_u32 v{aW}, v{vG}, 3, v{aW}")
    E(f"v_add_u32 v{aW}, s{sSC}, v{aW}")
    vMa = A(); vMb = A(); vMw = A()
    E(f"v_lshlrev_b32 v{vt[0]}, 1, v{vL}")
    E(f"v_add_u32 v{vt[1]}, 256, v{vt[0]}")
    E(f"v_add_u32 v{vt[2]}, {496-32}, v{vt[0]}")
    E(f"v_cmp_lt_u32 vcc, 15, v{vL}")
    E(f"v_cndmask_b32 v{vt[1]}, v{vt[1]}, v{vt[2]}, vcc")
    E(f"v_add_u32 v{vt[2]}, {1008-80}, v{vt[0]}")
    E(f"v_cmp_lt_u32 vcc, 39, v{vL}")
    E(f"v_cndmask_b32 v{vt[1]}, v{vt[1]}, v{vt[2]}, vcc")
    E(f"v_cvt_f32_u32 v{vt[1]}, v{vt[1]}")
    E(f"v_add_f32 v{vt[2]}, 1.0, v{vt[1]}")
    E(f"v_cvt_pk_bf16_f32 v{vt[1]}, v{vt[1]}, v{vt[2]}")
    E(f"v_mov_b32 v{vt[2]}, {(0x4300-272)*0x10001}")
    E(f"v_cmp_lt_u32 vcc, 53, v{vL}")
    E(f"v_cndmask_b32 v{vt[1]}, v{vt[1]}, v{vt[2]}, vcc")
    E(f"s_sub_u32 s{sT0}, s{sKT}, {2*(0x4300-272)}")
    E(f"v_and_b32 v{vMa}, 0xffff, v{vt[1]}")
    E(f"v_lshl_add_u32 v{vMa}, v{vMa}, 1, s{sT0}")
    E(f"v_lshrrev_b32 v{vMb}, 16, v{vt[1]}")
    E(f"v_lshl_add_u32 v{vMb}, v{vMb}, 1, s{sT0}")
    E(f"v_lshl_add_u32 v{vMw}, v{vL}, 2, s{sKT}")
    a0 = [A(), A()]; a1 = [A(), A()]; a2 = A(); a3 = A()
    st = vt[2]
    E(f"v_lshlrev_b32 v{a0[0]}, 4, v{vC}")
    E(f"v_lshl_add_u32 v{a0[0]}, v{vG}, 3, v{a0[0]}")
    E(f"v_add_u32 v{a0[0]}, 32, v{a0[0]}")
    E(f"v_mov_b32 v{st}, 256")
    E(f"v_lshlrev_b32 v{vt[3]}, 3, v{vC}")
    E(f"v_add_u32 v{vt[3]}, 800, v{vt[3]}")
    E(f"v_mov_b32 v{vt[4]}, 128")
    E(f"v_cmp_eq_u32 vcc, 2, v{vG}")
    E(f"v_cndmask_b32 v{a0[0]}, v{a0[0]}, v{vt[3]}, vcc")
    E(f"v_cndmask_b32 v{st}, v{st}, v{vt[4]}, vcc")
    E(f"v_lshlrev_b32 v{vt[3]}, 2, v{vC}")
    E(f"v_add_u32 v{vt[3]}, 1056, v{vt[3]}")
    E(f"v_mov_b32 v{vt[5]}, 64")
    E(f"v_cmp_eq_u32 vcc, 3, v{vG}")
    E(f"v_cndmask_b32 v{a0[0]}, v{a0[0]}, v{vt[3]}, vcc")
    E(f"v_cndmask_b32 v{st}, v{st}, v{vt[5]}, vcc")
    E(f"v_cndmask_b32 v{a1[0]}, 4, v{vt[4]}, vcc")
    E(f"v_add_u32 v{a0[0]}, s{sKT}, v{a0[0]}")
    E(f"v_add_u32 v{a1[0]}, v{a0[0]}, v{a1[0]}")
    E(f"v_add_u32 v{a0[1]}, v{a0[0]}, v{st}")
    E(f"v_add_u32 v{a1[1]}, v{a1[0]}, v{st}")
    E(f"v_and_b32 v{vt[0]}, 1, v{vC}")
    E(f"v_mul_u32_u24 v{vt[0]}, 272, v{vt[0]}")
    E(f"v_lshrrev_b32 v{vt[1]}, 1, v{vC}")
    E(f"v_lshl_add_u32 v{vt[1]}, v{vG}, 6, v{vt[1]}")
    E(f"v_add3_u32 v{vt[0]}, v{vt[0]}, v{vt[1]}, {17}")
    E(f"v_lshl_add_u32 v{a2}, v{vt[0]}, 1, s{sKT}")
    E(f"v_lshl_add_u32 v{vt[0]}, v{vL}, 1, s{sKT}")
    E(f"v_subrev_u32 v{vt[0]}, {2*(TA_POS-656)}, v{vt[0]}")
    E(f"v_cmp_gt_u32 vcc, 2, v{vL}")
    E(f"v_cndmask_b32 v{a3}, v{a2}, v{vt[0]}, vcc")
    vTa = A(); vUo = A()
    E(f"v_and_b32 v{vt[0]}, 1, v{vG}")
    E(f"v_lshrrev_b32 v{vt[1]}, 1, v{vG}")
    E(f"v_lshrrev_b32 v{vt[2]}, 2, v{vC}")
    E(f"v_and_b32 v{vt[3]}, 3, v{vC}")
    E(f"v_lshl_add_u32 v{vTa}, v{vt[0]}, 3, v{vt[2]}")
    E(f"v_lshlrev_b32 v{vTa}, 8, v{vTa}")
    E(f"v_lshl_add_u32 v{vTa}, v{vt[1]}, 5, v{vTa}")
    E(f"v_lshl_add_u32 v{vTa}, v{vt[3]}, 3, v{vTa}")
    E(f"v_add_u32 v{vTa}, s{sUS}, v{vTa}")
    E(f"s_lshl_b32 s{sT0}, s{sTB}, 1")
    E(f"s_lshr_b32 s{sT1}, s{sW}, 1")
    E(f"s_add_u32 s{sT0}, s{sT0}, s{sT1}")
    E(f"v_add_u32 v{vt[3]}, s{sT0}, v{vt[3]}")
    E(f"v_and_b32 v{vt[3]}, 3, v{vt[3]}")
    E(f"v_lshl_add_u32 v{vUo}, v{vt[1]}, 2, v{vt[2]}")
    E(f"v_lshlrev_b32 v{vUo}, 14, v{vUo}")
    E(f"v_lshl_add_u32 v{vUo}, v{vt[0]}, 6, v{vUo}")
    E(f"v_lshl_add_u32 v{vUo}, v{vt[3]}, 4, v{vUo}")
    E(f"s_lshl_b32 s{sUT}, s{sCB}, 19")
    E(f"s_lshl_b32 s{sT1}, s{sTB}, 9")
    E(f"s_add_u32 s{sUT}, s{sUT}, s{sT1}")
    E(f"s_lshl_b32 s{sT1}, s{sW}, 7")
    E(f"s_add_u32 s{sUT}, s{sUT}, s{sT1}")
    E(f"s_add_u32 s{sYL}, s{sUT}, {G.YT_BASE}")
    assert G.UT_BASE == 0
    E(f"s_lshl_b32 s{sFU}, s{sCB}, 14")
    E(f"s_lshl_b32 s{sT1}, s{sTB}, 9")
    E(f"s_add_u32 s{sFYp}, s{sFU}, s{sT1}")
    E(f"s_add_u32 s{sFYp}, s{sFYp}, {G.FLAGY_BASE}")
    E(G.word_off(sFU, sTB, 3, sT1))
    E(f"s_add_u32 s{sFU}, s{sFU}, {G.FLAG_BASE}")
    E(f"s_lshl_b32 s{sFUp}, s{sCG}, 9")
    E(f"s_add_u32 s{sFUp}, s{sFUp}, {G.FLAG_BASE}")
    E(f"s_lshr_b32 s{sFY}, s{sCG}, 5")
    E(f"s_lshl_b32 s{sFY}, s{sFY}, 14")
    E(f"s_and_b32 s{sT0}, s{sCG}, 31")
    E(G.word_off(sFY, sT0, 3, sT1))
    E(f"s_add_u32 s{sFY}, s{sFY}, {G.FLAGY_BASE}")
    E(f"s_lshl_b32 s{sT1}, s{sW}, 7")
    E(f"s_add_u32 s{sFUp}, s{sFUp}, s{sT1}")
    E(f"s_add_u32 s{sFYp}, s{sFYp}, s{sT1}")
    E(f"s_lshl_b32 s{sUI}, s{sCG}, 14")
    E(f"s_lshl_b32 s{sT1}, s{sW}, 12")
    E(f"s_add_u32 s{sUI}, s{sUI}, s{sT1}")
    E(f"s_add_u32 s{sYS}, s{sUI}, {G.YT_BASE}")
    vPu = A()
    E(f"v_lshlrev_b32 v{vPu}, 9, v{vL}")
    for sa in (sFUp, sFYp): E(f"s_buffer_load_dword s93, s[{rWS}:{rWS+3}], s{sa} glc")
    PP2 = 1024 + 16
    vWa = A(); vRa = A(); vRb = A()
    E(f"v_add_u32 v{vWa}, s{sSC}, v{vL16}")
    E(f"v_lshrrev_b32 v{vt[0]}, 1, v{vC}")
    E(f"v_mul_u32_u24 v{vRa}, {PP2}, v{vt[0]}")
    E(f"v_and_b32 v{vt[0]}, 1, v{vC}")
    E(f"v_lshl_add_u32 v{vRa}, v{vt[0]}, 3, v{vRa}")
    E(f"v_lshl_add_u32 v{vRa}, v{vG}, 5, v{vRa}")
    E(f"v_add_u32 v{vRa}, s{sSC}, v{vRa}")
    E(f"v_add_u32 v{vRb}, {8*PP2}, v{vRa}")
    vTb = A()
    E(f"v_lshl_add_u32 v{vTb}, v{vC}, 1, v{vG}")
    E(f"v_add_u32 v{vTb}, 30, v{vTb}")
    L2E = math.log2(math.e); L2Eh = f32val(L2E); L2El = L2E - L2Eh
    I2P = 1 / (2 * math.pi); I2Ph = f32val(I2P); I2Pl = I2P - I2Ph
    vDt = vt[4]; vDsk = A(); vNon = A()
    E(f"s_mov_b32 s7, {f32(L2Eh)}")
    E(f"s_mov_b32 s8, {f32(I2Ph)}")
    E(f"v_lshlrev_b32 v{vt[0]}, 16, v{P[6]}")
    ST(E, "par")
    E(f"v_mul_f32 v{vt[1]}, s7, v{vt[0]}")
    E(f"v_fma_f32 v{vt[2]}, v{vt[0]}, s7, -v{vt[1]}")
    E(f"v_fmac_f32 v{vt[2]}, {f32(L2El)}, v{vt[0]}")
    E(f"v_exp_f32 v{vt[1]}, v{vt[1]}")
    E(f"v_mul_f32 v{vt[2]}, {f32(math.log(2))}, v{vt[2]}")
    E(f"v_fma_f32 v{vt[1]}, v{vt[1]}, v{vt[2]}, v{vt[1]}")
    E(f"v_cvt_pk_bf16_f32 v{vt[1]}, v{vt[1]}, v{vt[1]}")
    E(f"v_and_b32 v{vDt}, 0xffff0000, v{vt[1]}")
    A2 = Alloc(KG, KG + 32)
    PK = [A2(4, 4), A2(4, 4)]
    W1 = [A2(3, 1), A2(3, 1)]; W8 = [A2(3, 1), A2(3, 1)]; W256 = [A2(3, 1), A2(3, 1)]
    A3 = Alloc(big + 136, big + 160)
    XS = [[A3(2) for _ in range(4)] for _ in range(2)]
    XC = [A3(2), A3(2)]; XD = [A3(2), A3(2)]
    XU = [[big + 124, big + 126], [big + 128, big + 130]]
    tmp = big + 100
    per_n = []
    for n in range(2):
        t = [tmp + 12 * n + i for i in range(12)]
        un = (lambda d, src: f"v_lshlrev_b32 v{d}, 16, v{src}") if n == 0 else (lambda d, src: f"v_and_b32 v{d}, 0xffff0000, v{src}")
        L = [un(t[0], P[0]), un(t[1], P[1]),
             f"v_mul_f32 v{t[0]}, v{vDt}, v{t[0]}",
             f"v_mul_f32 v{t[1]}, v{vDt}, v{t[1]}",
             f"v_mul_f32 v{t[0]}, s7, v{t[0]}",
             f"v_mul_f32 v{t[6]}, s8, v{t[1]}",
             f"v_fma_f32 v{t[7]}, v{t[1]}, s8, -v{t[6]}",
             f"v_fmac_f32 v{t[7]}, {f32(I2Pl)}, v{t[1]}"]
        for e, Wd in ((1, W1[n]), (256, W256[n]), (8, W8[n])):
            if e == 1:
                L += [f"v_exp_f32 v{t[8]}, v{t[0]}", f"v_fract_f32 v{t[9]}, v{t[6]}", f"v_add_f32 v{t[9]}, v{t[9]}, v{t[7]}"]
            else:
                L += [f"v_mul_f32 v{t[8]}, {f32(e)}, v{t[0]}", f"v_mul_f32 v{t[9]}, {f32(e)}, v{t[6]}",
                      f"v_exp_f32 v{t[8]}, v{t[8]}", f"v_fract_f32 v{t[9]}, v{t[9]}", f"v_fmac_f32 v{t[9]}, {f32(e)}, v{t[7]}"]
            L += [f"v_cos_f32 v{t[10]}, v{t[9]}", f"v_sin_f32 v{t[11]}, v{t[9]}",
                  f"v_mul_f32 v{Wd}, v{t[8]}, v{t[10]}", f"v_mul_f32 v{Wd+1}, v{t[8]}, v{t[11]}", f"v_xor_b32 v{Wd+2}, 0x80000000, v{Wd+1}"]
        c0 = XS[n][0]
        L += [un(t[k], P[k]) for k in range(2, 6)]
        L += [f"v_mul_f32 v{t[2]}, v{vDt}, v{t[2]}", f"v_mul_f32 v{t[3]}, v{vDt}, v{t[3]}",
              f"v_mul_f32 v{c0}, v{t[4]}, v{t[2]}", f"v_mul_f32 v{c0+1}, v{t[5]}, v{t[2]}",
              f"v_fma_f32 v{c0}, -v{t[5]}, v{t[3]}, v{c0}", f"v_fmac_f32 v{c0+1}, v{t[4]}, v{t[3]}"]
        per_n.append(L)
    E(zipl(*per_n))
    E(f"v_cmp_eq_u32 vcc, 0, v{vL}")
    E(f"v_lshlrev_b32 v{vDsk}, 16, v{P[7]}")
    E(f"v_cndmask_b32 v{vDsk}, 0, v{vDsk}, vcc")
    def put_row(row, regs, neg, last=False):
        p = PK[(row // 2) % 2]; q = p + 2 * (row % 2)
        sg = "-" if neg else ""
        L = [f"v_cvt_pk_bf16_f32 v{q}, v{regs[0]}, {sg}v{regs[0]+1}",
             f"v_cvt_pk_bf16_f32 v{q+1}, v{regs[1]}, {sg}v{regs[1]+1}"]
        if row % 2 or last: L.append(f"ds_write_b128 v{vWa}, {v(p,4)} offset:{(row//2)*PP2}")
        return L
    def step(dst, src, mul):
        return zipl(cmul(dst[0], src[0], mul[0]), cmul(dst[1], src[1], mul[1]))
    XSi = lambda i: [XS[0][i], XS[1][i]]
    XUi = lambda i: [XU[0][i], XU[1][i]]
    def slab_out():
        if "--xnomem" in sys.argv or "--x1" in sys.argv: return None
        E.wait_vm("slab")
        ST(E, "slab")
        for i in range(4):
            E(f"ds_read_b64_tr_b16 {v(big+4*i,2)}, v{vTa} offset:{64*i}")
            E(f"ds_read_b64_tr_b16 {v(big+4*i+2,2)}, v{vTa} offset:{64*i+1024}")
        E("s_setprio 3")
        for i in range(4):
            E(f"s_add_u32 s{sT1}, s{sUT}, {8*16384*i}")
            E(f"buffer_store_dwordx4 {v(big+4*i,4)}, v{vUo}, s[{rWS}:{rWS+3}], s{sT1} offen {'' if '--xplain' in sys.argv else 'sc1'}")
        nld = G.nonce_load(E, vNon)
        E(f"s_setprio {G.BPRIO}")
        ST(E, "ust")
        return nld
    def flag(saddr):
        skip = newlabel("nofl")
        E(f"s_cmp_lg_u32 s{sW}, 0")
        E(f"s_cbranch_scc1 {skip}")
        E("s_mov_b32 exec_hi, 0")
        E.raw(f"    buffer_store_dword v{vNon}, v{vPu}, s[{rWS}:{rWS+3}], s{saddr} offen sc1")
        E("s_mov_b64 exec, -1")
        E.label(skip)
    def wait_line(saddr):
        G.sflag_wait(E, saddr, 1, 8, 16, sleep=2)
        E("s_barrier")
    def publish():
        if "--xnomem" in sys.argv or "--x1" in sys.argv or "--x2" in sys.argv: return
        E("s_setprio 3")
        G.nonce_get(E, nld, vNon)
        E("s_barrier")
        flag(sFU)
        E(f"s_setprio {G.BPRIO}")
        ST(E, "ack")
    if SLAB == 3: nld = slab_out()
    L = put_row(0, XSi(0), True)
    cur = XSi(0)
    for e in range(1, 8):
        dst = XSi(e // 2) if e % 2 == 0 else XC
        L += step(dst, cur, W1) + put_row(e, dst, True); cur = dst
    for i, dst in enumerate((XUi(0), XC, XUi(1), XC)):
        L += step(dst, XSi(i), W256) + put_row(8 + i, dst, True)
    for k in range(2): L += step(XSi(k), XUi(k), W256) + put_row(12 + k, XSi(k), True)
    for k in range(2): L += step(XUi(k), XSi(k), W256) + put_row(14 + k, XUi(k), True)
    cur = XUi(0)
    for r in range(16, 21):
        dst = XC if r % 2 == 0 else XD
        L += step(dst, cur, W256) + put_row(r, dst, True, last=(r == 20)); cur = dst
    E(L)
    XF = big + 16
    YF = big + 80
    KD = big + 112
    for tI in range(2):
        for k in range(8):
            E(f"ds_read2_b64 {v(XF+32*tI+4*k,4)}, v{vRb if tI else vRa} offset0:{16*k} offset1:{16*k+2}")
    ST(E, "X")
    if SLAB == 0: nld = slab_out()
    if SLAB == 1: slab_in()
    if SLAB == 3: publish()
    def yhalf(h):
        L = []
        for j in range(16):
            jj = 16 * h + j
            Yc, Yp = (XC, XD) if jj % 2 == 0 else (XD, XC)
            if jj == 0:
                L += [f"v_mov_b32 v{Yc[0]}, 1.0", f"v_mov_b32 v{Yc[0]+1}, 0", f"v_mov_b32 v{Yc[1]}, 1.0", f"v_mov_b32 v{Yc[1]+1}, 0"]
            else:
                L += step(Yc, Yp, W8)
            L += put_row(j, Yc, False)
        return L
    def yread(): return [f"ds_read2_b64 {v(YF+4*k,4)}, v{vRa} offset0:{16*k} offset1:{16*k+2}" for k in range(8)]
    def kmfma(h):
        L = []
        for k in range(8):
            for tI in range(2):
                d = KD + 8 * h + 4 * tI
                L.append(f"{M16} {v(d,4)}, {v(XF+32*tI+4*k,4)}, {v(YF+4*k,4)}, {v(d,4) if k else 0}")
        return L
    def tabw(h):
        d0 = KD + 8 * h; d1 = d0 + 4
        p = big + 128 + 4 * h if h == 0 else big + 136
        L = [f"v_add_f32 v{KD}, v{KD}, v{vDsk}"] if h == 0 else []
        L += [f"v_cvt_pk_bf16_f32 v{p}, v{d0}, v{d0+1}", f"v_cvt_pk_bf16_f32 v{p+1}, v{d0+2}, v{d0+3}",
              f"v_cvt_pk_bf16_f32 v{p+2}, v{d1}, v{d1+1}", f"v_cvt_pk_bf16_f32 v{p+3}, v{d1+2}, v{d1+3}",
              f"ds_write_b32 v{a0[h]}, v{p}", f"ds_write_b32 v{a1[h]}, v{p+1}"]
        for rho in range(4):
            op = "ds_write_b16" if rho % 2 == 0 else "ds_write_b16_d16_hi"
            L.append(f"{op} v{a3 if (rho == 0 and h == 0) else a2}, v{p+2+rho//2} offset:{2*TA_POS + 32*rho + 16*h}")
        return L
    E(yhalf(0)); E(yread())
    if SLAB == 0: publish()
    if SLAB == 1: nld = slab_out()
    if SLAB == 2: slab_in()
    y1 = yhalf(1)
    E(merge(y1, kmfma(0)))
    E(yread())
    if SLAB == 2: nld = slab_out()
    E(tabw(0)); E(kmfma(1))
    E(f"v_lshl_add_u32 v{vt[0]}, v{vC}, 2, s{sSC}")
    E(f"ds_write_b32 v{vt[0]}, v{vZ}")
    E(f"ds_write_b32 v{vt[0]}, v{vZ} offset:{SIG_SZ}")
    ST(E, "Y")
    def get_u():
        if "--xnomem" in sys.argv or "--x1" in sys.argv or "--x2" in sys.argv or "--x3" in sys.argv: return
        E("s_setprio 3")
        wait_line(sFUp)
        ST(E, "polled")
        if "--x4" in sys.argv: return
        E(f"s_mov_b32 m0, s{sUS}")
        for i in range(4):
            E(f"buffer_load_dwordx4 v{vL16}, s[{rWS}:{rWS+3}], s{sUI} offen offset:{1024*i} sc1 lds", tag="uimg")
        E(f"s_setprio {G.BPRIO}")
    if SLAB == 1: publish()
    E(tabw(1))
    E(f"ds_read_u16 v{vt[5]}, v{vMa}")
    E(f"ds_read_u16 v{vt[4]}, v{vMb}")
    E(f"v_lshl_or_b32 v{vt[5]}, v{vt[4]}, 16, v{vt[5]}")
    E(f"ds_write_b32 v{vMw}, v{vt[5]} offset:544")
    ACC = KG
    Hs = [big, big + 32]; Fs = [big + 64, big + 84]; RAW = big + 100; WD = big + 128
    SFr = WD; TFr = WD + 16
    vH = [vt[0], vt[1]]
    def dense(F, r, a, o):
        return ([f"ds_read2_b32 {v(r,2)}, v{a} offset0:{o} offset1:{o+1}",
                 f"ds_read2_b32 {v(r+2,2)}, v{a} offset0:{o+2} offset1:{o+3}",
                 f"ds_read_b32 v{r+4}, v{a} offset:{4*(o+4)}"],
                [f"v_perm_b32 v{F+j}, v{r+4-j}, v{r+3-j}, v{sel[('d',3)]}" for j in (3, 2, 1, 0)])
    def prepF(s0, buf):
        rd = []; pm = []
        r = RAW
        for m in range(5 if s0 == 0 else 4):
            sx = s0 + 8 * m
            F = Fs[buf] + 4 * m
            if sx <= 8 or sx == 16 or sx == 32:
                a, b = dense(F, r, adr['d'], {16: 152, 32: 176}.get(sx, 16 * sx))
                rd += a; pm += b; r += 6
            elif sx < 16:
                o = 8 * (sx - 9)
                rd += [f"ds_read2_b32 {v(r,2)}, v{adr['1']} offset0:{o} offset1:{o+1}",
                       f"ds_read_b32 v{r+2}, v{adr['1']} offset:{4*(o+2)}"]
                pm += [f"v_perm_b32 v{F+3}, v{r+1}, v{r}, v{sel[('1',3)]}", f"v_perm_b32 v{F+2}, v{r+1}, v{r}, v{sel[('1',2)]}",
                       f"v_perm_b32 v{F+1}, v{r+2}, v{r+1}, v{sel[('1',3)]}", f"v_perm_b32 v{F}, v{r+2}, v{r+1}, v{sel[('1',2)]}"]
                r += 4
            else:
                o = 4 * (sx - 17)
                rd += [f"ds_read2_b32 {v(r,2)}, v{adr['2']} offset0:{o} offset1:{o+1}"]
                pm += [f"v_perm_b32 v{F+j}, v{r+1}, v{r}, v{sel[('2',j)]}" for j in (3, 2, 1, 0)]
                r += 2
        assert r <= WD
        return rd, pm
    def prepH(s0, buf):
        a = vH[buf]; t = vt[3]
        L = [f"v_subrev_u32 v{a}, {4*s0}, v{vTb}",
             f"v_lshrrev_b32 v{t}, 2, v{a}",
             f"v_add_u32 v{t}, s{sW}, v{t}",
             f"v_and_b32 v{t}, 3, v{t}",
             f"v_lshlrev_b32 v{a}, 6, v{a}",
             f"v_lshl_add_u32 v{a}, v{t}, 4, v{a}"]
        return L, [f"ds_read_b128 {v(Hs[buf]+4*dl,4)}, v{a} offset:{2048*dl}" for dl in range(8)]
    rd, pm = prepF(0, 0)
    ha, hr = prepH(0, 0)
    E(rd); E(ha); E(pm)
    ST(E, "tables")
    if SLAB == 2: publish()
    get_u()
    E.wait_vm("uimg")
    E.wait_lg()
    E("s_barrier")
    ST(E, "uimg")
    if "--xnoconv" in sys.argv:
        ST.dump(E, sW, big + 70)
        E("s_endpgm")
        return ST
    E(f"s_setprio {G.CPRIO}")
    E(hr)
    wout = []
    for dl in range(4):
        for bI in range(2):
            d = WD + 8 * dl + 4 * bI
            wout += [f"v_cvt_pk_bf16_f32 v{d}, v{d}, v{d+1}", f"v_cvt_pk_bf16_f32 v{d+1}, v{d+2}, v{d+3}",
                     f"ds_write_b64 v{aW}, {v(d,2)} offset:{64 + SIG_SZ*bI + 512*dl}"]
    srd_ = [f"ds_read_b64_tr_b16 {v(SFr+4*k+2*a,2)}, v{aS} offset:{40 + 512*k + 128*a}" for k in range(4) for a in range(2)]
    for s0 in range(8):
        b = s0 % 2
        M = []
        if s0 == 0:
            for dl in range(4):
                for bI in range(2):
                    M.append(f"{M16} {v(WD+8*dl+4*bI,4)}, {v(BN+4*bI,4)}, {v(Hs[0]+4*dl,4)}, 0")
        for m in range(5 if s0 == 0 else 4):
            for dl in range(8 - m):
                q = m + dl
                c = v(ACC + 4 * q, 4) if (s0 or m) else "0"
                M.append(f"{M16} {v(ACC+4*q,4)}, {v(Fs[b]+4*m,4)}, {v(Hs[b]+4*dl,4)}, {c}")
        if s0 < 7:
            rd, pm = prepF(s0 + 1, 1 - b)
            ha, hr = prepH(s0 + 1, 1 - b)
            side = rd + ha + hr + pm
            if s0 == 0: side += wout[:12]
            if s0 == 1: side += wout[12:]
            if 2 <= s0 <= 5:
                k = s0 - 2
                a_, b_ = dense(TFr + 4 * k, RAW + 16, aT, 8 * k)
                side = a_ + side + srd_[2*k:2*k+2] + b_
            E(merge(M, side))
        else:
            for q in range(4, 8):
                for k in range(q - 3):
                    M.append(f"{M16} {v(ACC+4*q,4)}, {v(SFr+4*k,4)}, {v(TFr+4*(q-k-4),4)}, {v(ACC+4*q,4)}")
            E(M)
    ST(E, "conv")
    if "--gemmonly" in sys.argv:
        ST.dump(E, sW, big + 70)
        E("s_endpgm")
        return ST
    ya = vt[0]
    E(f"s_mul_i32 s{sT0}, s{sW}, 144")
    E(f"v_add_u32 v{ya}, s{sT0}, v{aW}")
    for q in range(8):
        E(f"v_cvt_pk_bf16_f32 v{big+2*q}, v{ACC+4*q}, v{ACC+4*q+1}")
        E(f"v_cvt_pk_bf16_f32 v{big+2*q+1}, v{ACC+4*q+2}, v{ACC+4*q+3}")
        E(f"ds_write_b64 v{ya}, {v(big+2*q,2)} offset:{Y_OFF + 512*q}")
    yr, yo = vt[1], vt[2]
    E(f"v_lshrrev_b32 v{vt[3]}, 2, v{vC}")
    E(f"v_mul_u32_u24 v{yr}, {Y_PITCH}, v{vt[3]}")
    E(f"v_and_b32 v{vt[3]}, 3, v{vC}")
    E(f"v_lshl_add_u32 v{yr}, v{vt[3]}, 3, v{yr}")
    E(f"v_lshl_add_u32 v{yr}, v{vG}, 5, v{yr}")
    E(f"s_lshl_b32 s{sT0}, s{sW}, 10")
    E(f"s_add_u32 s{sT0}, s{sT0}, {SC_BASE + Y_OFF}")
    E(f"v_add_u32 v{yr}, s{sT0}, v{yr}")
    E(f"v_lshlrev_b32 v{yo}, 3, v{vL}")
    E.wait_lg()
    E("s_barrier")
    E("s_setprio 3")
    for i in range(8):
        E(f"ds_read_b64_tr_b16 {v(big+32+2*i,2)}, v{yr} offset:{128*i}")
    for i in range(8):
        E(f"buffer_store_dwordx2 {v(big+32+2*i,2)}, v{yo}, s[{rWS}:{rWS+3}], s{sYS} offen offset:{512*i} sc1")
    d0, d1, ra, so = vt[0], vt[1], vt[2], vt[3]
    E(f"v_lshrrev_b32 v{vt[4]}, 3, v{vL}")
    E(f"v_lshlrev_b32 v{vt[4]}, 14, v{vt[4]}")
    E(f"v_and_b32 v{vt[5]}, 7, v{vL}")
    E(f"v_xor_b32 v{vt[5]}, v{vt[5]}, v{vG}")
    E(f"v_lshl_add_u32 v{d0}, v{vt[5]}, 4, v{vt[4]}")
    E(f"v_xor_b32 v{d1}, 64, v{d0}")
    E(f"v_and_b32 v{vt[4]}, 7, v{vC}")
    E(f"v_lshrrev_b32 v{vt[5]}, 1, v{vG}")
    E(f"v_xor_b32 v{vt[4]}, v{vt[4]}, v{vt[5]}")
    E(f"v_lshlrev_b32 v{ra}, 8, v{vC}")
    E(f"v_lshl_add_u32 v{ra}, v{vt[4]}, 4, v{ra}")
    E(f"v_and_b32 v{vt[5]}, 1, v{vG}")
    E(f"v_lshl_add_u32 v{ra}, v{vt[5]}, 3, v{ra}")
    E(f"v_add_u32 v{ra}, s{sUS}, v{ra}")
    E(f"v_mul_u32_u24 v{so}, 2560, v{vG}")
    E(f"v_lshl_add_u32 v{so}, v{vC}, 4, v{so}")
    for i in range(1, 4): E(f"v_xor_b32 v{big+60+i}, {32*i}, v{ra}")
    E.wait_vm()
    E("s_barrier")
    flag(sFY)
    ST(E, "ypub")
    wait_line(sFYp)
    ST(E, "ypoll")
    for i in range(4):
        E(f"s_add_u32 m0, s{sUS}, {1024*i}")
        E(f"s_add_u32 s{sT1}, s{sYL}, {8*16384*i}")
        E(f"buffer_load_dwordx4 v{d0 if i % 2 == 0 else d1}, s[{rWS}:{rWS+3}], s{sT1} offen sc1 lds")
    E.wait_vm()
    for i in range(4):
        E(f"ds_read2_b64 {v(big+4*i,4)}, v{ra if i == 0 else big+60+i} offset1:16")
    for i in range(4):
        E(f"s_add_u32 s{sT1}, s{sYO}, {4*2560*i}")
        E(f"buffer_store_dwordx4 {v(big+4*i,4)}, v{so}, s[{rOUT}:{rOUT+3}], s{sT1} offen")
    if G.PROFILE:
        E.wait_vm()
        ST(E, "end")
    ST.dump(E, sW, big + 70)
    E("s_endpgm")
    return ST
```

```python
import sys, struct, math
from asmlib import *

NAME = "concat_heads__linear_kernel_hedgehog__ssm_conv_s4__prompt"
NB, NA, NC = 160, 256, 80
UT_BASE = 0
YT_BASE = 2621440
O_BASE = 2 * 2621440
PWO_BASE = 3 * 2621440
P_BASE = PWO_BASE + 851968
assert P_BASE % 65536 == 0
P_PITCH = 4096
WS_SIZE = 16 << 20
STAMP_BASE = 13 << 20
SPIN_MAX = 30000
FLAG_BASE = P_BASE + 256 * P_PITCH
FLAGY_BASE = FLAG_BASE + 131072
FLAGW_BASE = FLAG_BASE + 2 * 131072
FLAGO_BASE = FLAG_BASE + 3 * 131072
FLAGC_BASE = FLAG_BASE + 4 * 131072
sN = 83

def f32(x): return "0x%08x" % struct.unpack("<I", struct.pack("<f", x))[0]
def f32val(x): return struct.unpack("<f", struct.pack("<f", x))[0]

class Alloc:
    def __init__(self, start, end): self.n = start; self.end = end
    def __call__(self, c=1, al=None):
        al = al or (2 if c >= 2 else 1)
        self.n = (self.n + al - 1) // al * al
        r = self.n; self.n += c
        assert self.n <= self.end, f"out of registers {self.n}"
        return r

pX, pW, pPHI, pWO, pU, pARE, pAIM, pBRE, pBIM, pCRE, pCIM, pLDT, pDSK, pOUT, pDBG, pWS = [16 + 2 * i for i in range(16)]
rWS, rOUT, rDBG, rIN, rW, rWO, rPHI = 48, 52, 56, 60, 64, 68, 72

def srd(E, r, p, size):
    E(f"s_mov_b32 s{r}, s{p}")
    E(f"s_and_b32 s{r+1}, s{p+1}, 0xffff")
    E(f"s_mov_b32 s{r+2}, {size}")
    E(f"s_mov_b32 s{r+3}, 0x00020000")

PROFILE = False
BPRIO = int(([a[8:] for a in sys.argv if a.startswith('--bprio=')] + ['3'])[0])
CPRIO = int(([a[8:] for a in sys.argv if a.startswith('--cprio=')] + ['0'])[0])
OUTA = ([a[7:] for a in sys.argv if a.startswith('--outa=')] + [''])[0].replace('+', ' ')
OUTB = ([a[7:] for a in sys.argv if a.startswith('--outb=')] + [''])[0].replace('+', ' ')
APRIO = int(([a[8:] for a in sys.argv if a.startswith('--aprio=')] + ['2'])[0])
class Stamps:
    def __init__(self, first): self.first = first; self.n = 0; self.names = []
    def __call__(self, E, name):
        if not PROFILE: return
        if "--endonly" in sys.argv and name not in ("start", "tile", "gemm", "T0", "opub", "ack", "uimg", "conv", "ypub", "end"): return
        r = self.first + self.n
        if name == "start" and "--cyc" not in sys.argv and "--both" not in sys.argv:
            E(f"s_mov_b32 s{r}, s10")
            self.n += 1; self.names.append("entry"); r += 1
        E("s_memtime s[14:15]" if "--cyc" in sys.argv else "s_memrealtime s[14:15]")
        if "--both" in sys.argv:
            E("s_memtime s[12:13]")
            E.wait_lg()
            E("s_lshr_b32 s12, s12, 2")
            E("s_pack_ll_b32_b16 s14, s12, s14")
        E.wait_lg()
        E(f"s_mov_b32 s{r}, s14")
        self.n += 1; self.names.append(name)
    def dump(self, E, sW, vt):
        if not PROFILE: return
        E(f"v_mov_b32 v{vt}, 0")
        for i in range(self.n):
            E(f"v_writelane_b32 v{vt}, s{self.first+i}, {i}")
        E(f"s_lshl_b32 s3, s2, 2")
        E(f"s_add_u32 s3, s3, s{sW}")
        E(f"s_lshl_b32 s3, s3, 6")
        E(f"s_add_u32 s3, s3, {STAMP_BASE}")
        E(f"v_and_b32 v{vt+1}, 63, v0")
        E(f"v_lshlrev_b32 v{vt+1}, 2, v{vt+1}")
        E("s_mov_b64 exec, 0xffff")
        E(f"buffer_store_dword v{vt}, v{vt+1}, s[{rWS}:{rWS+3}], s3 offen")
        if "--dbg" in sys.argv:
            E(f"v_subrev_u32 v{vt}, s{sN}, v{vt}")
            E(f"v_add_u32 v{vt}, 1000, v{vt}")
            if self.first == 84:
                E(f"s_mov_b64 exec, {1 << (self.n - 1)}")
                E(f"buffer_atomic_umax v{vt}, off, s[{rDBG}:{rDBG+3}], 0 offset:4")
            else:
                E(f"s_mov_b64 exec, {(1 << self.n) - 1}")
                E(f"buffer_atomic_umax v{vt}, v{vt+1}, s[{rDBG}:{rDBG+3}], 0 offen offset:8")
        E("s_mov_b64 exec, -1")

_lbl = [0]
def newlabel(p):
    _lbl[0] += 1
    return f"L_{p}_{_lbl[0]}"

def poll_check(E, load_text, vdst, expect_sgpr_or_const, first_tag):
    ok = newlabel("ok"); sp = newlabel("spin")
    E.wait_vm(first_tag)
    E(f"v_cmp_ne_u32 vcc, {expect_sgpr_or_const}, v{vdst}")
    E(f"s_cbranch_vccz {ok}")
    E(f"s_mov_b32 s13, 0")
    E.label(sp)
    E.raw("    " + load_text)
    E.raw("    s_add_u32 s13, s13, 1")
    E.raw(f"    s_cmp_gt_u32 s13, {SPIN_MAX}")
    E.raw(f"    s_cbranch_scc1 {ok}")
    E.raw("    s_waitcnt vmcnt(0)")
    E.raw(f"    v_cmp_ne_u32 vcc, {expect_sgpr_or_const}, v{vdst}")
    E.raw(f"    s_cbranch_vccnz {sp}")
    E.label(ok)

def spin(E, load_texts, check_texts, first_tag):
    ok = newlabel("ok"); sp = newlabel("spin")
    E.wait_vm(first_tag)
    E(check_texts)
    E(f"s_cbranch_vccz {ok}")
    E(f"s_mov_b32 s13, 0")
    E.label(sp)
    for t in load_texts: E.raw("    " + t)
    E.raw("    s_add_u32 s13, s13, 1")
    E.raw(f"    s_cmp_gt_u32 s13, {SPIN_MAX}")
    E.raw(f"    s_cbranch_scc1 {ok}")
    E.raw("    s_waitcnt vmcnt(0)")
    for t in check_texts: E.raw("    " + t)
    E.raw(f"    s_cbranch_vccnz {sp}")
    E.label(ok)

def nonce_load(E, vd):
    ld = f"buffer_load_dword v{vd}, off, s[{rDBG}:{rDBG+3}], 0 offset:4 sc1"
    E(ld, tag="nonce")
    return ld
def nonce_get(E, ld, vd):
    spin(E, [ld], [f"v_cmp_eq_u32 vcc, 0, v{vd}"], "nonce")
    E(f"v_readfirstlane_b32 s{sN}, v{vd}")

def touch(E, items):
    if "--touch" not in sys.argv: return
    for p, off in items:
        if off < (1 << 20): E(f"s_load_dword s93, s[{p}:{p+1}], {off}")
        else:
            E(f"s_mov_b32 s12, {off}")
            E(f"s_load_dword s93, s[{p}:{p+1}], s12")

def fresh(E):
    E.reset()
    E.lgq = [("__smem", set())]
    E.vmq = [("code", {("v", 255)})]

def sflag_loads(saddr, nlines, words, first):
    L = []
    for k in range(nlines):
        r = first + words * k
        if k: L.append(f"s_add_u32 s12, s{saddr}, {128*k}")
        L.append(f"s_buffer_load_dwordx{words} s[{r}:{r+words-1}], s[{rWS}:{rWS+3}], s{saddr if k == 0 else 12} glc")
    return L
def sflag_check(n, first):
    L = [f"s_mov_b32 s14, s{sN}", f"s_mov_b32 s15, s{sN}", f"s_xor_b64 s[8:9], s[{first}:{first+1}], s[14:15]"]
    for k in range(first + 2, first + n, 2): L += [f"s_xor_b64 s[{first}:{first+1}], s[{k}:{k+1}], s[14:15]", f"s_or_b64 s[8:9], s[8:9], s[{first}:{first+1}]"]
    return L
def sflag_wait(E, saddr, nlines, words, first, sleep=1):
    ok = newlabel("sok"); sp = newlabel("ssp")
    E.wait_lg()
    E.raw("    s_mov_b32 s13, 0")
    E.label(sp)
    for t in sflag_loads(saddr, nlines, words, first) + ["s_add_u32 s13, s13, 1", "s_waitcnt lgkmcnt(0)", f"s_cmp_gt_u32 s13, {SPIN_MAX}", f"s_cbranch_scc1 {ok}"] + \
             sflag_check(nlines * words, first) + [f"s_cbranch_scc0 {ok}", f"s_sleep {sleep}", f"s_branch {sp}"]:
        E.raw("    " + t)
    E.label(ok)
def word_off(dst, idx, sh, t):
    return [f"s_lshr_b32 s{t}, s{idx}, {sh}", f"s_lshl_b32 s{t}, s{t}, 7", f"s_add_u32 s{dst}, s{dst}, s{t}",
            f"s_and_b32 s{t}, s{idx}, {(1<<sh)-1}", f"s_lshl_b32 s{t}, s{t}, 2", f"s_add_u32 s{dst}, s{dst}, s{t}"]

def cmul(dst, a, b):
    assert dst != a
    return [f"v_mul_f32 v{dst}, v{a}, v{b}", f"v_mul_f32 v{dst+1}, v{a+1}, v{b}",
            f"v_fmac_f32 v{dst}, v{a+1}, v{b+2}", f"v_fmac_f32 v{dst+1}, v{a}, v{b+1}"]

def zipl(*ls):
    out = []
    for i in range(max(len(l) for l in ls)):
        for l in ls:
            if i < len(l): out.append(l[i])
    return out

def main():
    global PROFILE
    PROFILE = "--profile" in sys.argv
    head = open(f"cdna_kernels/{NAME}.s.ref").read().split("\n")
    hdr = [l for l in head if l.startswith(";") and "@launch" not in l]
    E = Emitter()
    for l in hdr: E.raw(l)
    E.raw(f"; @launch grid=({NB+NA+NC},1,1) block=(256,1,1) lds=81920")
    E.raw('.amdgcn_target "amdgcn-amd-amdhsa--gfx950"')
    E.raw(".text")
    E.raw(f".globl {NAME}_kernel")
    E.raw(".p2align 8")
    E.raw(f".type {NAME}_kernel,@function")
    E.label(f"{NAME}_kernel")
    E("s_load_dwordx16 s[16:31], s[0:1], 0")
    E("s_load_dwordx16 s[32:47], s[0:1], 64")
    E("s_memrealtime s[10:11]")
    if "--nocodepf" not in sys.argv:
        E("s_getpc_b64 s[12:13]")
        E.label("L_pc")
        E("s_lshr_b32 s3, s2, 3")
        E("s_lshl_b32 s3, s3, 10")
        E("v_lshrrev_b32 v254, 5, v0")
        E("v_lshl_add_u32 v254, v254, 7, s3")
        E("v_min_u32 v254, L_code_end-L_pc-4, v254")
        E("global_load_dword v255, v254, s[12:13]")
    E(f"s_cmp_ge_u32 s2, {NA}")
    E("s_cbranch_scc1 L_other")
    from genA import gen_A, gen_C
    from genB import gen_B
    me = sys.modules[__name__]
    stA = gen_A(E, me)
    E.label("L_other")
    E(f"s_cmp_ge_u32 s2, {NA + NB}")
    E("s_cbranch_scc1 L_notB")
    stB = gen_B(E, me)
    E.label("L_notB")
    E(f"s_cmp_lt_u32 s2, {NB + NA + NC}")
    E("s_cbranch_scc1 L_goC")
    E("s_endpgm")
    E.label("L_goC")
    gen_C(E, me)
    E.label("L_code_end")
    E.raw('.section .rodata,"a"')
    E.raw(".p2align 6")
    E.raw(f".amdhsa_kernel {NAME}_kernel")
    for l in ("next_free_vgpr 256", "next_free_sgpr 102", "accum_offset 256", "group_segment_fixed_size 0", "kernarg_size 128",
              "user_sgpr_count 2", "user_sgpr_kernarg_segment_ptr 1", "system_sgpr_workgroup_id_x 1"):
        E.raw("  .amdhsa_" + l)
    E.raw(".end_amdhsa_kernel")
    outp = [a for a in sys.argv[1:] if not a.startswith("--")]
    open(outp[0] if outp else "k.s", "w").write(E.text())
    print("instrs", E.count, "nops", E.nops, file=sys.stderr)
    import json
    json.dump({"B": stB.names, "A": stA.names if stA else []}, open((outp[0] if outp else "k.s") + ".json", "w"))

if __name__ == "__main__":
    main()
```

```python
import math, sys
from asmlib import *

TA = [[(0, 0), (0, 2), (0, 4), (1, 4)], [(0, 1), (0, 3), (1, 3), (2, 3)], [(1, 0), (1, 2), (2, 2), (2, 4)], [(1, 1), (2, 0), (2, 1), None]]
M16 = "v_mfma_f32_16x16x32_bf16"; M32 = "v_mfma_f32_32x32x16_bf16"

def div_const(dst, src, d):
    return [f"v_mul_u32_u24 v{dst}, {(65536 + d - 1)//d}, v{src}", f"v_lshrrev_b32 v{dst}, 16, v{dst}"]

def put_flag(E, G, sW, vNon, saddr):
    skip = G.newlabel("nofl")
    E(f"s_cmp_lg_u32 s{sW}, 0")
    E(f"s_cbranch_scc1 {skip}")
    E("s_mov_b64 exec, 1")
    E.raw(f"    buffer_store_dword v{vNon}, off, s[{G.rWS}:{G.rWS+3}], s{saddr} sc1")
    E("s_mov_b64 exec, -1")
    E.label(skip)

def flag_addr(dst, idx, base, t):
    return [f"s_lshr_b32 s{dst}, s{idx}, 3", f"s_lshl_b32 s{dst}, s{dst}, 7", f"s_and_b32 s{t}, s{idx}, 7", f"s_lshl_b32 s{t}, s{t}, 2",
            f"s_add_u32 s{dst}, s{dst}, s{t}", f"s_add_u32 s{dst}, s{dst}, {base}"]

def piece_voff(E, vL, dst, t, pitch):
    for m in range(3):
        if m: E(f"v_add_u32 v{t}, {64*m}, v{vL}")
        ci = t if m else vL
        E(div_const(t + 1, ci, 20))
        E(f"v_mul_u32_u24 v{t+1}, {pitch - 320}, v{t+1}")
        E(f"v_lshl_add_u32 v{dst[m]}, v{vL}, 4, v{t+1}")

def gen_C(E, G):
    rWS, rDBG, rWO = G.rWS, G.rDBG, G.rWO
    G.fresh(E)
    sW, sU = 76, 77
    vL, vo, t, vT, vS, D, vNon = 1, [2, 3, 4], 6, [8, 9, 10], [11, 12, 13], 16, 14
    E(f"v_and_b32 v{vL}, 63, v0")
    E(f"v_lshrrev_b32 v{t}, 6, v0")
    E(f"s_sub_u32 s{sU}, s2, {G.NB + G.NA}")
    E(f"v_readfirstlane_b32 s{sW}, v{t}")
    piece_voff(E, vL, vo, t, 1280)
    E(f"s_mul_i32 s4, s{sU}, {8*1280}")
    E(f"s_mul_i32 s5, s{sW}, 320")
    E(f"s_add_u32 s4, s4, s5")
    E(f"s_lshl_b32 s6, s{sW}, 12")
    E(f"s_mov_b32 m0, s6")
    E.wait_lg()
    G.srd(E, rWO, G.pWO, 819200)
    for m in range(3):
        if m == 2: E("s_mov_b32 exec_hi, 0")
        E(f"buffer_load_dwordx4 v{vo[m]}, s[{rWO}:{rWO+3}], s4 offen offset:{1024*m} lds")
    E("s_mov_b64 exec, -1")
    G.srd(E, rWS, G.pWS, G.WS_SIZE)
    G.srd(E, rDBG, G.pDBG, 256)
    for m in range(3):
        E(f"v_lshrrev_b32 v{t}, 4, v{vL}")
        E(f"v_add_u32 v{t}, {4*m}, v{t}")
        E(f"v_min_u32 v{t}, 9, v{t}")
        E(f"v_cmp_lt_u32 vcc, 4, v{t}")
        E(f"v_lshlrev_b32 v{vT[m]}, 3, v{t}")
        E(f"v_add_u32 v{t+1}, 120, v{vT[m]}")
        E(f"v_cndmask_b32 v{vT[m]}, v{vT[m]}, v{t+1}, vcc")
        E(f"v_lshlrev_b32 v{vS[m]}, 10, v{t}")
        E(f"v_add_u32 v{t+1}, {95*1024}, v{vS[m]}")
        E(f"v_cndmask_b32 v{vS[m]}, v{vS[m]}, v{t+1}, vcc")
        E(f"v_and_b32 v{t}, 3, v{vL}")
        E(f"v_mul_u32_u24 v{t}, 40, v{t}")
        E(f"v_bfe_u32 v{t+1}, v{vL}, 2, 2")
        E(f"v_mul_u32_u24 v{t+1}, 320, v{t+1}")
        E(f"v_add3_u32 v{vT[m]}, v{vT[m]}, v{t}, v{t+1}")
        E(f"v_add_u32 v{vT[m]}, s6, v{vT[m]}")
        E(f"v_and_b32 v{t}, 15, v{vL}")
        E(f"v_lshl_add_u32 v{vS[m]}, v{t}, 4, v{vS[m]}")
    E(f"s_mul_i32 s4, s{sW}, {200*1024}")
    E(f"s_lshr_b32 s5, s{sU}, 2")
    E(f"s_mul_i32 s5, s5, 5120")
    E(f"s_add_u32 s4, s4, s5")
    E(f"s_and_b32 s5, s{sU}, 3")
    E(f"s_lshl_b32 s5, s5, 8")
    E(f"s_add_u32 s4, s4, s5")
    E(f"s_add_u32 s4, s4, {G.PWO_BASE}")
    E(flag_addr(7, sU, G.FLAGC_BASE, 5))
    E.wait_vm()
    for m in range(3):
        for a in range(2): E(f"ds_read_b64_tr_b16 {v(D+4*m+2*a,2)}, v{vT[m]} offset:{1280*a}")
    for m in range(3):
        if m == 2:
            E.wait_lg()
            E("s_mov_b32 exec_hi, 0")
        E(f"buffer_store_dwordx4 {v(D+4*m,4)}, v{vS[m]}, s[{rWS}:{rWS+3}], s4 offen sc1")
    E("s_mov_b64 exec, -1")
    nld = G.nonce_load(E, vNon)
    G.nonce_get(E, nld, vNon)
    E.wait_vm()
    E("s_barrier")
    put_flag(E, G, sW, vNon, 7)
    E("s_endpgm")

def gen_A(E, G):
    f32, Alloc, srd, spin, newlabel = G.f32, G.Alloc, G.srd, G.spin, G.newlabel
    rWS, rOUT, rDBG, rIN, rW, rPHI = G.rWS, G.rOUT, G.rDBG, G.rIN, G.rW, G.rPHI
    sN = G.sN
    G.fresh(E)
    ST = G.Stamps(24)
    sW, sR, sP, sPQ, sTBo, sCT, sROT = 76, 77, 78, 79, 80, 81, 82
    sT0, sT1, sT2 = 4, 5, 6
    sWO, sXO, sWE, sXE = 84, 85, 86, 87
    sW4, sXR, sH, sFT = 88, 89, 90, 91
    sPS, sOS, sFO, sPL, sOL, sWL, sFC, sOUT, sFP, sF1, sF2 = 96, 97, 98, 99, 100, 101, 45, 46, 92, 47, 3
    XR = 49152
    TAB = 36864; ZTAB = TAB + 3200; KVT = 45056; ZKV = ZTAB
    def wslot(sig): return 16384 * ((sig + 1) % 3)
    E(f"s_setprio {G.APRIO}")
    A = Alloc(1, 256)
    vL = A(); vHH = A(); vL16 = A()
    ACC = A(64, 4)
    WF = A(32, 4)
    XF = A(32, 4)
    PF = A(48, 4)
    TM = A(36, 4)
    ID = A(4, 4)
    vXo = [A() for _ in range(4)]
    vWo = [A() for _ in range(4)]
    vWt = [A() for _ in range(4)]
    vXrs = [A() for _ in range(4)]
    MP = A(); vMn = A(); vNon = A()
    vPk = A(); vVw = A(); vA = A(); vB = A(); vS1 = A(); vS2 = A(); vPi = A(); vKa = A(); vO1 = A(); vO3 = A(); vC4 = A()
    vRw = A(); vSo = [A() for _ in range(3)]
    vFl = A(); vFc = A()
    vt = [TM + 20 + i for i in range(12)]
    vG, vC, vGam, vR4 = vt[8], vt[9], vt[10], vt[11]
    E(f"v_and_b32 v{vL}, 63, v0")
    E(f"v_lshrrev_b32 v{vt[0]}, 6, v0")
    E(f"v_lshrrev_b32 v{vG}, 4, v{vL}")
    E(f"v_readfirstlane_b32 s{sW}, v{vt[0]}")
    E(f"s_and_b32 s{sT0}, s2, 7")
    E(f"s_lshr_b32 s{sT1}, s2, 3")
    E(f"s_lshr_b32 s{sCT}, s{sT1}, 2")
    E(f"s_and_b32 s{sT1}, s{sT1}, 3")
    E(f"s_lshl_b32 s{sTBo}, s{sT0}, 2")
    E(f"s_add_u32 s{sTBo}, s{sTBo}, s{sT1}")
    E(f"s_lshr_b32 s{sR}, s{sT0}, 1")
    E(f"s_lshl_b32 s{sR}, s{sR}, 2")
    E(f"s_add_u32 s{sR}, s{sR}, s{sT1}")
    E(f"s_lshl_b32 s{sT2}, s{sCT}, 2")
    E(f"s_lshr_b32 s{sT2}, 0x64317520, s{sT2}")
    E(f"s_and_b32 s{sT2}, s{sT2}, 7")
    E(f"s_and_b32 s{sP}, s{sT0}, 1")
    E(f"s_lshl_b32 s{sP}, s{sP}, 3")
    E(f"s_add_u32 s{sP}, s{sP}, s{sT2}")
    E(f"s_xor_b32 s{sPQ}, s{sP}, 1")
    E(f"s_mul_i32 s{sROT}, s{sT1}, 3")
    E(f"s_add_u32 s{sROT}, s{sROT}, s{sT2}")
    E(f"s_sub_u32 s{sT0}, s{sROT}, 10")
    E(f"s_cmp_ge_u32 s{sROT}, 10")
    E(f"s_cselect_b32 s{sROT}, s{sT0}, s{sROT}")
    E(f"s_mul_i32 s{sT0}, s{sPQ}, 80")
    E(f"s_mul_i32 s{sT1}, s{sP}, 80")
    E(f"s_sub_u32 s{sT2}, s{sT1}, s{sT0}")
    E(f"s_add_u32 s{sT2}, s{sT2}, {1280-80}")
    for m in range(4):
        if m: E(f"v_add_u32 v{vt[0]}, {64*m}, v{vL}")
        ci = vt[0] if m else vL
        if m == 3: E(f"v_min_u32 v{vt[0]}, 239, v{vt[0]}")
        E(f"v_mul_u32_u24 v{vt[1]}, 0x1112, v{ci}")
        E(f"v_lshrrev_b32 v{vt[1]}, 16, v{vt[1]}")
        E(f"v_mul_u32_u24 v{vt[2]}, 15, v{vt[1]}")
        E(f"v_sub_u32 v{vt[2]}, v{ci}, v{vt[2]}")
        E(f"v_and_b32 v{vt[3]}, 3, v{vt[1]}")
        E(f"v_lshrrev_b32 v{vt[1]}, 2, v{vt[1]}")
        E(f"v_lshl_add_u32 v{vt[1]}, v{vt[3]}, 2, v{vt[1]}")
        E(f"v_cmp_lt_u32 vcc, 4, v{vt[2]}")
        E(f"v_mul_u32_u24 v{vt[1]}, 3840, v{vt[1]}")
        E(f"v_lshl_add_u32 v{vt[1]}, v{vt[2]}, 4, v{vt[1]}")
        E(f"v_add_u32 v{vt[3]}, s{sT2}, v{vt[1]}")
        E(f"v_cndmask_b32 v{vt[1]}, v{vt[1]}, v{vt[3]}, vcc")
        E(f"v_cmp_lt_u32 vcc, 9, v{vt[2]}")
        E(f"v_add_u32 v{vt[3]}, 1200, v{vt[1]}")
        E(f"v_cndmask_b32 v{vt[1]}, v{vt[1]}, v{vt[3]}, vcc")
        E(f"v_add_u32 v{vWo[m]}, {3072 - 1024*m}, v{vt[1]}")
    E(f"v_lshrrev_b32 v{vt[0]}, 3, v{vL}")
    E(f"v_and_b32 v{vt[1]}, 7, v{vL}")
    E(f"v_xor_b32 v{vt[1]}, v{vt[1]}, v{vG}")
    E(f"v_mul_u32_u24 v{vt[0]}, 1280, v{vt[0]}")
    E(f"v_lshl_add_u32 v{vXo[0]}, v{vt[1]}, 4, v{vt[0]}")
    E(f"v_xor_b32 v{vt[1]}, 4, v{vt[1]}")
    E(f"v_lshl_add_u32 v{vXo[1]}, v{vt[1]}, 4, v{vt[0]}")
    E(f"v_add_u32 v{vXo[2]}, {2*(8*1280-1024)}, v{vXo[0]}")
    E(f"v_add_u32 v{vXo[3]}, {3*(8*1280-1024)}, v{vXo[1]}")
    E(f"v_add_u32 v{vXo[1]}, {1*(8*1280-1024)}, v{vXo[1]}")
    E(f"s_mul_i32 s{sWE}, s{sW}, {16*3840}")
    E(f"s_add_u32 s{sWE}, s{sWE}, s{sT0}")
    E(f"s_mul_i32 s{sWO}, s{sROT}, {64*3840}")
    E(f"s_add_u32 s{sWO}, s{sWO}, s{sWE}")
    E(f"s_add_u32 s{sWE}, s{sWE}, {640*3840}")
    E(f"s_lshl_b32 s{sXE}, s{sR}, 2")
    E(f"s_add_u32 s{sXE}, s{sXE}, s{sW}")
    E(f"s_mul_i32 s{sXE}, s{sXE}, {32*1280}")
    E(f"s_lshl_b32 s{sXO}, s{sROT}, 7")
    E(f"s_add_u32 s{sXO}, s{sXO}, s{sXE}")
    E(f"s_add_u32 s{sXE}, s{sXE}, 1280")
    E(f"s_lshl_b32 s{sW4}, s{sW}, 12")
    E(f"s_lshl_b32 s{sXR}, s{sW}, 13")
    E(f"s_add_u32 s{sXR}, s{sXR}, {XR}")
    E.wait_lg()
    ST(E, "start")
    E(f"s_sub_u32 s{G.pW}, s{G.pW}, 3072")
    E(f"s_subb_u32 s{G.pW+1}, s{G.pW+1}, 0")
    srd(E, rW, G.pW, 2457600 + 3072)
    srd(E, rIN, G.pX, 2621440)

    def dmaW(sig):
        L = []
        for m in range(4):
            g = []
            if m == 0: g.append(f"s_add_u32 m0, s{sW4}, {wslot(sig)}")
            g.append(("tag", f"buffer_load_dwordx4 v{vWo[m]}, s[{rW}:{rW+3}], s{sWO} offen offset:{1024*m} lds", f"S{sig}"))
            if m == 3: g += [f"s_add_u32 s{sWO}, s{sWO}, {64*3840}", f"s_cmp_ge_u32 s{sWO}, s{sWE}", f"s_cselect_b32 s9, {640*3840}, 0", f"s_sub_u32 s{sWO}, s{sWO}, s9"]
            L.append(("group", g))
        return L
    def dmaX(sig):
        L = []
        for i in range(4):
            g = []
            if i == 0: g.append(f"s_add_u32 m0, s{sXR}, {4096*(sig%2)}")
            g.append(("tag", f"buffer_load_dwordx4 v{vXo[i]}, s[{rIN}:{rIN+3}], s{sXO} offen offset:{1024*i} lds", f"S{sig}"))
            if i == 3: g += [f"s_add_u32 s{sXO}, s{sXO}, 128", f"s_cmp_ge_u32 s{sXO}, s{sXE}", f"s_cselect_b32 s9, 1280, 0", f"s_sub_u32 s{sXO}, s{sXO}, s9"]
            L.append(("group", g))
        return L
    E(dmaW(0)); E(dmaX(0))
    srd(E, rPHI, G.pPHI, 25600)
    vPhi = TM + 18
    E(f"v_lshlrev_b32 v{vPhi}, 4, v0")
    E(f"v_cmp_gt_u32 vcc, 200, v0")
    E(f"v_mov_b32 v{vPhi+1}, 0x100000")
    E(f"s_lshr_b32 s{sT0}, s{sP}, 1")
    E(f"s_mul_i32 s{sT0}, s{sT0}, 3200")
    E(f"v_cndmask_b32 v{vPhi+1}, v{vPhi+1}, v{vPhi}, vcc")
    E(f"buffer_load_dwordx4 {v(TM,4)}, v{vPhi+1}, s[{rPHI}:{rPHI+3}], s{sT0} offen")
    E(dmaW(1)); E(dmaX(1))
    srd(E, rWS, G.pWS, G.WS_SIZE)
    PN = TM + 32
    for i in range(4): E(f"v_mov_b32 v{PN+i}, -1")
    E(f"v_lshlrev_b32 v{vL16}, 4, v{vL}")
    E(f"s_lshl_b32 s{sPL}, s{sPQ}, 16")
    E(f"s_add_u32 s{sPL}, s{sPL}, {G.P_BASE}")
    E(f"s_lshl_b32 s{sPS}, s{sP}, 4")
    E(f"s_add_u32 s{sPS}, s{sPS}, s{sR}")
    E(f"s_lshl_b32 s{sPS}, s{sPS}, 12")
    E(f"s_add_u32 s{sPS}, s{sPS}, {G.P_BASE}")
    E(f"s_lshl_b32 s{sT0}, s{sW}, 10")
    E(f"s_add_u32 s95, s{sT0}, s{sPS}")
    srd(E, rDBG, G.pDBG, 256)
    srd(E, rOUT, G.pOUT, 5242880)
    E(f"v_and_b32 v{vC}, 15, v{vL}")
    E(f"v_bfe_u32 v{vGam}, v{vL}, 4, 1")
    E(f"v_bfe_u32 v{vt[0]}, v{vL}, 1, 1")
    E(f"v_lshl_add_u32 v{vGam}, v{vGam}, 1, v{vt[0]}")
    E(f"v_bfe_u32 v{vR4}, v{vL}, 2, 2")
    E(f"v_lshrrev_b32 v{vHH}, 5, v{vL}")
    E(f"v_lshlrev_b32 v{vt[0]}, 3, v{vGam}")
    E(f"v_and_b32 v{vt[1]}, 1, v{vL}")
    E(f"v_mul_u32_u24 v{vt[1]}, 5, v{vt[1]}")
    E(f"v_lshl_add_u32 v{vt[2]}, v{vR4}, 1, v{vHH}")
    E(f"v_mul_u32_u24 v{vt[2]}, 480, v{vt[2]}")
    for T in range(4):
        pk = sum((30 if e is None else 10 * e[0] + e[1]) << (8 * i) for i, e in enumerate(TA[T]))
        E(f"s_mov_b32 s9, {pk}")
        E(f"v_bfe_u32 v{vt[3]}, s9, v{vt[0]}, 8")
        E(f"v_add_u32 v{vt[3]}, v{vt[3]}, v{vt[1]}")
        E(f"v_min_u32 v{vt[3]}, 31, v{vt[3]}")
        E(f"v_lshl_add_u32 v{vWt[T]}, v{vt[3]}, 3, v{vt[2]}")
    E(f"v_and_b32 v{vt[0]}, 31, v{vL}")
    E(f"v_bfe_u32 v{vt[1]}, v{vL}, 1, 3")
    E(f"v_xor_b32 v{vt[1]}, v{vt[1]}, v{vHH}")
    E(f"v_lshlrev_b32 v{vt[0]}, 7, v{vt[0]}")
    E(f"v_lshl_add_u32 v{vt[0]}, v{vt[1]}, 4, v{vt[0]}")
    for j in range(4):
        E(f"v_xor_b32 v{vXrs[j]}, {32*j}, v{vt[0]}")
        E(f"v_add_u32 v{vXrs[j]}, s{sXR}, v{vXrs[j]}")
    E(f"s_and_b32 s{sH}, s{sW}, 1")
    E(f"s_lshr_b32 s{sFT}, s{sW}, 1")
    E(f"s_mov_b32 s94, {f32(math.log2(math.e))}")
    vPa = [TM + 16, TM + 17]
    E(f"v_mul_u32_u24 v{vt[0]}, 800, v{vHH}")
    E(f"v_mul_u32_u24 v{vt[1]}, 40, v{vR4}")
    E(f"v_lshl_add_u32 v{vt[1]}, v{vGam}, 3, v{vt[1]}")
    E(f"v_and_b32 v{vt[2]}, 1, v{vL}")
    E(f"v_cmp_eq_u32 vcc, v{vt[2]}, v{vHH}")
    for i, sp in enumerate((sP, sPQ)):
        E(f"s_and_b32 s{sT0}, s{sp}, 1")
        E(f"s_mul_i32 s{sT0}, s{sT0}, 1600")
        E(f"v_add3_u32 v{vt[3]}, v{vt[0]}, v{vt[1]}, s{sT0}")
        E(f"v_mov_b32 v{vPa[i]}, 3200")
        E(f"v_cndmask_b32 v{vPa[i]}, v{vPa[i]}, v{vt[3]}, vcc")
    E(f"v_lshlrev_b32 v{vPhi+1}, 2, v0")
    E(f"v_mov_b32 v{TM+4}, 0")
    for i in range(2):
        for t in range(2):
            E(f"v_mov_b32 v{PF+24*i+16+4*t+2}, 0"); E(f"v_mov_b32 v{PF+24*i+16+4*t+3}, 0")
    E(f"v_mul_u32_u24 v{vPk}, 80, v{vL}")
    E(f"v_add_u32 v{vPk}, s{sXR}, v{vPk}")
    E(f"v_mul_u32_u24 v{vVw}, 48, v{vL}")
    E(f"v_add_u32 v{vVw}, s{sXR}, v{vVw}")
    E(f"v_lshl_add_u32 v{vt[0]}, v{vHH}, 3, v{vR4}")
    E(f"v_bfe_u32 v{vt[1]}, v{vL}, 4, 1")
    E(f"v_lshlrev_b32 v{vt[1]}, 2, v{vt[1]}")
    E(f"v_and_b32 v{vt[2]}, 1, v{vL}")
    E(f"v_lshl_add_u32 v{vt[2]}, v{vt[2]}, 1, v{vt[1]}")
    E(f"v_bfe_u32 v{vt[3]}, v{vL}, 1, 1")
    E(f"v_add_u32 v{vt[2]}, v{vt[2]}, v{vt[3]}")
    E(f"v_mul_u32_u24 v{vA}, 80, v{vt[0]}")
    E(f"v_lshl_add_u32 v{vA}, v{vt[2]}, 3, v{vA}")
    E(f"s_mul_i32 s{sT0}, s{sH}, 2560")
    E(f"s_lshl_b32 s{sT1}, s{sFT}, 6")
    E(f"s_add_u32 s{sT0}, s{sT0}, s{sT1}")
    E(f"s_add_u32 s{sT0}, s{sT0}, {XR}")
    E(f"v_add_u32 v{vA}, s{sT0}, v{vA}")
    E(f"v_and_b32 v{vt[2]}, 3, v{vL}")
    E(f"v_add_u32 v{vt[2]}, v{vt[2]}, v{vt[1]}")
    E(f"v_mul_u32_u24 v{vB}, 48, v{vt[0]}")
    E(f"v_lshl_add_u32 v{vB}, v{vt[2]}, 3, v{vB}")
    E(f"s_mul_i32 s{sT0}, s{sH}, 1536")
    E(f"s_add_u32 s{sT0}, s{sT0}, {XR+5120}")
    E(f"v_add_u32 v{vB}, s{sT0}, v{vB}")
    E(f"v_and_b32 v{vt[0]}, 31, v{vL}")
    E(f"s_lshl_b32 s{sT0}, s{sH}, 4")
    E(f"v_add_u32 v{vt[1]}, s{sT0}, v{vt[0]}")
    E(f"v_subrev_u32 v{vt[2]}, 20, v{vt[1]}")
    E(f"v_min_u32 v{vt[1]}, v{vt[1]}, v{vt[2]}")
    E(f"v_cmp_gt_u32 vcc, 20, v{vt[0]}")
    E(f"v_mov_b32 v{vt[3]}, 0x4000000")
    E(f"v_cndmask_b32 v{vt[1]}, v{vt[0]}, v{vt[1]}, vcc")
    E(f"v_lshlrev_b32 v{vt[1]}, 4, v{vt[1]}")
    E(f"v_cmp_gt_u32 vcc, 24, v{vt[0]}")
    E(f"s_cmp_eq_u32 s{sFT}, 0")
    E(f"s_mov_b32 s9, 0x4000000")
    E(f"s_cselect_b32 s{sT0}, 384, s9")
    E(f"s_cselect_b32 s{sT1}, 768, s9")
    E(f"v_cndmask_b32 v{vt[1]}, v{vt[3]}, v{vt[1]}, vcc")
    E(f"v_mul_lo_u32 v{vS1}, v{vHH}, s{sT0}")
    E(f"v_add_u32 v{vS1}, v{vS1}, v{vt[1]}")
    E(f"v_add_u32 v{vS2}, s{sT1}, v{vS1}")
    E(f"s_mul_i32 s{sT0}, s{sH}, 1920")
    E(f"s_mul_i32 s{sT1}, s{sFT}, 1536")
    E(f"s_add_u32 s{sPS}, s{sPS}, s{sT0}")
    E(f"s_add_u32 s{sPS}, s{sPS}, s{sT1}")
    E(f"v_min_u32 v{vPi}, 239, v0")
    E(f"v_lshlrev_b32 v{vPi}, 4, v{vPi}")
    E(f"v_bfe_u32 v{vt[0]}, v{vL}, 3, 2")
    E(f"v_and_b32 v{vt[1]}, 3, v{vL}")
    E(f"v_lshl_add_u32 v{vt[0]}, v{vt[0]}, 2, v{vt[1]}")
    E(f"v_mul_u32_u24 v{vt[1]}, 1920, v{vHH}")
    E(f"v_lshl_add_u32 v{vt[2]}, v{vt[0]}, 4, v{vt[1]}")
    E(f"v_add_u32 v{vt[2]}, {KVT}, v{vt[2]}")
    E(f"v_bfe_u32 v{vt[1]}, v{vL}, 2, 1")
    E(f"v_cmp_eq_u32 vcc, v{vt[1]}, v{vHH}")
    E(f"v_mov_b32 v{vKa}, {ZKV}")
    E(f"v_cndmask_b32 v{vKa}, v{vKa}, v{vt[2]}, vcc")
    E(f"v_cndmask_b32 v{vt[0]}, 64, v{vt[0]}, vcc")
    E(f"v_and_b32 v{vt[1]}, 1, v{vt[0]}")
    E(f"v_lshlrev_b32 v{vt[1]}, 4, v{vt[1]}")
    E(f"v_mov_b32 v{vt[2]}, 0x3f80")
    E(f"v_lshlrev_b32 v{vt[1]}, v{vt[1]}, v{vt[2]}")
    E(f"v_lshrrev_b32 v{vt[0]}, 1, v{vt[0]}")
    for i in range(4):
        E(f"v_cmp_eq_u32 vcc, {i}, v{vt[0]}")
        E(f"v_cndmask_b32 v{ID+i}, 0, v{vt[1]}, vcc")
    E(f"v_and_b32 v{vt[1]}, 1, v{vG}")
    E(f"v_mul_u32_u24 v{vt[1]}, 20480, v{vt[1]}")
    E(f"v_lshl_add_u32 v{vt[1]}, v{vC}, 4, v{vt[1]}")
    E(f"v_mul_u32_u24 v{vO1}, 768, v{vHH}")
    E(f"v_add_u32 v{vO1}, v{vO1}, v{vt[1]}")
    E(f"v_lshl_add_u32 v{vO3}, v{vHH}, 26, v{vt[1]}")
    E(f"s_lshl_b32 s{sT0}, s{sR}, 2")
    E(f"s_add_u32 s{sT0}, s{sT0}, s{sW}")
    E(f"s_mul_i32 s{sT0}, s{sT0}, 40960")
    E(f"s_mul_i32 s{sT1}, s{sPQ}, 1280")
    E(f"s_add_u32 s{sT0}, s{sT0}, s{sT1}")
    E(f"s_add_u32 s{sOS}, s{sT0}, {G.O_BASE}")
    E(f"v_lshlrev_b32 v{vC4}, 2, v{vC}")
    E(f"s_lshl_b32 s{sFO}, s{sTBo}, 3")
    E(f"s_add_u32 s{sFO}, s{sFO}, s{sCT}")
    E(f"s_lshl_b32 s{sFO}, s{sFO}, 2")
    E(f"s_add_u32 s{sFO}, s{sFO}, s{sW}")
    E(f"s_lshl_b32 s{sFO}, s{sFO}, 7")
    E(f"s_add_u32 s{sFO}, s{sFO}, {G.FLAGO_BASE}")
    E(f"s_mul_i32 s{sOL}, s{sTBo}, 81920")
    E(f"s_mul_i32 s{sT0}, s{sW}, 5120")
    E(f"s_add_u32 s{sOL}, s{sOL}, s{sT0}")
    E(f"s_add_u32 s{sOL}, s{sOL}, {G.O_BASE}")
    E(f"s_lshl_b32 s{sWL}, s{sCT}, 2")
    E(f"s_add_u32 s{sWL}, s{sWL}, s{sW}")
    E(f"s_mul_i32 s{sWL}, s{sWL}, 25600")
    E(f"s_add_u32 s{sWL}, s{sWL}, {G.PWO_BASE}")
    E(f"v_mul_u32_u24 v{vRw}, 160, v{vC}")
    E(f"v_mul_u32_u24 v{vt[1]}, 40, v{vG}")
    E(f"s_mul_i32 s93, s{sW}, 2560")
    E(f"s_add_u32 s{sT0}, s93, 30720")
    E(f"v_add3_u32 v{vRw}, v{vRw}, v{vt[1]}, s{sT0}")
    for m in range(3):
        E(f"v_add_u32 v{vt[0]}, {64*m}, v{vL}")
        E(div_const(vt[1], vt[0], 10))
        E(f"v_mul_u32_u24 v{vt[1]}, 2400, v{vt[1]}")
        E(f"v_lshl_add_u32 v{vSo[m]}, v{vt[0]}, 4, v{vt[1]}")
    E(f"s_add_u32 s22, s{sW}, s{sCT}")
    E(f"s_and_b32 s22, s22, 3")
    E(f"s_lshl_b32 s{sOUT}, s{sTBo}, 2")
    E(f"s_add_u32 s{sOUT}, s{sOUT}, s22")
    E(f"s_mul_i32 s{sOUT}, s{sOUT}, {16*2560}")
    E(f"s_mul_i32 s{sT1}, s{sCT}, 160")
    E(f"s_add_u32 s{sOUT}, s{sOUT}, s{sT1}")
    E(f"s_lshl_b32 s{sF1}, s{sP}, 13")
    E(G.word_off(sF1, sR, 2, sT1))
    E(f"s_add_u32 s{sF1}, s{sF1}, {G.FLAGW_BASE}")
    E(f"s_lshl_b32 s{sFP}, s{sPQ}, 4")
    E(f"s_add_u32 s{sFP}, s{sFP}, s{sR}")
    E(f"s_lshl_b32 s{sFP}, s{sFP}, 9")
    E(f"s_add_u32 s{sFP}, s{sFP}, {G.FLAGW_BASE}")
    E(f"s_lshl_b32 s{sF2}, s{sR}, 1")
    E(f"s_add_u32 s{sF2}, s{sF2}, s{sFT}")
    E(f"s_lshl_b32 s{sF2}, s{sF2}, 12")
    E(G.word_off(sF2, sPQ, 2, sT1))
    E(f"s_add_u32 s{sF2}, s{sF2}, {G.FLAGO_BASE}")
    E(f"s_lshl_b32 s{sT1}, s{sW}, 7")
    E(f"s_add_u32 s{sFP}, s{sT1}, s{sFP}")
    for sa in (sFP, sFO): E(f"s_buffer_load_dword s23, s[{rWS}:{rWS+3}], s{sa} glc")
    vCo = TM + 15
    E(f"s_mul_i32 s{sT0}, s{sW}, 20")
    E(f"v_min_u32 v{vt[0]}, 19, v{vL}")
    E(f"v_add_u32 v{vt[0]}, s{sT0}, v{vt[0]}")
    E(f"v_lshrrev_b32 v{vt[1]}, 3, v{vt[0]}")
    E(f"v_and_b32 v{vt[0]}, 7, v{vt[0]}")
    E(f"v_lshlrev_b32 v{vt[0]}, 2, v{vt[0]}")
    E(f"v_lshl_add_u32 v{vCo}, v{vt[1]}, 7, v{vt[0]}")
    E(f"s_mov_b32 s{sFC}, {G.FLAGC_BASE}")
    sWk = [16, 17, 18, 19, 20]; sKo = [40, 41, 42, 43, 44]
    E(f"s_and_b32 s{sT0}, s{sTBo}, 3")
    for k in range(5):
        E(f"s_lshl_b32 s{sKo[k]}, s{sT0}, 10")
        E(f"s_mul_i32 s{sWk[k]}, s{sT0}, 5120")
        E(f"s_add_u32 s{sWk[k]}, s{sWk[k]}, s{sWL}")
        if k < 4:
            E(f"s_add_u32 s{sT0}, s{sT0}, 1")
            E(f"s_cmp_eq_u32 s{sT0}, 5")
            E(f"s_cselect_b32 s{sT0}, 0, s{sT0}")

    def rdW(sig, ks):
        b = WF + 16 * (ks % 2)
        return [f"ds_read_b64_tr_b16 {v(b+4*T+2*a,2)}, v{vWt[T]} offset:{wslot(sig) + 4096*ks + 240*a}" for T in range(4) for a in range(2)]
    def rdX(sig):
        return [f"ds_read_b128 {v(XF+16*(sig%2)+4*j,4)}, v{vXrs[j]} offset:{4096*(sig%2)}" for j in range(4)]
    def mm(sig, ks):
        L = []
        for T in range(4):
            d = v(ACC + 16 * T, 16)
            if "--nomfma" in sys.argv:
                L.append(f"v_mov_b32 v{ACC+T}, v{WF+16*(ks%2)+4*T+3}"); continue
            if "--m16" in sys.argv:
                L.append(("group", [f"{M16} {v(ACC+16*T+4*(2*(ks%2)+e),4)}, {v(WF+16*(ks%2)+4*T,4)}, {v(XF+16*(sig%2)+4*((ks+e)%4),4)}, {v(ACC+16*T+4*(2*(ks%2)+e),4)}" for e in range(2)])); continue
            L.append(f"{M32} {d}, {v(WF+16*(ks%2)+4*T,4)}, {v(XF+16*(sig%2)+4*ks,4)}, {d if (sig or ks) else 0}")
        return L
    def weave(M, rd, vm):
        out = []
        n = (len(rd) + 2) // 3
        for i, x in enumerate(M):
            out.append(x)
            if i < 3: out += rd[n * i:n * (i + 1)]
            if i == 1 and len(vm) > 0: out.append(vm[0])
            if i == 3 and len(vm) > 1: out += vm[1:]
        return out
    wphi = [f"ds_write_b128 v{vPhi}, {v(TM,4)} offset:{TAB}", f"ds_write_b32 v{vPhi+1}, v{TM+4} offset:{TAB+4096}"]
    rphi = []
    for i in range(2):
        for c in range(3):
            for t in range(2):
                b = PF + 24 * i + 8 * c + 4 * t
                rphi.append(f"ds_read_b64_tr_b16 {v(b,2)}, v{vPa[i]} offset:{TAB + 320*c + 32*t}")
                if c < 2: rphi.append(f"ds_read_b64_tr_b16 {v(b+2,2)}, v{vPa[i]} offset:{TAB + 320*c + 160 + 32*t}")
    nld = f"buffer_load_dword v{vNon}, off, s[{rDBG}:{rDBG+3}], 0 sc1"
    cld = f"buffer_load_dword v{vFc}, v{vCo}, s[{rWS}:{rWS+3}], s{sFC} offen sc1"
    opois = [f"buffer_store_dwordx4 {v(PN,4)}, v{vO1}, s[{rWS}:{rWS+3}], s{sOS} offen sc1",
             f"buffer_store_dwordx4 {v(PN,4)}, v{vO1}, s[{rWS}:{rWS+3}], s{sOS} offen offset:256 sc1",
             f"buffer_store_dwordx4 {v(PN,4)}, v{vO3}, s[{rWS}:{rWS+3}], s{sOS} offen offset:512 sc1"]
    allpois = [f"buffer_store_dwordx4 {v(PN,4)}, v{vL16}, s[{rWS}:{rWS+3}], s95 offen sc1"] + opois[:2] + [("tag", opois[2], "pois")]
    if "--earlypois" in sys.argv: E(allpois)
    E.wait_vm("S0")
    E("s_barrier")
    E(rdX(0)); E(rdW(0, 0))
    w2 = dmaW(2)
    E(w2[:2])
    pendW = w2[2:]
    for sig in range(10):
        xn = dmaX(sig + 2) if sig + 2 < 10 else []
        extra = [[], [], []]
        if sig == 8:
            extra = [wphi, [], []]
            pendW = [("tag", nld, "nonce"), ("tag", cld, "cfl")]
            if "--earlypois" not in sys.argv: xn = allpois
        if sig == 9:
            extra = [rphi[:7], rphi[7:14], rphi[14:]]
        E(weave(mm(sig, 0), rdW(sig, 1) + extra[0], pendW))
        E(weave(mm(sig, 1), rdW(sig, 2) + extra[1], xn[:2]))
        E(weave(mm(sig, 2), rdW(sig, 3) + extra[2], xn[2:]))
        if sig < 9:
            E.wait_vm(f"S{sig+1}")
            E.wait_lg()
            E("s_barrier")
            wn = dmaW(sig + 3) if sig + 3 < 10 else []
            E(weave(mm(sig, 3), rdX(sig + 1)[:1] + rdW(sig + 1, 0) + rdX(sig + 1)[1:], wn[:2]))
            pendW = wn[2:]
        else:
            E(mm(sig, 3))
    ST(E, "gemm")
    if "--gemmonly" in sys.argv:
        ST.dump(E, sW, ACC)
        E("s_endpgm")
        return ST

    def acc(sec, j):
        for T in range(4):
            for g_, e in enumerate(TA[T]):
                if e == (sec, j): return ACC + 16 * T + 4 * g_
    QB = XF
    PD = WF
    EE = TM
    def pack(sec, dst):
        return [f"v_cvt_pk_bf16_f32 v{dst+2*j+e}, v{acc(sec,j)+2*e}, v{acc(sec,j)+2*e+1}" for j in range(5) for e in range(2)]
    def premm(qb, i):
        L = []
        for c in range(3):
            for t in range(2):
                d = v(PD + 16 * t, 16)
                L.append(f"{M32} {d}, {v(PF+24*i+8*c+4*t,4)}, {v(qb+4*c,4)}, {d if c else 0}")
        return L
    def softmax(out_plus, out_minus, after_plus):
        PP = PD
        mx, mn, m = MP, vMn, MP
        L = [f"v_max3_f32 v{mx}, v{PP}, v{PP+1}, v{PP+2}", f"v_min3_f32 v{mn}, v{PP}, v{PP+1}, v{PP+2}"]
        for i in range(3, 19, 2):
            L += [f"v_max3_f32 v{mx}, v{mx}, v{PP+i}, v{PP+i+1}", f"v_min3_f32 v{mn}, v{mn}, v{PP+i}, v{PP+i+1}"]
        L += [f"v_max_f32 v{mx}, v{mx}, v{PP+19}", f"v_min_f32 v{mn}, v{mn}, v{PP+19}"]
        for sgn, dst, src, outp in ((1, EE, mx, out_plus), (-1, PP, mn, out_minus)):
            L.append(f"v_mul_f32 v{m}, s94, v{src}")
            for i in range(20):
                L.append(f"v_fma_f32 v{dst+i}, v{PP+i}, s94, -v{m}" if sgn > 0 else f"v_fma_f32 v{dst+i}, -v{PP+i}, s94, v{m}")
            for i in range(20):
                L.append(f"v_exp_f32 v{dst+i}, v{dst+i}")
                if i == 2: L.append(f"v_add_f32 v{m}, v{dst}, v{dst+1}")
                if i > 2: L.append(f"v_add_f32 v{m}, v{m}, v{dst+i-1}")
            L += [f"v_add_f32 v{m}, v{m}, v{dst+19}", f"v_rcp_f32 v{m}, v{m}"]
            for i in range(10):
                L.append(f"v_mul_f32 v{dst+2*i}, v{m}, v{dst+2*i}")
                L.append(f"v_mul_f32 v{dst+2*i+1}, v{m}, v{dst+2*i+1}")
                L.append(f"v_cvt_pk_bf16_f32 v{outp+i}, v{dst+2*i}, v{dst+2*i+1}")
            if sgn > 0: L += after_plus
        return L
    E(f"v_mov_b32 v{QB+10}, 0"); E(f"v_mov_b32 v{QB+11}, 0")
    E(pack(1, QB))
    VP = XF + 12
    QB2 = TM + 20
    side = pack(2, VP) + [f"v_mov_b32 v{VP+10}, 0x3f80", f"v_mov_b32 v{VP+11}, 0"] + \
           [f"ds_write_b128 v{vVw}, {v(VP+4*i,4)} offset:{5120+16*i}" for i in range(3)] + \
           pack(0, QB2) + [f"v_mov_b32 v{QB2+10}, 0", f"v_mov_b32 v{QB2+11}, 0"]
    E(merge(premm(QB, 0), side[:15])); E(side[15:])
    G.nonce_get(E, nld, vNon)
    spin(E, ["s_sleep 2", cld], [f"v_cmp_ne_u32 vcc, s{sN}, v{vFc}"], "cfl")
    WOr = [ACC + 4 * i for i in range(16)] + [vXo[0], vWo[0], vWt[0]] + [XF + 20 + 4 * i for i in range(3)] + [TM + 4 * i for i in range(3)]
    assert all(r % 4 == 0 for r in WOr)
    vL4k = vVw
    NW1, NW2 = [int(x) for x in ([a[5:] for a in sys.argv if a.startswith('--wo=')] + ['10,10'])[0].split(',')]
    E(f"v_add_u32 v{vL4k}, 4096, v{vL16}")
    def wo_ld(i):
        k, T = divmod(i, 5)
        return f"buffer_load_dwordx4 {v(WOr[i],4)}, v{vL16 if T < 4 else vL4k}, s[{rWS}:{rWS+3}], s{sWk[k]} offen offset:{1024*(T%4)} sc1"
    PHK = XF + 12
    smk = softmax(PHK, PHK + 10, [f"ds_write_b128 v{vPk}, {v(PHK,4)}", f"ds_write_b128 v{vPk}, {v(PHK+4,4)} offset:16"])
    E(merge(smk[:8*NW1], [wo_ld(i) for i in range(NW1)])); E(smk[8*NW1:])
    for i in range(2, 5): E(f"ds_write_b128 v{vPk}, {v(PHK+4*i,4)} offset:{16*i}")
    ST(E, "phik")
    E(premm(QB2, 1))
    E.wait_vm("pois")
    E.wait_lg()
    E("s_barrier")
    KQ = [PF + 4 * i for i in range(12)] + [TM + 20 + 4 * i for i in range(4)]
    KD = XF
    def rdk(i):
        j, k2 = divmod(i, 2)
        L = []
        for a in range(2):
            L.append(f"ds_read_b64_tr_b16 {v(KQ[2*i]+2*a,2)}, v{vA} offset:{8192*j + 80*(16*k2+4*a)}")
        for a in range(2):
            L.append(f"ds_read_b64_tr_b16 {v(KQ[2*i+1]+2*a,2)}, v{vB} offset:{8192*j + 48*(16*k2+4*a)}")
        return L
    E(rdk(0) + rdk(1) + rdk(2))
    for i in range(8):
        if i + 3 < 8: E(rdk(i + 3))
        d = v(KD, 16)
        E(f"{M32} {d}, {v(KQ[2*i],4)}, {v(KQ[2*i+1],4)}, {d if i else 0}")
    SFL = 60
    PH = XF
    smq = softmax(PH, PH + 10, [])
    E(smq[:10])
    KP = XF + 16
    for i in range(8):
        E(f"v_cvt_pk_bf16_f32 v{KP+i}, v{KD+2*i}, v{KD+2*i+1}")
        E(f"v_min_u32 v{KP+i}, -2, v{KP+i}")
        if i == 3: E(f"buffer_store_dwordx4 {v(KP,4)}, v{vS1}, s[{rWS}:{rWS+3}], s{sPS} offen sc1")
    E(f"buffer_store_dwordx4 {v(KP+4,4)}, v{vS2}, s[{rWS}:{rWS+3}], s{sPS} offen sc1")
    vPu = vA
    def push(cond, mask, saddr):
        skip = newlabel("nopush")
        E(cond)
        E(f"s_cbranch_scc1 {skip}")
        E(f"s_mov_b64 exec, {mask}")
        E.raw(f"    buffer_store_dword v{vNon}, v{vPu}, s[{rWS}:{rWS+3}], s{saddr} offen sc1")
        E("s_mov_b64 exec, -1")
        E.label(skip)
    E(f"v_lshlrev_b32 v{vPu}, 9, v{vL}")
    push(f"s_cmp_lg_u32 s{sW}, 0", 0xffff, sF1)
    ST(E, "T0")
    PLr = KQ
    pld = []
    E(f"s_and_b32 s21, s{sR}, 3")
    E(f"s_lshl_b32 s21, s21, 14")
    E(f"s_add_u32 s21, s21, s{sPL}")
    for r in range(16):
        pld.append(f"s_xor_b32 s9, s21, {G.P_PITCH*r}")
        pld.append(f"buffer_load_dwordx4 {v(PLr[r],4)}, v{vPi}, s[{rWS}:{rWS+3}], s9 offen sc1")
    pg = [("group", [pld[2*r], ("tag", pld[2*r+1], "part")]) for r in range(16)]
    E(merge(smq[10:-40], [wo_ld(i) for i in range(NW1, NW2)]))
    E(G.sflag_loads(sFP, 1, 4, SFL))
    E(smq[-40:])
    ok1 = newlabel("f1ok")
    E.wait_lg()
    E(G.sflag_check(4, SFL))
    E(f"s_cbranch_scc0 {ok1}")
    G.sflag_wait(E, sFP, 1, 4, SFL)
    E.label(ok1)
    E("s_barrier")
    ST(E, "f1ok")
    E(pg)
    ST(E, "phiq")
    RD_ = WF
    vCk = MP
    def reduce_items():
        L = []
        for r in range(16):
            d = v(RD_, 16); p = PLr[r]
            L.append(f"{M32} {d}, {v(ID,4)}, {v(p,4)}, {d if r else 0}")
            L.append(f"v_max3_u32 v{vCk}, v{p}, v{p+1}, {'v%d' % vCk if r else 0}")
            L.append(f"v_max3_u32 v{vCk}, v{p+2}, v{p+3}, v{vCk}")
        L.append(f"v_cmp_eq_u32 vcc, -1, v{vCk}")
        return L
    def retry(loads, check):
        ok = newlabel("rok"); sp = newlabel("rsp")
        E(f"s_cbranch_vccz {ok}")
        E.raw("    s_mov_b32 s13, 0")
        E.label(sp)
        for t in ["s_sleep 2"] + loads + ["s_add_u32 s13, s13, 1", f"s_cmp_gt_u32 s13, {G.SPIN_MAX}", f"s_cbranch_scc1 {ok}", "s_waitcnt vmcnt(0)"] + check + [f"s_cbranch_vccnz {sp}"]:
            E.raw("    " + t)
        E.label(ok)
    E(reduce_items())
    retry(pld, reduce_items())
    ST(E, "part")
    SM = WF + 16
    for e in range(4): E(f"v_cvt_pk_bf16_f32 v{SM+e}, v{RD_+2*e}, v{RD_+2*e+1}")
    E(f"ds_write_b128 v{vPi}, {v(SM,4)} offset:{KVT}")
    E.wait_lg()
    E("s_barrier")
    OD = WF
    AF = PF
    fo = [(c, t) for c in range(5) for t in (1, 0)]
    for i, (c, t) in enumerate(fo): E(f"ds_read_b128 {v(AF+4*i,4)}, v{vKa} offset:{384*c + 256*t}")
    sTile = [72, 73, 74, 75]
    vOk = [vPk, vS1, vS2, vPi, vMn]
    pre = []
    for i in range(4):
        pre += [("group", [f"s_add_u32 s9, s22, {i+1}", f"s_and_b32 s9, s9, 3", f"s_mul_i32 s{sTile[i]}, s9, 20480", f"s_add_u32 s{sTile[i]}, s{sTile[i]}, s{sOL}",
                f"s_cmp_ge_u32 s9, 2", f"s_cselect_b32 s8, 18432, 0", f"s_mul_i32 s9, s9, 15360", f"s_add_u32 s9, s9, s8",
                f"v_add_u32 v{vXrs[i]}, s9, v{vL16}"])]
    pre += [("group", [f"v_add_u32 v{vOk[k]}, s{sKo[k]}, v{vL16}" for k in range(5)])]
    om = []
    for i, (c, t) in enumerate(fo):
        d = v(OD + 16 * t, 16)
        om.append(f"{M32} {d}, {v(AF+4*i,4)}, {v(PH+4*c,4)}, {d if c else 0}")
    E(merge(om, pre))
    E(f"v_add_f32 v{MP}, {f32(1e-6)}, v{OD+20}")
    E(f"v_rcp_f32 v{MP}, v{MP}")
    OP = TM + 20
    for i in (8, 9, 0, 1, 2, 3, 4, 5, 6, 7):
        E(f"v_mul_f32 v{OD+2*i}, v{MP}, v{OD+2*i}"); E(f"v_mul_f32 v{OD+2*i+1}, v{MP}, v{OD+2*i+1}")
        E(f"v_cvt_pk_bf16_f32 v{OP+i}, v{OD+2*i}, v{OD+2*i+1}")
        E(f"v_min_u32 v{OP+i}, -2, v{OP+i}")
        if i == 0:
            E(f"v_permlane32_swap_b32 v{OP+8}, v{OP+10}"); E(f"v_permlane32_swap_b32 v{OP+9}, v{OP+11}")
            E(f"buffer_store_dwordx4 {v(OP+8,4)}, v{vO3}, s[{rWS}:{rWS+3}], s{sOS} offen offset:512 sc1")
        if i == 3: E(f"buffer_store_dwordx4 {v(OP,4)}, v{vO1}, s[{rWS}:{rWS+3}], s{sOS} offen sc1")
    E(f"buffer_store_dwordx4 {v(OP+4,4)}, v{vO1}, s[{rWS}:{rWS+3}], s{sOS} offen offset:256 sc1")
    push(f"s_cmp_lg_u32 s{sH}, 0", 0xff, sF2)
    ST(E, "opub")
    for i in range(NW2, 25): E(wo_ld(i))
    OFr = [PF + 4 * i for i in range(12)] + [WF + 4 * i for i in range(8)]
    OA = [[XF + 4 * T for T in range(5)], [TM + 12 + 4 * T for T in range(5)]]
    G.sflag_wait(E, sFO, 1, 4, SFL)
    ST(E, "f2ok")
    def o_ld(i):
        return [f"buffer_load_dwordx4 {v(OFr[5*i+k],4)}, v{vOk[k]}, s[{rWS}:{rWS+3}], s{sTile[i]} offen sc1" for k in range(5)]
    for i in range(4):
        for t in o_ld(i): E(t, tag=f"of{i}")
    ST(E, "oreq")
    pend = []
    for i in range(4):
        rg = [OFr[5 * i + k] + e for k in range(5) for e in range(4)]
        chk = [f"v_max_u32 v{MP}, v{rg[0]}, v{rg[1]}"] + [f"v_max3_u32 v{MP}, v{MP}, v{rg[e]}, v{rg[e+1]}" for e in range(2, 20, 2)] + [f"v_cmp_eq_u32 vcc, -1, v{MP}"]
        E(chk)
        retry(sum([o_ld(k) for k in range(i, 4)], []), chk)
        if i == 0: ST(E, "ofr")
        M = []
        for k in range(5):
            for T in range(5):
                d = v(OA[i % 2][T], 4)
                M.append(f"{M16} {d}, {v(WOr[5*k+T],4)}, {v(OFr[5*i+k],4)}, {d if k else 0}")
        E(M[:6]); E(merge(M[6:], pend))
        pend = [f"ds_write_b128 v{vXrs[i]}, {v(OA[i%2][T],4)} offset:{5120*i + 1024*T}" for T in range(5)] if i < 3 else []
    ST(E, "ogemm")
    E.wait_lg()
    E("s_barrier")
    RR = ACC
    for j in range(3):
        for T in range(5): E(f"ds_read_b128 {v(RR+20*j+4*T,4)}, v{vXrs[3]} offset:{5120*j + 1024*T}")
    RP = PF
    for j in range(3):
        for T in range(5):
            for e in range(4): E(f"v_add_f32 v{OA[1][T]+e}, v{OA[1][T]+e}, v{RR+20*j+4*T+e}")
            if j == 2:
                E(f"v_cvt_pk_bf16_f32 v{RP+2*T}, v{OA[1][T]}, v{OA[1][T]+1}")
                E(f"v_cvt_pk_bf16_f32 v{RP+2*T+1}, v{OA[1][T]+2}, v{OA[1][T]+3}")
                E(f"ds_write_b64 v{vRw}, {v(RP+2*T,2)} offset:{8*T}")
    E(f"v_add_u32 v{vPk}, s93, v{vL16}")
    for m in range(3): E(f"ds_read_b128 {v(RP+12+4*m,4)}, v{vPk} offset:{30720 + 1024*m}")
    for m in range(3):
        if m == 2: E("s_mov_b32 exec_hi, 0")
        E(f"buffer_store_dwordx4 {v(RP+12+4*m,4)}, v{vSo[m]}, s[{rOUT}:{rOUT+3}], s{sOUT} offen")
    E("s_mov_b64 exec, -1")
    if G.PROFILE:
        E.wait_vm()
        ST(E, "end")
    ST.dump(E, sW, RP + 40)
    E("s_endpgm")
    return ST
```

```python
import math, sys
from asmlib import *
M16 = "v_mfma_f32_16x16x32_bf16"

def gen_B(E, G):
    f32, f32val, Alloc, srd, spin, newlabel, cmul, zipl = G.f32, G.f32val, G.Alloc, G.srd, G.spin, G.newlabel, G.cmul, G.zipl
    rWS, rOUT, rDBG, rIN = G.rWS, G.rOUT, G.rDBG, G.rIN
    sN = G.sN
    G.fresh(E)
    ST = G.Stamps(84)
    sW, sCG, sD, sTB, sCB, sSC, sKT, sT0, sT1, sT2 = 76, 77, 78, 79, 80, 81, 82, 4, 5, 6
    sUS, sUT, sFU, sFUp, sFY, sFYp, sUI, sYS, sYL, sYO = 64, 65, 66, 67, 68, 69, 70, 71, 72, 73
    U_IMG = 2048; KT_BASE = 18432; KT_SZ = 2560; SC_BASE = 28672; SC_SZ = 11 * 1040
    Y_OFF = 6144; Y_PITCH = SC_SZ + 144
    SIG_SZ = 2176
    A = Alloc(1, 256)
    vL = A(); vG = A(); vC = A()
    vt = [A() for _ in range(8)]
    big = A(160, 4)
    KG = A(32, 4)
    BN = A(8, 4)
    E("s_setprio 3")
    E(f"v_and_b32 v{vL}, 63, v0")
    E(f"v_lshrrev_b32 v{vt[0]}, 6, v0")
    E(f"v_lshrrev_b32 v{vG}, 4, v{vL}")
    E(f"v_readfirstlane_b32 s{sW}, v{vt[0]}")
    E(f"v_and_b32 v{vC}, 15, v{vL}")
    E(f"s_sub_u32 s{sCG}, s2, {G.NA}")
    E(f"s_lshl_b32 s{sD}, s{sCG}, 2")
    E(f"s_add_u32 s{sD}, s{sD}, s{sW}")
    E(f"s_mul_hi_u32 s{sTB}, s{sCG}, 0x33333334")
    E(f"s_mul_i32 s{sT0}, s{sTB}, 5")
    E(f"s_sub_u32 s{sCB}, s{sCG}, s{sT0}")
    vPo = vt[2]; vSo = A(); vL16 = A()
    SLAB = int(([a[7:] for a in sys.argv if a.startswith('--slab=')] + ['1'])[0])
    def slab_in():
        if "--xnomem" in sys.argv: return
        E("s_setprio 3")
        for i in range(4):
            E(f"s_add_u32 m0, s{sUS}, {1024*i}")
            E(f"s_add_u32 s{sT1}, s74, {4*1280*i}")
            E(f"buffer_load_dwordx4 v{vSo}, s[{rIN}:{rIN+3}], s{sT1} offen lds", tag="slab")
        E(f"s_setprio {G.BPRIO}")
    E(f"s_lshl_b32 s{sT0}, s{sD}, 8")
    E(f"v_lshl_add_u32 v{vPo}, v{vL}, 2, s{sT0}")
    E(f"s_lshl_b32 s{sT0}, s{sD}, 1")
    E(f"v_mov_b32 v{vt[1]}, s{sT0}")
    E(f"v_mul_u32_u24 v{vSo}, 1280, v{vG}")
    E(f"v_lshl_add_u32 v{vSo}, v{vC}, 4, v{vSo}")
    E(f"s_lshl_b32 s{sT0}, s{sTB}, 2")
    E(f"s_add_u32 s{sT0}, s{sT0}, s{sW}")
    E(f"s_mul_i32 s{sYO}, s{sT0}, {16*2560}")
    E(f"s_mul_i32 s{sT0}, s{sT0}, {16*1280}")
    E(f"s_lshl_b32 s{sT1}, s{sCB}, 8")
    E(f"s_add_u32 s74, s{sT0}, s{sT1}")
    E(f"s_add_u32 s{sYO}, s{sYO}, s{sT1}")
    E(f"s_add_u32 s{sYO}, s{sYO}, 1280")
    E(f"s_lshl_b32 s{sUS}, s{sW}, 12")
    E(f"s_add_u32 s{sUS}, s{sUS}, {U_IMG}")
    E.wait_lg()
    ST(E, "start")
    P = [big + 124 + i for i in range(8)]
    if "--noB0" not in sys.argv:
        E(f"global_load_ushort v{P[6]}, v{vt[1]}, s[{G.pLDT}:{G.pLDT+1}]")
        for k, p in enumerate((G.pARE, G.pAIM, G.pBRE, G.pBIM, G.pCRE, G.pCIM)):
            E(f"global_load_dword v{P[k]}, v{vPo}, s[{p}:{p+1}]")
        E(f"global_load_ushort v{P[7]}, v{vt[1]}, s[{G.pDSK}:{G.pDSK+1}]")
        srd(E, rIN, G.pU, 2621440)
        if SLAB in (0, 3): slab_in()
    srd(E, rDBG, G.pDBG, 256)
    skip = newlabel("nonce")
    E(f"s_or_b32 s{sT0}, s{sCG}, s{sW}")
    E(f"s_cbranch_scc1 {skip}")
    E.raw("    s_or_b32 s10, s10, 1")
    E.raw(f"    v_mov_b32 v{vt[0]}, s10")
    E.raw("    s_mov_b64 exec, 1")
    E.raw(f"    buffer_store_dword v{vt[0]}, off, s[{rDBG}:{rDBG+3}], 0 offset:4 sc1")
    E.raw("    s_mov_b64 exec, -1")
    E.label(skip)
    srd(E, rWS, G.pWS, G.WS_SIZE)
    if "--noB0" in sys.argv:
        ST.dump(E, sW, big)
        E("s_endpgm")
        return ST
    srd(E, rOUT, G.pOUT, 5242880)
    E(f"s_setprio {G.BPRIO}")
    E(f"s_mul_i32 s{sSC}, s{sW}, {SC_SZ}")
    E(f"s_add_u32 s{sSC}, s{sSC}, {SC_BASE}")
    E(f"s_mul_i32 s{sKT}, s{sW}, {KT_SZ}")
    E(f"s_add_u32 s{sKT}, s{sKT}, {KT_BASE}")
    E(f"v_lshlrev_b32 v{vL16}, 4, v{vL}")
    vZ = big + 132
    E(f"v_mov_b32 v{vZ}, 0"); E(f"v_mov_b32 v{vZ+1}, 0")
    E(f"v_lshlrev_b32 v{vt[0]}, 3, v0")
    E(f"ds_write_b64 v{vt[0]}, {v(vZ,2)}")
    E(f"v_min_u32 v{vt[0]}, 8, v{vC}")
    E(f"v_lshl_add_u32 v{vt[0]}, v{vt[0]}, 2, s{sKT}")
    TA_POS = 672; TB_POS = TA_POS + 272
    for o in (0, 2 * TA_POS, 2 * TB_POS): E(f"ds_write_b32 v{vt[0]}, v{vZ} offset:{o}")
    vLm = vt[7]
    E(f"v_lshlrev_b32 v{vt[0]}, 3, v{vG}")
    E(f"v_sub_u32 v{vLm}, v{vC}, v{vt[0]}")
    E(f"v_add_u32 v{vLm}, 33, v{vLm}")
    vLf = vt[6]; vK1 = vt[5]
    E(f"v_cvt_f32_u32 v{vLf}, v{vLm}")
    E(f"s_mov_b32 s7, 0x0202")
    E(f"s_mov_b32 s8, 0x10001")
    E(f"v_mov_b32 v{vK1}, 0x01000100")
    sel = {}; adr = {}
    for name, srep, js in (("d", 5, [3]), ("1", 9, [3, 2]), ("2", 17, [3, 2, 1, 0])):
        base = 32 * srep - 24
        vb = vt[2]
        for j in js:
            r = A(); sel[(name, j)] = r
            E(f"v_add_f32 v{vt[0]}, {f32(base + 7 - 2*j)}, v{vLf}")
            E(f"v_add_f32 v{vt[1]}, {f32(base + 6 - 2*j)}, v{vLf}")
            E(f"v_cvt_pk_bf16_f32 v{r}, v{vt[0]}, v{vt[1]}")
            if j == 3:
                E(f"v_lshrrev_b32 v{vt[3]}, 17, v{r}")
                E(f"v_lshlrev_b32 v{vt[3]}, 1, v{vt[3]}")
                E(f"v_mul_u32_u24 v{vb}, s8, v{vt[3]}")
                a = A(); adr[name] = a
                if name == "d":
                    E(f"v_and_b32 v{a}, -2, v{vLm}")
                    E(f"v_lshl_add_u32 v{a}, v{a}, 1, s{sKT}")
                    E(f"v_subrev_u32 v{a}, 16, v{a}")
                else:
                    E(f"v_lshl_add_u32 v{a}, v{vt[3]}, 1, s{sKT}")
                    E(f"v_subrev_u32 v{a}, {2*(0x4300-272)}, v{a}")
            E(f"v_sub_u32 v{r}, v{r}, v{vb}")
            E(f"v_mad_u32_u24 v{r}, v{r}, s7, v{vK1}")
    E(f"v_subrev_u32 v{vt[0]}, 9, v{vLm}")
    E(f"v_min_u32 v{vt[0]}, 31, v{vt[0]}")
    E(f"s_movk_i32 s7, 0x3f80")
    for bI, mask in enumerate((0x1ff << 15, 0x7f << 16)):
        E(f"s_mov_b32 s8, {mask}")
        E(f"v_lshrrev_b32 v{vt[1]}, v{vt[0]}, s8")
        for j in range(4):
            E(f"v_bfe_u32 v{vt[2]}, v{vt[1]}, {7-2*j}, 1")
            E(f"v_bfe_u32 v{vt[3]}, v{vt[1]}, {6-2*j}, 1")
            E(f"v_lshl_or_b32 v{vt[2]}, v{vt[3]}, 16, v{vt[2]}")
            E(f"v_mul_u32_u24 v{BN+4*bI+j}, s7, v{vt[2]}")
    aT = A(); aS = A(); aW = A()
    E(f"v_and_b32 v{vt[0]}, 1, v{vG}")
    E(f"v_lshrrev_b32 v{vt[1]}, 1, v{vG}")
    E(f"v_lshlrev_b32 v{vt[2]}, 3, v{vt[0]}")
    E(f"v_sub_u32 v{aT}, v{vC}, v{vt[2]}")
    E(f"v_add_u32 v{aT}, {TA_POS + 11}, v{aT}")
    E(f"v_and_b32 v{aT}, -2, v{aT}")
    E(f"v_mul_u32_u24 v{vt[2]}, 272, v{vt[1]}")
    E(f"v_add_u32 v{aT}, v{aT}, v{vt[2]}")
    E(f"v_lshl_add_u32 v{aT}, v{aT}, 1, s{sKT}")
    E(f"v_lshlrev_b32 v{aS}, 8, v{vt[0]}")
    E(f"v_lshl_add_u32 v{aS}, v{vC}, 3, v{aS}")
    E(f"v_mul_u32_u24 v{vt[2]}, {SIG_SZ - 16}, v{vt[1]}")
    E(f"v_add3_u32 v{aS}, v{aS}, v{vt[2]}, s{sSC}")
    E(f"v_lshlrev_b32 v{aW}, 5, v{vC}")
    E(f"v_lshl_add_u32 v{aW}, v{vG}, 3, v{aW}")
    E(f"v_add_u32 v{aW}, s{sSC}, v{aW}")
    vMa = A(); vMb = A(); vMw = A()
    E(f"v_lshlrev_b32 v{vt[0]}, 1, v{vL}")
    E(f"v_add_u32 v{vt[1]}, 256, v{vt[0]}")
    E(f"v_add_u32 v{vt[2]}, {496-32}, v{vt[0]}")
    E(f"v_cmp_lt_u32 vcc, 15, v{vL}")
    E(f"v_cndmask_b32 v{vt[1]}, v{vt[1]}, v{vt[2]}, vcc")
    E(f"v_add_u32 v{vt[2]}, {1008-80}, v{vt[0]}")
    E(f"v_cmp_lt_u32 vcc, 39, v{vL}")
    E(f"v_cndmask_b32 v{vt[1]}, v{vt[1]}, v{vt[2]}, vcc")
    E(f"v_cvt_f32_u32 v{vt[1]}, v{vt[1]}")
    E(f"v_add_f32 v{vt[2]}, 1.0, v{vt[1]}")
    E(f"v_cvt_pk_bf16_f32 v{vt[1]}, v{vt[1]}, v{vt[2]}")
    E(f"v_mov_b32 v{vt[2]}, {(0x4300-272)*0x10001}")
    E(f"v_cmp_lt_u32 vcc, 53, v{vL}")
    E(f"v_cndmask_b32 v{vt[1]}, v{vt[1]}, v{vt[2]}, vcc")
    E(f"s_sub_u32 s{sT0}, s{sKT}, {2*(0x4300-272)}")
    E(f"v_and_b32 v{vMa}, 0xffff, v{vt[1]}")
    E(f"v_lshl_add_u32 v{vMa}, v{vMa}, 1, s{sT0}")
    E(f"v_lshrrev_b32 v{vMb}, 16, v{vt[1]}")
    E(f"v_lshl_add_u32 v{vMb}, v{vMb}, 1, s{sT0}")
    E(f"v_lshl_add_u32 v{vMw}, v{vL}, 2, s{sKT}")
    a0 = [A(), A()]; a1 = [A(), A()]; a2 = A(); a3 = A()
    st = vt[2]
    E(f"v_lshlrev_b32 v{a0[0]}, 4, v{vC}")
    E(f"v_lshl_add_u32 v{a0[0]}, v{vG}, 3, v{a0[0]}")
    E(f"v_add_u32 v{a0[0]}, 32, v{a0[0]}")
    E(f"v_mov_b32 v{st}, 256")
    E(f"v_lshlrev_b32 v{vt[3]}, 3, v{vC}")
    E(f"v_add_u32 v{vt[3]}, 800, v{vt[3]}")
    E(f"v_mov_b32 v{vt[4]}, 128")
    E(f"v_cmp_eq_u32 vcc, 2, v{vG}")
    E(f"v_cndmask_b32 v{a0[0]}, v{a0[0]}, v{vt[3]}, vcc")
    E(f"v_cndmask_b32 v{st}, v{st}, v{vt[4]}, vcc")
    E(f"v_lshlrev_b32 v{vt[3]}, 2, v{vC}")
    E(f"v_add_u32 v{vt[3]}, 1056, v{vt[3]}")
    E(f"v_mov_b32 v{vt[5]}, 64")
    E(f"v_cmp_eq_u32 vcc, 3, v{vG}")
    E(f"v_cndmask_b32 v{a0[0]}, v{a0[0]}, v{vt[3]}, vcc")
    E(f"v_cndmask_b32 v{st}, v{st}, v{vt[5]}, vcc")
    E(f"v_cndmask_b32 v{a1[0]}, 4, v{vt[4]}, vcc")
    E(f"v_add_u32 v{a0[0]}, s{sKT}, v{a0[0]}")
    E(f"v_add_u32 v{a1[0]}, v{a0[0]}, v{a1[0]}")
    E(f"v_add_u32 v{a0[1]}, v{a0[0]}, v{st}")
    E(f"v_add_u32 v{a1[1]}, v{a1[0]}, v{st}")
    E(f"v_and_b32 v{vt[0]}, 1, v{vC}")
    E(f"v_mul_u32_u24 v{vt[0]}, 272, v{vt[0]}")
    E(f"v_lshrrev_b32 v{vt[1]}, 1, v{vC}")
    E(f"v_lshl_add_u32 v{vt[1]}, v{vG}, 6, v{vt[1]}")
    E(f"v_add3_u32 v{vt[0]}, v{vt[0]}, v{vt[1]}, {17}")
    E(f"v_lshl_add_u32 v{a2}, v{vt[0]}, 1, s{sKT}")
    E(f"v_lshl_add_u32 v{vt[0]}, v{vL}, 1, s{sKT}")
    E(f"v_subrev_u32 v{vt[0]}, {2*(TA_POS-656)}, v{vt[0]}")
    E(f"v_cmp_gt_u32 vcc, 2, v{vL}")
    E(f"v_cndmask_b32 v{a3}, v{a2}, v{vt[0]}, vcc")
    vTa = A(); vUo = A()
    E(f"v_and_b32 v{vt[0]}, 1, v{vG}")
    E(f"v_lshrrev_b32 v{vt[1]}, 1, v{vG}")
    E(f"v_lshrrev_b32 v{vt[2]}, 2, v{vC}")
    E(f"v_and_b32 v{vt[3]}, 3, v{vC}")
    E(f"v_lshl_add_u32 v{vTa}, v{vt[0]}, 3, v{vt[2]}")
    E(f"v_lshlrev_b32 v{vTa}, 8, v{vTa}")
    E(f"v_lshl_add_u32 v{vTa}, v{vt[1]}, 5, v{vTa}")
    E(f"v_lshl_add_u32 v{vTa}, v{vt[3]}, 3, v{vTa}")
    E(f"v_add_u32 v{vTa}, s{sUS}, v{vTa}")
    E(f"s_lshl_b32 s{sT0}, s{sTB}, 1")
    E(f"s_lshr_b32 s{sT1}, s{sW}, 1")
    E(f"s_add_u32 s{sT0}, s{sT0}, s{sT1}")
    E(f"v_add_u32 v{vt[3]}, s{sT0}, v{vt[3]}")
    E(f"v_and_b32 v{vt[3]}, 3, v{vt[3]}")
    E(f"v_lshl_add_u32 v{vUo}, v{vt[1]}, 2, v{vt[2]}")
    E(f"v_lshlrev_b32 v{vUo}, 14, v{vUo}")
    E(f"v_lshl_add_u32 v{vUo}, v{vt[0]}, 6, v{vUo}")
    E(f"v_lshl_add_u32 v{vUo}, v{vt[3]}, 4, v{vUo}")
    E(f"s_lshl_b32 s{sUT}, s{sCB}, 19")
    E(f"s_lshl_b32 s{sT1}, s{sTB}, 9")
    E(f"s_add_u32 s{sUT}, s{sUT}, s{sT1}")
    E(f"s_lshl_b32 s{sT1}, s{sW}, 7")
    E(f"s_add_u32 s{sUT}, s{sUT}, s{sT1}")
    E(f"s_add_u32 s{sYL}, s{sUT}, {G.YT_BASE}")
    assert G.UT_BASE == 0
    E(f"s_lshl_b32 s{sFU}, s{sCB}, 14")
    E(f"s_lshl_b32 s{sT1}, s{sTB}, 9")
    E(f"s_add_u32 s{sFYp}, s{sFU}, s{sT1}")
    E(f"s_add_u32 s{sFYp}, s{sFYp}, {G.FLAGY_BASE}")
    E(G.word_off(sFU, sTB, 3, sT1))
    E(f"s_add_u32 s{sFU}, s{sFU}, {G.FLAG_BASE}")
    E(f"s_lshl_b32 s{sFUp}, s{sCG}, 9")
    E(f"s_add_u32 s{sFUp}, s{sFUp}, {G.FLAG_BASE}")
    E(f"s_lshr_b32 s{sFY}, s{sCG}, 5")
    E(f"s_lshl_b32 s{sFY}, s{sFY}, 14")
    E(f"s_and_b32 s{sT0}, s{sCG}, 31")
    E(G.word_off(sFY, sT0, 3, sT1))
    E(f"s_add_u32 s{sFY}, s{sFY}, {G.FLAGY_BASE}")
    E(f"s_lshl_b32 s{sT1}, s{sW}, 7")
    E(f"s_add_u32 s{sFUp}, s{sFUp}, s{sT1}")
    E(f"s_add_u32 s{sFYp}, s{sFYp}, s{sT1}")
    E(f"s_lshl_b32 s{sUI}, s{sCG}, 14")
    E(f"s_lshl_b32 s{sT1}, s{sW}, 12")
    E(f"s_add_u32 s{sUI}, s{sUI}, s{sT1}")
    E(f"s_add_u32 s{sYS}, s{sUI}, {G.YT_BASE}")
    vPu = A()
    E(f"v_lshlrev_b32 v{vPu}, 9, v{vL}")
    for sa in (sFUp, sFYp): E(f"s_buffer_load_dword s93, s[{rWS}:{rWS+3}], s{sa} glc")
    PP2 = 1024 + 16
    vWa = A(); vRa = A(); vRb = A()
    E(f"v_add_u32 v{vWa}, s{sSC}, v{vL16}")
    E(f"v_lshrrev_b32 v{vt[0]}, 1, v{vC}")
    E(f"v_mul_u32_u24 v{vRa}, {PP2}, v{vt[0]}")
    E(f"v_and_b32 v{vt[0]}, 1, v{vC}")
    E(f"v_lshl_add_u32 v{vRa}, v{vt[0]}, 3, v{vRa}")
    E(f"v_lshl_add_u32 v{vRa}, v{vG}, 5, v{vRa}")
    E(f"v_add_u32 v{vRa}, s{sSC}, v{vRa}")
    E(f"v_add_u32 v{vRb}, {8*PP2}, v{vRa}")
    vTb = A()
    E(f"v_lshl_add_u32 v{vTb}, v{vC}, 1, v{vG}")
    E(f"v_add_u32 v{vTb}, 30, v{vTb}")
    L2E = math.log2(math.e); L2Eh = f32val(L2E); L2El = L2E - L2Eh
    I2P = 1 / (2 * math.pi); I2Ph = f32val(I2P); I2Pl = I2P - I2Ph
    vDt = vt[4]; vDsk = A(); vNon = A()
    E(f"s_mov_b32 s7, {f32(L2Eh)}")
    E(f"s_mov_b32 s8, {f32(I2Ph)}")
    E(f"v_lshlrev_b32 v{vt[0]}, 16, v{P[6]}")
    ST(E, "par")
    E(f"v_mul_f32 v{vt[1]}, s7, v{vt[0]}")
    E(f"v_fma_f32 v{vt[2]}, v{vt[0]}, s7, -v{vt[1]}")
    E(f"v_fmac_f32 v{vt[2]}, {f32(L2El)}, v{vt[0]}")
    E(f"v_exp_f32 v{vt[1]}, v{vt[1]}")
    E(f"v_mul_f32 v{vt[2]}, {f32(math.log(2))}, v{vt[2]}")
    E(f"v_fma_f32 v{vt[1]}, v{vt[1]}, v{vt[2]}, v{vt[1]}")
    E(f"v_cvt_pk_bf16_f32 v{vt[1]}, v{vt[1]}, v{vt[1]}")
    E(f"v_and_b32 v{vDt}, 0xffff0000, v{vt[1]}")
    A2 = Alloc(KG, KG + 32)
    PK = [A2(4, 4), A2(4, 4)]
    W1 = [A2(3, 1), A2(3, 1)]; W8 = [A2(3, 1), A2(3, 1)]; W256 = [A2(3, 1), A2(3, 1)]
    A3 = Alloc(big + 136, big + 160)
    XS = [[A3(2) for _ in range(4)] for _ in range(2)]
    XC = [A3(2), A3(2)]; XD = [A3(2), A3(2)]
    XU = [[big + 124, big + 126], [big + 128, big + 130]]
    tmp = big + 100
    per_n = []
    for n in range(2):
        t = [tmp + 12 * n + i for i in range(12)]
        un = (lambda d, src: f"v_lshlrev_b32 v{d}, 16, v{src}") if n == 0 else (lambda d, src: f"v_and_b32 v{d}, 0xffff0000, v{src}")
        L = [un(t[0], P[0]), un(t[1], P[1]),
             f"v_mul_f32 v{t[0]}, v{vDt}, v{t[0]}",
             f"v_mul_f32 v{t[1]}, v{vDt}, v{t[1]}",
             f"v_mul_f32 v{t[0]}, s7, v{t[0]}",
             f"v_mul_f32 v{t[6]}, s8, v{t[1]}",
             f"v_fma_f32 v{t[7]}, v{t[1]}, s8, -v{t[6]}",
             f"v_fmac_f32 v{t[7]}, {f32(I2Pl)}, v{t[1]}"]
        for e, Wd in ((1, W1[n]), (256, W256[n]), (8, W8[n])):
            if e == 1:
                L += [f"v_exp_f32 v{t[8]}, v{t[0]}", f"v_fract_f32 v{t[9]}, v{t[6]}", f"v_add_f32 v{t[9]}, v{t[9]}, v{t[7]}"]
            else:
                L += [f"v_mul_f32 v{t[8]}, {f32(e)}, v{t[0]}", f"v_mul_f32 v{t[9]}, {f32(e)}, v{t[6]}",
                      f"v_exp_f32 v{t[8]}, v{t[8]}", f"v_fract_f32 v{t[9]}, v{t[9]}", f"v_fmac_f32 v{t[9]}, {f32(e)}, v{t[7]}"]
            L += [f"v_cos_f32 v{t[10]}, v{t[9]}", f"v_sin_f32 v{t[11]}, v{t[9]}",
                  f"v_mul_f32 v{Wd}, v{t[8]}, v{t[10]}", f"v_mul_f32 v{Wd+1}, v{t[8]}, v{t[11]}", f"v_xor_b32 v{Wd+2}, 0x80000000, v{Wd+1}"]
        c0 = XS[n][0]
        L += [un(t[k], P[k]) for k in range(2, 6)]
        L += [f"v_mul_f32 v{t[2]}, v{vDt}, v{t[2]}", f"v_mul_f32 v{t[3]}, v{vDt}, v{t[3]}",
              f"v_mul_f32 v{c0}, v{t[4]}, v{t[2]}", f"v_mul_f32 v{c0+1}, v{t[5]}, v{t[2]}",
              f"v_fma_f32 v{c0}, -v{t[5]}, v{t[3]}, v{c0}", f"v_fmac_f32 v{c0+1}, v{t[4]}, v{t[3]}"]
        per_n.append(L)
    E(zipl(*per_n))
    E(f"v_cmp_eq_u32 vcc, 0, v{vL}")
    E(f"v_lshlrev_b32 v{vDsk}, 16, v{P[7]}")
    E(f"v_cndmask_b32 v{vDsk}, 0, v{vDsk}, vcc")
    def put_row(row, regs, neg, last=False):
        p = PK[(row // 2) % 2]; q = p + 2 * (row % 2)
        sg = "-" if neg else ""
        L = [f"v_cvt_pk_bf16_f32 v{q}, v{regs[0]}, {sg}v{regs[0]+1}",
             f"v_cvt_pk_bf16_f32 v{q+1}, v{regs[1]}, {sg}v{regs[1]+1}"]
        if row % 2 or last: L.append(f"ds_write_b128 v{vWa}, {v(p,4)} offset:{(row//2)*PP2}")
        return L
    def step(dst, src, mul):
        return zipl(cmul(dst[0], src[0], mul[0]), cmul(dst[1], src[1], mul[1]))
    XSi = lambda i: [XS[0][i], XS[1][i]]
    XUi = lambda i: [XU[0][i], XU[1][i]]
    def slab_out():
        if "--xnomem" in sys.argv or "--x1" in sys.argv: return None
        E.wait_vm("slab")
        ST(E, "slab")
        for i in range(4):
            E(f"ds_read_b64_tr_b16 {v(big+4*i,2)}, v{vTa} offset:{64*i}")
            E(f"ds_read_b64_tr_b16 {v(big+4*i+2,2)}, v{vTa} offset:{64*i+1024}")
        E("s_setprio 3")
        for i in range(4):
            E(f"s_add_u32 s{sT1}, s{sUT}, {8*16384*i}")
            E(f"buffer_store_dwordx4 {v(big+4*i,4)}, v{vUo}, s[{rWS}:{rWS+3}], s{sT1} offen {'' if '--xplain' in sys.argv else 'sc1'}")
        nld = G.nonce_load(E, vNon)
        E(f"s_setprio {G.BPRIO}")
        ST(E, "ust")
        return nld
    def flag(saddr):
        skip = newlabel("nofl")
        E(f"s_cmp_lg_u32 s{sW}, 0")
        E(f"s_cbranch_scc1 {skip}")
        E("s_mov_b32 exec_hi, 0")
        E.raw(f"    buffer_store_dword v{vNon}, v{vPu}, s[{rWS}:{rWS+3}], s{saddr} offen sc1")
        E("s_mov_b64 exec, -1")
        E.label(skip)
    def wait_line(saddr):
        G.sflag_wait(E, saddr, 1, 8, 16, sleep=2)
        E("s_barrier")
    def publish():
        if "--xnomem" in sys.argv or "--x1" in sys.argv or "--x2" in sys.argv: return
        E("s_setprio 3")
        G.nonce_get(E, nld, vNon)
        E("s_barrier")
        flag(sFU)
        E(f"s_setprio {G.BPRIO}")
        ST(E, "ack")
    if SLAB == 3: nld = slab_out()
    L = put_row(0, XSi(0), True)
    cur = XSi(0)
    for e in range(1, 8):
        dst = XSi(e // 2) if e % 2 == 0 else XC
        L += step(dst, cur, W1) + put_row(e, dst, True); cur = dst
    for i, dst in enumerate((XUi(0), XC, XUi(1), XC)):
        L += step(dst, XSi(i), W256) + put_row(8 + i, dst, True)
    for k in range(2): L += step(XSi(k), XUi(k), W256) + put_row(12 + k, XSi(k), True)
    for k in range(2): L += step(XUi(k), XSi(k), W256) + put_row(14 + k, XUi(k), True)
    cur = XUi(0)
    for r in range(16, 21):
        dst = XC if r % 2 == 0 else XD
        L += step(dst, cur, W256) + put_row(r, dst, True, last=(r == 20)); cur = dst
    E(L)
    XF = big + 16
    YF = big + 80
    KD = big + 112
    for tI in range(2):
        for k in range(8):
            E(f"ds_read2_b64 {v(XF+32*tI+4*k,4)}, v{vRb if tI else vRa} offset0:{16*k} offset1:{16*k+2}")
    ST(E, "X")
    if SLAB == 0: nld = slab_out()
    if SLAB == 1: slab_in()
    if SLAB == 3: publish()
    def yhalf(h):
        L = []
        for j in range(16):
            jj = 16 * h + j
            Yc, Yp = (XC, XD) if jj % 2 == 0 else (XD, XC)
            if jj == 0:
                L += [f"v_mov_b32 v{Yc[0]}, 1.0", f"v_mov_b32 v{Yc[0]+1}, 0", f"v_mov_b32 v{Yc[1]}, 1.0", f"v_mov_b32 v{Yc[1]+1}, 0"]
            else:
                L += step(Yc, Yp, W8)
            L += put_row(j, Yc, False)
        return L
    def yread(): return [f"ds_read2_b64 {v(YF+4*k,4)}, v{vRa} offset0:{16*k} offset1:{16*k+2}" for k in range(8)]
    def kmfma(h):
        L = []
        for k in range(8):
            for tI in range(2):
                d = KD + 8 * h + 4 * tI
                L.append(f"{M16} {v(d,4)}, {v(XF+32*tI+4*k,4)}, {v(YF+4*k,4)}, {v(d,4) if k else 0}")
        return L
    def tabw(h):
        d0 = KD + 8 * h; d1 = d0 + 4
        p = big + 128 + 4 * h if h == 0 else big + 136
        L = [f"v_add_f32 v{KD}, v{KD}, v{vDsk}"] if h == 0 else []
        L += [f"v_cvt_pk_bf16_f32 v{p}, v{d0}, v{d0+1}", f"v_cvt_pk_bf16_f32 v{p+1}, v{d0+2}, v{d0+3}",
              f"v_cvt_pk_bf16_f32 v{p+2}, v{d1}, v{d1+1}", f"v_cvt_pk_bf16_f32 v{p+3}, v{d1+2}, v{d1+3}",
              f"ds_write_b32 v{a0[h]}, v{p}", f"ds_write_b32 v{a1[h]}, v{p+1}"]
        for rho in range(4):
            op = "ds_write_b16" if rho % 2 == 0 else "ds_write_b16_d16_hi"
            L.append(f"{op} v{a3 if (rho == 0 and h == 0) else a2}, v{p+2+rho//2} offset:{2*TA_POS + 32*rho + 16*h}")
        return L
    E(yhalf(0)); E(yread())
    if SLAB == 0: publish()
    if SLAB == 1: nld = slab_out()
    if SLAB == 2: slab_in()
    y1 = yhalf(1)
    E(merge(y1, kmfma(0)))
    E(yread())
    if SLAB == 2: nld = slab_out()
    E(tabw(0)); E(kmfma(1))
    E(f"v_lshl_add_u32 v{vt[0]}, v{vC}, 2, s{sSC}")
    E(f"ds_write_b32 v{vt[0]}, v{vZ}")
    E(f"ds_write_b32 v{vt[0]}, v{vZ} offset:{SIG_SZ}")
    ST(E, "Y")
    def get_u():
        if "--xnomem" in sys.argv or "--x1" in sys.argv or "--x2" in sys.argv or "--x3" in sys.argv: return
        E("s_setprio 3")
        wait_line(sFUp)
        ST(E, "polled")
        if "--x4" in sys.argv: return
        E(f"s_mov_b32 m0, s{sUS}")
        for i in range(4):
            E(f"buffer_load_dwordx4 v{vL16}, s[{rWS}:{rWS+3}], s{sUI} offen offset:{1024*i} sc1 lds", tag="uimg")
        E(f"s_setprio {G.BPRIO}")
    if SLAB == 1: publish()
    E(tabw(1))
    E(f"ds_read_u16 v{vt[5]}, v{vMa}")
    E(f"ds_read_u16 v{vt[4]}, v{vMb}")
    E(f"v_lshl_or_b32 v{vt[5]}, v{vt[4]}, 16, v{vt[5]}")
    E(f"ds_write_b32 v{vMw}, v{vt[5]} offset:544")
    ACC = KG
    Hs = [big, big + 32]; Fs = [big + 64, big + 84]; RAW = big + 100; WD = big + 128
    SFr = WD; TFr = WD + 16
    vH = [vt[0], vt[1]]
    def dense(F, r, a, o):
        return ([f"ds_read2_b32 {v(r,2)}, v{a} offset0:{o} offset1:{o+1}",
                 f"ds_read2_b32 {v(r+2,2)}, v{a} offset0:{o+2} offset1:{o+3}",
                 f"ds_read_b32 v{r+4}, v{a} offset:{4*(o+4)}"],
                [f"v_perm_b32 v{F+j}, v{r+4-j}, v{r+3-j}, v{sel[('d',3)]}" for j in (3, 2, 1, 0)])
    def prepF(s0, buf):
        rd = []; pm = []
        r = RAW
        for m in range(5 if s0 == 0 else 4):
            sx = s0 + 8 * m
            F = Fs[buf] + 4 * m
            if sx <= 8 or sx == 16 or sx == 32:
                a, b = dense(F, r, adr['d'], {16: 152, 32: 176}.get(sx, 16 * sx))
                rd += a; pm += b; r += 6
            elif sx < 16:
                o = 8 * (sx - 9)
                rd += [f"ds_read2_b32 {v(r,2)}, v{adr['1']} offset0:{o} offset1:{o+1}",
                       f"ds_read_b32 v{r+2}, v{adr['1']} offset:{4*(o+2)}"]
                pm += [f"v_perm_b32 v{F+3}, v{r+1}, v{r}, v{sel[('1',3)]}", f"v_perm_b32 v{F+2}, v{r+1}, v{r}, v{sel[('1',2)]}",
                       f"v_perm_b32 v{F+1}, v{r+2}, v{r+1}, v{sel[('1',3)]}", f"v_perm_b32 v{F}, v{r+2}, v{r+1}, v{sel[('1',2)]}"]
                r += 4
            else:
                o = 4 * (sx - 17)
                rd += [f"ds_read2_b32 {v(r,2)}, v{adr['2']} offset0:{o} offset1:{o+1}"]
                pm += [f"v_perm_b32 v{F+j}, v{r+1}, v{r}, v{sel[('2',j)]}" for j in (3, 2, 1, 0)]
                r += 2
        assert r <= WD
        return rd, pm
    def prepH(s0, buf):
        a = vH[buf]; t = vt[3]
        L = [f"v_subrev_u32 v{a}, {4*s0}, v{vTb}",
             f"v_lshrrev_b32 v{t}, 2, v{a}",
             f"v_add_u32 v{t}, s{sW}, v{t}",
             f"v_and_b32 v{t}, 3, v{t}",
             f"v_lshlrev_b32 v{a}, 6, v{a}",
             f"v_lshl_add_u32 v{a}, v{t}, 4, v{a}"]
        return L, [f"ds_read_b128 {v(Hs[buf]+4*dl,4)}, v{a} offset:{2048*dl}" for dl in range(8)]
    rd, pm = prepF(0, 0)
    ha, hr = prepH(0, 0)
    E(rd); E(ha); E(pm)
    ST(E, "tables")
    if SLAB == 2: publish()
    get_u()
    E.wait_vm("uimg")
    E.wait_lg()
    E("s_barrier")
    ST(E, "uimg")
    if "--xnoconv" in sys.argv:
        ST.dump(E, sW, big + 70)
        E("s_endpgm")
        return ST
    E(f"s_setprio {G.CPRIO}")
    E(hr)
    wout = []
    for dl in range(4):
        for bI in range(2):
            d = WD + 8 * dl + 4 * bI
            wout += [f"v_cvt_pk_bf16_f32 v{d}, v{d}, v{d+1}", f"v_cvt_pk_bf16_f32 v{d+1}, v{d+2}, v{d+3}",
                     f"ds_write_b64 v{aW}, {v(d,2)} offset:{64 + SIG_SZ*bI + 512*dl}"]
    srd_ = [f"ds_read_b64_tr_b16 {v(SFr+4*k+2*a,2)}, v{aS} offset:{40 + 512*k + 128*a}" for k in range(4) for a in range(2)]
    for s0 in range(8):
        b = s0 % 2
        M = []
        if s0 == 0:
            for dl in range(4):
                for bI in range(2):
                    M.append(f"{M16} {v(WD+8*dl+4*bI,4)}, {v(BN+4*bI,4)}, {v(Hs[0]+4*dl,4)}, 0")
        for m in range(5 if s0 == 0 else 4):
            for dl in range(8 - m):
                q = m + dl
                c = v(ACC + 4 * q, 4) if (s0 or m) else "0"
                M.append(f"{M16} {v(ACC+4*q,4)}, {v(Fs[b]+4*m,4)}, {v(Hs[b]+4*dl,4)}, {c}")
        if s0 < 7:
            rd, pm = prepF(s0 + 1, 1 - b)
            ha, hr = prepH(s0 + 1, 1 - b)
            side = rd + ha + hr + pm
            if s0 == 0: side += wout[:12]
            if s0 == 1: side += wout[12:]
            if 2 <= s0 <= 5:
                k = s0 - 2
                a_, b_ = dense(TFr + 4 * k, RAW + 16, aT, 8 * k)
                side = a_ + side + srd_[2*k:2*k+2] + b_
            E(merge(M, side))
        else:
            for q in range(4, 8):
                for k in range(q - 3):
                    M.append(f"{M16} {v(ACC+4*q,4)}, {v(SFr+4*k,4)}, {v(TFr+4*(q-k-4),4)}, {v(ACC+4*q,4)}")
            E(M)
    ST(E, "conv")
    if "--gemmonly" in sys.argv:
        ST.dump(E, sW, big + 70)
        E("s_endpgm")
        return ST
    ya = vt[0]
    E(f"s_mul_i32 s{sT0}, s{sW}, 144")
    E(f"v_add_u32 v{ya}, s{sT0}, v{aW}")
    for q in range(8):
        E(f"v_cvt_pk_bf16_f32 v{big+2*q}, v{ACC+4*q}, v{ACC+4*q+1}")
        E(f"v_cvt_pk_bf16_f32 v{big+2*q+1}, v{ACC+4*q+2}, v{ACC+4*q+3}")
        E(f"ds_write_b64 v{ya}, {v(big+2*q,2)} offset:{Y_OFF + 512*q}")
    yr, yo = vt[1], vt[2]
    E(f"v_lshrrev_b32 v{vt[3]}, 2, v{vC}")
    E(f"v_mul_u32_u24 v{yr}, {Y_PITCH}, v{vt[3]}")
    E(f"v_and_b32 v{vt[3]}, 3, v{vC}")
    E(f"v_lshl_add_u32 v{yr}, v{vt[3]}, 3, v{yr}")
    E(f"v_lshl_add_u32 v{yr}, v{vG}, 5, v{yr}")
    E(f"s_lshl_b32 s{sT0}, s{sW}, 10")
    E(f"s_add_u32 s{sT0}, s{sT0}, {SC_BASE + Y_OFF}")
    E(f"v_add_u32 v{yr}, s{sT0}, v{yr}")
    E(f"v_lshlrev_b32 v{yo}, 3, v{vL}")
    E.wait_lg()
    E("s_barrier")
    E("s_setprio 3")
    for i in range(8):
        E(f"ds_read_b64_tr_b16 {v(big+32+2*i,2)}, v{yr} offset:{128*i}")
    for i in range(8):
        E(f"buffer_store_dwordx2 {v(big+32+2*i,2)}, v{yo}, s[{rWS}:{rWS+3}], s{sYS} offen offset:{512*i} sc1")
    d0, d1, ra, so = vt[0], vt[1], vt[2], vt[3]
    E(f"v_lshrrev_b32 v{vt[4]}, 3, v{vL}")
    E(f"v_lshlrev_b32 v{vt[4]}, 14, v{vt[4]}")
    E(f"v_and_b32 v{vt[5]}, 7, v{vL}")
    E(f"v_xor_b32 v{vt[5]}, v{vt[5]}, v{vG}")
    E(f"v_lshl_add_u32 v{d0}, v{vt[5]}, 4, v{vt[4]}")
    E(f"v_xor_b32 v{d1}, 64, v{d0}")
    E(f"v_and_b32 v{vt[4]}, 7, v{vC}")
    E(f"v_lshrrev_b32 v{vt[5]}, 1, v{vG}")
    E(f"v_xor_b32 v{vt[4]}, v{vt[4]}, v{vt[5]}")
    E(f"v_lshlrev_b32 v{ra}, 8, v{vC}")
    E(f"v_lshl_add_u32 v{ra}, v{vt[4]}, 4, v{ra}")
    E(f"v_and_b32 v{vt[5]}, 1, v{vG}")
    E(f"v_lshl_add_u32 v{ra}, v{vt[5]}, 3, v{ra}")
    E(f"v_add_u32 v{ra}, s{sUS}, v{ra}")
    E(f"v_mul_u32_u24 v{so}, 2560, v{vG}")
    E(f"v_lshl_add_u32 v{so}, v{vC}, 4, v{so}")
    for i in range(1, 4): E(f"v_xor_b32 v{big+60+i}, {32*i}, v{ra}")
    E.wait_vm()
    E("s_barrier")
    flag(sFY)
    ST(E, "ypub")
    wait_line(sFYp)
    ST(E, "ypoll")
    for i in range(4):
        E(f"s_add_u32 m0, s{sUS}, {1024*i}")
        E(f"s_add_u32 s{sT1}, s{sYL}, {8*16384*i}")
        E(f"buffer_load_dwordx4 v{d0 if i % 2 == 0 else d1}, s[{rWS}:{rWS+3}], s{sT1} offen sc1 lds")
    E.wait_vm()
    for i in range(4):
        E(f"ds_read2_b64 {v(big+4*i,4)}, v{ra if i == 0 else big+60+i} offset1:16")
    for i in range(4):
        E(f"s_add_u32 s{sT1}, s{sYO}, {4*2560*i}")
        E(f"buffer_store_dwordx4 {v(big+4*i,4)}, v{so}, s[{rOUT}:{rOUT+3}], s{sT1} offen {G.OUTB}")
    if G.PROFILE:
        E.wait_vm()
        ST(E, "end")
    ST.dump(E, sW, big + 70)
    E("s_endpgm")
    return ST
```

```python
import math, sys
from asmlib import *

TA = [[(0, 0), (0, 2), (0, 4), (1, 4)], [(0, 1), (0, 3), (1, 3), (2, 3)], [(1, 0), (1, 2), (2, 2), (2, 4)], [(1, 1), (2, 0), (2, 1), None]]
M16 = "v_mfma_f32_16x16x32_bf16"; M32 = "v_mfma_f32_32x32x16_bf16"

def div_const(dst, src, d):
    return [f"v_mul_u32_u24 v{dst}, {(65536 + d - 1)//d}, v{src}", f"v_lshrrev_b32 v{dst}, 16, v{dst}"]

def put_flag(E, G, sW, vNon, saddr):
    skip = G.newlabel("nofl")
    E(f"s_cmp_lg_u32 s{sW}, 0")
    E(f"s_cbranch_scc1 {skip}")
    E("s_mov_b64 exec, 1")
    E.raw(f"    buffer_store_dword v{vNon}, off, s[{G.rWS}:{G.rWS+3}], s{saddr} sc1")
    E("s_mov_b64 exec, -1")
    E.label(skip)

def flag_addr(dst, idx, base, t):
    return [f"s_lshr_b32 s{dst}, s{idx}, 3", f"s_lshl_b32 s{dst}, s{dst}, 7", f"s_and_b32 s{t}, s{idx}, 7", f"s_lshl_b32 s{t}, s{t}, 2",
            f"s_add_u32 s{dst}, s{dst}, s{t}", f"s_add_u32 s{dst}, s{dst}, {base}"]

def piece_voff(E, vL, dst, t, pitch):
    for m in range(3):
        if m: E(f"v_add_u32 v{t}, {64*m}, v{vL}")
        ci = t if m else vL
        E(div_const(t + 1, ci, 20))
        E(f"v_mul_u32_u24 v{t+1}, {pitch - 320}, v{t+1}")
        E(f"v_lshl_add_u32 v{dst[m]}, v{vL}, 4, v{t+1}")

def gen_C(E, G):
    rWS, rDBG, rWO = G.rWS, G.rDBG, G.rWO
    G.fresh(E)
    sW, sU = 76, 77
    vL, vo, t, vT, vS, D, vNon = 1, [2, 3, 4], 6, [8, 9, 10], [11, 12, 13], 16, 14
    E(f"v_and_b32 v{vL}, 63, v0")
    E(f"v_lshrrev_b32 v{t}, 6, v0")
    E(f"s_sub_u32 s{sU}, s2, {G.NB + G.NA}")
    E(f"v_readfirstlane_b32 s{sW}, v{t}")
    piece_voff(E, vL, vo, t, 1280)
    E(f"s_mul_i32 s4, s{sU}, {8*1280}")
    E(f"s_mul_i32 s5, s{sW}, 320")
    E(f"s_add_u32 s4, s4, s5")
    E(f"s_lshl_b32 s6, s{sW}, 12")
    E(f"s_mov_b32 m0, s6")
    E.wait_lg()
    G.srd(E, rWO, G.pWO, 819200)
    for m in range(3):
        if m == 2: E("s_mov_b32 exec_hi, 0")
        E(f"buffer_load_dwordx4 v{vo[m]}, s[{rWO}:{rWO+3}], s4 offen offset:{1024*m} lds")
    E("s_mov_b64 exec, -1")
    G.srd(E, rWS, G.pWS, G.WS_SIZE)
    G.srd(E, rDBG, G.pDBG, 256)
    for m in range(3):
        E(f"v_lshrrev_b32 v{t}, 4, v{vL}")
        E(f"v_add_u32 v{t}, {4*m}, v{t}")
        E(f"v_min_u32 v{t}, 9, v{t}")
        E(f"v_cmp_lt_u32 vcc, 4, v{t}")
        E(f"v_lshlrev_b32 v{vT[m]}, 3, v{t}")
        E(f"v_add_u32 v{t+1}, 120, v{vT[m]}")
        E(f"v_cndmask_b32 v{vT[m]}, v{vT[m]}, v{t+1}, vcc")
        E(f"v_lshlrev_b32 v{vS[m]}, 10, v{t}")
        E(f"v_add_u32 v{t+1}, {95*1024}, v{vS[m]}")
        E(f"v_cndmask_b32 v{vS[m]}, v{vS[m]}, v{t+1}, vcc")
        E(f"v_and_b32 v{t}, 3, v{vL}")
        E(f"v_mul_u32_u24 v{t}, 40, v{t}")
        E(f"v_bfe_u32 v{t+1}, v{vL}, 2, 2")
        E(f"v_mul_u32_u24 v{t+1}, 320, v{t+1}")
        E(f"v_add3_u32 v{vT[m]}, v{vT[m]}, v{t}, v{t+1}")
        E(f"v_add_u32 v{vT[m]}, s6, v{vT[m]}")
        E(f"v_and_b32 v{t}, 15, v{vL}")
        E(f"v_lshl_add_u32 v{vS[m]}, v{t}, 4, v{vS[m]}")
    E(f"s_mul_i32 s4, s{sW}, {200*1024}")
    E(f"s_lshr_b32 s5, s{sU}, 2")
    E(f"s_mul_i32 s5, s5, 5120")
    E(f"s_add_u32 s4, s4, s5")
    E(f"s_and_b32 s5, s{sU}, 3")
    E(f"s_lshl_b32 s5, s5, 8")
    E(f"s_add_u32 s4, s4, s5")
    E(f"s_add_u32 s4, s4, {G.PWO_BASE}")
    E(flag_addr(7, sU, G.FLAGC_BASE, 5))
    E.wait_vm()
    for m in range(3):
        for a in range(2): E(f"ds_read_b64_tr_b16 {v(D+4*m+2*a,2)}, v{vT[m]} offset:{1280*a}")
    for m in range(3):
        if m == 2:
            E.wait_lg()
            E("s_mov_b32 exec_hi, 0")
        E(f"buffer_store_dwordx4 {v(D+4*m,4)}, v{vS[m]}, s[{rWS}:{rWS+3}], s4 offen sc1")
    E("s_mov_b64 exec, -1")
    nld = G.nonce_load(E, vNon)
    G.nonce_get(E, nld, vNon)
    E.wait_vm()
    E("s_barrier")
    put_flag(E, G, sW, vNon, 7)
    E("s_endpgm")

def gen_A(E, G):
    f32, Alloc, srd, spin, newlabel = G.f32, G.Alloc, G.srd, G.spin, G.newlabel
    rWS, rOUT, rDBG, rIN, rW, rPHI = G.rWS, G.rOUT, G.rDBG, G.rIN, G.rW, G.rPHI
    sN = G.sN
    G.fresh(E)
    ST = G.Stamps(24)
    sW, sR, sP, sPQ, sTBo, sCT, sROT = 76, 77, 78, 79, 80, 81, 82
    sT0, sT1, sT2 = 4, 5, 6
    sWO, sXO, sWE, sXE = 84, 85, 86, 87
    sW4, sXR, sH, sFT = 88, 89, 90, 91
    sPS, sOS, sFO, sPL, sOL, sWL, sFC, sOUT, sFP, sF1, sF2 = 96, 97, 98, 99, 100, 101, 45, 46, 92, 47, 3
    XR = 49152
    TAB = 36864; ZTAB = TAB + 3200; KVT = 45056; ZKV = ZTAB
    def wslot(sig): return 16384 * ((sig + 1) % 3)
    E(f"s_setprio {G.APRIO}")
    A = Alloc(1, 256)
    vL = A(); vHH = A(); vL16 = A()
    ACC = A(64, 4)
    WF = A(32, 4)
    XF = A(32, 4)
    PF = A(48, 4)
    TM = A(36, 4)
    ID = A(4, 4)
    vXo = [A() for _ in range(4)]
    vWo = [A() for _ in range(4)]
    vWt = [A() for _ in range(4)]
    vXrs = [A() for _ in range(4)]
    MP = A(); vMn = A(); vNon = A()
    vPk = A(); vVw = A(); vA = A(); vB = A(); vS1 = A(); vS2 = A(); vPi = A(); vKa = A(); vO1 = A(); vO3 = A(); vC4 = A()
    vRw = A(); vSo = [A() for _ in range(3)]
    vFl = A(); vFc = A()
    vt = [TM + 20 + i for i in range(12)]
    vG, vC, vGam, vR4 = vt[8], vt[9], vt[10], vt[11]
    E(f"v_and_b32 v{vL}, 63, v0")
    E(f"v_lshrrev_b32 v{vt[0]}, 6, v0")
    E(f"v_lshrrev_b32 v{vG}, 4, v{vL}")
    E(f"v_readfirstlane_b32 s{sW}, v{vt[0]}")
    sV, sX, sCL = 7, 8, 11
    E(f"s_getreg_b32 s{sX}, hwreg(HW_REG_XCC_ID)")
    E(f"s_lshr_b32 s{sT0}, s2, 3")
    E(f"s_xor_b32 s{sROT}, s{sT0}, s2")
    E(f"s_and_b32 s{sROT}, s{sROT}, 7")
    E(f"s_lshr_b32 s{sT0}, s2, 6")
    E(f"s_mul_i32 s{sT0}, s{sT0}, 3")
    E(f"s_add_u32 s{sROT}, s{sROT}, s{sT0}")
    E(f"s_sub_u32 s{sT0}, s{sROT}, 10")
    E(f"s_cmp_ge_u32 s{sROT}, 10")
    E(f"s_cselect_b32 s{sROT}, s{sT0}, s{sROT}")
    E(f"s_and_b32 s{sX}, s{sX}, {0 if '--die0' in sys.argv else 7}")
    E(f"s_lshl_b32 s{sW4}, s{sW}, 12")
    vWb = [ACC + m for m in range(4)]; vMk = [ACC + 4 + m for m in range(4)]
    for m in range(4):
        if m: E(f"v_add_u32 v{vt[0]}, {64*m}, v{vL}")
        ci = vt[0] if m else vL
        if m == 3: E(f"v_min_u32 v{vt[0]}, 239, v{vt[0]}")
        E(f"v_mul_u32_u24 v{vt[1]}, 0x1112, v{ci}")
        E(f"v_lshrrev_b32 v{vt[1]}, 16, v{vt[1]}")
        E(f"v_mul_u32_u24 v{vt[2]}, 15, v{vt[1]}")
        E(f"v_sub_u32 v{vt[2]}, v{ci}, v{vt[2]}")
        E(f"v_and_b32 v{vt[3]}, 3, v{vt[1]}")
        E(f"v_lshrrev_b32 v{vt[1]}, 2, v{vt[1]}")
        E(f"v_lshl_add_u32 v{vt[1]}, v{vt[3]}, 2, v{vt[1]}")
        E(f"v_mul_u32_u24 v{vt[3]}, 52, v{vt[2]}")
        E(f"v_lshrrev_b32 v{vt[3]}, 8, v{vt[3]}")
        E(f"v_mul_u32_u24 v{vt[1]}, 3840, v{vt[1]}")
        E(f"v_lshl_add_u32 v{vt[1]}, v{vt[2]}, 4, v{vt[1]}")
        E(f"v_min_u32 v{vMk[m]}, 1, v{vt[3]}")
        E(f"v_mul_u32_u24 v{vt[3]}, 1200, v{vt[3]}")
        E(f"v_add3_u32 v{vWb[m]}, v{vt[1]}, v{vt[3]}, s{sT0}".replace(f"s{sT0}", "0") if False else f"v_add_u32 v{vt[1]}, v{vt[1]}, v{vt[3]}")
        E(f"v_add_u32 v{vWb[m]}, {3072 - 1024*m}, v{vt[1]}")
    E.wait_lg()
    ST(E, "start")
    E(f"s_lshr_b32 s{sCL}, s2, 6")
    skip = newlabel("notick")
    E(f"s_lshl_b32 s12, s{sX}, 2")
    E(f"s_add_u32 s12, s12, s{sCL}")
    E(f"s_lshl_b32 s12, s12, 3")
    E(f"s_mov_b32 s{sV}, 1")
    E(f"s_cmp_lg_u32 s{sW}, 0")
    E(f"s_cbranch_scc1 {skip}")
    E.raw(f"    s_atomic_add s{sV}, s[{G.pDBG}:{G.pDBG+1}], s12 glc")
    E.label(skip)
    E(f"s_sub_u32 s{G.pW}, s{G.pW}, 3072")
    E(f"s_subb_u32 s{G.pW+1}, s{G.pW+1}, 0")
    srd(E, rW, G.pW, 2457600 + 3072)
    def dmaW(sig):
        L = []
        for m in range(4):
            g = []
            if m == 0: g.append(f"s_add_u32 m0, s{sW4}, {wslot(sig)}")
            g.append(("tag", f"buffer_load_dwordx4 v{vWo[m]}, s[{rW}:{rW+3}], s{sWO} offen offset:{1024*m} lds", f"S{sig}"))
            if m == 3: g += [f"s_add_u32 s{sWO}, s{sWO}, {64*3840}", f"s_cmp_ge_u32 s{sWO}, s{sWE}", f"s_cselect_b32 s9, {640*3840}, 0", f"s_sub_u32 s{sWO}, s{sWO}, s9"]
            L.append(("group", g))
        return L
    def dmaX(sig):
        L = []
        for i in range(4):
            g = []
            if i == 0: g.append(f"s_add_u32 m0, s{sXR}, {4096*(sig%2)}")
            g.append(("tag", f"buffer_load_dwordx4 v{vXo[i]}, s[{rIN}:{rIN+3}], s{sXO} offen offset:{1024*i} lds", f"S{sig}"))
            if i == 3: g += [f"s_add_u32 s{sXO}, s{sXO}, 128", f"s_cmp_ge_u32 s{sXO}, s{sXE}", f"s_cselect_b32 s9, 1280, 0", f"s_sub_u32 s{sXO}, s{sXO}, s9"]
            L.append(("group", g))
        return L
    def start_w():
        L = [f"s_lshr_b32 s{sT0}, s{sX}, 1", f"s_lshr_b32 s{sT1}, s{sCL}, 1", f"s_xor_b32 s{sT1}, s{sT1}, s{sT0}", f"s_and_b32 s{sT1}, s{sT1}, 1",
             f"s_lshl_b32 s{sP}, s{sT0}, 2", f"s_add_u32 s{sP}, s{sP}, s{sT1}", f"s_and_b32 s{sT0}, s{sCL}, 1", f"s_lshl_b32 s{sT0}, s{sT0}, 1", f"s_add_u32 s{sP}, s{sP}, s{sT0}",
             f"s_xor_b32 s{sPQ}, s{sP}, 1", f"s_mul_i32 s{sT1}, s{sT1}, 160", f"s_sub_u32 s{sT1}, s{sT1}, 80",
             f"s_mul_i32 s{sT0}, s{sPQ}, 80", f"s_mul_i32 s{sWE}, s{sW}, {16*3840}", f"s_add_u32 s{sWE}, s{sWE}, s{sT0}",
             f"s_mul_i32 s{sWO}, s{sROT}, {64*3840}", f"s_add_u32 s{sWO}, s{sWO}, s{sWE}", f"s_add_u32 s{sWE}, s{sWE}, {640*3840}"]
        L += [f"v_mad_i32_i24 v{vWo[m]}, v{vMk[m]}, s{sT1}, v{vWb[m]}" for m in range(4)]
        return L + dmaW(0) + dmaW(1)
    E(start_w())
    srd(E, rIN, G.pX, 2621440)
    E(f"v_lshrrev_b32 v{vt[0]}, 3, v{vL}")
    E(f"v_and_b32 v{vt[1]}, 7, v{vL}")
    E(f"v_xor_b32 v{vt[1]}, v{vt[1]}, v{vG}")
    E(f"v_mul_u32_u24 v{vt[0]}, 1280, v{vt[0]}")
    E(f"v_lshl_add_u32 v{vXo[0]}, v{vt[1]}, 4, v{vt[0]}")
    E(f"v_xor_b32 v{vXo[1]}, 64, v{vXo[0]}")
    E(f"v_add_u32 v{vXo[2]}, {2*(8*1280-1024)}, v{vXo[0]}")
    E(f"v_add_u32 v{vXo[3]}, {3*(8*1280-1024)}, v{vXo[1]}")
    E(f"v_add_u32 v{vXo[1]}, {1*(8*1280-1024)}, v{vXo[1]}")
    E(f"s_lshl_b32 s{sXR}, s{sW}, 13")
    E(f"s_add_u32 s{sXR}, s{sXR}, {XR}")
    skip = newlabel("notick"); again = newlabel("again"); got = newlabel("got"); same = newlabel("same")
    E(f"s_cmp_lg_u32 s{sW}, 0")
    E(f"s_cbranch_scc1 {skip}")
    E.raw("    s_mov_b32 s13, 0")
    E.label(again)
    for t in ["s_waitcnt lgkmcnt(0)", f"s_cmp_lt_u32 s{sV}, 8", f"s_cbranch_scc1 {got}",
              "s_add_u32 s13, s13, 1", "s_cmp_gt_u32 s13, 7", f"s_cbranch_scc1 {got}",
              "s_add_u32 s12, s12, 32", "s_and_b32 s12, s12, 255", f"s_mov_b32 s{sV}, 1",
              f"s_atomic_add s{sV}, s[{G.pDBG}:{G.pDBG+1}], s12 glc", f"s_branch {again}"]:
        E.raw("    " + t)
    E.label(got)
    for t in [f"s_and_b32 s{sV}, s{sV}, 7", f"s_and_b32 s12, s12, 0xe0", f"s_add_u32 s{sV}, s{sV}, s12", f"v_mov_b32 v{vt[0]}, s{sV}", f"v_and_b32 v{vt[1]}, 3, v{vL}",
              f"v_lshlrev_b32 v{vt[1]}, 13, v{vt[1]}", f"ds_write_b32 v{vt[1]}, v{vt[0]} offset:{XR}", "s_waitcnt lgkmcnt(0)"]:
        E.raw("    " + t)
    E.label(skip)
    E(f"v_mov_b32 v{vt[1]}, s{sXR}")
    E("s_barrier")
    E(f"ds_read_b32 v{vt[0]}, v{vt[1]}")
    E(f"v_readfirstlane_b32 s{sV}, v{vt[0]}")
    E(f"s_lshr_b32 s{sT0}, s{sV}, 5")
    E(f"s_and_b32 s{sCT}, s{sV}, 7")
    E(f"s_cmp_eq_u32 s{sT0}, s{sX}")
    E(f"s_cbranch_scc1 {same}")
    import copy
    saved = copy.deepcopy((E.vmq, E.lgq))
    E(f"s_mov_b32 s{sX}, s{sT0}")
    E.wait_vm()
    E(start_w())
    E.vmq, E.lgq = saved
    E.label(same)
    ST(E, "tile")
    E(f"s_and_b32 s{sR}, s{sX}, 1")
    E(f"s_lshl_b32 s{sR}, s{sR}, 3")
    E(f"s_add_u32 s{sR}, s{sR}, s{sCT}")
    E(f"s_lshl_b32 s{sXE}, s{sR}, 2")
    E(f"s_add_u32 s{sXE}, s{sXE}, s{sW}")
    E(f"s_mul_i32 s{sXE}, s{sXE}, {32*1280}")
    E(f"s_lshl_b32 s{sXO}, s{sROT}, 7")
    E(f"s_add_u32 s{sXO}, s{sXO}, s{sXE}")
    E(f"s_add_u32 s{sXE}, s{sXE}, 1280")
    E(dmaX(0)); E(dmaX(1))
    E(f"s_lshl_b32 s{sTBo}, s{sX}, 2")
    E(f"s_add_u32 s{sTBo}, s{sTBo}, s{sCL}")
    srd(E, rPHI, G.pPHI, 25600)
    vPhi = TM + 18
    E(f"v_lshlrev_b32 v{vPhi}, 4, v0")
    E(f"v_cmp_gt_u32 vcc, 200, v0")
    E(f"v_mov_b32 v{vPhi+1}, 0x100000")
    E(f"s_lshr_b32 s{sT0}, s{sP}, 1")
    E(f"s_mul_i32 s{sT0}, s{sT0}, 3200")
    E(f"v_cndmask_b32 v{vPhi+1}, v{vPhi+1}, v{vPhi}, vcc")
    E(f"buffer_load_dwordx4 {v(TM,4)}, v{vPhi+1}, s[{rPHI}:{rPHI+3}], s{sT0} offen")
    srd(E, rWS, G.pWS, G.WS_SIZE)
    PN = TM + 32
    for i in range(4): E(f"v_mov_b32 v{PN+i}, -1")
    E(f"v_lshlrev_b32 v{vL16}, 4, v{vL}")
    E(f"s_lshl_b32 s{sPL}, s{sPQ}, 16")
    E(f"s_add_u32 s{sPL}, s{sPL}, {G.P_BASE}")
    E(f"s_lshl_b32 s{sPS}, s{sP}, 4")
    E(f"s_add_u32 s{sPS}, s{sPS}, s{sR}")
    E(f"s_lshl_b32 s{sPS}, s{sPS}, 12")
    E(f"s_add_u32 s{sPS}, s{sPS}, {G.P_BASE}")
    E(f"s_lshl_b32 s{sT0}, s{sW}, 10")
    E(f"s_add_u32 s95, s{sT0}, s{sPS}")
    srd(E, rDBG, G.pDBG, 256)
    srd(E, rOUT, G.pOUT, 5242880)
    E(f"v_and_b32 v{vC}, 15, v{vL}")
    E(f"v_bfe_u32 v{vGam}, v{vL}, 4, 1")
    E(f"v_bfe_u32 v{vt[0]}, v{vL}, 1, 1")
    E(f"v_lshl_add_u32 v{vGam}, v{vGam}, 1, v{vt[0]}")
    E(f"v_bfe_u32 v{vR4}, v{vL}, 2, 2")
    E(f"v_lshrrev_b32 v{vHH}, 5, v{vL}")
    E(f"v_lshlrev_b32 v{vt[0]}, 3, v{vGam}")
    E(f"v_and_b32 v{vt[1]}, 1, v{vL}")
    E(f"v_mul_u32_u24 v{vt[1]}, 5, v{vt[1]}")
    E(f"v_lshl_add_u32 v{vt[2]}, v{vR4}, 1, v{vHH}")
    E(f"v_mul_u32_u24 v{vt[2]}, 480, v{vt[2]}")
    for T in range(4):
        pk = sum((30 if e is None else 10 * e[0] + e[1]) << (8 * i) for i, e in enumerate(TA[T]))
        E(f"s_mov_b32 s9, {pk}")
        E(f"v_bfe_u32 v{vt[3]}, s9, v{vt[0]}, 8")
        E(f"v_add_u32 v{vt[3]}, v{vt[3]}, v{vt[1]}")
        E(f"v_min_u32 v{vt[3]}, 31, v{vt[3]}")
        E(f"v_lshl_add_u32 v{vWt[T]}, v{vt[3]}, 3, v{vt[2]}")
    E(f"v_and_b32 v{vt[0]}, 31, v{vL}")
    E(f"v_bfe_u32 v{vt[1]}, v{vL}, 1, 3")
    E(f"v_xor_b32 v{vt[1]}, v{vt[1]}, v{vHH}")
    E(f"v_lshlrev_b32 v{vt[0]}, 7, v{vt[0]}")
    E(f"v_lshl_add_u32 v{vt[0]}, v{vt[1]}, 4, v{vt[0]}")
    for j in range(4):
        E(f"v_xor_b32 v{vXrs[j]}, {32*j}, v{vt[0]}")
        E(f"v_add_u32 v{vXrs[j]}, s{sXR}, v{vXrs[j]}")
    E(f"s_and_b32 s{sH}, s{sW}, 1")
    E(f"s_lshr_b32 s{sFT}, s{sW}, 1")
    E(f"s_mov_b32 s94, {f32(math.log2(math.e))}")
    vPa = [TM + 16, TM + 17]
    E(f"v_mul_u32_u24 v{vt[0]}, 800, v{vHH}")
    E(f"v_mul_u32_u24 v{vt[1]}, 40, v{vR4}")
    E(f"v_lshl_add_u32 v{vt[1]}, v{vGam}, 3, v{vt[1]}")
    E(f"v_and_b32 v{vt[2]}, 1, v{vL}")
    E(f"v_cmp_eq_u32 vcc, v{vt[2]}, v{vHH}")
    for i, sp in enumerate((sP, sPQ)):
        E(f"s_and_b32 s{sT0}, s{sp}, 1")
        E(f"s_mul_i32 s{sT0}, s{sT0}, 1600")
        E(f"v_add3_u32 v{vt[3]}, v{vt[0]}, v{vt[1]}, s{sT0}")
        E(f"v_mov_b32 v{vPa[i]}, 3200")
        E(f"v_cndmask_b32 v{vPa[i]}, v{vPa[i]}, v{vt[3]}, vcc")
    E(f"v_lshlrev_b32 v{vPhi+1}, 2, v0")
    E(f"v_mov_b32 v{TM+4}, 0")
    for i in range(2):
        for t in range(2):
            E(f"v_mov_b32 v{PF+24*i+16+4*t+2}, 0"); E(f"v_mov_b32 v{PF+24*i+16+4*t+3}, 0")
    E(f"v_mul_u32_u24 v{vPk}, 80, v{vL}")
    E(f"v_add_u32 v{vPk}, s{sXR}, v{vPk}")
    E(f"v_mul_u32_u24 v{vVw}, 48, v{vL}")
    E(f"v_add_u32 v{vVw}, s{sXR}, v{vVw}")
    E(f"v_lshl_add_u32 v{vt[0]}, v{vHH}, 3, v{vR4}")
    E(f"v_bfe_u32 v{vt[1]}, v{vL}, 4, 1")
    E(f"v_lshlrev_b32 v{vt[1]}, 2, v{vt[1]}")
    E(f"v_and_b32 v{vt[2]}, 1, v{vL}")
    E(f"v_lshl_add_u32 v{vt[2]}, v{vt[2]}, 1, v{vt[1]}")
    E(f"v_bfe_u32 v{vt[3]}, v{vL}, 1, 1")
    E(f"v_add_u32 v{vt[2]}, v{vt[2]}, v{vt[3]}")
    E(f"v_mul_u32_u24 v{vA}, 80, v{vt[0]}")
    E(f"v_lshl_add_u32 v{vA}, v{vt[2]}, 3, v{vA}")
    E(f"s_mul_i32 s{sT0}, s{sH}, 2560")
    E(f"s_lshl_b32 s{sT1}, s{sFT}, 6")
    E(f"s_add_u32 s{sT0}, s{sT0}, s{sT1}")
    E(f"s_add_u32 s{sT0}, s{sT0}, {XR}")
    E(f"v_add_u32 v{vA}, s{sT0}, v{vA}")
    E(f"v_and_b32 v{vt[2]}, 3, v{vL}")
    E(f"v_add_u32 v{vt[2]}, v{vt[2]}, v{vt[1]}")
    E(f"v_mul_u32_u24 v{vB}, 48, v{vt[0]}")
    E(f"v_lshl_add_u32 v{vB}, v{vt[2]}, 3, v{vB}")
    E(f"s_mul_i32 s{sT0}, s{sH}, 1536")
    E(f"s_add_u32 s{sT0}, s{sT0}, {XR+5120}")
    E(f"v_add_u32 v{vB}, s{sT0}, v{vB}")
    E(f"v_and_b32 v{vt[0]}, 31, v{vL}")
    E(f"s_lshl_b32 s{sT0}, s{sH}, 4")
    E(f"v_add_u32 v{vt[1]}, s{sT0}, v{vt[0]}")
    E(f"v_subrev_u32 v{vt[2]}, 20, v{vt[1]}")
    E(f"v_min_u32 v{vt[1]}, v{vt[1]}, v{vt[2]}")
    E(f"v_cmp_gt_u32 vcc, 20, v{vt[0]}")
    E(f"v_mov_b32 v{vt[3]}, 0x4000000")
    E(f"v_cndmask_b32 v{vt[1]}, v{vt[0]}, v{vt[1]}, vcc")
    E(f"v_lshlrev_b32 v{vt[1]}, 4, v{vt[1]}")
    E(f"v_cmp_gt_u32 vcc, 24, v{vt[0]}")
    E(f"s_cmp_eq_u32 s{sFT}, 0")
    E(f"s_mov_b32 s9, 0x4000000")
    E(f"s_cselect_b32 s{sT0}, 384, s9")
    E(f"s_cselect_b32 s{sT1}, 768, s9")
    E(f"v_cndmask_b32 v{vt[1]}, v{vt[3]}, v{vt[1]}, vcc")
    E(f"v_mul_lo_u32 v{vS1}, v{vHH}, s{sT0}")
    E(f"v_add_u32 v{vS1}, v{vS1}, v{vt[1]}")
    E(f"v_add_u32 v{vS2}, s{sT1}, v{vS1}")
    E(f"s_mul_i32 s{sT0}, s{sH}, 1920")
    E(f"s_mul_i32 s{sT1}, s{sFT}, 1536")
    E(f"s_add_u32 s{sPS}, s{sPS}, s{sT0}")
    E(f"s_add_u32 s{sPS}, s{sPS}, s{sT1}")
    E(f"v_min_u32 v{vPi}, 239, v0")
    E(f"v_lshlrev_b32 v{vPi}, 4, v{vPi}")
    E(f"v_bfe_u32 v{vt[0]}, v{vL}, 3, 2")
    E(f"v_and_b32 v{vt[1]}, 3, v{vL}")
    E(f"v_lshl_add_u32 v{vt[0]}, v{vt[0]}, 2, v{vt[1]}")
    E(f"v_mul_u32_u24 v{vt[1]}, 1920, v{vHH}")
    E(f"v_lshl_add_u32 v{vt[2]}, v{vt[0]}, 4, v{vt[1]}")
    E(f"v_add_u32 v{vt[2]}, {KVT}, v{vt[2]}")
    E(f"v_bfe_u32 v{vt[1]}, v{vL}, 2, 1")
    E(f"v_cmp_eq_u32 vcc, v{vt[1]}, v{vHH}")
    E(f"v_mov_b32 v{vKa}, {ZKV}")
    E(f"v_cndmask_b32 v{vKa}, v{vKa}, v{vt[2]}, vcc")
    E(f"v_cndmask_b32 v{vt[0]}, 64, v{vt[0]}, vcc")
    E(f"v_and_b32 v{vt[1]}, 1, v{vt[0]}")
    E(f"v_lshlrev_b32 v{vt[1]}, 4, v{vt[1]}")
    E(f"v_mov_b32 v{vt[2]}, 0x3f80")
    E(f"v_lshlrev_b32 v{vt[1]}, v{vt[1]}, v{vt[2]}")
    E(f"v_lshrrev_b32 v{vt[0]}, 1, v{vt[0]}")
    for i in range(4):
        E(f"v_cmp_eq_u32 vcc, {i}, v{vt[0]}")
        E(f"v_cndmask_b32 v{ID+i}, 0, v{vt[1]}, vcc")
    E(f"v_and_b32 v{vt[1]}, 1, v{vG}")
    E(f"v_mul_u32_u24 v{vt[1]}, 20480, v{vt[1]}")
    E(f"v_lshl_add_u32 v{vt[1]}, v{vC}, 4, v{vt[1]}")
    E(f"v_mul_u32_u24 v{vO1}, 768, v{vHH}")
    E(f"v_add_u32 v{vO1}, v{vO1}, v{vt[1]}")
    E(f"v_lshl_add_u32 v{vO3}, v{vHH}, 26, v{vt[1]}")
    E(f"s_lshl_b32 s{sT0}, s{sR}, 2")
    E(f"s_add_u32 s{sT0}, s{sT0}, s{sW}")
    E(f"s_mul_i32 s{sT0}, s{sT0}, 40960")
    E(f"s_mul_i32 s{sT1}, s{sPQ}, 1280")
    E(f"s_add_u32 s{sT0}, s{sT0}, s{sT1}")
    E(f"s_add_u32 s{sOS}, s{sT0}, {G.O_BASE}")
    E(f"v_lshlrev_b32 v{vC4}, 2, v{vC}")
    E(f"s_lshl_b32 s{sFO}, s{sTBo}, 3")
    E(f"s_add_u32 s{sFO}, s{sFO}, s{sCT}")
    E(f"s_lshl_b32 s{sFO}, s{sFO}, 2")
    E(f"s_add_u32 s{sFO}, s{sFO}, s{sW}")
    E(f"s_lshl_b32 s{sFO}, s{sFO}, 7")
    E(f"s_add_u32 s{sFO}, s{sFO}, {G.FLAGO_BASE}")
    E(f"s_mul_i32 s{sOL}, s{sTBo}, 81920")
    E(f"s_mul_i32 s{sT0}, s{sW}, 5120")
    E(f"s_add_u32 s{sOL}, s{sOL}, s{sT0}")
    E(f"s_add_u32 s{sOL}, s{sOL}, {G.O_BASE}")
    E(f"s_lshl_b32 s{sWL}, s{sCT}, 2")
    E(f"s_add_u32 s{sWL}, s{sWL}, s{sW}")
    E(f"s_mul_i32 s{sWL}, s{sWL}, 25600")
    E(f"s_add_u32 s{sWL}, s{sWL}, {G.PWO_BASE}")
    E(f"v_mul_u32_u24 v{vRw}, 160, v{vC}")
    E(f"v_mul_u32_u24 v{vt[1]}, 40, v{vG}")
    E(f"s_mul_i32 s93, s{sW}, 2560")
    E(f"s_add_u32 s{sT0}, s93, 30720")
    E(f"v_add3_u32 v{vRw}, v{vRw}, v{vt[1]}, s{sT0}")
    for m in range(3):
        E(f"v_add_u32 v{vt[0]}, {64*m}, v{vL}")
        E(div_const(vt[1], vt[0], 10))
        E(f"v_mul_u32_u24 v{vt[1]}, 2400, v{vt[1]}")
        E(f"v_lshl_add_u32 v{vSo[m]}, v{vt[0]}, 4, v{vt[1]}")
    E(f"s_add_u32 s22, s{sW}, s{sCT}")
    E(f"s_and_b32 s22, s22, 3")
    E(f"s_lshl_b32 s{sOUT}, s{sTBo}, 2")
    E(f"s_add_u32 s{sOUT}, s{sOUT}, s22")
    E(f"s_mul_i32 s{sOUT}, s{sOUT}, {16*2560}")
    E(f"s_mul_i32 s{sT1}, s{sCT}, 160")
    E(f"s_add_u32 s{sOUT}, s{sOUT}, s{sT1}")
    E(f"s_lshl_b32 s{sF1}, s{sP}, 13")
    E(G.word_off(sF1, sR, 2, sT1))
    E(f"s_add_u32 s{sF1}, s{sF1}, {G.FLAGW_BASE}")
    E(f"s_lshl_b32 s{sFP}, s{sPQ}, 4")
    E(f"s_add_u32 s{sFP}, s{sFP}, s{sR}")
    E(f"s_lshl_b32 s{sFP}, s{sFP}, 9")
    E(f"s_add_u32 s{sFP}, s{sFP}, {G.FLAGW_BASE}")
    E(f"s_lshl_b32 s{sF2}, s{sR}, 1")
    E(f"s_add_u32 s{sF2}, s{sF2}, s{sFT}")
    E(f"s_lshl_b32 s{sF2}, s{sF2}, 12")
    E(G.word_off(sF2, sPQ, 2, sT1))
    E(f"s_add_u32 s{sF2}, s{sF2}, {G.FLAGO_BASE}")
    E(f"s_lshl_b32 s{sT1}, s{sW}, 7")
    E(f"s_add_u32 s{sFP}, s{sT1}, s{sFP}")
    for sa in (sFP, sFO): E(f"s_buffer_load_dword s23, s[{rWS}:{rWS+3}], s{sa} glc")
    vCo = TM + 15
    E(f"s_mul_i32 s{sT0}, s{sW}, 20")
    E(f"v_min_u32 v{vt[0]}, 19, v{vL}")
    E(f"v_add_u32 v{vt[0]}, s{sT0}, v{vt[0]}")
    E(f"v_lshrrev_b32 v{vt[1]}, 3, v{vt[0]}")
    E(f"v_and_b32 v{vt[0]}, 7, v{vt[0]}")
    E(f"v_lshlrev_b32 v{vt[0]}, 2, v{vt[0]}")
    E(f"v_lshl_add_u32 v{vCo}, v{vt[1]}, 7, v{vt[0]}")
    E(f"s_mov_b32 s{sFC}, {G.FLAGC_BASE}")
    sWk = [16, 17, 18, 19, 20]; sKo = [40, 41, 42, 43, 44]
    E(f"s_and_b32 s{sT0}, s{sTBo}, 3")
    for k in range(5):
        E(f"s_lshl_b32 s{sKo[k]}, s{sT0}, 10")
        E(f"s_mul_i32 s{sWk[k]}, s{sT0}, 5120")
        E(f"s_add_u32 s{sWk[k]}, s{sWk[k]}, s{sWL}")
        if k < 4:
            E(f"s_add_u32 s{sT0}, s{sT0}, 1")
            E(f"s_cmp_eq_u32 s{sT0}, 5")
            E(f"s_cselect_b32 s{sT0}, 0, s{sT0}")

    def rdW(sig, ks):
        b = WF + 16 * (ks % 2)
        return [f"ds_read_b64_tr_b16 {v(b+4*T+2*a,2)}, v{vWt[T]} offset:{wslot(sig) + 4096*ks + 240*a}" for T in range(4) for a in range(2)]
    def rdX(sig):
        return [f"ds_read_b128 {v(XF+16*(sig%2)+4*j,4)}, v{vXrs[j]} offset:{4096*(sig%2)}" for j in range(4)]
    def mm(sig, ks):
        L = []
        for T in range(4):
            d = v(ACC + 16 * T, 16)
            if "--nomfma" in sys.argv:
                L.append(f"v_mov_b32 v{ACC+T}, v{WF+16*(ks%2)+4*T+3}"); continue
            if "--m16" in sys.argv:
                L.append(("group", [f"{M16} {v(ACC+16*T+4*(2*(ks%2)+e),4)}, {v(WF+16*(ks%2)+4*T,4)}, {v(XF+16*(sig%2)+4*((ks+e)%4),4)}, {v(ACC+16*T+4*(2*(ks%2)+e),4)}" for e in range(2)])); continue
            L.append(f"{M32} {d}, {v(WF+16*(ks%2)+4*T,4)}, {v(XF+16*(sig%2)+4*ks,4)}, {d if (sig or ks) else 0}")
        return L
    def weave(M, rd, vm):
        out = []
        n = (len(rd) + 2) // 3
        for i, x in enumerate(M):
            out.append(x)
            if i < 3: out += rd[n * i:n * (i + 1)]
            if i == 1 and len(vm) > 0: out.append(vm[0])
            if i == 3 and len(vm) > 1: out += vm[1:]
        return out
    wphi = [f"ds_write_b128 v{vPhi}, {v(TM,4)} offset:{TAB}", f"ds_write_b32 v{vPhi+1}, v{TM+4} offset:{TAB+4096}"]
    rphi = []
    for i in range(2):
        for c in range(3):
            for t in range(2):
                b = PF + 24 * i + 8 * c + 4 * t
                rphi.append(f"ds_read_b64_tr_b16 {v(b,2)}, v{vPa[i]} offset:{TAB + 320*c + 32*t}")
                if c < 2: rphi.append(f"ds_read_b64_tr_b16 {v(b+2,2)}, v{vPa[i]} offset:{TAB + 320*c + 160 + 32*t}")
    nld = f"buffer_load_dword v{vNon}, off, s[{rDBG}:{rDBG+3}], 0 offset:4 sc1"
    cld = f"buffer_load_dword v{vFc}, v{vCo}, s[{rWS}:{rWS+3}], s{sFC} offen sc1"
    opois = [f"buffer_store_dwordx4 {v(PN,4)}, v{vO1}, s[{rWS}:{rWS+3}], s{sOS} offen sc1",
             f"buffer_store_dwordx4 {v(PN,4)}, v{vO1}, s[{rWS}:{rWS+3}], s{sOS} offen offset:256 sc1",
             f"buffer_store_dwordx4 {v(PN,4)}, v{vO3}, s[{rWS}:{rWS+3}], s{sOS} offen offset:512 sc1"]
    allpois = [f"buffer_store_dwordx4 {v(PN,4)}, v{vL16}, s[{rWS}:{rWS+3}], s95 offen sc1"] + opois[:2] + [("tag", opois[2], "pois")]
    if "--earlypois" in sys.argv: E(allpois)
    E.wait_vm("S0")
    E("s_barrier")
    E(rdX(0)); E(rdW(0, 0))
    w2 = dmaW(2)
    E(w2[:2])
    pendW = w2[2:]
    for sig in range(10):
        xn = dmaX(sig + 2) if sig + 2 < 10 else []
        extra = [[], [], []]
        if sig == 8:
            extra = [wphi, [], []]
            pendW = [("tag", nld, "nonce"), ("tag", cld, "cfl")]
            if "--earlypois" not in sys.argv: xn = allpois
        if sig == 9:
            extra = [rphi[:7], rphi[7:14], rphi[14:]]
        E(weave(mm(sig, 0), rdW(sig, 1) + extra[0], pendW))
        E(weave(mm(sig, 1), rdW(sig, 2) + extra[1], xn[:2]))
        E(weave(mm(sig, 2), rdW(sig, 3) + extra[2], xn[2:]))
        if sig < 9:
            E.wait_vm(f"S{sig+1}")
            E.wait_lg()
            E("s_barrier")
            wn = dmaW(sig + 3) if sig + 3 < 10 else []
            E(weave(mm(sig, 3), rdX(sig + 1)[:1] + rdW(sig + 1, 0) + rdX(sig + 1)[1:], wn[:2]))
            pendW = wn[2:]
        else:
            E(mm(sig, 3))
    ST(E, "gemm")
    if "--gemmonly" in sys.argv:
        ST.dump(E, sW, ACC)
        E("s_endpgm")
        return ST

    def acc(sec, j):
        for T in range(4):
            for g_, e in enumerate(TA[T]):
                if e == (sec, j): return ACC + 16 * T + 4 * g_
    QB = XF
    PD = WF
    EE = TM
    def pack(sec, dst):
        return [f"v_cvt_pk_bf16_f32 v{dst+2*j+e}, v{acc(sec,j)+2*e}, v{acc(sec,j)+2*e+1}" for j in range(5) for e in range(2)]
    def premm(qb, i):
        L = []
        for c in range(3):
            for t in range(2):
                d = v(PD + 16 * t, 16)
                L.append(f"{M32} {d}, {v(PF+24*i+8*c+4*t,4)}, {v(qb+4*c,4)}, {d if c else 0}")
        return L
    def softmax(out_plus, out_minus, after_plus):
        PP = PD
        mx, mn, m = MP, vMn, MP
        L = [f"v_max3_f32 v{mx}, v{PP}, v{PP+1}, v{PP+2}", f"v_min3_f32 v{mn}, v{PP}, v{PP+1}, v{PP+2}"]
        for i in range(3, 19, 2):
            L += [f"v_max3_f32 v{mx}, v{mx}, v{PP+i}, v{PP+i+1}", f"v_min3_f32 v{mn}, v{mn}, v{PP+i}, v{PP+i+1}"]
        L += [f"v_max_f32 v{mx}, v{mx}, v{PP+19}", f"v_min_f32 v{mn}, v{mn}, v{PP+19}"]
        for sgn, dst, src, outp in ((1, EE, mx, out_plus), (-1, PP, mn, out_minus)):
            L.append(f"v_mul_f32 v{m}, s94, v{src}")
            for i in range(20):
                L.append(f"v_fma_f32 v{dst+i}, v{PP+i}, s94, -v{m}" if sgn > 0 else f"v_fma_f32 v{dst+i}, -v{PP+i}, s94, v{m}")
            for i in range(20):
                L.append(f"v_exp_f32 v{dst+i}, v{dst+i}")
                if i == 2: L.append(f"v_add_f32 v{m}, v{dst}, v{dst+1}")
                if i > 2: L.append(f"v_add_f32 v{m}, v{m}, v{dst+i-1}")
            L += [f"v_add_f32 v{m}, v{m}, v{dst+19}", f"v_rcp_f32 v{m}, v{m}"]
            for i in range(10):
                L.append(f"v_mul_f32 v{dst+2*i}, v{m}, v{dst+2*i}")
                L.append(f"v_mul_f32 v{dst+2*i+1}, v{m}, v{dst+2*i+1}")
                L.append(f"v_cvt_pk_bf16_f32 v{outp+i}, v{dst+2*i}, v{dst+2*i+1}")
            if sgn > 0: L += after_plus
        return L
    E(f"v_mov_b32 v{QB+10}, 0"); E(f"v_mov_b32 v{QB+11}, 0")
    E(pack(1, QB))
    VP = XF + 12
    QB2 = TM + 20
    side = pack(2, VP) + [f"v_mov_b32 v{VP+10}, 0x3f80", f"v_mov_b32 v{VP+11}, 0"] + \
           [f"ds_write_b128 v{vVw}, {v(VP+4*i,4)} offset:{5120+16*i}" for i in range(3)] + \
           pack(0, QB2) + [f"v_mov_b32 v{QB2+10}, 0", f"v_mov_b32 v{QB2+11}, 0"]
    E(merge(premm(QB, 0), side[:15])); E(side[15:])
    G.nonce_get(E, nld, vNon)
    spin(E, ["s_sleep 2", cld], [f"v_cmp_ne_u32 vcc, s{sN}, v{vFc}"], "cfl")
    WOr = [ACC + 4 * i for i in range(16)] + [vXo[0], vWo[0], vWt[0]] + [XF + 20 + 4 * i for i in range(3)] + [TM + 4 * i for i in range(3)]
    assert all(r % 4 == 0 for r in WOr)
    vL4k = vVw
    NW1, NW2 = [int(x) for x in ([a[5:] for a in sys.argv if a.startswith('--wo=')] + ['14,22'])[0].split(',')]
    E(f"v_add_u32 v{vL4k}, 4096, v{vL16}")
    def wo_ld(i):
        k, T = divmod(i, 5)
        return f"buffer_load_dwordx4 {v(WOr[i],4)}, v{vL16 if T < 4 else vL4k}, s[{rWS}:{rWS+3}], s{sWk[k]} offen offset:{1024*(T%4)} sc1"
    PHK = XF + 12
    smk = softmax(PHK, PHK + 10, [f"ds_write_b128 v{vPk}, {v(PHK,4)}", f"ds_write_b128 v{vPk}, {v(PHK+4,4)} offset:16"])
    E(merge(smk[:8*NW1], [wo_ld(i) for i in range(NW1)])); E(smk[8*NW1:])
    for i in range(2, 5): E(f"ds_write_b128 v{vPk}, {v(PHK+4*i,4)} offset:{16*i}")
    ST(E, "phik")
    E(premm(QB2, 1))
    E.wait_vm("pois")
    E.wait_lg()
    E("s_barrier")
    KQ = [PF + 4 * i for i in range(12)] + [TM + 20 + 4 * i for i in range(4)]
    KD = XF
    def rdk(i):
        j, k2 = divmod(i, 2)
        L = []
        for a in range(2):
            L.append(f"ds_read_b64_tr_b16 {v(KQ[2*i]+2*a,2)}, v{vA} offset:{8192*j + 80*(16*k2+4*a)}")
        for a in range(2):
            L.append(f"ds_read_b64_tr_b16 {v(KQ[2*i+1]+2*a,2)}, v{vB} offset:{8192*j + 48*(16*k2+4*a)}")
        return L
    E(rdk(0) + rdk(1) + rdk(2))
    for i in range(8):
        if i + 3 < 8: E(rdk(i + 3))
        d = v(KD, 16)
        E(f"{M32} {d}, {v(KQ[2*i],4)}, {v(KQ[2*i+1],4)}, {d if i else 0}")
    SFL = 60
    PH = XF
    smq = softmax(PH, PH + 10, [])
    E(smq[:10])
    KP = XF + 16
    for i in range(8):
        E(f"v_cvt_pk_bf16_f32 v{KP+i}, v{KD+2*i}, v{KD+2*i+1}")
        E(f"v_min_u32 v{KP+i}, -2, v{KP+i}")
        if i == 3: E(f"buffer_store_dwordx4 {v(KP,4)}, v{vS1}, s[{rWS}:{rWS+3}], s{sPS} offen sc1")
    E(f"buffer_store_dwordx4 {v(KP+4,4)}, v{vS2}, s[{rWS}:{rWS+3}], s{sPS} offen sc1")
    vPu = vA
    def push(cond, mask, saddr):
        skip = newlabel("nopush")
        E(cond)
        E(f"s_cbranch_scc1 {skip}")
        E(f"s_mov_b64 exec, {mask}")
        E.raw(f"    buffer_store_dword v{vNon}, v{vPu}, s[{rWS}:{rWS+3}], s{saddr} offen sc1")
        E("s_mov_b64 exec, -1")
        E.label(skip)
    E(f"v_lshlrev_b32 v{vPu}, 9, v{vL}")
    push(f"s_cmp_lg_u32 s{sW}, 0", 0xffff, sF1)
    ST(E, "T0")
    PLr = KQ
    pld = []
    E(f"s_and_b32 s21, s{sR}, 7")
    E(f"s_lshl_b32 s21, s21, 13")
    E(f"s_add_u32 s21, s21, s{sPL}")
    for r in range(16):
        pld.append(f"s_xor_b32 s9, s21, {G.P_PITCH*r}")
        pld.append(f"buffer_load_dwordx4 {v(PLr[r],4)}, v{vPi}, s[{rWS}:{rWS+3}], s9 offen sc1")
    pg = [("group", [pld[2*r], ("tag", pld[2*r+1], "part")]) for r in range(16)]
    E(merge(smq[10:-40], [wo_ld(i) for i in range(NW1, NW2)]))
    E(G.sflag_loads(sFP, 1, 4, SFL))
    E(smq[-40:])
    ok1 = newlabel("f1ok")
    E.wait_lg()
    E(G.sflag_check(4, SFL))
    E(f"s_cbranch_scc0 {ok1}")
    G.sflag_wait(E, sFP, 1, 4, SFL)
    E.label(ok1)
    E("s_barrier")
    ST(E, "f1ok")
    E(pg)
    ST(E, "phiq")
    RD_ = WF
    vCk = MP
    def reduce_items():
        L = []
        for r in range(16):
            d = v(RD_, 16); p = PLr[r]
            L.append(f"{M32} {d}, {v(ID,4)}, {v(p,4)}, {d if r else 0}")
            L.append(f"v_max3_u32 v{vCk}, v{p}, v{p+1}, {'v%d' % vCk if r else 0}")
            L.append(f"v_max3_u32 v{vCk}, v{p+2}, v{p+3}, v{vCk}")
        L.append(f"v_cmp_eq_u32 vcc, -1, v{vCk}")
        return L
    def retry(loads, check):
        ok = newlabel("rok"); sp = newlabel("rsp")
        E(f"s_cbranch_vccz {ok}")
        E.raw("    s_mov_b32 s13, 0")
        E.label(sp)
        for t in ["s_sleep 2"] + loads + ["s_add_u32 s13, s13, 1", f"s_cmp_gt_u32 s13, {G.SPIN_MAX}", f"s_cbranch_scc1 {ok}", "s_waitcnt vmcnt(0)"] + check + [f"s_cbranch_vccnz {sp}"]:
            E.raw("    " + t)
        E.label(ok)
    E(reduce_items())
    retry(pld, reduce_items())
    ST(E, "part")
    SM = WF + 16
    for e in range(4): E(f"v_cvt_pk_bf16_f32 v{SM+e}, v{RD_+2*e}, v{RD_+2*e+1}")
    E(f"ds_write_b128 v{vPi}, {v(SM,4)} offset:{KVT}")
    E.wait_lg()
    E("s_barrier")
    OD = WF
    AF = PF
    fo = [(c, t) for c in range(5) for t in (1, 0)]
    for i, (c, t) in enumerate(fo): E(f"ds_read_b128 {v(AF+4*i,4)}, v{vKa} offset:{384*c + 256*t}")
    sTile = [72, 73, 74, 75]
    vOk = [vPk, vS1, vS2, vPi, vMn]
    pre = []
    for i in range(4):
        pre += [("group", [f"s_add_u32 s9, s22, {i+1}", f"s_and_b32 s9, s9, 3", f"s_mul_i32 s{sTile[i]}, s9, 20480", f"s_add_u32 s{sTile[i]}, s{sTile[i]}, s{sOL}",
                f"s_cmp_ge_u32 s9, 2", f"s_cselect_b32 s8, 18432, 0", f"s_mul_i32 s9, s9, 15360", f"s_add_u32 s9, s9, s8",
                f"v_add_u32 v{vXrs[i]}, s9, v{vL16}"])]
    pre += [("group", [f"v_add_u32 v{vOk[k]}, s{sKo[k]}, v{vL16}" for k in range(5)])]
    om = []
    for i, (c, t) in enumerate(fo):
        d = v(OD + 16 * t, 16)
        om.append(f"{M32} {d}, {v(AF+4*i,4)}, {v(PH+4*c,4)}, {d if c else 0}")
    E(merge(om, pre))
    E(f"v_add_f32 v{MP}, {f32(1e-6)}, v{OD+20}")
    E(f"v_rcp_f32 v{MP}, v{MP}")
    OP = TM + 20
    for i in (8, 9, 0, 1, 2, 3, 4, 5, 6, 7):
        E(f"v_mul_f32 v{OD+2*i}, v{MP}, v{OD+2*i}"); E(f"v_mul_f32 v{OD+2*i+1}, v{MP}, v{OD+2*i+1}")
        E(f"v_cvt_pk_bf16_f32 v{OP+i}, v{OD+2*i}, v{OD+2*i+1}")
        E(f"v_min_u32 v{OP+i}, -2, v{OP+i}")
        if i == 0:
            E(f"v_permlane32_swap_b32 v{OP+8}, v{OP+10}"); E(f"v_permlane32_swap_b32 v{OP+9}, v{OP+11}")
            E(f"buffer_store_dwordx4 {v(OP+8,4)}, v{vO3}, s[{rWS}:{rWS+3}], s{sOS} offen offset:512 sc1")
        if i == 3: E(f"buffer_store_dwordx4 {v(OP,4)}, v{vO1}, s[{rWS}:{rWS+3}], s{sOS} offen sc1")
    E(f"buffer_store_dwordx4 {v(OP+4,4)}, v{vO1}, s[{rWS}:{rWS+3}], s{sOS} offen offset:256 sc1")
    push(f"s_cmp_lg_u32 s{sH}, 0", 0xff, sF2)
    ST(E, "opub")
    for i in range(NW2, 25): E(wo_ld(i))
    OFr = [PF + 4 * i for i in range(12)] + [WF + 4 * i for i in range(8)]
    OA = [[XF + 4 * T for T in range(5)], [TM + 12 + 4 * T for T in range(5)]]
    G.sflag_wait(E, sFO, 1, 4, SFL)
    ST(E, "f2ok")
    def o_ld(i):
        return [f"buffer_load_dwordx4 {v(OFr[5*i+k],4)}, v{vOk[k]}, s[{rWS}:{rWS+3}], s{sTile[i]} offen sc1" for k in range(5)]
    for i in range(4):
        for t in o_ld(i): E(t, tag=f"of{i}")
    ST(E, "oreq")
    pend = []
    for i in range(4):
        rg = [OFr[5 * i + k] + e for k in range(5) for e in range(4)]
        chk = [f"v_max_u32 v{MP}, v{rg[0]}, v{rg[1]}"] + [f"v_max3_u32 v{MP}, v{MP}, v{rg[e]}, v{rg[e+1]}" for e in range(2, 20, 2)] + [f"v_cmp_eq_u32 vcc, -1, v{MP}"]
        E(chk)
        retry(sum([o_ld(k) for k in range(i, 4)], []), chk)
        if i == 0: ST(E, "ofr")
        M = []
        for k in range(5):
            for T in range(5):
                d = v(OA[i % 2][T], 4)
                M.append(f"{M16} {d}, {v(WOr[5*k+T],4)}, {v(OFr[5*i+k],4)}, {d if k else 0}")
        E(M[:6]); E(merge(M[6:], pend))
        pend = [f"ds_write_b128 v{vXrs[i]}, {v(OA[i%2][T],4)} offset:{5120*i + 1024*T}" for T in range(5)] if i < 3 else []
    ST(E, "ogemm")
    E.wait_lg()
    E("s_barrier")
    RR = ACC
    for j in range(3):
        for T in range(5): E(f"ds_read_b128 {v(RR+20*j+4*T,4)}, v{vXrs[3]} offset:{5120*j + 1024*T}")
    RP = PF
    for j in range(3):
        for T in range(5):
            for e in range(4): E(f"v_add_f32 v{OA[1][T]+e}, v{OA[1][T]+e}, v{RR+20*j+4*T+e}")
            if j == 2:
                E(f"v_cvt_pk_bf16_f32 v{RP+2*T}, v{OA[1][T]}, v{OA[1][T]+1}")
                E(f"v_cvt_pk_bf16_f32 v{RP+2*T+1}, v{OA[1][T]+2}, v{OA[1][T]+3}")
                E(f"ds_write_b64 v{vRw}, {v(RP+2*T,2)} offset:{8*T}")
    E(f"v_add_u32 v{vPk}, s93, v{vL16}")
    for m in range(3): E(f"ds_read_b128 {v(RP+12+4*m,4)}, v{vPk} offset:{30720 + 1024*m}")
    for m in range(3):
        if m == 2: E("s_mov_b32 exec_hi, 0")
        E(f"buffer_store_dwordx4 {v(RP+12+4*m,4)}, v{vSo[m]}, s[{rOUT}:{rOUT+3}], s{sOUT} offen")
    E("s_mov_b64 exec, -1")
    if G.PROFILE:
        E.wait_vm()
        ST(E, "end")
    ST.dump(E, sW, RP + 40)
    E("s_endpgm")
    return ST
```

```python
import math, sys
from asmlib import *

TA = [[(0, 0), (0, 2), (0, 4), (1, 4)], [(0, 1), (0, 3), (1, 3), (2, 3)], [(1, 0), (1, 2), (2, 2), (2, 4)], [(1, 1), (2, 0), (2, 1), None]]
M16 = "v_mfma_f32_16x16x32_bf16"; M32 = "v_mfma_f32_32x32x16_bf16"

def div_const(dst, src, d):
    return [f"v_mul_u32_u24 v{dst}, {(65536 + d - 1)//d}, v{src}", f"v_lshrrev_b32 v{dst}, 16, v{dst}"]

def put_flag(E, G, sW, vNon, saddr):
    skip = G.newlabel("nofl")
    E(f"s_cmp_lg_u32 s{sW}, 0")
    E(f"s_cbranch_scc1 {skip}")
    E("s_mov_b64 exec, 1")
    E.raw(f"    buffer_store_dword v{vNon}, off, s[{G.rWS}:{G.rWS+3}], s{saddr} sc1")
    E("s_mov_b64 exec, -1")
    E.label(skip)

def flag_addr(dst, idx, base, t):
    return [f"s_lshr_b32 s{dst}, s{idx}, 3", f"s_lshl_b32 s{dst}, s{dst}, 7", f"s_and_b32 s{t}, s{idx}, 7", f"s_lshl_b32 s{t}, s{t}, 2",
            f"s_add_u32 s{dst}, s{dst}, s{t}", f"s_add_u32 s{dst}, s{dst}, {base}"]

def piece_voff(E, vL, dst, t, pitch):
    for m in range(3):
        if m: E(f"v_add_u32 v{t}, {64*m}, v{vL}")
        ci = t if m else vL
        E(div_const(t + 1, ci, 20))
        E(f"v_mul_u32_u24 v{t+1}, {pitch - 320}, v{t+1}")
        E(f"v_lshl_add_u32 v{dst[m]}, v{vL}, 4, v{t+1}")

def gen_C(E, G):
    rWS, rDBG, rWO = G.rWS, G.rDBG, G.rWO
    G.fresh(E)
    sW, sU = 76, 77
    vL, vo, t, vT, vS, D, vNon = 1, [2, 3, 4], 6, [8, 9, 10], [11, 12, 13], 16, 14
    E(f"v_and_b32 v{vL}, 63, v0")
    E(f"v_lshrrev_b32 v{t}, 6, v0")
    E(f"s_sub_u32 s{sU}, s2, {G.NB + G.NA}")
    E(f"v_readfirstlane_b32 s{sW}, v{t}")
    piece_voff(E, vL, vo, t, 1280)
    E(f"s_mul_i32 s4, s{sU}, {8*1280}")
    E(f"s_mul_i32 s5, s{sW}, 320")
    E(f"s_add_u32 s4, s4, s5")
    E(f"s_lshl_b32 s6, s{sW}, 12")
    E(f"s_mov_b32 m0, s6")
    E.wait_lg()
    G.srd(E, rWO, G.pWO, 819200)
    for m in range(3):
        if m == 2: E("s_mov_b32 exec_hi, 0")
        E(f"buffer_load_dwordx4 v{vo[m]}, s[{rWO}:{rWO+3}], s4 offen offset:{1024*m} lds")
    E("s_mov_b64 exec, -1")
    G.srd(E, rWS, G.pWS, G.WS_SIZE)
    G.srd(E, rDBG, G.pDBG, 256)
    for m in range(3):
        E(f"v_lshrrev_b32 v{t}, 4, v{vL}")
        E(f"v_add_u32 v{t}, {4*m}, v{t}")
        E(f"v_min_u32 v{t}, 9, v{t}")
        E(f"v_cmp_lt_u32 vcc, 4, v{t}")
        E(f"v_lshlrev_b32 v{vT[m]}, 3, v{t}")
        E(f"v_add_u32 v{t+1}, 120, v{vT[m]}")
        E(f"v_cndmask_b32 v{vT[m]}, v{vT[m]}, v{t+1}, vcc")
        E(f"v_lshlrev_b32 v{vS[m]}, 10, v{t}")
        E(f"v_add_u32 v{t+1}, {95*1024}, v{vS[m]}")
        E(f"v_cndmask_b32 v{vS[m]}, v{vS[m]}, v{t+1}, vcc")
        E(f"v_and_b32 v{t}, 3, v{vL}")
        E(f"v_mul_u32_u24 v{t}, 40, v{t}")
        E(f"v_bfe_u32 v{t+1}, v{vL}, 2, 2")
        E(f"v_mul_u32_u24 v{t+1}, 320, v{t+1}")
        E(f"v_add3_u32 v{vT[m]}, v{vT[m]}, v{t}, v{t+1}")
        E(f"v_add_u32 v{vT[m]}, s6, v{vT[m]}")
        E(f"v_and_b32 v{t}, 15, v{vL}")
        E(f"v_lshl_add_u32 v{vS[m]}, v{t}, 4, v{vS[m]}")
    E(f"s_mul_i32 s4, s{sW}, {200*1024}")
    E(f"s_lshr_b32 s5, s{sU}, 2")
    E(f"s_mul_i32 s5, s5, 5120")
    E(f"s_add_u32 s4, s4, s5")
    E(f"s_and_b32 s5, s{sU}, 3")
    E(f"s_lshl_b32 s5, s5, 8")
    E(f"s_add_u32 s4, s4, s5")
    E(f"s_add_u32 s4, s4, {G.PWO_BASE}")
    E(flag_addr(7, sU, G.FLAGC_BASE, 5))
    E.wait_vm()
    for m in range(3):
        for a in range(2): E(f"ds_read_b64_tr_b16 {v(D+4*m+2*a,2)}, v{vT[m]} offset:{1280*a}")
    for m in range(3):
        if m == 2:
            E.wait_lg()
            E("s_mov_b32 exec_hi, 0")
        E(f"buffer_store_dwordx4 {v(D+4*m,4)}, v{vS[m]}, s[{rWS}:{rWS+3}], s4 offen sc1")
    E("s_mov_b64 exec, -1")
    nld = G.nonce_load(E, vNon)
    G.nonce_get(E, nld, vNon)
    E.wait_vm()
    E("s_barrier")
    put_flag(E, G, sW, vNon, 7)
    E("s_endpgm")

def gen_A(E, G):
    f32, Alloc, srd, spin, newlabel = G.f32, G.Alloc, G.srd, G.spin, G.newlabel
    rWS, rOUT, rDBG, rIN, rW, rPHI = G.rWS, G.rOUT, G.rDBG, G.rIN, G.rW, G.rPHI
    sN = G.sN
    G.fresh(E)
    ST = G.Stamps(24)
    sW, sR, sP, sPQ, sTBo, sCT, sROT = 76, 77, 78, 79, 80, 81, 82
    sT0, sT1, sT2 = 4, 5, 6
    sWO, sXO, sWE, sXE = 84, 85, 86, 87
    sW4, sXR, sH, sFT = 88, 89, 90, 91
    sPS, sOS, sFO, sPL, sOL, sWL, sFC, sOUT, sFP, sF1, sF2 = 96, 97, 98, 99, 100, 101, 45, 46, 92, 47, 3
    XR = 49152
    TAB = 36864; ZTAB = TAB + 3200; KVT = 45056; ZKV = ZTAB
    def wslot(sig): return 16384 * ((sig + 1) % 3)
    E(f"s_setprio {G.APRIO}")
    A = Alloc(1, 256)
    vL = A(); vHH = A(); vL16 = A()
    ACC = A(64, 4)
    WF = A(32, 4)
    XF = A(32, 4)
    PF = A(48, 4)
    TM = A(36, 4)
    ID = A(4, 4)
    vXo = [A() for _ in range(4)]
    vWo = [A() for _ in range(4)]
    vWt = [A() for _ in range(4)]
    vXrs = [A() for _ in range(4)]
    MP = A(); vMn = A(); vNon = A()
    vPk = A(); vVw = A(); vA = A(); vB = A(); vS1 = A(); vS2 = A(); vPi = A(); vKa = A(); vO1 = A(); vO3 = A(); vC4 = A()
    vRw = A(); vSo = [A() for _ in range(3)]
    vFl = A(); vFc = A()
    vt = [TM + 20 + i for i in range(12)]
    vG, vC, vGam, vR4 = vt[8], vt[9], vt[10], vt[11]
    E(f"v_and_b32 v{vL}, 63, v0")
    E(f"v_lshrrev_b32 v{vt[0]}, 6, v0")
    E(f"v_lshrrev_b32 v{vG}, 4, v{vL}")
    E(f"v_readfirstlane_b32 s{sW}, v{vt[0]}")
    sV, sX, sCL = 7, 8, 11
    E(f"s_getreg_b32 s{sX}, hwreg(HW_REG_XCC_ID)")
    E(f"s_lshr_b32 s{sT0}, s2, 3")
    E(f"s_xor_b32 s{sROT}, s{sT0}, s2")
    E(f"s_and_b32 s{sROT}, s{sROT}, 7")
    E(f"s_lshr_b32 s{sT0}, s2, 6")
    E(f"s_mul_i32 s{sT0}, s{sT0}, 3")
    E(f"s_add_u32 s{sROT}, s{sROT}, s{sT0}")
    E(f"s_sub_u32 s{sT0}, s{sROT}, 10")
    E(f"s_cmp_ge_u32 s{sROT}, 10")
    E(f"s_cselect_b32 s{sROT}, s{sT0}, s{sROT}")
    E(f"s_and_b32 s{sX}, s{sX}, {0 if '--die0' in sys.argv else 7}")
    E(f"s_lshl_b32 s{sW4}, s{sW}, 12")
    vWb = [ACC + m for m in range(4)]; vMk = [ACC + 4 + m for m in range(4)]
    for m in range(4):
        if m: E(f"v_add_u32 v{vt[0]}, {64*m}, v{vL}")
        ci = vt[0] if m else vL
        if m == 3: E(f"v_min_u32 v{vt[0]}, 239, v{vt[0]}")
        E(f"v_mul_u32_u24 v{vt[1]}, 0x1112, v{ci}")
        E(f"v_lshrrev_b32 v{vt[1]}, 16, v{vt[1]}")
        E(f"v_mul_u32_u24 v{vt[2]}, 15, v{vt[1]}")
        E(f"v_sub_u32 v{vt[2]}, v{ci}, v{vt[2]}")
        E(f"v_and_b32 v{vt[3]}, 3, v{vt[1]}")
        E(f"v_lshrrev_b32 v{vt[1]}, 2, v{vt[1]}")
        E(f"v_lshl_add_u32 v{vt[1]}, v{vt[3]}, 2, v{vt[1]}")
        E(f"v_mul_u32_u24 v{vt[3]}, 52, v{vt[2]}")
        E(f"v_lshrrev_b32 v{vt[3]}, 8, v{vt[3]}")
        E(f"v_mul_u32_u24 v{vt[1]}, 3840, v{vt[1]}")
        E(f"v_lshl_add_u32 v{vt[1]}, v{vt[2]}, 4, v{vt[1]}")
        E(f"v_min_u32 v{vMk[m]}, 1, v{vt[3]}")
        E(f"v_mul_u32_u24 v{vt[3]}, 1200, v{vt[3]}")
        E(f"v_add3_u32 v{vWb[m]}, v{vt[1]}, v{vt[3]}, s{sT0}".replace(f"s{sT0}", "0") if False else f"v_add_u32 v{vt[1]}, v{vt[1]}, v{vt[3]}")
        E(f"v_add_u32 v{vWb[m]}, {3072 - 1024*m}, v{vt[1]}")
    E.wait_lg()
    ST(E, "start")
    E(f"s_lshr_b32 s{sCL}, s2, 6")
    skip = newlabel("notick")
    E(f"s_lshl_b32 s12, s{sX}, 2")
    E(f"s_add_u32 s12, s12, s{sCL}")
    E(f"s_lshl_b32 s12, s12, 3")
    E(f"s_mov_b32 s{sV}, 1")
    E(f"s_cmp_lg_u32 s{sW}, 0")
    E(f"s_cbranch_scc1 {skip}")
    E.raw(f"    s_atomic_add s{sV}, s[{G.pDBG}:{G.pDBG+1}], s12 glc")
    E.label(skip)
    E(f"s_sub_u32 s{G.pW}, s{G.pW}, 3072")
    E(f"s_subb_u32 s{G.pW+1}, s{G.pW+1}, 0")
    srd(E, rW, G.pW, 2457600 + 3072)
    def dmaW(sig):
        L = []
        for m in range(4):
            g = []
            if m == 0: g.append(f"s_add_u32 m0, s{sW4}, {wslot(sig)}")
            g.append(("tag", f"buffer_load_dwordx4 v{vWo[m]}, s[{rW}:{rW+3}], s{sWO} offen offset:{1024*m} lds", f"S{sig}"))
            if m == 3: g += [f"s_add_u32 s{sWO}, s{sWO}, {64*3840}", f"s_cmp_ge_u32 s{sWO}, s{sWE}", f"s_cselect_b32 s9, {640*3840}, 0", f"s_sub_u32 s{sWO}, s{sWO}, s9"]
            L.append(("group", g))
        return L
    def dmaX(sig):
        L = []
        for i in range(4):
            g = []
            if i == 0: g.append(f"s_add_u32 m0, s{sXR}, {4096*(sig%2)}")
            g.append(("tag", f"buffer_load_dwordx4 v{vXo[i]}, s[{rIN}:{rIN+3}], s{sXO} offen offset:{1024*i} lds", f"S{sig}"))
            if i == 3: g += [f"s_add_u32 s{sXO}, s{sXO}, 128", f"s_cmp_ge_u32 s{sXO}, s{sXE}", f"s_cselect_b32 s9, 1280, 0", f"s_sub_u32 s{sXO}, s{sXO}, s9"]
            L.append(("group", g))
        return L
    def start_w():
        L = [f"s_lshr_b32 s{sT0}, s{sX}, 1", f"s_lshr_b32 s{sT1}, s{sCL}, 1", f"s_xor_b32 s{sT1}, s{sT1}, s{sT0}", f"s_and_b32 s{sT1}, s{sT1}, 1",
             f"s_lshl_b32 s{sP}, s{sT0}, 2", f"s_add_u32 s{sP}, s{sP}, s{sT1}", f"s_and_b32 s{sT0}, s{sCL}, 1", f"s_lshl_b32 s{sT0}, s{sT0}, 1", f"s_add_u32 s{sP}, s{sP}, s{sT0}",
             f"s_xor_b32 s{sPQ}, s{sP}, 1", f"s_mul_i32 s{sT1}, s{sT1}, 160", f"s_sub_u32 s{sT1}, s{sT1}, 80",
             f"s_mul_i32 s{sT0}, s{sPQ}, 80", f"s_mul_i32 s{sWE}, s{sW}, {16*3840}", f"s_add_u32 s{sWE}, s{sWE}, s{sT0}",
             f"s_mul_i32 s{sWO}, s{sROT}, {64*3840}", f"s_add_u32 s{sWO}, s{sWO}, s{sWE}", f"s_add_u32 s{sWE}, s{sWE}, {640*3840}"]
        L += [f"v_mad_i32_i24 v{vWo[m]}, v{vMk[m]}, s{sT1}, v{vWb[m]}" for m in range(4)]
        return L + dmaW(0) + dmaW(1)
    E(start_w())
    srd(E, rIN, G.pX, 2621440)
    E(f"v_lshrrev_b32 v{vt[0]}, 3, v{vL}")
    E(f"v_and_b32 v{vt[1]}, 7, v{vL}")
    E(f"v_xor_b32 v{vt[1]}, v{vt[1]}, v{vG}")
    E(f"v_mul_u32_u24 v{vt[0]}, 1280, v{vt[0]}")
    E(f"v_lshl_add_u32 v{vXo[0]}, v{vt[1]}, 4, v{vt[0]}")
    E(f"v_xor_b32 v{vXo[1]}, 64, v{vXo[0]}")
    E(f"v_add_u32 v{vXo[2]}, {2*(8*1280-1024)}, v{vXo[0]}")
    E(f"v_add_u32 v{vXo[3]}, {3*(8*1280-1024)}, v{vXo[1]}")
    E(f"v_add_u32 v{vXo[1]}, {1*(8*1280-1024)}, v{vXo[1]}")
    E(f"s_lshl_b32 s{sXR}, s{sW}, 13")
    E(f"s_add_u32 s{sXR}, s{sXR}, {XR}")
    skip = newlabel("notick"); again = newlabel("again"); got = newlabel("got"); same = newlabel("same")
    E(f"s_cmp_lg_u32 s{sW}, 0")
    E(f"s_cbranch_scc1 {skip}")
    E.raw("    s_mov_b32 s13, 0")
    E.label(again)
    for t in ["s_waitcnt lgkmcnt(0)", f"s_cmp_lt_u32 s{sV}, 8", f"s_cbranch_scc1 {got}",
              "s_add_u32 s13, s13, 1", "s_cmp_gt_u32 s13, 7", f"s_cbranch_scc1 {got}",
              "s_add_u32 s12, s12, 32", "s_and_b32 s12, s12, 255", f"s_mov_b32 s{sV}, 1",
              f"s_atomic_add s{sV}, s[{G.pDBG}:{G.pDBG+1}], s12 glc", f"s_branch {again}"]:
        E.raw("    " + t)
    E.label(got)
    for t in [f"s_and_b32 s{sV}, s{sV}, 7", f"s_and_b32 s12, s12, 0xe0", f"s_add_u32 s{sV}, s{sV}, s12", f"v_mov_b32 v{vt[0]}, s{sV}", f"v_and_b32 v{vt[1]}, 3, v{vL}",
              f"v_lshlrev_b32 v{vt[1]}, 13, v{vt[1]}", f"ds_write_b32 v{vt[1]}, v{vt[0]} offset:{XR}", "s_waitcnt lgkmcnt(0)"]:
        E.raw("    " + t)
    E.label(skip)
    E(f"v_mov_b32 v{vt[1]}, s{sXR}")
    E("s_barrier")
    E(f"ds_read_b32 v{vt[0]}, v{vt[1]}")
    E(f"v_readfirstlane_b32 s{sV}, v{vt[0]}")
    E(f"s_lshr_b32 s{sT0}, s{sV}, 5")
    E(f"s_and_b32 s{sCT}, s{sV}, 7")
    E(f"s_cmp_eq_u32 s{sT0}, s{sX}")
    E(f"s_cbranch_scc1 {same}")
    import copy
    saved = copy.deepcopy((E.vmq, E.lgq))
    E(f"s_mov_b32 s{sX}, s{sT0}")
    E.wait_vm()
    E(start_w())
    E.vmq, E.lgq = saved
    E.label(same)
    ST(E, "tile")
    E(f"s_and_b32 s{sR}, s{sX}, 1")
    E(f"s_lshl_b32 s{sR}, s{sR}, 3")
    E(f"s_add_u32 s{sR}, s{sR}, s{sCT}")
    E(f"s_lshl_b32 s{sXE}, s{sR}, 2")
    E(f"s_add_u32 s{sXE}, s{sXE}, s{sW}")
    E(f"s_mul_i32 s{sXE}, s{sXE}, {32*1280}")
    E(f"s_lshl_b32 s{sXO}, s{sROT}, 7")
    E(f"s_add_u32 s{sXO}, s{sXO}, s{sXE}")
    E(f"s_add_u32 s{sXE}, s{sXE}, 1280")
    E(dmaX(0)); E(dmaX(1))
    E(f"s_lshl_b32 s{sTBo}, s{sX}, 2")
    E(f"s_add_u32 s{sTBo}, s{sTBo}, s{sCL}")
    srd(E, rPHI, G.pPHI, 25600)
    vPhi = TM + 18
    E(f"v_lshlrev_b32 v{vPhi}, 4, v0")
    E(f"v_cmp_gt_u32 vcc, 200, v0")
    E(f"v_mov_b32 v{vPhi+1}, 0x100000")
    E(f"s_lshr_b32 s{sT0}, s{sP}, 1")
    E(f"s_mul_i32 s{sT0}, s{sT0}, 3200")
    E(f"v_cndmask_b32 v{vPhi+1}, v{vPhi+1}, v{vPhi}, vcc")
    E(f"buffer_load_dwordx4 {v(TM,4)}, v{vPhi+1}, s[{rPHI}:{rPHI+3}], s{sT0} offen")
    srd(E, rWS, G.pWS, G.WS_SIZE)
    PN = TM + 32
    for i in range(4): E(f"v_mov_b32 v{PN+i}, -1")
    E(f"v_lshlrev_b32 v{vL16}, 4, v{vL}")
    E(f"s_lshl_b32 s{sPL}, s{sPQ}, 16")
    E(f"s_add_u32 s{sPL}, s{sPL}, {G.P_BASE}")
    E(f"s_lshl_b32 s{sPS}, s{sP}, 4")
    E(f"s_add_u32 s{sPS}, s{sPS}, s{sR}")
    E(f"s_lshl_b32 s{sPS}, s{sPS}, 12")
    E(f"s_add_u32 s{sPS}, s{sPS}, {G.P_BASE}")
    E(f"s_lshl_b32 s{sT0}, s{sW}, 10")
    E(f"s_add_u32 s95, s{sT0}, s{sPS}")
    srd(E, rDBG, G.pDBG, 256)
    srd(E, rOUT, G.pOUT, 5242880)
    E(f"v_and_b32 v{vC}, 15, v{vL}")
    E(f"v_bfe_u32 v{vGam}, v{vL}, 4, 1")
    E(f"v_bfe_u32 v{vt[0]}, v{vL}, 1, 1")
    E(f"v_lshl_add_u32 v{vGam}, v{vGam}, 1, v{vt[0]}")
    E(f"v_bfe_u32 v{vR4}, v{vL}, 2, 2")
    E(f"v_lshrrev_b32 v{vHH}, 5, v{vL}")
    E(f"v_lshlrev_b32 v{vt[0]}, 3, v{vGam}")
    E(f"v_and_b32 v{vt[1]}, 1, v{vL}")
    E(f"v_mul_u32_u24 v{vt[1]}, 5, v{vt[1]}")
    E(f"v_lshl_add_u32 v{vt[2]}, v{vR4}, 1, v{vHH}")
    E(f"v_mul_u32_u24 v{vt[2]}, 480, v{vt[2]}")
    for T in range(4):
        pk = sum((30 if e is None else 10 * e[0] + e[1]) << (8 * i) for i, e in enumerate(TA[T]))
        E(f"s_mov_b32 s9, {pk}")
        E(f"v_bfe_u32 v{vt[3]}, s9, v{vt[0]}, 8")
        E(f"v_add_u32 v{vt[3]}, v{vt[3]}, v{vt[1]}")
        E(f"v_min_u32 v{vt[3]}, 31, v{vt[3]}")
        E(f"v_lshl_add_u32 v{vWt[T]}, v{vt[3]}, 3, v{vt[2]}")
    E(f"v_and_b32 v{vt[0]}, 31, v{vL}")
    E(f"v_bfe_u32 v{vt[1]}, v{vL}, 1, 3")
    E(f"v_xor_b32 v{vt[1]}, v{vt[1]}, v{vHH}")
    E(f"v_lshlrev_b32 v{vt[0]}, 7, v{vt[0]}")
    E(f"v_lshl_add_u32 v{vt[0]}, v{vt[1]}, 4, v{vt[0]}")
    for j in range(4):
        E(f"v_xor_b32 v{vXrs[j]}, {32*j}, v{vt[0]}")
        E(f"v_add_u32 v{vXrs[j]}, s{sXR}, v{vXrs[j]}")
    E(f"s_and_b32 s{sH}, s{sW}, 1")
    E(f"s_lshr_b32 s{sFT}, s{sW}, 1")
    E(f"s_mov_b32 s94, {f32(math.log2(math.e))}")
    vPa = [TM + 16, TM + 17]
    E(f"v_mul_u32_u24 v{vt[0]}, 800, v{vHH}")
    E(f"v_mul_u32_u24 v{vt[1]}, 40, v{vR4}")
    E(f"v_lshl_add_u32 v{vt[1]}, v{vGam}, 3, v{vt[1]}")
    E(f"v_and_b32 v{vt[2]}, 1, v{vL}")
    E(f"v_cmp_eq_u32 vcc, v{vt[2]}, v{vHH}")
    for i, sp in enumerate((sP, sPQ)):
        E(f"s_and_b32 s{sT0}, s{sp}, 1")
        E(f"s_mul_i32 s{sT0}, s{sT0}, 1600")
        E(f"v_add3_u32 v{vt[3]}, v{vt[0]}, v{vt[1]}, s{sT0}")
        E(f"v_mov_b32 v{vPa[i]}, 3200")
        E(f"v_cndmask_b32 v{vPa[i]}, v{vPa[i]}, v{vt[3]}, vcc")
    E(f"v_lshlrev_b32 v{vPhi+1}, 2, v0")
    E(f"v_mov_b32 v{TM+4}, 0")
    for i in range(2):
        for t in range(2):
            E(f"v_mov_b32 v{PF+24*i+16+4*t+2}, 0"); E(f"v_mov_b32 v{PF+24*i+16+4*t+3}, 0")
    E(f"v_mul_u32_u24 v{vPk}, 80, v{vL}")
    E(f"v_add_u32 v{vPk}, s{sXR}, v{vPk}")
    E(f"v_mul_u32_u24 v{vVw}, 48, v{vL}")
    E(f"v_add_u32 v{vVw}, s{sXR}, v{vVw}")
    E(f"v_lshl_add_u32 v{vt[0]}, v{vHH}, 3, v{vR4}")
    E(f"v_bfe_u32 v{vt[1]}, v{vL}, 4, 1")
    E(f"v_lshlrev_b32 v{vt[1]}, 2, v{vt[1]}")
    E(f"v_and_b32 v{vt[2]}, 1, v{vL}")
    E(f"v_lshl_add_u32 v{vt[2]}, v{vt[2]}, 1, v{vt[1]}")
    E(f"v_bfe_u32 v{vt[3]}, v{vL}, 1, 1")
    E(f"v_add_u32 v{vt[2]}, v{vt[2]}, v{vt[3]}")
    E(f"v_mul_u32_u24 v{vA}, 80, v{vt[0]}")
    E(f"v_lshl_add_u32 v{vA}, v{vt[2]}, 3, v{vA}")
    E(f"s_mul_i32 s{sT0}, s{sH}, 2560")
    E(f"s_lshl_b32 s{sT1}, s{sFT}, 6")
    E(f"s_add_u32 s{sT0}, s{sT0}, s{sT1}")
    E(f"s_add_u32 s{sT0}, s{sT0}, {XR}")
    E(f"v_add_u32 v{vA}, s{sT0}, v{vA}")
    E(f"v_and_b32 v{vt[2]}, 3, v{vL}")
    E(f"v_add_u32 v{vt[2]}, v{vt[2]}, v{vt[1]}")
    E(f"v_mul_u32_u24 v{vB}, 48, v{vt[0]}")
    E(f"v_lshl_add_u32 v{vB}, v{vt[2]}, 3, v{vB}")
    E(f"s_mul_i32 s{sT0}, s{sH}, 1536")
    E(f"s_add_u32 s{sT0}, s{sT0}, {XR+5120}")
    E(f"v_add_u32 v{vB}, s{sT0}, v{vB}")
    E(f"v_and_b32 v{vt[0]}, 31, v{vL}")
    E(f"s_lshl_b32 s{sT0}, s{sH}, 4")
    E(f"v_add_u32 v{vt[1]}, s{sT0}, v{vt[0]}")
    E(f"v_subrev_u32 v{vt[2]}, 20, v{vt[1]}")
    E(f"v_min_u32 v{vt[1]}, v{vt[1]}, v{vt[2]}")
    E(f"v_cmp_gt_u32 vcc, 20, v{vt[0]}")
    E(f"v_mov_b32 v{vt[3]}, 0x4000000")
    E(f"v_cndmask_b32 v{vt[1]}, v{vt[0]}, v{vt[1]}, vcc")
    E(f"v_lshlrev_b32 v{vt[1]}, 4, v{vt[1]}")
    E(f"v_cmp_gt_u32 vcc, 24, v{vt[0]}")
    E(f"s_cmp_eq_u32 s{sFT}, 0")
    E(f"s_mov_b32 s9, 0x4000000")
    E(f"s_cselect_b32 s{sT0}, 384, s9")
    E(f"s_cselect_b32 s{sT1}, 768, s9")
    E(f"v_cndmask_b32 v{vt[1]}, v{vt[3]}, v{vt[1]}, vcc")
    E(f"v_mul_lo_u32 v{vS1}, v{vHH}, s{sT0}")
    E(f"v_add_u32 v{vS1}, v{vS1}, v{vt[1]}")
    E(f"v_add_u32 v{vS2}, s{sT1}, v{vS1}")
    E(f"s_mul_i32 s{sT0}, s{sH}, 1920")
    E(f"s_mul_i32 s{sT1}, s{sFT}, 1536")
    E(f"s_add_u32 s{sPS}, s{sPS}, s{sT0}")
    E(f"s_add_u32 s{sPS}, s{sPS}, s{sT1}")
    E(f"v_min_u32 v{vPi}, 239, v0")
    E(f"v_lshlrev_b32 v{vPi}, 4, v{vPi}")
    E(f"v_bfe_u32 v{vt[0]}, v{vL}, 3, 2")
    E(f"v_and_b32 v{vt[1]}, 3, v{vL}")
    E(f"v_lshl_add_u32 v{vt[0]}, v{vt[0]}, 2, v{vt[1]}")
    E(f"v_mul_u32_u24 v{vt[1]}, 1920, v{vHH}")
    E(f"v_lshl_add_u32 v{vt[2]}, v{vt[0]}, 4, v{vt[1]}")
    E(f"v_add_u32 v{vt[2]}, {KVT}, v{vt[2]}")
    E(f"v_bfe_u32 v{vt[1]}, v{vL}, 2, 1")
    E(f"v_cmp_eq_u32 vcc, v{vt[1]}, v{vHH}")
    E(f"v_mov_b32 v{vKa}, {ZKV}")
    E(f"v_cndmask_b32 v{vKa}, v{vKa}, v{vt[2]}, vcc")
    E(f"v_cndmask_b32 v{vt[0]}, 64, v{vt[0]}, vcc")
    E(f"v_and_b32 v{vt[1]}, 1, v{vt[0]}")
    E(f"v_lshlrev_b32 v{vt[1]}, 4, v{vt[1]}")
    E(f"v_mov_b32 v{vt[2]}, 0x3f80")
    E(f"v_lshlrev_b32 v{vt[1]}, v{vt[1]}, v{vt[2]}")
    E(f"v_lshrrev_b32 v{vt[0]}, 1, v{vt[0]}")
    for i in range(4):
        E(f"v_cmp_eq_u32 vcc, {i}, v{vt[0]}")
        E(f"v_cndmask_b32 v{ID+i}, 0, v{vt[1]}, vcc")
    E(f"v_and_b32 v{vt[1]}, 1, v{vG}")
    E(f"v_mul_u32_u24 v{vt[1]}, 20480, v{vt[1]}")
    E(f"v_lshl_add_u32 v{vt[1]}, v{vC}, 4, v{vt[1]}")
    E(f"v_mul_u32_u24 v{vO1}, 768, v{vHH}")
    E(f"v_add_u32 v{vO1}, v{vO1}, v{vt[1]}")
    E(f"v_lshl_add_u32 v{vO3}, v{vHH}, 26, v{vt[1]}")
    E(f"s_lshl_b32 s{sT0}, s{sR}, 2")
    E(f"s_add_u32 s{sT0}, s{sT0}, s{sW}")
    E(f"s_mul_i32 s{sT0}, s{sT0}, 40960")
    E(f"s_mul_i32 s{sT1}, s{sPQ}, 1280")
    E(f"s_add_u32 s{sT0}, s{sT0}, s{sT1}")
    E(f"s_add_u32 s{sOS}, s{sT0}, {G.O_BASE}")
    E(f"v_lshlrev_b32 v{vC4}, 2, v{vC}")
    E(f"s_lshl_b32 s{sFO}, s{sTBo}, 3")
    E(f"s_add_u32 s{sFO}, s{sFO}, s{sCT}")
    E(f"s_lshl_b32 s{sFO}, s{sFO}, 2")
    E(f"s_add_u32 s{sFO}, s{sFO}, s{sW}")
    E(f"s_lshl_b32 s{sFO}, s{sFO}, 7")
    E(f"s_add_u32 s{sFO}, s{sFO}, {G.FLAGO_BASE}")
    E(f"s_mul_i32 s{sOL}, s{sTBo}, 81920")
    E(f"s_mul_i32 s{sT0}, s{sW}, 5120")
    E(f"s_add_u32 s{sOL}, s{sOL}, s{sT0}")
    E(f"s_add_u32 s{sOL}, s{sOL}, {G.O_BASE}")
    E(f"s_lshl_b32 s{sWL}, s{sCT}, 2")
    E(f"s_add_u32 s{sWL}, s{sWL}, s{sW}")
    E(f"s_mul_i32 s{sWL}, s{sWL}, 25600")
    E(f"s_add_u32 s{sWL}, s{sWL}, {G.PWO_BASE}")
    E(f"v_mul_u32_u24 v{vRw}, 160, v{vC}")
    E(f"v_mul_u32_u24 v{vt[1]}, 40, v{vG}")
    E(f"s_mul_i32 s93, s{sW}, 2560")
    E(f"s_add_u32 s{sT0}, s93, 30720")
    E(f"v_add3_u32 v{vRw}, v{vRw}, v{vt[1]}, s{sT0}")
    for m in range(3):
        E(f"v_add_u32 v{vt[0]}, {64*m}, v{vL}")
        E(div_const(vt[1], vt[0], 10))
        E(f"v_mul_u32_u24 v{vt[1]}, 2400, v{vt[1]}")
        E(f"v_lshl_add_u32 v{vSo[m]}, v{vt[0]}, 4, v{vt[1]}")
    E(f"s_add_u32 s22, s{sW}, s{sCT}")
    E(f"s_and_b32 s22, s22, 3")
    E(f"s_lshl_b32 s{sOUT}, s{sTBo}, 2")
    E(f"s_add_u32 s{sOUT}, s{sOUT}, s22")
    E(f"s_mul_i32 s{sOUT}, s{sOUT}, {16*2560}")
    E(f"s_mul_i32 s{sT1}, s{sCT}, 160")
    E(f"s_add_u32 s{sOUT}, s{sOUT}, s{sT1}")
    E(f"s_lshl_b32 s{sF1}, s{sP}, 13")
    E(G.word_off(sF1, sR, 2, sT1))
    E(f"s_add_u32 s{sF1}, s{sF1}, {G.FLAGW_BASE}")
    E(f"s_lshl_b32 s{sFP}, s{sPQ}, 4")
    E(f"s_add_u32 s{sFP}, s{sFP}, s{sR}")
    E(f"s_lshl_b32 s{sFP}, s{sFP}, 9")
    E(f"s_add_u32 s{sFP}, s{sFP}, {G.FLAGW_BASE}")
    E(f"s_lshl_b32 s{sF2}, s{sR}, 1")
    E(f"s_add_u32 s{sF2}, s{sF2}, s{sFT}")
    E(f"s_lshl_b32 s{sF2}, s{sF2}, 12")
    E(G.word_off(sF2, sPQ, 2, sT1))
    E(f"s_add_u32 s{sF2}, s{sF2}, {G.FLAGO_BASE}")
    E(f"s_lshl_b32 s{sT1}, s{sW}, 7")
    E(f"s_add_u32 s{sFP}, s{sT1}, s{sFP}")
    for sa in (sFP, sFO): E(f"s_buffer_load_dword s23, s[{rWS}:{rWS+3}], s{sa} glc")
    vCo = TM + 15
    E(f"s_mul_i32 s{sT0}, s{sW}, 20")
    E(f"v_min_u32 v{vt[0]}, 19, v{vL}")
    E(f"v_add_u32 v{vt[0]}, s{sT0}, v{vt[0]}")
    E(f"v_lshrrev_b32 v{vt[1]}, 3, v{vt[0]}")
    E(f"v_and_b32 v{vt[0]}, 7, v{vt[0]}")
    E(f"v_lshlrev_b32 v{vt[0]}, 2, v{vt[0]}")
    E(f"v_lshl_add_u32 v{vCo}, v{vt[1]}, 7, v{vt[0]}")
    E(f"s_mov_b32 s{sFC}, {G.FLAGC_BASE}")
    sWk = [16, 17, 18, 19, 20]; sKo = [40, 41, 42, 43, 44]
    E(f"s_and_b32 s{sT0}, s{sTBo}, 3")
    for k in range(5):
        E(f"s_lshl_b32 s{sKo[k]}, s{sT0}, 10")
        E(f"s_mul_i32 s{sWk[k]}, s{sT0}, 5120")
        E(f"s_add_u32 s{sWk[k]}, s{sWk[k]}, s{sWL}")
        if k < 4:
            E(f"s_add_u32 s{sT0}, s{sT0}, 1")
            E(f"s_cmp_eq_u32 s{sT0}, 5")
            E(f"s_cselect_b32 s{sT0}, 0, s{sT0}")

    def rdW(sig, ks):
        b = WF + 16 * (ks % 2)
        return [f"ds_read_b64_tr_b16 {v(b+4*T+2*a,2)}, v{vWt[T]} offset:{wslot(sig) + 4096*ks + 240*a}" for T in range(4) for a in range(2)]
    def rdX(sig):
        return [f"ds_read_b128 {v(XF+16*(sig%2)+4*j,4)}, v{vXrs[j]} offset:{4096*(sig%2)}" for j in range(4)]
    def mm(sig, ks):
        L = []
        for T in range(4):
            d = v(ACC + 16 * T, 16)
            if "--nomfma" in sys.argv:
                L.append(f"v_mov_b32 v{ACC+T}, v{WF+16*(ks%2)+4*T+3}"); continue
            if "--m16" in sys.argv:
                L.append(("group", [f"{M16} {v(ACC+16*T+4*(2*(ks%2)+e),4)}, {v(WF+16*(ks%2)+4*T,4)}, {v(XF+16*(sig%2)+4*((ks+e)%4),4)}, {v(ACC+16*T+4*(2*(ks%2)+e),4)}" for e in range(2)])); continue
            L.append(f"{M32} {d}, {v(WF+16*(ks%2)+4*T,4)}, {v(XF+16*(sig%2)+4*ks,4)}, {d if (sig or ks) else 0}")
        return L
    def weave(M, rd, vm):
        out = []
        n = (len(rd) + 2) // 3
        for i, x in enumerate(M):
            out.append(x)
            if i < 3: out += rd[n * i:n * (i + 1)]
            if i == 1 and len(vm) > 0: out.append(vm[0])
            if i == 3 and len(vm) > 1: out += vm[1:]
        return out
    wphi = [f"ds_write_b128 v{vPhi}, {v(TM,4)} offset:{TAB}", f"ds_write_b32 v{vPhi+1}, v{TM+4} offset:{TAB+4096}"]
    rphi = []
    for i in range(2):
        for c in range(3):
            for t in range(2):
                b = PF + 24 * i + 8 * c + 4 * t
                rphi.append(f"ds_read_b64_tr_b16 {v(b,2)}, v{vPa[i]} offset:{TAB + 320*c + 32*t}")
                if c < 2: rphi.append(f"ds_read_b64_tr_b16 {v(b+2,2)}, v{vPa[i]} offset:{TAB + 320*c + 160 + 32*t}")
    nld = f"buffer_load_dword v{vNon}, off, s[{rDBG}:{rDBG+3}], 0 offset:4 sc1"
    cld = f"buffer_load_dword v{vFc}, v{vCo}, s[{rWS}:{rWS+3}], s{sFC} offen sc1"
    opois = [f"buffer_store_dwordx4 {v(PN,4)}, v{vO1}, s[{rWS}:{rWS+3}], s{sOS} offen sc1",
             f"buffer_store_dwordx4 {v(PN,4)}, v{vO1}, s[{rWS}:{rWS+3}], s{sOS} offen offset:256 sc1",
             f"buffer_store_dwordx4 {v(PN,4)}, v{vO3}, s[{rWS}:{rWS+3}], s{sOS} offen offset:512 sc1"]
    allpois = [f"buffer_store_dwordx4 {v(PN,4)}, v{vL16}, s[{rWS}:{rWS+3}], s95 offen sc1"] + opois[:2] + [("tag", opois[2], "pois")]
    if "--earlypois" in sys.argv: E(allpois)
    E.wait_vm("S0")
    E("s_barrier")
    E(rdX(0)); E(rdW(0, 0))
    w2 = dmaW(2)
    E(w2[:2])
    pendW = w2[2:]
    for sig in range(10):
        xn = dmaX(sig + 2) if sig + 2 < 10 else []
        extra = [[], [], []]
        if sig == 8:
            extra = [wphi, [], []]
            pendW = [("tag", nld, "nonce"), ("tag", cld, "cfl")]
            if "--earlypois" not in sys.argv: xn = allpois
        if sig == 9:
            extra = [rphi[:7], rphi[7:14], rphi[14:]]
        E(weave(mm(sig, 0), rdW(sig, 1) + extra[0], pendW))
        E(weave(mm(sig, 1), rdW(sig, 2) + extra[1], xn[:2]))
        E(weave(mm(sig, 2), rdW(sig, 3) + extra[2], xn[2:]))
        if sig < 9:
            E.wait_vm(f"S{sig+1}")
            E.wait_lg()
            E("s_barrier")
            wn = dmaW(sig + 3) if sig + 3 < 10 else []
            E(weave(mm(sig, 3), rdX(sig + 1)[:1] + rdW(sig + 1, 0) + rdX(sig + 1)[1:], wn[:2]))
            pendW = wn[2:]
        else:
            E(mm(sig, 3))
    ST(E, "gemm")
    if "--gemmonly" in sys.argv:
        ST.dump(E, sW, ACC)
        E("s_endpgm")
        return ST

    def acc(sec, j):
        for T in range(4):
            for g_, e in enumerate(TA[T]):
                if e == (sec, j): return ACC + 16 * T + 4 * g_
    QB = XF
    PD = WF
    EE = TM
    def pack(sec, dst):
        return [f"v_cvt_pk_bf16_f32 v{dst+2*j+e}, v{acc(sec,j)+2*e}, v{acc(sec,j)+2*e+1}" for j in range(5) for e in range(2)]
    def premm(qb, i):
        L = []
        for c in range(3):
            for t in range(2):
                d = v(PD + 16 * t, 16)
                L.append(f"{M32} {d}, {v(PF+24*i+8*c+4*t,4)}, {v(qb+4*c,4)}, {d if c else 0}")
        return L
    def softmax(out_plus, out_minus, after_plus):
        PP = PD
        mx, mn, m = MP, vMn, MP
        L = [f"v_max3_f32 v{mx}, v{PP}, v{PP+1}, v{PP+2}", f"v_min3_f32 v{mn}, v{PP}, v{PP+1}, v{PP+2}"]
        for i in range(3, 19, 2):
            L += [f"v_max3_f32 v{mx}, v{mx}, v{PP+i}, v{PP+i+1}", f"v_min3_f32 v{mn}, v{mn}, v{PP+i}, v{PP+i+1}"]
        L += [f"v_max_f32 v{mx}, v{mx}, v{PP+19}", f"v_min_f32 v{mn}, v{mn}, v{PP+19}"]
        for sgn, dst, src, outp in ((1, EE, mx, out_plus), (-1, PP, mn, out_minus)):
            L.append(f"v_mul_f32 v{m}, s94, v{src}")
            for i in range(20):
                L.append(f"v_fma_f32 v{dst+i}, v{PP+i}, s94, -v{m}" if sgn > 0 else f"v_fma_f32 v{dst+i}, -v{PP+i}, s94, v{m}")
            for i in range(20):
                L.append(f"v_exp_f32 v{dst+i}, v{dst+i}")
                if i == 2: L.append(f"v_add_f32 v{m}, v{dst}, v{dst+1}")
                if i > 2: L.append(f"v_add_f32 v{m}, v{m}, v{dst+i-1}")
            L += [f"v_add_f32 v{m}, v{m}, v{dst+19}", f"v_rcp_f32 v{m}, v{m}"]
            for i in range(10):
                L.append(f"v_mul_f32 v{dst+2*i}, v{m}, v{dst+2*i}")
                L.append(f"v_mul_f32 v{dst+2*i+1}, v{m}, v{dst+2*i+1}")
                L.append(f"v_cvt_pk_bf16_f32 v{outp+i}, v{dst+2*i}, v{dst+2*i+1}")
            if sgn > 0: L += after_plus
        return L
    E(f"v_mov_b32 v{QB+10}, 0"); E(f"v_mov_b32 v{QB+11}, 0")
    E(pack(1, QB))
    VP = XF + 12
    QB2 = TM + 20
    side = pack(2, VP) + [f"v_mov_b32 v{VP+10}, 0x3f80", f"v_mov_b32 v{VP+11}, 0"] + \
           [f"ds_write_b128 v{vVw}, {v(VP+4*i,4)} offset:{5120+16*i}" for i in range(3)] + \
           pack(0, QB2) + [f"v_mov_b32 v{QB2+10}, 0", f"v_mov_b32 v{QB2+11}, 0"]
    E(merge(premm(QB, 0), side[:15])); E(side[15:])
    G.nonce_get(E, nld, vNon)
    spin(E, ["s_sleep 2", cld], [f"v_cmp_ne_u32 vcc, s{sN}, v{vFc}"], "cfl")
    WOr = [ACC + 4 * i for i in range(16)] + [vXo[0], vWo[0], vWt[0]] + [XF + 20 + 4 * i for i in range(3)] + [TM + 4 * i for i in range(3)]
    assert all(r % 4 == 0 for r in WOr)
    vL4k = vVw
    NW1, NW2 = [int(x) for x in ([a[5:] for a in sys.argv if a.startswith('--wo=')] + ['14,22'])[0].split(',')]
    E(f"v_add_u32 v{vL4k}, 4096, v{vL16}")
    def wo_ld(i):
        k, T = divmod(i, 5)
        return f"buffer_load_dwordx4 {v(WOr[i],4)}, v{vL16 if T < 4 else vL4k}, s[{rWS}:{rWS+3}], s{sWk[k]} offen offset:{1024*(T%4)} sc1"
    PHK = XF + 12
    smk = softmax(PHK, PHK + 10, [f"ds_write_b128 v{vPk}, {v(PHK,4)}", f"ds_write_b128 v{vPk}, {v(PHK+4,4)} offset:16"])
    E(merge(smk[:8*NW1], [wo_ld(i) for i in range(NW1)])); E(smk[8*NW1:])
    for i in range(2, 5): E(f"ds_write_b128 v{vPk}, {v(PHK+4*i,4)} offset:{16*i}")
    ST(E, "phik")
    E(premm(QB2, 1))
    E.wait_vm("pois")
    E.wait_lg()
    E("s_barrier")
    KQ = [PF + 4 * i for i in range(12)] + [TM + 20 + 4 * i for i in range(4)]
    KD = XF
    def rdk(i):
        j, k2 = divmod(i, 2)
        L = []
        for a in range(2):
            L.append(f"ds_read_b64_tr_b16 {v(KQ[2*i]+2*a,2)}, v{vA} offset:{8192*j + 80*(16*k2+4*a)}")
        for a in range(2):
            L.append(f"ds_read_b64_tr_b16 {v(KQ[2*i+1]+2*a,2)}, v{vB} offset:{8192*j + 48*(16*k2+4*a)}")
        return L
    E(rdk(0) + rdk(1) + rdk(2))
    for i in range(8):
        if i + 3 < 8: E(rdk(i + 3))
        d = v(KD, 16)
        E(f"{M32} {d}, {v(KQ[2*i],4)}, {v(KQ[2*i+1],4)}, {d if i else 0}")
    SFL = 60
    PH = XF
    smq = softmax(PH, PH + 10, [])
    E(smq[:10])
    KP = XF + 16
    for i in range(8):
        E(f"v_cvt_pk_bf16_f32 v{KP+i}, v{KD+2*i}, v{KD+2*i+1}")
        E(f"v_min_u32 v{KP+i}, -2, v{KP+i}")
        if i == 3: E(f"buffer_store_dwordx4 {v(KP,4)}, v{vS1}, s[{rWS}:{rWS+3}], s{sPS} offen sc1")
    E(f"buffer_store_dwordx4 {v(KP+4,4)}, v{vS2}, s[{rWS}:{rWS+3}], s{sPS} offen sc1")
    vPu = vA
    def push(cond, mask, saddr):
        skip = newlabel("nopush")
        E(cond)
        E(f"s_cbranch_scc1 {skip}")
        E(f"s_mov_b64 exec, {mask}")
        E.raw(f"    buffer_store_dword v{vNon}, v{vPu}, s[{rWS}:{rWS+3}], s{saddr} offen sc1")
        E("s_mov_b64 exec, -1")
        E.label(skip)
    E(f"v_lshlrev_b32 v{vPu}, 9, v{vL}")
    push(f"s_cmp_lg_u32 s{sW}, 0", 0xffff, sF1)
    ST(E, "T0")
    PLr = KQ
    pld = []
    E(f"s_and_b32 s21, s{sR}, 7")
    E(f"s_lshl_b32 s21, s21, 13")
    E(f"s_add_u32 s21, s21, s{sPL}")
    for r in range(16):
        pld.append(f"s_xor_b32 s9, s21, {G.P_PITCH*r}")
        pld.append(f"buffer_load_dwordx4 {v(PLr[r],4)}, v{vPi}, s[{rWS}:{rWS+3}], s9 offen sc1")
    pg = [("group", [pld[2*r], ("tag", pld[2*r+1], "part")]) for r in range(16)]
    E(merge(smq[10:-40], [wo_ld(i) for i in range(NW1, NW2)]))
    E(G.sflag_loads(sFP, 1, 4, SFL))
    E(smq[-40:])
    ok1 = newlabel("f1ok")
    E.wait_lg()
    E(G.sflag_check(4, SFL))
    E(f"s_cbranch_scc0 {ok1}")
    G.sflag_wait(E, sFP, 1, 4, SFL)
    E.label(ok1)
    E("s_barrier")
    ST(E, "f1ok")
    E(pg)
    ST(E, "phiq")
    RD_ = WF
    vCk = MP
    def reduce_items():
        L = []
        for r in range(16):
            d = v(RD_, 16); p = PLr[r]
            L.append(f"{M32} {d}, {v(ID,4)}, {v(p,4)}, {d if r else 0}")
            L.append(f"v_max3_u32 v{vCk}, v{p}, v{p+1}, {'v%d' % vCk if r else 0}")
            L.append(f"v_max3_u32 v{vCk}, v{p+2}, v{p+3}, v{vCk}")
        L.append(f"v_cmp_eq_u32 vcc, -1, v{vCk}")
        return L
    def retry(loads, check):
        ok = newlabel("rok"); sp = newlabel("rsp")
        E(f"s_cbranch_vccz {ok}")
        E.raw("    s_mov_b32 s13, 0")
        E.label(sp)
        for t in ["s_sleep 2"] + loads + ["s_add_u32 s13, s13, 1", f"s_cmp_gt_u32 s13, {G.SPIN_MAX}", f"s_cbranch_scc1 {ok}", "s_waitcnt vmcnt(0)"] + check + [f"s_cbranch_vccnz {sp}"]:
            E.raw("    " + t)
        E.label(ok)
    E(reduce_items())
    retry(pld, reduce_items())
    ST(E, "part")
    SM = WF + 16
    for e in range(4): E(f"v_cvt_pk_bf16_f32 v{SM+e}, v{RD_+2*e}, v{RD_+2*e+1}")
    E(f"ds_write_b128 v{vPi}, {v(SM,4)} offset:{KVT}")
    E.wait_lg()
    E("s_barrier")
    OD = WF
    AF = PF
    fo = [(c, t) for c in range(5) for t in (1, 0)]
    for i, (c, t) in enumerate(fo): E(f"ds_read_b128 {v(AF+4*i,4)}, v{vKa} offset:{384*c + 256*t}")
    sTile = [72, 73, 74, 75]
    vOk = [vPk, vS1, vS2, vPi, vMn]
    pre = []
    for i in range(4):
        pre += [("group", [f"s_add_u32 s9, s22, {i+1}", f"s_and_b32 s9, s9, 3", f"s_mul_i32 s{sTile[i]}, s9, 20480", f"s_add_u32 s{sTile[i]}, s{sTile[i]}, s{sOL}",
                f"s_cmp_ge_u32 s9, 2", f"s_cselect_b32 s8, 18432, 0", f"s_mul_i32 s9, s9, 15360", f"s_add_u32 s9, s9, s8",
                f"v_add_u32 v{vXrs[i]}, s9, v{vL16}"])]
    pre += [("group", [f"v_add_u32 v{vOk[k]}, s{sKo[k]}, v{vL16}" for k in range(5)])]
    om = []
    for i, (c, t) in enumerate(fo):
        d = v(OD + 16 * t, 16)
        om.append(f"{M32} {d}, {v(AF+4*i,4)}, {v(PH+4*c,4)}, {d if c else 0}")
    E(merge(om, pre))
    E(f"v_add_f32 v{MP}, {f32(1e-6)}, v{OD+20}")
    E(f"v_rcp_f32 v{MP}, v{MP}")
    OP = TM + 20
    for i in (8, 9, 0, 1, 2, 3, 4, 5, 6, 7):
        E(f"v_mul_f32 v{OD+2*i}, v{MP}, v{OD+2*i}"); E(f"v_mul_f32 v{OD+2*i+1}, v{MP}, v{OD+2*i+1}")
        E(f"v_cvt_pk_bf16_f32 v{OP+i}, v{OD+2*i}, v{OD+2*i+1}")
        E(f"v_min_u32 v{OP+i}, -2, v{OP+i}")
        if i == 0:
            E(f"v_permlane32_swap_b32 v{OP+8}, v{OP+10}"); E(f"v_permlane32_swap_b32 v{OP+9}, v{OP+11}")
            E(f"buffer_store_dwordx4 {v(OP+8,4)}, v{vO3}, s[{rWS}:{rWS+3}], s{sOS} offen offset:512 sc1")
        if i == 3: E(f"buffer_store_dwordx4 {v(OP,4)}, v{vO1}, s[{rWS}:{rWS+3}], s{sOS} offen sc1")
    E(f"buffer_store_dwordx4 {v(OP+4,4)}, v{vO1}, s[{rWS}:{rWS+3}], s{sOS} offen offset:256 sc1")
    push(f"s_cmp_lg_u32 s{sH}, 0", 0xff, sF2)
    ST(E, "opub")
    for i in range(NW2, 25): E(wo_ld(i))
    OFr = [PF + 4 * i for i in range(12)] + [WF + 4 * i for i in range(8)]
    OA = [[XF + 4 * T for T in range(5)], [TM + 12 + 4 * T for T in range(5)]]
    G.sflag_wait(E, sFO, 1, 4, SFL)
    ST(E, "f2ok")
    def o_ld(i):
        return [f"buffer_load_dwordx4 {v(OFr[5*i+k],4)}, v{vOk[k]}, s[{rWS}:{rWS+3}], s{sTile[i]} offen sc1" for k in range(5)]
    for i in range(4):
        for t in o_ld(i): E(t, tag=f"of{i}")
    ST(E, "oreq")
    pend = []
    for i in range(4):
        rg = [OFr[5 * i + k] + e for k in range(5) for e in range(4)]
        chk = [f"v_max_u32 v{MP}, v{rg[0]}, v{rg[1]}"] + [f"v_max3_u32 v{MP}, v{MP}, v{rg[e]}, v{rg[e+1]}" for e in range(2, 20, 2)] + [f"v_cmp_eq_u32 vcc, -1, v{MP}"]
        E(chk)
        retry(sum([o_ld(k) for k in range(i, 4)], []), chk)
        if i == 0: ST(E, "ofr")
        M = []
        for k in range(5):
            for T in range(5):
                d = v(OA[i % 2][T], 4)
                M.append(f"{M16} {d}, {v(WOr[5*k+T],4)}, {v(OFr[5*i+k],4)}, {d if k else 0}")
        E(M[:6]); E(merge(M[6:], pend))
        pend = [f"ds_write_b128 v{vXrs[i]}, {v(OA[i%2][T],4)} offset:{5120*i + 1024*T}" for T in range(5)] if i < 3 else []
    ST(E, "ogemm")
    E.wait_lg()
    E("s_barrier")
    RR = ACC
    for j in range(3):
        for T in range(5): E(f"ds_read_b128 {v(RR+20*j+4*T,4)}, v{vXrs[3]} offset:{5120*j + 1024*T}")
    RP = PF
    for j in range(3):
        for T in range(5):
            for e in range(4): E(f"v_add_f32 v{OA[1][T]+e}, v{OA[1][T]+e}, v{RR+20*j+4*T+e}")
            if j == 2:
                E(f"v_cvt_pk_bf16_f32 v{RP+2*T}, v{OA[1][T]}, v{OA[1][T]+1}")
                E(f"v_cvt_pk_bf16_f32 v{RP+2*T+1}, v{OA[1][T]+2}, v{OA[1][T]+3}")
                E(f"ds_write_b64 v{vRw}, {v(RP+2*T,2)} offset:{8*T}")
    E(f"v_add_u32 v{vPk}, s93, v{vL16}")
    for m in range(3): E(f"ds_read_b128 {v(RP+12+4*m,4)}, v{vPk} offset:{30720 + 1024*m}")
    for m in range(3):
        if m == 2: E("s_mov_b32 exec_hi, 0")
        E(f"buffer_store_dwordx4 {v(RP+12+4*m,4)}, v{vSo[m]}, s[{rOUT}:{rOUT+3}], s{sOUT} offen {G.OUTA}")
    skip = newlabel("nozero")
    E(f"s_or_b32 s9, s{sW}, s{sCT}")
    E(f"s_cbranch_scc1 {skip}")
    E("s_mov_b64 exec, 1")
    E(f"s_lshl_b32 s9, s{sTBo}, 3")
    E(f"v_mov_b32 v{MP}, 0")
    E.raw(f"    buffer_store_dword v{MP}, off, s[{rDBG}:{rDBG+3}], s9 sc1")
    E.label(skip)
    E("s_mov_b64 exec, -1")
    if G.PROFILE:
        E.wait_vm()
        ST(E, "end")
    ST.dump(E, sW, RP + 40)
    E("s_endpgm")
    return ST
```

```python
import math, sys
from asmlib import *

TA = [[(0, 0), (0, 2), (0, 4), (1, 4)], [(0, 1), (0, 3), (1, 3), (2, 3)], [(1, 0), (1, 2), (2, 2), (2, 4)], [(1, 1), (2, 0), (2, 1), None]]
M16 = "v_mfma_f32_16x16x32_bf16"; M32 = "v_mfma_f32_32x32x16_bf16"

def div_const(dst, src, d):
    return [f"v_mul_u32_u24 v{dst}, {(65536 + d - 1)//d}, v{src}", f"v_lshrrev_b32 v{dst}, 16, v{dst}"]

def put_flag(E, G, sW, vNon, saddr):
    skip = G.newlabel("nofl")
    E(f"s_cmp_lg_u32 s{sW}, 0")
    E(f"s_cbranch_scc1 {skip}")
    E("s_mov_b64 exec, 1")
    E.raw(f"    buffer_store_dword v{vNon}, off, s[{G.rWS}:{G.rWS+3}], s{saddr} sc1")
    E("s_mov_b64 exec, -1")
    E.label(skip)

def flag_addr(dst, idx, base, t):
    return [f"s_lshr_b32 s{dst}, s{idx}, 3", f"s_lshl_b32 s{dst}, s{dst}, 7", f"s_and_b32 s{t}, s{idx}, 7", f"s_lshl_b32 s{t}, s{t}, 2",
            f"s_add_u32 s{dst}, s{dst}, s{t}", f"s_add_u32 s{dst}, s{dst}, {base}"]

def piece_voff(E, vL, dst, t, pitch):
    for m in range(3):
        if m: E(f"v_add_u32 v{t}, {64*m}, v{vL}")
        ci = t if m else vL
        E(div_const(t + 1, ci, 20))
        E(f"v_mul_u32_u24 v{t+1}, {pitch - 320}, v{t+1}")
        E(f"v_lshl_add_u32 v{dst[m]}, v{vL}, 4, v{t+1}")

def gen_C(E, G):
    rWS, rDBG, rWO = G.rWS, G.rDBG, G.rWO
    G.fresh(E)
    sW, sU = 76, 77
    vL, vo, t, vT, vS, D, vNon = 1, [2, 3, 4], 6, [8, 9, 10], [11, 12, 13], 16, 14
    E(f"v_and_b32 v{vL}, 63, v0")
    E(f"v_lshrrev_b32 v{t}, 6, v0")
    E(f"s_sub_u32 s{sU}, s2, {G.NB + G.NA}")
    E(f"v_readfirstlane_b32 s{sW}, v{t}")
    piece_voff(E, vL, vo, t, 1280)
    E(f"s_mul_i32 s4, s{sU}, {8*1280}")
    E(f"s_mul_i32 s5, s{sW}, 320")
    E(f"s_add_u32 s4, s4, s5")
    E(f"s_lshl_b32 s6, s{sW}, 12")
    E(f"s_mov_b32 m0, s6")
    E.wait_lg()
    G.srd(E, rWO, G.pWO, 819200)
    for m in range(3):
        if m == 2: E("s_mov_b32 exec_hi, 0")
        E(f"buffer_load_dwordx4 v{vo[m]}, s[{rWO}:{rWO+3}], s4 offen offset:{1024*m} lds")
    E("s_mov_b64 exec, -1")
    G.srd(E, rWS, G.pWS, G.WS_SIZE)
    G.srd(E, rDBG, G.pDBG, 256)
    for m in range(3):
        E(f"v_lshrrev_b32 v{t}, 4, v{vL}")
        E(f"v_add_u32 v{t}, {4*m}, v{t}")
        E(f"v_min_u32 v{t}, 9, v{t}")
        E(f"v_cmp_lt_u32 vcc, 4, v{t}")
        E(f"v_lshlrev_b32 v{vT[m]}, 3, v{t}")
        E(f"v_add_u32 v{t+1}, 120, v{vT[m]}")
        E(f"v_cndmask_b32 v{vT[m]}, v{vT[m]}, v{t+1}, vcc")
        E(f"v_lshlrev_b32 v{vS[m]}, 10, v{t}")
        E(f"v_add_u32 v{t+1}, {95*1024}, v{vS[m]}")
        E(f"v_cndmask_b32 v{vS[m]}, v{vS[m]}, v{t+1}, vcc")
        E(f"v_and_b32 v{t}, 3, v{vL}")
        E(f"v_mul_u32_u24 v{t}, 40, v{t}")
        E(f"v_bfe_u32 v{t+1}, v{vL}, 2, 2")
        E(f"v_mul_u32_u24 v{t+1}, 320, v{t+1}")
        E(f"v_add3_u32 v{vT[m]}, v{vT[m]}, v{t}, v{t+1}")
        E(f"v_add_u32 v{vT[m]}, s6, v{vT[m]}")
        E(f"v_and_b32 v{t}, 15, v{vL}")
        E(f"v_lshl_add_u32 v{vS[m]}, v{t}, 4, v{vS[m]}")
    E(f"s_mul_i32 s4, s{sW}, {200*1024}")
    E(f"s_lshr_b32 s5, s{sU}, 2")
    E(f"s_mul_i32 s5, s5, 5120")
    E(f"s_add_u32 s4, s4, s5")
    E(f"s_and_b32 s5, s{sU}, 3")
    E(f"s_lshl_b32 s5, s5, 8")
    E(f"s_add_u32 s4, s4, s5")
    E(f"s_add_u32 s4, s4, {G.PWO_BASE}")
    E(flag_addr(7, sU, G.FLAGC_BASE, 5))
    E.wait_vm()
    for m in range(3):
        for a in range(2): E(f"ds_read_b64_tr_b16 {v(D+4*m+2*a,2)}, v{vT[m]} offset:{1280*a}")
    for m in range(3):
        if m == 2:
            E.wait_lg()
            E("s_mov_b32 exec_hi, 0")
        E(f"buffer_store_dwordx4 {v(D+4*m,4)}, v{vS[m]}, s[{rWS}:{rWS+3}], s4 offen sc1")
    E("s_mov_b64 exec, -1")
    nld = G.nonce_load(E, vNon)
    G.nonce_get(E, nld, vNon)
    E.wait_vm()
    E("s_barrier")
    put_flag(E, G, sW, vNon, 7)
    E("s_endpgm")

def gen_A(E, G):
    f32, Alloc, srd, spin, newlabel = G.f32, G.Alloc, G.srd, G.spin, G.newlabel
    rWS, rOUT, rDBG, rIN, rW, rPHI = G.rWS, G.rOUT, G.rDBG, G.rIN, G.rW, G.rPHI
    sN = G.sN
    G.fresh(E)
    ST = G.Stamps(24)
    sW, sR, sP, sPQ, sTBo, sCT, sROT = 76, 77, 78, 79, 80, 81, 82
    sT0, sT1, sT2 = 4, 5, 6
    sWO, sXO, sWE, sXE = 84, 85, 86, 87
    sW4, sXR, sH, sFT = 88, 89, 90, 91
    sPS, sOS, sFO, sPL, sOL, sWL, sFC, sOUT, sFP, sF1, sF2 = 96, 97, 98, 99, 100, 101, 45, 46, 92, 47, 3
    XR = 49152
    TAB = 36864; ZTAB = TAB + 3200; KVT = 45056; ZKV = ZTAB
    def wslot(sig): return 16384 * ((sig + 1) % 3)
    E(f"s_setprio {G.APRIO}")
    A = Alloc(1, 256)
    vL = A(); vHH = A(); vL16 = A()
    ACC = A(64, 4)
    WF = A(32, 4)
    XF = A(32, 4)
    PF = A(48, 4)
    TM = A(36, 4)
    ID = A(4, 4)
    vXo = [A() for _ in range(4)]
    vWo = [A() for _ in range(4)]
    vWt = [A() for _ in range(4)]
    vXrs = [A() for _ in range(4)]
    MP = A(); vMn = A(); vNon = A()
    vPk = A(); vVw = A(); vA = A(); vB = A(); vS1 = A(); vS2 = A(); vPi = A(); vKa = A(); vO1 = A(); vO3 = A(); vC4 = A()
    vRw = A(); vSo = [A() for _ in range(3)]
    vFl = A(); vFc = A()
    vt = [TM + 20 + i for i in range(12)]
    vG, vC, vGam, vR4 = vt[8], vt[9], vt[10], vt[11]
    E(f"v_and_b32 v{vL}, 63, v0")
    E(f"v_lshrrev_b32 v{vt[0]}, 6, v0")
    E(f"v_lshrrev_b32 v{vG}, 4, v{vL}")
    E(f"v_readfirstlane_b32 s{sW}, v{vt[0]}")
    sV, sX, sCL = 7, 8, 11
    E(f"s_getreg_b32 s{sX}, hwreg(HW_REG_XCC_ID)")
    E(f"s_lshr_b32 s{sT0}, s2, 3")
    E(f"s_xor_b32 s{sROT}, s{sT0}, s2")
    E(f"s_and_b32 s{sROT}, s{sROT}, 7")
    E(f"s_lshr_b32 s{sT0}, s2, 6")
    E(f"s_mul_i32 s{sT0}, s{sT0}, 3")
    E(f"s_add_u32 s{sROT}, s{sROT}, s{sT0}")
    E(f"s_sub_u32 s{sT0}, s{sROT}, 10")
    E(f"s_cmp_ge_u32 s{sROT}, 10")
    E(f"s_cselect_b32 s{sROT}, s{sT0}, s{sROT}")
    E(f"s_and_b32 s{sX}, s{sX}, {0 if '--die0' in sys.argv else 7}")
    E(f"s_lshl_b32 s{sW4}, s{sW}, 12")
    vWb = [ACC + m for m in range(4)]; vMk = [ACC + 4 + m for m in range(4)]
    for m in range(4):
        if m: E(f"v_add_u32 v{vt[0]}, {64*m}, v{vL}")
        ci = vt[0] if m else vL
        if m == 3: E(f"v_min_u32 v{vt[0]}, 239, v{vt[0]}")
        E(f"v_mul_u32_u24 v{vt[1]}, 0x1112, v{ci}")
        E(f"v_lshrrev_b32 v{vt[1]}, 16, v{vt[1]}")
        E(f"v_mul_u32_u24 v{vt[2]}, 15, v{vt[1]}")
        E(f"v_sub_u32 v{vt[2]}, v{ci}, v{vt[2]}")
        E(f"v_and_b32 v{vt[3]}, 3, v{vt[1]}")
        E(f"v_lshrrev_b32 v{vt[1]}, 2, v{vt[1]}")
        E(f"v_lshl_add_u32 v{vt[1]}, v{vt[3]}, 2, v{vt[1]}")
        E(f"v_mul_u32_u24 v{vt[3]}, 52, v{vt[2]}")
        E(f"v_lshrrev_b32 v{vt[3]}, 8, v{vt[3]}")
        E(f"v_mul_u32_u24 v{vt[1]}, 3840, v{vt[1]}")
        E(f"v_lshl_add_u32 v{vt[1]}, v{vt[2]}, 4, v{vt[1]}")
        E(f"v_min_u32 v{vMk[m]}, 1, v{vt[3]}")
        E(f"v_mul_u32_u24 v{vt[3]}, 1200, v{vt[3]}")
        E(f"v_add3_u32 v{vWb[m]}, v{vt[1]}, v{vt[3]}, s{sT0}".replace(f"s{sT0}", "0") if False else f"v_add_u32 v{vt[1]}, v{vt[1]}, v{vt[3]}")
        E(f"v_add_u32 v{vWb[m]}, {3072 - 1024*m}, v{vt[1]}")
    E.wait_lg()
    ST(E, "start")
    E(f"s_lshr_b32 s{sCL}, s2, 6")
    skip = newlabel("notick")
    E(f"s_lshl_b32 s12, s{sX}, 2")
    E(f"s_add_u32 s12, s12, s{sCL}")
    E(f"s_lshl_b32 s12, s12, 3")
    E(f"s_mov_b32 s{sV}, 1")
    E(f"s_cmp_lg_u32 s{sW}, 0")
    E(f"s_cbranch_scc1 {skip}")
    E.raw(f"    s_atomic_add s{sV}, s[{G.pDBG}:{G.pDBG+1}], s12 glc")
    E.label(skip)
    E(f"s_sub_u32 s{G.pW}, s{G.pW}, 3072")
    E(f"s_subb_u32 s{G.pW+1}, s{G.pW+1}, 0")
    srd(E, rW, G.pW, 2457600 + 3072)
    def dmaW(sig):
        L = []
        for m in range(4):
            g = []
            if m == 0: g.append(f"s_add_u32 m0, s{sW4}, {wslot(sig)}")
            g.append(("tag", f"buffer_load_dwordx4 v{vWo[m]}, s[{rW}:{rW+3}], s{sWO} offen offset:{1024*m} lds", f"S{sig}"))
            if m == 3: g += [f"s_add_u32 s{sWO}, s{sWO}, {64*3840}", f"s_cmp_ge_u32 s{sWO}, s{sWE}", f"s_cselect_b32 s9, {640*3840}, 0", f"s_sub_u32 s{sWO}, s{sWO}, s9"]
            L.append(("group", g))
        return L
    def dmaX(sig):
        L = []
        for i in range(4):
            g = []
            if i == 0: g.append(f"s_add_u32 m0, s{sXR}, {4096*(sig%2)}")
            g.append(("tag", f"buffer_load_dwordx4 v{vXo[i]}, s[{rIN}:{rIN+3}], s{sXO} offen offset:{1024*i} lds", f"S{sig}"))
            if i == 3: g += [f"s_add_u32 s{sXO}, s{sXO}, 128", f"s_cmp_ge_u32 s{sXO}, s{sXE}", f"s_cselect_b32 s9, 1280, 0", f"s_sub_u32 s{sXO}, s{sXO}, s9"]
            L.append(("group", g))
        return L
    def start_w():
        L = [f"s_lshr_b32 s{sT0}, s{sX}, 1", f"s_lshr_b32 s{sT1}, s{sCL}, 1", f"s_xor_b32 s{sT1}, s{sT1}, s{sT0}", f"s_and_b32 s{sT1}, s{sT1}, 1",
             f"s_lshl_b32 s{sP}, s{sT0}, 2", f"s_add_u32 s{sP}, s{sP}, s{sT1}", f"s_and_b32 s{sT0}, s{sCL}, 1", f"s_lshl_b32 s{sT0}, s{sT0}, 1", f"s_add_u32 s{sP}, s{sP}, s{sT0}",
             f"s_xor_b32 s{sPQ}, s{sP}, 1", f"s_mul_i32 s{sT1}, s{sT1}, 160", f"s_sub_u32 s{sT1}, s{sT1}, 80",
             f"s_mul_i32 s{sT0}, s{sPQ}, 80", f"s_mul_i32 s{sWE}, s{sW}, {16*3840}", f"s_add_u32 s{sWE}, s{sWE}, s{sT0}",
             f"s_mul_i32 s{sWO}, s{sROT}, {64*3840}", f"s_add_u32 s{sWO}, s{sWO}, s{sWE}", f"s_add_u32 s{sWE}, s{sWE}, {640*3840}"]
        L += [f"v_mad_i32_i24 v{vWo[m]}, v{vMk[m]}, s{sT1}, v{vWb[m]}" for m in range(4)]
        return L + dmaW(0) + dmaW(1)
    E(start_w())
    srd(E, rIN, G.pX, 2621440)
    E(f"v_lshrrev_b32 v{vt[0]}, 3, v{vL}")
    E(f"v_and_b32 v{vt[1]}, 7, v{vL}")
    E(f"v_xor_b32 v{vt[1]}, v{vt[1]}, v{vG}")
    E(f"v_mul_u32_u24 v{vt[0]}, 1280, v{vt[0]}")
    E(f"v_lshl_add_u32 v{vXo[0]}, v{vt[1]}, 4, v{vt[0]}")
    E(f"v_xor_b32 v{vXo[1]}, 64, v{vXo[0]}")
    E(f"v_add_u32 v{vXo[2]}, {2*(8*1280-1024)}, v{vXo[0]}")
    E(f"v_add_u32 v{vXo[3]}, {3*(8*1280-1024)}, v{vXo[1]}")
    E(f"v_add_u32 v{vXo[1]}, {1*(8*1280-1024)}, v{vXo[1]}")
    E(f"s_lshl_b32 s{sXR}, s{sW}, 13")
    E(f"s_add_u32 s{sXR}, s{sXR}, {XR}")
    skip = newlabel("notick"); again = newlabel("again"); got = newlabel("got"); same = newlabel("same")
    E(f"s_cmp_lg_u32 s{sW}, 0")
    E(f"s_cbranch_scc1 {skip}")
    E.raw("    s_mov_b32 s13, 0")
    E.label(again)
    for t in ["s_waitcnt lgkmcnt(0)", f"s_cmp_lt_u32 s{sV}, 8", f"s_cbranch_scc1 {got}",
              "s_add_u32 s13, s13, 1", "s_cmp_gt_u32 s13, 7", f"s_cbranch_scc1 {got}",
              "s_add_u32 s12, s12, 32", "s_and_b32 s12, s12, 255", f"s_mov_b32 s{sV}, 1",
              f"s_atomic_add s{sV}, s[{G.pDBG}:{G.pDBG+1}], s12 glc", f"s_branch {again}"]:
        E.raw("    " + t)
    E.label(got)
    for t in [f"s_and_b32 s{sV}, s{sV}, 7", f"s_and_b32 s12, s12, 0xe0", f"s_add_u32 s{sV}, s{sV}, s12", f"v_mov_b32 v{vt[0]}, s{sV}", f"v_and_b32 v{vt[1]}, 3, v{vL}",
              f"v_lshlrev_b32 v{vt[1]}, 13, v{vt[1]}", f"ds_write_b32 v{vt[1]}, v{vt[0]} offset:{XR}", "s_waitcnt lgkmcnt(0)"]:
        E.raw("    " + t)
    E.label(skip)
    E(f"v_mov_b32 v{vt[1]}, s{sXR}")
    E("s_barrier")
    E(f"ds_read_b32 v{vt[0]}, v{vt[1]}")
    E(f"v_readfirstlane_b32 s{sV}, v{vt[0]}")
    E(f"s_lshr_b32 s{sT0}, s{sV}, 5")
    E(f"s_and_b32 s{sCT}, s{sV}, 7")
    E(f"s_cmp_eq_u32 s{sT0}, s{sX}")
    E(f"s_cbranch_scc1 {same}")
    import copy
    saved = copy.deepcopy((E.vmq, E.lgq))
    E(f"s_mov_b32 s{sX}, s{sT0}")
    E.wait_vm()
    E(start_w())
    E.vmq, E.lgq = saved
    E.label(same)
    ST(E, "tile")
    E(f"s_and_b32 s{sR}, s{sX}, 1")
    E(f"s_lshl_b32 s{sR}, s{sR}, 3")
    E(f"s_add_u32 s{sR}, s{sR}, s{sCT}")
    E(f"s_lshl_b32 s{sXE}, s{sR}, 2")
    E(f"s_add_u32 s{sXE}, s{sXE}, s{sW}")
    E(f"s_mul_i32 s{sXE}, s{sXE}, {32*1280}")
    E(f"s_lshl_b32 s{sXO}, s{sROT}, 7")
    E(f"s_add_u32 s{sXO}, s{sXO}, s{sXE}")
    E(f"s_add_u32 s{sXE}, s{sXE}, 1280")
    E(dmaX(0)); E(dmaX(1))
    E(f"s_lshl_b32 s{sTBo}, s{sX}, 2")
    E(f"s_add_u32 s{sTBo}, s{sTBo}, s{sCL}")
    srd(E, rPHI, G.pPHI, 25600)
    vPhi = TM + 18
    E(f"v_lshlrev_b32 v{vPhi}, 4, v0")
    E(f"v_cmp_gt_u32 vcc, 200, v0")
    E(f"v_mov_b32 v{vPhi+1}, 0x100000")
    E(f"s_lshr_b32 s{sT0}, s{sP}, 1")
    E(f"s_mul_i32 s{sT0}, s{sT0}, 3200")
    E(f"v_cndmask_b32 v{vPhi+1}, v{vPhi+1}, v{vPhi}, vcc")
    E(f"buffer_load_dwordx4 {v(TM,4)}, v{vPhi+1}, s[{rPHI}:{rPHI+3}], s{sT0} offen")
    srd(E, rWS, G.pWS, G.WS_SIZE)
    PN = TM + 32
    for i in range(4): E(f"v_mov_b32 v{PN+i}, -1")
    E(f"v_lshlrev_b32 v{vL16}, 4, v{vL}")
    E(f"s_lshl_b32 s{sPL}, s{sPQ}, 16")
    E(f"s_add_u32 s{sPL}, s{sPL}, {G.P_BASE}")
    E(f"s_lshl_b32 s{sPS}, s{sP}, 4")
    E(f"s_add_u32 s{sPS}, s{sPS}, s{sR}")
    E(f"s_lshl_b32 s{sPS}, s{sPS}, 12")
    E(f"s_add_u32 s{sPS}, s{sPS}, {G.P_BASE}")
    E(f"s_lshl_b32 s{sT0}, s{sW}, 10")
    E(f"s_add_u32 s95, s{sT0}, s{sPS}")
    srd(E, rDBG, G.pDBG, 256)
    srd(E, rOUT, G.pOUT, 5242880)
    E(f"v_and_b32 v{vC}, 15, v{vL}")
    E(f"v_bfe_u32 v{vGam}, v{vL}, 4, 1")
    E(f"v_bfe_u32 v{vt[0]}, v{vL}, 1, 1")
    E(f"v_lshl_add_u32 v{vGam}, v{vGam}, 1, v{vt[0]}")
    E(f"v_bfe_u32 v{vR4}, v{vL}, 2, 2")
    E(f"v_lshrrev_b32 v{vHH}, 5, v{vL}")
    E(f"v_lshlrev_b32 v{vt[0]}, 3, v{vGam}")
    E(f"v_and_b32 v{vt[1]}, 1, v{vL}")
    E(f"v_mul_u32_u24 v{vt[1]}, 5, v{vt[1]}")
    E(f"v_lshl_add_u32 v{vt[2]}, v{vR4}, 1, v{vHH}")
    E(f"v_mul_u32_u24 v{vt[2]}, 480, v{vt[2]}")
    for T in range(4):
        pk = sum((30 if e is None else 10 * e[0] + e[1]) << (8 * i) for i, e in enumerate(TA[T]))
        E(f"s_mov_b32 s9, {pk}")
        E(f"v_bfe_u32 v{vt[3]}, s9, v{vt[0]}, 8")
        E(f"v_add_u32 v{vt[3]}, v{vt[3]}, v{vt[1]}")
        E(f"v_min_u32 v{vt[3]}, 31, v{vt[3]}")
        E(f"v_lshl_add_u32 v{vWt[T]}, v{vt[3]}, 3, v{vt[2]}")
    E(f"v_and_b32 v{vt[0]}, 31, v{vL}")
    E(f"v_bfe_u32 v{vt[1]}, v{vL}, 1, 3")
    E(f"v_xor_b32 v{vt[1]}, v{vt[1]}, v{vHH}")
    E(f"v_lshlrev_b32 v{vt[0]}, 7, v{vt[0]}")
    E(f"v_lshl_add_u32 v{vt[0]}, v{vt[1]}, 4, v{vt[0]}")
    for j in range(4):
        E(f"v_xor_b32 v{vXrs[j]}, {32*j}, v{vt[0]}")
        E(f"v_add_u32 v{vXrs[j]}, s{sXR}, v{vXrs[j]}")
    E(f"s_and_b32 s{sH}, s{sW}, 1")
    E(f"s_lshr_b32 s{sFT}, s{sW}, 1")
    E(f"s_mov_b32 s94, {f32(math.log2(math.e))}")
    vPa = [TM + 16, TM + 17]
    E(f"v_mul_u32_u24 v{vt[0]}, 800, v{vHH}")
    E(f"v_mul_u32_u24 v{vt[1]}, 40, v{vR4}")
    E(f"v_lshl_add_u32 v{vt[1]}, v{vGam}, 3, v{vt[1]}")
    E(f"v_and_b32 v{vt[2]}, 1, v{vL}")
    E(f"v_cmp_eq_u32 vcc, v{vt[2]}, v{vHH}")
    for i, sp in enumerate((sP, sPQ)):
        E(f"s_and_b32 s{sT0}, s{sp}, 1")
        E(f"s_mul_i32 s{sT0}, s{sT0}, 1600")
        E(f"v_add3_u32 v{vt[3]}, v{vt[0]}, v{vt[1]}, s{sT0}")
        E(f"v_mov_b32 v{vPa[i]}, 3200")
        E(f"v_cndmask_b32 v{vPa[i]}, v{vPa[i]}, v{vt[3]}, vcc")
    E(f"v_lshlrev_b32 v{vPhi+1}, 2, v0")
    E(f"v_mov_b32 v{TM+4}, 0")
    for i in range(2):
        for t in range(2):
            E(f"v_mov_b32 v{PF+24*i+16+4*t+2}, 0"); E(f"v_mov_b32 v{PF+24*i+16+4*t+3}, 0")
    E(f"v_mul_u32_u24 v{vPk}, 80, v{vL}")
    E(f"v_add_u32 v{vPk}, s{sXR}, v{vPk}")
    E(f"v_mul_u32_u24 v{vVw}, 48, v{vL}")
    E(f"v_add_u32 v{vVw}, s{sXR}, v{vVw}")
    E(f"v_lshl_add_u32 v{vt[0]}, v{vHH}, 3, v{vR4}")
    E(f"v_bfe_u32 v{vt[1]}, v{vL}, 4, 1")
    E(f"v_lshlrev_b32 v{vt[1]}, 2, v{vt[1]}")
    E(f"v_and_b32 v{vt[2]}, 1, v{vL}")
    E(f"v_lshl_add_u32 v{vt[2]}, v{vt[2]}, 1, v{vt[1]}")
    E(f"v_bfe_u32 v{vt[3]}, v{vL}, 1, 1")
    E(f"v_add_u32 v{vt[2]}, v{vt[2]}, v{vt[3]}")
    E(f"v_mul_u32_u24 v{vA}, 80, v{vt[0]}")
    E(f"v_lshl_add_u32 v{vA}, v{vt[2]}, 3, v{vA}")
    E(f"s_mul_i32 s{sT0}, s{sH}, 2560")
    E(f"s_lshl_b32 s{sT1}, s{sFT}, 6")
    E(f"s_add_u32 s{sT0}, s{sT0}, s{sT1}")
    E(f"s_add_u32 s{sT0}, s{sT0}, {XR}")
    E(f"v_add_u32 v{vA}, s{sT0}, v{vA}")
    E(f"v_and_b32 v{vt[2]}, 3, v{vL}")
    E(f"v_add_u32 v{vt[2]}, v{vt[2]}, v{vt[1]}")
    E(f"v_mul_u32_u24 v{vB}, 48, v{vt[0]}")
    E(f"v_lshl_add_u32 v{vB}, v{vt[2]}, 3, v{vB}")
    E(f"s_mul_i32 s{sT0}, s{sH}, 1536")
    E(f"s_add_u32 s{sT0}, s{sT0}, {XR+5120}")
    E(f"v_add_u32 v{vB}, s{sT0}, v{vB}")
    E(f"v_and_b32 v{vt[0]}, 31, v{vL}")
    E(f"s_lshl_b32 s{sT0}, s{sH}, 4")
    E(f"v_add_u32 v{vt[1]}, s{sT0}, v{vt[0]}")
    E(f"v_subrev_u32 v{vt[2]}, 20, v{vt[1]}")
    E(f"v_min_u32 v{vt[1]}, v{vt[1]}, v{vt[2]}")
    E(f"v_cmp_gt_u32 vcc, 20, v{vt[0]}")
    E(f"v_mov_b32 v{vt[3]}, 0x4000000")
    E(f"v_cndmask_b32 v{vt[1]}, v{vt[0]}, v{vt[1]}, vcc")
    E(f"v_lshlrev_b32 v{vt[1]}, 4, v{vt[1]}")
    E(f"v_cmp_gt_u32 vcc, 24, v{vt[0]}")
    E(f"s_cmp_eq_u32 s{sFT}, 0")
    E(f"s_mov_b32 s9, 0x4000000")
    E(f"s_cselect_b32 s{sT0}, 384, s9")
    E(f"s_cselect_b32 s{sT1}, 768, s9")
    E(f"v_cndmask_b32 v{vt[1]}, v{vt[3]}, v{vt[1]}, vcc")
    E(f"v_mul_lo_u32 v{vS1}, v{vHH}, s{sT0}")
    E(f"v_add_u32 v{vS1}, v{vS1}, v{vt[1]}")
    E(f"v_add_u32 v{vS2}, s{sT1}, v{vS1}")
    E(f"s_mul_i32 s{sT0}, s{sH}, 1920")
    E(f"s_mul_i32 s{sT1}, s{sFT}, 1536")
    E(f"s_add_u32 s{sPS}, s{sPS}, s{sT0}")
    E(f"s_add_u32 s{sPS}, s{sPS}, s{sT1}")
    E(f"v_min_u32 v{vPi}, 239, v0")
    E(f"v_lshlrev_b32 v{vPi}, 4, v{vPi}")
    E(f"v_bfe_u32 v{vt[0]}, v{vL}, 3, 2")
    E(f"v_and_b32 v{vt[1]}, 3, v{vL}")
    E(f"v_lshl_add_u32 v{vt[0]}, v{vt[0]}, 2, v{vt[1]}")
    E(f"v_mul_u32_u24 v{vt[1]}, 1920, v{vHH}")
    E(f"v_lshl_add_u32 v{vt[2]}, v{vt[0]}, 4, v{vt[1]}")
    E(f"v_add_u32 v{vt[2]}, {KVT}, v{vt[2]}")
    E(f"v_bfe_u32 v{vt[1]}, v{vL}, 2, 1")
    E(f"v_cmp_eq_u32 vcc, v{vt[1]}, v{vHH}")
    E(f"v_mov_b32 v{vKa}, {ZKV}")
    E(f"v_cndmask_b32 v{vKa}, v{vKa}, v{vt[2]}, vcc")
    E(f"v_cndmask_b32 v{vt[0]}, 64, v{vt[0]}, vcc")
    E(f"v_and_b32 v{vt[1]}, 1, v{vt[0]}")
    E(f"v_lshlrev_b32 v{vt[1]}, 4, v{vt[1]}")
    E(f"v_mov_b32 v{vt[2]}, 0x3f80")
    E(f"v_lshlrev_b32 v{vt[1]}, v{vt[1]}, v{vt[2]}")
    E(f"v_lshrrev_b32 v{vt[0]}, 1, v{vt[0]}")
    for i in range(4):
        E(f"v_cmp_eq_u32 vcc, {i}, v{vt[0]}")
        E(f"v_cndmask_b32 v{ID+i}, 0, v{vt[1]}, vcc")
    E(f"v_and_b32 v{vt[1]}, 1, v{vG}")
    E(f"v_mul_u32_u24 v{vt[1]}, 20480, v{vt[1]}")
    E(f"v_lshl_add_u32 v{vt[1]}, v{vC}, 4, v{vt[1]}")
    E(f"v_mul_u32_u24 v{vO1}, 768, v{vHH}")
    E(f"v_add_u32 v{vO1}, v{vO1}, v{vt[1]}")
    E(f"v_lshl_add_u32 v{vO3}, v{vHH}, 26, v{vt[1]}")
    E(f"s_lshl_b32 s{sT0}, s{sR}, 2")
    E(f"s_add_u32 s{sT0}, s{sT0}, s{sW}")
    E(f"s_mul_i32 s{sT0}, s{sT0}, 40960")
    E(f"s_mul_i32 s{sT1}, s{sPQ}, 1280")
    E(f"s_add_u32 s{sT0}, s{sT0}, s{sT1}")
    E(f"s_add_u32 s{sOS}, s{sT0}, {G.O_BASE}")
    E(f"v_lshlrev_b32 v{vC4}, 2, v{vC}")
    E(f"s_lshl_b32 s{sFO}, s{sTBo}, 3")
    E(f"s_add_u32 s{sFO}, s{sFO}, s{sCT}")
    E(f"s_lshl_b32 s{sFO}, s{sFO}, 2")
    E(f"s_add_u32 s{sFO}, s{sFO}, s{sW}")
    E(f"s_lshl_b32 s{sFO}, s{sFO}, 7")
    E(f"s_add_u32 s{sFO}, s{sFO}, {G.FLAGO_BASE}")
    E(f"s_mul_i32 s{sOL}, s{sTBo}, 81920")
    E(f"s_mul_i32 s{sT0}, s{sW}, 5120")
    E(f"s_add_u32 s{sOL}, s{sOL}, s{sT0}")
    E(f"s_add_u32 s{sOL}, s{sOL}, {G.O_BASE}")
    E(f"s_lshl_b32 s{sWL}, s{sCT}, 2")
    E(f"s_add_u32 s{sWL}, s{sWL}, s{sW}")
    E(f"s_mul_i32 s{sWL}, s{sWL}, 25600")
    E(f"s_add_u32 s{sWL}, s{sWL}, {G.PWO_BASE}")
    E(f"v_mul_u32_u24 v{vRw}, 160, v{vC}")
    E(f"v_mul_u32_u24 v{vt[1]}, 40, v{vG}")
    E(f"s_mul_i32 s93, s{sW}, 2560")
    E(f"s_add_u32 s{sT0}, s93, 30720")
    E(f"v_add3_u32 v{vRw}, v{vRw}, v{vt[1]}, s{sT0}")
    for m in range(3):
        E(f"v_add_u32 v{vt[0]}, {64*m}, v{vL}")
        E(div_const(vt[1], vt[0], 10))
        E(f"v_mul_u32_u24 v{vt[1]}, 2400, v{vt[1]}")
        E(f"v_lshl_add_u32 v{vSo[m]}, v{vt[0]}, 4, v{vt[1]}")
    E(f"s_add_u32 s22, s{sW}, s{sCT}")
    E(f"s_and_b32 s22, s22, 3")
    E(f"s_lshl_b32 s{sOUT}, s{sTBo}, 2")
    E(f"s_add_u32 s{sOUT}, s{sOUT}, s22")
    E(f"s_mul_i32 s{sOUT}, s{sOUT}, {16*2560}")
    E(f"s_mul_i32 s{sT1}, s{sCT}, 160")
    E(f"s_add_u32 s{sOUT}, s{sOUT}, s{sT1}")
    E(f"s_lshl_b32 s{sF1}, s{sP}, 13")
    E(G.word_off(sF1, sR, 2, sT1))
    E(f"s_add_u32 s{sF1}, s{sF1}, {G.FLAGW_BASE}")
    E(f"s_lshl_b32 s{sFP}, s{sPQ}, 4")
    E(f"s_add_u32 s{sFP}, s{sFP}, s{sR}")
    E(f"s_lshl_b32 s{sFP}, s{sFP}, 9")
    E(f"s_add_u32 s{sFP}, s{sFP}, {G.FLAGW_BASE}")
    E(f"s_lshl_b32 s{sF2}, s{sR}, 1")
    E(f"s_add_u32 s{sF2}, s{sF2}, s{sFT}")
    E(f"s_lshl_b32 s{sF2}, s{sF2}, 12")
    E(G.word_off(sF2, sPQ, 2, sT1))
    E(f"s_add_u32 s{sF2}, s{sF2}, {G.FLAGO_BASE}")
    E(f"s_lshl_b32 s{sT1}, s{sW}, 7")
    E(f"s_add_u32 s{sFP}, s{sT1}, s{sFP}")
    for sa in (sFP, sFO): E(f"s_buffer_load_dword s23, s[{rWS}:{rWS+3}], s{sa} glc")
    vCo = TM + 15
    E(f"s_mul_i32 s{sT0}, s{sW}, 20")
    E(f"v_min_u32 v{vt[0]}, 19, v{vL}")
    E(f"v_add_u32 v{vt[0]}, s{sT0}, v{vt[0]}")
    E(f"v_lshrrev_b32 v{vt[1]}, 3, v{vt[0]}")
    E(f"v_and_b32 v{vt[0]}, 7, v{vt[0]}")
    E(f"v_lshlrev_b32 v{vt[0]}, 2, v{vt[0]}")
    E(f"v_lshl_add_u32 v{vCo}, v{vt[1]}, 7, v{vt[0]}")
    E(f"s_mov_b32 s{sFC}, {G.FLAGC_BASE}")
    sWk = [16, 17, 18, 19, 20]; sKo = [40, 41, 42, 43, 44]
    E(f"s_and_b32 s{sT0}, s{sTBo}, 3")
    for k in range(5):
        E(f"s_lshl_b32 s{sKo[k]}, s{sT0}, 10")
        E(f"s_mul_i32 s{sWk[k]}, s{sT0}, 5120")
        E(f"s_add_u32 s{sWk[k]}, s{sWk[k]}, s{sWL}")
        if k < 4:
            E(f"s_add_u32 s{sT0}, s{sT0}, 1")
            E(f"s_cmp_eq_u32 s{sT0}, 5")
            E(f"s_cselect_b32 s{sT0}, 0, s{sT0}")

    def rdW(sig, ks):
        b = WF + 16 * (ks % 2)
        return [f"ds_read_b64_tr_b16 {v(b+4*T+2*a,2)}, v{vWt[T]} offset:{wslot(sig) + 4096*ks + 240*a}" for T in range(4) for a in range(2)]
    def rdX(sig):
        return [f"ds_read_b128 {v(XF+16*(sig%2)+4*j,4)}, v{vXrs[j]} offset:{4096*(sig%2)}" for j in range(4)]
    def mm(sig, ks):
        L = []
        for T in range(4):
            d = v(ACC + 16 * T, 16)
            if "--nomfma" in sys.argv:
                L.append(f"v_mov_b32 v{ACC+T}, v{WF+16*(ks%2)+4*T+3}"); continue
            if "--m16" in sys.argv:
                L.append(("group", [f"{M16} {v(ACC+16*T+4*(2*(ks%2)+e),4)}, {v(WF+16*(ks%2)+4*T,4)}, {v(XF+16*(sig%2)+4*((ks+e)%4),4)}, {v(ACC+16*T+4*(2*(ks%2)+e),4)}" for e in range(2)])); continue
            L.append(f"{M32} {d}, {v(WF+16*(ks%2)+4*T,4)}, {v(XF+16*(sig%2)+4*ks,4)}, {d if (sig or ks) else 0}")
        return L
    def weave(M, rd, vm):
        out = []
        n = (len(rd) + 2) // 3
        for i, x in enumerate(M):
            out.append(x)
            if i < 3: out += rd[n * i:n * (i + 1)]
            if i == 1 and len(vm) > 0: out.append(vm[0])
            if i == 3 and len(vm) > 1: out += vm[1:]
        return out
    wphi = [f"ds_write_b128 v{vPhi}, {v(TM,4)} offset:{TAB}", f"ds_write_b32 v{vPhi+1}, v{TM+4} offset:{TAB+4096}"]
    rphi = []
    for i in range(2):
        for c in range(3):
            for t in range(2):
                b = PF + 24 * i + 8 * c + 4 * t
                rphi.append(f"ds_read_b64_tr_b16 {v(b,2)}, v{vPa[i]} offset:{TAB + 320*c + 32*t}")
                if c < 2: rphi.append(f"ds_read_b64_tr_b16 {v(b+2,2)}, v{vPa[i]} offset:{TAB + 320*c + 160 + 32*t}")
    nld = f"buffer_load_dword v{vNon}, off, s[{rDBG}:{rDBG+3}], 0 offset:4 sc1"
    cld = f"buffer_load_dword v{vFc}, v{vCo}, s[{rWS}:{rWS+3}], s{sFC} offen sc1"
    opois = [f"buffer_store_dwordx4 {v(PN,4)}, v{vO1}, s[{rWS}:{rWS+3}], s{sOS} offen sc1",
             f"buffer_store_dwordx4 {v(PN,4)}, v{vO1}, s[{rWS}:{rWS+3}], s{sOS} offen offset:256 sc1",
             f"buffer_store_dwordx4 {v(PN,4)}, v{vO3}, s[{rWS}:{rWS+3}], s{sOS} offen offset:512 sc1"]
    allpois = [f"buffer_store_dwordx4 {v(PN,4)}, v{vL16}, s[{rWS}:{rWS+3}], s95 offen sc1"] + opois[:2] + [("tag", opois[2], "pois")]
    if "--earlypois" in sys.argv: E(allpois)
    E.wait_vm("S0")
    E("s_barrier")
    E(rdX(0)); E(rdW(0, 0))
    w2 = dmaW(2)
    E(w2[:2])
    pendW = w2[2:]
    for sig in range(10):
        xn = dmaX(sig + 2) if sig + 2 < 10 else []
        extra = [[], [], []]
        if sig == 8:
            extra = [wphi, [], []]
            pendW = [("tag", nld, "nonce"), ("tag", cld, "cfl")]
            if "--earlypois" not in sys.argv: xn = allpois
        if sig == 9:
            extra = [rphi[:7], rphi[7:14], rphi[14:]]
        E(weave(mm(sig, 0), rdW(sig, 1) + extra[0], pendW))
        E(weave(mm(sig, 1), rdW(sig, 2) + extra[1], xn[:2]))
        E(weave(mm(sig, 2), rdW(sig, 3) + extra[2], xn[2:]))
        if sig < 9:
            E.wait_vm(f"S{sig+1}")
            E.wait_lg()
            E("s_barrier")
            wn = dmaW(sig + 3) if sig + 3 < 10 else []
            E(weave(mm(sig, 3), rdX(sig + 1)[:1] + rdW(sig + 1, 0) + rdX(sig + 1)[1:], wn[:2]))
            pendW = wn[2:]
        else:
            E(mm(sig, 3))
    ST(E, "gemm")
    if "--gemmonly" in sys.argv:
        ST.dump(E, sW, ACC)
        E("s_endpgm")
        return ST

    def acc(sec, j):
        for T in range(4):
            for g_, e in enumerate(TA[T]):
                if e == (sec, j): return ACC + 16 * T + 4 * g_
    QB = XF
    PD = WF
    EE = TM
    def pack(sec, dst):
        return [f"v_cvt_pk_bf16_f32 v{dst+2*j+e}, v{acc(sec,j)+2*e}, v{acc(sec,j)+2*e+1}" for j in range(5) for e in range(2)]
    def premm(qb, i):
        L = []
        for c in range(3):
            for t in range(2):
                d = v(PD + 16 * t, 16)
                L.append(f"{M32} {d}, {v(PF+24*i+8*c+4*t,4)}, {v(qb+4*c,4)}, {d if c else 0}")
        return L
    def softmax(out_plus, out_minus, after_plus):
        PP = PD
        mx, mn, m = MP, vMn, MP
        L = [f"v_max3_f32 v{mx}, v{PP}, v{PP+1}, v{PP+2}", f"v_min3_f32 v{mn}, v{PP}, v{PP+1}, v{PP+2}"]
        for i in range(3, 19, 2):
            L += [f"v_max3_f32 v{mx}, v{mx}, v{PP+i}, v{PP+i+1}", f"v_min3_f32 v{mn}, v{mn}, v{PP+i}, v{PP+i+1}"]
        L += [f"v_max_f32 v{mx}, v{mx}, v{PP+19}", f"v_min_f32 v{mn}, v{mn}, v{PP+19}"]
        for sgn, dst, src, outp in ((1, EE, mx, out_plus), (-1, PP, mn, out_minus)):
            L.append(f"v_mul_f32 v{m}, s94, v{src}")
            for i in range(20):
                L.append(f"v_fma_f32 v{dst+i}, v{PP+i}, s94, -v{m}" if sgn > 0 else f"v_fma_f32 v{dst+i}, -v{PP+i}, s94, v{m}")
            for i in range(20):
                L.append(f"v_exp_f32 v{dst+i}, v{dst+i}")
                if i == 2: L.append(f"v_add_f32 v{m}, v{dst}, v{dst+1}")
                if i > 2: L.append(f"v_add_f32 v{m}, v{m}, v{dst+i-1}")
            L += [f"v_add_f32 v{m}, v{m}, v{dst+19}", f"v_rcp_f32 v{m}, v{m}"]
            for i in range(10):
                L.append(f"v_mul_f32 v{dst+2*i}, v{m}, v{dst+2*i}")
                L.append(f"v_mul_f32 v{dst+2*i+1}, v{m}, v{dst+2*i+1}")
                L.append(f"v_cvt_pk_bf16_f32 v{outp+i}, v{dst+2*i}, v{dst+2*i+1}")
            if sgn > 0: L += after_plus
        return L
    E(f"v_mov_b32 v{QB+10}, 0"); E(f"v_mov_b32 v{QB+11}, 0")
    E(pack(1, QB))
    VP = XF + 12
    QB2 = TM + 20
    side = pack(2, VP) + [f"v_mov_b32 v{VP+10}, 0x3f80", f"v_mov_b32 v{VP+11}, 0"] + \
           [f"ds_write_b128 v{vVw}, {v(VP+4*i,4)} offset:{5120+16*i}" for i in range(3)] + \
           pack(0, QB2) + [f"v_mov_b32 v{QB2+10}, 0", f"v_mov_b32 v{QB2+11}, 0"]
    E(merge(premm(QB, 0), side[:15])); E(side[15:])
    G.nonce_get(E, nld, vNon)
    spin(E, ["s_sleep 2", cld], [f"v_cmp_ne_u32 vcc, s{sN}, v{vFc}"], "cfl")
    WOr = [ACC + 4 * i for i in range(16)] + [vXo[0], vWo[0], vWt[0]] + [XF + 20 + 4 * i for i in range(3)] + [TM + 4 * i for i in range(3)]
    assert all(r % 4 == 0 for r in WOr)
    vL4k = vVw
    NW1, NW2 = [int(x) for x in ([a[5:] for a in sys.argv if a.startswith('--wo=')] + ['14,22'])[0].split(',')]
    E(f"v_add_u32 v{vL4k}, 4096, v{vL16}")
    def wo_ld(i):
        k, T = divmod(i, 5)
        return f"buffer_load_dwordx4 {v(WOr[i],4)}, v{vL16 if T < 4 else vL4k}, s[{rWS}:{rWS+3}], s{sWk[k]} offen offset:{1024*(T%4)} sc1"
    PHK = XF + 12
    smk = softmax(PHK, PHK + 10, [f"ds_write_b128 v{vPk}, {v(PHK,4)}", f"ds_write_b128 v{vPk}, {v(PHK+4,4)} offset:16"])
    E(merge(smk[:8*NW1], [wo_ld(i) for i in range(NW1)])); E(smk[8*NW1:])
    for i in range(2, 5): E(f"ds_write_b128 v{vPk}, {v(PHK+4*i,4)} offset:{16*i}")
    ST(E, "phik")
    E(premm(QB2, 1))
    E.wait_vm("pois")
    E.wait_lg()
    E("s_barrier")
    KQ = [PF + 4 * i for i in range(12)] + [TM + 20 + 4 * i for i in range(4)]
    KD = XF
    def rdk(i):
        j, k2 = divmod(i, 2)
        L = []
        for a in range(2):
            L.append(f"ds_read_b64_tr_b16 {v(KQ[2*i]+2*a,2)}, v{vA} offset:{8192*j + 80*(16*k2+4*a)}")
        for a in range(2):
            L.append(f"ds_read_b64_tr_b16 {v(KQ[2*i+1]+2*a,2)}, v{vB} offset:{8192*j + 48*(16*k2+4*a)}")
        return L
    E(rdk(0) + rdk(1) + rdk(2))
    for i in range(8):
        if i + 3 < 8: E(rdk(i + 3))
        d = v(KD, 16)
        E(f"{M32} {d}, {v(KQ[2*i],4)}, {v(KQ[2*i+1],4)}, {d if i else 0}")
    SFL = 60
    PH = XF
    smq = softmax(PH, PH + 10, [])
    E(smq[:10])
    KP = XF + 16
    for i in range(8):
        E(f"v_cvt_pk_bf16_f32 v{KP+i}, v{KD+2*i}, v{KD+2*i+1}")
        E(f"v_min_u32 v{KP+i}, -2, v{KP+i}")
        if i == 3: E(f"buffer_store_dwordx4 {v(KP,4)}, v{vS1}, s[{rWS}:{rWS+3}], s{sPS} offen sc1")
    E(f"buffer_store_dwordx4 {v(KP+4,4)}, v{vS2}, s[{rWS}:{rWS+3}], s{sPS} offen sc1")
    vPu = vA
    def push(cond, mask, saddr):
        skip = newlabel("nopush")
        E(cond)
        E(f"s_cbranch_scc1 {skip}")
        E(f"s_mov_b64 exec, {mask}")
        E.raw(f"    buffer_store_dword v{vNon}, v{vPu}, s[{rWS}:{rWS+3}], s{saddr} offen sc1")
        E("s_mov_b64 exec, -1")
        E.label(skip)
    E(f"v_lshlrev_b32 v{vPu}, 9, v{vL}")
    push(f"s_cmp_lg_u32 s{sW}, 0", 0xffff, sF1)
    ST(E, "T0")
    PLr = KQ
    pld = []
    E(f"s_and_b32 s21, s{sR}, 7")
    E(f"s_lshl_b32 s21, s21, 13")
    E(f"s_add_u32 s21, s21, s{sPL}")
    for r in range(16):
        pld.append(f"s_xor_b32 s9, s21, {G.P_PITCH*r}")
        pld.append(f"buffer_load_dwordx4 {v(PLr[r],4)}, v{vPi}, s[{rWS}:{rWS+3}], s9 offen sc1")
    pg = [("group", [pld[2*r], ("tag", pld[2*r+1], "part")]) for r in range(16)]
    E(merge(smq[10:-40], [wo_ld(i) for i in range(NW1, NW2)]))
    E(G.sflag_loads(sFP, 1, 4, SFL))
    E(smq[-40:])
    ok1 = newlabel("f1ok")
    E.wait_lg()
    E(G.sflag_check(4, SFL))
    E(f"s_cbranch_scc0 {ok1}")
    G.sflag_wait(E, sFP, 1, 4, SFL)
    E.label(ok1)
    E("s_barrier")
    ST(E, "f1ok")
    E(pg)
    ST(E, "phiq")
    RD_ = WF
    vCk = MP
    def reduce_items():
        L = []
        for r in range(16):
            d = v(RD_, 16); p = PLr[r]
            L.append(f"{M32} {d}, {v(ID,4)}, {v(p,4)}, {d if r else 0}")
            L.append(f"v_max3_u32 v{vCk}, v{p}, v{p+1}, {'v%d' % vCk if r else 0}")
            L.append(f"v_max3_u32 v{vCk}, v{p+2}, v{p+3}, v{vCk}")
        L.append(f"v_cmp_eq_u32 vcc, -1, v{vCk}")
        return L
    def retry(loads, check):
        ok = newlabel("rok"); sp = newlabel("rsp")
        E(f"s_cbranch_vccz {ok}")
        E.raw("    s_mov_b32 s13, 0")
        E.label(sp)
        for t in ["s_sleep 2"] + loads + ["s_add_u32 s13, s13, 1", f"s_cmp_gt_u32 s13, {G.SPIN_MAX}", f"s_cbranch_scc1 {ok}", "s_waitcnt vmcnt(0)"] + check + [f"s_cbranch_vccnz {sp}"]:
            E.raw("    " + t)
        E.label(ok)
    E(reduce_items())
    retry(pld, reduce_items())
    ST(E, "part")
    SM = WF + 16
    for e in range(4): E(f"v_cvt_pk_bf16_f32 v{SM+e}, v{RD_+2*e}, v{RD_+2*e+1}")
    E(f"ds_write_b128 v{vPi}, {v(SM,4)} offset:{KVT}")
    E.wait_lg()
    E("s_barrier")
    OD = WF
    AF = PF
    fo = [(c, t) for c in range(5) for t in (1, 0)]
    for i, (c, t) in enumerate(fo): E(f"ds_read_b128 {v(AF+4*i,4)}, v{vKa} offset:{384*c + 256*t}")
    sTile = [72, 73, 74, 75]
    vOk = [vPk, vS1, vS2, vPi, vMn]
    pre = []
    for i in range(4):
        pre += [("group", [f"s_add_u32 s9, s22, {i+1}", f"s_and_b32 s9, s9, 3", f"s_mul_i32 s{sTile[i]}, s9, 20480", f"s_add_u32 s{sTile[i]}, s{sTile[i]}, s{sOL}",
                f"s_cmp_ge_u32 s9, 2", f"s_cselect_b32 s8, 18432, 0", f"s_mul_i32 s9, s9, 15360", f"s_add_u32 s9, s9, s8",
                f"v_add_u32 v{vXrs[i]}, s9, v{vL16}"])]
    pre += [("group", [f"v_add_u32 v{vOk[k]}, s{sKo[k]}, v{vL16}" for k in range(5)])]
    om = []
    for i, (c, t) in enumerate(fo):
        d = v(OD + 16 * t, 16)
        om.append(f"{M32} {d}, {v(AF+4*i,4)}, {v(PH+4*c,4)}, {d if c else 0}")
    E(merge(om, pre))
    E(f"v_add_f32 v{MP}, {f32(1e-6)}, v{OD+20}")
    E(f"v_rcp_f32 v{MP}, v{MP}")
    OP = TM + 20
    for i in (8, 9, 0, 1, 2, 3, 4, 5, 6, 7):
        E(f"v_mul_f32 v{OD+2*i}, v{MP}, v{OD+2*i}"); E(f"v_mul_f32 v{OD+2*i+1}, v{MP}, v{OD+2*i+1}")
        E(f"v_cvt_pk_bf16_f32 v{OP+i}, v{OD+2*i}, v{OD+2*i+1}")
        E(f"v_min_u32 v{OP+i}, -2, v{OP+i}")
        if i == 0:
            E(f"v_permlane32_swap_b32 v{OP+8}, v{OP+10}"); E(f"v_permlane32_swap_b32 v{OP+9}, v{OP+11}")
            E(f"buffer_store_dwordx4 {v(OP+8,4)}, v{vO3}, s[{rWS}:{rWS+3}], s{sOS} offen offset:512 sc1")
        if i == 3: E(f"buffer_store_dwordx4 {v(OP,4)}, v{vO1}, s[{rWS}:{rWS+3}], s{sOS} offen sc1")
    E(f"buffer_store_dwordx4 {v(OP+4,4)}, v{vO1}, s[{rWS}:{rWS+3}], s{sOS} offen offset:256 sc1")
    push(f"s_cmp_lg_u32 s{sH}, 0", 0xff, sF2)
    ST(E, "opub")
    for i in range(NW2, 25): E(wo_ld(i))
    OFr = [PF + 4 * i for i in range(12)] + [WF + 4 * i for i in range(8)]
    OA = [[XF + 4 * T for T in range(5)], [TM + 12 + 4 * T for T in range(5)]]
    G.sflag_wait(E, sFO, 1, 4, SFL)
    ST(E, "f2ok")
    def o_ld(i):
        return [f"buffer_load_dwordx4 {v(OFr[5*i+k],4)}, v{vOk[k]}, s[{rWS}:{rWS+3}], s{sTile[i]} offen sc1" for k in range(5)]
    for i in range(4):
        for t in o_ld(i): E(t, tag=f"of{i}")
    ST(E, "oreq")
    pend = []
    for i in range(4):
        rg = [OFr[5 * i + k] + e for k in range(5) for e in range(4)]
        chk = [f"v_max_u32 v{MP}, v{rg[0]}, v{rg[1]}"] + [f"v_max3_u32 v{MP}, v{MP}, v{rg[e]}, v{rg[e+1]}" for e in range(2, 20, 2)] + [f"v_cmp_eq_u32 vcc, -1, v{MP}"]
        E(chk)
        retry(sum([o_ld(k) for k in range(i, 4)], []), chk)
        if i == 0: ST(E, "ofr")
        M = []
        for k in range(5):
            for T in range(5):
                d = v(OA[i % 2][T], 4)
                M.append(f"{M16} {d}, {v(WOr[5*k+T],4)}, {v(OFr[5*i+k],4)}, {d if k else 0}")
        E(M[:6]); E(merge(M[6:], pend))
        pend = [f"ds_write_b128 v{vXrs[i]}, {v(OA[i%2][T],4)} offset:{5120*i + 1024*T}" for T in range(5)] if i < 3 else []
    ST(E, "ogemm")
    E.wait_lg()
    E("s_barrier")
    RR = ACC
    for j in range(3):
        for T in range(5): E(f"ds_read_b128 {v(RR+20*j+4*T,4)}, v{vXrs[3]} offset:{5120*j + 1024*T}")
    RP = PF
    for j in range(3):
        for T in range(5):
            for e in range(4): E(f"v_add_f32 v{OA[1][T]+e}, v{OA[1][T]+e}, v{RR+20*j+4*T+e}")
            if j == 2:
                E(f"v_cvt_pk_bf16_f32 v{RP+2*T}, v{OA[1][T]}, v{OA[1][T]+1}")
                E(f"v_cvt_pk_bf16_f32 v{RP+2*T+1}, v{OA[1][T]+2}, v{OA[1][T]+3}")
                E(f"ds_write_b64 v{vRw}, {v(RP+2*T,2)} offset:{8*T}")
    E(f"v_add_u32 v{vPk}, s93, v{vL16}")
    for m in range(3): E(f"ds_read_b128 {v(RP+12+4*m,4)}, v{vPk} offset:{30720 + 1024*m}")
    for m in range(3):
        if m == 2: E("s_mov_b32 exec_hi, 0")
        E(f"buffer_store_dwordx4 {v(RP+12+4*m,4)}, v{vSo[m]}, s[{rOUT}:{rOUT+3}], s{sOUT} offen {G.OUTA}")
    skip = newlabel("nozero")
    E(f"s_or_b32 s9, s{sW}, s{sCT}")
    E(f"s_cbranch_scc1 {skip}")
    E("s_mov_b64 exec, 1")
    E(f"s_lshl_b32 s9, s{sTBo}, 3")
    E(f"v_mov_b32 v{MP}, 0")
    E.raw(f"    buffer_store_dword v{MP}, off, s[{rDBG}:{rDBG+3}], s9 sc1")
    E.label(skip)
    E("s_mov_b64 exec, -1")
    if G.PROFILE:
        E.wait_vm()
        ST(E, "end")
    PAD = [a[6:] for a in sys.argv if a.startswith("--pad=")]
    if PAD:
        E.label("L_pad")
        for t in ["s_memrealtime s[14:15]", "s_waitcnt lgkmcnt(0)", f"s_sub_u32 s14, s14, s{sN}", f"s_cmp_lt_u32 s14, {PAD[0]}", "s_cbranch_scc1 L_pad"]: E.raw("    " + t)
    ST.dump(E, sW, RP + 40)
    E("s_endpgm")
    return ST
```

```python
import math, sys
from asmlib import *

TA = [[(0, 0), (0, 2), (0, 4), (1, 4)], [(0, 1), (0, 3), (1, 3), (2, 3)], [(1, 0), (1, 2), (2, 2), (2, 4)], [(1, 1), (2, 0), (2, 1), None]]
M16 = "v_mfma_f32_16x16x32_bf16"; M32 = "v_mfma_f32_32x32x16_bf16"

def div_const(dst, src, d):
    return [f"v_mul_u32_u24 v{dst}, {(65536 + d - 1)//d}, v{src}", f"v_lshrrev_b32 v{dst}, 16, v{dst}"]

def put_flag(E, G, sW, vNon, saddr):
    skip = G.newlabel("nofl")
    E(f"s_cmp_lg_u32 s{sW}, 0")
    E(f"s_cbranch_scc1 {skip}")
    E("s_mov_b64 exec, 1")
    E.raw(f"    buffer_store_dword v{vNon}, off, s[{G.rWS}:{G.rWS+3}], s{saddr} sc1")
    E("s_mov_b64 exec, -1")
    E.label(skip)

def flag_addr(dst, idx, base, t):
    return [f"s_lshr_b32 s{dst}, s{idx}, 3", f"s_lshl_b32 s{dst}, s{dst}, 7", f"s_and_b32 s{t}, s{idx}, 7", f"s_lshl_b32 s{t}, s{t}, 2",
            f"s_add_u32 s{dst}, s{dst}, s{t}", f"s_add_u32 s{dst}, s{dst}, {base}"]

def piece_voff(E, vL, dst, t, pitch):
    for m in range(3):
        if m: E(f"v_add_u32 v{t}, {64*m}, v{vL}")
        ci = t if m else vL
        E(div_const(t + 1, ci, 20))
        E(f"v_mul_u32_u24 v{t+1}, {pitch - 320}, v{t+1}")
        E(f"v_lshl_add_u32 v{dst[m]}, v{vL}, 4, v{t+1}")

def gen_C(E, G):
    rWS, rDBG, rWO = G.rWS, G.rDBG, G.rWO
    G.fresh(E)
    sW, sU = 76, 77
    vL, vo, t, vT, vS, D, vNon = 1, [2, 3, 4], 6, [8, 9, 10], [11, 12, 13], 16, 14
    E(f"v_and_b32 v{vL}, 63, v0")
    E(f"v_lshrrev_b32 v{t}, 6, v0")
    E(f"s_sub_u32 s{sU}, s2, {G.NB + G.NA}")
    E(f"v_readfirstlane_b32 s{sW}, v{t}")
    piece_voff(E, vL, vo, t, 1280)
    E(f"s_mul_i32 s4, s{sU}, {8*1280}")
    E(f"s_mul_i32 s5, s{sW}, 320")
    E(f"s_add_u32 s4, s4, s5")
    E(f"s_lshl_b32 s6, s{sW}, 12")
    E(f"s_mov_b32 m0, s6")
    E.wait_lg()
    G.srd(E, rWO, G.pWO, 819200)
    for m in range(3):
        if m == 2: E("s_mov_b32 exec_hi, 0")
        E(f"buffer_load_dwordx4 v{vo[m]}, s[{rWO}:{rWO+3}], s4 offen offset:{1024*m} lds")
    E("s_mov_b64 exec, -1")
    G.srd(E, rWS, G.pWS, G.WS_SIZE)
    G.srd(E, rDBG, G.pDBG, 256)
    for m in range(3):
        E(f"v_lshrrev_b32 v{t}, 4, v{vL}")
        E(f"v_add_u32 v{t}, {4*m}, v{t}")
        E(f"v_min_u32 v{t}, 9, v{t}")
        E(f"v_cmp_lt_u32 vcc, 4, v{t}")
        E(f"v_lshlrev_b32 v{vT[m]}, 3, v{t}")
        E(f"v_add_u32 v{t+1}, 120, v{vT[m]}")
        E(f"v_cndmask_b32 v{vT[m]}, v{vT[m]}, v{t+1}, vcc")
        E(f"v_lshlrev_b32 v{vS[m]}, 10, v{t}")
        E(f"v_add_u32 v{t+1}, {95*1024}, v{vS[m]}")
        E(f"v_cndmask_b32 v{vS[m]}, v{vS[m]}, v{t+1}, vcc")
        E(f"v_and_b32 v{t}, 3, v{vL}")
        E(f"v_mul_u32_u24 v{t}, 40, v{t}")
        E(f"v_bfe_u32 v{t+1}, v{vL}, 2, 2")
        E(f"v_mul_u32_u24 v{t+1}, 320, v{t+1}")
        E(f"v_add3_u32 v{vT[m]}, v{vT[m]}, v{t}, v{t+1}")
        E(f"v_add_u32 v{vT[m]}, s6, v{vT[m]}")
        E(f"v_and_b32 v{t}, 15, v{vL}")
        E(f"v_lshl_add_u32 v{vS[m]}, v{t}, 4, v{vS[m]}")
    E(f"s_mul_i32 s4, s{sW}, {200*1024}")
    E(f"s_lshr_b32 s5, s{sU}, 2")
    E(f"s_mul_i32 s5, s5, 5120")
    E(f"s_add_u32 s4, s4, s5")
    E(f"s_and_b32 s5, s{sU}, 3")
    E(f"s_lshl_b32 s5, s5, 8")
    E(f"s_add_u32 s4, s4, s5")
    E(f"s_add_u32 s4, s4, {G.PWO_BASE}")
    E(flag_addr(7, sU, G.FLAGC_BASE, 5))
    E.wait_vm()
    for m in range(3):
        for a in range(2): E(f"ds_read_b64_tr_b16 {v(D+4*m+2*a,2)}, v{vT[m]} offset:{1280*a}")
    for m in range(3):
        if m == 2:
            E.wait_lg()
            E("s_mov_b32 exec_hi, 0")
        E(f"buffer_store_dwordx4 {v(D+4*m,4)}, v{vS[m]}, s[{rWS}:{rWS+3}], s4 offen sc1")
    E("s_mov_b64 exec, -1")
    nld = G.nonce_load(E, vNon)
    G.nonce_get(E, nld, vNon)
    E.wait_vm()
    E("s_barrier")
    put_flag(E, G, sW, vNon, 7)
    E("s_endpgm")

def gen_A(E, G):
    f32, Alloc, srd, spin, newlabel = G.f32, G.Alloc, G.srd, G.spin, G.newlabel
    rWS, rOUT, rDBG, rIN, rW, rPHI = G.rWS, G.rOUT, G.rDBG, G.rIN, G.rW, G.rPHI
    sN = G.sN
    G.fresh(E)
    ST = G.Stamps(24)
    sW, sR, sP, sPQ, sTBo, sCT, sROT = 76, 77, 78, 79, 80, 81, 82
    sT0, sT1, sT2 = 4, 5, 6
    sWO, sXO, sWE, sXE = 84, 85, 86, 87
    sW4, sXR, sH, sFT = 88, 89, 90, 91
    sPS, sOS, sFO, sPL, sOL, sWL, sFC, sOUT, sFP, sF1, sF2 = 96, 97, 98, 99, 100, 101, 45, 46, 92, 47, 3
    XR = 49152
    TAB = 36864; ZTAB = TAB + 3200; KVT = 45056; ZKV = ZTAB
    def wslot(sig): return 16384 * ((sig + 1) % 3)
    E(f"s_setprio {G.APRIO}")
    A = Alloc(1, 256)
    vL = A(); vHH = A(); vL16 = A()
    ACC = A(64, 4)
    WF = A(32, 4)
    XF = A(32, 4)
    PF = A(48, 4)
    TM = A(36, 4)
    ID = A(4, 4)
    vXo = [A() for _ in range(4)]
    vWo = [A() for _ in range(4)]
    vWt = [A() for _ in range(4)]
    vXrs = [A() for _ in range(4)]
    MP = A(); vMn = A(); vNon = A()
    vPk = A(); vVw = A(); vA = A(); vB = A(); vS1 = A(); vS2 = A(); vPi = A(); vKa = A(); vO1 = A(); vO3 = A(); vC4 = A()
    vRw = A(); vSo = [A() for _ in range(3)]
    vFl = A(); vFc = A()
    vt = [TM + 20 + i for i in range(12)]
    vG, vC, vGam, vR4 = vt[8], vt[9], vt[10], vt[11]
    E(f"v_and_b32 v{vL}, 63, v0")
    E(f"v_lshrrev_b32 v{vt[0]}, 6, v0")
    E(f"v_lshrrev_b32 v{vG}, 4, v{vL}")
    E(f"v_readfirstlane_b32 s{sW}, v{vt[0]}")
    sV, sX, sCL = 7, 8, 11
    E(f"s_getreg_b32 s{sX}, hwreg(HW_REG_XCC_ID)")
    E(f"s_lshr_b32 s{sT0}, s2, 3")
    E(f"s_xor_b32 s{sROT}, s{sT0}, s2")
    E(f"s_and_b32 s{sROT}, s{sROT}, 7")
    E(f"s_lshr_b32 s{sT0}, s2, 6")
    E(f"s_mul_i32 s{sT0}, s{sT0}, 3")
    E(f"s_add_u32 s{sROT}, s{sROT}, s{sT0}")
    E(f"s_sub_u32 s{sT0}, s{sROT}, 10")
    E(f"s_cmp_ge_u32 s{sROT}, 10")
    E(f"s_cselect_b32 s{sROT}, s{sT0}, s{sROT}")
    E(f"s_and_b32 s{sX}, s{sX}, {0 if '--die0' in sys.argv else 7}")
    E(f"s_lshl_b32 s{sW4}, s{sW}, 12")
    vWb = [ACC + m for m in range(4)]; vMk = [ACC + 4 + m for m in range(4)]
    for m in range(4):
        if m: E(f"v_add_u32 v{vt[0]}, {64*m}, v{vL}")
        ci = vt[0] if m else vL
        if m == 3: E(f"v_min_u32 v{vt[0]}, 239, v{vt[0]}")
        E(f"v_mul_u32_u24 v{vt[1]}, 0x1112, v{ci}")
        E(f"v_lshrrev_b32 v{vt[1]}, 16, v{vt[1]}")
        E(f"v_mul_u32_u24 v{vt[2]}, 15, v{vt[1]}")
        E(f"v_sub_u32 v{vt[2]}, v{ci}, v{vt[2]}")
        E(f"v_and_b32 v{vt[3]}, 3, v{vt[1]}")
        E(f"v_lshrrev_b32 v{vt[1]}, 2, v{vt[1]}")
        E(f"v_lshl_add_u32 v{vt[1]}, v{vt[3]}, 2, v{vt[1]}")
        E(f"v_mul_u32_u24 v{vt[3]}, 52, v{vt[2]}")
        E(f"v_lshrrev_b32 v{vt[3]}, 8, v{vt[3]}")
        E(f"v_mul_u32_u24 v{vt[1]}, 3840, v{vt[1]}")
        E(f"v_lshl_add_u32 v{vt[1]}, v{vt[2]}, 4, v{vt[1]}")
        E(f"v_min_u32 v{vMk[m]}, 1, v{vt[3]}")
        E(f"v_mul_u32_u24 v{vt[3]}, 1200, v{vt[3]}")
        E(f"v_add3_u32 v{vWb[m]}, v{vt[1]}, v{vt[3]}, s{sT0}".replace(f"s{sT0}", "0") if False else f"v_add_u32 v{vt[1]}, v{vt[1]}, v{vt[3]}")
        E(f"v_add_u32 v{vWb[m]}, {3072 - 1024*m}, v{vt[1]}")
    E.wait_lg()
    ST(E, "start")
    E(f"s_lshr_b32 s{sCL}, s2, 6")
    skip = newlabel("notick")
    E(f"s_lshl_b32 s12, s{sX}, 2")
    E(f"s_add_u32 s12, s12, s{sCL}")
    E(f"s_lshl_b32 s12, s12, 3")
    E(f"s_mov_b32 s{sV}, 1")
    E(f"s_cmp_lg_u32 s{sW}, 0")
    E(f"s_cbranch_scc1 {skip}")
    E.raw(f"    s_atomic_add s{sV}, s[{G.pDBG}:{G.pDBG+1}], s12 glc")
    E.label(skip)
    E(f"s_sub_u32 s{G.pW}, s{G.pW}, 3072")
    E(f"s_subb_u32 s{G.pW+1}, s{G.pW+1}, 0")
    srd(E, rW, G.pW, 2457600 + 3072)
    def dmaW(sig):
        L = []
        for m in range(4):
            g = []
            if m == 0: g.append(f"s_add_u32 m0, s{sW4}, {wslot(sig)}")
            g.append(("tag", f"buffer_load_dwordx4 v{vWo[m]}, s[{rW}:{rW+3}], s{sWO} offen offset:{1024*m} lds", f"S{sig}"))
            if m == 3: g += [f"s_add_u32 s{sWO}, s{sWO}, {64*3840}", f"s_cmp_ge_u32 s{sWO}, s{sWE}", f"s_cselect_b32 s9, {640*3840}, 0", f"s_sub_u32 s{sWO}, s{sWO}, s9"]
            L.append(("group", g))
        return L
    def dmaX(sig):
        L = []
        for i in range(4):
            g = []
            if i == 0: g.append(f"s_add_u32 m0, s{sXR}, {4096*(sig%2)}")
            g.append(("tag", f"buffer_load_dwordx4 v{vXo[i]}, s[{rIN}:{rIN+3}], s{sXO} offen offset:{1024*i} lds", f"S{sig}"))
            if i == 3: g += [f"s_add_u32 s{sXO}, s{sXO}, 128", f"s_cmp_ge_u32 s{sXO}, s{sXE}", f"s_cselect_b32 s9, 1280, 0", f"s_sub_u32 s{sXO}, s{sXO}, s9"]
            L.append(("group", g))
        return L
    def start_w():
        L = [f"s_lshr_b32 s{sT0}, s{sX}, 1", f"s_lshr_b32 s{sT1}, s{sCL}, 1", f"s_xor_b32 s{sT1}, s{sT1}, s{sT0}", f"s_and_b32 s{sT1}, s{sT1}, 1",
             f"s_lshl_b32 s{sP}, s{sT0}, 2", f"s_add_u32 s{sP}, s{sP}, s{sT1}", f"s_and_b32 s{sT0}, s{sCL}, 1", f"s_lshl_b32 s{sT0}, s{sT0}, 1", f"s_add_u32 s{sP}, s{sP}, s{sT0}",
             f"s_xor_b32 s{sPQ}, s{sP}, 1", f"s_mul_i32 s{sT1}, s{sT1}, 160", f"s_sub_u32 s{sT1}, s{sT1}, 80",
             f"s_mul_i32 s{sT0}, s{sPQ}, 80", f"s_mul_i32 s{sWE}, s{sW}, {16*3840}", f"s_add_u32 s{sWE}, s{sWE}, s{sT0}",
             f"s_mul_i32 s{sWO}, s{sROT}, {64*3840}", f"s_add_u32 s{sWO}, s{sWO}, s{sWE}", f"s_add_u32 s{sWE}, s{sWE}, {640*3840}"]
        L += [f"v_mad_i32_i24 v{vWo[m]}, v{vMk[m]}, s{sT1}, v{vWb[m]}" for m in range(4)]
        return L + dmaW(0) + dmaW(1)
    E(start_w())
    srd(E, rIN, G.pX, 2621440)
    E(f"v_lshrrev_b32 v{vt[0]}, 3, v{vL}")
    E(f"v_and_b32 v{vt[1]}, 7, v{vL}")
    E(f"v_xor_b32 v{vt[1]}, v{vt[1]}, v{vG}")
    E(f"v_mul_u32_u24 v{vt[0]}, 1280, v{vt[0]}")
    E(f"v_lshl_add_u32 v{vXo[0]}, v{vt[1]}, 4, v{vt[0]}")
    E(f"v_xor_b32 v{vXo[1]}, 64, v{vXo[0]}")
    E(f"v_add_u32 v{vXo[2]}, {2*(8*1280-1024)}, v{vXo[0]}")
    E(f"v_add_u32 v{vXo[3]}, {3*(8*1280-1024)}, v{vXo[1]}")
    E(f"v_add_u32 v{vXo[1]}, {1*(8*1280-1024)}, v{vXo[1]}")
    E(f"s_lshl_b32 s{sXR}, s{sW}, 13")
    E(f"s_add_u32 s{sXR}, s{sXR}, {XR}")
    skip = newlabel("notick"); again = newlabel("again"); got = newlabel("got"); same = newlabel("same")
    E(f"s_cmp_lg_u32 s{sW}, 0")
    E(f"s_cbranch_scc1 {skip}")
    E.raw("    s_mov_b32 s13, 0")
    E.label(again)
    for t in ["s_waitcnt lgkmcnt(0)", f"s_cmp_lt_u32 s{sV}, 8", f"s_cbranch_scc1 {got}",
              "s_add_u32 s13, s13, 1", "s_cmp_gt_u32 s13, 7", f"s_cbranch_scc1 {got}",
              "s_add_u32 s12, s12, 32", "s_and_b32 s12, s12, 255", f"s_mov_b32 s{sV}, 1",
              f"s_atomic_add s{sV}, s[{G.pDBG}:{G.pDBG+1}], s12 glc", f"s_branch {again}"]:
        E.raw("    " + t)
    E.label(got)
    for t in [f"s_and_b32 s{sV}, s{sV}, 7", f"s_and_b32 s12, s12, 0xe0", f"s_add_u32 s{sV}, s{sV}, s12", f"v_mov_b32 v{vt[0]}, s{sV}", f"v_and_b32 v{vt[1]}, 3, v{vL}",
              f"v_lshlrev_b32 v{vt[1]}, 13, v{vt[1]}", f"ds_write_b32 v{vt[1]}, v{vt[0]} offset:{XR}", "s_waitcnt lgkmcnt(0)"]:
        E.raw("    " + t)
    E.label(skip)
    E(f"v_mov_b32 v{vt[1]}, s{sXR}")
    E("s_barrier")
    E(f"ds_read_b32 v{vt[0]}, v{vt[1]}")
    E(f"v_readfirstlane_b32 s{sV}, v{vt[0]}")
    E(f"s_lshr_b32 s{sT0}, s{sV}, 5")
    E(f"s_and_b32 s{sCT}, s{sV}, 7")
    E(f"s_cmp_eq_u32 s{sT0}, s{sX}")
    E(f"s_cbranch_scc1 {same}")
    import copy
    saved = copy.deepcopy((E.vmq, E.lgq))
    E(f"s_mov_b32 s{sX}, s{sT0}")
    E.wait_vm()
    E(start_w())
    E.vmq, E.lgq = saved
    E.label(same)
    ST(E, "tile")
    E(f"s_and_b32 s{sR}, s{sX}, 1")
    E(f"s_lshl_b32 s{sR}, s{sR}, 3")
    E(f"s_add_u32 s{sR}, s{sR}, s{sCT}")
    E(f"s_lshl_b32 s{sXE}, s{sR}, 2")
    E(f"s_add_u32 s{sXE}, s{sXE}, s{sW}")
    E(f"s_mul_i32 s{sXE}, s{sXE}, {32*1280}")
    E(f"s_lshl_b32 s{sXO}, s{sROT}, 7")
    E(f"s_add_u32 s{sXO}, s{sXO}, s{sXE}")
    E(f"s_add_u32 s{sXE}, s{sXE}, 1280")
    E(dmaX(0)); E(dmaX(1))
    E(f"s_lshl_b32 s{sTBo}, s{sX}, 2")
    E(f"s_add_u32 s{sTBo}, s{sTBo}, s{sCL}")
    srd(E, rPHI, G.pPHI, 25600)
    vPhi = TM + 18
    E(f"v_lshlrev_b32 v{vPhi}, 4, v0")
    E(f"v_cmp_gt_u32 vcc, 200, v0")
    E(f"v_mov_b32 v{vPhi+1}, 0x100000")
    E(f"s_lshr_b32 s{sT0}, s{sP}, 1")
    E(f"s_mul_i32 s{sT0}, s{sT0}, 3200")
    E(f"v_cndmask_b32 v{vPhi+1}, v{vPhi+1}, v{vPhi}, vcc")
    E(f"buffer_load_dwordx4 {v(TM,4)}, v{vPhi+1}, s[{rPHI}:{rPHI+3}], s{sT0} offen")
    srd(E, rWS, G.pWS, G.WS_SIZE)
    PN = TM + 32
    for i in range(4): E(f"v_mov_b32 v{PN+i}, -1")
    E(f"v_lshlrev_b32 v{vL16}, 4, v{vL}")
    E(f"s_lshl_b32 s{sPL}, s{sPQ}, 16")
    E(f"s_add_u32 s{sPL}, s{sPL}, {G.P_BASE}")
    E(f"s_lshl_b32 s{sPS}, s{sP}, 4")
    E(f"s_add_u32 s{sPS}, s{sPS}, s{sR}")
    E(f"s_lshl_b32 s{sPS}, s{sPS}, 12")
    E(f"s_add_u32 s{sPS}, s{sPS}, {G.P_BASE}")
    E(f"s_lshl_b32 s{sT0}, s{sW}, 10")
    E(f"s_add_u32 s95, s{sT0}, s{sPS}")
    srd(E, rDBG, G.pDBG, 256)
    srd(E, rOUT, G.pOUT, 5242880)
    E(f"v_and_b32 v{vC}, 15, v{vL}")
    E(f"v_bfe_u32 v{vGam}, v{vL}, 4, 1")
    E(f"v_bfe_u32 v{vt[0]}, v{vL}, 1, 1")
    E(f"v_lshl_add_u32 v{vGam}, v{vGam}, 1, v{vt[0]}")
    E(f"v_bfe_u32 v{vR4}, v{vL}, 2, 2")
    E(f"v_lshrrev_b32 v{vHH}, 5, v{vL}")
    E(f"v_lshlrev_b32 v{vt[0]}, 3, v{vGam}")
    E(f"v_and_b32 v{vt[1]}, 1, v{vL}")
    E(f"v_mul_u32_u24 v{vt[1]}, 5, v{vt[1]}")
    E(f"v_lshl_add_u32 v{vt[2]}, v{vR4}, 1, v{vHH}")
    E(f"v_mul_u32_u24 v{vt[2]}, 480, v{vt[2]}")
    for T in range(4):
        pk = sum((30 if e is None else 10 * e[0] + e[1]) << (8 * i) for i, e in enumerate(TA[T]))
        E(f"s_mov_b32 s9, {pk}")
        E(f"v_bfe_u32 v{vt[3]}, s9, v{vt[0]}, 8")
        E(f"v_add_u32 v{vt[3]}, v{vt[3]}, v{vt[1]}")
        E(f"v_min_u32 v{vt[3]}, 31, v{vt[3]}")
        E(f"v_lshl_add_u32 v{vWt[T]}, v{vt[3]}, 3, v{vt[2]}")
    E(f"v_and_b32 v{vt[0]}, 31, v{vL}")
    E(f"v_bfe_u32 v{vt[1]}, v{vL}, 1, 3")
    E(f"v_xor_b32 v{vt[1]}, v{vt[1]}, v{vHH}")
    E(f"v_lshlrev_b32 v{vt[0]}, 7, v{vt[0]}")
    E(f"v_lshl_add_u32 v{vt[0]}, v{vt[1]}, 4, v{vt[0]}")
    for j in range(4):
        E(f"v_xor_b32 v{vXrs[j]}, {32*j}, v{vt[0]}")
        E(f"v_add_u32 v{vXrs[j]}, s{sXR}, v{vXrs[j]}")
    E(f"s_and_b32 s{sH}, s{sW}, 1")
    E(f"s_lshr_b32 s{sFT}, s{sW}, 1")
    E(f"s_mov_b32 s94, {f32(math.log2(math.e))}")
    vPa = [TM + 16, TM + 17]
    E(f"v_mul_u32_u24 v{vt[0]}, 800, v{vHH}")
    E(f"v_mul_u32_u24 v{vt[1]}, 40, v{vR4}")
    E(f"v_lshl_add_u32 v{vt[1]}, v{vGam}, 3, v{vt[1]}")
    E(f"v_and_b32 v{vt[2]}, 1, v{vL}")
    E(f"v_cmp_eq_u32 vcc, v{vt[2]}, v{vHH}")
    for i, sp in enumerate((sP, sPQ)):
        E(f"s_and_b32 s{sT0}, s{sp}, 1")
        E(f"s_mul_i32 s{sT0}, s{sT0}, 1600")
        E(f"v_add3_u32 v{vt[3]}, v{vt[0]}, v{vt[1]}, s{sT0}")
        E(f"v_mov_b32 v{vPa[i]}, 3200")
        E(f"v_cndmask_b32 v{vPa[i]}, v{vPa[i]}, v{vt[3]}, vcc")
    E(f"v_lshlrev_b32 v{vPhi+1}, 2, v0")
    E(f"v_mov_b32 v{TM+4}, 0")
    for i in range(2):
        for t in range(2):
            E(f"v_mov_b32 v{PF+24*i+16+4*t+2}, 0"); E(f"v_mov_b32 v{PF+24*i+16+4*t+3}, 0")
    E(f"v_mul_u32_u24 v{vPk}, 80, v{vL}")
    E(f"v_add_u32 v{vPk}, s{sXR}, v{vPk}")
    E(f"v_mul_u32_u24 v{vVw}, 48, v{vL}")
    E(f"v_add_u32 v{vVw}, s{sXR}, v{vVw}")
    E(f"v_lshl_add_u32 v{vt[0]}, v{vHH}, 3, v{vR4}")
    E(f"v_bfe_u32 v{vt[1]}, v{vL}, 4, 1")
    E(f"v_lshlrev_b32 v{vt[1]}, 2, v{vt[1]}")
    E(f"v_and_b32 v{vt[2]}, 1, v{vL}")
    E(f"v_lshl_add_u32 v{vt[2]}, v{vt[2]}, 1, v{vt[1]}")
    E(f"v_bfe_u32 v{vt[3]}, v{vL}, 1, 1")
    E(f"v_add_u32 v{vt[2]}, v{vt[2]}, v{vt[3]}")
    E(f"v_mul_u32_u24 v{vA}, 80, v{vt[0]}")
    E(f"v_lshl_add_u32 v{vA}, v{vt[2]}, 3, v{vA}")
    E(f"s_mul_i32 s{sT0}, s{sH}, 2560")
    E(f"s_lshl_b32 s{sT1}, s{sFT}, 6")
    E(f"s_add_u32 s{sT0}, s{sT0}, s{sT1}")
    E(f"s_add_u32 s{sT0}, s{sT0}, {XR}")
    E(f"v_add_u32 v{vA}, s{sT0}, v{vA}")
    E(f"v_and_b32 v{vt[2]}, 3, v{vL}")
    E(f"v_add_u32 v{vt[2]}, v{vt[2]}, v{vt[1]}")
    E(f"v_mul_u32_u24 v{vB}, 48, v{vt[0]}")
    E(f"v_lshl_add_u32 v{vB}, v{vt[2]}, 3, v{vB}")
    E(f"s_mul_i32 s{sT0}, s{sH}, 1536")
    E(f"s_add_u32 s{sT0}, s{sT0}, {XR+5120}")
    E(f"v_add_u32 v{vB}, s{sT0}, v{vB}")
    E(f"v_and_b32 v{vt[0]}, 31, v{vL}")
    E(f"s_lshl_b32 s{sT0}, s{sH}, 4")
    E(f"v_add_u32 v{vt[1]}, s{sT0}, v{vt[0]}")
    E(f"v_subrev_u32 v{vt[2]}, 20, v{vt[1]}")
    E(f"v_min_u32 v{vt[1]}, v{vt[1]}, v{vt[2]}")
    E(f"v_cmp_gt_u32 vcc, 20, v{vt[0]}")
    E(f"v_mov_b32 v{vt[3]}, 0x4000000")
    E(f"v_cndmask_b32 v{vt[1]}, v{vt[0]}, v{vt[1]}, vcc")
    E(f"v_lshlrev_b32 v{vt[1]}, 4, v{vt[1]}")
    E(f"v_cmp_gt_u32 vcc, 24, v{vt[0]}")
    E(f"s_cmp_eq_u32 s{sFT}, 0")
    E(f"s_mov_b32 s9, 0x4000000")
    E(f"s_cselect_b32 s{sT0}, 384, s9")
    E(f"s_cselect_b32 s{sT1}, 768, s9")
    E(f"v_cndmask_b32 v{vt[1]}, v{vt[3]}, v{vt[1]}, vcc")
    E(f"v_mul_lo_u32 v{vS1}, v{vHH}, s{sT0}")
    E(f"v_add_u32 v{vS1}, v{vS1}, v{vt[1]}")
    E(f"v_add_u32 v{vS2}, s{sT1}, v{vS1}")
    E(f"s_mul_i32 s{sT0}, s{sH}, 1920")
    E(f"s_mul_i32 s{sT1}, s{sFT}, 1536")
    E(f"s_add_u32 s{sPS}, s{sPS}, s{sT0}")
    E(f"s_add_u32 s{sPS}, s{sPS}, s{sT1}")
    E(f"v_min_u32 v{vPi}, 239, v0")
    E(f"v_lshlrev_b32 v{vPi}, 4, v{vPi}")
    E(f"v_bfe_u32 v{vt[0]}, v{vL}, 3, 2")
    E(f"v_and_b32 v{vt[1]}, 3, v{vL}")
    E(f"v_lshl_add_u32 v{vt[0]}, v{vt[0]}, 2, v{vt[1]}")
    E(f"v_mul_u32_u24 v{vt[1]}, 1920, v{vHH}")
    E(f"v_lshl_add_u32 v{vt[2]}, v{vt[0]}, 4, v{vt[1]}")
    E(f"v_add_u32 v{vt[2]}, {KVT}, v{vt[2]}")
    E(f"v_bfe_u32 v{vt[1]}, v{vL}, 2, 1")
    E(f"v_cmp_eq_u32 vcc, v{vt[1]}, v{vHH}")
    E(f"v_mov_b32 v{vKa}, {ZKV}")
    E(f"v_cndmask_b32 v{vKa}, v{vKa}, v{vt[2]}, vcc")
    E(f"v_cndmask_b32 v{vt[0]}, 64, v{vt[0]}, vcc")
    E(f"v_and_b32 v{vt[1]}, 1, v{vt[0]}")
    E(f"v_lshlrev_b32 v{vt[1]}, 4, v{vt[1]}")
    E(f"v_mov_b32 v{vt[2]}, 0x3f80")
    E(f"v_lshlrev_b32 v{vt[1]}, v{vt[1]}, v{vt[2]}")
    E(f"v_lshrrev_b32 v{vt[0]}, 1, v{vt[0]}")
    for i in range(4):
        E(f"v_cmp_eq_u32 vcc, {i}, v{vt[0]}")
        E(f"v_cndmask_b32 v{ID+i}, 0, v{vt[1]}, vcc")
    E(f"v_and_b32 v{vt[1]}, 1, v{vG}")
    E(f"v_mul_u32_u24 v{vt[1]}, 20480, v{vt[1]}")
    E(f"v_lshl_add_u32 v{vt[1]}, v{vC}, 4, v{vt[1]}")
    E(f"v_mul_u32_u24 v{vO1}, 768, v{vHH}")
    E(f"v_add_u32 v{vO1}, v{vO1}, v{vt[1]}")
    E(f"v_lshl_add_u32 v{vO3}, v{vHH}, 26, v{vt[1]}")
    E(f"s_lshl_b32 s{sT0}, s{sR}, 2")
    E(f"s_add_u32 s{sT0}, s{sT0}, s{sW}")
    E(f"s_mul_i32 s{sT0}, s{sT0}, 40960")
    E(f"s_mul_i32 s{sT1}, s{sPQ}, 1280")
    E(f"s_add_u32 s{sT0}, s{sT0}, s{sT1}")
    E(f"s_add_u32 s{sOS}, s{sT0}, {G.O_BASE}")
    E(f"v_lshlrev_b32 v{vC4}, 2, v{vC}")
    E(f"s_lshl_b32 s{sFO}, s{sTBo}, 3")
    E(f"s_add_u32 s{sFO}, s{sFO}, s{sCT}")
    E(f"s_lshl_b32 s{sFO}, s{sFO}, 2")
    E(f"s_add_u32 s{sFO}, s{sFO}, s{sW}")
    E(f"s_lshl_b32 s{sFO}, s{sFO}, 7")
    E(f"s_add_u32 s{sFO}, s{sFO}, {G.FLAGO_BASE}")
    E(f"s_mul_i32 s{sOL}, s{sTBo}, 81920")
    E(f"s_mul_i32 s{sT0}, s{sW}, 5120")
    E(f"s_add_u32 s{sOL}, s{sOL}, s{sT0}")
    E(f"s_add_u32 s{sOL}, s{sOL}, {G.O_BASE}")
    E(f"s_lshl_b32 s{sWL}, s{sCT}, 2")
    E(f"s_add_u32 s{sWL}, s{sWL}, s{sW}")
    E(f"s_mul_i32 s{sWL}, s{sWL}, 25600")
    E(f"s_add_u32 s{sWL}, s{sWL}, {G.PWO_BASE}")
    E(f"v_mul_u32_u24 v{vRw}, 160, v{vC}")
    E(f"v_mul_u32_u24 v{vt[1]}, 40, v{vG}")
    E(f"s_mul_i32 s93, s{sW}, 2560")
    E(f"s_add_u32 s{sT0}, s93, 30720")
    E(f"v_add3_u32 v{vRw}, v{vRw}, v{vt[1]}, s{sT0}")
    for m in range(3):
        E(f"v_add_u32 v{vt[0]}, {64*m}, v{vL}")
        E(div_const(vt[1], vt[0], 10))
        E(f"v_mul_u32_u24 v{vt[1]}, 2400, v{vt[1]}")
        E(f"v_lshl_add_u32 v{vSo[m]}, v{vt[0]}, 4, v{vt[1]}")
    E(f"s_add_u32 s22, s{sW}, s{sCT}")
    E(f"s_and_b32 s22, s22, 3")
    E(f"s_lshl_b32 s{sOUT}, s{sTBo}, 2")
    E(f"s_add_u32 s{sOUT}, s{sOUT}, s22")
    E(f"s_mul_i32 s{sOUT}, s{sOUT}, {16*2560}")
    E(f"s_mul_i32 s{sT1}, s{sCT}, 160")
    E(f"s_add_u32 s{sOUT}, s{sOUT}, s{sT1}")
    E(f"s_lshl_b32 s{sF1}, s{sP}, 13")
    E(G.word_off(sF1, sR, 2, sT1))
    E(f"s_add_u32 s{sF1}, s{sF1}, {G.FLAGW_BASE}")
    E(f"s_lshl_b32 s{sFP}, s{sPQ}, 4")
    E(f"s_add_u32 s{sFP}, s{sFP}, s{sR}")
    E(f"s_lshl_b32 s{sFP}, s{sFP}, 9")
    E(f"s_add_u32 s{sFP}, s{sFP}, {G.FLAGW_BASE}")
    E(f"s_lshl_b32 s{sF2}, s{sR}, 1")
    E(f"s_add_u32 s{sF2}, s{sF2}, s{sFT}")
    E(f"s_lshl_b32 s{sF2}, s{sF2}, 12")
    E(G.word_off(sF2, sPQ, 2, sT1))
    E(f"s_add_u32 s{sF2}, s{sF2}, {G.FLAGO_BASE}")
    E(f"s_lshl_b32 s{sT1}, s{sW}, 7")
    E(f"s_add_u32 s{sFP}, s{sT1}, s{sFP}")
    for sa in (sFP, sFO): E(f"s_buffer_load_dword s23, s[{rWS}:{rWS+3}], s{sa} glc")
    vCo = TM + 15
    E(f"s_mul_i32 s{sT0}, s{sW}, 20")
    E(f"v_min_u32 v{vt[0]}, 19, v{vL}")
    E(f"v_add_u32 v{vt[0]}, s{sT0}, v{vt[0]}")
    E(f"v_lshrrev_b32 v{vt[1]}, 3, v{vt[0]}")
    E(f"v_and_b32 v{vt[0]}, 7, v{vt[0]}")
    E(f"v_lshlrev_b32 v{vt[0]}, 2, v{vt[0]}")
    E(f"v_lshl_add_u32 v{vCo}, v{vt[1]}, 7, v{vt[0]}")
    E(f"s_mov_b32 s{sFC}, {G.FLAGC_BASE}")
    GO = int(([a[5:] for a in sys.argv if a.startswith('--go=')] + ['4'])[0])
    E(f"s_lshl_b32 s39, s2, 7")
    E(f"s_add_u32 s39, s39, {G.FLAGG_BASE}")
    E(f"s_cmp_lg_u32 s{sW}, 0")
    E(f"s_cselect_b32 s39, {G.WS_SIZE}, s39")
    sWk = [16, 17, 18, 19, 20]; sKo = [40, 41, 42, 43, 44]
    E(f"s_and_b32 s{sT0}, s{sTBo}, 3")
    for k in range(5):
        E(f"s_lshl_b32 s{sKo[k]}, s{sT0}, 10")
        E(f"s_mul_i32 s{sWk[k]}, s{sT0}, 5120")
        E(f"s_add_u32 s{sWk[k]}, s{sWk[k]}, s{sWL}")
        if k < 4:
            E(f"s_add_u32 s{sT0}, s{sT0}, 1")
            E(f"s_cmp_eq_u32 s{sT0}, 5")
            E(f"s_cselect_b32 s{sT0}, 0, s{sT0}")

    def rdW(sig, ks):
        b = WF + 16 * (ks % 2)
        return [f"ds_read_b64_tr_b16 {v(b+4*T+2*a,2)}, v{vWt[T]} offset:{wslot(sig) + 4096*ks + 240*a}" for T in range(4) for a in range(2)]
    def rdX(sig):
        return [f"ds_read_b128 {v(XF+16*(sig%2)+4*j,4)}, v{vXrs[j]} offset:{4096*(sig%2)}" for j in range(4)]
    def mm(sig, ks):
        L = []
        for T in range(4):
            d = v(ACC + 16 * T, 16)
            if "--nomfma" in sys.argv:
                L.append(f"v_mov_b32 v{ACC+T}, v{WF+16*(ks%2)+4*T+3}"); continue
            if "--m16" in sys.argv:
                L.append(("group", [f"{M16} {v(ACC+16*T+4*(2*(ks%2)+e),4)}, {v(WF+16*(ks%2)+4*T,4)}, {v(XF+16*(sig%2)+4*((ks+e)%4),4)}, {v(ACC+16*T+4*(2*(ks%2)+e),4)}" for e in range(2)])); continue
            L.append(f"{M32} {d}, {v(WF+16*(ks%2)+4*T,4)}, {v(XF+16*(sig%2)+4*ks,4)}, {d if (sig or ks) else 0}")
        return L
    def weave(M, rd, vm):
        out = []
        n = (len(rd) + 2) // 3
        for i, x in enumerate(M):
            out.append(x)
            if i < 3: out += rd[n * i:n * (i + 1)]
            if i == 1 and len(vm) > 0: out.append(vm[0])
            if i == 3 and len(vm) > 1: out += vm[1:]
        return out
    wphi = [f"ds_write_b128 v{vPhi}, {v(TM,4)} offset:{TAB}", f"ds_write_b32 v{vPhi+1}, v{TM+4} offset:{TAB+4096}"]
    rphi = []
    for i in range(2):
        for c in range(3):
            for t in range(2):
                b = PF + 24 * i + 8 * c + 4 * t
                rphi.append(f"ds_read_b64_tr_b16 {v(b,2)}, v{vPa[i]} offset:{TAB + 320*c + 32*t}")
                if c < 2: rphi.append(f"ds_read_b64_tr_b16 {v(b+2,2)}, v{vPa[i]} offset:{TAB + 320*c + 160 + 32*t}")
    nld = f"buffer_load_dword v{vNon}, off, s[{rDBG}:{rDBG+3}], 0 offset:4 sc1"
    cld = f"buffer_load_dword v{vFc}, v{vCo}, s[{rWS}:{rWS+3}], s{sFC} offen sc1"
    opois = [f"buffer_store_dwordx4 {v(PN,4)}, v{vO1}, s[{rWS}:{rWS+3}], s{sOS} offen sc1",
             f"buffer_store_dwordx4 {v(PN,4)}, v{vO1}, s[{rWS}:{rWS+3}], s{sOS} offen offset:256 sc1",
             f"buffer_store_dwordx4 {v(PN,4)}, v{vO3}, s[{rWS}:{rWS+3}], s{sOS} offen offset:512 sc1"]
    allpois = [f"buffer_store_dwordx4 {v(PN,4)}, v{vL16}, s[{rWS}:{rWS+3}], s95 offen sc1"] + opois[:2] + [("tag", opois[2], "pois")]
    if "--earlypois" in sys.argv: E(allpois)
    E.wait_vm("S0")
    E("s_barrier")
    E(rdX(0)); E(rdW(0, 0))
    w2 = dmaW(2)
    E(w2[:2])
    pendW = w2[2:]
    for sig in range(10):
        xn = dmaX(sig + 2) if sig + 2 < 10 else []
        extra = [[], [], []]
        if sig == 8:
            extra = [wphi, [], []]
            pendW = [("tag", cld, "cfl")]
            if "--earlypois" not in sys.argv: xn = allpois
        if sig == 9:
            extra = [rphi[:7], rphi[7:14], rphi[14:]]
        if sig == GO: pendW = pendW + [f"buffer_store_dword v{vNon}, off, s[{rWS}:{rWS+3}], s39 sc1"]
        E(weave(mm(sig, 0), rdW(sig, 1) + extra[0], pendW))
        E(weave(mm(sig, 1), rdW(sig, 2) + extra[1], xn[:2]))
        E(weave(mm(sig, 2), rdW(sig, 3) + extra[2], xn[2:]))
        if sig < 9:
            E.wait_vm(f"S{sig+1}")
            if sig == GO - 1: G.snonce(E, vNon, issued=True)
            E.wait_lg()
            E("s_barrier")
            if sig == GO - 2: G.snonce_issue(E)
            wn = dmaW(sig + 3) if sig + 3 < 10 else []
            E(weave(mm(sig, 3), rdX(sig + 1)[:1] + rdW(sig + 1, 0) + rdX(sig + 1)[1:], wn[:2]))
            pendW = wn[2:]
        else:
            E(mm(sig, 3))
    ST(E, "gemm")
    if "--gemmonly" in sys.argv:
        ST.dump(E, sW, ACC)
        E("s_endpgm")
        return ST

    def acc(sec, j):
        for T in range(4):
            for g_, e in enumerate(TA[T]):
                if e == (sec, j): return ACC + 16 * T + 4 * g_
    QB = XF
    PD = WF
    EE = TM
    def pack(sec, dst):
        return [f"v_cvt_pk_bf16_f32 v{dst+2*j+e}, v{acc(sec,j)+2*e}, v{acc(sec,j)+2*e+1}" for j in range(5) for e in range(2)]
    def premm(qb, i):
        L = []
        for c in range(3):
            for t in range(2):
                d = v(PD + 16 * t, 16)
                L.append(f"{M32} {d}, {v(PF+24*i+8*c+4*t,4)}, {v(qb+4*c,4)}, {d if c else 0}")
        return L
    def softmax(out_plus, out_minus, after_plus):
        PP = PD
        mx, mn, m = MP, vMn, MP
        L = [f"v_max3_f32 v{mx}, v{PP}, v{PP+1}, v{PP+2}", f"v_min3_f32 v{mn}, v{PP}, v{PP+1}, v{PP+2}"]
        for i in range(3, 19, 2):
            L += [f"v_max3_f32 v{mx}, v{mx}, v{PP+i}, v{PP+i+1}", f"v_min3_f32 v{mn}, v{mn}, v{PP+i}, v{PP+i+1}"]
        L += [f"v_max_f32 v{mx}, v{mx}, v{PP+19}", f"v_min_f32 v{mn}, v{mn}, v{PP+19}"]
        for sgn, dst, src, outp in ((1, EE, mx, out_plus), (-1, PP, mn, out_minus)):
            L.append(f"v_mul_f32 v{m}, s94, v{src}")
            for i in range(20):
                L.append(f"v_fma_f32 v{dst+i}, v{PP+i}, s94, -v{m}" if sgn > 0 else f"v_fma_f32 v{dst+i}, -v{PP+i}, s94, v{m}")
            for i in range(20):
                L.append(f"v_exp_f32 v{dst+i}, v{dst+i}")
                if i == 2: L.append(f"v_add_f32 v{m}, v{dst}, v{dst+1}")
                if i > 2: L.append(f"v_add_f32 v{m}, v{m}, v{dst+i-1}")
            L += [f"v_add_f32 v{m}, v{m}, v{dst+19}", f"v_rcp_f32 v{m}, v{m}"]
            for i in range(10):
                L.append(f"v_mul_f32 v{dst+2*i}, v{m}, v{dst+2*i}")
                L.append(f"v_mul_f32 v{dst+2*i+1}, v{m}, v{dst+2*i+1}")
                L.append(f"v_cvt_pk_bf16_f32 v{outp+i}, v{dst+2*i}, v{dst+2*i+1}")
            if sgn > 0: L += after_plus
        return L
    E(f"v_mov_b32 v{QB+10}, 0"); E(f"v_mov_b32 v{QB+11}, 0")
    E(pack(1, QB))
    VP = XF + 12
    QB2 = TM + 20
    side = pack(2, VP) + [f"v_mov_b32 v{VP+10}, 0x3f80", f"v_mov_b32 v{VP+11}, 0"] + \
           [f"ds_write_b128 v{vVw}, {v(VP+4*i,4)} offset:{5120+16*i}" for i in range(3)] + \
           pack(0, QB2) + [f"v_mov_b32 v{QB2+10}, 0", f"v_mov_b32 v{QB2+11}, 0"]
    E(merge(premm(QB, 0), side[:15])); E(side[15:])
    spin(E, ["s_sleep 2", cld], [f"v_cmp_ne_u32 vcc, s{sN}, v{vFc}"], "cfl")
    WOr = [ACC + 4 * i for i in range(16)] + [vXo[0], vWo[0], vWt[0]] + [XF + 20 + 4 * i for i in range(3)] + [TM + 4 * i for i in range(3)]
    assert all(r % 4 == 0 for r in WOr)
    vL4k = vVw
    NW1, NW2 = [int(x) for x in ([a[5:] for a in sys.argv if a.startswith('--wo=')] + ['14,22'])[0].split(',')]
    E(f"v_add_u32 v{vL4k}, 4096, v{vL16}")
    def wo_ld(i):
        k, T = divmod(i, 5)
        return f"buffer_load_dwordx4 {v(WOr[i],4)}, v{vL16 if T < 4 else vL4k}, s[{rWS}:{rWS+3}], s{sWk[k]} offen offset:{1024*(T%4)} sc1"
    PHK = XF + 12
    smk = softmax(PHK, PHK + 10, [f"ds_write_b128 v{vPk}, {v(PHK,4)}", f"ds_write_b128 v{vPk}, {v(PHK+4,4)} offset:16"])
    E(merge(smk[:8*NW1], [wo_ld(i) for i in range(NW1)])); E(smk[8*NW1:])
    for i in range(2, 5): E(f"ds_write_b128 v{vPk}, {v(PHK+4*i,4)} offset:{16*i}")
    ST(E, "phik")
    E(premm(QB2, 1))
    E.wait_vm("pois")
    E.wait_lg()
    E("s_barrier")
    ST(E, "xbar")
    KQ = [PF + 4 * i for i in range(12)] + [TM + 20 + 4 * i for i in range(4)]
    KD = XF
    def rdk(i):
        j, k2 = divmod(i, 2)
        L = []
        for a in range(2):
            L.append(f"ds_read_b64_tr_b16 {v(KQ[2*i]+2*a,2)}, v{vA} offset:{8192*j + 80*(16*k2+4*a)}")
        for a in range(2):
            L.append(f"ds_read_b64_tr_b16 {v(KQ[2*i+1]+2*a,2)}, v{vB} offset:{8192*j + 48*(16*k2+4*a)}")
        return L
    E(rdk(0) + rdk(1) + rdk(2))
    for i in range(8):
        if i + 3 < 8: E(rdk(i + 3))
        d = v(KD, 16)
        E(f"{M32} {d}, {v(KQ[2*i],4)}, {v(KQ[2*i+1],4)}, {d if i else 0}")
    SFL = 60
    PH = XF
    smq = softmax(PH, PH + 10, [])
    E(smq[:10])
    KP = XF + 16
    for i in range(8):
        E(f"v_cvt_pk_bf16_f32 v{KP+i}, v{KD+2*i}, v{KD+2*i+1}")
        E(f"v_min_u32 v{KP+i}, -2, v{KP+i}")
        if i == 3: E(f"buffer_store_dwordx4 {v(KP,4)}, v{vS1}, s[{rWS}:{rWS+3}], s{sPS} offen sc1")
    E(f"buffer_store_dwordx4 {v(KP+4,4)}, v{vS2}, s[{rWS}:{rWS+3}], s{sPS} offen sc1")
    vPu = vA
    def push(cond, mask, saddr):
        skip = newlabel("nopush")
        E(cond)
        E(f"s_cbranch_scc1 {skip}")
        E(f"s_mov_b64 exec, {mask}")
        E.raw(f"    buffer_store_dword v{vNon}, v{vPu}, s[{rWS}:{rWS+3}], s{saddr} offen sc1")
        E("s_mov_b64 exec, -1")
        E.label(skip)
    E(f"v_lshlrev_b32 v{vPu}, 9, v{vL}")
    push(f"s_cmp_lg_u32 s{sW}, 0", 0xffff, sF1)
    ST(E, "T0")
    PLr = KQ
    pld = []
    E(f"s_and_b32 s21, s{sR}, 7")
    E(f"s_lshl_b32 s21, s21, 13")
    E(f"s_add_u32 s21, s21, s{sPL}")
    for r in range(16):
        pld.append(f"s_xor_b32 s9, s21, {G.P_PITCH*r}")
        pld.append(f"buffer_load_dwordx4 {v(PLr[r],4)}, v{vPi}, s[{rWS}:{rWS+3}], s9 offen sc1")
    pg = [("group", [pld[2*r], ("tag", pld[2*r+1], "part")]) for r in range(16)]
    E(merge(smq[10:-40], [wo_ld(i) for i in range(NW1, NW2)]))
    E(G.sflag_loads(sFP, 1, 4, SFL))
    E(smq[-40:])
    ok1 = newlabel("f1ok")
    E.wait_lg()
    E(G.sflag_check(4, SFL))
    E(f"s_cbranch_scc0 {ok1}")
    G.sflag_wait(E, sFP, 1, 4, SFL)
    E.label(ok1)
    E("s_barrier")
    ST(E, "f1ok")
    E(pg)
    ST(E, "phiq")
    RD_ = WF
    vCk = MP
    def reduce_items():
        L = []
        for r in range(16):
            d = v(RD_, 16); p = PLr[r]
            L.append(f"{M32} {d}, {v(ID,4)}, {v(p,4)}, {d if r else 0}")
            L.append(f"v_max3_u32 v{vCk}, v{p}, v{p+1}, {'v%d' % vCk if r else 0}")
            L.append(f"v_max3_u32 v{vCk}, v{p+2}, v{p+3}, v{vCk}")
        L.append(f"v_cmp_eq_u32 vcc, -1, v{vCk}")
        return L
    def retry(loads, check):
        ok = newlabel("rok"); sp = newlabel("rsp")
        E(f"s_cbranch_vccz {ok}")
        E.raw("    s_mov_b32 s13, 0")
        E.label(sp)
        for t in ["s_sleep 2"] + loads + ["s_add_u32 s13, s13, 1", f"s_cmp_gt_u32 s13, {G.SPIN_MAX}", f"s_cbranch_scc1 {ok}", "s_waitcnt vmcnt(0)"] + check + [f"s_cbranch_vccnz {sp}"]:
            E.raw("    " + t)
        E.label(ok)
    E(reduce_items())
    retry(pld, reduce_items())
    ST(E, "part")
    SM = WF + 16
    for e in range(4): E(f"v_cvt_pk_bf16_f32 v{SM+e}, v{RD_+2*e}, v{RD_+2*e+1}")
    E(f"ds_write_b128 v{vPi}, {v(SM,4)} offset:{KVT}")
    E.wait_lg()
    E("s_barrier")
    OD = WF
    AF = PF
    fo = [(c, t) for c in range(5) for t in (1, 0)]
    for i, (c, t) in enumerate(fo): E(f"ds_read_b128 {v(AF+4*i,4)}, v{vKa} offset:{384*c + 256*t}")
    sTile = [72, 73, 74, 75]
    vOk = [vPk, vS1, vS2, vPi, vMn]
    pre = []
    for i in range(4):
        pre += [("group", [f"s_add_u32 s9, s22, {i+1}", f"s_and_b32 s9, s9, 3", f"s_mul_i32 s{sTile[i]}, s9, 20480", f"s_add_u32 s{sTile[i]}, s{sTile[i]}, s{sOL}",
                f"s_cmp_ge_u32 s9, 2", f"s_cselect_b32 s8, 18432, 0", f"s_mul_i32 s9, s9, 15360", f"s_add_u32 s9, s9, s8",
                f"v_add_u32 v{vXrs[i]}, s9, v{vL16}"])]
    pre += [("group", [f"v_add_u32 v{vOk[k]}, s{sKo[k]}, v{vL16}" for k in range(5)])]
    om = []
    for i, (c, t) in enumerate(fo):
        d = v(OD + 16 * t, 16)
        om.append(f"{M32} {d}, {v(AF+4*i,4)}, {v(PH+4*c,4)}, {d if c else 0}")
    E(merge(om, pre))
    E(f"v_add_f32 v{MP}, {f32(1e-6)}, v{OD+20}")
    E(f"v_rcp_f32 v{MP}, v{MP}")
    OP = TM + 20
    for i in (8, 9, 0, 1, 2, 3, 4, 5, 6, 7):
        E(f"v_mul_f32 v{OD+2*i}, v{MP}, v{OD+2*i}"); E(f"v_mul_f32 v{OD+2*i+1}, v{MP}, v{OD+2*i+1}")
        E(f"v_cvt_pk_bf16_f32 v{OP+i}, v{OD+2*i}, v{OD+2*i+1}")
        E(f"v_min_u32 v{OP+i}, -2, v{OP+i}")
        if i == 0:
            E(f"v_permlane32_swap_b32 v{OP+8}, v{OP+10}"); E(f"v_permlane32_swap_b32 v{OP+9}, v{OP+11}")
            E(f"buffer_store_dwordx4 {v(OP+8,4)}, v{vO3}, s[{rWS}:{rWS+3}], s{sOS} offen offset:512 sc1")
        if i == 3: E(f"buffer_store_dwordx4 {v(OP,4)}, v{vO1}, s[{rWS}:{rWS+3}], s{sOS} offen sc1")
    E(f"buffer_store_dwordx4 {v(OP+4,4)}, v{vO1}, s[{rWS}:{rWS+3}], s{sOS} offen offset:256 sc1")
    push(f"s_cmp_lg_u32 s{sH}, 0", 0xff, sF2)
    ST(E, "opub")
    for i in range(NW2, 25): E(wo_ld(i))
    OFr = [PF + 4 * i for i in range(12)] + [WF + 4 * i for i in range(8)]
    OA = [[XF + 4 * T for T in range(5)], [TM + 12 + 4 * T for T in range(5)]]
    G.sflag_wait(E, sFO, 1, 4, SFL)
    ST(E, "f2ok")
    def o_ld(i):
        return [f"buffer_load_dwordx4 {v(OFr[5*i+k],4)}, v{vOk[k]}, s[{rWS}:{rWS+3}], s{sTile[i]} offen sc1" for k in range(5)]
    for i in range(4):
        for t in o_ld(i): E(t, tag=f"of{i}")
    pend = []
    for i in range(4):
        rg = [OFr[5 * i + k] + e for k in range(5) for e in range(4)]
        chk = [f"v_max_u32 v{MP}, v{rg[0]}, v{rg[1]}"] + [f"v_max3_u32 v{MP}, v{MP}, v{rg[e]}, v{rg[e+1]}" for e in range(2, 20, 2)] + [f"v_cmp_eq_u32 vcc, -1, v{MP}"]
        E(chk)
        retry(sum([o_ld(k) for k in range(i, 4)], []), chk)
        if i == 0: ST(E, "ofr")
        M = []
        for k in range(5):
            for T in range(5):
                d = v(OA[i % 2][T], 4)
                M.append(f"{M16} {d}, {v(WOr[5*k+T],4)}, {v(OFr[5*i+k],4)}, {d if k else 0}")
        E(M[:6]); E(merge(M[6:], pend))
        pend = [f"ds_write_b128 v{vXrs[i]}, {v(OA[i%2][T],4)} offset:{5120*i + 1024*T}" for T in range(5)] if i < 3 else []
    ST(E, "ogemm")
    E.wait_lg()
    E("s_barrier")
    RR = ACC
    for j in range(3):
        for T in range(5): E(f"ds_read_b128 {v(RR+20*j+4*T,4)}, v{vXrs[3]} offset:{5120*j + 1024*T}")
    RP = PF
    for j in range(3):
        for T in range(5):
            for e in range(4): E(f"v_add_f32 v{OA[1][T]+e}, v{OA[1][T]+e}, v{RR+20*j+4*T+e}")
            if j == 2:
                E(f"v_cvt_pk_bf16_f32 v{RP+2*T}, v{OA[1][T]}, v{OA[1][T]+1}")
                E(f"v_cvt_pk_bf16_f32 v{RP+2*T+1}, v{OA[1][T]+2}, v{OA[1][T]+3}")
                E(f"ds_write_b64 v{vRw}, {v(RP+2*T,2)} offset:{8*T}")
    E(f"v_add_u32 v{vPk}, s93, v{vL16}")
    for m in range(3): E(f"ds_read_b128 {v(RP+12+4*m,4)}, v{vPk} offset:{30720 + 1024*m}")
    for m in range(3):
        if m == 2: E("s_mov_b32 exec_hi, 0")
        E(f"buffer_store_dwordx4 {v(RP+12+4*m,4)}, v{vSo[m]}, s[{rOUT}:{rOUT+3}], s{sOUT} offen {G.OUTA}")
    skip = newlabel("nozero")
    E(f"s_or_b32 s9, s{sW}, s{sCT}")
    E(f"s_cbranch_scc1 {skip}")
    E("s_mov_b64 exec, 1")
    E(f"s_lshl_b32 s9, s{sTBo}, 3")
    E(f"v_mov_b32 v{MP}, 0")
    E.raw(f"    buffer_store_dword v{MP}, off, s[{rDBG}:{rDBG+3}], s9 sc1")
    E.label(skip)
    E("s_mov_b64 exec, -1")
    if G.PROFILE:
        E.wait_vm()
        ST(E, "end")
    PAD = [a[6:] for a in sys.argv if a.startswith("--pad=")]
    if PAD:
        E.label("L_pad")
        for t in ["s_memrealtime s[14:15]", "s_waitcnt lgkmcnt(0)", f"s_sub_u32 s14, s14, s{sN}", f"s_cmp_lt_u32 s14, {PAD[0]}", "s_cbranch_scc1 L_pad"]: E.raw("    " + t)
    ST.dump(E, sW, RP + 40)
    E("s_endpgm")
    return ST
```

```python
import math, sys
from asmlib import *
M16 = "v_mfma_f32_16x16x32_bf16"

def gen_B(E, G):
    f32, f32val, Alloc, srd, spin, newlabel, cmul, zipl = G.f32, G.f32val, G.Alloc, G.srd, G.spin, G.newlabel, G.cmul, G.zipl
    rWS, rOUT, rDBG, rIN = G.rWS, G.rOUT, G.rDBG, G.rIN
    sN = G.sN
    G.fresh(E)
    ST = G.Stamps(84)
    sW, sCG, sD, sTB, sCB, sSC, sKT, sT0, sT1, sT2 = 76, 77, 78, 79, 80, 81, 82, 4, 5, 6
    sUS, sUT, sFU, sFUp, sFY, sFYp, sUI, sYS, sYL, sYO = 64, 65, 66, 67, 68, 69, 70, 71, 72, 73
    U_IMG = 2048; KT_BASE = 18432; KT_SZ = 2560; SC_BASE = 28672; SC_SZ = 11 * 1040
    Y_OFF = 6144; Y_PITCH = SC_SZ + 144
    SIG_SZ = 2176
    A = Alloc(1, 256)
    vL = A(); vG = A(); vC = A()
    vt = [A() for _ in range(8)]
    big = A(160, 4)
    KG = A(32, 4)
    BN = A(8, 4)
    P = [big + 124 + i for i in range(6)]
    assert P[0] == 136 and sCG == 77
    E.vmq += [(None, {("v", r)}) for r in P]
    E.lgq = [("__smem", {("s", 100), ("s", 101), ("s", 16), ("s", 17)})]
    E(f"v_and_b32 v{vL}, 63, v0")
    E(f"v_lshrrev_b32 v{vt[0]}, 6, v0")
    E(f"v_lshrrev_b32 v{vG}, 4, v{vL}")
    E(f"v_readfirstlane_b32 s{sW}, v{vt[0]}")
    E(f"v_and_b32 v{vC}, 15, v{vL}")
    E(f"s_mul_hi_u32 s{sTB}, s{sCG}, 0x33333334")
    E(f"s_mul_i32 s{sT0}, s{sTB}, 5")
    E(f"s_sub_u32 s{sCB}, s{sCG}, s{sT0}")
    vPo = vt[2]; vSo = A(); vL16 = A()
    SLAB = int(([a[7:] for a in sys.argv if a.startswith('--slab=')] + ['4'])[0])
    NWAIT = int(([a[8:] for a in sys.argv if a.startswith('--nwait=')] + ['128'])[0])
    def slab_in():
        if "--xnomem" in sys.argv: return
        E("s_setprio 3")
        for i in range(4):
            E(f"s_add_u32 m0, s{sUS}, {1024*i}")
            E(f"s_add_u32 s{sT1}, s74, {4*1280*i}")
            E(f"buffer_load_dwordx4 v{vSo}, s[{rIN}:{rIN+3}], s{sT1} offen lds", tag="slab")
        E(f"s_setprio {G.BPRIO}")
    E(f"v_mul_u32_u24 v{vSo}, 1280, v{vG}")
    E(f"v_lshl_add_u32 v{vSo}, v{vC}, 4, v{vSo}")
    E(f"s_lshl_b32 s{sT0}, s{sTB}, 2")
    E(f"s_add_u32 s{sT0}, s{sT0}, s{sW}")
    E(f"s_mul_i32 s{sYO}, s{sT0}, {16*2560}")
    E(f"s_mul_i32 s{sT0}, s{sT0}, {16*1280}")
    E(f"s_lshl_b32 s{sT1}, s{sCB}, 8")
    E(f"s_add_u32 s74, s{sT0}, s{sT1}")
    E(f"s_add_u32 s{sYO}, s{sYO}, s{sT1}")
    E(f"s_add_u32 s{sYO}, s{sYO}, 1280")
    E(f"s_lshl_b32 s{sUS}, s{sW}, 12")
    E(f"s_add_u32 s{sUS}, s{sUS}, {U_IMG}")
    ST(E, "start")
    if "--noB0" not in sys.argv:
        srd(E, rIN, G.pU, 2621440)
        if SLAB in (0, 3, 5): slab_in()
    srd(E, rDBG, G.pDBG, 256)
    skip = newlabel("nonce")
    E(f"s_or_b32 s{sT0}, s{sCG}, s{sW}")
    E(f"s_cbranch_scc1 {skip}")
    E.raw("    s_or_b32 s10, s10, 1")
    E.raw(f"    v_mov_b32 v{vt[0]}, s10")
    E.raw("    s_mov_b64 exec, 1")
    E.raw(f"    buffer_store_dword v{vt[0]}, off, s[{rDBG}:{rDBG+3}], 0 offset:4 sc1")
    E.raw("    s_mov_b64 exec, -1")
    E.label(skip)
    srd(E, rWS, G.pWS, G.WS_SIZE)
    if "--noB0" in sys.argv:
        ST.dump(E, sW, big)
        E("s_endpgm")
        return ST
    srd(E, rOUT, G.pOUT, 5242880)
    E(f"s_setprio {G.BPRIO}")
    E(f"s_mul_i32 s{sSC}, s{sW}, {SC_SZ}")
    E(f"s_add_u32 s{sSC}, s{sSC}, {SC_BASE}")
    E(f"s_mul_i32 s{sKT}, s{sW}, {KT_SZ}")
    E(f"s_add_u32 s{sKT}, s{sKT}, {KT_BASE}")
    E(f"v_lshlrev_b32 v{vL16}, 4, v{vL}")
    vZ = big + 132
    E(f"v_mov_b32 v{vZ}, 0"); E(f"v_mov_b32 v{vZ+1}, 0")
    E(f"v_lshlrev_b32 v{vt[0]}, 3, v0")
    E(f"ds_write_b64 v{vt[0]}, {v(vZ,2)}")
    E(f"v_min_u32 v{vt[0]}, 8, v{vC}")
    E(f"v_lshl_add_u32 v{vt[0]}, v{vt[0]}, 2, s{sKT}")
    TA_POS = 672; TB_POS = TA_POS + 272
    for o in (0, 2 * TA_POS, 2 * TB_POS): E(f"ds_write_b32 v{vt[0]}, v{vZ} offset:{o}")
    vLm = vt[7]
    E(f"v_lshlrev_b32 v{vt[0]}, 3, v{vG}")
    E(f"v_sub_u32 v{vLm}, v{vC}, v{vt[0]}")
    E(f"v_add_u32 v{vLm}, 33, v{vLm}")
    vLf = vt[6]; vK1 = vt[5]
    E(f"v_cvt_f32_u32 v{vLf}, v{vLm}")
    E(f"s_mov_b32 s7, 0x0202")
    E(f"s_mov_b32 s8, 0x10001")
    E(f"v_mov_b32 v{vK1}, 0x01000100")
    sel = {}; adr = {}
    for name, srep, js in (("d", 5, [3]), ("1", 9, [3, 2]), ("2", 17, [3, 2, 1, 0])):
        base = 32 * srep - 24
        vb = vt[2]
        for j in js:
            r = A(); sel[(name, j)] = r
            E(f"v_add_f32 v{vt[0]}, {f32(base + 7 - 2*j)}, v{vLf}")
            E(f"v_add_f32 v{vt[1]}, {f32(base + 6 - 2*j)}, v{vLf}")
            E(f"v_cvt_pk_bf16_f32 v{r}, v{vt[0]}, v{vt[1]}")
            if j == 3:
                E(f"v_lshrrev_b32 v{vt[3]}, 17, v{r}")
                E(f"v_lshlrev_b32 v{vt[3]}, 1, v{vt[3]}")
                E(f"v_mul_u32_u24 v{vb}, s8, v{vt[3]}")
                a = A(); adr[name] = a
                if name == "d":
                    E(f"v_and_b32 v{a}, -2, v{vLm}")
                    E(f"v_lshl_add_u32 v{a}, v{a}, 1, s{sKT}")
                    E(f"v_subrev_u32 v{a}, 16, v{a}")
                else:
                    E(f"v_lshl_add_u32 v{a}, v{vt[3]}, 1, s{sKT}")
                    E(f"v_subrev_u32 v{a}, {2*(0x4300-272)}, v{a}")
            E(f"v_sub_u32 v{r}, v{r}, v{vb}")
            E(f"v_mad_u32_u24 v{r}, v{r}, s7, v{vK1}")
    E(f"v_subrev_u32 v{vt[0]}, 9, v{vLm}")
    E(f"v_min_u32 v{vt[0]}, 31, v{vt[0]}")
    E(f"s_movk_i32 s7, 0x3f80")
    for bI, mask in enumerate((0x1ff << 15, 0x7f << 16)):
        E(f"s_mov_b32 s8, {mask}")
        E(f"v_lshrrev_b32 v{vt[1]}, v{vt[0]}, s8")
        for j in range(4):
            E(f"v_bfe_u32 v{vt[2]}, v{vt[1]}, {7-2*j}, 1")
            E(f"v_bfe_u32 v{vt[3]}, v{vt[1]}, {6-2*j}, 1")
            E(f"v_lshl_or_b32 v{vt[2]}, v{vt[3]}, 16, v{vt[2]}")
            E(f"v_mul_u32_u24 v{BN+4*bI+j}, s7, v{vt[2]}")
    aT = A(); aS = A(); aW = A()
    E(f"v_and_b32 v{vt[0]}, 1, v{vG}")
    E(f"v_lshrrev_b32 v{vt[1]}, 1, v{vG}")
    E(f"v_lshlrev_b32 v{vt[2]}, 3, v{vt[0]}")
    E(f"v_sub_u32 v{aT}, v{vC}, v{vt[2]}")
    E(f"v_add_u32 v{aT}, {TA_POS + 11}, v{aT}")
    E(f"v_and_b32 v{aT}, -2, v{aT}")
    E(f"v_mul_u32_u24 v{vt[2]}, 272, v{vt[1]}")
    E(f"v_add_u32 v{aT}, v{aT}, v{vt[2]}")
    E(f"v_lshl_add_u32 v{aT}, v{aT}, 1, s{sKT}")
    E(f"v_lshlrev_b32 v{aS}, 8, v{vt[0]}")
    E(f"v_lshl_add_u32 v{aS}, v{vC}, 3, v{aS}")
    E(f"v_mul_u32_u24 v{vt[2]}, {SIG_SZ - 16}, v{vt[1]}")
    E(f"v_add3_u32 v{aS}, v{aS}, v{vt[2]}, s{sSC}")
    E(f"v_lshlrev_b32 v{aW}, 5, v{vC}")
    E(f"v_lshl_add_u32 v{aW}, v{vG}, 3, v{aW}")
    E(f"v_add_u32 v{aW}, s{sSC}, v{aW}")
    vMa = A(); vMb = A(); vMw = A()
    E(f"v_lshlrev_b32 v{vt[0]}, 1, v{vL}")
    E(f"v_add_u32 v{vt[1]}, 256, v{vt[0]}")
    E(f"v_add_u32 v{vt[2]}, {496-32}, v{vt[0]}")
    E(f"v_cmp_lt_u32 vcc, 15, v{vL}")
    E(f"v_cndmask_b32 v{vt[1]}, v{vt[1]}, v{vt[2]}, vcc")
    E(f"v_add_u32 v{vt[2]}, {1008-80}, v{vt[0]}")
    E(f"v_cmp_lt_u32 vcc, 39, v{vL}")
    E(f"v_cndmask_b32 v{vt[1]}, v{vt[1]}, v{vt[2]}, vcc")
    E(f"v_cvt_f32_u32 v{vt[1]}, v{vt[1]}")
    E(f"v_add_f32 v{vt[2]}, 1.0, v{vt[1]}")
    E(f"v_cvt_pk_bf16_f32 v{vt[1]}, v{vt[1]}, v{vt[2]}")
    E(f"v_mov_b32 v{vt[2]}, {(0x4300-272)*0x10001}")
    E(f"v_cmp_lt_u32 vcc, 53, v{vL}")
    E(f"v_cndmask_b32 v{vt[1]}, v{vt[1]}, v{vt[2]}, vcc")
    E(f"s_sub_u32 s{sT0}, s{sKT}, {2*(0x4300-272)}")
    E(f"v_and_b32 v{vMa}, 0xffff, v{vt[1]}")
    E(f"v_lshl_add_u32 v{vMa}, v{vMa}, 1, s{sT0}")
    E(f"v_lshrrev_b32 v{vMb}, 16, v{vt[1]}")
    E(f"v_lshl_add_u32 v{vMb}, v{vMb}, 1, s{sT0}")
    E(f"v_lshl_add_u32 v{vMw}, v{vL}, 2, s{sKT}")
    a0 = [A(), A()]; a1 = [A(), A()]; a2 = A(); a3 = A()
    st = vt[2]
    E(f"v_lshlrev_b32 v{a0[0]}, 4, v{vC}")
    E(f"v_lshl_add_u32 v{a0[0]}, v{vG}, 3, v{a0[0]}")
    E(f"v_add_u32 v{a0[0]}, 32, v{a0[0]}")
    E(f"v_mov_b32 v{st}, 256")
    E(f"v_lshlrev_b32 v{vt[3]}, 3, v{vC}")
    E(f"v_add_u32 v{vt[3]}, 800, v{vt[3]}")
    E(f"v_mov_b32 v{vt[4]}, 128")
    E(f"v_cmp_eq_u32 vcc, 2, v{vG}")
    E(f"v_cndmask_b32 v{a0[0]}, v{a0[0]}, v{vt[3]}, vcc")
    E(f"v_cndmask_b32 v{st}, v{st}, v{vt[4]}, vcc")
    E(f"v_lshlrev_b32 v{vt[3]}, 2, v{vC}")
    E(f"v_add_u32 v{vt[3]}, 1056, v{vt[3]}")
    E(f"v_mov_b32 v{vt[5]}, 64")
    E(f"v_cmp_eq_u32 vcc, 3, v{vG}")
    E(f"v_cndmask_b32 v{a0[0]}, v{a0[0]}, v{vt[3]}, vcc")
    E(f"v_cndmask_b32 v{st}, v{st}, v{vt[5]}, vcc")
    E(f"v_cndmask_b32 v{a1[0]}, 4, v{vt[4]}, vcc")
    E(f"v_add_u32 v{a0[0]}, s{sKT}, v{a0[0]}")
    E(f"v_add_u32 v{a1[0]}, v{a0[0]}, v{a1[0]}")
    E(f"v_add_u32 v{a0[1]}, v{a0[0]}, v{st}")
    E(f"v_add_u32 v{a1[1]}, v{a1[0]}, v{st}")
    E(f"v_and_b32 v{vt[0]}, 1, v{vC}")
    E(f"v_mul_u32_u24 v{vt[0]}, 272, v{vt[0]}")
    E(f"v_lshrrev_b32 v{vt[1]}, 1, v{vC}")
    E(f"v_lshl_add_u32 v{vt[1]}, v{vG}, 6, v{vt[1]}")
    E(f"v_add3_u32 v{vt[0]}, v{vt[0]}, v{vt[1]}, {17}")
    E(f"v_lshl_add_u32 v{a2}, v{vt[0]}, 1, s{sKT}")
    E(f"v_lshl_add_u32 v{vt[0]}, v{vL}, 1, s{sKT}")
    E(f"v_subrev_u32 v{vt[0]}, {2*(TA_POS-656)}, v{vt[0]}")
    E(f"v_cmp_gt_u32 vcc, 2, v{vL}")
    E(f"v_cndmask_b32 v{a3}, v{a2}, v{vt[0]}, vcc")
    vTa = A(); vUo = A()
    E(f"v_and_b32 v{vt[0]}, 1, v{vG}")
    E(f"v_lshrrev_b32 v{vt[1]}, 1, v{vG}")
    E(f"v_lshrrev_b32 v{vt[2]}, 2, v{vC}")
    E(f"v_and_b32 v{vt[3]}, 3, v{vC}")
    E(f"v_lshl_add_u32 v{vTa}, v{vt[0]}, 3, v{vt[2]}")
    E(f"v_lshlrev_b32 v{vTa}, 8, v{vTa}")
    E(f"v_lshl_add_u32 v{vTa}, v{vt[1]}, 5, v{vTa}")
    E(f"v_lshl_add_u32 v{vTa}, v{vt[3]}, 3, v{vTa}")
    E(f"v_add_u32 v{vTa}, s{sUS}, v{vTa}")
    E(f"s_lshl_b32 s{sT0}, s{sTB}, 1")
    E(f"s_lshr_b32 s{sT1}, s{sW}, 1")
    E(f"s_add_u32 s{sT0}, s{sT0}, s{sT1}")
    E(f"v_add_u32 v{vt[3]}, s{sT0}, v{vt[3]}")
    E(f"v_and_b32 v{vt[3]}, 3, v{vt[3]}")
    E(f"v_lshl_add_u32 v{vUo}, v{vt[1]}, 2, v{vt[2]}")
    E(f"v_lshlrev_b32 v{vUo}, 14, v{vUo}")
    E(f"v_lshl_add_u32 v{vUo}, v{vt[0]}, 6, v{vUo}")
    E(f"v_lshl_add_u32 v{vUo}, v{vt[3]}, 4, v{vUo}")
    E(f"s_lshl_b32 s{sUT}, s{sCB}, 19")
    E(f"s_lshl_b32 s{sT1}, s{sTB}, 9")
    E(f"s_add_u32 s{sUT}, s{sUT}, s{sT1}")
    E(f"s_lshl_b32 s{sT1}, s{sW}, 7")
    E(f"s_add_u32 s{sUT}, s{sUT}, s{sT1}")
    E(f"s_add_u32 s{sYL}, s{sUT}, {G.YT_BASE}")
    assert G.UT_BASE == 0
    E(f"s_lshl_b32 s{sFU}, s{sCB}, 14")
    E(f"s_lshl_b32 s{sT1}, s{sTB}, 9")
    E(f"s_add_u32 s{sFYp}, s{sFU}, s{sT1}")
    E(f"s_add_u32 s{sFYp}, s{sFYp}, {G.FLAGY_BASE}")
    E(G.word_off(sFU, sTB, 3, sT1))
    E(f"s_add_u32 s{sFU}, s{sFU}, {G.FLAG_BASE}")
    E(f"s_lshl_b32 s{sFUp}, s{sCG}, 9")
    E(f"s_add_u32 s{sFUp}, s{sFUp}, {G.FLAG_BASE}")
    E(f"s_lshr_b32 s{sFY}, s{sCG}, 5")
    E(f"s_lshl_b32 s{sFY}, s{sFY}, 14")
    E(f"s_and_b32 s{sT0}, s{sCG}, 31")
    E(G.word_off(sFY, sT0, 3, sT1))
    E(f"s_add_u32 s{sFY}, s{sFY}, {G.FLAGY_BASE}")
    E(f"s_lshl_b32 s{sT1}, s{sW}, 7")
    E(f"s_add_u32 s{sFUp}, s{sFUp}, s{sT1}")
    E(f"s_add_u32 s{sFYp}, s{sFYp}, s{sT1}")
    E(f"s_lshl_b32 s{sUI}, s{sCG}, 14")
    E(f"s_lshl_b32 s{sT1}, s{sW}, 12")
    E(f"s_add_u32 s{sUI}, s{sUI}, s{sT1}")
    E(f"s_add_u32 s{sYS}, s{sUI}, {G.YT_BASE}")
    vPu = A()
    E(f"v_lshlrev_b32 v{vPu}, 9, v{vL}")
    for sa in (sFUp, sFYp): E(f"s_buffer_load_dword s93, s[{rWS}:{rWS+3}], s{sa} glc")
    PP2 = 1024 + 16
    vWa = A(); vRa = A(); vRb = A()
    E(f"v_add_u32 v{vWa}, s{sSC}, v{vL16}")
    E(f"v_lshrrev_b32 v{vt[0]}, 1, v{vC}")
    E(f"v_mul_u32_u24 v{vRa}, {PP2}, v{vt[0]}")
    E(f"v_and_b32 v{vt[0]}, 1, v{vC}")
    E(f"v_lshl_add_u32 v{vRa}, v{vt[0]}, 3, v{vRa}")
    E(f"v_lshl_add_u32 v{vRa}, v{vG}, 5, v{vRa}")
    E(f"v_add_u32 v{vRa}, s{sSC}, v{vRa}")
    E(f"v_add_u32 v{vRb}, {8*PP2}, v{vRa}")
    vTb = A()
    E(f"v_lshl_add_u32 v{vTb}, v{vC}, 1, v{vG}")
    E(f"v_add_u32 v{vTb}, 30, v{vTb}")
    L2E = math.log2(math.e); L2Eh = f32val(L2E); L2El = L2E - L2Eh
    I2P = 1 / (2 * math.pi); I2Ph = f32val(I2P); I2Pl = I2P - I2Ph
    vDt = vt[4]; vDsk = A(); vNon = A()
    E(f"s_mov_b32 s7, {f32(L2Eh)}")
    E(f"s_mov_b32 s8, {f32(I2Ph)}")
    E(f"s_lshl_b32 s{sT0}, s{sW}, 4")
    E(f"s_lshr_b64 s[100:101], s[100:101], s{sT0}")
    E(f"s_lshr_b64 s[16:17], s[16:17], s{sT0}")
    E(f"s_lshl_b32 s100, s100, 16")
    E(f"s_lshl_b32 s101, s16, 16")
    E(f"v_mov_b32 v{vt[0]}, s100")
    ST(E, "par")
    E(f"v_mul_f32 v{vt[1]}, s7, v{vt[0]}")
    E(f"v_fma_f32 v{vt[2]}, v{vt[0]}, s7, -v{vt[1]}")
    E(f"v_fmac_f32 v{vt[2]}, {f32(L2El)}, v{vt[0]}")
    E(f"v_exp_f32 v{vt[1]}, v{vt[1]}")
    E(f"v_mul_f32 v{vt[2]}, {f32(math.log(2))}, v{vt[2]}")
    E(f"v_fma_f32 v{vt[1]}, v{vt[1]}, v{vt[2]}, v{vt[1]}")
    E(f"v_cvt_pk_bf16_f32 v{vt[1]}, v{vt[1]}, v{vt[1]}")
    E(f"v_and_b32 v{vDt}, 0xffff0000, v{vt[1]}")
    A2 = Alloc(KG, KG + 32)
    PK = [A2(4, 4), A2(4, 4)]
    W1 = [A2(3, 1), A2(3, 1)]; W8 = [A2(3, 1), A2(3, 1)]; W256 = [A2(3, 1), A2(3, 1)]
    A3 = Alloc(big + 136, big + 160)
    XS = [[A3(2) for _ in range(4)] for _ in range(2)]
    XC = [A3(2), A3(2)]; XD = [A3(2), A3(2)]
    XU = [[big + 124, big + 126], [big + 128, big + 130]]
    tmp = big + 100
    per_n = []
    for n in range(2):
        t = [tmp + 12 * n + i for i in range(12)]
        un = (lambda d, src: f"v_lshlrev_b32 v{d}, 16, v{src}") if n == 0 else (lambda d, src: f"v_and_b32 v{d}, 0xffff0000, v{src}")
        L = [un(t[0], P[0]), un(t[1], P[1]),
             f"v_mul_f32 v{t[0]}, v{vDt}, v{t[0]}",
             f"v_mul_f32 v{t[1]}, v{vDt}, v{t[1]}",
             f"v_mul_f32 v{t[0]}, s7, v{t[0]}",
             f"v_mul_f32 v{t[6]}, s8, v{t[1]}",
             f"v_fma_f32 v{t[7]}, v{t[1]}, s8, -v{t[6]}",
             f"v_fmac_f32 v{t[7]}, {f32(I2Pl)}, v{t[1]}"]
        for e, Wd in ((1, W1[n]), (256, W256[n]), (8, W8[n])):
            if e == 1:
                L += [f"v_exp_f32 v{t[8]}, v{t[0]}", f"v_fract_f32 v{t[9]}, v{t[6]}", f"v_add_f32 v{t[9]}, v{t[9]}, v{t[7]}"]
            else:
                L += [f"v_mul_f32 v{t[8]}, {f32(e)}, v{t[0]}", f"v_mul_f32 v{t[9]}, {f32(e)}, v{t[6]}",
                      f"v_exp_f32 v{t[8]}, v{t[8]}", f"v_fract_f32 v{t[9]}, v{t[9]}", f"v_fmac_f32 v{t[9]}, {f32(e)}, v{t[7]}"]
            L += [f"v_cos_f32 v{t[10]}, v{t[9]}", f"v_sin_f32 v{t[11]}, v{t[9]}",
                  f"v_mul_f32 v{Wd}, v{t[8]}, v{t[10]}", f"v_mul_f32 v{Wd+1}, v{t[8]}, v{t[11]}", f"v_xor_b32 v{Wd+2}, 0x80000000, v{Wd+1}"]
        c0 = XS[n][0]
        L += [un(t[k], P[k]) for k in range(2, 6)]
        L += [f"v_mul_f32 v{t[2]}, v{vDt}, v{t[2]}", f"v_mul_f32 v{t[3]}, v{vDt}, v{t[3]}",
              f"v_mul_f32 v{c0}, v{t[4]}, v{t[2]}", f"v_mul_f32 v{c0+1}, v{t[5]}, v{t[2]}",
              f"v_fma_f32 v{c0}, -v{t[5]}, v{t[3]}, v{c0}", f"v_fmac_f32 v{c0+1}, v{t[4]}, v{t[3]}"]
        per_n.append(L)
    E(zipl(*per_n))
    E(f"v_cmp_eq_u32 vcc, 0, v{vL}")
    E(f"v_mov_b32 v{vDsk}, s101")
    E(f"v_cndmask_b32 v{vDsk}, 0, v{vDsk}, vcc")
    def put_row(row, regs, neg, last=False):
        p = PK[(row // 2) % 2]; q = p + 2 * (row % 2)
        sg = "-" if neg else ""
        L = [f"v_cvt_pk_bf16_f32 v{q}, v{regs[0]}, {sg}v{regs[0]+1}",
             f"v_cvt_pk_bf16_f32 v{q+1}, v{regs[1]}, {sg}v{regs[1]+1}"]
        if row % 2 or last: L.append(f"ds_write_b128 v{vWa}, {v(p,4)} offset:{(row//2)*PP2}")
        return L
    def step(dst, src, mul):
        return zipl(cmul(dst[0], src[0], mul[0]), cmul(dst[1], src[1], mul[1]))
    XSi = lambda i: [XS[0][i], XS[1][i]]
    XUi = lambda i: [XU[0][i], XU[1][i]]
    def slab_out():
        if "--xnomem" in sys.argv or "--x1" in sys.argv: return None
        E.wait_vm("slab")
        ST(E, "slab")
        for i in range(4):
            E(f"ds_read_b64_tr_b16 {v(big+4*i,2)}, v{vTa} offset:{64*i}")
            E(f"ds_read_b64_tr_b16 {v(big+4*i+2,2)}, v{vTa} offset:{64*i+1024}")
        E("s_setprio 3")
        G.snonce(E, vNon)
        if SLAB >= 4:
            skip = newlabel("nogo")
            E(f"s_lshl_b32 s{sT0}, s{sCG}, 7")
            E(f"s_add_u32 s{sT0}, s{sT0}, {G.FLAGG_BASE}")
            E(f"s_cmp_ge_u32 s{sCG}, {NWAIT}")
            E(f"s_cbranch_scc1 {skip}")
            ok = newlabel("gok"); sp = newlabel("gsp")
            E.raw("    s_mov_b32 s13, 0")
            E.label(sp)
            for t in [f"s_buffer_load_dword s16, s[{rWS}:{rWS+3}], s{sT0} glc", "s_add_u32 s13, s13, 1", "s_waitcnt lgkmcnt(0)", f"s_cmp_gt_u32 s13, {G.SPIN_MAX}",
                      f"s_cbranch_scc1 {skip}", f"s_cmp_eq_u32 s16, s{sN}", f"s_cbranch_scc1 {skip}", "s_sleep 3", f"s_branch {sp}"]:
                E.raw("    " + t)
            E.label(skip)
            ST(E, "go")
        for i in range(4):
            E(f"s_add_u32 s{sT1}, s{sUT}, {8*16384*i}")
            E(f"buffer_store_dwordx4 {v(big+4*i,4)}, v{vUo}, s[{rWS}:{rWS+3}], s{sT1} offen {'' if '--xplain' in sys.argv else 'sc1'}")
        E(f"s_setprio {G.BPRIO}")
        ST(E, "ust")
    def flag(saddr):
        skip = newlabel("nofl")
        E(f"s_cmp_lg_u32 s{sW}, 0")
        E(f"s_cbranch_scc1 {skip}")
        E("s_mov_b32 exec_hi, 0")
        E.raw(f"    buffer_store_dword v{vNon}, v{vPu}, s[{rWS}:{rWS+3}], s{saddr} offen sc1")
        E("s_mov_b64 exec, -1")
        E.label(skip)
    def wait_line(saddr):
        G.sflag_wait(E, saddr, 1, 8, 16, sleep=2)
        E("s_barrier")
    def publish():
        if "--xnomem" in sys.argv or "--x1" in sys.argv or "--x2" in sys.argv: return
        E("s_setprio 3")
        E.wait_vm()
        E("s_barrier")
        flag(sFU)
        E(f"s_setprio {G.BPRIO}")
        ST(E, "ack")
    if SLAB == 3: nld = slab_out()
    L = put_row(0, XSi(0), True)
    cur = XSi(0)
    for e in range(1, 8):
        dst = XSi(e // 2) if e % 2 == 0 else XC
        L += step(dst, cur, W1) + put_row(e, dst, True); cur = dst
    for i, dst in enumerate((XUi(0), XC, XUi(1), XC)):
        L += step(dst, XSi(i), W256) + put_row(8 + i, dst, True)
    for k in range(2): L += step(XSi(k), XUi(k), W256) + put_row(12 + k, XSi(k), True)
    for k in range(2): L += step(XUi(k), XSi(k), W256) + put_row(14 + k, XUi(k), True)
    cur = XUi(0)
    for r in range(16, 21):
        dst = XC if r % 2 == 0 else XD
        L += step(dst, cur, W256) + put_row(r, dst, True, last=(r == 20)); cur = dst
    E(L)
    XF = big + 16
    YF = big + 80
    KD = big + 112
    for tI in range(2):
        for k in range(8):
            E(f"ds_read2_b64 {v(XF+32*tI+4*k,4)}, v{vRb if tI else vRa} offset0:{16*k} offset1:{16*k+2}")
    ST(E, "X")
    if SLAB == 0: nld = slab_out()
    if SLAB in (1, 4): slab_in()
    if SLAB == 3: publish()
    def yhalf(h):
        L = []
        for j in range(16):
            jj = 16 * h + j
            Yc, Yp = (XC, XD) if jj % 2 == 0 else (XD, XC)
            if jj == 0:
                L += [f"v_mov_b32 v{Yc[0]}, 1.0", f"v_mov_b32 v{Yc[0]+1}, 0", f"v_mov_b32 v{Yc[1]}, 1.0", f"v_mov_b32 v{Yc[1]+1}, 0"]
            else:
                L += step(Yc, Yp, W8)
            L += put_row(j, Yc, False)
        return L
    def yread(): return [f"ds_read2_b64 {v(YF+4*k,4)}, v{vRa} offset0:{16*k} offset1:{16*k+2}" for k in range(8)]
    def kmfma(h):
        L = []
        for k in range(8):
            for tI in range(2):
                d = KD + 8 * h + 4 * tI
                L.append(f"{M16} {v(d,4)}, {v(XF+32*tI+4*k,4)}, {v(YF+4*k,4)}, {v(d,4) if k else 0}")
        return L
    def tabw(h):
        d0 = KD + 8 * h; d1 = d0 + 4
        p = big + 128 + 4 * h if h == 0 else big + 136
        L = [f"v_add_f32 v{KD}, v{KD}, v{vDsk}"] if h == 0 else []
        L += [f"v_cvt_pk_bf16_f32 v{p}, v{d0}, v{d0+1}", f"v_cvt_pk_bf16_f32 v{p+1}, v{d0+2}, v{d0+3}",
              f"v_cvt_pk_bf16_f32 v{p+2}, v{d1}, v{d1+1}", f"v_cvt_pk_bf16_f32 v{p+3}, v{d1+2}, v{d1+3}",
              f"ds_write_b32 v{a0[h]}, v{p}", f"ds_write_b32 v{a1[h]}, v{p+1}"]
        for rho in range(4):
            op = "ds_write_b16" if rho % 2 == 0 else "ds_write_b16_d16_hi"
            L.append(f"{op} v{a3 if (rho == 0 and h == 0) else a2}, v{p+2+rho//2} offset:{2*TA_POS + 32*rho + 16*h}")
        return L
    E(yhalf(0)); E(yread())
    if SLAB == 0: publish()
    if SLAB == 1: nld = slab_out()
    if SLAB == 2: slab_in()
    y1 = yhalf(1)
    E(merge(y1, kmfma(0)))
    E(yread())
    if SLAB == 2: nld = slab_out()
    E(tabw(0)); E(kmfma(1))
    E(f"v_lshl_add_u32 v{vt[0]}, v{vC}, 2, s{sSC}")
    E(f"ds_write_b32 v{vt[0]}, v{vZ}")
    E(f"ds_write_b32 v{vt[0]}, v{vZ} offset:{SIG_SZ}")
    ST(E, "Y")
    def get_u():
        if "--xnomem" in sys.argv or "--x1" in sys.argv or "--x2" in sys.argv or "--x3" in sys.argv: return
        E("s_setprio 3")
        wait_line(sFUp)
        ST(E, "polled")
        if "--x4" in sys.argv: return
        E(f"s_mov_b32 m0, s{sUS}")
        for i in range(4):
            E(f"buffer_load_dwordx4 v{vL16}, s[{rWS}:{rWS+3}], s{sUI} offen offset:{1024*i} sc1 lds", tag="uimg")
        E(f"s_setprio {G.BPRIO}")
    if SLAB == 1: publish()
    E(tabw(1))
    E(f"ds_read_u16 v{vt[5]}, v{vMa}")
    E(f"ds_read_u16 v{vt[4]}, v{vMb}")
    E(f"v_lshl_or_b32 v{vt[5]}, v{vt[4]}, 16, v{vt[5]}")
    E(f"ds_write_b32 v{vMw}, v{vt[5]} offset:544")
    ACC = KG
    Hs = [big, big + 32]; Fs = [big + 64, big + 84]; RAW = big + 100; WD = big + 128
    SFr = WD; TFr = WD + 16
    vH = [vt[0], vt[1]]
    def dense(F, r, a, o):
        return ([f"ds_read2_b32 {v(r,2)}, v{a} offset0:{o} offset1:{o+1}",
                 f"ds_read2_b32 {v(r+2,2)}, v{a} offset0:{o+2} offset1:{o+3}",
                 f"ds_read_b32 v{r+4}, v{a} offset:{4*(o+4)}"],
                [f"v_perm_b32 v{F+j}, v{r+4-j}, v{r+3-j}, v{sel[('d',3)]}" for j in (3, 2, 1, 0)])
    def prepF(s0, buf):
        rd = []; pm = []
        r = RAW
        for m in range(5 if s0 == 0 else 4):
            sx = s0 + 8 * m
            F = Fs[buf] + 4 * m
            if sx <= 8 or sx == 16 or sx == 32:
                a, b = dense(F, r, adr['d'], {16: 152, 32: 176}.get(sx, 16 * sx))
                rd += a; pm += b; r += 6
            elif sx < 16:
                o = 8 * (sx - 9)
                rd += [f"ds_read2_b32 {v(r,2)}, v{adr['1']} offset0:{o} offset1:{o+1}",
                       f"ds_read_b32 v{r+2}, v{adr['1']} offset:{4*(o+2)}"]
                pm += [f"v_perm_b32 v{F+3}, v{r+1}, v{r}, v{sel[('1',3)]}", f"v_perm_b32 v{F+2}, v{r+1}, v{r}, v{sel[('1',2)]}",
                       f"v_perm_b32 v{F+1}, v{r+2}, v{r+1}, v{sel[('1',3)]}", f"v_perm_b32 v{F}, v{r+2}, v{r+1}, v{sel[('1',2)]}"]
                r += 4
            else:
                o = 4 * (sx - 17)
                rd += [f"ds_read2_b32 {v(r,2)}, v{adr['2']} offset0:{o} offset1:{o+1}"]
                pm += [f"v_perm_b32 v{F+j}, v{r+1}, v{r}, v{sel[('2',j)]}" for j in (3, 2, 1, 0)]
                r += 2
        assert r <= WD
        return rd, pm
    def prepH(s0, buf):
        a = vH[buf]; t = vt[3]
        L = [f"v_subrev_u32 v{a}, {4*s0}, v{vTb}",
             f"v_lshrrev_b32 v{t}, 2, v{a}",
             f"v_add_u32 v{t}, s{sW}, v{t}",
             f"v_and_b32 v{t}, 3, v{t}",
             f"v_lshlrev_b32 v{a}, 6, v{a}",
             f"v_lshl_add_u32 v{a}, v{t}, 4, v{a}"]
        return L, [f"ds_read_b128 {v(Hs[buf]+4*dl,4)}, v{a} offset:{2048*dl}" for dl in range(8)]
    rd, pm = prepF(0, 0)
    ha, hr = prepH(0, 0)
    E(rd); E(ha); E(pm)
    ST(E, "tables")
    if SLAB >= 4: slab_out()
    if SLAB == 2 or SLAB >= 4: publish()
    get_u()
    E.wait_vm("uimg")
    E.wait_lg()
    E("s_barrier")
    ST(E, "uimg")
    if "--xnoconv" in sys.argv:
        ST.dump(E, sW, big + 70)
        E("s_endpgm")
        return ST
    E(f"s_setprio {G.CPRIO}")
    E(hr)
    wout = []
    for dl in range(4):
        for bI in range(2):
            d = WD + 8 * dl + 4 * bI
            wout += [f"v_cvt_pk_bf16_f32 v{d}, v{d}, v{d+1}", f"v_cvt_pk_bf16_f32 v{d+1}, v{d+2}, v{d+3}",
                     f"ds_write_b64 v{aW}, {v(d,2)} offset:{64 + SIG_SZ*bI + 512*dl}"]
    srd_ = [f"ds_read_b64_tr_b16 {v(SFr+4*k+2*a,2)}, v{aS} offset:{40 + 512*k + 128*a}" for k in range(4) for a in range(2)]
    for s0 in range(8):
        b = s0 % 2
        M = []
        if s0 == 0:
            for dl in range(4):
                for bI in range(2):
                    M.append(f"{M16} {v(WD+8*dl+4*bI,4)}, {v(BN+4*bI,4)}, {v(Hs[0]+4*dl,4)}, 0")
        for m in range(5 if s0 == 0 else 4):
            for dl in range(8 - m):
                q = m + dl
                c = v(ACC + 4 * q, 4) if (s0 or m) else "0"
                M.append(f"{M16} {v(ACC+4*q,4)}, {v(Fs[b]+4*m,4)}, {v(Hs[b]+4*dl,4)}, {c}")
        if s0 < 7:
            rd, pm = prepF(s0 + 1, 1 - b)
            ha, hr = prepH(s0 + 1, 1 - b)
            side = rd + ha + hr + pm
            if s0 == 0: side += wout[:12]
            if s0 == 1: side += wout[12:]
            if 2 <= s0 <= 5:
                k = s0 - 2
                a_, b_ = dense(TFr + 4 * k, RAW + 16, aT, 8 * k)
                side = a_ + side + srd_[2*k:2*k+2] + b_
            E(merge(M, side))
        else:
            for q in range(4, 8):
                for k in range(q - 3):
                    M.append(f"{M16} {v(ACC+4*q,4)}, {v(SFr+4*k,4)}, {v(TFr+4*(q-k-4),4)}, {v(ACC+4*q,4)}")
            E(M)
    ST(E, "conv")
    if "--gemmonly" in sys.argv:
        ST.dump(E, sW, big + 70)
        E("s_endpgm")
        return ST
    ya = vt[0]
    E(f"s_mul_i32 s{sT0}, s{sW}, 144")
    E(f"v_add_u32 v{ya}, s{sT0}, v{aW}")
    for q in range(8):
        E(f"v_cvt_pk_bf16_f32 v{big+2*q}, v{ACC+4*q}, v{ACC+4*q+1}")
        E(f"v_cvt_pk_bf16_f32 v{big+2*q+1}, v{ACC+4*q+2}, v{ACC+4*q+3}")
        E(f"ds_write_b64 v{ya}, {v(big+2*q,2)} offset:{Y_OFF + 512*q}")
    yr, yo = vt[1], vt[2]
    E(f"v_lshrrev_b32 v{vt[3]}, 2, v{vC}")
    E(f"v_mul_u32_u24 v{yr}, {Y_PITCH}, v{vt[3]}")
    E(f"v_and_b32 v{vt[3]}, 3, v{vC}")
    E(f"v_lshl_add_u32 v{yr}, v{vt[3]}, 3, v{yr}")
    E(f"v_lshl_add_u32 v{yr}, v{vG}, 5, v{yr}")
    E(f"s_lshl_b32 s{sT0}, s{sW}, 10")
    E(f"s_add_u32 s{sT0}, s{sT0}, {SC_BASE + Y_OFF}")
    E(f"v_add_u32 v{yr}, s{sT0}, v{yr}")
    E(f"v_lshlrev_b32 v{yo}, 3, v{vL}")
    E.wait_lg()
    E("s_barrier")
    E("s_setprio 3")
    for i in range(8):
        E(f"ds_read_b64_tr_b16 {v(big+32+2*i,2)}, v{yr} offset:{128*i}")
    for i in range(8):
        E(f"buffer_store_dwordx2 {v(big+32+2*i,2)}, v{yo}, s[{rWS}:{rWS+3}], s{sYS} offen offset:{512*i} sc1")
    d0, d1, ra, so = vt[0], vt[1], vt[2], vt[3]
    E(f"v_lshrrev_b32 v{vt[4]}, 3, v{vL}")
    E(f"v_lshlrev_b32 v{vt[4]}, 14, v{vt[4]}")
    E(f"v_and_b32 v{vt[5]}, 7, v{vL}")
    E(f"v_xor_b32 v{vt[5]}, v{vt[5]}, v{vG}")
    E(f"v_lshl_add_u32 v{d0}, v{vt[5]}, 4, v{vt[4]}")
    E(f"v_xor_b32 v{d1}, 64, v{d0}")
    E(f"v_and_b32 v{vt[4]}, 7, v{vC}")
    E(f"v_lshrrev_b32 v{vt[5]}, 1, v{vG}")
    E(f"v_xor_b32 v{vt[4]}, v{vt[4]}, v{vt[5]}")
    E(f"v_lshlrev_b32 v{ra}, 8, v{vC}")
    E(f"v_lshl_add_u32 v{ra}, v{vt[4]}, 4, v{ra}")
    E(f"v_and_b32 v{vt[5]}, 1, v{vG}")
    E(f"v_lshl_add_u32 v{ra}, v{vt[5]}, 3, v{ra}")
    E(f"v_add_u32 v{ra}, s{sUS}, v{ra}")
    E(f"v_mul_u32_u24 v{so}, 2560, v{vG}")
    E(f"v_lshl_add_u32 v{so}, v{vC}, 4, v{so}")
    for i in range(1, 4): E(f"v_xor_b32 v{big+60+i}, {32*i}, v{ra}")
    E.wait_vm()
    E("s_barrier")
    flag(sFY)
    ST(E, "ypub")
    wait_line(sFYp)
    ST(E, "ypoll")
    for i in range(4):
        E(f"s_add_u32 m0, s{sUS}, {1024*i}")
        E(f"s_add_u32 s{sT1}, s{sYL}, {8*16384*i}")
        E(f"buffer_load_dwordx4 v{d0 if i % 2 == 0 else d1}, s[{rWS}:{rWS+3}], s{sT1} offen sc1 lds")
    E.wait_vm()
    for i in range(4):
        E(f"ds_read2_b64 {v(big+4*i,4)}, v{ra if i == 0 else big+60+i} offset1:16")
    for i in range(4):
        E(f"s_add_u32 s{sT1}, s{sYO}, {4*2560*i}")
        E(f"buffer_store_dwordx4 {v(big+4*i,4)}, v{so}, s[{rOUT}:{rOUT+3}], s{sT1} offen {G.OUTB}")
    if G.PROFILE:
        E.wait_vm()
        ST(E, "end")
    ST.dump(E, sW, big + 70)
    E("s_endpgm")
    return ST
```

```python
import sys, struct, math
from asmlib import *

NAME = "concat_heads__linear_kernel_hedgehog__ssm_conv_s4__prompt"
NB, NA, NC = 160, 256, 80
UT_BASE = 0
YT_BASE = 2621440
O_BASE = 2 * 2621440
PWO_BASE = 3 * 2621440
P_BASE = PWO_BASE + 851968
assert P_BASE % 65536 == 0
P_PITCH = 4096
WS_SIZE = 16 << 20
STAMP_BASE = 13 << 20
SPIN_MAX = 30000
FLAG_BASE = P_BASE + 256 * P_PITCH
FLAGY_BASE = FLAG_BASE + 131072
FLAGW_BASE = FLAG_BASE + 2 * 131072
FLAGO_BASE = FLAG_BASE + 3 * 131072
FLAGG_BASE = FLAG_BASE + 4 * 131072 + 4096
FLAGC_BASE = FLAG_BASE + 4 * 131072
sN = 83

def f32(x): return "0x%08x" % struct.unpack("<I", struct.pack("<f", x))[0]
def f32val(x): return struct.unpack("<f", struct.pack("<f", x))[0]

class Alloc:
    def __init__(self, start, end): self.n = start; self.end = end
    def __call__(self, c=1, al=None):
        al = al or (2 if c >= 2 else 1)
        self.n = (self.n + al - 1) // al * al
        r = self.n; self.n += c
        assert self.n <= self.end, f"out of registers {self.n}"
        return r

pX, pW, pPHI, pWO, pU, pARE, pAIM, pBRE, pBIM, pCRE, pCIM, pLDT, pDSK, pOUT, pDBG, pWS = [16 + 2 * i for i in range(16)]
rWS, rOUT, rDBG, rIN, rW, rWO, rPHI = 48, 52, 56, 60, 64, 68, 72

def srd(E, r, p, size):
    E(f"s_mov_b32 s{r}, s{p}")
    E(f"s_and_b32 s{r+1}, s{p+1}, 0xffff")
    E(f"s_mov_b32 s{r+2}, {size}")
    E(f"s_mov_b32 s{r+3}, 0x00020000")

PROFILE = False
BPRIO = int(([a[8:] for a in sys.argv if a.startswith('--bprio=')] + ['3'])[0])
CPRIO = int(([a[8:] for a in sys.argv if a.startswith('--cprio=')] + ['0'])[0])
OUTA = ([a[7:] for a in sys.argv if a.startswith('--outa=')] + [''])[0].replace('+', ' ')
OUTB = ([a[7:] for a in sys.argv if a.startswith('--outb=')] + ['sc1'])[0].replace('+', ' ')
APRIO = int(([a[8:] for a in sys.argv if a.startswith('--aprio=')] + ['2'])[0])
class Stamps:
    def __init__(self, first): self.first = first; self.n = 0; self.names = []
    def __call__(self, E, name):
        if not PROFILE: return
        if "--endonly" in sys.argv and name not in ("start", "tile", "gemm", "T0", "opub", "ack", "uimg", "conv", "ypub", "end"): return
        r = self.first + self.n
        if name == "start" and "--cyc" not in sys.argv and "--both" not in sys.argv:
            E(f"s_mov_b32 s{r}, s10")
            self.n += 1; self.names.append("entry"); r += 1
        E("s_memtime s[14:15]" if "--cyc" in sys.argv else "s_memrealtime s[14:15]")
        if "--both" in sys.argv:
            E("s_memtime s[12:13]")
            E.wait_lg()
            E("s_lshr_b32 s12, s12, 2")
            E("s_pack_ll_b32_b16 s14, s12, s14")
        E.wait_lg()
        E(f"s_mov_b32 s{r}, s14")
        self.n += 1; self.names.append(name)
    def dump(self, E, sW, vt):
        if not PROFILE: return
        E(f"v_mov_b32 v{vt}, 0")
        for i in range(self.n):
            E(f"v_writelane_b32 v{vt}, s{self.first+i}, {i}")
        E(f"s_lshl_b32 s3, s2, 2")
        E(f"s_add_u32 s3, s3, s{sW}")
        E(f"s_lshl_b32 s3, s3, 6")
        E(f"s_add_u32 s3, s3, {STAMP_BASE}")
        E(f"v_and_b32 v{vt+1}, 63, v0")
        E(f"v_lshlrev_b32 v{vt+1}, 2, v{vt+1}")
        E("s_mov_b64 exec, 0xffff")
        E(f"buffer_store_dword v{vt}, v{vt+1}, s[{rWS}:{rWS+3}], s3 offen")
        if "--dbg" in sys.argv:
            E(f"v_subrev_u32 v{vt}, s{sN}, v{vt}")
            E(f"v_add_u32 v{vt}, 1000, v{vt}")
            if self.first == 84:
                E(f"s_mov_b64 exec, {1 << (self.n - 1)}")
                E(f"buffer_atomic_umax v{vt}, off, s[{rDBG}:{rDBG+3}], 0 offset:4")
            else:
                E(f"s_mov_b64 exec, {(1 << self.n) - 1}")
                E(f"buffer_atomic_umax v{vt}, v{vt+1}, s[{rDBG}:{rDBG+3}], 0 offen offset:8")
        E("s_mov_b64 exec, -1")

_lbl = [0]
def newlabel(p):
    _lbl[0] += 1
    return f"L_{p}_{_lbl[0]}"

def poll_check(E, load_text, vdst, expect_sgpr_or_const, first_tag):
    ok = newlabel("ok"); sp = newlabel("spin")
    E.wait_vm(first_tag)
    E(f"v_cmp_ne_u32 vcc, {expect_sgpr_or_const}, v{vdst}")
    E(f"s_cbranch_vccz {ok}")
    E(f"s_mov_b32 s13, 0")
    E.label(sp)
    E.raw("    " + load_text)
    E.raw("    s_add_u32 s13, s13, 1")
    E.raw(f"    s_cmp_gt_u32 s13, {SPIN_MAX}")
    E.raw(f"    s_cbranch_scc1 {ok}")
    E.raw("    s_waitcnt vmcnt(0)")
    E.raw(f"    v_cmp_ne_u32 vcc, {expect_sgpr_or_const}, v{vdst}")
    E.raw(f"    s_cbranch_vccnz {sp}")
    E.label(ok)

def spin(E, load_texts, check_texts, first_tag):
    ok = newlabel("ok"); sp = newlabel("spin")
    E.wait_vm(first_tag)
    E(check_texts)
    E(f"s_cbranch_vccz {ok}")
    E(f"s_mov_b32 s13, 0")
    E.label(sp)
    for t in load_texts: E.raw("    " + t)
    E.raw("    s_add_u32 s13, s13, 1")
    E.raw(f"    s_cmp_gt_u32 s13, {SPIN_MAX}")
    E.raw(f"    s_cbranch_scc1 {ok}")
    E.raw("    s_waitcnt vmcnt(0)")
    for t in check_texts: E.raw("    " + t)
    E.raw(f"    s_cbranch_vccnz {sp}")
    E.label(ok)

def snonce(E, vd, issued=False):
    ok = newlabel("nok"); sp = newlabel("nsp")
    if not issued: snonce_issue(E)
    E.wait_lg()
    E(f"s_cmp_lg_u32 s{sN}, 0")
    E(f"s_cbranch_scc1 {ok}")
    E.raw("    s_mov_b32 s13, 0")
    E.label(sp)
    for t in [f"buffer_load_dword v{vd}, off, s[{rDBG}:{rDBG+3}], 0 offset:4 sc1", "s_add_u32 s13, s13, 1", "s_waitcnt vmcnt(0)", f"v_readfirstlane_b32 s{sN}, v{vd}",
              f"s_cmp_gt_u32 s13, {SPIN_MAX}", f"s_cbranch_scc1 {ok}", f"s_cmp_eq_u32 s{sN}, 0", f"s_cbranch_scc1 {sp}", "s_nop 1"]:
        E.raw("    " + t)
    E.label(ok)
    E(f"v_mov_b32 v{vd}, s{sN}")
def snonce_issue(E):
    E.raw(f"    s_buffer_load_dword s{sN}, s[{rDBG}:{rDBG+3}], 4")

def nonce_load(E, vd):
    ld = f"buffer_load_dword v{vd}, off, s[{rDBG}:{rDBG+3}], 0 offset:4 sc1"
    E(ld, tag="nonce")
    return ld
def nonce_get(E, ld, vd):
    spin(E, [ld], [f"v_cmp_eq_u32 vcc, 0, v{vd}"], "nonce")
    E(f"v_readfirstlane_b32 s{sN}, v{vd}")

def touch(E, items):
    if "--touch" not in sys.argv: return
    for p, off in items:
        if off < (1 << 20): E(f"s_load_dword s93, s[{p}:{p+1}], {off}")
        else:
            E(f"s_mov_b32 s12, {off}")
            E(f"s_load_dword s93, s[{p}:{p+1}], s12")

def fresh(E):
    E.reset()
    E.lgq = [("__smem", set())]
    E.vmq = [("code", {("v", 255)})]

def sflag_loads(saddr, nlines, words, first):
    L = []
    for k in range(nlines):
        r = first + words * k
        if k: L.append(f"s_add_u32 s12, s{saddr}, {128*k}")
        L.append(f"s_buffer_load_dwordx{words} s[{r}:{r+words-1}], s[{rWS}:{rWS+3}], s{saddr if k == 0 else 12} glc")
    return L
def sflag_check(n, first):
    L = [f"s_mov_b32 s14, s{sN}", f"s_mov_b32 s15, s{sN}", f"s_xor_b64 s[8:9], s[{first}:{first+1}], s[14:15]"]
    for k in range(first + 2, first + n, 2): L += [f"s_xor_b64 s[{first}:{first+1}], s[{k}:{k+1}], s[14:15]", f"s_or_b64 s[8:9], s[8:9], s[{first}:{first+1}]"]
    return L
def sflag_wait(E, saddr, nlines, words, first, sleep=1):
    ok = newlabel("sok"); sp = newlabel("ssp")
    E.wait_lg()
    E.raw("    s_mov_b32 s13, 0")
    E.label(sp)
    for t in sflag_loads(saddr, nlines, words, first) + ["s_add_u32 s13, s13, 1", "s_waitcnt lgkmcnt(0)", f"s_cmp_gt_u32 s13, {SPIN_MAX}", f"s_cbranch_scc1 {ok}"] + \
             sflag_check(nlines * words, first) + [f"s_cbranch_scc0 {ok}", f"s_sleep {sleep}", f"s_branch {sp}"]:
        E.raw("    " + t)
    E.label(ok)
def word_off(dst, idx, sh, t):
    return [f"s_lshr_b32 s{t}, s{idx}, {sh}", f"s_lshl_b32 s{t}, s{t}, 7", f"s_add_u32 s{dst}, s{dst}, s{t}",
            f"s_and_b32 s{t}, s{idx}, {(1<<sh)-1}", f"s_lshl_b32 s{t}, s{t}, 2", f"s_add_u32 s{dst}, s{dst}, s{t}"]

def cmul(dst, a, b):
    assert dst != a
    return [f"v_mul_f32 v{dst}, v{a}, v{b}", f"v_mul_f32 v{dst+1}, v{a+1}, v{b}",
            f"v_fmac_f32 v{dst}, v{a+1}, v{b+2}", f"v_fmac_f32 v{dst+1}, v{a}, v{b+1}"]

def zipl(*ls):
    out = []
    for i in range(max(len(l) for l in ls)):
        for l in ls:
            if i < len(l): out.append(l[i])
    return out

def main():
    global PROFILE
    PROFILE = "--profile" in sys.argv
    head = open(f"cdna_kernels/{NAME}.s.ref").read().split("\n")
    hdr = [l for l in head if l.startswith(";") and "@launch" not in l]
    E = Emitter()
    for l in hdr: E.raw(l)
    E.raw(f"; @launch grid=({NB+NA+NC},1,1) block=(256,1,1) lds=81920")
    E.raw('.amdgcn_target "amdgcn-amd-amdhsa--gfx950"')
    E.raw(".text")
    E.raw(f".globl {NAME}_kernel")
    E.raw(".p2align 8")
    E.raw(f".type {NAME}_kernel,@function")
    E.label(f"{NAME}_kernel")
    E("s_load_dwordx16 s[16:31], s[0:1], 0")
    E("s_load_dwordx16 s[32:47], s[0:1], 64")
    E("s_memrealtime s[10:11]")
    if "--nocodepf" not in sys.argv:
        E("s_getpc_b64 s[12:13]")
        E.label("L_pc")
        E("s_lshl_b32 s3, s2, 7")
        E("s_and_b32 s3, s3, 0x7c00")
        E("v_lshrrev_b32 v254, 5, v0")
        E("v_lshl_add_u32 v254, v254, 7, s3")
        E("v_min_u32 v254, L_code_end-L_pc-4, v254")
        E("global_load_dword v255, v254, s[12:13]")
    E(f"s_sub_u32 s77, s2, {NA}")
    E(f"s_cmp_ge_u32 s77, {NB}")
    E("s_cbranch_scc1 L_notB")
    E("s_setprio 3")
    E("s_lshl_b32 s4, s77, 10")
    E("v_lshl_add_u32 v6, v0, 2, s4")
    E("s_lshl_b32 s5, s77, 3")
    E.wait_lg()
    if "--noB0" not in sys.argv:
        for k, p in enumerate((pARE, pAIM, pBRE, pBIM, pCRE, pCIM)):
            E(f"global_load_dword v{136+k}, v6, s[{p}:{p+1}]")
    E(f"s_load_dwordx2 s[100:101], s[{pLDT}:{pLDT+1}], s5")
    E(f"s_load_dwordx2 s[16:17], s[{pDSK}:{pDSK+1}], s5")
    E("s_branch L_B")
    E.label("L_notB")
    E(f"s_cmp_ge_u32 s2, {NA}")
    E("s_cbranch_scc1 L_notA")
    from genA import gen_A, gen_C
    from genB import gen_B
    me = sys.modules[__name__]
    stA = gen_A(E, me)
    E.label("L_B")
    stB = gen_B(E, me)
    E.label("L_notA")
    E(f"s_cmp_lt_u32 s2, {NB + NA + NC}")
    E("s_cbranch_scc1 L_goC")
    E("s_endpgm")
    E.label("L_goC")
    gen_C(E, me)
    E.label("L_code_end")
    E.raw('.section .rodata,"a"')
    E.raw(".p2align 6")
    E.raw(f".amdhsa_kernel {NAME}_kernel")
    for l in ("next_free_vgpr 256", "next_free_sgpr 102", "accum_offset 256", "group_segment_fixed_size 0", "kernarg_size 128",
              "user_sgpr_count 2", "user_sgpr_kernarg_segment_ptr 1", "system_sgpr_workgroup_id_x 1"):
        E.raw("  .amdhsa_" + l)
    E.raw(".end_amdhsa_kernel")
    outp = [a for a in sys.argv[1:] if not a.startswith("--")]
    if "--noalign" not in sys.argv:
        from align import align
        E.out, st = align(E.out)
        print("align: widened/nops/left", st, file=sys.stderr)
    open(outp[0] if outp else "k.s", "w").write(E.text())
    print("instrs", E.count, "nops", E.nops, file=sys.stderr)
    import json
    json.dump({"B": stB.names, "A": stA.names if stA else []}, open((outp[0] if outp else "k.s") + ".json", "w"))

if __name__ == "__main__":
    main()
```

```python
import sys, struct, math
from asmlib import *

NAME = "concat_heads__linear_kernel_hedgehog__ssm_conv_s4__prompt"
NB, NA, NC = 160, 256, 80
UT_BASE = 0
YT_BASE = 2621440
O_BASE = 2 * 2621440
PWO_BASE = 3 * 2621440
P_BASE = PWO_BASE + 851968
assert P_BASE % 65536 == 0
P_PITCH = 4096
WS_SIZE = 16 << 20
STAMP_BASE = 13 << 20
SPIN_MAX = 30000
FLAG_BASE = P_BASE + 256 * P_PITCH
FLAGY_BASE = FLAG_BASE + 131072
FLAGW_BASE = FLAG_BASE + 2 * 131072
FLAGO_BASE = FLAG_BASE + 3 * 131072
FLAGG_BASE = FLAG_BASE + 4 * 131072 + 4096
FLAGC_BASE = FLAG_BASE + 4 * 131072
sN = 83

def f32(x): return "0x%08x" % struct.unpack("<I", struct.pack("<f", x))[0]
def f32val(x): return struct.unpack("<f", struct.pack("<f", x))[0]

class Alloc:
    def __init__(self, start, end): self.n = start; self.end = end
    def __call__(self, c=1, al=None):
        al = al or (2 if c >= 2 else 1)
        self.n = (self.n + al - 1) // al * al
        r = self.n; self.n += c
        assert self.n <= self.end, f"out of registers {self.n}"
        return r

pX, pW, pPHI, pWO, pU, pARE, pAIM, pBRE, pBIM, pCRE, pCIM, pLDT, pDSK, pOUT, pDBG, pWS = [16 + 2 * i for i in range(16)]
rWS, rOUT, rDBG, rIN, rW, rWO, rPHI = 48, 52, 56, 60, 64, 68, 72

def srd(E, r, p, size):
    E(f"s_mov_b32 s{r}, s{p}")
    E(f"s_and_b32 s{r+1}, s{p+1}, 0xffff")
    E(f"s_mov_b32 s{r+2}, {size}")
    E(f"s_mov_b32 s{r+3}, 0x00020000")

PROFILE = False
BPRIO = int(([a[8:] for a in sys.argv if a.startswith('--bprio=')] + ['0'])[0])
CPRIO = int(([a[8:] for a in sys.argv if a.startswith('--cprio=')] + ['0'])[0])
OUTA = ([a[7:] for a in sys.argv if a.startswith('--outa=')] + [''])[0].replace('+', ' ')
OUTB = ([a[7:] for a in sys.argv if a.startswith('--outb=')] + ['sc1'])[0].replace('+', ' ')
APRIO = int(([a[8:] for a in sys.argv if a.startswith('--aprio=')] + ['2'])[0])
class Stamps:
    def __init__(self, first): self.first = first; self.n = 0; self.names = []
    def __call__(self, E, name):
        if not PROFILE: return
        if "--endonly" in sys.argv and name not in ("start", "tile", "gemm", "T0", "opub", "ack", "uimg", "conv", "ypub", "end"): return
        r = self.first + self.n
        if name == "start" and "--cyc" not in sys.argv and "--both" not in sys.argv:
            E(f"s_mov_b32 s{r}, s10")
            self.n += 1; self.names.append("entry"); r += 1
        E("s_memtime s[14:15]" if "--cyc" in sys.argv else "s_memrealtime s[14:15]")
        if "--both" in sys.argv:
            E("s_memtime s[12:13]")
            E.wait_lg()
            E("s_lshr_b32 s12, s12, 2")
            E("s_pack_ll_b32_b16 s14, s12, s14")
        E.wait_lg()
        E(f"s_mov_b32 s{r}, s14")
        self.n += 1; self.names.append(name)
    def dump(self, E, sW, vt):
        if not PROFILE: return
        E(f"v_mov_b32 v{vt}, 0")
        for i in range(self.n):
            E(f"v_writelane_b32 v{vt}, s{self.first+i}, {i}")
        E(f"s_lshl_b32 s3, s2, 2")
        E(f"s_add_u32 s3, s3, s{sW}")
        E(f"s_lshl_b32 s3, s3, 6")
        E(f"s_add_u32 s3, s3, {STAMP_BASE}")
        E(f"v_and_b32 v{vt+1}, 63, v0")
        E(f"v_lshlrev_b32 v{vt+1}, 2, v{vt+1}")
        E("s_mov_b64 exec, 0xffff")
        E(f"buffer_store_dword v{vt}, v{vt+1}, s[{rWS}:{rWS+3}], s3 offen")
        if "--dbg" in sys.argv:
            E(f"v_subrev_u32 v{vt}, s{sN}, v{vt}")
            E(f"v_add_u32 v{vt}, 1000, v{vt}")
            if self.first == 84:
                E(f"s_mov_b64 exec, {1 << (self.n - 1)}")
                E(f"buffer_atomic_umax v{vt}, off, s[{rDBG}:{rDBG+3}], 0 offset:4")
            else:
                E(f"s_mov_b64 exec, {(1 << self.n) - 1}")
                E(f"buffer_atomic_umax v{vt}, v{vt+1}, s[{rDBG}:{rDBG+3}], 0 offen offset:8")
        E("s_mov_b64 exec, -1")

_lbl = [0]
def newlabel(p):
    _lbl[0] += 1
    return f"L_{p}_{_lbl[0]}"

def poll_check(E, load_text, vdst, expect_sgpr_or_const, first_tag):
    ok = newlabel("ok"); sp = newlabel("spin")
    E.wait_vm(first_tag)
    E(f"v_cmp_ne_u32 vcc, {expect_sgpr_or_const}, v{vdst}")
    E(f"s_cbranch_vccz {ok}")
    E(f"s_mov_b32 s13, 0")
    E.label(sp)
    E.raw("    " + load_text)
    E.raw("    s_add_u32 s13, s13, 1")
    E.raw(f"    s_cmp_gt_u32 s13, {SPIN_MAX}")
    E.raw(f"    s_cbranch_scc1 {ok}")
    E.raw("    s_waitcnt vmcnt(0)")
    E.raw(f"    v_cmp_ne_u32 vcc, {expect_sgpr_or_const}, v{vdst}")
    E.raw(f"    s_cbranch_vccnz {sp}")
    E.label(ok)

def spin(E, load_texts, check_texts, first_tag):
    ok = newlabel("ok"); sp = newlabel("spin")
    E.wait_vm(first_tag)
    E(check_texts)
    E(f"s_cbranch_vccz {ok}")
    E(f"s_mov_b32 s13, 0")
    E.label(sp)
    for t in load_texts: E.raw("    " + t)
    E.raw("    s_add_u32 s13, s13, 1")
    E.raw(f"    s_cmp_gt_u32 s13, {SPIN_MAX}")
    E.raw(f"    s_cbranch_scc1 {ok}")
    E.raw("    s_waitcnt vmcnt(0)")
    for t in check_texts: E.raw("    " + t)
    E.raw(f"    s_cbranch_vccnz {sp}")
    E.label(ok)

def snonce(E, vd, issued=False):
    ok = newlabel("nok"); sp = newlabel("nsp")
    if not issued: snonce_issue(E)
    E.wait_lg()
    E(f"s_cmp_lg_u32 s{sN}, 0")
    E(f"s_cbranch_scc1 {ok}")
    E.raw("    s_mov_b32 s13, 0")
    E.label(sp)
    for t in [f"buffer_load_dword v{vd}, off, s[{rDBG}:{rDBG+3}], 0 offset:4 sc1", "s_add_u32 s13, s13, 1", "s_waitcnt vmcnt(0)", f"v_readfirstlane_b32 s{sN}, v{vd}",
              f"s_cmp_gt_u32 s13, {SPIN_MAX}", f"s_cbranch_scc1 {ok}", f"s_cmp_eq_u32 s{sN}, 0", f"s_cbranch_scc1 {sp}", "s_nop 1"]:
        E.raw("    " + t)
    E.label(ok)
    E(f"v_mov_b32 v{vd}, s{sN}")
def snonce_issue(E):
    E.raw(f"    s_buffer_load_dword s{sN}, s[{rDBG}:{rDBG+3}], 4")

def nonce_load(E, vd):
    ld = f"buffer_load_dword v{vd}, off, s[{rDBG}:{rDBG+3}], 0 offset:4 sc1"
    E(ld, tag="nonce")
    return ld
def nonce_get(E, ld, vd):
    spin(E, [ld], [f"v_cmp_eq_u32 vcc, 0, v{vd}"], "nonce")
    E(f"v_readfirstlane_b32 s{sN}, v{vd}")

def touch(E, items):
    if "--touch" not in sys.argv: return
    for p, off in items:
        if off < (1 << 20): E(f"s_load_dword s93, s[{p}:{p+1}], {off}")
        else:
            E(f"s_mov_b32 s12, {off}")
            E(f"s_load_dword s93, s[{p}:{p+1}], s12")

def fresh(E):
    E.reset()
    E.lgq = [("__smem", set())]
    E.vmq = [("code", {("v", 255)})]

def sflag_loads(saddr, nlines, words, first):
    L = []
    for k in range(nlines):
        r = first + words * k
        if k: L.append(f"s_add_u32 s12, s{saddr}, {128*k}")
        L.append(f"s_buffer_load_dwordx{words} s[{r}:{r+words-1}], s[{rWS}:{rWS+3}], s{saddr if k == 0 else 12} glc")
    return L
def sflag_check(n, first):
    L = [f"s_mov_b32 s14, s{sN}", f"s_mov_b32 s15, s{sN}", f"s_xor_b64 s[8:9], s[{first}:{first+1}], s[14:15]"]
    for k in range(first + 2, first + n, 2): L += [f"s_xor_b64 s[{first}:{first+1}], s[{k}:{k+1}], s[14:15]", f"s_or_b64 s[8:9], s[8:9], s[{first}:{first+1}]"]
    return L
def sflag_wait(E, saddr, nlines, words, first, sleep=1, ncheck=None):
    ok = newlabel("sok"); sp = newlabel("ssp")
    E.wait_lg()
    E.raw("    s_mov_b32 s13, 0")
    E.label(sp)
    for t in sflag_loads(saddr, nlines, words, first) + ["s_add_u32 s13, s13, 1", "s_waitcnt lgkmcnt(0)", f"s_cmp_gt_u32 s13, {SPIN_MAX}", f"s_cbranch_scc1 {ok}"] + \
             sflag_check(ncheck or nlines * words, first) + [f"s_cbranch_scc0 {ok}", f"s_sleep {sleep}", f"s_branch {sp}"]:
        E.raw("    " + t)
    E.label(ok)
def word_off(dst, idx, sh, t):
    return [f"s_lshr_b32 s{t}, s{idx}, {sh}", f"s_lshl_b32 s{t}, s{t}, 7", f"s_add_u32 s{dst}, s{dst}, s{t}",
            f"s_and_b32 s{t}, s{idx}, {(1<<sh)-1}", f"s_lshl_b32 s{t}, s{t}, 2", f"s_add_u32 s{dst}, s{dst}, s{t}"]

def cmul(dst, a, b):
    assert dst != a
    return [f"v_mul_f32 v{dst}, v{a}, v{b}", f"v_mul_f32 v{dst+1}, v{a+1}, v{b}",
            f"v_fmac_f32 v{dst}, v{a+1}, v{b+2}", f"v_fmac_f32 v{dst+1}, v{a}, v{b+1}"]

def zipl(*ls):
    out = []
    for i in range(max(len(l) for l in ls)):
        for l in ls:
            if i < len(l): out.append(l[i])
    return out

def main():
    global PROFILE
    PROFILE = "--profile" in sys.argv
    head = open(f"cdna_kernels/{NAME}.s.ref").read().split("\n")
    hdr = [l for l in head if l.startswith(";") and "@launch" not in l]
    E = Emitter()
    for l in hdr: E.raw(l)
    E.raw(f"; @launch grid=({NB+NA+NC},1,1) block=(256,1,1) lds=81920")
    E.raw('.amdgcn_target "amdgcn-amd-amdhsa--gfx950"')
    E.raw(".text")
    E.raw(f".globl {NAME}_kernel")
    E.raw(".p2align 8")
    E.raw(f".type {NAME}_kernel,@function")
    E.label(f"{NAME}_kernel")
    E("s_load_dwordx16 s[16:31], s[0:1], 0")
    E("s_load_dwordx16 s[32:47], s[0:1], 64")
    E("s_memrealtime s[10:11]")
    if "--nocodepf" not in sys.argv:
        E("s_getpc_b64 s[12:13]")
        E.label("L_pc")
        E("s_lshl_b32 s3, s2, 7")
        E("s_and_b32 s3, s3, 0x7c00")
        E("v_lshrrev_b32 v254, 5, v0")
        E("v_lshl_add_u32 v254, v254, 7, s3")
        E("v_min_u32 v254, L_code_end-L_pc-4, v254")
        E("global_load_dword v255, v254, s[12:13]")
    E(f"s_sub_u32 s77, s2, {NA}")
    E(f"s_cmp_ge_u32 s77, {NB}")
    E("s_cbranch_scc1 L_notB")
    E("s_setprio 3")
    E("s_lshl_b32 s4, s77, 10")
    E("v_lshl_add_u32 v6, v0, 2, s4")
    E("s_lshl_b32 s5, s77, 3")
    E.wait_lg()
    PAR = ([a[6:] for a in sys.argv if a.startswith('--par=')] + ['early'])[0]
    if "--noB0" not in sys.argv and PAR == "early":
        for k, p in enumerate((pARE, pAIM, pBRE, pBIM, pCRE, pCIM)):
            E(f"global_load_dword v{136+k}, v6, s[{p}:{p+1}]")
    if PAR == "touch":
        for k, p in enumerate((pARE, pAIM, pBRE, pBIM, pCRE, pCIM)):
            E(f"s_load_dword s93, s[{p}:{p+1}], s4")
    E(f"s_load_dwordx2 s[100:101], s[{pLDT}:{pLDT+1}], s5")
    E(f"s_load_dwordx2 s[16:17], s[{pDSK}:{pDSK+1}], s5")
    E("s_branch L_B")
    E.label("L_notB")
    E(f"s_cmp_ge_u32 s2, {NA}")
    E("s_cbranch_scc1 L_notA")
    from genA import gen_A, gen_C
    from genB import gen_B
    me = sys.modules[__name__]
    stA = gen_A(E, me)
    E.label("L_B")
    if PAR != "early":
        if PAR == "touch": E.raw("    s_waitcnt lgkmcnt(0)")
        for k, p in enumerate((pARE, pAIM, pBRE, pBIM, pCRE, pCIM)):
            E.raw(f"    global_load_dword v{136+k}, v6, s[{p}:{p+1}]")
    stB = gen_B(E, me)
    E.label("L_notA")
    E(f"s_cmp_lt_u32 s2, {NB + NA + NC}")
    E("s_cbranch_scc1 L_goC")
    E("s_endpgm")
    E.label("L_goC")
    gen_C(E, me)
    E.label("L_code_end")
    E.raw('.section .rodata,"a"')
    E.raw(".p2align 6")
    E.raw(f".amdhsa_kernel {NAME}_kernel")
    for l in ("next_free_vgpr 256", "next_free_sgpr 102", "accum_offset 256", "group_segment_fixed_size 0", "kernarg_size 128",
              "user_sgpr_count 2", "user_sgpr_kernarg_segment_ptr 1", "system_sgpr_workgroup_id_x 1"):
        E.raw("  .amdhsa_" + l)
    E.raw(".end_amdhsa_kernel")
    outp = [a for a in sys.argv[1:] if not a.startswith("--")]
    if "--noalign" not in sys.argv:
        from align import align
        E.out, st = align(E.out)
        print("align: widened/nops/left", st, file=sys.stderr)
    open(outp[0] if outp else "k.s", "w").write(E.text())
    print("instrs", E.count, "nops", E.nops, file=sys.stderr)
    import json
    json.dump({"B": stB.names, "A": stA.names if stA else []}, open((outp[0] if outp else "k.s") + ".json", "w"))

if __name__ == "__main__":
    main()
```

```python
import re

def v(n, c=1): return f"v{n}" if c == 1 else f"v[{n}:{n+c-1}]"
def s(n, c=1): return f"s{n}" if c == 1 else f"s[{n}:{n+c-1}]"

_MOD = re.compile(r"\s+(?:(?:op_sel|op_sel_hi|neg_lo|neg_hi):\[[^\]]*\]|offset\d?:\S+|offen|idxen|lds|sc0|sc1|nt|glc|clamp|mul:\d|div:\d|row_\w+:\S+|quad_perm:\[[^\]]*\]|row_mask:\S+|bank_mask:\S+|bound_ctrl:\S+|wave_\w+:\S+|row_mirror|row_half_mirror)(?=\s|$)")
TRANS = ("v_exp_f32", "v_log_f32", "v_rcp_f32", "v_rsq_f32", "v_sqrt_f32", "v_sin_f32", "v_cos_f32")

def regs_of(op):
    op = op.strip()
    op = op.lstrip("-")
    m = re.fullmatch(r"(?:abs\()?\|?([vs])(\d+)\|?\)?", op)
    if m: return [(m.group(1), int(m.group(2)))]
    m = re.fullmatch(r"([vs])\[(\d+):(\d+)\]", op)
    if m: return [(m.group(1), i) for i in range(int(m.group(2)), int(m.group(3)) + 1)]
    if op == "vcc": return [("s", 106), ("s", 107)]
    if op == "vcc_lo": return [("s", 106)]
    if op == "vcc_hi": return [("s", 107)]
    if op == "exec": return [("s", 126), ("s", 127)]
    if op == "m0": return [("s", 124)]
    return []

class Ins:
    def __init__(self, text):
        self.text = text
        t = text.split(";")[0].strip()
        parts = t.split(None, 1)
        self.op = parts[0]
        rest = " " + (parts[1] if len(parts) > 1 else "")
        self.is_lds_dma = bool(re.search(r"\slds(\s|$)", rest)) or self.op.startswith("global_load_lds")
        self.dpp = bool(re.search(r"(row_\w+:|quad_perm|wave_\w+:|row_mirror|row_half_mirror)", rest))
        prev = None
        while prev != rest:
            prev = rest
            rest = _MOD.sub("", rest)
        ops = [o.strip() for o in rest.split(",")] if rest.strip() else []
        self.ops = ops
        op = self.op
        R = [regs_of(o) for o in ops]
        self.kind = None
        self.w = []; self.r = []
        self.srcc = []; self.ab = []
        base = op.replace("_e32", "").replace("_e64", "").replace("_dpp", "")
        self.base = base
        if op.startswith("v_mfma"):
            self.kind = "mfma"
            self.w = R[0]; self.ab = R[1] + R[2]; self.srcc = R[3]; self.r = self.ab + self.srcc
            self.passes = 8 if "32x32x16" in op else 4
            assert "32x32x16" in op or "16x16x32" in op
        elif op.startswith("v_"):
            self.kind = "valu"
            self.w = list(R[0]); self.r = [x for l in R[1:] for x in l]
            if base.startswith("v_permlane") and "swap" in base:
                self.w = R[0] + R[1]; self.r = R[0] + R[1]
            if base in ("v_fmac_f32", "v_dot2c_f32_bf16", "v_pk_fmac_f16", "v_writelane_b32") or self.dpp:
                self.r += R[0]
            if base in ("v_add_co_u32", "v_sub_co_u32", "v_addc_co_u32"):
                self.w = R[0] + R[1]; self.r = [x for l in R[2:] for x in l]
        elif op.startswith("ds_"):
            self.kind = "ds"
            if op.startswith("ds_read") or op.startswith("ds_bpermute") or op.startswith("ds_swizzle"):
                self.w = R[0]; self.r = [x for l in R[1:] for x in l]
                if "d16" in op: self.r += R[0]
            else:
                self.r = [x for l in R for x in l]
        elif op.startswith("buffer_") or op.startswith("global_"):
            self.kind = "vmem"
            if "load" in op and not self.is_lds_dma:
                self.w = R[0]; self.r = [x for l in R[1:] for x in l]
                if "d16" in op: self.r += R[0]
            else:
                self.r = [x for l in R for x in l]
                if self.is_lds_dma: self.r.append(("s", 124))
            self.wide_store = None
            if "store" in op and ("x4" in op or "x3" in op):
                self.wide_store = R[0] if op.startswith("buffer_") else R[1]
        elif (op.startswith("s_load") or op.startswith("s_buffer_load")) or op.startswith("s_memtime") or op.startswith("s_memrealtime"):
            self.kind = "smem"; self.w = R[0]; self.r = [x for l in R[1:] for x in l]
        elif op.startswith("s_"):
            self.kind = "salu"
            if op.startswith("s_cmp") or op.startswith("s_cbranch") or op in ("s_branch", "s_barrier", "s_nop", "s_waitcnt", "s_endpgm", "s_setprio", "s_sleep", "s_bitcmp1_b32", "s_bitcmp0_b32", "s_setpc_b64"):
                self.r = [x for l in R for x in l]
            else:
                self.w = R[0] if R else []; self.r = [x for l in R[1:] for x in l]
                if "saveexec" in op: self.w = self.w + [("s", 126), ("s", 127)]
        else:
            raise ValueError("unknown op " + text)

class Emitter:
    def __init__(self):
        self.out = []
        self.reset()
        self.nops = 0
        self.count = 0
    def reset(self):
        self.pos = 0
        self.valu_w = {}; self.trans_w = {}; self.mfma_w = {}; self.mfma_c = {}; self.salu_w = {}; self.store_d = {}
        self.vmq = []; self.lgq = []
    def raw(self, text): self.out.append(text)
    def comment(self, text): self.out.append("    ; " + text)
    def label(self, name): self.out.append(name + ":")
    def _put(self, text, states=1):
        self.out.append("    " + text); self.pos += states; self.count += 1
    def _wait(self, vm=None, lg=None):
        parts = []
        if vm is not None:
            vm = min(vm, 63); parts.append(f"vmcnt({vm})"); self.vmq = self.vmq[len(self.vmq) - vm:] if vm < len(self.vmq) else self.vmq
            if vm == 0: self.vmq = []
        if lg is not None:
            lg = min(lg, 15); parts.append(f"lgkmcnt({lg})"); self.lgq = self.lgq[len(self.lgq) - lg:] if lg < len(self.lgq) else self.lgq
            if lg == 0: self.lgq = []
        self._put("s_waitcnt " + " ".join(parts))
    def wait_vm(self, tag=None):
        if tag is None:
            self._wait(vm=0); return
        idx = [i for i, e in enumerate(self.vmq) if e[0] == tag]
        if idx: self._wait(vm=len(self.vmq) - 1 - idx[-1])
    def wait_lg(self, tag=None):
        if tag is None:
            self._wait(lg=0); return
        idx = [i for i, e in enumerate(self.lgq) if e[0] == tag]
        if idx: self._wait(lg=len(self.lgq) - 1 - idx[-1])
    def nop(self, n):
        while n > 0:
            k = min(n, 16); self._put(f"s_nop {k-1}", k); self.nops += 1; n -= k
    def __call__(self, text, tag=None):
        if isinstance(text, (list, tuple)) and not isinstance(text, str):
            self.items(text); return
        I = Ins(text)
        touched = set(I.r) | set(I.w)
        vm = lg = None
        for i, e in enumerate(self.vmq):
            if e[1] & touched: vm = len(self.vmq) - 1 - i
        for i, e in enumerate(self.lgq):
            if e[1] & touched: lg = len(self.lgq) - 1 - i
        if lg is not None and any(e[0] == "__smem" for e in self.lgq): lg = 0
        if vm is not None or lg is not None: self._wait(vm, lg)
        need = 0
        def req(tab, regs, ws):
            nonlocal need
            for r in regs:
                if r in tab: need = max(need, ws - (self.pos - tab[r] - 1))
        vr = [r for r in I.r if r[0] == "v"]; sr = [r for r in I.r if r[0] == "s"]
        vw = [r for r in I.w if r[0] == "v"]
        if I.kind == "mfma":
            req(self.valu_w, vr, 2)
            for r in I.ab:
                if r in self.mfma_w:
                    p, ps, d = self.mfma_w[r]; need = max(need, (8 if ps == 4 else 12) - (self.pos - p - 1))
            for r in list(I.srcc) + list(I.w):
                if r in self.mfma_w:
                    p, ps, d = self.mfma_w[r]
                    if d == tuple(I.srcc) and ps == I.passes and tuple(I.w) == d: continue
                    need = max(need, (8 if ps == 4 else 12) - (self.pos - p - 1))
        elif I.kind in ("valu", "ds", "vmem"):
            for r in vr + vw:
                if r in self.mfma_w:
                    p, ps, d = self.mfma_w[r]; need = max(need, (8 if ps == 4 else 12) - (self.pos - p - 1))
            for r in vw:
                if r in self.mfma_c:
                    p, ps = self.mfma_c[r]; need = max(need, (3 if ps == 4 else 7) - (self.pos - p - 1))
            req(self.store_d, vw, 2)
            if I.kind == "valu":
                if I.base not in TRANS: req(self.trans_w, vr, 1)
                if I.base.startswith("v_permlane") or I.dpp: req(self.valu_w, vr, 2)
                if I.base in ("v_readfirstlane_b32", "v_readlane_b32"): req(self.valu_w, vr, 1)
                req(self.valu_w, sr, 4 if I.base in ("v_readlane_b32", "v_writelane_b32") else 2)
                if I.base == "v_cndmask_b32" and len(I.ops) == 3: req(self.valu_w, [("s", 106)], 2)
            else:
                req(self.trans_w, vr, 1)
            if I.kind == "vmem":
                req(self.valu_w, sr, 5)
                if I.is_lds_dma: req(self.salu_w, [("s", 124)], 1)
        elif I.kind == "salu":
            req(self.valu_w, sr, 1)
        if need > 0: self.nop(need)
        states = 1
        if I.op == "s_nop": states = int(I.ops[0], 0) + 1
        p = self.pos
        self._put(text, states)
        for r in I.w:
            for tab in (self.valu_w, self.trans_w, self.mfma_w, self.salu_w):
                tab.pop(r, None)
        if I.kind == "mfma":
            for r in I.w: self.mfma_w[r] = (p, I.passes, tuple(I.w))
            for r in I.srcc: self.mfma_c[r] = (p, I.passes)
        elif I.kind == "valu":
            for r in I.w:
                self.valu_w[r] = p
                if I.base in TRANS: self.trans_w[r] = p
        elif I.kind == "salu":
            for r in I.w: self.salu_w[r] = p
        elif I.kind == "ds":
            self.lgq.append((tag, set(I.w)))
        elif I.kind == "smem":
            self.lgq.append(("__smem", set(I.w) - {("s", 93), ("s", 23)}))
        elif I.kind == "vmem":
            self.vmq.append((tag, set(I.w)))
            if I.wide_store:
                for r in I.wide_store: self.store_d[r] = p
    def items(self, L):
        for it in L:
            if isinstance(it, str): self(it)
            elif callable(it): it(self)
            elif it[0] == "tag": self(it[1], tag=it[2])
            elif it[0] == "waitvm": self.wait_vm(it[1])
            elif it[0] == "waitlg": self.wait_lg(it[1])
            elif it[0] == "group": self.items(it[1])
            else: raise ValueError(it)
    def text(self): return "\n".join(self.out) + "\n"

def merge(a, b, lead=0):
    out = list(b[:lead]); b = b[lead:]
    na, nb = len(a), len(b)
    j = 0
    for i, x in enumerate(a):
        out.append(x)
        while j < nb and (j + 1) * na <= (i + 1) * nb + (na - 1) * 0 :
            out.append(b[j]); j += 1
    out += b[j:]
    return out


def gaps(M, streams):
    slot = [[] for _ in M]
    for items, g0, g1 in streams:
        n = len(items); g1 = min(g1, len(M) - 1)
        for k, it in enumerate(items):
            slot[g0 + (k * (g1 - g0 + 1)) // n].append(it)
    out = []
    for x, sl in zip(M, slot):
        out.append(x)
        out += [i for i in sl if not i.startswith("v_")] + [i for i in sl if i.startswith("v_")]
    return out
```

```python
import math, sys
from asmlib import *

TA = [[(0, 0), (0, 2), (0, 4), (1, 4)], [(0, 1), (0, 3), (1, 3), (2, 3)], [(1, 0), (1, 2), (2, 2), (2, 4)], [(1, 1), (2, 0), (2, 1), None]]
M16 = "v_mfma_f32_16x16x32_bf16"; M32 = "v_mfma_f32_32x32x16_bf16"

def div_const(dst, src, d):
    return [f"v_mul_u32_u24 v{dst}, {(65536 + d - 1)//d}, v{src}", f"v_lshrrev_b32 v{dst}, 16, v{dst}"]

def put_flag(E, G, sW, vNon, saddr):
    skip = G.newlabel("nofl")
    E(f"s_cmp_lg_u32 s{sW}, 0")
    E(f"s_cbranch_scc1 {skip}")
    E("s_mov_b64 exec, 1")
    E.raw(f"    buffer_store_dword v{vNon}, off, s[{G.rWS}:{G.rWS+3}], s{saddr} sc1")
    E("s_mov_b64 exec, -1")
    E.label(skip)

def flag_addr(dst, idx, base, t):
    return [f"s_lshr_b32 s{dst}, s{idx}, 3", f"s_lshl_b32 s{dst}, s{dst}, 7", f"s_and_b32 s{t}, s{idx}, 7", f"s_lshl_b32 s{t}, s{t}, 2",
            f"s_add_u32 s{dst}, s{dst}, s{t}", f"s_add_u32 s{dst}, s{dst}, {base}"]

def piece_voff(E, vL, dst, t, pitch):
    for m in range(3):
        if m: E(f"v_add_u32 v{t}, {64*m}, v{vL}")
        ci = t if m else vL
        E(div_const(t + 1, ci, 20))
        E(f"v_mul_u32_u24 v{t+1}, {pitch - 320}, v{t+1}")
        E(f"v_lshl_add_u32 v{dst[m]}, v{vL}, 4, v{t+1}")

def gen_C(E, G):
    rWS, rDBG, rWO = G.rWS, G.rDBG, G.rWO
    G.fresh(E)
    sW, sU = 76, 77
    vL, vo, t, vT, vS, D, vNon = 1, [2, 3, 4], 6, [8, 9, 10], [11, 12, 13], 16, 14
    E(f"v_and_b32 v{vL}, 63, v0")
    E(f"v_lshrrev_b32 v{t}, 6, v0")
    E(f"s_sub_u32 s{sU}, s2, {G.NB + G.NA}")
    E(f"v_readfirstlane_b32 s{sW}, v{t}")
    piece_voff(E, vL, vo, t, 1280)
    E(f"s_mul_i32 s4, s{sU}, {8*1280}")
    E(f"s_mul_i32 s5, s{sW}, 320")
    E(f"s_add_u32 s4, s4, s5")
    E(f"s_lshl_b32 s6, s{sW}, 12")
    E(f"s_mov_b32 m0, s6")
    E.wait_lg()
    G.srd(E, rWO, G.pWO, 819200)
    for m in range(3):
        if m == 2: E("s_mov_b32 exec_hi, 0")
        E(f"buffer_load_dwordx4 v{vo[m]}, s[{rWO}:{rWO+3}], s4 offen offset:{1024*m} lds")
    E("s_mov_b64 exec, -1")
    G.srd(E, rWS, G.pWS, G.WS_SIZE)
    G.srd(E, rDBG, G.pDBG, 256)
    for m in range(3):
        E(f"v_lshrrev_b32 v{t}, 4, v{vL}")
        E(f"v_add_u32 v{t}, {4*m}, v{t}")
        E(f"v_min_u32 v{t}, 9, v{t}")
        E(f"v_cmp_lt_u32 vcc, 4, v{t}")
        E(f"v_lshlrev_b32 v{vT[m]}, 3, v{t}")
        E(f"v_add_u32 v{t+1}, 120, v{vT[m]}")
        E(f"v_cndmask_b32 v{vT[m]}, v{vT[m]}, v{t+1}, vcc")
        E(f"v_lshlrev_b32 v{vS[m]}, 10, v{t}")
        E(f"v_add_u32 v{t+1}, {95*1024}, v{vS[m]}")
        E(f"v_cndmask_b32 v{vS[m]}, v{vS[m]}, v{t+1}, vcc")
        E(f"v_and_b32 v{t}, 3, v{vL}")
        E(f"v_mul_u32_u24 v{t}, 40, v{t}")
        E(f"v_bfe_u32 v{t+1}, v{vL}, 2, 2")
        E(f"v_mul_u32_u24 v{t+1}, 320, v{t+1}")
        E(f"v_add3_u32 v{vT[m]}, v{vT[m]}, v{t}, v{t+1}")
        E(f"v_add_u32 v{vT[m]}, s6, v{vT[m]}")
        E(f"v_and_b32 v{t}, 15, v{vL}")
        E(f"v_lshl_add_u32 v{vS[m]}, v{t}, 4, v{vS[m]}")
    E(f"s_mul_i32 s4, s{sW}, {200*1024}")
    E(f"s_lshr_b32 s5, s{sU}, 2")
    E(f"s_mul_i32 s5, s5, 5120")
    E(f"s_add_u32 s4, s4, s5")
    E(f"s_and_b32 s5, s{sU}, 3")
    E(f"s_lshl_b32 s5, s5, 8")
    E(f"s_add_u32 s4, s4, s5")
    E(f"s_add_u32 s4, s4, {G.PWO_BASE}")
    E(flag_addr(7, sU, G.FLAGC_BASE, 5))
    E.wait_vm()
    for m in range(3):
        for a in range(2): E(f"ds_read_b64_tr_b16 {v(D+4*m+2*a,2)}, v{vT[m]} offset:{1280*a}")
    for m in range(3):
        if m == 2:
            E.wait_lg()
            E("s_mov_b32 exec_hi, 0")
        E(f"buffer_store_dwordx4 {v(D+4*m,4)}, v{vS[m]}, s[{rWS}:{rWS+3}], s4 offen sc1")
    E("s_mov_b64 exec, -1")
    nld = G.nonce_load(E, vNon)
    G.nonce_get(E, nld, vNon)
    E.wait_vm()
    E("s_barrier")
    put_flag(E, G, sW, vNon, 7)
    E("s_endpgm")

def gen_A(E, G):
    f32, Alloc, srd, spin, newlabel = G.f32, G.Alloc, G.srd, G.spin, G.newlabel
    rWS, rOUT, rDBG, rIN, rW, rPHI = G.rWS, G.rOUT, G.rDBG, G.rIN, G.rW, G.rPHI
    sN = G.sN
    G.fresh(E)
    ST = G.Stamps(24)
    sW, sR, sP, sPQ, sTBo, sCT, sROT = 76, 77, 78, 79, 80, 81, 82
    sT0, sT1, sT2 = 4, 5, 6
    sWO, sXO, sWE, sXE = 84, 85, 86, 87
    sW4, sXR, sH, sFT = 88, 89, 90, 91
    sPS, sOS, sFO, sPL, sOL, sWL, sFC, sOUT, sFP, sF1, sF2 = 96, 97, 98, 99, 100, 101, 45, 46, 92, 47, 3
    XR = 49152
    TAB = 36864; ZTAB = TAB + 3200; KVT = 45056; ZKV = ZTAB
    def wslot(sig): return 16384 * ((sig + 1) % 3)
    E(f"s_setprio {G.APRIO}")
    A = Alloc(1, 256)
    vL = A(); vHH = A(); vL16 = A()
    ACC = A(64, 4)
    WF = A(32, 4)
    XF = A(32, 4)
    PF = A(48, 4)
    TM = A(36, 4)
    ID = A(4, 4)
    vXo = [A() for _ in range(4)]
    vWo = [A() for _ in range(4)]
    vWt = [A() for _ in range(4)]
    vXrs = [A() for _ in range(4)]
    MP = A(); vMn = A(); vNon = A()
    vPk = A(); vVw = A(); vA = A(); vB = A(); vS1 = A(); vS2 = A(); vPi = A(); vKa = A(); vO1 = A(); vO3 = A(); vC4 = A()
    vRw = A(); vSo = [A() for _ in range(3)]
    vFl = A(); vFc = A()
    vt = [TM + 20 + i for i in range(12)]
    vG, vC, vGam, vR4 = vt[8], vt[9], vt[10], vt[11]
    E(f"v_and_b32 v{vL}, 63, v0")
    E(f"v_lshrrev_b32 v{vt[0]}, 6, v0")
    E(f"v_lshrrev_b32 v{vG}, 4, v{vL}")
    E(f"v_readfirstlane_b32 s{sW}, v{vt[0]}")
    E(f"s_and_b32 s{sT0}, s2, 7")
    E(f"s_lshr_b32 s{sT1}, s2, 3")
    E(f"s_lshr_b32 s{sCT}, s{sT1}, 2")
    E(f"s_and_b32 s{sT1}, s{sT1}, 3")
    E(f"s_lshl_b32 s{sTBo}, s{sT0}, 2")
    E(f"s_add_u32 s{sTBo}, s{sTBo}, s{sT1}")
    E(f"s_lshr_b32 s{sR}, s{sT0}, 1")
    E(f"s_lshl_b32 s{sR}, s{sR}, 2")
    E(f"s_add_u32 s{sR}, s{sR}, s{sT1}")
    E(f"s_lshl_b32 s{sT2}, s{sCT}, 2")
    E(f"s_lshr_b32 s{sT2}, 0x64317520, s{sT2}")
    E(f"s_and_b32 s{sT2}, s{sT2}, 7")
    E(f"s_and_b32 s{sP}, s{sT0}, 1")
    E(f"s_lshl_b32 s{sP}, s{sP}, 3")
    E(f"s_add_u32 s{sP}, s{sP}, s{sT2}")
    E(f"s_xor_b32 s{sPQ}, s{sP}, 1")
    E(f"s_mul_i32 s{sROT}, s{sT1}, 3")
    E(f"s_add_u32 s{sROT}, s{sROT}, s{sT2}")
    E(f"s_sub_u32 s{sT0}, s{sROT}, 10")
    E(f"s_cmp_ge_u32 s{sROT}, 10")
    E(f"s_cselect_b32 s{sROT}, s{sT0}, s{sROT}")
    E(f"s_mul_i32 s{sT0}, s{sPQ}, 80")
    E(f"s_mul_i32 s{sT1}, s{sP}, 80")
    E(f"s_sub_u32 s{sT2}, s{sT1}, s{sT0}")
    E(f"s_add_u32 s{sT2}, s{sT2}, {1280-80}")
    for m in range(4):
        if m: E(f"v_add_u32 v{vt[0]}, {64*m}, v{vL}")
        ci = vt[0] if m else vL
        if m == 3: E(f"v_min_u32 v{vt[0]}, 239, v{vt[0]}")
        E(f"v_mul_u32_u24 v{vt[1]}, 0x1112, v{ci}")
        E(f"v_lshrrev_b32 v{vt[1]}, 16, v{vt[1]}")
        E(f"v_mul_u32_u24 v{vt[2]}, 15, v{vt[1]}")
        E(f"v_sub_u32 v{vt[2]}, v{ci}, v{vt[2]}")
        E(f"v_and_b32 v{vt[3]}, 3, v{vt[1]}")
        E(f"v_lshrrev_b32 v{vt[1]}, 2, v{vt[1]}")
        E(f"v_lshl_add_u32 v{vt[1]}, v{vt[3]}, 2, v{vt[1]}")
        E(f"v_cmp_lt_u32 vcc, 4, v{vt[2]}")
        E(f"v_mul_u32_u24 v{vt[1]}, 3840, v{vt[1]}")
        E(f"v_lshl_add_u32 v{vt[1]}, v{vt[2]}, 4, v{vt[1]}")
        E(f"v_add_u32 v{vt[3]}, s{sT2}, v{vt[1]}")
        E(f"v_cndmask_b32 v{vt[1]}, v{vt[1]}, v{vt[3]}, vcc")
        E(f"v_cmp_lt_u32 vcc, 9, v{vt[2]}")
        E(f"v_add_u32 v{vt[3]}, 1200, v{vt[1]}")
        E(f"v_cndmask_b32 v{vt[1]}, v{vt[1]}, v{vt[3]}, vcc")
        E(f"v_add_u32 v{vWo[m]}, {3072 - 1024*m}, v{vt[1]}")
    E(f"v_lshrrev_b32 v{vt[0]}, 3, v{vL}")
    E(f"v_and_b32 v{vt[1]}, 7, v{vL}")
    E(f"v_xor_b32 v{vt[1]}, v{vt[1]}, v{vG}")
    E(f"v_mul_u32_u24 v{vt[0]}, 1280, v{vt[0]}")
    E(f"v_lshl_add_u32 v{vXo[0]}, v{vt[1]}, 4, v{vt[0]}")
    E(f"v_xor_b32 v{vt[1]}, 4, v{vt[1]}")
    E(f"v_lshl_add_u32 v{vXo[1]}, v{vt[1]}, 4, v{vt[0]}")
    E(f"v_add_u32 v{vXo[2]}, {2*(8*1280-1024)}, v{vXo[0]}")
    E(f"v_add_u32 v{vXo[3]}, {3*(8*1280-1024)}, v{vXo[1]}")
    E(f"v_add_u32 v{vXo[1]}, {1*(8*1280-1024)}, v{vXo[1]}")
    E(f"s_mul_i32 s{sWE}, s{sW}, {16*3840}")
    E(f"s_add_u32 s{sWE}, s{sWE}, s{sT0}")
    E(f"s_mul_i32 s{sWO}, s{sROT}, {64*3840}")
    E(f"s_add_u32 s{sWO}, s{sWO}, s{sWE}")
    E(f"s_add_u32 s{sWE}, s{sWE}, {640*3840}")
    E(f"s_lshl_b32 s{sXE}, s{sR}, 2")
    E(f"s_add_u32 s{sXE}, s{sXE}, s{sW}")
    E(f"s_mul_i32 s{sXE}, s{sXE}, {32*1280}")
    E(f"s_lshl_b32 s{sXO}, s{sROT}, 7")
    E(f"s_add_u32 s{sXO}, s{sXO}, s{sXE}")
    E(f"s_add_u32 s{sXE}, s{sXE}, 1280")
    E(f"s_lshl_b32 s{sW4}, s{sW}, 12")
    E(f"s_lshl_b32 s{sXR}, s{sW}, 13")
    E(f"s_add_u32 s{sXR}, s{sXR}, {XR}")
    E.wait_lg()
    ST(E, "start")
    E(f"s_sub_u32 s{G.pW}, s{G.pW}, 3072")
    E(f"s_subb_u32 s{G.pW+1}, s{G.pW+1}, 0")
    srd(E, rW, G.pW, 2457600 + 3072)
    srd(E, rIN, G.pX, 2621440)

    def dmaW(sig):
        L = []
        for m in range(4):
            g = []
            if m == 0: g.append(f"s_add_u32 m0, s{sW4}, {wslot(sig)}")
            g.append(("tag", f"buffer_load_dwordx4 v{vWo[m]}, s[{rW}:{rW+3}], s{sWO} offen offset:{1024*m} lds", f"S{sig}"))
            if m == 3: g += [f"s_add_u32 s{sWO}, s{sWO}, {64*3840}", f"s_cmp_ge_u32 s{sWO}, s{sWE}", f"s_cselect_b32 s9, {640*3840}, 0", f"s_sub_u32 s{sWO}, s{sWO}, s9"]
            L.append(("group", g))
        return L
    def dmaX(sig):
        L = []
        for i in range(4):
            g = []
            if i == 0: g.append(f"s_add_u32 m0, s{sXR}, {4096*(sig%2)}")
            g.append(("tag", f"buffer_load_dwordx4 v{vXo[i]}, s[{rIN}:{rIN+3}], s{sXO} offen offset:{1024*i} lds", f"S{sig}"))
            if i == 3: g += [f"s_add_u32 s{sXO}, s{sXO}, 128", f"s_cmp_ge_u32 s{sXO}, s{sXE}", f"s_cselect_b32 s9, 1280, 0", f"s_sub_u32 s{sXO}, s{sXO}, s9"]
            L.append(("group", g))
        return L
    E(dmaW(0)); E(dmaX(0))
    srd(E, rPHI, G.pPHI, 25600)
    vPhi = TM + 18
    E(f"v_lshlrev_b32 v{vPhi}, 4, v0")
    E(f"v_cmp_gt_u32 vcc, 200, v0")
    E(f"v_mov_b32 v{vPhi+1}, 0x100000")
    E(f"s_lshr_b32 s{sT0}, s{sP}, 1")
    E(f"s_mul_i32 s{sT0}, s{sT0}, 3200")
    E(f"v_cndmask_b32 v{vPhi+1}, v{vPhi+1}, v{vPhi}, vcc")
    E(f"buffer_load_dwordx4 {v(TM,4)}, v{vPhi+1}, s[{rPHI}:{rPHI+3}], s{sT0} offen")
    E(dmaW(1)); E(dmaX(1))
    srd(E, rWS, G.pWS, G.WS_SIZE)
    PN = TM + 32
    for i in range(4): E(f"v_mov_b32 v{PN+i}, -1")
    E(f"v_lshlrev_b32 v{vL16}, 4, v{vL}")
    E(f"s_lshl_b32 s{sPL}, s{sPQ}, 16")
    E(f"s_add_u32 s{sPL}, s{sPL}, {G.P_BASE}")
    E(f"s_lshl_b32 s{sPS}, s{sP}, 4")
    E(f"s_add_u32 s{sPS}, s{sPS}, s{sR}")
    E(f"s_lshl_b32 s{sPS}, s{sPS}, 12")
    E(f"s_add_u32 s{sPS}, s{sPS}, {G.P_BASE}")
    E(f"s_lshl_b32 s{sT0}, s{sW}, 10")
    E(f"s_add_u32 s95, s{sT0}, s{sPS}")
    srd(E, rDBG, G.pDBG, 256)
    srd(E, rOUT, G.pOUT, 5242880)
    E(f"v_and_b32 v{vC}, 15, v{vL}")
    E(f"v_bfe_u32 v{vGam}, v{vL}, 4, 1")
    E(f"v_bfe_u32 v{vt[0]}, v{vL}, 1, 1")
    E(f"v_lshl_add_u32 v{vGam}, v{vGam}, 1, v{vt[0]}")
    E(f"v_bfe_u32 v{vR4}, v{vL}, 2, 2")
    E(f"v_lshrrev_b32 v{vHH}, 5, v{vL}")
    E(f"v_lshlrev_b32 v{vt[0]}, 3, v{vGam}")
    E(f"v_and_b32 v{vt[1]}, 1, v{vL}")
    E(f"v_mul_u32_u24 v{vt[1]}, 5, v{vt[1]}")
    E(f"v_lshl_add_u32 v{vt[2]}, v{vR4}, 1, v{vHH}")
    E(f"v_mul_u32_u24 v{vt[2]}, 480, v{vt[2]}")
    for T in range(4):
        pk = sum((30 if e is None else 10 * e[0] + e[1]) << (8 * i) for i, e in enumerate(TA[T]))
        E(f"s_mov_b32 s9, {pk}")
        E(f"v_bfe_u32 v{vt[3]}, s9, v{vt[0]}, 8")
        E(f"v_add_u32 v{vt[3]}, v{vt[3]}, v{vt[1]}")
        E(f"v_min_u32 v{vt[3]}, 31, v{vt[3]}")
        E(f"v_lshl_add_u32 v{vWt[T]}, v{vt[3]}, 3, v{vt[2]}")
    E(f"v_and_b32 v{vt[0]}, 31, v{vL}")
    E(f"v_bfe_u32 v{vt[1]}, v{vL}, 1, 3")
    E(f"v_xor_b32 v{vt[1]}, v{vt[1]}, v{vHH}")
    E(f"v_lshlrev_b32 v{vt[0]}, 7, v{vt[0]}")
    E(f"v_lshl_add_u32 v{vt[0]}, v{vt[1]}, 4, v{vt[0]}")
    for j in range(4):
        E(f"v_xor_b32 v{vXrs[j]}, {32*j}, v{vt[0]}")
        E(f"v_add_u32 v{vXrs[j]}, s{sXR}, v{vXrs[j]}")
    E(f"s_and_b32 s{sH}, s{sW}, 1")
    E(f"s_lshr_b32 s{sFT}, s{sW}, 1")
    E(f"s_mov_b32 s94, {f32(math.log2(math.e))}")
    vPa = [TM + 16, TM + 17]
    E(f"v_mul_u32_u24 v{vt[0]}, 800, v{vHH}")
    E(f"v_mul_u32_u24 v{vt[1]}, 40, v{vR4}")
    E(f"v_lshl_add_u32 v{vt[1]}, v{vGam}, 3, v{vt[1]}")
    E(f"v_and_b32 v{vt[2]}, 1, v{vL}")
    E(f"v_cmp_eq_u32 vcc, v{vt[2]}, v{vHH}")
    for i, sp in enumerate((sP, sPQ)):
        E(f"s_and_b32 s{sT0}, s{sp}, 1")
        E(f"s_mul_i32 s{sT0}, s{sT0}, 1600")
        E(f"v_add3_u32 v{vt[3]}, v{vt[0]}, v{vt[1]}, s{sT0}")
        E(f"v_mov_b32 v{vPa[i]}, 3200")
        E(f"v_cndmask_b32 v{vPa[i]}, v{vPa[i]}, v{vt[3]}, vcc")
    E(f"v_lshlrev_b32 v{vPhi+1}, 2, v0")
    E(f"v_mov_b32 v{TM+4}, 0")
    for i in range(2):
        for t in range(2):
            E(f"v_mov_b32 v{PF+24*i+16+4*t+2}, 0"); E(f"v_mov_b32 v{PF+24*i+16+4*t+3}, 0")
    E(f"v_mul_u32_u24 v{vPk}, 80, v{vL}")
    E(f"v_add_u32 v{vPk}, s{sXR}, v{vPk}")
    E(f"v_mul_u32_u24 v{vVw}, 48, v{vL}")
    E(f"v_add_u32 v{vVw}, s{sXR}, v{vVw}")
    E(f"v_lshl_add_u32 v{vt[0]}, v{vHH}, 3, v{vR4}")
    E(f"v_bfe_u32 v{vt[1]}, v{vL}, 4, 1")
    E(f"v_lshlrev_b32 v{vt[1]}, 2, v{vt[1]}")
    E(f"v_and_b32 v{vt[2]}, 1, v{vL}")
    E(f"v_lshl_add_u32 v{vt[2]}, v{vt[2]}, 1, v{vt[1]}")
    E(f"v_bfe_u32 v{vt[3]}, v{vL}, 1, 1")
    E(f"v_add_u32 v{vt[2]}, v{vt[2]}, v{vt[3]}")
    E(f"v_mul_u32_u24 v{vA}, 80, v{vt[0]}")
    E(f"v_lshl_add_u32 v{vA}, v{vt[2]}, 3, v{vA}")
    E(f"s_mul_i32 s{sT0}, s{sH}, 2560")
    E(f"s_lshl_b32 s{sT1}, s{sFT}, 6")
    E(f"s_add_u32 s{sT0}, s{sT0}, s{sT1}")
    E(f"s_add_u32 s{sT0}, s{sT0}, {XR}")
    E(f"v_add_u32 v{vA}, s{sT0}, v{vA}")
    E(f"v_and_b32 v{vt[2]}, 3, v{vL}")
    E(f"v_add_u32 v{vt[2]}, v{vt[2]}, v{vt[1]}")
    E(f"v_mul_u32_u24 v{vB}, 48, v{vt[0]}")
    E(f"v_lshl_add_u32 v{vB}, v{vt[2]}, 3, v{vB}")
    E(f"s_mul_i32 s{sT0}, s{sH}, 1536")
    E(f"s_add_u32 s{sT0}, s{sT0}, {XR+5120}")
    E(f"v_add_u32 v{vB}, s{sT0}, v{vB}")
    E(f"v_and_b32 v{vt[0]}, 31, v{vL}")
    E(f"s_lshl_b32 s{sT0}, s{sH}, 4")
    E(f"v_add_u32 v{vt[1]}, s{sT0}, v{vt[0]}")
    E(f"v_subrev_u32 v{vt[2]}, 20, v{vt[1]}")
    E(f"v_min_u32 v{vt[1]}, v{vt[1]}, v{vt[2]}")
    E(f"v_cmp_gt_u32 vcc, 20, v{vt[0]}")
    E(f"v_mov_b32 v{vt[3]}, 0x4000000")
    E(f"v_cndmask_b32 v{vt[1]}, v{vt[0]}, v{vt[1]}, vcc")
    E(f"v_lshlrev_b32 v{vt[1]}, 4, v{vt[1]}")
    E(f"v_cmp_gt_u32 vcc, 24, v{vt[0]}")
    E(f"s_cmp_eq_u32 s{sFT}, 0")
    E(f"s_mov_b32 s9, 0x4000000")
    E(f"s_cselect_b32 s{sT0}, 384, s9")
    E(f"s_cselect_b32 s{sT1}, 768, s9")
    E(f"v_cndmask_b32 v{vt[1]}, v{vt[3]}, v{vt[1]}, vcc")
    E(f"v_mul_lo_u32 v{vS1}, v{vHH}, s{sT0}")
    E(f"v_add_u32 v{vS1}, v{vS1}, v{vt[1]}")
    E(f"v_add_u32 v{vS2}, s{sT1}, v{vS1}")
    E(f"s_mul_i32 s{sT0}, s{sH}, 1920")
    E(f"s_mul_i32 s{sT1}, s{sFT}, 1536")
    E(f"s_add_u32 s{sPS}, s{sPS}, s{sT0}")
    E(f"s_add_u32 s{sPS}, s{sPS}, s{sT1}")
    E(f"v_min_u32 v{vPi}, 239, v0")
    E(f"v_lshlrev_b32 v{vPi}, 4, v{vPi}")
    E(f"v_bfe_u32 v{vt[0]}, v{vL}, 3, 2")
    E(f"v_and_b32 v{vt[1]}, 3, v{vL}")
    E(f"v_lshl_add_u32 v{vt[0]}, v{vt[0]}, 2, v{vt[1]}")
    E(f"v_mul_u32_u24 v{vt[1]}, 1920, v{vHH}")
    E(f"v_lshl_add_u32 v{vt[2]}, v{vt[0]}, 4, v{vt[1]}")
    E(f"v_add_u32 v{vt[2]}, {KVT}, v{vt[2]}")
    E(f"v_bfe_u32 v{vt[1]}, v{vL}, 2, 1")
    E(f"v_cmp_eq_u32 vcc, v{vt[1]}, v{vHH}")
    E(f"v_mov_b32 v{vKa}, {ZKV}")
    E(f"v_cndmask_b32 v{vKa}, v{vKa}, v{vt[2]}, vcc")
    E(f"v_cndmask_b32 v{vt[0]}, 64, v{vt[0]}, vcc")
    E(f"v_and_b32 v{vt[1]}, 1, v{vt[0]}")
    E(f"v_lshlrev_b32 v{vt[1]}, 4, v{vt[1]}")
    E(f"v_mov_b32 v{vt[2]}, 0x3f80")
    E(f"v_lshlrev_b32 v{vt[1]}, v{vt[1]}, v{vt[2]}")
    E(f"v_lshrrev_b32 v{vt[0]}, 1, v{vt[0]}")
    for i in range(4):
        E(f"v_cmp_eq_u32 vcc, {i}, v{vt[0]}")
        E(f"v_cndmask_b32 v{ID+i}, 0, v{vt[1]}, vcc")
    E(f"v_and_b32 v{vt[1]}, 1, v{vG}")
    E(f"v_mul_u32_u24 v{vt[1]}, 20480, v{vt[1]}")
    E(f"v_lshl_add_u32 v{vt[1]}, v{vC}, 4, v{vt[1]}")
    E(f"v_mul_u32_u24 v{vO1}, 768, v{vHH}")
    E(f"v_add_u32 v{vO1}, v{vO1}, v{vt[1]}")
    E(f"v_lshl_add_u32 v{vO3}, v{vHH}, 26, v{vt[1]}")
    E(f"s_lshl_b32 s{sT0}, s{sR}, 2")
    E(f"s_add_u32 s{sT0}, s{sT0}, s{sW}")
    E(f"s_mul_i32 s{sT0}, s{sT0}, 40960")
    E(f"s_mul_i32 s{sT1}, s{sPQ}, 1280")
    E(f"s_add_u32 s{sT0}, s{sT0}, s{sT1}")
    E(f"s_add_u32 s{sOS}, s{sT0}, {G.O_BASE}")
    E(f"v_lshlrev_b32 v{vC4}, 2, v{vC}")
    E(f"s_lshl_b32 s{sFO}, s{sTBo}, 3")
    E(f"s_add_u32 s{sFO}, s{sFO}, s{sCT}")
    E(f"s_lshl_b32 s{sFO}, s{sFO}, 2")
    E(f"s_add_u32 s{sFO}, s{sFO}, s{sW}")
    E(f"s_lshl_b32 s{sFO}, s{sFO}, 7")
    E(f"s_add_u32 s{sFO}, s{sFO}, {G.FLAGO_BASE}")
    E(f"s_mul_i32 s{sOL}, s{sTBo}, 81920")
    E(f"s_mul_i32 s{sT0}, s{sW}, 5120")
    E(f"s_add_u32 s{sOL}, s{sOL}, s{sT0}")
    E(f"s_add_u32 s{sOL}, s{sOL}, {G.O_BASE}")
    E(f"s_lshl_b32 s{sWL}, s{sCT}, 2")
    E(f"s_add_u32 s{sWL}, s{sWL}, s{sW}")
    E(f"s_mul_i32 s{sWL}, s{sWL}, 25600")
    E(f"s_add_u32 s{sWL}, s{sWL}, {G.PWO_BASE}")
    E(f"v_mul_u32_u24 v{vRw}, 160, v{vC}")
    E(f"v_mul_u32_u24 v{vt[1]}, 40, v{vG}")
    E(f"s_mul_i32 s93, s{sW}, 2560")
    E(f"s_add_u32 s{sT0}, s93, 30720")
    E(f"v_add3_u32 v{vRw}, v{vRw}, v{vt[1]}, s{sT0}")
    for m in range(3):
        E(f"v_add_u32 v{vt[0]}, {64*m}, v{vL}")
        E(div_const(vt[1], vt[0], 10))
        E(f"v_mul_u32_u24 v{vt[1]}, 2400, v{vt[1]}")
        E(f"v_lshl_add_u32 v{vSo[m]}, v{vt[0]}, 4, v{vt[1]}")
    E(f"s_add_u32 s22, s{sW}, s{sCT}")
    E(f"s_and_b32 s22, s22, 3")
    E(f"s_lshl_b32 s{sOUT}, s{sTBo}, 2")
    E(f"s_add_u32 s{sOUT}, s{sOUT}, s22")
    E(f"s_mul_i32 s{sOUT}, s{sOUT}, {16*2560}")
    E(f"s_mul_i32 s{sT1}, s{sCT}, 160")
    E(f"s_add_u32 s{sOUT}, s{sOUT}, s{sT1}")
    E(f"s_lshl_b32 s{sF1}, s{sP}, 13")
    E(G.word_off(sF1, sR, 2, sT1))
    E(f"s_add_u32 s{sF1}, s{sF1}, {G.FLAGW_BASE}")
    E(f"s_lshl_b32 s{sFP}, s{sPQ}, 4")
    E(f"s_add_u32 s{sFP}, s{sFP}, s{sR}")
    E(f"s_lshl_b32 s{sFP}, s{sFP}, 9")
    E(f"s_add_u32 s{sFP}, s{sFP}, {G.FLAGW_BASE}")
    E(f"s_lshl_b32 s{sF2}, s{sR}, 1")
    E(f"s_add_u32 s{sF2}, s{sF2}, s{sFT}")
    E(f"s_lshl_b32 s{sF2}, s{sF2}, 12")
    E(G.word_off(sF2, sPQ, 2, sT1))
    E(f"s_add_u32 s{sF2}, s{sF2}, {G.FLAGO_BASE}")
    E(f"s_lshl_b32 s{sT1}, s{sW}, 7")
    E(f"s_add_u32 s{sFP}, s{sT1}, s{sFP}")
    for sa in (sFP, sFO): E(f"s_buffer_load_dword s23, s[{rWS}:{rWS+3}], s{sa} glc")
    vCo = TM + 15
    E(f"s_mul_i32 s{sT0}, s{sW}, 20")
    E(f"v_min_u32 v{vt[0]}, 19, v{vL}")
    E(f"v_add_u32 v{vt[0]}, s{sT0}, v{vt[0]}")
    E(f"v_lshrrev_b32 v{vt[1]}, 3, v{vt[0]}")
    E(f"v_and_b32 v{vt[0]}, 7, v{vt[0]}")
    E(f"v_lshlrev_b32 v{vt[0]}, 2, v{vt[0]}")
    E(f"v_lshl_add_u32 v{vCo}, v{vt[1]}, 7, v{vt[0]}")
    E(f"s_mov_b32 s{sFC}, {G.FLAGC_BASE}")
    GO = int(([a[5:] for a in sys.argv if a.startswith('--go=')] + ['3'])[0])
    E(f"s_lshl_b32 s39, s2, 7")
    E(f"s_add_u32 s39, s39, {G.FLAGG_BASE}")
    E(f"s_cmp_lg_u32 s{sW}, 0")
    E(f"s_cselect_b32 s39, {G.WS_SIZE}, s39")
    sWk = [16, 17, 18, 19, 20]; sKo = [40, 41, 42, 43, 44]
    E(f"s_and_b32 s{sT0}, s{sTBo}, 3")
    for k in range(5):
        E(f"s_lshl_b32 s{sKo[k]}, s{sT0}, 10")
        E(f"s_mul_i32 s{sWk[k]}, s{sT0}, 5120")
        E(f"s_add_u32 s{sWk[k]}, s{sWk[k]}, s{sWL}")
        if k < 4:
            E(f"s_add_u32 s{sT0}, s{sT0}, 1")
            E(f"s_cmp_eq_u32 s{sT0}, 5")
            E(f"s_cselect_b32 s{sT0}, 0, s{sT0}")

    def rdW(sig, ks):
        b = WF + 16 * (ks % 2)
        return [f"ds_read_b64_tr_b16 {v(b+4*T+2*a,2)}, v{vWt[T]} offset:{wslot(sig) + 4096*ks + 240*a}" for T in range(4) for a in range(2)]
    def rdX(sig):
        return [f"ds_read_b128 {v(XF+16*(sig%2)+4*j,4)}, v{vXrs[j]} offset:{4096*(sig%2)}" for j in range(4)]
    def mm(sig, ks):
        L = []
        for T in range(4):
            d = v(ACC + 16 * T, 16)
            if "--nomfma" in sys.argv:
                L.append(f"v_mov_b32 v{ACC+T}, v{WF+16*(ks%2)+4*T+3}"); continue
            if "--m16" in sys.argv:
                L.append(("group", [f"{M16} {v(ACC+16*T+4*(2*(ks%2)+e),4)}, {v(WF+16*(ks%2)+4*T,4)}, {v(XF+16*(sig%2)+4*((ks+e)%4),4)}, {v(ACC+16*T+4*(2*(ks%2)+e),4)}" for e in range(2)])); continue
            L.append(f"{M32} {d}, {v(WF+16*(ks%2)+4*T,4)}, {v(XF+16*(sig%2)+4*ks,4)}, {d if (sig or ks) else 0}")
        return L
    def weave(M, rd, vm):
        out = []
        n = (len(rd) + 2) // 3
        for i, x in enumerate(M):
            out.append(x)
            if i < 3: out += rd[n * i:n * (i + 1)]
            if i == 1 and len(vm) > 0: out.append(vm[0])
            if i == 3 and len(vm) > 1: out += vm[1:]
        return out
    wphi = [f"ds_write_b128 v{vPhi}, {v(TM,4)} offset:{TAB}", f"ds_write_b32 v{vPhi+1}, v{TM+4} offset:{TAB+4096}"]
    rphi = []
    for i in range(2):
        for c in range(3):
            for t in range(2):
                b = PF + 24 * i + 8 * c + 4 * t
                rphi.append(f"ds_read_b64_tr_b16 {v(b,2)}, v{vPa[i]} offset:{TAB + 320*c + 32*t}")
                if c < 2: rphi.append(f"ds_read_b64_tr_b16 {v(b+2,2)}, v{vPa[i]} offset:{TAB + 320*c + 160 + 32*t}")
    nld = f"buffer_load_dword v{vNon}, off, s[{rDBG}:{rDBG+3}], 0 offset:4 sc1"
    cld = f"buffer_load_dword v{vFc}, v{vCo}, s[{rWS}:{rWS+3}], s{sFC} offen sc1"
    opois = [f"buffer_store_dwordx4 {v(PN,4)}, v{vO1}, s[{rWS}:{rWS+3}], s{sOS} offen sc1",
             f"buffer_store_dwordx4 {v(PN,4)}, v{vO1}, s[{rWS}:{rWS+3}], s{sOS} offen offset:256 sc1",
             f"buffer_store_dwordx4 {v(PN,4)}, v{vO3}, s[{rWS}:{rWS+3}], s{sOS} offen offset:512 sc1"]
    allpois = [f"buffer_store_dwordx4 {v(PN,4)}, v{vL16}, s[{rWS}:{rWS+3}], s95 offen sc1"] + opois[:2] + [("tag", opois[2], "pois")]
    if "--earlypois" in sys.argv: E(allpois)
    E.wait_vm("S0")
    E("s_barrier")
    E(rdX(0)); E(rdW(0, 0))
    w2 = dmaW(2)
    E(w2[:2])
    pendW = w2[2:]
    for sig in range(10):
        xn = dmaX(sig + 2) if sig + 2 < 10 else []
        extra = [[], [], []]
        if sig == 8:
            extra = [wphi, [], []]
            pendW = [("tag", cld, "cfl")]
            if "--earlypois" not in sys.argv: xn = allpois
        if sig == 9:
            extra = [rphi[:7], rphi[7:14], rphi[14:]]
        if sig == GO: pendW = pendW + [f"buffer_store_dword v{vNon}, off, s[{rWS}:{rWS+3}], s39 sc1"]
        E(weave(mm(sig, 0), rdW(sig, 1) + extra[0], pendW))
        E(weave(mm(sig, 1), rdW(sig, 2) + extra[1], xn[:2]))
        E(weave(mm(sig, 2), rdW(sig, 3) + extra[2], xn[2:]))
        if sig < 9:
            E.wait_vm(f"S{sig+1}")
            if sig == GO - 1: G.snonce(E, vNon, issued=True)
            E.wait_lg()
            E("s_barrier")
            if sig == GO - 2: G.snonce_issue(E)
            wn = dmaW(sig + 3) if sig + 3 < 10 else []
            E(weave(mm(sig, 3), rdX(sig + 1)[:1] + rdW(sig + 1, 0) + rdX(sig + 1)[1:], wn[:2]))
            pendW = wn[2:]
        else:
            E(mm(sig, 3))
    ST(E, "gemm")
    if "--gemmonly" in sys.argv:
        ST.dump(E, sW, ACC)
        E("s_endpgm")
        return ST

    def acc(sec, j):
        for T in range(4):
            for g_, e in enumerate(TA[T]):
                if e == (sec, j): return ACC + 16 * T + 4 * g_
    QB = XF
    PD = WF
    EE = TM
    def pack(sec, dst):
        return [f"v_cvt_pk_bf16_f32 v{dst+2*j+e}, v{acc(sec,j)+2*e}, v{acc(sec,j)+2*e+1}" for j in range(5) for e in range(2)]
    def premm(qb, i):
        L = []
        for c in range(3):
            for t in range(2):
                d = v(PD + 16 * t, 16)
                L.append(f"{M32} {d}, {v(PF+24*i+8*c+4*t,4)}, {v(qb+4*c,4)}, {d if c else 0}")
        return L
    def softmax(out_plus, out_minus, after_plus):
        PP = PD
        mx, mn, m = MP, vMn, MP
        L = [f"v_max3_f32 v{mx}, v{PP}, v{PP+1}, v{PP+2}", f"v_min3_f32 v{mn}, v{PP}, v{PP+1}, v{PP+2}"]
        for i in range(3, 19, 2):
            L += [f"v_max3_f32 v{mx}, v{mx}, v{PP+i}, v{PP+i+1}", f"v_min3_f32 v{mn}, v{mn}, v{PP+i}, v{PP+i+1}"]
        L += [f"v_max_f32 v{mx}, v{mx}, v{PP+19}", f"v_min_f32 v{mn}, v{mn}, v{PP+19}"]
        for sgn, dst, src, outp in ((1, EE, mx, out_plus), (-1, PP, mn, out_minus)):
            L.append(f"v_mul_f32 v{m}, s94, v{src}")
            for i in range(20):
                L.append(f"v_fma_f32 v{dst+i}, v{PP+i}, s94, -v{m}" if sgn > 0 else f"v_fma_f32 v{dst+i}, -v{PP+i}, s94, v{m}")
            for i in range(20):
                L.append(f"v_exp_f32 v{dst+i}, v{dst+i}")
                if i == 2: L.append(f"v_add_f32 v{m}, v{dst}, v{dst+1}")
                if i > 2: L.append(f"v_add_f32 v{m}, v{m}, v{dst+i-1}")
            L += [f"v_add_f32 v{m}, v{m}, v{dst+19}", f"v_rcp_f32 v{m}, v{m}"]
            for i in range(10):
                L.append(f"v_mul_f32 v{dst+2*i}, v{m}, v{dst+2*i}")
                L.append(f"v_mul_f32 v{dst+2*i+1}, v{m}, v{dst+2*i+1}")
                L.append(f"v_cvt_pk_bf16_f32 v{outp+i}, v{dst+2*i}, v{dst+2*i+1}")
            if sgn > 0: L += after_plus
        return L
    E(f"v_mov_b32 v{QB+10}, 0"); E(f"v_mov_b32 v{QB+11}, 0")
    E(pack(1, QB))
    VP = XF + 12
    QB2 = TM + 20
    side = pack(2, VP) + [f"v_mov_b32 v{VP+10}, 0x3f80", f"v_mov_b32 v{VP+11}, 0"] + \
           [f"ds_write_b128 v{vVw}, {v(VP+4*i,4)} offset:{5120+16*i}" for i in range(3)] + \
           pack(0, QB2) + [f"v_mov_b32 v{QB2+10}, 0", f"v_mov_b32 v{QB2+11}, 0"]
    E(merge(premm(QB, 0), side[:15])); E(side[15:])
    spin(E, ["s_sleep 2", cld], [f"v_cmp_ne_u32 vcc, s{sN}, v{vFc}"], "cfl")
    WOr = [ACC + 4 * i for i in range(16)] + [vXo[0], vWo[0], vWt[0]] + [XF + 20 + 4 * i for i in range(3)] + [TM + 4 * i for i in range(3)]
    assert all(r % 4 == 0 for r in WOr)
    vL4k = vVw
    NW1, NW2 = [int(x) for x in ([a[5:] for a in sys.argv if a.startswith('--wo=')] + ['14,22'])[0].split(',')]
    E(f"v_add_u32 v{vL4k}, 4096, v{vL16}")
    def wo_ld(i):
        k, T = divmod(i, 5)
        return f"buffer_load_dwordx4 {v(WOr[i],4)}, v{vL16 if T < 4 else vL4k}, s[{rWS}:{rWS+3}], s{sWk[k]} offen offset:{1024*(T%4)} sc1"
    PHK = XF + 12
    smk = softmax(PHK, PHK + 10, [f"ds_write_b128 v{vPk}, {v(PHK,4)}", f"ds_write_b128 v{vPk}, {v(PHK+4,4)} offset:16"])
    E(merge(smk[:8*NW1], [wo_ld(i) for i in range(NW1)])); E(smk[8*NW1:])
    for i in range(2, 5): E(f"ds_write_b128 v{vPk}, {v(PHK+4*i,4)} offset:{16*i}")
    ST(E, "phik")
    E(premm(QB2, 1))
    E.wait_vm("pois")
    E.wait_lg()
    E("s_barrier")
    ST(E, "xbar")
    KQ = [PF + 4 * i for i in range(12)] + [TM + 20 + 4 * i for i in range(4)]
    KD = XF
    def rdk(i):
        j, k2 = divmod(i, 2)
        L = []
        for a in range(2):
            L.append(f"ds_read_b64_tr_b16 {v(KQ[2*i]+2*a,2)}, v{vA} offset:{8192*j + 80*(16*k2+4*a)}")
        for a in range(2):
            L.append(f"ds_read_b64_tr_b16 {v(KQ[2*i+1]+2*a,2)}, v{vB} offset:{8192*j + 48*(16*k2+4*a)}")
        return L
    E(rdk(0) + rdk(1) + rdk(2))
    for i in range(8):
        if i + 3 < 8: E(rdk(i + 3))
        d = v(KD, 16)
        E(f"{M32} {d}, {v(KQ[2*i],4)}, {v(KQ[2*i+1],4)}, {d if i else 0}")
    SFL = 60
    PH = XF
    smq = softmax(PH, PH + 10, [])
    E(smq[:10])
    KP = XF + 16
    for i in range(8):
        E(f"v_cvt_pk_bf16_f32 v{KP+i}, v{KD+2*i}, v{KD+2*i+1}")
        if i == 3: E(f"buffer_store_dwordx4 {v(KP,4)}, v{vS1}, s[{rWS}:{rWS+3}], s{sPS} offen sc1")
    E(f"buffer_store_dwordx4 {v(KP+4,4)}, v{vS2}, s[{rWS}:{rWS+3}], s{sPS} offen sc1")
    vPu = vA
    def push(cond, mask, saddr):
        skip = newlabel("nopush")
        E(cond)
        E(f"s_cbranch_scc1 {skip}")
        E(f"s_mov_b64 exec, {mask}")
        E.raw(f"    buffer_store_dword v{vNon}, v{vPu}, s[{rWS}:{rWS+3}], s{saddr} offen sc1")
        E("s_mov_b64 exec, -1")
        E.label(skip)
    E(f"v_lshlrev_b32 v{vPu}, 9, v{vL}")
    push(f"s_cmp_lg_u32 s{sW}, 0", 0xffff, sF1)
    ST(E, "T0")
    PLr = KQ
    pld = []
    E(f"s_and_b32 s21, s{sR}, 3")
    E(f"s_lshl_b32 s21, s21, 14")
    E(f"s_add_u32 s21, s21, s{sPL}")
    for r in range(16):
        pld.append(f"s_xor_b32 s9, s21, {G.P_PITCH*r}")
        pld.append(f"buffer_load_dwordx4 {v(PLr[r],4)}, v{vPi}, s[{rWS}:{rWS+3}], s9 offen sc1")
    pg = [("group", [pld[2*r], ("tag", pld[2*r+1], "part")]) for r in range(16)]
    E(merge(smq[10:-40], [wo_ld(i) for i in range(NW1, NW2)]))
    E(G.sflag_loads(sFP, 1, 4, SFL))
    E(smq[-40:])
    ok1 = newlabel("f1ok")
    E.wait_lg()
    E(G.sflag_check(4, SFL))
    E(f"s_cbranch_scc0 {ok1}")
    G.sflag_wait(E, sFP, 1, 4, SFL)
    E.label(ok1)
    E("s_barrier")
    ST(E, "f1ok")
    E(pg)
    ST(E, "phiq")
    RD_ = WF
    vCk = MP
    def reduce_items():
        L = []
        for r in range(16):
            d = v(RD_, 16); p = PLr[r]
            L.append(f"{M32} {d}, {v(ID,4)}, {v(p,4)}, {d if r else 0}")
            L.append(f"v_max3_u32 v{vCk}, v{p}, v{p+1}, {'v%d' % vCk if r else 0}")
            L.append(f"v_max3_u32 v{vCk}, v{p+2}, v{p+3}, v{vCk}")
        L.append(f"v_cmp_eq_u32 vcc, -1, v{vCk}")
        return L
    def retry(loads, check):
        ok = newlabel("rok"); sp = newlabel("rsp")
        E(f"s_cbranch_vccz {ok}")
        E.raw("    s_mov_b32 s13, 0")
        E.label(sp)
        for t in ["s_sleep 2"] + loads + ["s_add_u32 s13, s13, 1", f"s_cmp_gt_u32 s13, {G.SPIN_MAX}", f"s_cbranch_scc1 {ok}", "s_waitcnt vmcnt(0)"] + check + [f"s_cbranch_vccnz {sp}"]:
            E.raw("    " + t)
        E.label(ok)
    E(reduce_items())
    retry(pld, reduce_items())
    ST(E, "part")
    SM = WF + 16
    for e in range(4): E(f"v_cvt_pk_bf16_f32 v{SM+e}, v{RD_+2*e}, v{RD_+2*e+1}")
    E(f"ds_write_b128 v{vPi}, {v(SM,4)} offset:{KVT}")
    E.wait_lg()
    E("s_barrier")
    OD = WF
    AF = PF
    fo = [(c, t) for c in range(5) for t in (1, 0)]
    for i, (c, t) in enumerate(fo): E(f"ds_read_b128 {v(AF+4*i,4)}, v{vKa} offset:{384*c + 256*t}")
    sTile = [72, 73, 74, 75]
    vOk = [vPk, vS1, vS2, vPi, vMn]
    pre = []
    for i in range(4):
        pre += [("group", [f"s_add_u32 s9, s22, {i+1}", f"s_and_b32 s9, s9, 3", f"s_mul_i32 s{sTile[i]}, s9, 20480", f"s_add_u32 s{sTile[i]}, s{sTile[i]}, s{sOL}",
                f"s_cmp_ge_u32 s9, 2", f"s_cselect_b32 s8, 18432, 0", f"s_mul_i32 s9, s9, 15360", f"s_add_u32 s9, s9, s8",
                f"v_add_u32 v{vXrs[i]}, s9, v{vL16}"])]
    pre += [("group", [f"v_add_u32 v{vOk[k]}, s{sKo[k]}, v{vL16}" for k in range(5)])]
    om = []
    for i, (c, t) in enumerate(fo):
        d = v(OD + 16 * t, 16)
        om.append(f"{M32} {d}, {v(AF+4*i,4)}, {v(PH+4*c,4)}, {d if c else 0}")
    E(merge(om, pre))
    E(f"v_add_f32 v{MP}, {f32(1e-6)}, v{OD+20}")
    E(f"v_rcp_f32 v{MP}, v{MP}")
    OP = TM + 20
    for i in (8, 9, 0, 1, 2, 3, 4, 5, 6, 7):
        E(f"v_mul_f32 v{OD+2*i}, v{MP}, v{OD+2*i}"); E(f"v_mul_f32 v{OD+2*i+1}, v{MP}, v{OD+2*i+1}")
        E(f"v_cvt_pk_bf16_f32 v{OP+i}, v{OD+2*i}, v{OD+2*i+1}")
        if i == 0:
            E(f"v_permlane32_swap_b32 v{OP+8}, v{OP+10}"); E(f"v_permlane32_swap_b32 v{OP+9}, v{OP+11}")
            E(f"buffer_store_dwordx4 {v(OP+8,4)}, v{vO3}, s[{rWS}:{rWS+3}], s{sOS} offen offset:512 sc1")
        if i == 3: E(f"buffer_store_dwordx4 {v(OP,4)}, v{vO1}, s[{rWS}:{rWS+3}], s{sOS} offen sc1")
    E(f"buffer_store_dwordx4 {v(OP+4,4)}, v{vO1}, s[{rWS}:{rWS+3}], s{sOS} offen offset:256 sc1")
    push(f"s_cmp_lg_u32 s{sH}, 0", 0xff, sF2)
    ST(E, "opub")
    for i in range(NW2, 25): E(wo_ld(i))
    OFr = [PF + 4 * i for i in range(12)] + [WF + 4 * i for i in range(8)]
    OA = [[XF + 4 * T for T in range(5)], [TM + 12 + 4 * T for T in range(5)]]
    G.sflag_wait(E, sFO, 1, 4, SFL)
    ST(E, "f2ok")
    def o_ld(i):
        return [f"buffer_load_dwordx4 {v(OFr[5*i+k],4)}, v{vOk[k]}, s[{rWS}:{rWS+3}], s{sTile[i]} offen sc1" for k in range(5)]
    for i in range(4):
        for t in o_ld(i): E(t, tag=f"of{i}")
    pend = []
    def chk_of(i):
        rg = [OFr[5 * i + k] + e for k in range(5) for e in range(4)]
        return [f"v_max_u32 v{MP}, v{rg[0]}, v{rg[1]}"] + [f"v_max3_u32 v{MP}, v{MP}, v{rg[e]}, v{rg[e+1]}" for e in range(2, 20, 2)] + [f"v_cmp_eq_u32 vcc, -1, v{MP}"]
    E(chk_of(0))
    for i in range(4):
        retry(sum([o_ld(k) for k in range(i, 4)], []), chk_of(i))
        if i == 0: ST(E, "ofr")
        M = []
        for k in range(5):
            for T in range(5):
                d = v(OA[i % 2][T], 4)
                M.append(f"{M16} {d}, {v(WOr[5*k+T],4)}, {v(OFr[5*i+k],4)}, {d if k else 0}")
        E(M[:4]); E(merge(M[4:14], pend)); E(merge(M[14:], chk_of(i + 1) if i < 3 else []))
        pend = [f"ds_write_b128 v{vXrs[i]}, {v(OA[i%2][T],4)} offset:{5120*i + 1024*T}" for T in range(5)] if i < 3 else []
    ST(E, "ogemm")
    E.wait_lg()
    E("s_barrier")
    RR = ACC
    for j in range(3):
        for T in range(5): E(f"ds_read_b128 {v(RR+20*j+4*T,4)}, v{vXrs[3]} offset:{5120*j + 1024*T}")
    RP = PF
    for j in range(3):
        for T in range(5):
            for e in (0, 2): E(f"v_pk_add_f32 {v(OA[1][T]+e,2)}, {v(OA[1][T]+e,2)}, {v(RR+20*j+4*T+e,2)}")
            if j == 2:
                E(f"v_cvt_pk_bf16_f32 v{RP+2*T}, v{OA[1][T]}, v{OA[1][T]+1}")
                E(f"v_cvt_pk_bf16_f32 v{RP+2*T+1}, v{OA[1][T]+2}, v{OA[1][T]+3}")
                E(f"ds_write_b64 v{vRw}, {v(RP+2*T,2)} offset:{8*T}")
    E(f"v_add_u32 v{vPk}, s93, v{vL16}")
    for m in range(3): E(f"ds_read_b128 {v(RP+12+4*m,4)}, v{vPk} offset:{30720 + 1024*m}")
    for m in range(3):
        if m == 2: E("s_mov_b32 exec_hi, 0")
        E(f"buffer_store_dwordx4 {v(RP+12+4*m,4)}, v{vSo[m]}, s[{rOUT}:{rOUT+3}], s{sOUT} offen {G.OUTA}")
    E("s_mov_b64 exec, -1")
    if G.PROFILE:
        E.wait_vm()
        ST(E, "end")
    PAD = [a[6:] for a in sys.argv if a.startswith("--pad=")]
    if PAD:
        E.label("L_pad")
        for t in ["s_memrealtime s[14:15]", "s_waitcnt lgkmcnt(0)", f"s_sub_u32 s14, s14, s{sN}", f"s_cmp_lt_u32 s14, {PAD[0]}", "s_cbranch_scc1 L_pad"]: E.raw("    " + t)
    ST.dump(E, sW, RP + 40)
    E("s_endpgm")
    return ST
```

```python
import math, sys
from asmlib import *
M16 = "v_mfma_f32_16x16x32_bf16"

def gen_B(E, G):
    f32, f32val, Alloc, srd, spin, newlabel, cmul, zipl = G.f32, G.f32val, G.Alloc, G.srd, G.spin, G.newlabel, G.cmul, G.zipl
    rWS, rOUT, rDBG, rIN = G.rWS, G.rOUT, G.rDBG, G.rIN
    sN = G.sN
    G.fresh(E)
    ST = G.Stamps(84)
    sW, sCG, sD, sTB, sCB, sSC, sKT, sT0, sT1, sT2 = 76, 77, 78, 79, 80, 81, 82, 4, 5, 6
    sUS, sUT, sFU, sFUp, sFY, sFYp, sUI, sYS, sYL, sYO = 64, 65, 66, 67, 68, 69, 70, 71, 72, 73
    U_IMG = 2048; KT_BASE = 18432; KT_SZ = 2560; SC_BASE = 28672; SC_SZ = 11 * 1040
    Y_OFF = 6144; Y_PITCH = SC_SZ + 144
    SIG_SZ = 2176
    A = Alloc(1, 256)
    vL = A(); vG = A(); vC = A()
    vt = [A() for _ in range(8)]
    big = A(160, 4)
    KG = A(32, 4)
    BN = A(8, 4)
    P = [big + 124 + i for i in range(6)]
    assert P[0] == 136 and sCG == 77
    E.vmq += [(None, {("v", r)}) for r in P]
    E.lgq = [("__smem", {("s", 100), ("s", 101), ("s", 16), ("s", 17)})]
    E(f"v_and_b32 v{vL}, 63, v0")
    E(f"v_lshrrev_b32 v{vt[0]}, 6, v0")
    E(f"v_lshrrev_b32 v{vG}, 4, v{vL}")
    E(f"v_readfirstlane_b32 s{sW}, v{vt[0]}")
    E(f"v_and_b32 v{vC}, 15, v{vL}")
    E(f"s_mul_hi_u32 s{sTB}, s{sCG}, 0x33333334")
    E(f"s_mul_i32 s{sT0}, s{sTB}, 5")
    E(f"s_sub_u32 s{sCB}, s{sCG}, s{sT0}")
    vPo = vt[2]; vSo = A(); vL16 = A()
    SLAB = int(([a[7:] for a in sys.argv if a.startswith('--slab=')] + ['4'])[0])
    NWAIT = int(([a[8:] for a in sys.argv if a.startswith('--nwait=')] + ['128'])[0])
    def slab_in():
        if "--xnomem" in sys.argv: return
        E("s_setprio 3")
        for i in range(4):
            E(f"s_add_u32 m0, s{sUS}, {1024*i}")
            E(f"s_add_u32 s{sT1}, s74, {4*1280*i}")
            E(f"buffer_load_dwordx4 v{vSo}, s[{rIN}:{rIN+3}], s{sT1} offen lds", tag="slab")
        E(f"s_setprio {G.BPRIO}")
    E(f"v_mul_u32_u24 v{vSo}, 1280, v{vG}")
    E(f"v_lshl_add_u32 v{vSo}, v{vC}, 4, v{vSo}")
    E(f"s_lshl_b32 s{sT0}, s{sTB}, 2")
    E(f"s_add_u32 s{sT0}, s{sT0}, s{sW}")
    E(f"s_mul_i32 s{sYO}, s{sT0}, {16*2560}")
    E(f"s_mul_i32 s{sT0}, s{sT0}, {16*1280}")
    E(f"s_lshl_b32 s{sT1}, s{sCB}, 8")
    E(f"s_add_u32 s74, s{sT0}, s{sT1}")
    E(f"s_add_u32 s{sYO}, s{sYO}, s{sT1}")
    E(f"s_add_u32 s{sYO}, s{sYO}, 1280")
    E(f"s_lshl_b32 s{sUS}, s{sW}, 12")
    E(f"s_add_u32 s{sUS}, s{sUS}, {U_IMG}")
    ST(E, "start")
    if "--noB0" not in sys.argv:
        srd(E, rIN, G.pU, 2621440)
        if SLAB in (0, 3, 5): slab_in()
    srd(E, rDBG, G.pDBG, 256)
    skip = newlabel("nonce")
    E(f"s_or_b32 s{sT0}, s{sCG}, s{sW}")
    E(f"s_cbranch_scc1 {skip}")
    E.raw("    s_or_b32 s10, s10, 1")
    E.raw(f"    v_mov_b32 v{vt[0]}, s10")
    E.raw("    s_mov_b64 exec, 1")
    E.raw(f"    buffer_store_dword v{vt[0]}, off, s[{rDBG}:{rDBG+3}], 0 offset:4 sc1")
    E.raw("    s_mov_b64 exec, -1")
    E.label(skip)
    srd(E, rWS, G.pWS, G.WS_SIZE)
    if "--noB0" in sys.argv:
        ST.dump(E, sW, big)
        E("s_endpgm")
        return ST
    srd(E, rOUT, G.pOUT, 5242880)
    E(f"s_setprio {G.BPRIO}")
    E(f"s_mul_i32 s{sSC}, s{sW}, {SC_SZ}")
    E(f"s_add_u32 s{sSC}, s{sSC}, {SC_BASE}")
    E(f"s_mul_i32 s{sKT}, s{sW}, {KT_SZ}")
    E(f"s_add_u32 s{sKT}, s{sKT}, {KT_BASE}")
    E(f"v_lshlrev_b32 v{vL16}, 4, v{vL}")
    vZ = big + 132
    E(f"v_mov_b32 v{vZ}, 0"); E(f"v_mov_b32 v{vZ+1}, 0")
    E(f"v_lshlrev_b32 v{vt[0]}, 3, v0")
    E(f"ds_write_b64 v{vt[0]}, {v(vZ,2)}")
    E(f"v_min_u32 v{vt[0]}, 8, v{vC}")
    E(f"v_lshl_add_u32 v{vt[0]}, v{vt[0]}, 2, s{sKT}")
    TA_POS = 672; TB_POS = TA_POS + 272
    for o in (0, 2 * TA_POS, 2 * TB_POS): E(f"ds_write_b32 v{vt[0]}, v{vZ} offset:{o}")
    vLm = vt[7]
    E(f"v_lshlrev_b32 v{vt[0]}, 3, v{vG}")
    E(f"v_sub_u32 v{vLm}, v{vC}, v{vt[0]}")
    E(f"v_add_u32 v{vLm}, 33, v{vLm}")
    vLf = vt[6]; vK1 = vt[5]
    E(f"v_cvt_f32_u32 v{vLf}, v{vLm}")
    E(f"s_mov_b32 s7, 0x0202")
    E(f"s_mov_b32 s8, 0x10001")
    E(f"v_mov_b32 v{vK1}, 0x01000100")
    sel = {}; adr = {}
    for name, srep, js in (("d", 5, [3]), ("1", 9, [3, 2]), ("2", 17, [3, 2, 1, 0])):
        base = 32 * srep - 24
        vb = vt[2]
        for j in js:
            r = A(); sel[(name, j)] = r
            E(f"v_add_f32 v{vt[0]}, {f32(base + 7 - 2*j)}, v{vLf}")
            E(f"v_add_f32 v{vt[1]}, {f32(base + 6 - 2*j)}, v{vLf}")
            E(f"v_cvt_pk_bf16_f32 v{r}, v{vt[0]}, v{vt[1]}")
            if j == 3:
                E(f"v_lshrrev_b32 v{vt[3]}, 17, v{r}")
                E(f"v_lshlrev_b32 v{vt[3]}, 1, v{vt[3]}")
                E(f"v_mul_u32_u24 v{vb}, s8, v{vt[3]}")
                a = A(); adr[name] = a
                if name == "d":
                    E(f"v_and_b32 v{a}, -2, v{vLm}")
                    E(f"v_lshl_add_u32 v{a}, v{a}, 1, s{sKT}")
                    E(f"v_subrev_u32 v{a}, 16, v{a}")
                else:
                    E(f"v_lshl_add_u32 v{a}, v{vt[3]}, 1, s{sKT}")
                    E(f"v_subrev_u32 v{a}, {2*(0x4300-272)}, v{a}")
            E(f"v_sub_u32 v{r}, v{r}, v{vb}")
            E(f"v_mad_u32_u24 v{r}, v{r}, s7, v{vK1}")
    E(f"v_subrev_u32 v{vt[0]}, 9, v{vLm}")
    E(f"v_min_u32 v{vt[0]}, 31, v{vt[0]}")
    E(f"s_movk_i32 s7, 0x3f80")
    for bI, mask in enumerate((0x1ff << 15, 0x7f << 16)):
        E(f"s_mov_b32 s8, {mask}")
        E(f"v_lshrrev_b32 v{vt[1]}, v{vt[0]}, s8")
        for j in range(4):
            E(f"v_bfe_u32 v{vt[2]}, v{vt[1]}, {7-2*j}, 1")
            E(f"v_bfe_u32 v{vt[3]}, v{vt[1]}, {6-2*j}, 1")
            E(f"v_lshl_or_b32 v{vt[2]}, v{vt[3]}, 16, v{vt[2]}")
            E(f"v_mul_u32_u24 v{BN+4*bI+j}, s7, v{vt[2]}")
    aT = A(); aS = A(); aW = A()
    E(f"v_and_b32 v{vt[0]}, 1, v{vG}")
    E(f"v_lshrrev_b32 v{vt[1]}, 1, v{vG}")
    E(f"v_lshlrev_b32 v{vt[2]}, 3, v{vt[0]}")
    E(f"v_sub_u32 v{aT}, v{vC}, v{vt[2]}")
    E(f"v_add_u32 v{aT}, {TA_POS + 11}, v{aT}")
    E(f"v_and_b32 v{aT}, -2, v{aT}")
    E(f"v_mul_u32_u24 v{vt[2]}, 272, v{vt[1]}")
    E(f"v_add_u32 v{aT}, v{aT}, v{vt[2]}")
    E(f"v_lshl_add_u32 v{aT}, v{aT}, 1, s{sKT}")
    E(f"v_lshlrev_b32 v{aS}, 8, v{vt[0]}")
    E(f"v_lshl_add_u32 v{aS}, v{vC}, 3, v{aS}")
    E(f"v_mul_u32_u24 v{vt[2]}, {SIG_SZ - 16}, v{vt[1]}")
    E(f"v_add3_u32 v{aS}, v{aS}, v{vt[2]}, s{sSC}")
    E(f"v_lshlrev_b32 v{aW}, 5, v{vC}")
    E(f"v_lshl_add_u32 v{aW}, v{vG}, 3, v{aW}")
    E(f"v_add_u32 v{aW}, s{sSC}, v{aW}")
    vMa = A(); vMb = A(); vMw = A()
    E(f"v_lshlrev_b32 v{vt[0]}, 1, v{vL}")
    E(f"v_add_u32 v{vt[1]}, 256, v{vt[0]}")
    E(f"v_add_u32 v{vt[2]}, {496-32}, v{vt[0]}")
    E(f"v_cmp_lt_u32 vcc, 15, v{vL}")
    E(f"v_cndmask_b32 v{vt[1]}, v{vt[1]}, v{vt[2]}, vcc")
    E(f"v_add_u32 v{vt[2]}, {1008-80}, v{vt[0]}")
    E(f"v_cmp_lt_u32 vcc, 39, v{vL}")
    E(f"v_cndmask_b32 v{vt[1]}, v{vt[1]}, v{vt[2]}, vcc")
    E(f"v_cvt_f32_u32 v{vt[1]}, v{vt[1]}")
    E(f"v_add_f32 v{vt[2]}, 1.0, v{vt[1]}")
    E(f"v_cvt_pk_bf16_f32 v{vt[1]}, v{vt[1]}, v{vt[2]}")
    E(f"v_mov_b32 v{vt[2]}, {(0x4300-272)*0x10001}")
    E(f"v_cmp_lt_u32 vcc, 53, v{vL}")
    E(f"v_cndmask_b32 v{vt[1]}, v{vt[1]}, v{vt[2]}, vcc")
    E(f"s_sub_u32 s{sT0}, s{sKT}, {2*(0x4300-272)}")
    E(f"v_and_b32 v{vMa}, 0xffff, v{vt[1]}")
    E(f"v_lshl_add_u32 v{vMa}, v{vMa}, 1, s{sT0}")
    E(f"v_lshrrev_b32 v{vMb}, 16, v{vt[1]}")
    E(f"v_lshl_add_u32 v{vMb}, v{vMb}, 1, s{sT0}")
    E(f"v_lshl_add_u32 v{vMw}, v{vL}, 2, s{sKT}")
    a0 = [A(), A()]; a1 = [A(), A()]; a2 = A(); a3 = A()
    st = vt[2]
    E(f"v_lshlrev_b32 v{a0[0]}, 4, v{vC}")
    E(f"v_lshl_add_u32 v{a0[0]}, v{vG}, 3, v{a0[0]}")
    E(f"v_add_u32 v{a0[0]}, 32, v{a0[0]}")
    E(f"v_mov_b32 v{st}, 256")
    E(f"v_lshlrev_b32 v{vt[3]}, 3, v{vC}")
    E(f"v_add_u32 v{vt[3]}, 800, v{vt[3]}")
    E(f"v_mov_b32 v{vt[4]}, 128")
    E(f"v_cmp_eq_u32 vcc, 2, v{vG}")
    E(f"v_cndmask_b32 v{a0[0]}, v{a0[0]}, v{vt[3]}, vcc")
    E(f"v_cndmask_b32 v{st}, v{st}, v{vt[4]}, vcc")
    E(f"v_lshlrev_b32 v{vt[3]}, 2, v{vC}")
    E(f"v_add_u32 v{vt[3]}, 1056, v{vt[3]}")
    E(f"v_mov_b32 v{vt[5]}, 64")
    E(f"v_cmp_eq_u32 vcc, 3, v{vG}")
    E(f"v_cndmask_b32 v{a0[0]}, v{a0[0]}, v{vt[3]}, vcc")
    E(f"v_cndmask_b32 v{st}, v{st}, v{vt[5]}, vcc")
    E(f"v_cndmask_b32 v{a1[0]}, 4, v{vt[4]}, vcc")
    E(f"v_add_u32 v{a0[0]}, s{sKT}, v{a0[0]}")
    E(f"v_add_u32 v{a1[0]}, v{a0[0]}, v{a1[0]}")
    E(f"v_add_u32 v{a0[1]}, v{a0[0]}, v{st}")
    E(f"v_add_u32 v{a1[1]}, v{a1[0]}, v{st}")
    E(f"v_and_b32 v{vt[0]}, 1, v{vC}")
    E(f"v_mul_u32_u24 v{vt[0]}, 272, v{vt[0]}")
    E(f"v_lshrrev_b32 v{vt[1]}, 1, v{vC}")
    E(f"v_lshl_add_u32 v{vt[1]}, v{vG}, 6, v{vt[1]}")
    E(f"v_add3_u32 v{vt[0]}, v{vt[0]}, v{vt[1]}, {17}")
    E(f"v_lshl_add_u32 v{a2}, v{vt[0]}, 1, s{sKT}")
    E(f"v_lshl_add_u32 v{vt[0]}, v{vL}, 1, s{sKT}")
    E(f"v_subrev_u32 v{vt[0]}, {2*(TA_POS-656)}, v{vt[0]}")
    E(f"v_cmp_gt_u32 vcc, 2, v{vL}")
    E(f"v_cndmask_b32 v{a3}, v{a2}, v{vt[0]}, vcc")
    vTa = A(); vUo = A()
    E(f"v_and_b32 v{vt[0]}, 1, v{vG}")
    E(f"v_lshrrev_b32 v{vt[1]}, 1, v{vG}")
    E(f"v_lshrrev_b32 v{vt[2]}, 2, v{vC}")
    E(f"v_and_b32 v{vt[3]}, 3, v{vC}")
    E(f"v_lshl_add_u32 v{vTa}, v{vt[0]}, 3, v{vt[2]}")
    E(f"v_lshlrev_b32 v{vTa}, 8, v{vTa}")
    E(f"v_lshl_add_u32 v{vTa}, v{vt[1]}, 5, v{vTa}")
    E(f"v_lshl_add_u32 v{vTa}, v{vt[3]}, 3, v{vTa}")
    E(f"v_add_u32 v{vTa}, s{sUS}, v{vTa}")
    E(f"s_lshl_b32 s{sT0}, s{sTB}, 1")
    E(f"s_lshr_b32 s{sT1}, s{sW}, 1")
    E(f"s_add_u32 s{sT0}, s{sT0}, s{sT1}")
    E(f"v_add_u32 v{vt[3]}, s{sT0}, v{vt[3]}")
    E(f"v_and_b32 v{vt[3]}, 3, v{vt[3]}")
    E(f"v_lshl_add_u32 v{vUo}, v{vt[1]}, 2, v{vt[2]}")
    E(f"v_lshlrev_b32 v{vUo}, 14, v{vUo}")
    E(f"v_lshl_add_u32 v{vUo}, v{vt[0]}, 6, v{vUo}")
    E(f"v_lshl_add_u32 v{vUo}, v{vt[3]}, 4, v{vUo}")
    E(f"s_lshl_b32 s{sUT}, s{sCB}, 19")
    E(f"s_lshl_b32 s{sT1}, s{sTB}, 9")
    E(f"s_add_u32 s{sUT}, s{sUT}, s{sT1}")
    E(f"s_lshl_b32 s{sT1}, s{sW}, 7")
    E(f"s_add_u32 s{sUT}, s{sUT}, s{sT1}")
    E(f"s_add_u32 s{sYL}, s{sUT}, {G.YT_BASE}")
    assert G.UT_BASE == 0
    E(f"s_lshl_b32 s{sFU}, s{sCB}, 14")
    E(f"s_lshl_b32 s{sT1}, s{sTB}, 9")
    E(f"s_add_u32 s{sFYp}, s{sFU}, s{sT1}")
    E(f"s_add_u32 s{sFYp}, s{sFYp}, {G.FLAGY_BASE}")
    E(G.word_off(sFU, sTB, 3, sT1))
    E(f"s_add_u32 s{sFU}, s{sFU}, {G.FLAG_BASE}")
    E(f"s_lshl_b32 s{sFUp}, s{sCG}, 9")
    E(f"s_add_u32 s{sFUp}, s{sFUp}, {G.FLAG_BASE}")
    E(f"s_lshr_b32 s{sFY}, s{sCG}, 5")
    E(f"s_lshl_b32 s{sFY}, s{sFY}, 14")
    E(f"s_and_b32 s{sT0}, s{sCG}, 31")
    E(G.word_off(sFY, sT0, 3, sT1))
    E(f"s_add_u32 s{sFY}, s{sFY}, {G.FLAGY_BASE}")
    E(f"s_lshl_b32 s{sT1}, s{sW}, 7")
    E(f"s_add_u32 s{sFUp}, s{sFUp}, s{sT1}")
    E(f"s_add_u32 s{sFYp}, s{sFYp}, s{sT1}")
    E(f"s_lshl_b32 s{sUI}, s{sCG}, 14")
    E(f"s_lshl_b32 s{sT1}, s{sW}, 12")
    E(f"s_add_u32 s{sUI}, s{sUI}, s{sT1}")
    E(f"s_add_u32 s{sYS}, s{sUI}, {G.YT_BASE}")
    vPu = A()
    E(f"v_lshlrev_b32 v{vPu}, 9, v{vL}")
    for sa in (sFUp, sFYp): E(f"s_buffer_load_dword s93, s[{rWS}:{rWS+3}], s{sa} glc")
    PP2 = 1024 + 16
    vWa = A(); vRa = A(); vRb = A()
    E(f"v_add_u32 v{vWa}, s{sSC}, v{vL16}")
    E(f"v_lshrrev_b32 v{vt[0]}, 1, v{vC}")
    E(f"v_mul_u32_u24 v{vRa}, {PP2}, v{vt[0]}")
    E(f"v_and_b32 v{vt[0]}, 1, v{vC}")
    E(f"v_lshl_add_u32 v{vRa}, v{vt[0]}, 3, v{vRa}")
    E(f"v_lshl_add_u32 v{vRa}, v{vG}, 5, v{vRa}")
    E(f"v_add_u32 v{vRa}, s{sSC}, v{vRa}")
    E(f"v_add_u32 v{vRb}, {8*PP2}, v{vRa}")
    vH = [A() for _ in range(4)]
    E(f"v_lshl_add_u32 v{vt[0]}, v{vC}, 1, v{vG}")
    for k in range(4):
        E(f"v_add_u32 v{vt[1]}, {30 - 16 - 4*k}, v{vt[0]}")
        E(f"v_lshrrev_b32 v{vt[2]}, 2, v{vt[1]}")
        E(f"v_add_u32 v{vt[2]}, s{sW}, v{vt[2]}")
        E(f"v_and_b32 v{vt[2]}, 3, v{vt[2]}")
        E(f"v_lshlrev_b32 v{vt[1]}, 6, v{vt[1]}")
        E(f"v_lshl_add_u32 v{vH[k]}, v{vt[2]}, 4, v{vt[1]}")
    L2E = math.log2(math.e); L2Eh = f32val(L2E); L2El = L2E - L2Eh
    I2P = 1 / (2 * math.pi); I2Ph = f32val(I2P); I2Pl = I2P - I2Ph
    vDt = vt[4]; vDsk = A(); vNon = A()
    E(f"s_mov_b32 s7, {f32(L2Eh)}")
    E(f"s_mov_b32 s8, {f32(I2Ph)}")
    E(f"s_lshl_b32 s{sT0}, s{sW}, 4")
    E(f"s_lshr_b64 s[100:101], s[100:101], s{sT0}")
    E(f"s_lshr_b64 s[16:17], s[16:17], s{sT0}")
    E(f"s_lshl_b32 s100, s100, 16")
    E(f"s_lshl_b32 s101, s16, 16")
    E(f"v_mov_b32 v{vt[0]}, s100")
    ST(E, "par")
    E(f"v_mul_f32 v{vt[1]}, s7, v{vt[0]}")
    E(f"v_fma_f32 v{vt[2]}, v{vt[0]}, s7, -v{vt[1]}")
    E(f"v_fmac_f32 v{vt[2]}, {f32(L2El)}, v{vt[0]}")
    E(f"v_exp_f32 v{vt[1]}, v{vt[1]}")
    E(f"v_mul_f32 v{vt[2]}, {f32(math.log(2))}, v{vt[2]}")
    E(f"v_fma_f32 v{vt[1]}, v{vt[1]}, v{vt[2]}, v{vt[1]}")
    E(f"v_cvt_pk_bf16_f32 v{vt[1]}, v{vt[1]}, v{vt[1]}")
    E(f"v_and_b32 v{vDt}, 0xffff0000, v{vt[1]}")
    A2 = Alloc(KG, KG + 32)
    PK = [A2(4, 4), A2(4, 4)]
    W1 = [A2(3, 1), A2(3, 1)]; W8 = [A2(3, 1), A2(3, 1)]; W256 = [A2(3, 1), A2(3, 1)]
    A3 = Alloc(big + 136, big + 160)
    XS = [[A3(2) for _ in range(4)] for _ in range(2)]
    XC = [A3(2), A3(2)]; XD = [A3(2), A3(2)]
    XU = [[big + 124, big + 126], [big + 128, big + 130]]
    tmp = big + 100
    per_n = []
    for n in range(2):
        t = [tmp + 12 * n + i for i in range(12)]
        un = (lambda d, src: f"v_lshlrev_b32 v{d}, 16, v{src}") if n == 0 else (lambda d, src: f"v_and_b32 v{d}, 0xffff0000, v{src}")
        L = [un(t[0], P[0]), un(t[1], P[1]),
             f"v_mul_f32 v{t[0]}, v{vDt}, v{t[0]}",
             f"v_mul_f32 v{t[1]}, v{vDt}, v{t[1]}",
             f"v_mul_f32 v{t[0]}, s7, v{t[0]}",
             f"v_mul_f32 v{t[6]}, s8, v{t[1]}",
             f"v_fma_f32 v{t[7]}, v{t[1]}, s8, -v{t[6]}",
             f"v_fmac_f32 v{t[7]}, {f32(I2Pl)}, v{t[1]}"]
        for e, Wd in ((1, W1[n]), (256, W256[n]), (8, W8[n])):
            if e == 1:
                L += [f"v_exp_f32 v{t[8]}, v{t[0]}", f"v_fract_f32 v{t[9]}, v{t[6]}", f"v_add_f32 v{t[9]}, v{t[9]}, v{t[7]}"]
            else:
                L += [f"v_mul_f32 v{t[8]}, {f32(e)}, v{t[0]}", f"v_mul_f32 v{t[9]}, {f32(e)}, v{t[6]}",
                      f"v_exp_f32 v{t[8]}, v{t[8]}", f"v_fract_f32 v{t[9]}, v{t[9]}", f"v_fmac_f32 v{t[9]}, {f32(e)}, v{t[7]}"]
            L += [f"v_cos_f32 v{t[10]}, v{t[9]}", f"v_sin_f32 v{t[11]}, v{t[9]}",
                  f"v_mul_f32 v{Wd}, v{t[8]}, v{t[10]}", f"v_mul_f32 v{Wd+1}, v{t[8]}, v{t[11]}", f"v_xor_b32 v{Wd+2}, 0x80000000, v{Wd+1}"]
        c0 = XS[n][0]
        L += [un(t[k], P[k]) for k in range(2, 6)]
        L += [f"v_mul_f32 v{t[2]}, v{vDt}, v{t[2]}", f"v_mul_f32 v{t[3]}, v{vDt}, v{t[3]}",
              f"v_mul_f32 v{c0}, v{t[4]}, v{t[2]}", f"v_mul_f32 v{c0+1}, v{t[5]}, v{t[2]}",
              f"v_fma_f32 v{c0}, -v{t[5]}, v{t[3]}, v{c0}", f"v_fmac_f32 v{c0+1}, v{t[4]}, v{t[3]}"]
        per_n.append(L)
    E(zipl(*per_n))
    E(f"v_cmp_eq_u32 vcc, 0, v{vL}")
    E(f"v_mov_b32 v{vDsk}, s101")
    E(f"v_cndmask_b32 v{vDsk}, 0, v{vDsk}, vcc")
    def put_row(row, regs, neg, last=False):
        p = PK[(row // 2) % 2]; q = p + 2 * (row % 2)
        sg = "-" if neg else ""
        L = [f"v_cvt_pk_bf16_f32 v{q}, v{regs[0]}, {sg}v{regs[0]+1}",
             f"v_cvt_pk_bf16_f32 v{q+1}, v{regs[1]}, {sg}v{regs[1]+1}"]
        if row % 2 or last: L.append(f"ds_write_b128 v{vWa}, {v(p,4)} offset:{(row//2)*PP2}")
        return L
    def step(dst, src, mul):
        return zipl(cmul(dst[0], src[0], mul[0]), cmul(dst[1], src[1], mul[1]))
    XSi = lambda i: [XS[0][i], XS[1][i]]
    XUi = lambda i: [XU[0][i], XU[1][i]]
    def slab_out():
        if "--xnomem" in sys.argv or "--x1" in sys.argv: return None
        def slab_tr():
            E.wait_vm("slab")
            ST(E, "slab")
            for i in range(4):
                E(f"ds_read_b64_tr_b16 {v(big+4*i,2)}, v{vTa} offset:{64*i}")
                E(f"ds_read_b64_tr_b16 {v(big+4*i+2,2)}, v{vTa} offset:{64*i+1024}")
        if SLAB != 6: slab_tr()
        E("s_setprio 3")
        G.snonce(E, vNon)
        if SLAB >= 4:
            skip = newlabel("nogo")
            E(f"s_lshl_b32 s{sT0}, s{sCG}, 7")
            E(f"s_add_u32 s{sT0}, s{sT0}, {G.FLAGG_BASE}")
            E(f"s_cmp_ge_u32 s{sCG}, {NWAIT}")
            E(f"s_cbranch_scc1 {skip}")
            ok = newlabel("gok"); sp = newlabel("gsp")
            E.raw("    s_mov_b32 s13, 0")
            E.label(sp)
            for t in [f"s_buffer_load_dword s16, s[{rWS}:{rWS+3}], s{sT0} glc", "s_add_u32 s13, s13, 1", "s_waitcnt lgkmcnt(0)", f"s_cmp_gt_u32 s13, {G.SPIN_MAX}",
                      f"s_cbranch_scc1 {skip}", f"s_cmp_eq_u32 s16, s{sN}", f"s_cbranch_scc1 {skip}", "s_sleep 3", f"s_branch {sp}"]:
                E.raw("    " + t)
            E.label(skip)
            ST(E, "go")
            if SLAB == 6:
                slab_in(); E("s_setprio 3"); slab_tr()
        for i in range(4):
            E(f"s_add_u32 s{sT1}, s{sUT}, {8*16384*i}")
            E(f"buffer_store_dwordx4 {v(big+4*i,4)}, v{vUo}, s[{rWS}:{rWS+3}], s{sT1} offen {'' if '--xplain' in sys.argv else 'sc1'}")
        E(f"s_setprio {G.BPRIO}")
        ST(E, "ust")
    def flag(saddr):
        skip = newlabel("nofl")
        E(f"s_cmp_lg_u32 s{sW}, 0")
        E(f"s_cbranch_scc1 {skip}")
        E("s_mov_b32 exec_hi, 0")
        E.raw(f"    buffer_store_dword v{vNon}, v{vPu}, s[{rWS}:{rWS+3}], s{saddr} offen sc1")
        E("s_mov_b64 exec, -1")
        E.label(skip)
    def wait_line(saddr):
        G.sflag_wait(E, saddr, 1, 8, 16, sleep=2)
        E("s_barrier")
    def publish():
        if "--xnomem" in sys.argv or "--x1" in sys.argv or "--x2" in sys.argv: return
        E("s_setprio 3")
        E.wait_vm()
        E("s_barrier")
        flag(sFU)
        E(f"s_setprio {G.BPRIO}")
        ST(E, "ack")
    if SLAB == 3: nld = slab_out()
    L = put_row(0, XSi(0), True)
    cur = XSi(0)
    for e in range(1, 8):
        dst = XSi(e // 2) if e % 2 == 0 else XC
        L += step(dst, cur, W1) + put_row(e, dst, True); cur = dst
    for i, dst in enumerate((XUi(0), XC, XUi(1), XC)):
        L += step(dst, XSi(i), W256) + put_row(8 + i, dst, True)
    for k in range(2): L += step(XSi(k), XUi(k), W256) + put_row(12 + k, XSi(k), True)
    for k in range(2): L += step(XUi(k), XSi(k), W256) + put_row(14 + k, XUi(k), True)
    cur = XUi(0)
    for r in range(16, 21):
        dst = XC if r % 2 == 0 else XD
        L += step(dst, cur, W256) + put_row(r, dst, True, last=(r == 20)); cur = dst
    E(L)
    XF = big + 16
    YF = big + 80
    KD = big + 112
    for tI in range(2):
        for k in range(8):
            E(f"ds_read2_b64 {v(XF+32*tI+4*k,4)}, v{vRb if tI else vRa} offset0:{16*k} offset1:{16*k+2}")
    ST(E, "X")
    if SLAB == 0: nld = slab_out()
    if SLAB in (1, 4): slab_in()
    if SLAB == 3: publish()
    def yhalf(h):
        L = []
        for j in range(16):
            jj = 16 * h + j
            Yc, Yp = (XC, XD) if jj % 2 == 0 else (XD, XC)
            if jj == 0:
                L += [f"v_mov_b32 v{Yc[0]}, 1.0", f"v_mov_b32 v{Yc[0]+1}, 0", f"v_mov_b32 v{Yc[1]}, 1.0", f"v_mov_b32 v{Yc[1]+1}, 0"]
            else:
                L += step(Yc, Yp, W8)
            L += put_row(j, Yc, False)
        return L
    def yread(): return [f"ds_read2_b64 {v(YF+4*k,4)}, v{vRa} offset0:{16*k} offset1:{16*k+2}" for k in range(8)]
    def kmfma(h):
        L = []
        for k in range(8):
            for tI in range(2):
                d = KD + 8 * h + 4 * tI
                L.append(f"{M16} {v(d,4)}, {v(XF+32*tI+4*k,4)}, {v(YF+4*k,4)}, {v(d,4) if k else 0}")
        return L
    def tabw(h):
        d0 = KD + 8 * h; d1 = d0 + 4
        p = big + 128 + 4 * h if h == 0 else big + 136
        L = [f"v_add_f32 v{KD}, v{KD}, v{vDsk}"] if h == 0 else []
        L += [f"v_cvt_pk_bf16_f32 v{p}, v{d0}, v{d0+1}", f"v_cvt_pk_bf16_f32 v{p+1}, v{d0+2}, v{d0+3}",
              f"v_cvt_pk_bf16_f32 v{p+2}, v{d1}, v{d1+1}", f"v_cvt_pk_bf16_f32 v{p+3}, v{d1+2}, v{d1+3}",
              f"ds_write_b32 v{a0[h]}, v{p}", f"ds_write_b32 v{a1[h]}, v{p+1}"]
        for rho in range(4):
            op = "ds_write_b16" if rho % 2 == 0 else "ds_write_b16_d16_hi"
            L.append(f"{op} v{a3 if (rho == 0 and h == 0) else a2}, v{p+2+rho//2} offset:{2*TA_POS + 32*rho + 16*h}")
        return L
    E(yhalf(0)); E(yread())
    if SLAB == 0: publish()
    if SLAB == 1: nld = slab_out()
    if SLAB == 2: slab_in()
    y1 = yhalf(1)
    E(merge(y1, kmfma(0)))
    E(yread())
    if SLAB == 2: nld = slab_out()
    E(tabw(0)); E(kmfma(1))
    E(f"v_lshl_add_u32 v{vt[0]}, v{vC}, 2, s{sSC}")
    E(f"ds_write_b32 v{vt[0]}, v{vZ}")
    E(f"ds_write_b32 v{vt[0]}, v{vZ} offset:{SIG_SZ}")
    ST(E, "Y")
    def get_u():
        if "--xnomem" in sys.argv or "--x1" in sys.argv or "--x2" in sys.argv or "--x3" in sys.argv: return
        E("s_setprio 3")
        wait_line(sFUp)
        ST(E, "polled")
        if "--x4" in sys.argv: return
        E(f"s_mov_b32 m0, s{sUS}")
        for i in range(4):
            E(f"buffer_load_dwordx4 v{vL16}, s[{rWS}:{rWS+3}], s{sUI} offen offset:{1024*i} sc1 lds", tag="uimg")
        E(f"s_setprio {G.BPRIO}")
    if SLAB == 1: publish()
    E(tabw(1))
    E(f"ds_read_u16 v{vt[5]}, v{vMa}")
    E(f"ds_read_u16 v{vt[4]}, v{vMb}")
    E(f"v_lshl_or_b32 v{vt[5]}, v{vt[4]}, 16, v{vt[5]}")
    E(f"ds_write_b32 v{vMw}, v{vt[5]} offset:544")
    ACC = KG
    Hs = [big, big + 32]; Fs = [big + 64, big + 84]; RAW = big + 100; WD = big + 128
    SFr = WD; TFr = big + 112
    def dense(F, r, a, o):
        return ([f"ds_read2_b32 {v(r,2)}, v{a} offset0:{o} offset1:{o+1}",
                 f"ds_read2_b32 {v(r+2,2)}, v{a} offset0:{o+2} offset1:{o+3}",
                 f"ds_read_b32 v{r+4}, v{a} offset:{4*(o+4)}"],
                [f"v_perm_b32 v{F+j}, v{r+4-j}, v{r+3-j}, v{sel[('d',3)]}" for j in (3, 2, 1, 0)])
    def prepF(s0, buf):
        rd = []; pm = []
        r = RAW if s0 else Hs[1]
        for m in range(5 if s0 == 0 else 4):
            if s0 and m == 3:
                assert r <= TFr and vt[4] % 2 == 0
                r = vt[4]
            sx = s0 + 8 * m
            F = Fs[buf] + 4 * m
            if sx <= 8 or sx == 16 or sx == 32:
                a, b = dense(F, r, adr['d'], {16: 152, 32: 176}.get(sx, 16 * sx))
                rd += a; pm += b; r += 6
            elif sx < 16:
                o = 8 * (sx - 9)
                rd += [f"ds_read2_b32 {v(r,2)}, v{adr['1']} offset0:{o} offset1:{o+1}",
                       f"ds_read_b32 v{r+2}, v{adr['1']} offset:{4*(o+2)}"]
                pm += [f"v_perm_b32 v{F+3}, v{r+1}, v{r}, v{sel[('1',3)]}", f"v_perm_b32 v{F+2}, v{r+1}, v{r}, v{sel[('1',2)]}",
                       f"v_perm_b32 v{F+1}, v{r+2}, v{r+1}, v{sel[('1',3)]}", f"v_perm_b32 v{F}, v{r+2}, v{r+1}, v{sel[('1',2)]}"]
                r += 4
            else:
                o = 4 * (sx - 17)
                rd += [f"ds_read2_b32 {v(r,2)}, v{adr['2']} offset0:{o} offset1:{o+1}"]
                pm += [f"v_perm_b32 v{F+j}, v{r+1}, v{r}, v{sel[('2',j)]}" for j in (3, 2, 1, 0)]
                r += 2
        return rd, pm
    def prepH(s0, buf):
        return [f"ds_read_b128 {v(Hs[buf]+4*dl,4)}, v{vH[s0%4]} offset:{2048*dl + (1024 if s0 < 4 else 0)}" for dl in range(8)]
    rd, pm = prepF(0, 0)
    hr = prepH(0, 0)
    E(rd); E(pm)
    for k in range(4):
        a_, b_ = dense(TFr + 4 * k, Hs[1] + 6 * k, aT, 8 * k)
        E(a_)
    for k in range(4): E(dense(TFr + 4 * k, Hs[1] + 6 * k, aT, 8 * k)[1])
    ST(E, "tables")
    if SLAB >= 4: slab_out()
    if SLAB == 2 or SLAB >= 4: publish()
    get_u()
    E.wait_vm("uimg")
    E.wait_lg()
    E("s_barrier")
    ST(E, "uimg")
    if "--xnoconv" in sys.argv:
        ST.dump(E, sW, big + 70)
        E("s_endpgm")
        return ST
    E(f"s_setprio {G.CPRIO}")
    E(hr)
    wcv = []; wwr = []
    for dl in range(4):
        for bI in range(2):
            d = WD + 8 * dl + 4 * bI
            wcv += [f"v_cvt_pk_bf16_f32 v{d}, v{d}, v{d+1}", f"v_cvt_pk_bf16_f32 v{d+1}, v{d+2}, v{d+3}"]
            wwr += [f"ds_write_b64 v{aW}, {v(d,2)} offset:{64 + SIG_SZ*bI + 512*dl}"]
    srd_ = [f"ds_read_b64_tr_b16 {v(SFr+4*k+2*a,2)}, v{aS} offset:{40 + 512*k + 128*a}" for k in range(4) for a in range(2)]
    ycv = lambda q: [f"v_cvt_pk_bf16_f32 v{big+2*q}, v{ACC+4*q}, v{ACC+4*q+1}", f"v_cvt_pk_bf16_f32 v{big+2*q+1}, v{ACC+4*q+2}, v{ACC+4*q+3}"]
    ya = vt[0]
    ywr = lambda q: f"ds_write_b64 v{ya}, {v(big+2*q,2)} offset:{Y_OFF + 512*q}"
    E(f"s_mul_i32 s{sT0}, s{sW}, 144")
    E(f"v_add_u32 v{ya}, s{sT0}, v{aW}")
    for s0 in range(8):
        b = s0 % 2
        M = []
        if s0 == 0:
            for dl in range(4):
                for bI in range(2):
                    M.append(f"{M16} {v(WD+8*dl+4*bI,4)}, {v(BN+4*bI,4)}, {v(Hs[0]+4*dl,4)}, 0")
        if s0 == 6:
            for q in range(4, 8):
                for k in range(q - 3):
                    M.append(f"{M16} {v(ACC+4*q,4)}, {v(SFr+4*k,4)}, {v(TFr+4*(q-k-4),4)}, {v(ACC+4*q,4)}")
        pairs = [(m, dl) for m in range(5 if s0 == 0 else 4) for dl in range(8 - m)]
        if s0 == 7: pairs.sort(key=lambda x: x[0] + x[1])
        for m, dl in pairs:
            q = m + dl
            c = v(ACC + 4 * q, 4) if (s0 or m) else "0"
            M.append(f"{M16} {v(ACC+4*q,4)}, {v(Fs[b]+4*m,4)}, {v(Hs[b]+4*dl,4)}, {c}")
        n = len(M)
        if s0 < 7:
            rd, pm = prepF(s0 + 1, 1 - b)
            st = [(rd, 0, 6), (prepH(s0 + 1, 1 - b), 7, 14), (pm, n - 17, n - 2)]
            if s0 == 0: st += [(wcv, 6, 20), (wwr, 23, 37)]
            if s0 == 2: st += [(srd_, 16, 24)]
            E(gaps(M, st))
        else:
            done = {q: max(i for i, (m, dl) in enumerate(pairs) if m + dl == q) for q in range(8)}
            st = []
            for q in range(6): st += [(ycv(q), done[q] + 4, done[q] + 5), ([ywr(q)], done[q] + 7, done[q] + 7)]
            E(gaps(M, st))
    ST(E, "conv")
    if "--gemmonly" in sys.argv:
        ST.dump(E, sW, big + 70)
        E("s_endpgm")
        return ST
    for q in (6, 7): E(ycv(q)); E(ywr(q))
    yr, yo = vt[1], vt[2]
    E(f"v_lshrrev_b32 v{vt[3]}, 2, v{vC}")
    E(f"v_mul_u32_u24 v{yr}, {Y_PITCH}, v{vt[3]}")
    E(f"v_and_b32 v{vt[3]}, 3, v{vC}")
    E(f"v_lshl_add_u32 v{yr}, v{vt[3]}, 3, v{yr}")
    E(f"v_lshl_add_u32 v{yr}, v{vG}, 5, v{yr}")
    E(f"s_lshl_b32 s{sT0}, s{sW}, 10")
    E(f"s_add_u32 s{sT0}, s{sT0}, {SC_BASE + Y_OFF}")
    E(f"v_add_u32 v{yr}, s{sT0}, v{yr}")
    E(f"v_lshlrev_b32 v{yo}, 3, v{vL}")
    E.wait_lg()
    E("s_barrier")
    E("s_setprio 3")
    for i in range(8):
        E(f"ds_read_b64_tr_b16 {v(big+32+2*i,2)}, v{yr} offset:{128*i}")
    for i in range(8):
        E(f"buffer_store_dwordx2 {v(big+32+2*i,2)}, v{yo}, s[{rWS}:{rWS+3}], s{sYS} offen offset:{512*i} sc1")
    d0, d1, ra, so = vt[0], vt[1], vt[2], vt[3]
    E(f"v_lshrrev_b32 v{vt[4]}, 3, v{vL}")
    E(f"v_lshlrev_b32 v{vt[4]}, 14, v{vt[4]}")
    E(f"v_and_b32 v{vt[5]}, 7, v{vL}")
    E(f"v_xor_b32 v{vt[5]}, v{vt[5]}, v{vG}")
    E(f"v_lshl_add_u32 v{d0}, v{vt[5]}, 4, v{vt[4]}")
    E(f"v_xor_b32 v{d1}, 64, v{d0}")
    E(f"v_and_b32 v{vt[4]}, 7, v{vC}")
    E(f"v_lshrrev_b32 v{vt[5]}, 1, v{vG}")
    E(f"v_xor_b32 v{vt[4]}, v{vt[4]}, v{vt[5]}")
    E(f"v_lshlrev_b32 v{ra}, 8, v{vC}")
    E(f"v_lshl_add_u32 v{ra}, v{vt[4]}, 4, v{ra}")
    E(f"v_and_b32 v{vt[5]}, 1, v{vG}")
    E(f"v_lshl_add_u32 v{ra}, v{vt[5]}, 3, v{ra}")
    E(f"v_add_u32 v{ra}, s{sUS}, v{ra}")
    E(f"v_mul_u32_u24 v{so}, 2560, v{vG}")
    E(f"v_lshl_add_u32 v{so}, v{vC}, 4, v{so}")
    for i in range(1, 4): E(f"v_xor_b32 v{big+60+i}, {32*i}, v{ra}")
    E.wait_vm()
    E("s_barrier")
    flag(sFY)
    ST(E, "ypub")
    wait_line(sFYp)
    ST(E, "ypoll")
    for i in range(4):
        E(f"s_add_u32 m0, s{sUS}, {1024*i}")
        E(f"s_add_u32 s{sT1}, s{sYL}, {8*16384*i}")
        E(f"buffer_load_dwordx4 v{d0 if i % 2 == 0 else d1}, s[{rWS}:{rWS+3}], s{sT1} offen sc1 lds")
    E.wait_vm()
    for i in range(4):
        E(f"ds_read2_b64 {v(big+4*i,4)}, v{ra if i == 0 else big+60+i} offset1:16")
    for i in range(4):
        E(f"s_add_u32 s{sT1}, s{sYO}, {4*2560*i}")
        E(f"buffer_store_dwordx4 {v(big+4*i,4)}, v{so}, s[{rOUT}:{rOUT+3}], s{sT1} offen {G.OUTB}")
    if G.PROFILE:
        E.wait_vm()
        ST(E, "end")
    ST.dump(E, sW, big + 70)
    E("s_endpgm")
    return ST
```

```python
import math, sys
from asmlib import *

TA = [[(0, 0), (0, 2), (0, 4), (1, 4)], [(0, 1), (0, 3), (1, 3), (2, 3)], [(1, 0), (1, 2), (2, 2), (2, 4)], [(1, 1), (2, 0), (2, 1), None]]
M16 = "v_mfma_f32_16x16x32_bf16"; M32 = "v_mfma_f32_32x32x16_bf16"

def div_const(dst, src, d):
    return [f"v_mul_u32_u24 v{dst}, {(65536 + d - 1)//d}, v{src}", f"v_lshrrev_b32 v{dst}, 16, v{dst}"]

def put_flag(E, G, sW, vNon, saddr):
    skip = G.newlabel("nofl")
    E(f"s_cmp_lg_u32 s{sW}, 0")
    E(f"s_cbranch_scc1 {skip}")
    E("s_mov_b64 exec, 1")
    E.raw(f"    buffer_store_dword v{vNon}, off, s[{G.rWS}:{G.rWS+3}], s{saddr} sc1")
    E("s_mov_b64 exec, -1")
    E.label(skip)

def flag_addr(dst, idx, base, t):
    return [f"s_lshr_b32 s{dst}, s{idx}, 3", f"s_lshl_b32 s{dst}, s{dst}, 7", f"s_and_b32 s{t}, s{idx}, 7", f"s_lshl_b32 s{t}, s{t}, 2",
            f"s_add_u32 s{dst}, s{dst}, s{t}", f"s_add_u32 s{dst}, s{dst}, {base}"]

def piece_voff(E, vL, dst, t, pitch):
    for m in range(3):
        if m: E(f"v_add_u32 v{t}, {64*m}, v{vL}")
        ci = t if m else vL
        E(div_const(t + 1, ci, 20))
        E(f"v_mul_u32_u24 v{t+1}, {pitch - 320}, v{t+1}")
        E(f"v_lshl_add_u32 v{dst[m]}, v{vL}, 4, v{t+1}")

def gen_C(E, G):
    rWS, rDBG, rWO = G.rWS, G.rDBG, G.rWO
    G.fresh(E)
    sW, sU = 76, 77
    vL, vo, t, vT, vS, D, vNon = 1, [2, 3, 4], 6, [8, 9, 10], [11, 12, 13], 16, 14
    E(f"v_and_b32 v{vL}, 63, v0")
    E(f"v_lshrrev_b32 v{t}, 6, v0")
    E(f"s_sub_u32 s{sU}, s2, {G.NB + G.NA}")
    E(f"v_readfirstlane_b32 s{sW}, v{t}")
    piece_voff(E, vL, vo, t, 1280)
    E(f"s_mul_i32 s4, s{sU}, {8*1280}")
    E(f"s_mul_i32 s5, s{sW}, 320")
    E(f"s_add_u32 s4, s4, s5")
    E(f"s_lshl_b32 s6, s{sW}, 12")
    E(f"s_mov_b32 m0, s6")
    E.wait_lg()
    G.srd(E, rWO, G.pWO, 819200)
    for m in range(3):
        if m == 2: E("s_mov_b32 exec_hi, 0")
        E(f"buffer_load_dwordx4 v{vo[m]}, s[{rWO}:{rWO+3}], s4 offen offset:{1024*m} lds")
    E("s_mov_b64 exec, -1")
    G.srd(E, rWS, G.pWS, G.WS_SIZE)
    G.srd(E, rDBG, G.pDBG, 256)
    for m in range(3):
        E(f"v_lshrrev_b32 v{t}, 4, v{vL}")
        E(f"v_add_u32 v{t}, {4*m}, v{t}")
        E(f"v_min_u32 v{t}, 9, v{t}")
        E(f"v_cmp_lt_u32 vcc, 4, v{t}")
        E(f"v_lshlrev_b32 v{vT[m]}, 3, v{t}")
        E(f"v_add_u32 v{t+1}, 120, v{vT[m]}")
        E(f"v_cndmask_b32 v{vT[m]}, v{vT[m]}, v{t+1}, vcc")
        E(f"v_lshlrev_b32 v{vS[m]}, 10, v{t}")
        E(f"v_add_u32 v{t+1}, {95*1024}, v{vS[m]}")
        E(f"v_cndmask_b32 v{vS[m]}, v{vS[m]}, v{t+1}, vcc")
        E(f"v_and_b32 v{t}, 3, v{vL}")
        E(f"v_mul_u32_u24 v{t}, 40, v{t}")
        E(f"v_bfe_u32 v{t+1}, v{vL}, 2, 2")
        E(f"v_mul_u32_u24 v{t+1}, 320, v{t+1}")
        E(f"v_add3_u32 v{vT[m]}, v{vT[m]}, v{t}, v{t+1}")
        E(f"v_add_u32 v{vT[m]}, s6, v{vT[m]}")
        E(f"v_and_b32 v{t}, 15, v{vL}")
        E(f"v_lshl_add_u32 v{vS[m]}, v{t}, 4, v{vS[m]}")
    E(f"s_mul_i32 s4, s{sW}, {200*1024}")
    E(f"s_lshr_b32 s5, s{sU}, 2")
    E(f"s_mul_i32 s5, s5, 5120")
    E(f"s_add_u32 s4, s4, s5")
    E(f"s_and_b32 s5, s{sU}, 3")
    E(f"s_lshl_b32 s5, s5, 8")
    E(f"s_add_u32 s4, s4, s5")
    E(f"s_add_u32 s4, s4, {G.PWO_BASE}")
    E(flag_addr(7, sU, G.FLAGC_BASE, 5))
    E.wait_vm()
    for m in range(3):
        for a in range(2): E(f"ds_read_b64_tr_b16 {v(D+4*m+2*a,2)}, v{vT[m]} offset:{1280*a}")
    for m in range(3):
        if m == 2:
            E.wait_lg()
            E("s_mov_b32 exec_hi, 0")
        E(f"buffer_store_dwordx4 {v(D+4*m,4)}, v{vS[m]}, s[{rWS}:{rWS+3}], s4 offen sc1")
    E("s_mov_b64 exec, -1")
    nld = G.nonce_load(E, vNon)
    G.nonce_get(E, nld, vNon)
    E.wait_vm()
    E("s_barrier")
    put_flag(E, G, sW, vNon, 7)
    E("s_endpgm")

def gen_A(E, G):
    f32, Alloc, srd, spin, newlabel = G.f32, G.Alloc, G.srd, G.spin, G.newlabel
    rWS, rOUT, rDBG, rIN, rW, rPHI = G.rWS, G.rOUT, G.rDBG, G.rIN, G.rW, G.rPHI
    sN = G.sN
    G.fresh(E)
    ST = G.Stamps(24)
    sW, sR, sP, sPQ, sTBo, sCT, sROT = 76, 77, 78, 79, 80, 81, 82
    sT0, sT1, sT2 = 4, 5, 6
    sWO, sXO, sWE, sXE = 84, 85, 86, 87
    sW4, sXR, sH, sFT = 88, 89, 90, 91
    sPS, sOS, sFO, sPL, sOL, sWL, sFC, sOUT, sFP, sF1, sF2 = 96, 97, 98, 99, 100, 101, 45, 46, 92, 47, 3
    XR = 49152
    TAB = 36864; ZTAB = TAB + 3200; KVT = 45056; ZKV = ZTAB
    def wslot(sig): return 16384 * ((sig + 1) % 3)
    E(f"s_setprio {G.APRIO}")
    A = Alloc(1, 256)
    vL = A(); vHH = A(); vL16 = A()
    ACC = A(64, 4)
    WF = A(32, 4)
    XF = A(32, 4)
    PF = A(48, 4)
    TM = A(36, 4)
    ID = A(4, 4)
    vXo = [A() for _ in range(4)]
    vWo = [A() for _ in range(4)]
    vWt = [A() for _ in range(4)]
    vXrs = [A() for _ in range(4)]
    MP = A(); vMn = A(); vNon = A()
    vPk = A(); vVw = A(); vA = A(); vB = A(); vS1 = A(); vS2 = A(); vPi = A(); vKa = A(); vO1 = A(); vO3 = A(); vC4 = A()
    vRw = A(); vSo = [A() for _ in range(3)]
    vFl = A(); vFc = A()
    vt = [TM + 20 + i for i in range(12)]
    vG, vC, vGam, vR4 = vt[8], vt[9], vt[10], vt[11]
    E(f"v_and_b32 v{vL}, 63, v0")
    E(f"v_lshrrev_b32 v{vt[0]}, 6, v0")
    E(f"v_lshrrev_b32 v{vG}, 4, v{vL}")
    E(f"v_readfirstlane_b32 s{sW}, v{vt[0]}")
    E(f"s_and_b32 s{sT0}, s2, 7")
    E(f"s_lshr_b32 s{sT1}, s2, 3")
    E(f"s_lshr_b32 s{sCT}, s{sT1}, 2")
    E(f"s_and_b32 s{sT1}, s{sT1}, 3")
    E(f"s_lshl_b32 s{sTBo}, s{sT0}, 2")
    E(f"s_add_u32 s{sTBo}, s{sTBo}, s{sT1}")
    E(f"s_lshr_b32 s{sR}, s{sT0}, 1")
    E(f"s_lshl_b32 s{sR}, s{sR}, 2")
    E(f"s_add_u32 s{sR}, s{sR}, s{sT1}")
    E(f"s_lshl_b32 s{sT2}, s{sCT}, 2")
    E(f"s_lshr_b32 s{sT2}, 0x64317520, s{sT2}")
    E(f"s_and_b32 s{sT2}, s{sT2}, 7")
    E(f"s_and_b32 s{sP}, s{sT0}, 1")
    E(f"s_lshl_b32 s{sP}, s{sP}, 3")
    E(f"s_add_u32 s{sP}, s{sP}, s{sT2}")
    E(f"s_xor_b32 s{sPQ}, s{sP}, 1")
    if "--newrot" not in sys.argv:
        E(f"s_mul_i32 s{sROT}, s{sT1}, 3")
        E(f"s_add_u32 s{sROT}, s{sROT}, s{sT2}")
        E(f"s_sub_u32 s{sT0}, s{sROT}, 10")
        E(f"s_cmp_ge_u32 s{sROT}, 10")
        E(f"s_cselect_b32 s{sROT}, s{sT0}, s{sROT}")
    else:
        E(f"s_mov_b32 s14, 0x97453618"); E(f"s_mov_b32 s15, 0x21984036")
        E(f"s_bitcmp1_b32 s{sT1}, 1")
        E(f"s_cselect_b32 s14, 0x30219857, s14"); E(f"s_cselect_b32 s15, 0x85362704, s15")
        E(f"s_lshl_b32 s{sROT}, s{sT1}, 3")
        E(f"s_add_u32 s{sROT}, s{sROT}, s{sT2}")
        E(f"s_lshl_b32 s{sROT}, s{sROT}, 2")
        E(f"s_lshr_b64 s[14:15], s[14:15], s{sROT}")
        E(f"s_and_b32 s{sROT}, s14, 15")
    E(f"s_mul_i32 s{sT0}, s{sPQ}, 80")
    E(f"s_mul_i32 s{sT1}, s{sP}, 80")
    E(f"s_sub_u32 s{sT2}, s{sT1}, s{sT0}")
    E(f"s_add_u32 s{sT2}, s{sT2}, {1280-80}")
    for m in range(4):
        if m: E(f"v_add_u32 v{vt[0]}, {64*m}, v{vL}")
        ci = vt[0] if m else vL
        if m == 3: E(f"v_min_u32 v{vt[0]}, 239, v{vt[0]}")
        E(f"v_mul_u32_u24 v{vt[1]}, 0x1112, v{ci}")
        E(f"v_lshrrev_b32 v{vt[1]}, 16, v{vt[1]}")
        E(f"v_mul_u32_u24 v{vt[2]}, 15, v{vt[1]}")
        E(f"v_sub_u32 v{vt[2]}, v{ci}, v{vt[2]}")
        E(f"v_and_b32 v{vt[3]}, 3, v{vt[1]}")
        E(f"v_lshrrev_b32 v{vt[1]}, 2, v{vt[1]}")
        E(f"v_lshl_add_u32 v{vt[1]}, v{vt[3]}, 2, v{vt[1]}")
        E(f"v_cmp_lt_u32 vcc, 4, v{vt[2]}")
        E(f"v_mul_u32_u24 v{vt[1]}, 3840, v{vt[1]}")
        E(f"v_lshl_add_u32 v{vt[1]}, v{vt[2]}, 4, v{vt[1]}")
        E(f"v_add_u32 v{vt[3]}, s{sT2}, v{vt[1]}")
        E(f"v_cndmask_b32 v{vt[1]}, v{vt[1]}, v{vt[3]}, vcc")
        E(f"v_cmp_lt_u32 vcc, 9, v{vt[2]}")
        E(f"v_add_u32 v{vt[3]}, 1200, v{vt[1]}")
        E(f"v_cndmask_b32 v{vt[1]}, v{vt[1]}, v{vt[3]}, vcc")
        E(f"v_add_u32 v{vWo[m]}, {3072 - 1024*m}, v{vt[1]}")
    E(f"v_lshrrev_b32 v{vt[0]}, 3, v{vL}")
    E(f"v_and_b32 v{vt[1]}, 7, v{vL}")
    E(f"v_xor_b32 v{vt[1]}, v{vt[1]}, v{vG}")
    E(f"v_mul_u32_u24 v{vt[0]}, 1280, v{vt[0]}")
    E(f"v_lshl_add_u32 v{vXo[0]}, v{vt[1]}, 4, v{vt[0]}")
    E(f"v_xor_b32 v{vt[1]}, 4, v{vt[1]}")
    E(f"v_lshl_add_u32 v{vXo[1]}, v{vt[1]}, 4, v{vt[0]}")
    E(f"v_add_u32 v{vXo[2]}, {2*(8*1280-1024)}, v{vXo[0]}")
    E(f"v_add_u32 v{vXo[3]}, {3*(8*1280-1024)}, v{vXo[1]}")
    E(f"v_add_u32 v{vXo[1]}, {1*(8*1280-1024)}, v{vXo[1]}")
    E(f"s_mul_i32 s{sWE}, s{sW}, {16*3840}")
    E(f"s_add_u32 s{sWE}, s{sWE}, s{sT0}")
    E(f"s_mul_i32 s{sWO}, s{sROT}, {64*3840}")
    E(f"s_add_u32 s{sWO}, s{sWO}, s{sWE}")
    E(f"s_add_u32 s{sWE}, s{sWE}, {640*3840}")
    E(f"s_lshl_b32 s{sXE}, s{sR}, 2")
    E(f"s_add_u32 s{sXE}, s{sXE}, s{sW}")
    E(f"s_mul_i32 s{sXE}, s{sXE}, {32*1280}")
    E(f"s_lshl_b32 s{sXO}, s{sROT}, 7")
    E(f"s_add_u32 s{sXO}, s{sXO}, s{sXE}")
    E(f"s_add_u32 s{sXE}, s{sXE}, 1280")
    E(f"s_lshl_b32 s{sW4}, s{sW}, 12")
    E(f"s_lshl_b32 s{sXR}, s{sW}, 13")
    E(f"s_add_u32 s{sXR}, s{sXR}, {XR}")
    E.wait_lg()
    ST(E, "start")
    if "--noA" in sys.argv:
        srd(E, rWS, G.pWS, G.WS_SIZE)
        ST(E, "end")
        ST.dump(E, sW, ACC)
        E("s_endpgm")
        return ST
    E(f"s_sub_u32 s{G.pW}, s{G.pW}, 3072")
    E(f"s_subb_u32 s{G.pW+1}, s{G.pW+1}, 0")
    srd(E, rW, G.pW, 2457600 + 3072)
    srd(E, rIN, G.pX, 2621440)

    def dmaW(sig):
        L = []
        for m in range(4):
            g = []
            if m == 0: g.append(f"s_add_u32 m0, s{sW4}, {wslot(sig)}")
            g.append(("tag", f"buffer_load_dwordx4 v{vWo[m]}, s[{rW}:{rW+3}], s{sWO} offen offset:{1024*m} lds", f"S{sig}"))
            if m == 3: g += [f"s_add_u32 s{sWO}, s{sWO}, {64*3840}", f"s_cmp_ge_u32 s{sWO}, s{sWE}", f"s_cselect_b32 s9, {640*3840}, 0", f"s_sub_u32 s{sWO}, s{sWO}, s9"]
            L.append(("group", g))
        return L
    def dmaX(sig):
        L = []
        for i in range(4):
            g = []
            if i == 0: g.append(f"s_add_u32 m0, s{sXR}, {4096*(sig%2)}")
            g.append(("tag", f"buffer_load_dwordx4 v{vXo[i]}, s[{rIN}:{rIN+3}], s{sXO} offen offset:{1024*i} lds", f"S{sig}"))
            if i == 3: g += [f"s_add_u32 s{sXO}, s{sXO}, 128", f"s_cmp_ge_u32 s{sXO}, s{sXE}", f"s_cselect_b32 s9, 1280, 0", f"s_sub_u32 s{sXO}, s{sXO}, s9"]
            L.append(("group", g))
        return L
    E(dmaW(0)); E(dmaX(0))
    srd(E, rPHI, G.pPHI, 25600)
    vPhi = TM + 18
    E(f"v_lshlrev_b32 v{vPhi}, 4, v0")
    E(f"v_cmp_gt_u32 vcc, 200, v0")
    E(f"v_mov_b32 v{vPhi+1}, 0x100000")
    E(f"s_lshr_b32 s{sT0}, s{sP}, 1")
    E(f"s_mul_i32 s{sT0}, s{sT0}, 3200")
    E(f"v_cndmask_b32 v{vPhi+1}, v{vPhi+1}, v{vPhi}, vcc")
    E(f"buffer_load_dwordx4 {v(TM,4)}, v{vPhi+1}, s[{rPHI}:{rPHI+3}], s{sT0} offen")
    E(dmaW(1)); E(dmaX(1))
    srd(E, rWS, G.pWS, G.WS_SIZE)
    PN = TM + 32
    for i in range(4): E(f"v_mov_b32 v{PN+i}, -1")
    E(f"v_lshlrev_b32 v{vL16}, 4, v{vL}")
    E(f"s_lshl_b32 s{sPL}, s{sPQ}, 16")
    E(f"s_add_u32 s{sPL}, s{sPL}, {G.P_BASE}")
    E(f"s_lshl_b32 s{sPS}, s{sP}, 4")
    E(f"s_add_u32 s{sPS}, s{sPS}, s{sR}")
    E(f"s_lshl_b32 s{sPS}, s{sPS}, 12")
    E(f"s_add_u32 s{sPS}, s{sPS}, {G.P_BASE}")
    E(f"s_lshl_b32 s{sT0}, s{sW}, 10")
    E(f"s_add_u32 s95, s{sT0}, s{sPS}")
    srd(E, rDBG, G.pDBG, 256)
    srd(E, rOUT, G.pOUT, 5242880)
    E(f"v_and_b32 v{vC}, 15, v{vL}")
    E(f"v_bfe_u32 v{vGam}, v{vL}, 4, 1")
    E(f"v_bfe_u32 v{vt[0]}, v{vL}, 1, 1")
    E(f"v_lshl_add_u32 v{vGam}, v{vGam}, 1, v{vt[0]}")
    E(f"v_bfe_u32 v{vR4}, v{vL}, 2, 2")
    E(f"v_lshrrev_b32 v{vHH}, 5, v{vL}")
    E(f"v_lshlrev_b32 v{vt[0]}, 3, v{vGam}")
    E(f"v_and_b32 v{vt[1]}, 1, v{vL}")
    E(f"v_mul_u32_u24 v{vt[1]}, 5, v{vt[1]}")
    E(f"v_lshl_add_u32 v{vt[2]}, v{vR4}, 1, v{vHH}")
    E(f"v_mul_u32_u24 v{vt[2]}, 480, v{vt[2]}")
    for T in range(4):
        pk = sum((30 if e is None else 10 * e[0] + e[1]) << (8 * i) for i, e in enumerate(TA[T]))
        E(f"s_mov_b32 s9, {pk}")
        E(f"v_bfe_u32 v{vt[3]}, s9, v{vt[0]}, 8")
        E(f"v_add_u32 v{vt[3]}, v{vt[3]}, v{vt[1]}")
        E(f"v_min_u32 v{vt[3]}, 31, v{vt[3]}")
        E(f"v_lshl_add_u32 v{vWt[T]}, v{vt[3]}, 3, v{vt[2]}")
    E(f"v_and_b32 v{vt[0]}, 31, v{vL}")
    E(f"v_bfe_u32 v{vt[1]}, v{vL}, 1, 3")
    E(f"v_xor_b32 v{vt[1]}, v{vt[1]}, v{vHH}")
    E(f"v_lshlrev_b32 v{vt[0]}, 7, v{vt[0]}")
    E(f"v_lshl_add_u32 v{vt[0]}, v{vt[1]}, 4, v{vt[0]}")
    for j in range(4):
        E(f"v_xor_b32 v{vXrs[j]}, {32*j}, v{vt[0]}")
        E(f"v_add_u32 v{vXrs[j]}, s{sXR}, v{vXrs[j]}")
    E(f"s_and_b32 s{sH}, s{sW}, 1")
    E(f"s_lshr_b32 s{sFT}, s{sW}, 1")
    E(f"s_mov_b32 s94, {f32(math.log2(math.e))}")
    vPa = [TM + 16, TM + 17]
    E(f"v_mul_u32_u24 v{vt[0]}, 800, v{vHH}")
    E(f"v_mul_u32_u24 v{vt[1]}, 40, v{vR4}")
    E(f"v_lshl_add_u32 v{vt[1]}, v{vGam}, 3, v{vt[1]}")
    E(f"v_and_b32 v{vt[2]}, 1, v{vL}")
    E(f"v_cmp_eq_u32 vcc, v{vt[2]}, v{vHH}")
    for i, sp in enumerate((sP, sPQ)):
        E(f"s_and_b32 s{sT0}, s{sp}, 1")
        E(f"s_mul_i32 s{sT0}, s{sT0}, 1600")
        E(f"v_add3_u32 v{vt[3]}, v{vt[0]}, v{vt[1]}, s{sT0}")
        E(f"v_mov_b32 v{vPa[i]}, 3200")
        E(f"v_cndmask_b32 v{vPa[i]}, v{vPa[i]}, v{vt[3]}, vcc")
    E(f"v_lshlrev_b32 v{vPhi+1}, 2, v0")
    E(f"v_mov_b32 v{TM+4}, 0")
    for i in range(2):
        for t in range(2):
            E(f"v_mov_b32 v{PF+24*i+16+4*t+2}, 0"); E(f"v_mov_b32 v{PF+24*i+16+4*t+3}, 0")
    E(f"v_mul_u32_u24 v{vPk}, 80, v{vL}")
    E(f"v_add_u32 v{vPk}, s{sXR}, v{vPk}")
    E(f"v_mul_u32_u24 v{vVw}, 48, v{vL}")
    E(f"v_add_u32 v{vVw}, s{sXR}, v{vVw}")
    E(f"v_lshl_add_u32 v{vt[0]}, v{vHH}, 3, v{vR4}")
    E(f"v_bfe_u32 v{vt[1]}, v{vL}, 4, 1")
    E(f"v_lshlrev_b32 v{vt[1]}, 2, v{vt[1]}")
    E(f"v_and_b32 v{vt[2]}, 1, v{vL}")
    E(f"v_lshl_add_u32 v{vt[2]}, v{vt[2]}, 1, v{vt[1]}")
    E(f"v_bfe_u32 v{vt[3]}, v{vL}, 1, 1")
    E(f"v_add_u32 v{vt[2]}, v{vt[2]}, v{vt[3]}")
    E(f"v_mul_u32_u24 v{vA}, 80, v{vt[0]}")
    E(f"v_lshl_add_u32 v{vA}, v{vt[2]}, 3, v{vA}")
    E(f"s_mul_i32 s{sT0}, s{sH}, 2560")
    E(f"s_lshl_b32 s{sT1}, s{sFT}, 6")
    E(f"s_add_u32 s{sT0}, s{sT0}, s{sT1}")
    E(f"s_add_u32 s{sT0}, s{sT0}, {XR}")
    E(f"v_add_u32 v{vA}, s{sT0}, v{vA}")
    E(f"v_and_b32 v{vt[2]}, 3, v{vL}")
    E(f"v_add_u32 v{vt[2]}, v{vt[2]}, v{vt[1]}")
    E(f"v_mul_u32_u24 v{vB}, 48, v{vt[0]}")
    E(f"v_lshl_add_u32 v{vB}, v{vt[2]}, 3, v{vB}")
    E(f"s_mul_i32 s{sT0}, s{sH}, 1536")
    E(f"s_add_u32 s{sT0}, s{sT0}, {XR+5120}")
    E(f"v_add_u32 v{vB}, s{sT0}, v{vB}")
    E(f"v_and_b32 v{vt[0]}, 31, v{vL}")
    E(f"s_lshl_b32 s{sT0}, s{sH}, 4")
    E(f"v_add_u32 v{vt[1]}, s{sT0}, v{vt[0]}")
    E(f"v_subrev_u32 v{vt[2]}, 20, v{vt[1]}")
    E(f"v_min_u32 v{vt[1]}, v{vt[1]}, v{vt[2]}")
    E(f"v_cmp_gt_u32 vcc, 20, v{vt[0]}")
    E(f"v_mov_b32 v{vt[3]}, 0x4000000")
    E(f"v_cndmask_b32 v{vt[1]}, v{vt[0]}, v{vt[1]}, vcc")
    E(f"v_lshlrev_b32 v{vt[1]}, 4, v{vt[1]}")
    E(f"v_cmp_gt_u32 vcc, 24, v{vt[0]}")
    E(f"s_cmp_eq_u32 s{sFT}, 0")
    E(f"s_mov_b32 s9, 0x4000000")
    E(f"s_cselect_b32 s{sT0}, 384, s9")
    E(f"s_cselect_b32 s{sT1}, 768, s9")
    E(f"v_cndmask_b32 v{vt[1]}, v{vt[3]}, v{vt[1]}, vcc")
    E(f"v_mul_lo_u32 v{vS1}, v{vHH}, s{sT0}")
    E(f"v_add_u32 v{vS1}, v{vS1}, v{vt[1]}")
    E(f"v_add_u32 v{vS2}, s{sT1}, v{vS1}")
    E(f"s_mul_i32 s{sT0}, s{sH}, 1920")
    E(f"s_mul_i32 s{sT1}, s{sFT}, 1536")
    E(f"s_add_u32 s{sPS}, s{sPS}, s{sT0}")
    E(f"s_add_u32 s{sPS}, s{sPS}, s{sT1}")
    E(f"v_min_u32 v{vPi}, 239, v0")
    E(f"v_lshlrev_b32 v{vPi}, 4, v{vPi}")
    E(f"v_bfe_u32 v{vt[0]}, v{vL}, 3, 2")
    E(f"v_and_b32 v{vt[1]}, 3, v{vL}")
    E(f"v_lshl_add_u32 v{vt[0]}, v{vt[0]}, 2, v{vt[1]}")
    E(f"v_mul_u32_u24 v{vt[1]}, 1920, v{vHH}")
    E(f"v_lshl_add_u32 v{vt[2]}, v{vt[0]}, 4, v{vt[1]}")
    E(f"v_add_u32 v{vt[2]}, {KVT}, v{vt[2]}")
    E(f"v_bfe_u32 v{vt[1]}, v{vL}, 2, 1")
    E(f"v_cmp_eq_u32 vcc, v{vt[1]}, v{vHH}")
    E(f"v_mov_b32 v{vKa}, {ZKV}")
    E(f"v_cndmask_b32 v{vKa}, v{vKa}, v{vt[2]}, vcc")
    E(f"v_cndmask_b32 v{vt[0]}, 64, v{vt[0]}, vcc")
    E(f"v_and_b32 v{vt[1]}, 1, v{vt[0]}")
    E(f"v_lshlrev_b32 v{vt[1]}, 4, v{vt[1]}")
    E(f"v_mov_b32 v{vt[2]}, 0x3f80")
    E(f"v_lshlrev_b32 v{vt[1]}, v{vt[1]}, v{vt[2]}")
    E(f"v_lshrrev_b32 v{vt[0]}, 1, v{vt[0]}")
    for i in range(4):
        E(f"v_cmp_eq_u32 vcc, {i}, v{vt[0]}")
        E(f"v_cndmask_b32 v{ID+i}, 0, v{vt[1]}, vcc")
    E(f"v_and_b32 v{vt[1]}, 1, v{vG}")
    E(f"v_mul_u32_u24 v{vt[1]}, 20480, v{vt[1]}")
    E(f"v_lshl_add_u32 v{vt[1]}, v{vC}, 4, v{vt[1]}")
    E(f"v_mul_u32_u24 v{vO1}, 768, v{vHH}")
    E(f"v_add_u32 v{vO1}, v{vO1}, v{vt[1]}")
    E(f"v_lshl_add_u32 v{vO3}, v{vHH}, 26, v{vt[1]}")
    E(f"s_lshl_b32 s{sT0}, s{sR}, 2")
    E(f"s_add_u32 s{sT0}, s{sT0}, s{sW}")
    E(f"s_mul_i32 s{sT0}, s{sT0}, 40960")
    E(f"s_mul_i32 s{sT1}, s{sPQ}, 1280")
    E(f"s_add_u32 s{sT0}, s{sT0}, s{sT1}")
    E(f"s_add_u32 s{sOS}, s{sT0}, {G.O_BASE}")
    E(f"v_lshlrev_b32 v{vC4}, 2, v{vC}")
    E(f"s_lshl_b32 s{sFO}, s{sTBo}, 3")
    E(f"s_add_u32 s{sFO}, s{sFO}, s{sCT}")
    E(f"s_lshl_b32 s{sFO}, s{sFO}, 2")
    E(f"s_add_u32 s{sFO}, s{sFO}, s{sW}")
    E(f"s_lshl_b32 s{sFO}, s{sFO}, 7")
    E(f"s_add_u32 s{sFO}, s{sFO}, {G.FLAGO_BASE}")
    E(f"s_mul_i32 s{sOL}, s{sTBo}, 81920")
    E(f"s_mul_i32 s{sT0}, s{sW}, 5120")
    E(f"s_add_u32 s{sOL}, s{sOL}, s{sT0}")
    E(f"s_add_u32 s{sOL}, s{sOL}, {G.O_BASE}")
    E(f"s_lshl_b32 s{sWL}, s{sCT}, 2")
    E(f"s_add_u32 s{sWL}, s{sWL}, s{sW}")
    E(f"s_mul_i32 s{sWL}, s{sWL}, 25600")
    E(f"s_add_u32 s{sWL}, s{sWL}, {G.PWO_BASE}")
    E(f"v_mul_u32_u24 v{vRw}, 160, v{vC}")
    E(f"v_mul_u32_u24 v{vt[1]}, 40, v{vG}")
    E(f"s_mul_i32 s93, s{sW}, 2560")
    E(f"s_add_u32 s{sT0}, s93, 30720")
    E(f"v_add3_u32 v{vRw}, v{vRw}, v{vt[1]}, s{sT0}")
    for m in range(3):
        E(f"v_add_u32 v{vt[0]}, {64*m}, v{vL}")
        E(div_const(vt[1], vt[0], 10))
        E(f"v_mul_u32_u24 v{vt[1]}, 2400, v{vt[1]}")
        E(f"v_lshl_add_u32 v{vSo[m]}, v{vt[0]}, 4, v{vt[1]}")
    E(f"s_add_u32 s22, s{sW}, s{sCT}")
    E(f"s_and_b32 s22, s22, 3")
    E(f"s_lshl_b32 s{sOUT}, s{sTBo}, 2")
    E(f"s_add_u32 s{sOUT}, s{sOUT}, s22")
    E(f"s_mul_i32 s{sOUT}, s{sOUT}, {16*2560}")
    E(f"s_mul_i32 s{sT1}, s{sCT}, 160")
    E(f"s_add_u32 s{sOUT}, s{sOUT}, s{sT1}")
    E(f"s_lshl_b32 s{sF1}, s{sP}, 13")
    E(G.word_off(sF1, sR, 2, sT1))
    E(f"s_add_u32 s{sF1}, s{sF1}, {G.FLAGW_BASE}")
    E(f"s_lshl_b32 s{sFP}, s{sPQ}, 4")
    E(f"s_add_u32 s{sFP}, s{sFP}, s{sR}")
    E(f"s_lshl_b32 s{sFP}, s{sFP}, 9")
    E(f"s_add_u32 s{sFP}, s{sFP}, {G.FLAGW_BASE}")
    E(f"s_lshl_b32 s{sF2}, s{sR}, 1")
    E(f"s_add_u32 s{sF2}, s{sF2}, s{sFT}")
    E(f"s_lshl_b32 s{sF2}, s{sF2}, 12")
    E(G.word_off(sF2, sPQ, 2, sT1))
    E(f"s_add_u32 s{sF2}, s{sF2}, {G.FLAGO_BASE}")
    E(f"s_lshl_b32 s{sT1}, s{sW}, 7")
    E(f"s_add_u32 s{sFP}, s{sT1}, s{sFP}")
    for sa in (sFP, sFO): E(f"s_buffer_load_dword s23, s[{rWS}:{rWS+3}], s{sa} glc")
    vCo = TM + 15
    E(f"s_mul_i32 s{sT0}, s{sW}, 20")
    E(f"v_min_u32 v{vt[0]}, 19, v{vL}")
    E(f"v_add_u32 v{vt[0]}, s{sT0}, v{vt[0]}")
    E(f"v_lshrrev_b32 v{vt[1]}, 3, v{vt[0]}")
    E(f"v_and_b32 v{vt[0]}, 7, v{vt[0]}")
    E(f"v_lshlrev_b32 v{vt[0]}, 2, v{vt[0]}")
    E(f"v_lshl_add_u32 v{vCo}, v{vt[1]}, 7, v{vt[0]}")
    E(f"s_mov_b32 s{sFC}, {G.FLAGC_BASE}")
    GO = int(([a[5:] for a in sys.argv if a.startswith('--go=')] + ['7'])[0])
    OLDGO = any(a in sys.argv for a in ("--slab=4", "--slab=5", "--slab=6"))
    if OLDGO:
        E(f"s_lshl_b32 s39, s2, 7")
        E(f"s_add_u32 s39, s39, {G.FLAGG_BASE}")
        E(f"s_cmp_lg_u32 s{sW}, 0")
        E(f"s_cselect_b32 s39, {G.WS_SIZE}, s39")
    else:
        E(f"s_lshl_b32 s39, s2, 2")
        E(f"s_add_u32 s39, s39, s{sW}")
        E(f"s_lshl_b32 s39, s39, 7")
        E(f"s_add_u32 s39, s39, {G.FLAG_BASE + 32}")
        E(f"s_cmp_ge_u32 s2, {G.NB}")
        E(f"s_cselect_b32 s39, {G.WS_SIZE}, s39")
        E(f"v_and_b32 v{vFl}, 4, v{vC4}")
    sWk = [16, 17, 18, 19, 20]; sKo = [40, 41, 42, 43, 44]
    E(f"s_and_b32 s{sT0}, s{sTBo}, 3")
    for k in range(5):
        E(f"s_lshl_b32 s{sKo[k]}, s{sT0}, 10")
        E(f"s_mul_i32 s{sWk[k]}, s{sT0}, 5120")
        E(f"s_add_u32 s{sWk[k]}, s{sWk[k]}, s{sWL}")
        if k < 4:
            E(f"s_add_u32 s{sT0}, s{sT0}, 1")
            E(f"s_cmp_eq_u32 s{sT0}, 5")
            E(f"s_cselect_b32 s{sT0}, 0, s{sT0}")

    def rdW(sig, ks):
        b = WF + 16 * (ks % 2)
        return [f"ds_read_b64_tr_b16 {v(b+4*T+2*a,2)}, v{vWt[T]} offset:{wslot(sig) + 4096*ks + 240*a}" for T in range(4) for a in range(2)]
    def rdX(sig):
        return [f"ds_read_b128 {v(XF+16*(sig%2)+4*j,4)}, v{vXrs[j]} offset:{4096*(sig%2)}" for j in range(4)]
    def mm(sig, ks):
        L = []
        for T in range(4):
            d = v(ACC + 16 * T, 16)
            if "--nomfma" in sys.argv:
                L.append(f"v_mov_b32 v{ACC+T}, v{WF+16*(ks%2)+4*T+3}"); continue
            if "--m16" in sys.argv:
                L.append(("group", [f"{M16} {v(ACC+16*T+4*(2*(ks%2)+e),4)}, {v(WF+16*(ks%2)+4*T,4)}, {v(XF+16*(sig%2)+4*((ks+e)%4),4)}, {v(ACC+16*T+4*(2*(ks%2)+e),4)}" for e in range(2)])); continue
            L.append(f"{M32} {d}, {v(WF+16*(ks%2)+4*T,4)}, {v(XF+16*(sig%2)+4*ks,4)}, {d if (sig or ks) else 0}")
        return L
    def weave(M, rd, vm):
        out = []
        n = (len(rd) + 2) // 3
        for i, x in enumerate(M):
            out.append(x)
            if i < 3: out += rd[n * i:n * (i + 1)]
            if i == 1 and len(vm) > 0: out.append(vm[0])
            if i == 3 and len(vm) > 1: out += vm[1:]
        return out
    wphi = [f"ds_write_b128 v{vPhi}, {v(TM,4)} offset:{TAB}", f"ds_write_b32 v{vPhi+1}, v{TM+4} offset:{TAB+4096}"]
    rphi = []
    for i in range(2):
        for c in range(3):
            for t in range(2):
                b = PF + 24 * i + 8 * c + 4 * t
                rphi.append(f"ds_read_b64_tr_b16 {v(b,2)}, v{vPa[i]} offset:{TAB + 320*c + 32*t}")
                if c < 2: rphi.append(f"ds_read_b64_tr_b16 {v(b+2,2)}, v{vPa[i]} offset:{TAB + 320*c + 160 + 32*t}")
    nld = f"buffer_load_dword v{vNon}, off, s[{rDBG}:{rDBG+3}], 0 offset:4 sc1"
    cld = f"buffer_load_dword v{vFc}, v{vCo}, s[{rWS}:{rWS+3}], s{sFC} offen sc1"
    opois = [f"buffer_store_dwordx4 {v(PN,4)}, v{vO1}, s[{rWS}:{rWS+3}], s{sOS} offen sc1",
             f"buffer_store_dwordx4 {v(PN,4)}, v{vO1}, s[{rWS}:{rWS+3}], s{sOS} offen offset:256 sc1",
             f"buffer_store_dwordx4 {v(PN,4)}, v{vO3}, s[{rWS}:{rWS+3}], s{sOS} offen offset:512 sc1"]
    allpois = [f"buffer_store_dwordx4 {v(PN,4)}, v{vL16}, s[{rWS}:{rWS+3}], s95 offen sc1"] + opois[:2] + [("tag", opois[2], "pois")]
    if "--earlypois" in sys.argv: E(allpois)
    E.wait_vm("S0")
    E("s_barrier")
    E(rdX(0)); E(rdW(0, 0))
    w2 = dmaW(2)
    E(w2[:2])
    pendW = w2[2:]
    for sig in range(10):
        xn = dmaX(sig + 2) if sig + 2 < 10 else []
        extra = [[], [], []]
        if sig == 8:
            extra = [wphi, [], []]
            pendW = [("tag", cld, "cfl")]
            if "--earlypois" not in sys.argv: xn = allpois
        if sig == 9:
            extra = [rphi[:7], rphi[7:14], rphi[14:]]
        if sig == GO: pendW = pendW + [f"buffer_store_dword v{vNon}, off, s[{rWS}:{rWS+3}], s39 sc1" if OLDGO else f"buffer_store_dword v{vNon}, v{vFl}, s[{rWS}:{rWS+3}], s39 offen sc1"]
        E(weave(mm(sig, 0), rdW(sig, 1) + extra[0], pendW))
        E(weave(mm(sig, 1), rdW(sig, 2) + extra[1], xn[:2]))
        E(weave(mm(sig, 2), rdW(sig, 3) + extra[2], xn[2:]))
        if sig < 9:
            E.wait_vm(f"S{sig+1}")
            if sig == GO - 1: G.snonce(E, vNon, issued=True)
            E.wait_lg()
            E("s_barrier")
            if sig == GO - 2: G.snonce_issue(E)
            wn = dmaW(sig + 3) if sig + 3 < 10 else []
            E(weave(mm(sig, 3), rdX(sig + 1)[:1] + rdW(sig + 1, 0) + rdX(sig + 1)[1:], wn[:2]))
            pendW = wn[2:]
        else:
            E(mm(sig, 3))
    ST(E, "gemm")
    if "--gemmonly" in sys.argv:
        ST.dump(E, sW, ACC)
        E("s_endpgm")
        return ST

    def acc(sec, j):
        for T in range(4):
            for g_, e in enumerate(TA[T]):
                if e == (sec, j): return ACC + 16 * T + 4 * g_
    QB = XF
    PD = WF
    EE = TM
    def pack(sec, dst):
        return [f"v_cvt_pk_bf16_f32 v{dst+2*j+e}, v{acc(sec,j)+2*e}, v{acc(sec,j)+2*e+1}" for j in range(5) for e in range(2)]
    def premm(qb, i):
        L = []
        for c in range(3):
            for t in range(2):
                d = v(PD + 16 * t, 16)
                L.append(f"{M32} {d}, {v(PF+24*i+8*c+4*t,4)}, {v(qb+4*c,4)}, {d if c else 0}")
        return L
    def softmax(out_plus, out_minus, after_plus):
        PP = PD
        mx, mn, m = MP, vMn, MP
        L = [f"v_max3_f32 v{mx}, v{PP}, v{PP+1}, v{PP+2}", f"v_min3_f32 v{mn}, v{PP}, v{PP+1}, v{PP+2}"]
        for i in range(3, 19, 2):
            L += [f"v_max3_f32 v{mx}, v{mx}, v{PP+i}, v{PP+i+1}", f"v_min3_f32 v{mn}, v{mn}, v{PP+i}, v{PP+i+1}"]
        L += [f"v_max_f32 v{mx}, v{mx}, v{PP+19}", f"v_min_f32 v{mn}, v{mn}, v{PP+19}"]
        for sgn, dst, src, outp in ((1, EE, mx, out_plus), (-1, PP, mn, out_minus)):
            L.append(f"v_mul_f32 v{m}, s94, v{src}")
            for i in range(20):
                L.append(f"v_fma_f32 v{dst+i}, v{PP+i}, s94, -v{m}" if sgn > 0 else f"v_fma_f32 v{dst+i}, -v{PP+i}, s94, v{m}")
            for i in range(20):
                L.append(f"v_exp_f32 v{dst+i}, v{dst+i}")
                if i == 2: L.append(f"v_add_f32 v{m}, v{dst}, v{dst+1}")
                if i > 2: L.append(f"v_add_f32 v{m}, v{m}, v{dst+i-1}")
            L += [f"v_add_f32 v{m}, v{m}, v{dst+19}", f"v_rcp_f32 v{m}, v{m}"]
            for i in range(10):
                L.append(f"v_mul_f32 v{dst+2*i}, v{m}, v{dst+2*i}")
                L.append(f"v_mul_f32 v{dst+2*i+1}, v{m}, v{dst+2*i+1}")
                L.append(f"v_cvt_pk_bf16_f32 v{outp+i}, v{dst+2*i}, v{dst+2*i+1}")
            if sgn > 0: L += after_plus
        return L
    E(f"v_mov_b32 v{QB+10}, 0"); E(f"v_mov_b32 v{QB+11}, 0")
    E(pack(1, QB))
    VP = XF + 12
    QB2 = TM + 20
    side = pack(2, VP) + [f"v_mov_b32 v{VP+10}, 0x3f80", f"v_mov_b32 v{VP+11}, 0"] + \
           [f"ds_write_b128 v{vVw}, {v(VP+4*i,4)} offset:{5120+16*i}" for i in range(3)] + \
           pack(0, QB2) + [f"v_mov_b32 v{QB2+10}, 0", f"v_mov_b32 v{QB2+11}, 0"]
    E(merge(premm(QB, 0), side[:15])); E(side[15:])
    spin(E, ["s_sleep 2", cld], [f"v_cmp_ne_u32 vcc, s{sN}, v{vFc}"], "cfl")
    WOr = [ACC + 4 * i for i in range(16)] + [vXo[0], vWo[0], vWt[0]] + [XF + 20 + 4 * i for i in range(3)] + [TM + 4 * i for i in range(3)]
    assert all(r % 4 == 0 for r in WOr)
    vL4k = vVw
    NW1, NW2 = [int(x) for x in ([a[5:] for a in sys.argv if a.startswith('--wo=')] + ['14,22'])[0].split(',')]
    E(f"v_add_u32 v{vL4k}, 4096, v{vL16}")
    def wo_ld(i):
        k, T = divmod(i, 5)
        return f"buffer_load_dwordx4 {v(WOr[i],4)}, v{vL16 if T < 4 else vL4k}, s[{rWS}:{rWS+3}], s{sWk[k]} offen offset:{1024*(T%4)} sc1"
    PHK = XF + 12
    smk = softmax(PHK, PHK + 10, [f"ds_write_b128 v{vPk}, {v(PHK,4)}", f"ds_write_b128 v{vPk}, {v(PHK+4,4)} offset:16"])
    E(merge(smk[:8*NW1], [wo_ld(i) for i in range(NW1)])); E(smk[8*NW1:])
    for i in range(2, 5): E(f"ds_write_b128 v{vPk}, {v(PHK+4*i,4)} offset:{16*i}")
    ST(E, "phik")
    vPu = vFl
    H1, H2 = [int(x) for x in ([a[7:] for a in sys.argv if a.startswith('--hint=')] + ['0,1'])[0].split(',')]
    def push(cond, mask, saddr):
        skip = newlabel("nopush")
        E(cond)
        E(f"s_cbranch_scc1 {skip}")
        E(f"s_mov_b64 exec, {mask}")
        E.raw(f"    buffer_store_dword v{vNon}, v{vPu}, s[{rWS}:{rWS+3}], s{saddr} offen sc1")
        E("s_mov_b64 exec, -1")
        E.label(skip)
    E(f"v_lshlrev_b32 v{vPu}, 9, v{vL}")
    E(premm(QB2, 1))
    E.wait_vm("pois")
    E.wait_lg()
    E("s_barrier")
    ST(E, "xbar")
    KQ = [PF + 4 * i for i in range(12)] + [TM + 20 + 4 * i for i in range(4)]
    KD = XF
    def rdk(i):
        j, k2 = divmod(i, 2)
        L = []
        for a in range(2):
            L.append(f"ds_read_b64_tr_b16 {v(KQ[2*i]+2*a,2)}, v{vA} offset:{8192*j + 80*(16*k2+4*a)}")
        for a in range(2):
            L.append(f"ds_read_b64_tr_b16 {v(KQ[2*i+1]+2*a,2)}, v{vB} offset:{8192*j + 48*(16*k2+4*a)}")
        return L
    E(rdk(0) + rdk(1) + rdk(2))
    for i in range(8):
        if i == H1: push(f"s_cmp_lg_u32 s{sW}, 3", 0xffff, sF1)
        if i + 3 < 8: E(rdk(i + 3))
        d = v(KD, 16)
        E(f"{M32} {d}, {v(KQ[2*i],4)}, {v(KQ[2*i+1],4)}, {d if i else 0}")
    SFL = 60
    PH = XF
    smq = softmax(PH, PH + 10, [])
    E(smq[:10])
    KP = XF + 16
    for i in range(8):
        E(f"v_cvt_pk_bf16_f32 v{KP+i}, v{KD+2*i}, v{KD+2*i+1}")
        if i == 3: E(f"buffer_store_dwordx4 {v(KP,4)}, v{vS1}, s[{rWS}:{rWS+3}], s{sPS} offen sc1")
    E(f"buffer_store_dwordx4 {v(KP+4,4)}, v{vS2}, s[{rWS}:{rWS+3}], s{sPS} offen sc1")
    if H1 == 9: push(f"s_cmp_lg_u32 s{sW}, 0", 0xffff, sF1)
    ST(E, "T0")
    PLr = KQ
    pld = []
    E(f"s_and_b32 s21, s{sR}, 3")
    E(f"s_lshl_b32 s21, s21, 14")
    E(f"s_add_u32 s21, s21, s{sPL}")
    for r in range(16):
        pld.append(f"s_xor_b32 s9, s21, {G.P_PITCH*r}")
        pld.append(f"buffer_load_dwordx4 {v(PLr[r],4)}, v{vPi}, s[{rWS}:{rWS+3}], s9 offen sc1")
    pg = [("group", [pld[2*r], ("tag", pld[2*r+1], "part")]) for r in range(16)]
    E(merge(smq[10:-40], [wo_ld(i) for i in range(NW1, NW2)]))
    E(G.sflag_loads(sFP, 1, 4, SFL))
    E(smq[-40:])
    ok1 = newlabel("f1ok")
    E.wait_lg()
    E(G.sflag_check(4, SFL))
    E(f"s_cbranch_scc0 {ok1}")
    G.sflag_wait(E, sFP, 1, 4, SFL)
    E.label(ok1)
    E("s_barrier")
    ST(E, "f1ok")
    E(pg)
    ST(E, "phiq")
    RD_ = WF
    vCk = MP
    def reduce_items():
        L = []
        for r in range(16):
            d = v(RD_, 16); p = PLr[r]
            L.append(f"{M32} {d}, {v(ID,4)}, {v(p,4)}, {d if r else 0}")
            L.append(f"v_max3_u32 v{vCk}, v{p}, v{p+1}, {'v%d' % vCk if r else 0}")
            L.append(f"v_max3_u32 v{vCk}, v{p+2}, v{p+3}, v{vCk}")
        L.append(f"v_cmp_eq_u32 vcc, -1, v{vCk}")
        return L
    def retry(loads, check):
        ok = newlabel("rok"); sp = newlabel("rsp")
        E(f"s_cbranch_vccz {ok}")
        E.raw("    s_mov_b32 s13, 0")
        E.label(sp)
        for t in ["s_sleep 2"] + loads + ["s_add_u32 s13, s13, 1", f"s_cmp_gt_u32 s13, {G.SPIN_MAX}", f"s_cbranch_scc1 {ok}", "s_waitcnt vmcnt(0)"] + check + [f"s_cbranch_vccnz {sp}"]:
            E.raw("    " + t)
        E.label(ok)
    E(reduce_items())
    retry(pld, reduce_items())
    ST(E, "part")
    SM = WF + 16
    for e in range(4): E(f"v_cvt_pk_bf16_f32 v{SM+e}, v{RD_+2*e}, v{RD_+2*e+1}")
    E(f"ds_write_b128 v{vPi}, {v(SM,4)} offset:{KVT}")
    E.wait_lg()
    E("s_barrier")
    OD = WF
    AF = PF
    fo = [(c, t) for c in range(5) for t in (1, 0)]
    for i, (c, t) in enumerate(fo): E(f"ds_read_b128 {v(AF+4*i,4)}, v{vKa} offset:{384*c + 256*t}")
    sTile = [72, 73, 74, 75]
    vOk = [vPk, vS1, vS2, vPi, vMn]
    pre = []
    for i in range(4):
        pre += [("group", [f"s_add_u32 s9, s22, {i+1}", f"s_and_b32 s9, s9, 3", f"s_mul_i32 s{sTile[i]}, s9, 20480", f"s_add_u32 s{sTile[i]}, s{sTile[i]}, s{sOL}",
                f"s_cmp_ge_u32 s9, 2", f"s_cselect_b32 s8, 18432, 0", f"s_mul_i32 s9, s9, 15360", f"s_add_u32 s9, s9, s8",
                f"v_add_u32 v{vXrs[i]}, s9, v{vL16}"])]
    pre += [("group", [f"v_add_u32 v{vOk[k]}, s{sKo[k]}, v{vL16}" for k in range(5)])]
    om = []
    for i, (c, t) in enumerate(fo):
        d = v(OD + 16 * t, 16)
        om.append(f"{M32} {d}, {v(AF+4*i,4)}, {v(PH+4*c,4)}, {d if c else 0}")
    if H2 == 0: push(f"s_cmp_lg_u32 s{sH}, 0", 0xff, sF2)
    E(merge(om, pre))
    if H2 == 1: push(f"s_cmp_lg_u32 s{sH}, 0", 0xff, sF2)
    E(f"v_add_f32 v{MP}, {f32(1e-6)}, v{OD+20}")
    E(f"v_rcp_f32 v{MP}, v{MP}")
    OP = TM + 20
    for i in (8, 9, 0, 1, 2, 3, 4, 5, 6, 7):
        E(f"v_mul_f32 v{OD+2*i}, v{MP}, v{OD+2*i}"); E(f"v_mul_f32 v{OD+2*i+1}, v{MP}, v{OD+2*i+1}")
        E(f"v_cvt_pk_bf16_f32 v{OP+i}, v{OD+2*i}, v{OD+2*i+1}")
        if i == 0:
            E(f"v_permlane32_swap_b32 v{OP+8}, v{OP+10}"); E(f"v_permlane32_swap_b32 v{OP+9}, v{OP+11}")
            E(f"buffer_store_dwordx4 {v(OP+8,4)}, v{vO3}, s[{rWS}:{rWS+3}], s{sOS} offen offset:512 sc1")
        if i == 3: E(f"buffer_store_dwordx4 {v(OP,4)}, v{vO1}, s[{rWS}:{rWS+3}], s{sOS} offen sc1")
    E(f"buffer_store_dwordx4 {v(OP+4,4)}, v{vO1}, s[{rWS}:{rWS+3}], s{sOS} offen offset:256 sc1")
    if H2 == 9: push(f"s_cmp_lg_u32 s{sH}, 0", 0xff, sF2)
    ST(E, "opub")
    for i in range(NW2, 25): E(wo_ld(i))
    OFr = [PF + 4 * i for i in range(12)] + [WF + 4 * i for i in range(8)]
    OA = [[XF + 4 * T for T in range(5)], [TM + 12 + 4 * T for T in range(5)]]
    G.sflag_wait(E, sFO, 1, 4, SFL)
    ST(E, "f2ok")
    def o_ld(i):
        return [f"buffer_load_dwordx4 {v(OFr[5*i+k],4)}, v{vOk[k]}, s[{rWS}:{rWS+3}], s{sTile[i]} offen sc1" for k in range(5)]
    for i in range(4):
        for t in o_ld(i): E(t, tag=f"of{i}")
    pend = []
    def chk_of(i):
        rg = [OFr[5 * i + k] + e for k in range(5) for e in range(4)]
        return [f"v_max_u32 v{MP}, v{rg[0]}, v{rg[1]}"] + [f"v_max3_u32 v{MP}, v{MP}, v{rg[e]}, v{rg[e+1]}" for e in range(2, 20, 2)] + [f"v_cmp_eq_u32 vcc, -1, v{MP}"]
    E(chk_of(0))
    for i in range(4):
        retry(sum([o_ld(k) for k in range(i, 4)], []), chk_of(i))
        if i == 0: ST(E, "ofr")
        M = []
        for k in range(5):
            for T in range(5):
                d = v(OA[i % 2][T], 4)
                M.append(f"{M16} {d}, {v(WOr[5*k+T],4)}, {v(OFr[5*i+k],4)}, {d if k else 0}")
        E(M[:4]); E(merge(M[4:14], pend)); E(merge(M[14:], chk_of(i + 1) if i < 3 else []))
        pend = [f"ds_write_b128 v{vXrs[i]}, {v(OA[i%2][T],4)} offset:{5120*i + 1024*T}" for T in range(5)] if i < 3 else []
    ST(E, "ogemm")
    E.wait_lg()
    E("s_barrier")
    RR = ACC
    for j in range(3):
        for T in range(5): E(f"ds_read_b128 {v(RR+20*j+4*T,4)}, v{vXrs[3]} offset:{5120*j + 1024*T}")
    RP = PF
    for j in range(3):
        for T in range(5):
            for e in (0, 2): E(f"v_pk_add_f32 {v(OA[1][T]+e,2)}, {v(OA[1][T]+e,2)}, {v(RR+20*j+4*T+e,2)}")
            if j == 2:
                E(f"v_cvt_pk_bf16_f32 v{RP+2*T}, v{OA[1][T]}, v{OA[1][T]+1}")
                E(f"v_cvt_pk_bf16_f32 v{RP+2*T+1}, v{OA[1][T]+2}, v{OA[1][T]+3}")
                E(f"ds_write_b64 v{vRw}, {v(RP+2*T,2)} offset:{8*T}")
    E(f"v_add_u32 v{vPk}, s93, v{vL16}")
    for m in range(3): E(f"ds_read_b128 {v(RP+12+4*m,4)}, v{vPk} offset:{30720 + 1024*m}")
    for m in range(3):
        if m == 2: E("s_mov_b32 exec_hi, 0")
        E(f"buffer_store_dwordx4 {v(RP+12+4*m,4)}, v{vSo[m]}, s[{rOUT}:{rOUT+3}], s{sOUT} offen {G.OUTA}")
    E("s_mov_b64 exec, -1")
    if G.PROFILE:
        E.wait_vm()
        ST(E, "end")
    PAD = [a[6:] for a in sys.argv if a.startswith("--pad=")]
    if PAD:
        E.label("L_pad")
        for t in ["s_memrealtime s[14:15]", "s_waitcnt lgkmcnt(0)", f"s_sub_u32 s14, s14, s{sN}", f"s_cmp_lt_u32 s14, {PAD[0]}", "s_cbranch_scc1 L_pad"]: E.raw("    " + t)
    ST.dump(E, sW, RP + 40)
    E("s_endpgm")
    return ST
```

```python
import math, sys
from asmlib import *
M16 = "v_mfma_f32_16x16x32_bf16"

def gen_B(E, G):
    f32, f32val, Alloc, srd, spin, newlabel, cmul, zipl = G.f32, G.f32val, G.Alloc, G.srd, G.spin, G.newlabel, G.cmul, G.zipl
    rWS, rOUT, rDBG, rIN = G.rWS, G.rOUT, G.rDBG, G.rIN
    sN = G.sN
    G.fresh(E)
    ST = G.Stamps(84)
    sW, sCG, sD, sTB, sCB, sSC, sKT, sT0, sT1, sT2 = 76, 77, 78, 79, 80, 81, 82, 4, 5, 6
    sUS, sUT, sFU, sFUp, sFY, sFYp, sUI, sYS, sYL, sYO = 64, 65, 66, 67, 68, 69, 70, 71, 72, 73
    U_IMG = 2048; KT_BASE = 18432; KT_SZ = 3072; SC_BASE = 30720; SC_SZ = 11 * 1040
    Y_OFF = 6144; Y_PITCH = SC_SZ + 144
    SIG_SZ = 136 * 17
    SIG2 = 2 * SIG_SZ; SIG2_SZ = 136 * 25
    A = Alloc(1, 256)
    vL = A(); vG = A(); vC = A()
    vt = [A() for _ in range(8)]
    big = A(160, 4)
    KG = A(32, 4)
    BN = A(16, 4)
    EPH = A(24, 4); X = Alloc(EPH, EPH + 26); A(2)
    P = [big + 124 + i for i in range(6)]
    assert P[0] == 136 and sCG == 77
    E.vmq += [(None, {("v", r)}) for r in P]
    E.lgq = [("__smem", {("s", 100), ("s", 101), ("s", 16), ("s", 17)})]
    E(f"v_and_b32 v{vL}, 63, v0")
    E(f"v_lshrrev_b32 v{vt[0]}, 6, v0")
    E(f"v_lshrrev_b32 v{vG}, 4, v{vL}")
    E(f"v_readfirstlane_b32 s{sW}, v{vt[0]}")
    E(f"v_and_b32 v{vC}, 15, v{vL}")
    E(f"s_mul_hi_u32 s{sTB}, s{sCG}, 0x33333334")
    E(f"s_mul_i32 s{sT0}, s{sTB}, 5")
    E(f"s_sub_u32 s{sCB}, s{sCG}, s{sT0}")
    vPo = vt[2]; vSo = X(); vL16 = A()
    SLAB = int(([a[7:] for a in sys.argv if a.startswith('--slab=')] + ['9'])[0])
    NWAIT = int(([a[8:] for a in sys.argv if a.startswith('--nwait=')] + ['160'])[0])
    PUBAT = int(([a[8:] for a in sys.argv if a.startswith('--pubat=')] + ['3'])[0])
    def slab_in():
        if "--xnomem" in sys.argv: return
        E("s_setprio 3")
        for i in range(4):
            E(f"s_add_u32 m0, s{sUS}, {1024*i}")
            E(f"s_add_u32 s{sT1}, s74, {4*1280*i}")
            E(f"buffer_load_dwordx4 v{vSo}, s[{rIN}:{rIN+3}], s{sT1} offen lds", tag="slab")
        E(f"s_setprio {G.BPRIO}")
    E(f"v_mul_u32_u24 v{vSo}, 1280, v{vG}")
    E(f"v_lshl_add_u32 v{vSo}, v{vC}, 4, v{vSo}")
    E(f"s_lshl_b32 s{sT0}, s{sTB}, 2")
    E(f"s_add_u32 s{sT0}, s{sT0}, s{sW}")
    E(f"s_mul_i32 s{sYO}, s{sT0}, {16*2560}")
    E(f"s_mul_i32 s{sT0}, s{sT0}, {16*1280}")
    E(f"s_lshl_b32 s{sT1}, s{sCB}, 8")
    E(f"s_add_u32 s74, s{sT0}, s{sT1}")
    E(f"s_add_u32 s{sYO}, s{sYO}, s{sT1}")
    E(f"s_add_u32 s{sYO}, s{sYO}, 1280")
    E(f"s_lshl_b32 s{sUS}, s{sW}, 12")
    E(f"s_add_u32 s{sUS}, s{sUS}, {U_IMG}")
    ST(E, "start")
    if "--noB0" not in sys.argv:
        srd(E, rIN, G.pU, 2621440)
        if SLAB in (0, 3, 5): slab_in()
    srd(E, rDBG, G.pDBG, 256)
    skip = newlabel("nonce")
    E(f"s_or_b32 s{sT0}, s{sCG}, s{sW}")
    E(f"s_cbranch_scc1 {skip}")
    E.raw("    s_or_b32 s10, s10, 1")
    E.raw(f"    v_mov_b32 v{vt[0]}, s10")
    E.raw("    s_mov_b64 exec, 1")
    E.raw(f"    buffer_store_dword v{vt[0]}, off, s[{rDBG}:{rDBG+3}], 0 offset:4 sc1")
    E.raw("    s_mov_b64 exec, -1")
    E.label(skip)
    srd(E, rWS, G.pWS, G.WS_SIZE)
    if "--noB0" in sys.argv:
        ST.dump(E, sW, big)
        E("s_endpgm")
        return ST
    srd(E, rOUT, G.pOUT, 5242880)
    E(f"s_setprio {G.BPRIO}")
    E(f"s_mul_i32 s{sSC}, s{sW}, {SC_SZ}")
    E(f"s_add_u32 s{sSC}, s{sSC}, {SC_BASE}")
    E(f"s_mul_i32 s{sKT}, s{sW}, {KT_SZ}")
    E(f"s_add_u32 s{sKT}, s{sKT}, {KT_BASE}")
    E(f"v_lshlrev_b32 v{vL16}, 4, v{vL}")
    vZ = big + 132
    E(f"v_mov_b32 v{vZ}, 0"); E(f"v_mov_b32 v{vZ+1}, 0")
    E(f"v_lshlrev_b32 v{vt[0]}, 3, v0")
    E(f"ds_write_b64 v{vt[0]}, {v(vZ,2)}")
    E(f"v_min_u32 v{vt[0]}, 8, v{vC}")
    E(f"v_lshl_add_u32 v{vt[0]}, v{vt[0]}, 2, s{sKT}")
    TA_POS = 672; TB_POS = TA_POS + 272
    for o in (0, 2 * TA_POS, 2 * TB_POS): E(f"ds_write_b32 v{vt[0]}, v{vZ} offset:{o}")
    CB = 1232
    E(f"v_lshl_add_u32 v{vt[1]}, v{vL}, 3, s{sKT}")
    E(f"ds_write_b64 v{vt[1]}, {v(vZ,2)} offset:{2*CB}")
    E(f"ds_write_b32 v{vt[0]}, v{vZ} offset:{2*CB + 512}")
    E(f"ds_write_b32 v{vt[0]}, v{vZ} offset:{2*398 - 32}")
    vLm = vt[7]
    E(f"v_lshlrev_b32 v{vt[0]}, 3, v{vG}")
    E(f"v_sub_u32 v{vLm}, v{vC}, v{vt[0]}")
    E(f"v_add_u32 v{vLm}, 33, v{vLm}")
    vLf = vt[6]; vK1 = vt[5]
    E(f"v_cvt_f32_u32 v{vLf}, v{vLm}")
    E(f"s_mov_b32 s7, 0x0202")
    E(f"s_mov_b32 s8, 0x10001")
    E(f"v_mov_b32 v{vK1}, 0x01000100")
    sel = {}; adr = {}
    for name, srep, js in (("d", 5, [3]), ("1", 9, [3, 2])):
        base = 32 * srep - 24
        vb = vt[2]
        for j in js:
            r = X(); sel[(name, j)] = r
            E(f"v_add_f32 v{vt[0]}, {f32(base + 7 - 2*j)}, v{vLf}")
            E(f"v_add_f32 v{vt[1]}, {f32(base + 6 - 2*j)}, v{vLf}")
            E(f"v_cvt_pk_bf16_f32 v{r}, v{vt[0]}, v{vt[1]}")
            if j == 3:
                E(f"v_lshrrev_b32 v{vt[3]}, 17, v{r}")
                E(f"v_lshlrev_b32 v{vt[3]}, 1, v{vt[3]}")
                E(f"v_mul_u32_u24 v{vb}, s8, v{vt[3]}")
                a = X(); adr[name] = a
                if name == "d":
                    E(f"v_and_b32 v{a}, -2, v{vLm}")
                    E(f"v_lshl_add_u32 v{a}, v{a}, 1, s{sKT}")
                    E(f"v_subrev_u32 v{a}, 16, v{a}")
                else:
                    E(f"v_lshl_add_u32 v{a}, v{vt[3]}, 1, s{sKT}")
                    E(f"v_subrev_u32 v{a}, {2*(0x4300-272)}, v{a}")
            E(f"v_sub_u32 v{r}, v{r}, v{vb}")
            E(f"v_mad_u32_u24 v{r}, v{r}, s7, v{vK1}")
    E(f"v_subrev_u32 v{vt[0]}, 9, v{vLm}")
    E(f"v_min_u32 v{vt[0]}, 31, v{vt[0]}")
    E(f"s_movk_i32 s7, 0x3f80")
    for bI, mask in enumerate((0x1ff << 15, 0x7f << 16, 0x1f << 17, 0x7 << 18)):
        E(f"s_mov_b32 s8, {mask}")
        E(f"v_lshrrev_b32 v{vt[1]}, v{vt[0]}, s8")
        for j in range(4):
            E(f"v_bfe_u32 v{vt[2]}, v{vt[1]}, {7-2*j}, 1")
            E(f"v_bfe_u32 v{vt[3]}, v{vt[1]}, {6-2*j}, 1")
            E(f"v_lshl_or_b32 v{vt[2]}, v{vt[3]}, 16, v{vt[2]}")
            E(f"v_mul_u32_u24 v{BN+4*bI+j}, s7, v{vt[2]}")
    aT = X(); aS = A(); aW = A()
    E(f"v_and_b32 v{vt[0]}, 1, v{vG}")
    E(f"v_lshrrev_b32 v{vt[1]}, 1, v{vG}")
    E(f"v_lshlrev_b32 v{vt[2]}, 3, v{vt[0]}")
    E(f"v_sub_u32 v{aT}, v{vC}, v{vt[2]}")
    E(f"v_add_u32 v{aT}, {TA_POS + 11}, v{aT}")
    E(f"v_and_b32 v{aT}, -2, v{aT}")
    E(f"v_mul_u32_u24 v{vt[2]}, 272, v{vt[1]}")
    E(f"v_add_u32 v{aT}, v{aT}, v{vt[2]}")
    E(f"v_lshl_add_u32 v{aT}, v{aT}, 1, s{sKT}")
    E(f"v_lshlrev_b32 v{vt[2]}, 1, v{vt[1]}")
    E(f"v_sub_u32 v{vt[2]}, v{vC}, v{vt[2]}")
    E(f"v_add_u32 v{vt[2]}, 13, v{vt[2]}")
    E(f"v_lshrrev_b32 v{vt[3]}, 4, v{vt[2]}")
    E(f"v_add_lshl_u32 v{aS}, v{vt[2]}, v{vt[3]}, 3")
    E(f"v_mul_u32_u24 v{vt[2]}, 272, v{vt[0]}")
    E(f"v_mul_u32_u24 v{vt[3]}, {SIG_SZ}, v{vt[1]}")
    E(f"v_add3_u32 v{aS}, v{aS}, v{vt[2]}, v{vt[3]}")
    E(f"v_add_u32 v{aS}, s{sSC}, v{aS}")
    aT2 = X(); aS2 = A()
    E(f"v_add_u32 v{aT2}, {CB + 3}, v{vC}")
    E(f"v_and_b32 v{aT2}, -2, v{aT2}")
    E(f"v_mul_u32_u24 v{vt[2]}, 68, v{vG}")
    E(f"v_add_u32 v{aT2}, v{aT2}, v{vt[2]}")
    E(f"v_lshl_add_u32 v{aT2}, v{aT2}, 1, s{sKT}")
    E(f"v_sub_u32 v{vt[2]}, v{vC}, v{vG}")
    E(f"v_add_u32 v{vt[2]}, 13, v{vt[2]}")
    E(f"v_lshrrev_b32 v{vt[3]}, 4, v{vt[2]}")
    E(f"v_add_lshl_u32 v{aS2}, v{vt[2]}, v{vt[3]}, 3")
    E(f"v_mul_u32_u24 v{vt[2]}, {SIG2_SZ}, v{vt[0]}")
    E(f"v_add3_u32 v{aS2}, v{aS2}, v{vt[2]}, s{sSC}")
    E(f"v_lshl_add_u32 v{vt[2]}, v{vC}, 2, v{vG}")
    E(f"v_lshrrev_b32 v{vt[3]}, 2, v{vC}")
    E(f"v_add_lshl_u32 v{aW}, v{vt[2]}, v{vt[3]}, 3")
    E(f"v_add_u32 v{aW}, s{sSC}, v{aW}")
    vMa = X(); vMb = X(); vMw = X()
    E(f"v_lshlrev_b32 v{vt[0]}, 1, v{vL}")
    E(f"v_add_u32 v{vt[1]}, 256, v{vt[0]}")
    E(f"v_add_u32 v{vt[2]}, {496-32}, v{vt[0]}")
    E(f"v_cmp_lt_u32 vcc, 15, v{vL}")
    E(f"v_cndmask_b32 v{vt[1]}, v{vt[1]}, v{vt[2]}, vcc")
    E(f"v_add_u32 v{vt[2]}, {1008-80}, v{vt[0]}")
    E(f"v_cmp_lt_u32 vcc, 39, v{vL}")
    E(f"v_cndmask_b32 v{vt[1]}, v{vt[1]}, v{vt[2]}, vcc")
    E(f"s_sub_u32 s{sT0}, s{sKT}, {2*(0x4300-272)}")
    for h, dst in enumerate((vMa, vMb)):
        if h: E(f"v_add_u32 v{vt[1]}, 1, v{vt[1]}")
        E(f"v_cvt_f32_u32 v{vt[2]}, v{vt[1]}")
        E(f"v_subrev_u32 v{vt[3]}, 1027, v{vt[1]}")
        E(f"v_cvt_pk_bf16_f32 v{vt[2]}, v{vt[2]}, 0")
        E(f"v_cmp_gt_u32 s[14:15], 9, v{vt[3]}")
        E(f"v_cmp_gt_u32 vcc, 526, v{vt[1]}")
        E(f"v_lshl_add_u32 v{vt[2]}, v{vt[2]}, 1, s{sT0}")
        E(f"s_or_b64 vcc, vcc, s[14:15]")
        E(f"v_mov_b32 v{dst}, s{sKT}")
        E(f"v_cndmask_b32 v{dst}, v{dst}, v{vt[2]}, vcc")
    E(f"v_lshl_add_u32 v{vMw}, v{vL}, 2, s{sKT}")
    for dst, pos in ((vMa, 2 * 652), (vMb, 2 * 656), (vMw, 2 * (CB + 48) - 544)):
        E(f"s_add_u32 s{sT1}, s{sKT}, {pos}")
        E(f"v_writelane_b32 v{dst}, s{sT1}, 63")
    a0 = [X(), X()]; a1 = [X(), X()]; a2 = X(); a3 = X()
    st = vt[2]
    E(f"v_lshlrev_b32 v{a0[0]}, 4, v{vC}")
    E(f"v_lshl_add_u32 v{a0[0]}, v{vG}, 3, v{a0[0]}")
    E(f"v_add_u32 v{a0[0]}, 32, v{a0[0]}")
    E(f"v_mov_b32 v{st}, 256")
    E(f"v_lshlrev_b32 v{vt[3]}, 3, v{vC}")
    E(f"v_add_u32 v{vt[3]}, 800, v{vt[3]}")
    E(f"v_mov_b32 v{vt[4]}, 128")
    E(f"v_cmp_eq_u32 vcc, 2, v{vG}")
    E(f"v_cndmask_b32 v{a0[0]}, v{a0[0]}, v{vt[3]}, vcc")
    E(f"v_cndmask_b32 v{st}, v{st}, v{vt[4]}, vcc")
    E(f"v_lshlrev_b32 v{vt[3]}, 2, v{vC}")
    E(f"v_add_u32 v{vt[3]}, 1056, v{vt[3]}")
    E(f"v_mov_b32 v{vt[5]}, 64")
    E(f"v_cmp_eq_u32 vcc, 3, v{vG}")
    E(f"v_cndmask_b32 v{a0[0]}, v{a0[0]}, v{vt[3]}, vcc")
    E(f"v_cndmask_b32 v{st}, v{st}, v{vt[5]}, vcc")
    E(f"v_cndmask_b32 v{a1[0]}, 4, v{vt[4]}, vcc")
    E(f"v_add_u32 v{a0[0]}, s{sKT}, v{a0[0]}")
    E(f"v_add_u32 v{a1[0]}, v{a0[0]}, v{a1[0]}")
    E(f"v_add_u32 v{a0[1]}, v{a0[0]}, v{st}")
    E(f"v_add_u32 v{a1[1]}, v{a1[0]}, v{st}")
    E(f"v_and_b32 v{vt[0]}, 1, v{vC}")
    E(f"v_mul_u32_u24 v{vt[0]}, 272, v{vt[0]}")
    E(f"v_lshrrev_b32 v{vt[1]}, 1, v{vC}")
    E(f"v_lshl_add_u32 v{vt[1]}, v{vG}, 6, v{vt[1]}")
    E(f"v_add3_u32 v{vt[0]}, v{vt[0]}, v{vt[1]}, {17}")
    E(f"v_lshl_add_u32 v{a2}, v{vt[0]}, 1, s{sKT}")
    E(f"v_lshl_add_u32 v{vt[0]}, v{vL}, 1, s{sKT}")
    E(f"v_subrev_u32 v{vt[0]}, {2*(TA_POS-656)}, v{vt[0]}")
    E(f"v_cmp_gt_u32 vcc, 2, v{vL}")
    E(f"v_cndmask_b32 v{a3}, v{a2}, v{vt[0]}, vcc")
    a4 = X(); a5 = X()
    E(f"v_and_b32 v{vt[0]}, 1, v{vC}")
    E(f"v_mul_u32_u24 v{vt[0]}, 136, v{vt[0]}")
    E(f"v_lshrrev_b32 v{vt[1]}, 1, v{vC}")
    E(f"v_add3_u32 v{vt[0]}, v{vt[0]}, v{vt[1]}, 17")
    E(f"v_lshl_add_u32 v{vt[0]}, v{vt[0]}, 1, s{sKT}")
    E(f"s_sub_u32 s{sT0}, s{sKT}, {2*(CB - TB_POS - 120)}")
    E(f"v_mov_b32 v{vt[1]}, s{sT0}")
    E(f"v_cmp_lt_u32 vcc, 47, v{vL}")
    E(f"v_cndmask_b32 v{a4}, v{vt[1]}, v{vt[0]}, vcc")
    E(f"v_cmp_lt_u32 vcc, 49, v{vL}")
    E(f"v_cndmask_b32 v{a5}, v{vt[1]}, v{vt[0]}, vcc")
    vTa = X(); vUo = X()
    E(f"v_and_b32 v{vt[0]}, 1, v{vG}")
    E(f"v_lshrrev_b32 v{vt[1]}, 1, v{vG}")
    E(f"v_lshrrev_b32 v{vt[2]}, 2, v{vC}")
    E(f"v_and_b32 v{vt[3]}, 3, v{vC}")
    E(f"v_lshl_add_u32 v{vTa}, v{vt[0]}, 3, v{vt[2]}")
    E(f"v_lshlrev_b32 v{vTa}, 8, v{vTa}")
    E(f"v_lshl_add_u32 v{vTa}, v{vt[1]}, 5, v{vTa}")
    E(f"v_lshl_add_u32 v{vTa}, v{vt[3]}, 3, v{vTa}")
    E(f"v_add_u32 v{vTa}, s{sUS}, v{vTa}")
    E(f"s_lshl_b32 s{sT0}, s{sTB}, 1")
    E(f"s_lshr_b32 s{sT1}, s{sW}, 1")
    E(f"s_add_u32 s{sT0}, s{sT0}, s{sT1}")
    E(f"v_add_u32 v{vt[3]}, s{sT0}, v{vt[3]}")
    E(f"v_and_b32 v{vt[3]}, 3, v{vt[3]}")
    E(f"v_lshl_add_u32 v{vUo}, v{vt[1]}, 2, v{vt[2]}")
    E(f"v_lshlrev_b32 v{vUo}, 14, v{vUo}")
    E(f"v_lshl_add_u32 v{vUo}, v{vt[0]}, 6, v{vUo}")
    E(f"v_lshl_add_u32 v{vUo}, v{vt[3]}, 4, v{vUo}")
    E(f"s_lshl_b32 s{sUT}, s{sCB}, 19")
    E(f"s_lshl_b32 s{sT1}, s{sTB}, 9")
    E(f"s_add_u32 s{sUT}, s{sUT}, s{sT1}")
    E(f"s_lshl_b32 s{sT1}, s{sW}, 7")
    E(f"s_add_u32 s{sUT}, s{sUT}, s{sT1}")
    E(f"s_add_u32 s{sYL}, s{sUT}, {G.YT_BASE}")
    assert G.UT_BASE == 0
    E(f"s_lshl_b32 s{sFU}, s{sCB}, 14")
    E(f"s_lshl_b32 s{sT1}, s{sTB}, 9")
    E(f"s_add_u32 s{sFYp}, s{sFU}, s{sT1}")
    E(f"s_add_u32 s{sFYp}, s{sFYp}, {G.FLAGY_BASE}")
    E(G.word_off(sFU, sTB, 3, sT1))
    E(f"s_add_u32 s{sFU}, s{sFU}, {G.FLAG_BASE}")
    E(f"s_lshl_b32 s{sFUp}, s{sCG}, 9")
    E(f"s_add_u32 s{sFUp}, s{sFUp}, {G.FLAG_BASE}")
    E(f"s_lshr_b32 s{sFY}, s{sCG}, 5")
    E(f"s_lshl_b32 s{sFY}, s{sFY}, 14")
    E(f"s_and_b32 s{sT0}, s{sCG}, 31")
    E(G.word_off(sFY, sT0, 3, sT1))
    E(f"s_add_u32 s{sFY}, s{sFY}, {G.FLAGY_BASE}")
    E(f"s_lshl_b32 s{sT1}, s{sW}, 7")
    E(f"s_add_u32 s{sFUp}, s{sFUp}, s{sT1}")
    E(f"s_add_u32 s{sFYp}, s{sFYp}, s{sT1}")
    E(f"s_lshl_b32 s{sUI}, s{sCG}, 14")
    E(f"s_lshl_b32 s{sT1}, s{sW}, 12")
    E(f"s_add_u32 s{sUI}, s{sUI}, s{sT1}")
    E(f"s_add_u32 s{sYS}, s{sUI}, {G.YT_BASE}")
    vPu = A()
    E(f"v_lshlrev_b32 v{vPu}, 9, v{vL}")
    for sa in (sFUp, sFYp): E(f"s_buffer_load_dword s93, s[{rWS}:{rWS+3}], s{sa} glc")
    PP2 = 1024 + 16
    vWa = X(); vRa = X(); vRb = X()
    E(f"v_add_u32 v{vWa}, s{sSC}, v{vL16}")
    E(f"v_lshrrev_b32 v{vt[0]}, 1, v{vC}")
    E(f"v_mul_u32_u24 v{vRa}, {PP2}, v{vt[0]}")
    E(f"v_and_b32 v{vt[0]}, 1, v{vC}")
    E(f"v_lshl_add_u32 v{vRa}, v{vt[0]}, 3, v{vRa}")
    E(f"v_lshl_add_u32 v{vRa}, v{vG}, 5, v{vRa}")
    E(f"v_add_u32 v{vRa}, s{sSC}, v{vRa}")
    E(f"v_add_u32 v{vRb}, {8*PP2}, v{vRa}")
    vH = [A() for _ in range(4)]
    E(f"v_lshl_add_u32 v{vt[0]}, v{vC}, 1, v{vG}")
    for k in range(4):
        E(f"v_add_u32 v{vt[1]}, {30 - 16 - 4*k}, v{vt[0]}")
        E(f"v_lshrrev_b32 v{vt[2]}, 2, v{vt[1]}")
        E(f"v_add_u32 v{vt[2]}, s{sW}, v{vt[2]}")
        E(f"v_and_b32 v{vt[2]}, 3, v{vt[2]}")
        E(f"v_lshlrev_b32 v{vt[1]}, 6, v{vt[1]}")
        E(f"v_lshl_add_u32 v{vH[k]}, v{vt[2]}, 4, v{vt[1]}")
    L2E = math.log2(math.e); L2Eh = f32val(L2E); L2El = L2E - L2Eh
    I2P = 1 / (2 * math.pi); I2Ph = f32val(I2P); I2Pl = I2P - I2Ph
    vDt = vt[4]; vDsk = X(); vNon = A()
    E(f"s_mov_b32 s7, {f32(L2Eh)}")
    E(f"s_mov_b32 s8, {f32(I2Ph)}")
    E(f"s_lshl_b32 s{sT0}, s{sW}, 4")
    E(f"s_lshr_b64 s[100:101], s[100:101], s{sT0}")
    E(f"s_lshr_b64 s[16:17], s[16:17], s{sT0}")
    E(f"s_lshl_b32 s100, s100, 16")
    E(f"s_lshl_b32 s101, s16, 16")
    E(f"v_mov_b32 v{vt[0]}, s100")
    ST(E, "par")
    E(f"v_mul_f32 v{vt[1]}, s7, v{vt[0]}")
    E(f"v_fma_f32 v{vt[2]}, v{vt[0]}, s7, -v{vt[1]}")
    E(f"v_fmac_f32 v{vt[2]}, {f32(L2El)}, v{vt[0]}")
    E(f"v_exp_f32 v{vt[1]}, v{vt[1]}")
    E(f"v_mul_f32 v{vt[2]}, {f32(math.log(2))}, v{vt[2]}")
    E(f"v_fma_f32 v{vt[1]}, v{vt[1]}, v{vt[2]}, v{vt[1]}")
    E(f"v_cvt_pk_bf16_f32 v{vt[1]}, v{vt[1]}, v{vt[1]}")
    E(f"v_and_b32 v{vDt}, 0xffff0000, v{vt[1]}")
    A2 = Alloc(KG, KG + 32)
    PK = [A2(4, 4), A2(4, 4)]
    W1 = [A2(3, 1), A2(3, 1)]; W8 = [A2(3, 1), A2(3, 1)]; W256 = [A2(3, 1), A2(3, 1)]
    A3 = Alloc(big + 136, big + 160)
    XS = [[A3(2) for _ in range(4)] for _ in range(2)]
    XC = [A3(2), A3(2)]; XD = [A3(2), A3(2)]
    XU = [[big + 124, big + 126], [big + 128, big + 130]]
    tmp = big + 100
    per_n = []
    for n in range(2):
        t = [tmp + 12 * n + i for i in range(12)]
        un = (lambda d, src: f"v_lshlrev_b32 v{d}, 16, v{src}") if n == 0 else (lambda d, src: f"v_and_b32 v{d}, 0xffff0000, v{src}")
        L = [un(t[0], P[0]), un(t[1], P[1]),
             f"v_mul_f32 v{t[0]}, v{vDt}, v{t[0]}",
             f"v_mul_f32 v{t[1]}, v{vDt}, v{t[1]}",
             f"v_mul_f32 v{t[0]}, s7, v{t[0]}",
             f"v_mul_f32 v{t[6]}, s8, v{t[1]}",
             f"v_fma_f32 v{t[7]}, v{t[1]}, s8, -v{t[6]}",
             f"v_fmac_f32 v{t[7]}, {f32(I2Pl)}, v{t[1]}"]
        for e, Wd in ((1, W1[n]), (256, W256[n]), (8, W8[n])):
            if e == 1:
                L += [f"v_exp_f32 v{t[8]}, v{t[0]}", f"v_fract_f32 v{t[9]}, v{t[6]}", f"v_add_f32 v{t[9]}, v{t[9]}, v{t[7]}"]
            else:
                L += [f"v_mul_f32 v{t[8]}, {f32(e)}, v{t[0]}", f"v_mul_f32 v{t[9]}, {f32(e)}, v{t[6]}",
                      f"v_exp_f32 v{t[8]}, v{t[8]}", f"v_fract_f32 v{t[9]}, v{t[9]}", f"v_fmac_f32 v{t[9]}, {f32(e)}, v{t[7]}"]
            L += [f"v_cos_f32 v{t[10]}, v{t[9]}", f"v_sin_f32 v{t[11]}, v{t[9]}",
                  f"v_mul_f32 v{Wd}, v{t[8]}, v{t[10]}", f"v_mul_f32 v{Wd+1}, v{t[8]}, v{t[11]}", f"v_xor_b32 v{Wd+2}, 0x80000000, v{Wd+1}"]
        c0 = XS[n][0]
        L += [un(t[k], P[k]) for k in range(2, 6)]
        L += [f"v_mul_f32 v{t[2]}, v{vDt}, v{t[2]}", f"v_mul_f32 v{t[3]}, v{vDt}, v{t[3]}",
              f"v_mul_f32 v{c0}, v{t[4]}, v{t[2]}", f"v_mul_f32 v{c0+1}, v{t[5]}, v{t[2]}",
              f"v_fma_f32 v{c0}, -v{t[5]}, v{t[3]}, v{c0}", f"v_fmac_f32 v{c0+1}, v{t[4]}, v{t[3]}"]
        per_n.append(L)
    E(zipl(*per_n))
    E(f"v_cmp_eq_u32 vcc, 0, v{vL}")
    E(f"v_mov_b32 v{vDsk}, s101")
    E(f"v_cndmask_b32 v{vDsk}, 0, v{vDsk}, vcc")
    def put_row(row, regs, neg, last=False):
        p = PK[(row // 2) % 2]; q = p + 2 * (row % 2)
        sg = "-" if neg else ""
        L = [f"v_cvt_pk_bf16_f32 v{q}, v{regs[0]}, {sg}v{regs[0]+1}",
             f"v_cvt_pk_bf16_f32 v{q+1}, v{regs[1]}, {sg}v{regs[1]+1}"]
        if row % 2 or last: L.append(f"ds_write_b128 v{vWa}, {v(p,4)} offset:{(row//2)*PP2}")
        return L
    def step(dst, src, mul):
        return zipl(cmul(dst[0], src[0], mul[0]), cmul(dst[1], src[1], mul[1]))
    XSi = lambda i: [XS[0][i], XS[1][i]]
    XUi = lambda i: [XU[0][i], XU[1][i]]
    SG = KG if SLAB in (4, 5, 6, 8) else big if SLAB != 9 else big + 144
    def wait_go():
        skip = newlabel("nogo")
        E(f"s_lshl_b32 s{sT0}, s{sCG}, 7")
        E(f"s_add_u32 s{sT0}, s{sT0}, {G.FLAGG_BASE}")
        E(f"s_cmp_ge_u32 s{sCG}, {NWAIT}")
        E(f"s_cbranch_scc1 {skip}")
        ok = newlabel("gok"); sp = newlabel("gsp")
        E.raw("    s_mov_b32 s13, 0")
        E.label(sp)
        for t in [f"s_buffer_load_dword s16, s[{rWS}:{rWS+3}], s{sT0} glc", "s_add_u32 s13, s13, 1", "s_waitcnt lgkmcnt(0)", f"s_cmp_gt_u32 s13, {G.SPIN_MAX}",
                  f"s_cbranch_scc1 {skip}", f"s_cmp_eq_u32 s16, s{sN}", f"s_cbranch_scc1 {skip}", "s_sleep 3", f"s_branch {sp}"]:
            E.raw("    " + t)
        E.label(skip)

    def slab_out():
        if "--xnomem" in sys.argv or "--x1" in sys.argv: return None
        def slab_tr():
            E.wait_vm("slab")
            ST(E, "slab")
            for i in range(4):
                E(f"ds_read_b64_tr_b16 {v(SG+4*i,2)}, v{vTa} offset:{64*i}")
                E(f"ds_read_b64_tr_b16 {v(SG+4*i+2,2)}, v{vTa} offset:{64*i+1024}")
        if SLAB != 6: slab_tr()
        E("s_setprio 3")
        G.snonce(E, vNon)
        if SLAB in (4, 5, 6):
            wait_go()
            ST(E, "go")
            if SLAB == 6:
                slab_in(); E("s_setprio 3"); slab_tr()
        for i in range(4):
            E(f"s_add_u32 s{sT1}, s{sUT}, {8*16384*i}")
            E(f"buffer_store_dwordx4 {v(SG+4*i,4)}, v{vUo}, s[{rWS}:{rWS+3}], s{sT1} offen {'' if '--xplain' in sys.argv else 'sc1'}")
        E(f"s_setprio {G.BPRIO}")
        ST(E, "ust")
    def flag(saddr):
        skip = newlabel("nofl")
        E(f"s_cmp_lg_u32 s{sW}, 0")
        E(f"s_cbranch_scc1 {skip}")
        E("s_mov_b32 exec_hi, 0")
        E.raw(f"    buffer_store_dword v{vNon}, v{vPu}, s[{rWS}:{rWS+3}], s{saddr} offen sc1")
        E("s_mov_b64 exec, -1")
        E.label(skip)
    def wait_line(saddr):
        G.sflag_wait(E, saddr, 1, 8, 16, sleep=2)
        E("s_barrier")
    def publish():
        if "--xnomem" in sys.argv or "--x1" in sys.argv or "--x2" in sys.argv: return
        E("s_setprio 3")
        E.wait_vm()
        E("s_barrier")
        flag(sFU)
        E(f"s_setprio {G.BPRIO}")
        ST(E, "ack")
    if SLAB == 3: nld = slab_out()
    L = put_row(0, XSi(0), True)
    cur = XSi(0)
    for e in range(1, 8):
        dst = XSi(e // 2) if e % 2 == 0 else XC
        L += step(dst, cur, W1) + put_row(e, dst, True); cur = dst
    for i, dst in enumerate((XUi(0), XC, XUi(1), XC)):
        L += step(dst, XSi(i), W256) + put_row(8 + i, dst, True)
    for k in range(2): L += step(XSi(k), XUi(k), W256) + put_row(12 + k, XSi(k), True)
    for k in range(2): L += step(XUi(k), XSi(k), W256) + put_row(14 + k, XUi(k), True)
    cur = XUi(0)
    for r in range(16, 21):
        dst = XC if r % 2 == 0 else XD
        L += step(dst, cur, W256) + put_row(r, dst, True, last=(r == 20)); cur = dst
    E(L)
    XF = big + 16
    YF = big + 80
    KD = big + 112
    for tI in range(2):
        for k in range(8):
            E(f"ds_read2_b64 {v(XF+32*tI+4*k,4)}, v{vRb if tI else vRa} offset0:{16*k} offset1:{16*k+2}")
    ST(E, "X")
    if SLAB == 0: nld = slab_out()
    if SLAB in (1, 4, 7, 8, 9): slab_in()
    if SLAB == 3: publish()
    def yhalf(h):
        L = []
        for j in range(16):
            jj = 16 * h + j
            Yc, Yp = (XC, XD) if jj % 2 == 0 else (XD, XC)
            if jj == 0:
                L += [f"v_mov_b32 v{Yc[0]}, 1.0", f"v_mov_b32 v{Yc[0]+1}, 0", f"v_mov_b32 v{Yc[1]}, 1.0", f"v_mov_b32 v{Yc[1]+1}, 0"]
            else:
                L += step(Yc, Yp, W8)
            L += put_row(j, Yc, False)
        return L
    def yread(): return [f"ds_read2_b64 {v(YF+4*k,4)}, v{vRa} offset0:{16*k} offset1:{16*k+2}" for k in range(8)]
    def kmfma(h):
        L = []
        for k in range(8):
            for tI in range(2):
                d = KD + 8 * h + 4 * tI
                L.append(f"{M16} {v(d,4)}, {v(XF+32*tI+4*k,4)}, {v(YF+4*k,4)}, {v(d,4) if k else 0}")
        return L
    def tabw(h):
        d0 = KD + 8 * h; d1 = d0 + 4
        p = big + 128 + 4 * h if h == 0 else big + 136
        L = [f"v_add_f32 v{KD}, v{KD}, v{vDsk}"] if h == 0 else []
        L += [f"v_cvt_pk_bf16_f32 v{p}, v{d0}, v{d0+1}", f"v_cvt_pk_bf16_f32 v{p+1}, v{d0+2}, v{d0+3}",
              f"v_cvt_pk_bf16_f32 v{p+2}, v{d1}, v{d1+1}", f"v_cvt_pk_bf16_f32 v{p+3}, v{d1+2}, v{d1+3}",
              f"ds_write_b32 v{a0[h]}, v{p}", f"ds_write_b32 v{a1[h]}, v{p+1}"]
        for rho in range(4):
            op = "ds_write_b16" if rho % 2 == 0 else "ds_write_b16_d16_hi"
            L.append(f"{op} v{a5 if (rho < 2 and h == 0) else a4}, v{p+rho//2} offset:{2*CB + 136*(rho%2) + 16*h + 32*(rho//2)}")
            L.append(f"{op} v{a3 if (rho == 0 and h == 0) else a2}, v{p+2+rho//2} offset:{2*TA_POS + 32*rho + 16*h}")
        return L
    E(yhalf(0)); E(yread())
    if SLAB == 0: publish()
    if SLAB in (1, 7): nld = slab_out()
    if SLAB == 2: slab_in()
    y1 = yhalf(1)
    E(merge(y1, kmfma(0)))
    E(yread())
    if SLAB == 2: nld = slab_out()
    E(tabw(0)); E(kmfma(1))
    E(f"v_lshl_add_u32 v{vt[0]}, v{vC}, 2, s{sSC}")
    for o in (0, SIG_SZ, SIG2, SIG2 + SIG2_SZ): E(f"ds_write_b32 v{vt[0]}, v{vZ} offset:{o + 64}")
    ST(E, "Y")
    def get_u():
        if "--xnomem" in sys.argv or "--x1" in sys.argv or "--x2" in sys.argv or "--x3" in sys.argv: return
        E("s_setprio 3")
        if SLAB >= 7:
            G.sflag_wait(E, sFUp, 1, 16, 16, sleep=2, ncheck=10)
            E("s_barrier")
        else: wait_line(sFUp)
        ST(E, "polled")
        if "--x4" in sys.argv: return
        E(f"s_mov_b32 m0, s{sUS}")
        for i in range(4):
            E(f"buffer_load_dwordx4 v{vL16}, s[{rWS}:{rWS+3}], s{sUI} offen offset:{1024*i} sc1 lds", tag="uimg")
        E(f"s_setprio {G.BPRIO}")
    if SLAB in (1, 7): publish()
    E(tabw(1))
    E(f"ds_read_u16 v{vt[5]}, v{vMa}")
    E(f"ds_read_u16 v{vt[4]}, v{vMb}")
    E(f"v_lshl_or_b32 v{vt[5]}, v{vt[4]}, 16, v{vt[5]}")
    E(f"ds_write_b32 v{vMw}, v{vt[5]} offset:544")
    ACC = KG
    MS = lambda s0: (0, 1, 2, 4) if s0 == 0 else (0, 1)
    Freg = {}; r_ = big
    for s0 in range(8):
        for m in MS(s0):
            Freg[(s0, m)] = r_; r_ += 4
    TFr = r_; r_ += 16
    T2r = r_; r_ += 24
    Hr = [r_ + 4 * i for i in range(8)]; r_ += 32
    WS = [[r_ + 4 * i for i in range(4)], [EPH + 4 * i for i in range(4)]]
    assert r_ + 16 == big + 160
    YS = big
    def dense(F, r, a, o):
        return ([f"ds_read2_b32 {v(r,2)}, v{a} offset0:{o} offset1:{o+1}",
                 f"ds_read2_b32 {v(r+2,2)}, v{a} offset0:{o+2} offset1:{o+3}",
                 f"ds_read_b32 v{r+4}, v{a} offset:{4*(o+4)}"],
                [f"v_perm_b32 v{F+j}, v{r+4-j}, v{r+3-j}, v{sel[('d',3)]}" for j in (3, 2, 1, 0)])
    def prepF(s0, r):
        rd = []; pm = []
        for m in MS(s0):
            sx = s0 + 8 * m
            F = Freg[(s0, m)]
            if sx <= 8 or sx == 16 or sx == 32:
                a, b = dense(F, r, adr['d'], {16: 152, 32: 176}.get(sx, 16 * sx))
                rd += a; pm += b; r += 6
            else:
                o = 8 * (sx - 9)
                rd += [f"ds_read2_b32 {v(r,2)}, v{adr['1']} offset0:{o} offset1:{o+1}",
                       f"ds_read_b32 v{r+2}, v{adr['1']} offset:{4*(o+2)}"]
                pm += [f"v_perm_b32 v{F+3}, v{r+1}, v{r}, v{sel[('1',3)]}", f"v_perm_b32 v{F+2}, v{r+1}, v{r}, v{sel[('1',2)]}",
                       f"v_perm_b32 v{F+1}, v{r+2}, v{r+1}, v{sel[('1',3)]}", f"v_perm_b32 v{F}, v{r+2}, v{r+1}, v{sel[('1',2)]}"]
                r += 4
        return rd, pm
    def rdH(s0, dl):
        return f"ds_read_b128 {v(Hr[dl],4)}, v{vH[s0%4]} offset:{2048*dl + (1024 if s0 < 4 else 0)}"
    def build(hooks={}):
        raw = [KG, Hr[0]]
        def two(x, y): return x[0] + y[0], x[1] + y[1]
        jobs = [lambda r: two(two(prepF(1, r), prepF(2, r + 10)), prepF(3, r + 20)),
                lambda r: two(two(prepF(4, r), prepF(5, r + 10)), prepF(6, r + 20)),
                lambda r: two(prepF(7, r), two(dense(TFr, r + 10, aT, 0), two(dense(TFr + 4, r + 16, aT, 8), dense(TFr + 8, r + 22, aT, 16)))),
                lambda r: two(prepF(0, r), dense(TFr + 12, r + 24, aT, 24)),
                lambda r: two(two(dense(T2r, r, aT2, 0), dense(T2r + 4, r + 6, aT2, 4)), dense(T2r + 8, r + 12, aT2, 8)),
                lambda r: two(two(dense(T2r + 12, r, aT2, 12), dense(T2r + 16, r + 6, aT2, 16)), dense(T2r + 20, r + 12, aT2, 20))]
        prev = None
        for n, job in enumerate(jobs):
            if n in hooks: hooks[n]()
            rd, pm = job(raw[n % 2])
            E(rd)
            if prev: E(prev)
            prev = pm
        E(prev)
    if SLAB == 9:
        slab_out()
        build({PUBAT: publish})
    elif SLAB not in (4, 8) or "--buildfirst" in sys.argv: build()
    ST(E, "tables")
    if SLAB in (4, 5, 6, 8): slab_out()
    if SLAB in (2, 4, 5, 6, 8): publish()
    if SLAB in (4, 8) and "--buildfirst" not in sys.argv: build()
    get_u()
    E.wait_vm("uimg")
    E.wait_lg()
    E("s_barrier")
    ST(E, "uimg")
    if "--xnoconv" in sys.argv:
        ST.dump(E, sW, big + 70)
        E("s_endpgm")
        return ST
    E(f"s_setprio {G.CPRIO}")
    for dl in range(8): E(rdH(0, dl))
    sigoff = [0, SIG_SZ, SIG2, SIG2 + SIG2_SZ]
    items = [(f"v{aS2} offset:%d", SIG2 + 272 * k, [(q, T2r + 4 * (2 * q - k - 3)) for q in range(8) if 3 <= 2 * q - k <= 8]) for k in range(12)]
    items += [(f"v{aS} offset:%d", 544 * k, [(q, TFr + 4 * (q - k - 4)) for q in range(4 + k, 8)]) for k in range(4)]
    chunks = [[items[i] for i in c] for c in ((0, 1, 2, 12), (3, 4, 5, 15), (6, 7, 13), (8, 9, 14), (10, 11))]
    ycv = lambda q: [f"v_cvt_pk_bf16_f32 v{YS+2*q}, v{ACC+4*q}, v{ACC+4*q+1}", f"v_cvt_pk_bf16_f32 v{YS+2*q+1}, v{ACC+4*q+2}, v{ACC+4*q+3}"]
    ya = vt[0]
    ywr = lambda q: f"ds_write_b64 v{ya}, {v(YS+2*q,2)} offset:{Y_OFF + 544*q}"
    E(f"s_mul_i32 s{sT0}, s{sW}, 144")
    E(f"v_add_u32 v{ya}, s{sT0}, v{aW}")
    yr = vt[1]
    E(f"v_lshrrev_b32 v{vt[3]}, 2, v{vC}")
    E(f"v_mul_u32_u24 v{yr}, {Y_PITCH}, v{vt[3]}")
    E(f"v_bfe_u32 v{vt[3]}, v{vL}, 1, 1")
    E(f"v_lshl_add_u32 v{yr}, v{vt[3]}, 5, v{yr}")
    E(f"v_and_b32 v{vt[3]}, 1, v{vL}")
    E(f"v_lshrrev_b32 v{vt[2]}, 5, v{vL}")
    E(f"v_add_lshl_u32 v{vt[3]}, v{vt[3]}, v{vt[2]}, 3")
    E(f"v_lshl_add_u32 v{vt[3]}, v{vG}, 6, v{vt[3]}")
    E(f"s_mul_i32 s{sT0}, s{sW}, 1088")
    E(f"s_add_u32 s{sT0}, s{sT0}, {SC_BASE + Y_OFF}")
    E(f"v_add3_u32 v{yr}, v{yr}, v{vt[3]}, s{sT0}")
    started = set(); carry = []
    for s0 in range(8):
        M = []; st = []; done = {}
        for dl in range(8):
            nb = 4 if dl < 4 else 2 if dl < 6 else 0
            if s0 == 0 and nb:
                bands = range(4) if nb == 4 else (2, 3)
                g0 = len(M)
                cv = []; wr = []
                for bI in bands:
                    d = WS[dl % 2][bI]
                    M.append(f"{M16} {v(d,4)}, {v(BN+4*bI,4)}, {v(Hr[dl],4)}, 0")
                    cv += [f"v_cvt_pk_bf16_f32 v{d}, v{d}, v{d+1}", f"v_cvt_pk_bf16_f32 v{d+1}, v{d+2}, v{d+3}"]
                    wr += [f"ds_write_b64 v{aW}, {v(d,2)} offset:{136 + sigoff[bI] + 544*dl}"]
                if dl < 5: st += [(cv, g0 + 5, g0 + 5 + len(cv) - 2), (wr, g0 + 8, g0 + 5 + len(cv))]
                else: carry = [(cv, 0, 1), (wr, 2, 3)]
            for m in MS(s0):
                q = m + dl
                if q > 7: continue
                M.append(f"{M16} {v(ACC+4*q,4)}, {v(Freg[(s0,m)],4)}, {v(Hr[dl],4)}, {v(ACC+4*q,4) if q in started else 0}")
                started.add(q); done[q] = len(M) - 1
            if s0 < 7: st.append(([rdH(s0 + 1, dl)], len(M) - 1, len(M) - 1))
        if 2 <= s0 <= 6:
            for i, (fmt, off, uses) in enumerate(chunks[s0 - 2]):
                for q, T in uses: M.append(f"{M16} {v(ACC+4*q,4)}, {v(WS[s0%2][i],4)}, {v(T,4)}, {v(ACC+4*q,4)}")
        if s0 == 1: st += carry
        if 1 <= s0 <= 5:
            rd = [f"ds_read_b64_tr_b16 {v(WS[(s0+1)%2][i]+2*a,2)}, " + fmt % (off + 136 * a) for i, (fmt, off, uses) in enumerate(chunks[s0 - 1]) for a in range(2)]
            st.append((rd, 4, len(M) - 1))
        if s0 == 7:
            for q in range(4): st += [(ycv(q), done[q] + 5, done[q] + 6), ([ywr(q)], done[q] + 8, done[q] + 8)]
        E(gaps(M, st))
    ST(E, "conv")
    if "--gemmonly" in sys.argv:
        ST.dump(E, sW, big + 70)
        E("s_endpgm")
        return ST
    for q in (4, 5, 6, 7): E(ycv(q))
    for q in (4, 5, 6, 7): E(ywr(q))
    E.wait_lg()
    E("s_barrier")
    E("s_setprio 3")
    for i in range(4):
        for e in range(2): E(f"ds_read_b64_tr_b16 {v(big+32+4*i+2*e,2)}, v{yr} offset:{272*i + 16*e}")
    for i in range(4):
        E(f"buffer_store_dwordx4 {v(big+32+4*i,4)}, v{vL16}, s[{rWS}:{rWS+3}], s{sYS} offen offset:{1024*i} sc1")
    d0, d1, ra, so = vt[0], vt[1], vt[2], vt[3]
    E(f"v_lshrrev_b32 v{vt[4]}, 3, v{vL}")
    E(f"v_lshlrev_b32 v{vt[4]}, 14, v{vt[4]}")
    E(f"v_and_b32 v{vt[5]}, 7, v{vL}")
    E(f"v_xor_b32 v{vt[5]}, v{vt[5]}, v{vG}")
    E(f"v_lshl_add_u32 v{d0}, v{vt[5]}, 4, v{vt[4]}")
    E(f"v_xor_b32 v{d1}, 64, v{d0}")
    E(f"v_and_b32 v{vt[4]}, 7, v{vC}")
    E(f"v_xor_b32 v{vt[4]}, v{vt[4]}, v{vG}")
    E(f"v_lshlrev_b32 v{ra}, 8, v{vC}")
    E(f"v_lshl_add_u32 v{ra}, v{vt[4]}, 4, v{ra}")
    E(f"v_add_u32 v{ra}, s{sUS}, v{ra}")
    E(f"v_mul_u32_u24 v{so}, 2560, v{vG}")
    E(f"v_lshl_add_u32 v{so}, v{vC}, 4, v{so}")
    E(f"v_xor_b32 v{vt[4]}, 64, v{ra}")
    E.wait_vm()
    E("s_barrier")
    flag(sFY)
    ST(E, "ypub")
    wait_line(sFYp)
    ST(E, "ypoll")
    for i in range(4):
        E(f"s_add_u32 m0, s{sUS}, {1024*i}")
        E(f"s_add_u32 s{sT1}, s{sYL}, {8*16384*i}")
        E(f"buffer_load_dwordx4 v{d0 if i % 2 == 0 else d1}, s[{rWS}:{rWS+3}], s{sT1} offen sc1 lds")
    E.wait_vm()
    for i in range(4):
        E(f"ds_read2_b64 {v(big+4*i,4)}, v{vt[4] if i % 2 else ra} offset0:{i//2} offset1:{16 + i//2}")
    for i in range(4):
        E(f"s_add_u32 s{sT1}, s{sYO}, {4*2560*i}")
        E(f"buffer_store_dwordx4 {v(big+4*i,4)}, v{so}, s[{rOUT}:{rOUT+3}], s{sT1} offen {G.OUTB}")
    if G.PROFILE:
        E.wait_vm()
        ST(E, "end")
    ST.dump(E, sW, big + 70)
    E("s_endpgm")
    return ST
```

```python
import sys, struct, math
from asmlib import *

NAME = "concat_heads__linear_kernel_hedgehog__ssm_conv_s4__prompt"
NB, NA, NC = 160, 256, 80
UT_BASE = 0
YT_BASE = 2621440
O_BASE = 2 * 2621440
PWO_BASE = 3 * 2621440
P_BASE = PWO_BASE + 851968
assert P_BASE % 65536 == 0
P_PITCH = 4096
WS_SIZE = 16 << 20
STAMP_BASE = 13 << 20
SPIN_MAX = 30000
FLAG_BASE = P_BASE + 256 * P_PITCH
FLAGY_BASE = FLAG_BASE + 131072
FLAGW_BASE = FLAG_BASE + 2 * 131072
FLAGO_BASE = FLAG_BASE + 3 * 131072
FLAGG_BASE = FLAG_BASE + 4 * 131072 + 4096
FLAGC_BASE = FLAG_BASE + 4 * 131072
sN = 83

def f32(x): return "0x%08x" % struct.unpack("<I", struct.pack("<f", x))[0]
def f32val(x): return struct.unpack("<f", struct.pack("<f", x))[0]

class Alloc:
    def __init__(self, start, end): self.n = start; self.end = end
    def __call__(self, c=1, al=None):
        al = al or (2 if c >= 2 else 1)
        self.n = (self.n + al - 1) // al * al
        r = self.n; self.n += c
        assert self.n <= self.end, f"out of registers {self.n}"
        return r

pX, pW, pPHI, pWO, pU, pARE, pAIM, pBRE, pBIM, pCRE, pCIM, pLDT, pDSK, pOUT, pDBG, pWS = [16 + 2 * i for i in range(16)]
rWS, rOUT, rDBG, rIN, rW, rWO, rPHI = 48, 52, 56, 60, 64, 68, 72

def srd(E, r, p, size):
    E(f"s_mov_b32 s{r}, s{p}")
    E(f"s_and_b32 s{r+1}, s{p+1}, 0xffff")
    E(f"s_mov_b32 s{r+2}, {size}")
    E(f"s_mov_b32 s{r+3}, 0x00020000")

PROFILE = False
BPRIO = int(([a[8:] for a in sys.argv if a.startswith('--bprio=')] + ['0'])[0])
CPRIO = int(([a[8:] for a in sys.argv if a.startswith('--cprio=')] + ['0'])[0])
OUTA = ([a[7:] for a in sys.argv if a.startswith('--outa=')] + [''])[0].replace('+', ' ')
OUTB = ([a[7:] for a in sys.argv if a.startswith('--outb=')] + ['sc1'])[0].replace('+', ' ')
APRIO = int(([a[8:] for a in sys.argv if a.startswith('--aprio=')] + ['2'])[0])
class Stamps:
    def __init__(self, first): self.first = first; self.n = 0; self.names = []
    def __call__(self, E, name):
        role = "B" if self.first == 84 else "A"
        if f"--padat={role}.{name}" in sys.argv:
            E("s_memrealtime s[14:15]"); E.wait_lg(); E(f"s_mov_b32 s{self.first}, s14"); self.pad = True
        if name == "start" and f"--padat={role}.entry" in sys.argv:
            E(f"s_mov_b32 s{self.first}, s10"); self.pad = True
        if not PROFILE: return
        if "--endonly" in sys.argv and name not in ("start", "tile", "gemm", "T0", "opub", "ack", "uimg", "conv", "ypub", "end"): return
        r = self.first + self.n
        if name == "start" and "--cyc" not in sys.argv and "--both" not in sys.argv:
            E(f"s_mov_b32 s{r}, s10")
            self.n += 1; self.names.append("entry"); r += 1
        E("s_memtime s[14:15]" if "--cyc" in sys.argv else "s_memrealtime s[14:15]")
        if "--both" in sys.argv:
            E("s_memtime s[12:13]")
            E.wait_lg()
            E("s_lshr_b32 s12, s12, 2")
            E("s_pack_ll_b32_b16 s14, s12, s14")
        E.wait_lg()
        E(f"s_mov_b32 s{r}, s14")
        self.n += 1; self.names.append(name)
    def dump(self, E, sW, vt):
        if getattr(self, "pad", False):
            l = newlabel("pad")
            E.label(l)
            for t in ["s_sleep 16", "s_memrealtime s[14:15]", "s_waitcnt lgkmcnt(0)", f"s_sub_u32 s14, s14, s{self.first}", "s_cmp_lt_u32 s14, 3000", f"s_cbranch_scc1 {l}"]: E.raw("    " + t)
        if not PROFILE: return
        E(f"v_mov_b32 v{vt}, 0")
        for i in range(self.n):
            E(f"v_writelane_b32 v{vt}, s{self.first+i}, {i}")
        E(f"s_lshl_b32 s3, s2, 2")
        E(f"s_add_u32 s3, s3, s{sW}")
        E(f"s_lshl_b32 s3, s3, 6")
        E(f"s_add_u32 s3, s3, {STAMP_BASE}")
        E(f"v_and_b32 v{vt+1}, 63, v0")
        E(f"v_lshlrev_b32 v{vt+1}, 2, v{vt+1}")
        E("s_mov_b64 exec, 0xffff")
        E(f"buffer_store_dword v{vt}, v{vt+1}, s[{rWS}:{rWS+3}], s3 offen")
        if "--dbg" in sys.argv:
            E(f"v_subrev_u32 v{vt}, s{sN}, v{vt}")
            E(f"v_add_u32 v{vt}, 1000, v{vt}")
            if self.first == 84:
                E(f"s_mov_b64 exec, {1 << (self.n - 1)}")
                E(f"buffer_atomic_umax v{vt}, off, s[{rDBG}:{rDBG+3}], 0 offset:4")
            else:
                E(f"s_mov_b64 exec, {(1 << self.n) - 1}")
                E(f"buffer_atomic_umax v{vt}, v{vt+1}, s[{rDBG}:{rDBG+3}], 0 offen offset:8")
        E("s_mov_b64 exec, -1")

_lbl = [0]
def newlabel(p):
    _lbl[0] += 1
    return f"L_{p}_{_lbl[0]}"

def poll_check(E, load_text, vdst, expect_sgpr_or_const, first_tag):
    ok = newlabel("ok"); sp = newlabel("spin")
    E.wait_vm(first_tag)
    E(f"v_cmp_ne_u32 vcc, {expect_sgpr_or_const}, v{vdst}")
    E(f"s_cbranch_vccz {ok}")
    E(f"s_mov_b32 s13, 0")
    E.label(sp)
    E.raw("    " + load_text)
    E.raw("    s_add_u32 s13, s13, 1")
    E.raw(f"    s_cmp_gt_u32 s13, {SPIN_MAX}")
    E.raw(f"    s_cbranch_scc1 {ok}")
    E.raw("    s_waitcnt vmcnt(0)")
    E.raw(f"    v_cmp_ne_u32 vcc, {expect_sgpr_or_const}, v{vdst}")
    E.raw(f"    s_cbranch_vccnz {sp}")
    E.label(ok)

def spin(E, load_texts, check_texts, first_tag):
    ok = newlabel("ok"); sp = newlabel("spin")
    E.wait_vm(first_tag)
    E(check_texts)
    E(f"s_cbranch_vccz {ok}")
    E(f"s_mov_b32 s13, 0")
    E.label(sp)
    for t in load_texts: E.raw("    " + t)
    E.raw("    s_add_u32 s13, s13, 1")
    E.raw(f"    s_cmp_gt_u32 s13, {SPIN_MAX}")
    E.raw(f"    s_cbranch_scc1 {ok}")
    E.raw("    s_waitcnt vmcnt(0)")
    for t in check_texts: E.raw("    " + t)
    E.raw(f"    s_cbranch_vccnz {sp}")
    E.label(ok)

def snonce(E, vd, issued=False):
    ok = newlabel("nok"); sp = newlabel("nsp")
    if not issued: snonce_issue(E)
    E.wait_lg()
    E(f"s_cmp_lg_u32 s{sN}, 0")
    E(f"s_cbranch_scc1 {ok}")
    E.raw("    s_mov_b32 s13, 0")
    E.label(sp)
    for t in [f"buffer_load_dword v{vd}, off, s[{rDBG}:{rDBG+3}], 0 offset:4 sc1", "s_add_u32 s13, s13, 1", "s_waitcnt vmcnt(0)", f"v_readfirstlane_b32 s{sN}, v{vd}",
              f"s_cmp_gt_u32 s13, {SPIN_MAX}", f"s_cbranch_scc1 {ok}", f"s_cmp_eq_u32 s{sN}, 0", f"s_cbranch_scc1 {sp}", "s_nop 1"]:
        E.raw("    " + t)
    E.label(ok)
    E(f"v_mov_b32 v{vd}, s{sN}")
def snonce_issue(E):
    E.raw(f"    s_buffer_load_dword s{sN}, s[{rDBG}:{rDBG+3}], 4")

def nonce_load(E, vd):
    ld = f"buffer_load_dword v{vd}, off, s[{rDBG}:{rDBG+3}], 0 offset:4 sc1"
    E(ld, tag="nonce")
    return ld
def nonce_get(E, ld, vd):
    spin(E, [ld], [f"v_cmp_eq_u32 vcc, 0, v{vd}"], "nonce")
    E(f"v_readfirstlane_b32 s{sN}, v{vd}")

def touch(E, items):
    if "--touch" not in sys.argv: return
    for p, off in items:
        if off < (1 << 20): E(f"s_load_dword s93, s[{p}:{p+1}], {off}")
        else:
            E(f"s_mov_b32 s12, {off}")
            E(f"s_load_dword s93, s[{p}:{p+1}], s12")

def fresh(E):
    E.reset()
    E.lgq = [("__smem", set())]
    E.vmq = [("code", {("v", 255)})]

def sflag_loads(saddr, nlines, words, first):
    L = []
    for k in range(nlines):
        r = first + words * k
        if k: L.append(f"s_add_u32 s12, s{saddr}, {128*k}")
        L.append(f"s_buffer_load_dwordx{words} s[{r}:{r+words-1}], s[{rWS}:{rWS+3}], s{saddr if k == 0 else 12} glc")
    return L
def sflag_check(n, first):
    L = [f"s_mov_b32 s14, s{sN}", f"s_mov_b32 s15, s{sN}", f"s_xor_b64 s[8:9], s[{first}:{first+1}], s[14:15]"]
    for k in range(first + 2, first + n, 2): L += [f"s_xor_b64 s[{first}:{first+1}], s[{k}:{k+1}], s[14:15]", f"s_or_b64 s[8:9], s[8:9], s[{first}:{first+1}]"]
    return L
def sflag_wait(E, saddr, nlines, words, first, sleep=1, ncheck=None):
    ok = newlabel("sok"); sp = newlabel("ssp")
    E.wait_lg()
    E.raw("    s_mov_b32 s13, 0")
    E.label(sp)
    for t in sflag_loads(saddr, nlines, words, first) + ["s_add_u32 s13, s13, 1", "s_waitcnt lgkmcnt(0)", f"s_cmp_gt_u32 s13, {SPIN_MAX}", f"s_cbranch_scc1 {ok}"] + \
             sflag_check(ncheck or nlines * words, first) + [f"s_cbranch_scc0 {ok}", f"s_sleep {sleep}", f"s_branch {sp}"]:
        E.raw("    " + t)
    E.label(ok)
def word_off(dst, idx, sh, t):
    return [f"s_lshr_b32 s{t}, s{idx}, {sh}", f"s_lshl_b32 s{t}, s{t}, 7", f"s_add_u32 s{dst}, s{dst}, s{t}",
            f"s_and_b32 s{t}, s{idx}, {(1<<sh)-1}", f"s_lshl_b32 s{t}, s{t}, 2", f"s_add_u32 s{dst}, s{dst}, s{t}"]

def cmul(dst, a, b):
    assert dst != a
    return [f"v_mul_f32 v{dst}, v{a}, v{b}", f"v_mul_f32 v{dst+1}, v{a+1}, v{b}",
            f"v_fmac_f32 v{dst}, v{a+1}, v{b+2}", f"v_fmac_f32 v{dst+1}, v{a}, v{b+1}"]

def zipl(*ls):
    out = []
    for i in range(max(len(l) for l in ls)):
        for l in ls:
            if i < len(l): out.append(l[i])
    return out

def main():
    global PROFILE
    PROFILE = "--profile" in sys.argv
    head = open(f"cdna_kernels/{NAME}.s.ref").read().split("\n")
    hdr = [l for l in head if l.startswith(";") and "@launch" not in l]
    E = Emitter()
    for l in hdr: E.raw(l)
    E.raw(f"; @launch grid=({NB+NA+NC},1,1) block=(256,1,1) lds=81920")
    E.raw('.amdgcn_target "amdgcn-amd-amdhsa--gfx950"')
    E.raw(".text")
    E.raw(f".globl {NAME}_kernel")
    E.raw(".p2align 8")
    E.raw(f".type {NAME}_kernel,@function")
    E.label(f"{NAME}_kernel")
    E("s_load_dwordx16 s[16:31], s[0:1], 0")
    E("s_load_dwordx16 s[32:47], s[0:1], 64")
    E("s_memrealtime s[10:11]")
    if "--nocodepf" not in sys.argv:
        E("s_getpc_b64 s[12:13]")
        E.label("L_pc")
        E("s_lshl_b32 s3, s2, 7")
        E("s_and_b32 s3, s3, 0x7c00")
        E("v_lshrrev_b32 v254, 5, v0")
        E("v_lshl_add_u32 v254, v254, 7, s3")
        E("v_min_u32 v254, L_code_end-L_pc-4, v254")
        E("global_load_dword v255, v254, s[12:13]")
    E(f"s_sub_u32 s77, s2, {NA}")
    E(f"s_cmp_ge_u32 s77, {NB}")
    E("s_cbranch_scc1 L_notB")
    E("s_setprio 3")
    E("s_lshl_b32 s4, s77, 10")
    E("v_lshl_add_u32 v6, v0, 2, s4")
    E("s_lshl_b32 s5, s77, 3")
    E.wait_lg()
    PAR = ([a[6:] for a in sys.argv if a.startswith('--par=')] + ['early'])[0]
    if "--noB0" not in sys.argv and PAR == "early":
        for k, p in enumerate((pARE, pAIM, pBRE, pBIM, pCRE, pCIM)):
            E(f"global_load_dword v{136+k}, v6, s[{p}:{p+1}]")
    if PAR == "touch":
        for k, p in enumerate((pARE, pAIM, pBRE, pBIM, pCRE, pCIM)):
            E(f"s_load_dword s93, s[{p}:{p+1}], s4")
    E(f"s_load_dwordx2 s[100:101], s[{pLDT}:{pLDT+1}], s5")
    E(f"s_load_dwordx2 s[16:17], s[{pDSK}:{pDSK+1}], s5")
    E("s_branch L_B")
    E.label("L_notB")
    E(f"s_cmp_ge_u32 s2, {NA}")
    E("s_cbranch_scc1 L_notA")
    from genA import gen_A, gen_C
    from genB import gen_B
    me = sys.modules[__name__]
    stA = gen_A(E, me)
    E.label("L_B")
    if PAR != "early":
        if PAR == "touch": E.raw("    s_waitcnt lgkmcnt(0)")
        for k, p in enumerate((pARE, pAIM, pBRE, pBIM, pCRE, pCIM)):
            E.raw(f"    global_load_dword v{136+k}, v6, s[{p}:{p+1}]")
    stB = gen_B(E, me)
    E.label("L_notA")
    E(f"s_cmp_lt_u32 s2, {NB + NA + NC}")
    E("s_cbranch_scc1 L_goC")
    E("s_endpgm")
    E.label("L_goC")
    gen_C(E, me)
    E.label("L_code_end")
    E.raw('.section .rodata,"a"')
    E.raw(".p2align 6")
    E.raw(f".amdhsa_kernel {NAME}_kernel")
    for l in ("next_free_vgpr 256", "next_free_sgpr 102", "accum_offset 256", "group_segment_fixed_size 0", "kernarg_size 128",
              "user_sgpr_count 2", "user_sgpr_kernarg_segment_ptr 1", "system_sgpr_workgroup_id_x 1"):
        E.raw("  .amdhsa_" + l)
    E.raw(".end_amdhsa_kernel")
    outp = [a for a in sys.argv[1:] if not a.startswith("--")]
    if "--noalign" not in sys.argv:
        from align import align
        E.out, st = align(E.out)
        print("align: widened/nops/left", st, file=sys.stderr)
    open(outp[0] if outp else "k.s", "w").write(E.text())
    print("instrs", E.count, "nops", E.nops, file=sys.stderr)
    import json
    json.dump({"B": stB.names, "A": stA.names if stA else []}, open((outp[0] if outp else "k.s") + ".json", "w"))

if __name__ == "__main__":
    main()
```

```python
import math, sys
from asmlib import *

TA = [[(0, 0), (0, 2), (0, 4), (1, 4)], [(0, 1), (0, 3), (1, 3), (2, 3)], [(1, 0), (1, 2), (2, 2), (2, 4)], [(1, 1), (2, 0), (2, 1), None]]
M16 = "v_mfma_f32_16x16x32_bf16"; M32 = "v_mfma_f32_32x32x16_bf16"

def div_const(dst, src, d):
    return [f"v_mul_u32_u24 v{dst}, {(65536 + d - 1)//d}, v{src}", f"v_lshrrev_b32 v{dst}, 16, v{dst}"]

def put_flag(E, G, sW, vNon, saddr):
    skip = G.newlabel("nofl")
    E(f"s_cmp_lg_u32 s{sW}, 0")
    E(f"s_cbranch_scc1 {skip}")
    E("s_mov_b64 exec, 1")
    E.raw(f"    buffer_store_dword v{vNon}, off, s[{G.rWS}:{G.rWS+3}], s{saddr} sc1")
    E("s_mov_b64 exec, -1")
    E.label(skip)

def flag_addr(dst, idx, base, t):
    return [f"s_lshr_b32 s{dst}, s{idx}, 3", f"s_lshl_b32 s{dst}, s{dst}, 7", f"s_and_b32 s{t}, s{idx}, 7", f"s_lshl_b32 s{t}, s{t}, 2",
            f"s_add_u32 s{dst}, s{dst}, s{t}", f"s_add_u32 s{dst}, s{dst}, {base}"]

def piece_voff(E, vL, dst, t, pitch):
    for m in range(3):
        if m: E(f"v_add_u32 v{t}, {64*m}, v{vL}")
        ci = t if m else vL
        E(div_const(t + 1, ci, 20))
        E(f"v_mul_u32_u24 v{t+1}, {pitch - 320}, v{t+1}")
        E(f"v_lshl_add_u32 v{dst[m]}, v{vL}, 4, v{t+1}")

def gen_C(E, G):
    rWS, rDBG, rWO = G.rWS, G.rDBG, G.rWO
    G.fresh(E)
    sW, sU = 76, 77
    vL, vo, t, vT, vS, D, vNon = 1, [2, 3, 4], 6, [8, 9, 10], [11, 12, 13], 16, 14
    E(f"v_and_b32 v{vL}, 63, v0")
    E(f"v_lshrrev_b32 v{t}, 6, v0")
    E(f"s_sub_u32 s{sU}, s2, {G.NB + G.NA}")
    E(f"v_readfirstlane_b32 s{sW}, v{t}")
    piece_voff(E, vL, vo, t, 1280)
    E(f"s_mul_i32 s4, s{sU}, {8*1280}")
    E(f"s_mul_i32 s5, s{sW}, 320")
    E(f"s_add_u32 s4, s4, s5")
    E(f"s_lshl_b32 s6, s{sW}, 12")
    E(f"s_mov_b32 m0, s6")
    E.wait_lg()
    G.srd(E, rWO, G.pWO, 819200)
    for m in range(3):
        if m == 2: E("s_mov_b32 exec_hi, 0")
        E(f"buffer_load_dwordx4 v{vo[m]}, s[{rWO}:{rWO+3}], s4 offen offset:{1024*m} lds")
    E("s_mov_b64 exec, -1")
    if "--upf" in sys.argv:
        E(f"s_lshr_b32 s5, s{sW}, 1")
        E(f"s_mul_i32 s5, s5, 80")
        E(f"s_add_u32 s5, s5, s{sU}")
        E(f"s_mul_hi_u32 s8, s5, 0x33333334")
        E(f"s_mul_i32 s9, s8, 5")
        E(f"s_sub_u32 s5, s5, s9")
        E(f"s_lshl_b32 s5, s5, 8")
        E(f"s_lshl_b32 s8, s8, 1")
        E(f"s_and_b32 s9, s{sW}, 1")
        E(f"s_add_u32 s8, s8, s9")
        E(f"s_mul_i32 s8, s8, {32*1280}")
        E(f"s_add_u32 s5, s5, s8")
        E(f"v_lshrrev_b32 v{t}, 1, v{vL}")
        E(f"v_mul_u32_u24 v{t}, 1280, v{t}")
        E(f"v_and_b32 v{t+1}, 1, v{vL}")
        E(f"v_lshl_add_u32 v{t}, v{t+1}, 7, v{t}")
        E(f"v_add_u32 v{t}, s5, v{t}")
        E(f"global_load_dword v40, v{t}, s[{G.pU}:{G.pU+1}]")
    G.srd(E, rWS, G.pWS, G.WS_SIZE)
    G.srd(E, rDBG, G.pDBG, 256)
    for m in range(3):
        E(f"v_lshrrev_b32 v{t}, 4, v{vL}")
        E(f"v_add_u32 v{t}, {4*m}, v{t}")
        E(f"v_min_u32 v{t}, 9, v{t}")
        E(f"v_cmp_lt_u32 vcc, 4, v{t}")
        E(f"v_lshlrev_b32 v{vT[m]}, 3, v{t}")
        E(f"v_add_u32 v{t+1}, 120, v{vT[m]}")
        E(f"v_cndmask_b32 v{vT[m]}, v{vT[m]}, v{t+1}, vcc")
        E(f"v_lshlrev_b32 v{vS[m]}, 10, v{t}")
        E(f"v_add_u32 v{t+1}, {95*1024}, v{vS[m]}")
        E(f"v_cndmask_b32 v{vS[m]}, v{vS[m]}, v{t+1}, vcc")
        E(f"v_and_b32 v{t}, 3, v{vL}")
        E(f"v_mul_u32_u24 v{t}, 40, v{t}")
        E(f"v_bfe_u32 v{t+1}, v{vL}, 2, 2")
        E(f"v_mul_u32_u24 v{t+1}, 320, v{t+1}")
        E(f"v_add3_u32 v{vT[m]}, v{vT[m]}, v{t}, v{t+1}")
        E(f"v_add_u32 v{vT[m]}, s6, v{vT[m]}")
        E(f"v_and_b32 v{t}, 15, v{vL}")
        E(f"v_lshl_add_u32 v{vS[m]}, v{t}, 4, v{vS[m]}")
    E(f"s_mul_i32 s4, s{sW}, {200*1024}")
    E(f"s_lshr_b32 s5, s{sU}, 2")
    E(f"s_mul_i32 s5, s5, 5120")
    E(f"s_add_u32 s4, s4, s5")
    E(f"s_and_b32 s5, s{sU}, 3")
    E(f"s_lshl_b32 s5, s5, 8")
    E(f"s_add_u32 s4, s4, s5")
    E(f"s_add_u32 s4, s4, {G.PWO_BASE}")
    E(flag_addr(7, sU, G.FLAGC_BASE, 5))
    E.wait_vm()
    for m in range(3):
        for a in range(2): E(f"ds_read_b64_tr_b16 {v(D+4*m+2*a,2)}, v{vT[m]} offset:{1280*a}")
    for m in range(3):
        if m == 2:
            E.wait_lg()
            E("s_mov_b32 exec_hi, 0")
        E(f"buffer_store_dwordx4 {v(D+4*m,4)}, v{vS[m]}, s[{rWS}:{rWS+3}], s4 offen sc1")
    E("s_mov_b64 exec, -1")
    nld = G.nonce_load(E, vNon)
    G.nonce_get(E, nld, vNon)
    E.wait_vm()
    E("s_barrier")
    put_flag(E, G, sW, vNon, 7)
    E("s_endpgm")

def gen_A(E, G):
    f32, Alloc, srd, spin, newlabel = G.f32, G.Alloc, G.srd, G.spin, G.newlabel
    rWS, rOUT, rDBG, rIN, rW, rPHI = G.rWS, G.rOUT, G.rDBG, G.rIN, G.rW, G.rPHI
    sN = G.sN
    G.fresh(E)
    ST = G.Stamps(24)
    sW, sR, sP, sPQ, sTBo, sCT, sROT = 76, 77, 78, 79, 80, 81, 82
    sT0, sT1, sT2 = 4, 5, 6
    sWO, sXO, sWE, sXE = 84, 85, 86, 87
    sW4, sXR, sH, sFT = 88, 89, 90, 91
    sPS, sOS, sFO, sPL, sOL, sWL, sFC, sOUT, sFP, sF1, sF2 = 96, 97, 98, 99, 100, 101, 45, 46, 92, 47, 3
    XR = 49152
    TAB = 36864; ZTAB = TAB + 3200; KVT = 45056; ZKV = ZTAB
    def wslot(sig): return 16384 * ((sig + 1) % 3)
    E(f"s_setprio {G.APRIO}")
    A = Alloc(1, 256)
    vL = A(); vHH = A(); vL16 = A()
    ACC = A(64, 4)
    WF = A(32, 4)
    XF = A(32, 4)
    PF = A(48, 4)
    TM = A(36, 4)
    ID = A(4, 4)
    vXo = [A() for _ in range(4)]
    vWo = [A() for _ in range(4)]
    vWt = [A() for _ in range(4)]
    vXrs = [A() for _ in range(4)]
    MP = A(); vMn = A(); vNon = A()
    vPk = A(); vVw = A(); vA = A(); vB = A(); vS1 = A(); vS2 = A(); vPi = A(); vKa = A(); vO1 = A(); vO3 = A(); vC4 = A()
    vRw = A(); vSo = [A() for _ in range(3)]
    vFl = A(); vFc = A()
    vt = [TM + 20 + i for i in range(12)]
    vG, vC, vGam, vR4 = vt[8], vt[9], vt[10], vt[11]
    E(f"v_and_b32 v{vL}, 63, v0")
    E(f"v_lshrrev_b32 v{vt[0]}, 6, v0")
    E(f"v_lshrrev_b32 v{vG}, 4, v{vL}")
    E(f"v_readfirstlane_b32 s{sW}, v{vt[0]}")
    E(f"s_and_b32 s{sT0}, s2, 7")
    E(f"s_lshr_b32 s{sT1}, s2, 3")
    E(f"s_lshr_b32 s{sCT}, s{sT1}, 2")
    E(f"s_and_b32 s{sT1}, s{sT1}, 3")
    E(f"s_lshl_b32 s{sTBo}, s{sT0}, 2")
    E(f"s_add_u32 s{sTBo}, s{sTBo}, s{sT1}")
    E(f"s_lshr_b32 s{sR}, s{sT0}, 1")
    E(f"s_lshl_b32 s{sR}, s{sR}, 2")
    E(f"s_add_u32 s{sR}, s{sR}, s{sT1}")
    E(f"s_lshl_b32 s{sT2}, s{sCT}, 2")
    E(f"s_lshr_b32 s{sT2}, 0x64317520, s{sT2}")
    E(f"s_and_b32 s{sT2}, s{sT2}, 7")
    E(f"s_and_b32 s{sP}, s{sT0}, 1")
    E(f"s_lshl_b32 s{sP}, s{sP}, 3")
    E(f"s_add_u32 s{sP}, s{sP}, s{sT2}")
    E(f"s_xor_b32 s{sPQ}, s{sP}, 1")
    if "--newrot" not in sys.argv:
        E(f"s_mul_i32 s{sROT}, s{sT1}, 3")
        E(f"s_add_u32 s{sROT}, s{sROT}, s{sT2}")
        E(f"s_sub_u32 s{sT0}, s{sROT}, 10")
        E(f"s_cmp_ge_u32 s{sROT}, 10")
        E(f"s_cselect_b32 s{sROT}, s{sT0}, s{sROT}")
    else:
        E(f"s_mov_b32 s14, 0x97453618"); E(f"s_mov_b32 s15, 0x21984036")
        E(f"s_bitcmp1_b32 s{sT1}, 1")
        E(f"s_cselect_b32 s14, 0x30219857, s14"); E(f"s_cselect_b32 s15, 0x85362704, s15")
        E(f"s_lshl_b32 s{sROT}, s{sT1}, 3")
        E(f"s_add_u32 s{sROT}, s{sROT}, s{sT2}")
        E(f"s_lshl_b32 s{sROT}, s{sROT}, 2")
        E(f"s_lshr_b64 s[14:15], s[14:15], s{sROT}")
        E(f"s_and_b32 s{sROT}, s14, 15")
    E(f"s_mul_i32 s{sT0}, s{sPQ}, 80")
    E(f"s_mul_i32 s{sT1}, s{sP}, 80")
    E(f"s_sub_u32 s{sT2}, s{sT1}, s{sT0}")
    E(f"s_add_u32 s{sT2}, s{sT2}, {1280-80}")
    for m in range(4):
        if m: E(f"v_add_u32 v{vt[0]}, {64*m}, v{vL}")
        ci = vt[0] if m else vL
        if m == 3: E(f"v_min_u32 v{vt[0]}, 239, v{vt[0]}")
        E(f"v_mul_u32_u24 v{vt[1]}, 0x1112, v{ci}")
        E(f"v_lshrrev_b32 v{vt[1]}, 16, v{vt[1]}")
        E(f"v_mul_u32_u24 v{vt[2]}, 15, v{vt[1]}")
        E(f"v_sub_u32 v{vt[2]}, v{ci}, v{vt[2]}")
        E(f"v_and_b32 v{vt[3]}, 3, v{vt[1]}")
        E(f"v_lshrrev_b32 v{vt[1]}, 2, v{vt[1]}")
        E(f"v_lshl_add_u32 v{vt[1]}, v{vt[3]}, 2, v{vt[1]}")
        E(f"v_cmp_lt_u32 vcc, 4, v{vt[2]}")
        E(f"v_mul_u32_u24 v{vt[1]}, 3840, v{vt[1]}")
        E(f"v_lshl_add_u32 v{vt[1]}, v{vt[2]}, 4, v{vt[1]}")
        E(f"v_add_u32 v{vt[3]}, s{sT2}, v{vt[1]}")
        E(f"v_cndmask_b32 v{vt[1]}, v{vt[1]}, v{vt[3]}, vcc")
        E(f"v_cmp_lt_u32 vcc, 9, v{vt[2]}")
        E(f"v_add_u32 v{vt[3]}, 1200, v{vt[1]}")
        E(f"v_cndmask_b32 v{vt[1]}, v{vt[1]}, v{vt[3]}, vcc")
        E(f"v_add_u32 v{vWo[m]}, {3072 - 1024*m}, v{vt[1]}")
    E(f"v_lshrrev_b32 v{vt[0]}, 3, v{vL}")
    E(f"v_and_b32 v{vt[1]}, 7, v{vL}")
    E(f"v_xor_b32 v{vt[1]}, v{vt[1]}, v{vG}")
    E(f"v_mul_u32_u24 v{vt[0]}, 1280, v{vt[0]}")
    E(f"v_lshl_add_u32 v{vXo[0]}, v{vt[1]}, 4, v{vt[0]}")
    E(f"v_xor_b32 v{vt[1]}, 4, v{vt[1]}")
    E(f"v_lshl_add_u32 v{vXo[1]}, v{vt[1]}, 4, v{vt[0]}")
    E(f"v_add_u32 v{vXo[2]}, {2*(8*1280-1024)}, v{vXo[0]}")
    E(f"v_add_u32 v{vXo[3]}, {3*(8*1280-1024)}, v{vXo[1]}")
    E(f"v_add_u32 v{vXo[1]}, {1*(8*1280-1024)}, v{vXo[1]}")
    E(f"s_mul_i32 s{sWE}, s{sW}, {16*3840}")
    E(f"s_add_u32 s{sWE}, s{sWE}, s{sT0}")
    E(f"s_mul_i32 s{sWO}, s{sROT}, {64*3840}")
    E(f"s_add_u32 s{sWO}, s{sWO}, s{sWE}")
    E(f"s_add_u32 s{sWE}, s{sWE}, {640*3840}")
    E(f"s_lshl_b32 s{sXE}, s{sR}, 2")
    E(f"s_add_u32 s{sXE}, s{sXE}, s{sW}")
    E(f"s_mul_i32 s{sXE}, s{sXE}, {32*1280}")
    E(f"s_lshl_b32 s{sXO}, s{sROT}, 7")
    E(f"s_add_u32 s{sXO}, s{sXO}, s{sXE}")
    E(f"s_add_u32 s{sXE}, s{sXE}, 1280")
    E(f"s_lshl_b32 s{sW4}, s{sW}, 12")
    E(f"s_lshl_b32 s{sXR}, s{sW}, 13")
    E(f"s_add_u32 s{sXR}, s{sXR}, {XR}")
    E.wait_lg()
    ST(E, "start")
    if "--noA" in sys.argv:
        srd(E, rWS, G.pWS, G.WS_SIZE)
        ST(E, "end")
        ST.dump(E, sW, ACC)
        E("s_endpgm")
        return ST
    E(f"s_sub_u32 s{G.pW}, s{G.pW}, 3072")
    E(f"s_subb_u32 s{G.pW+1}, s{G.pW+1}, 0")
    srd(E, rW, G.pW, 2457600 + 3072)
    srd(E, rIN, G.pX, 2621440)

    PACE = int(([a[7:] for a in sys.argv if a.startswith('--pace=')] + ['0'])[0])
    def dmaW(sig):
        L = []
        for m in range(4):
            g = []
            if m == 0: g.append(f"s_add_u32 m0, s{sW4}, {wslot(sig)}")
            if PACE and sig < 2: g.append(lambda E: E._wait(vm=PACE) if len(E.vmq) > PACE else None)
            g.append(("tag", f"buffer_load_dwordx4 v{vWo[m]}, s[{rW}:{rW+3}], s{sWO} offen offset:{1024*m} lds", f"S{sig}"))
            if m == 3: g += [f"s_add_u32 s{sWO}, s{sWO}, {64*3840}", f"s_cmp_ge_u32 s{sWO}, s{sWE}", f"s_cselect_b32 s9, {640*3840}, 0", f"s_sub_u32 s{sWO}, s{sWO}, s9"]
            L.append(("group", g))
        return L
    def dmaX(sig):
        L = []
        for i in range(4):
            g = []
            if i == 0: g.append(f"s_add_u32 m0, s{sXR}, {4096*(sig%2)}")
            if PACE and sig < 2: g.append(lambda E: E._wait(vm=PACE) if len(E.vmq) > PACE else None)
            g.append(("tag", f"buffer_load_dwordx4 v{vXo[i]}, s[{rIN}:{rIN+3}], s{sXO} offen offset:{1024*i} lds", f"S{sig}"))
            if i == 3: g += [f"s_add_u32 s{sXO}, s{sXO}, 128", f"s_cmp_ge_u32 s{sXO}, s{sXE}", f"s_cselect_b32 s9, 1280, 0", f"s_sub_u32 s{sXO}, s{sXO}, s9"]
            L.append(("group", g))
        return L
    ORD = ([a[6:] for a in sys.argv if a.startswith('--ord=')] + ['wx'])[0]
    if ORD == "touch":
        E(f"buffer_load_dword v{ACC}, off, s[{rIN}:{rIN+3}], s{sXO}")
        E(f"s_mov_b32 s9, {2200000}")
        E(f"buffer_load_dword v{ACC+1}, off, s[{rW}:{rW+3}], s9")
        E(f"buffer_load_dword v{ACC+2}, off, s[{rW}:{rW+3}], 0 offset:3072")
    if ORD == "xw": E(dmaX(0)); E(dmaW(0))
    elif ORD == "mix":
        w_, x_ = dmaW(0), dmaX(0)
        for a_, b_ in zip(x_, w_):
            E(f"s_add_u32 m0, s{sXR}, 0"); E([a_]); E(f"s_add_u32 m0, s{sW4}, {wslot(0)}"); E([b_])
    else: E(dmaW(0)); E(dmaX(0))
    srd(E, rPHI, G.pPHI, 25600)
    vPhi = TM + 18
    E(f"v_lshlrev_b32 v{vPhi}, 4, v0")
    E(f"v_cmp_gt_u32 vcc, 200, v0")
    E(f"v_mov_b32 v{vPhi+1}, 0x100000")
    E(f"s_lshr_b32 s{sT0}, s{sP}, 1")
    E(f"s_mul_i32 s{sT0}, s{sT0}, 3200")
    E(f"v_cndmask_b32 v{vPhi+1}, v{vPhi+1}, v{vPhi}, vcc")
    E(f"buffer_load_dwordx4 {v(TM,4)}, v{vPhi+1}, s[{rPHI}:{rPHI+3}], s{sT0} offen")
    E(dmaW(1)); E(dmaX(1))
    srd(E, rWS, G.pWS, G.WS_SIZE)
    PN = TM + 32
    for i in range(4): E(f"v_mov_b32 v{PN+i}, -1")
    E(f"v_lshlrev_b32 v{vL16}, 4, v{vL}")
    E(f"s_lshl_b32 s{sPL}, s{sPQ}, 16")
    E(f"s_add_u32 s{sPL}, s{sPL}, {G.P_BASE}")
    E(f"s_lshl_b32 s{sPS}, s{sP}, 4")
    E(f"s_add_u32 s{sPS}, s{sPS}, s{sR}")
    E(f"s_lshl_b32 s{sPS}, s{sPS}, 12")
    E(f"s_add_u32 s{sPS}, s{sPS}, {G.P_BASE}")
    E(f"s_lshl_b32 s{sT0}, s{sW}, 10")
    E(f"s_add_u32 s95, s{sT0}, s{sPS}")
    srd(E, rDBG, G.pDBG, 256)
    srd(E, rOUT, G.pOUT, 5242880)
    E(f"v_and_b32 v{vC}, 15, v{vL}")
    E(f"v_bfe_u32 v{vGam}, v{vL}, 4, 1")
    E(f"v_bfe_u32 v{vt[0]}, v{vL}, 1, 1")
    E(f"v_lshl_add_u32 v{vGam}, v{vGam}, 1, v{vt[0]}")
    E(f"v_bfe_u32 v{vR4}, v{vL}, 2, 2")
    E(f"v_lshrrev_b32 v{vHH}, 5, v{vL}")
    E(f"v_lshlrev_b32 v{vt[0]}, 3, v{vGam}")
    E(f"v_and_b32 v{vt[1]}, 1, v{vL}")
    E(f"v_mul_u32_u24 v{vt[1]}, 5, v{vt[1]}")
    E(f"v_lshl_add_u32 v{vt[2]}, v{vR4}, 1, v{vHH}")
    E(f"v_mul_u32_u24 v{vt[2]}, 480, v{vt[2]}")
    for T in range(4):
        pk = sum((30 if e is None else 10 * e[0] + e[1]) << (8 * i) for i, e in enumerate(TA[T]))
        E(f"s_mov_b32 s9, {pk}")
        E(f"v_bfe_u32 v{vt[3]}, s9, v{vt[0]}, 8")
        E(f"v_add_u32 v{vt[3]}, v{vt[3]}, v{vt[1]}")
        E(f"v_min_u32 v{vt[3]}, 31, v{vt[3]}")
        E(f"v_lshl_add_u32 v{vWt[T]}, v{vt[3]}, 3, v{vt[2]}")
    E(f"v_and_b32 v{vt[0]}, 31, v{vL}")
    E(f"v_bfe_u32 v{vt[1]}, v{vL}, 1, 3")
    E(f"v_xor_b32 v{vt[1]}, v{vt[1]}, v{vHH}")
    E(f"v_lshlrev_b32 v{vt[0]}, 7, v{vt[0]}")
    E(f"v_lshl_add_u32 v{vt[0]}, v{vt[1]}, 4, v{vt[0]}")
    for j in range(4):
        E(f"v_xor_b32 v{vXrs[j]}, {32*j}, v{vt[0]}")
        E(f"v_add_u32 v{vXrs[j]}, s{sXR}, v{vXrs[j]}")
    E(f"s_and_b32 s{sH}, s{sW}, 1")
    E(f"s_lshr_b32 s{sFT}, s{sW}, 1")
    E(f"s_mov_b32 s94, {f32(math.log2(math.e))}")
    vPa = [TM + 16, TM + 17]
    E(f"v_mul_u32_u24 v{vt[0]}, 800, v{vHH}")
    E(f"v_mul_u32_u24 v{vt[1]}, 40, v{vR4}")
    E(f"v_lshl_add_u32 v{vt[1]}, v{vGam}, 3, v{vt[1]}")
    E(f"v_and_b32 v{vt[2]}, 1, v{vL}")
    E(f"v_cmp_eq_u32 vcc, v{vt[2]}, v{vHH}")
    for i, sp in enumerate((sP, sPQ)):
        E(f"s_and_b32 s{sT0}, s{sp}, 1")
        E(f"s_mul_i32 s{sT0}, s{sT0}, 1600")
        E(f"v_add3_u32 v{vt[3]}, v{vt[0]}, v{vt[1]}, s{sT0}")
        E(f"v_mov_b32 v{vPa[i]}, 3200")
        E(f"v_cndmask_b32 v{vPa[i]}, v{vPa[i]}, v{vt[3]}, vcc")
    E(f"v_lshlrev_b32 v{vPhi+1}, 2, v0")
    E(f"v_mov_b32 v{TM+4}, 0")
    if "--zop" in sys.argv:
        E(f"v_mov_b32 v{PF+16}, 0"); E(f"v_mov_b32 v{PF+17}, 0")
    for i in range(2):
        for t in range(2):
            E(f"v_mov_b32 v{PF+24*i+16+4*t+2}, 0"); E(f"v_mov_b32 v{PF+24*i+16+4*t+3}, 0")
    E(f"v_mul_u32_u24 v{vPk}, 80, v{vL}")
    E(f"v_add_u32 v{vPk}, s{sXR}, v{vPk}")
    E(f"v_mul_u32_u24 v{vVw}, 48, v{vL}")
    E(f"v_add_u32 v{vVw}, s{sXR}, v{vVw}")
    E(f"v_lshl_add_u32 v{vt[0]}, v{vHH}, 3, v{vR4}")
    E(f"v_bfe_u32 v{vt[1]}, v{vL}, 4, 1")
    E(f"v_lshlrev_b32 v{vt[1]}, 2, v{vt[1]}")
    E(f"v_and_b32 v{vt[2]}, 1, v{vL}")
    E(f"v_lshl_add_u32 v{vt[2]}, v{vt[2]}, 1, v{vt[1]}")
    E(f"v_bfe_u32 v{vt[3]}, v{vL}, 1, 1")
    E(f"v_add_u32 v{vt[2]}, v{vt[2]}, v{vt[3]}")
    E(f"v_mul_u32_u24 v{vA}, 80, v{vt[0]}")
    E(f"v_lshl_add_u32 v{vA}, v{vt[2]}, 3, v{vA}")
    E(f"s_mul_i32 s{sT0}, s{sH}, 2560")
    E(f"s_lshl_b32 s{sT1}, s{sFT}, 6")
    E(f"s_add_u32 s{sT0}, s{sT0}, s{sT1}")
    E(f"s_add_u32 s{sT0}, s{sT0}, {XR}")
    E(f"v_add_u32 v{vA}, s{sT0}, v{vA}")
    E(f"v_and_b32 v{vt[2]}, 3, v{vL}")
    E(f"v_add_u32 v{vt[2]}, v{vt[2]}, v{vt[1]}")
    E(f"v_mul_u32_u24 v{vB}, 48, v{vt[0]}")
    E(f"v_lshl_add_u32 v{vB}, v{vt[2]}, 3, v{vB}")
    E(f"s_mul_i32 s{sT0}, s{sH}, 1536")
    E(f"s_add_u32 s{sT0}, s{sT0}, {XR+5120}")
    E(f"v_add_u32 v{vB}, s{sT0}, v{vB}")
    E(f"v_and_b32 v{vt[0]}, 31, v{vL}")
    E(f"s_lshl_b32 s{sT0}, s{sH}, 4")
    E(f"v_add_u32 v{vt[1]}, s{sT0}, v{vt[0]}")
    E(f"v_subrev_u32 v{vt[2]}, 20, v{vt[1]}")
    E(f"v_min_u32 v{vt[1]}, v{vt[1]}, v{vt[2]}")
    E(f"v_cmp_gt_u32 vcc, 20, v{vt[0]}")
    E(f"v_mov_b32 v{vt[3]}, 0x4000000")
    E(f"v_cndmask_b32 v{vt[1]}, v{vt[0]}, v{vt[1]}, vcc")
    E(f"v_lshlrev_b32 v{vt[1]}, 4, v{vt[1]}")
    E(f"v_cmp_gt_u32 vcc, 24, v{vt[0]}")
    E(f"s_cmp_eq_u32 s{sFT}, 0")
    E(f"s_mov_b32 s9, 0x4000000")
    E(f"s_cselect_b32 s{sT0}, 384, s9")
    E(f"s_cselect_b32 s{sT1}, 768, s9")
    E(f"v_cndmask_b32 v{vt[1]}, v{vt[3]}, v{vt[1]}, vcc")
    E(f"v_mul_lo_u32 v{vS1}, v{vHH}, s{sT0}")
    E(f"v_add_u32 v{vS1}, v{vS1}, v{vt[1]}")
    E(f"v_add_u32 v{vS2}, s{sT1}, v{vS1}")
    E(f"s_mul_i32 s{sT0}, s{sH}, 1920")
    E(f"s_mul_i32 s{sT1}, s{sFT}, 1536")
    E(f"s_add_u32 s{sPS}, s{sPS}, s{sT0}")
    E(f"s_add_u32 s{sPS}, s{sPS}, s{sT1}")
    E(f"v_min_u32 v{vPi}, 239, v0")
    E(f"v_lshlrev_b32 v{vPi}, 4, v{vPi}")
    E(f"v_bfe_u32 v{vt[0]}, v{vL}, 3, 2")
    E(f"v_and_b32 v{vt[1]}, 3, v{vL}")
    E(f"v_lshl_add_u32 v{vt[0]}, v{vt[0]}, 2, v{vt[1]}")
    E(f"v_mul_u32_u24 v{vt[1]}, 1920, v{vHH}")
    E(f"v_lshl_add_u32 v{vt[2]}, v{vt[0]}, 4, v{vt[1]}")
    E(f"v_add_u32 v{vt[2]}, {KVT}, v{vt[2]}")
    E(f"v_bfe_u32 v{vt[1]}, v{vL}, 2, 1")
    E(f"v_cmp_eq_u32 vcc, v{vt[1]}, v{vHH}")
    E(f"v_mov_b32 v{vKa}, {ZKV}")
    E(f"v_cndmask_b32 v{vKa}, v{vKa}, v{vt[2]}, vcc")
    E(f"v_cndmask_b32 v{vt[0]}, 64, v{vt[0]}, vcc")
    E(f"v_and_b32 v{vt[1]}, 1, v{vt[0]}")
    E(f"v_lshlrev_b32 v{vt[1]}, 4, v{vt[1]}")
    E(f"v_mov_b32 v{vt[2]}, 0x3f80")
    E(f"v_lshlrev_b32 v{vt[1]}, v{vt[1]}, v{vt[2]}")
    E(f"v_lshrrev_b32 v{vt[0]}, 1, v{vt[0]}")
    for i in range(4):
        E(f"v_cmp_eq_u32 vcc, {i}, v{vt[0]}")
        E(f"v_cndmask_b32 v{ID+i}, 0, v{vt[1]}, vcc")
    E(f"v_and_b32 v{vt[1]}, 1, v{vG}")
    E(f"v_mul_u32_u24 v{vt[1]}, 20480, v{vt[1]}")
    E(f"v_lshl_add_u32 v{vt[1]}, v{vC}, 4, v{vt[1]}")
    E(f"v_mul_u32_u24 v{vO1}, 768, v{vHH}")
    E(f"v_add_u32 v{vO1}, v{vO1}, v{vt[1]}")
    E(f"v_lshl_add_u32 v{vO3}, v{vHH}, 26, v{vt[1]}")
    E(f"s_lshl_b32 s{sT0}, s{sR}, 2")
    E(f"s_add_u32 s{sT0}, s{sT0}, s{sW}")
    E(f"s_mul_i32 s{sT0}, s{sT0}, 40960")
    E(f"s_mul_i32 s{sT1}, s{sPQ}, 1280")
    E(f"s_add_u32 s{sT0}, s{sT0}, s{sT1}")
    E(f"s_add_u32 s{sOS}, s{sT0}, {G.O_BASE}")
    E(f"v_lshlrev_b32 v{vC4}, 2, v{vC}")
    E(f"s_lshl_b32 s{sFO}, s{sTBo}, 3")
    E(f"s_add_u32 s{sFO}, s{sFO}, s{sCT}")
    E(f"s_lshl_b32 s{sFO}, s{sFO}, 2")
    E(f"s_add_u32 s{sFO}, s{sFO}, s{sW}")
    E(f"s_lshl_b32 s{sFO}, s{sFO}, 7")
    E(f"s_add_u32 s{sFO}, s{sFO}, {G.FLAGO_BASE}")
    E(f"s_mul_i32 s{sOL}, s{sTBo}, 81920")
    E(f"s_mul_i32 s{sT0}, s{sW}, 5120")
    E(f"s_add_u32 s{sOL}, s{sOL}, s{sT0}")
    E(f"s_add_u32 s{sOL}, s{sOL}, {G.O_BASE}")
    E(f"s_lshl_b32 s{sWL}, s{sCT}, 2")
    E(f"s_add_u32 s{sWL}, s{sWL}, s{sW}")
    E(f"s_mul_i32 s{sWL}, s{sWL}, 25600")
    E(f"s_add_u32 s{sWL}, s{sWL}, {G.PWO_BASE}")
    E(f"v_mul_u32_u24 v{vRw}, 160, v{vC}")
    E(f"v_mul_u32_u24 v{vt[1]}, 40, v{vG}")
    E(f"s_mul_i32 s93, s{sW}, 2560")
    E(f"s_add_u32 s{sT0}, s93, 30720")
    E(f"v_add3_u32 v{vRw}, v{vRw}, v{vt[1]}, s{sT0}")
    for m in range(3):
        E(f"v_add_u32 v{vt[0]}, {64*m}, v{vL}")
        E(div_const(vt[1], vt[0], 10))
        E(f"v_mul_u32_u24 v{vt[1]}, 2400, v{vt[1]}")
        E(f"v_lshl_add_u32 v{vSo[m]}, v{vt[0]}, 4, v{vt[1]}")
    E(f"s_add_u32 s22, s{sW}, s{sCT}")
    E(f"s_and_b32 s22, s22, 3")
    E(f"s_lshl_b32 s{sOUT}, s{sTBo}, 2")
    E(f"s_add_u32 s{sOUT}, s{sOUT}, s22")
    E(f"s_mul_i32 s{sOUT}, s{sOUT}, {16*2560}")
    E(f"s_mul_i32 s{sT1}, s{sCT}, 160")
    E(f"s_add_u32 s{sOUT}, s{sOUT}, s{sT1}")
    E(f"s_lshl_b32 s{sF1}, s{sP}, 13")
    E(G.word_off(sF1, sR, 2, sT1))
    E(f"s_add_u32 s{sF1}, s{sF1}, {G.FLAGW_BASE}")
    E(f"s_lshl_b32 s{sFP}, s{sPQ}, 4")
    E(f"s_add_u32 s{sFP}, s{sFP}, s{sR}")
    E(f"s_lshl_b32 s{sFP}, s{sFP}, 9")
    E(f"s_add_u32 s{sFP}, s{sFP}, {G.FLAGW_BASE}")
    E(f"s_lshl_b32 s{sF2}, s{sR}, 1")
    E(f"s_add_u32 s{sF2}, s{sF2}, s{sFT}")
    E(f"s_lshl_b32 s{sF2}, s{sF2}, 12")
    E(G.word_off(sF2, sPQ, 2, sT1))
    E(f"s_add_u32 s{sF2}, s{sF2}, {G.FLAGO_BASE}")
    E(f"s_lshl_b32 s{sT1}, s{sW}, 7")
    E(f"s_add_u32 s{sFP}, s{sT1}, s{sFP}")
    for sa in (sFP, sFO): E(f"s_buffer_load_dword s23, s[{rWS}:{rWS+3}], s{sa} glc")
    vCo = TM + 15
    E(f"s_mul_i32 s{sT0}, s{sW}, 20")
    E(f"v_min_u32 v{vt[0]}, 19, v{vL}")
    E(f"v_add_u32 v{vt[0]}, s{sT0}, v{vt[0]}")
    E(f"v_lshrrev_b32 v{vt[1]}, 3, v{vt[0]}")
    E(f"v_and_b32 v{vt[0]}, 7, v{vt[0]}")
    E(f"v_lshlrev_b32 v{vt[0]}, 2, v{vt[0]}")
    E(f"v_lshl_add_u32 v{vCo}, v{vt[1]}, 7, v{vt[0]}")
    E(f"s_mov_b32 s{sFC}, {G.FLAGC_BASE}")
    GO = int(([a[5:] for a in sys.argv if a.startswith('--go=')] + ['7'])[0])
    OLDGO = any(a in sys.argv for a in ("--slab=4", "--slab=5", "--slab=6"))
    if OLDGO:
        E(f"s_lshl_b32 s39, s2, 7")
        E(f"s_add_u32 s39, s39, {G.FLAGG_BASE}")
        E(f"s_cmp_lg_u32 s{sW}, 0")
        E(f"s_cselect_b32 s39, {G.WS_SIZE}, s39")
    else:
        E(f"s_lshl_b32 s39, s2, 2")
        E(f"s_add_u32 s39, s39, s{sW}")
        E(f"s_lshl_b32 s39, s39, 7")
        E(f"s_add_u32 s39, s39, {G.FLAG_BASE + 32}")
        E(f"s_cmp_ge_u32 s2, {G.NB}")
        E(f"s_cselect_b32 s39, {G.WS_SIZE}, s39")
        E(f"v_and_b32 v{vFl}, 4, v{vC4}")
    sWk = [16, 17, 18, 19, 20]; sKo = [40, 41, 42, 43, 44]
    E(f"s_and_b32 s{sT0}, s{sTBo}, 3")
    for k in range(5):
        E(f"s_lshl_b32 s{sKo[k]}, s{sT0}, 10")
        E(f"s_mul_i32 s{sWk[k]}, s{sT0}, 5120")
        E(f"s_add_u32 s{sWk[k]}, s{sWk[k]}, s{sWL}")
        if k < 4:
            E(f"s_add_u32 s{sT0}, s{sT0}, 1")
            E(f"s_cmp_eq_u32 s{sT0}, 5")
            E(f"s_cselect_b32 s{sT0}, 0, s{sT0}")

    def rdW(sig, ks):
        b = WF + 16 * (ks % 2)
        return [f"ds_read_b64_tr_b16 {v(b+4*T+2*a,2)}, v{vWt[T]} offset:{wslot(sig) + 4096*ks + 240*a}" for T in range(4) for a in range(2)]
    def rdX(sig):
        return [f"ds_read_b128 {v(XF+16*(sig%2)+4*j,4)}, v{vXrs[j]} offset:{4096*(sig%2)}" for j in range(4)]
    def mm(sig, ks):
        L = []
        for T in range(4):
            d = v(ACC + 16 * T, 16)
            if "--nomfma" in sys.argv:
                L.append(f"v_mov_b32 v{ACC+T}, v{WF+16*(ks%2)+4*T+3}"); continue
            if "--zop" in sys.argv:
                L.append(("group", [f"v_mov_b32 v{MP}, v{WF+16*(ks%2)+4*T+3}", f"{M32} {d}, {v(PF+16,4)}, {v(XF+16*(sig%2)+4*ks,4)}, {d if (sig or ks) else 0}"])); continue
            if "--swapab" in sys.argv:
                L.append(f"{M32} {d}, {v(XF+16*(sig%2)+4*ks,4)}, {v(WF+16*(ks%2)+4*T,4)}, {d if (sig or ks) else 0}"); continue
            if "--halfmfma" in sys.argv and T >= 2:
                L.append(f"v_mov_b32 v{MP}, v{WF+16*(ks%2)+4*T+3}"); continue
            if "--m16" in sys.argv:
                L.append(("group", [f"{M16} {v(ACC+16*T+4*(2*(ks%2)+e),4)}, {v(WF+16*(ks%2)+4*T,4)}, {v(XF+16*(sig%2)+4*((ks+e)%4),4)}, {v(ACC+16*T+4*(2*(ks%2)+e),4)}" for e in range(2)])); continue
            L.append(f"{M32} {d}, {v(WF+16*(ks%2)+4*T,4)}, {v(XF+16*(sig%2)+4*ks,4)}, {d if (sig or ks) else 0}")
        return L
    def weave(M, rd, vm):
        out = []
        n = (len(rd) + 2) // 3
        for i, x in enumerate(M):
            out.append(x)
            if i < 3: out += rd[n * i:n * (i + 1)]
            if i == 1 and len(vm) > 0: out.append(vm[0])
            if i == 3 and len(vm) > 1: out += vm[1:]
        return out
    wphi = [f"ds_write_b128 v{vPhi}, {v(TM,4)} offset:{TAB}", f"ds_write_b32 v{vPhi+1}, v{TM+4} offset:{TAB+4096}"]
    rphi = []
    for i in range(2):
        for c in range(3):
            for t in range(2):
                b = PF + 24 * i + 8 * c + 4 * t
                rphi.append(f"ds_read_b64_tr_b16 {v(b,2)}, v{vPa[i]} offset:{TAB + 320*c + 32*t}")
                if c < 2: rphi.append(f"ds_read_b64_tr_b16 {v(b+2,2)}, v{vPa[i]} offset:{TAB + 320*c + 160 + 32*t}")
    nld = f"buffer_load_dword v{vNon}, off, s[{rDBG}:{rDBG+3}], 0 offset:4 sc1"
    cld = f"buffer_load_dword v{vFc}, v{vCo}, s[{rWS}:{rWS+3}], s{sFC} offen sc1"
    opois = [f"buffer_store_dwordx4 {v(PN,4)}, v{vO1}, s[{rWS}:{rWS+3}], s{sOS} offen sc1",
             f"buffer_store_dwordx4 {v(PN,4)}, v{vO1}, s[{rWS}:{rWS+3}], s{sOS} offen offset:256 sc1",
             f"buffer_store_dwordx4 {v(PN,4)}, v{vO3}, s[{rWS}:{rWS+3}], s{sOS} offen offset:512 sc1"]
    allpois = [f"buffer_store_dwordx4 {v(PN,4)}, v{vL16}, s[{rWS}:{rWS+3}], s95 offen sc1"] + opois[:2] + [("tag", opois[2], "pois")]
    if "--earlypois" in sys.argv: E(allpois)
    if "--stages" in sys.argv: ST(E, "issued")
    E.wait_vm("S0")
    E("s_barrier")
    if "--stages" in sys.argv: ST(E, "B0")
    E(rdX(0)); E(rdW(0, 0))
    w2 = dmaW(2)
    E(w2[:2])
    pendW = w2[2:]
    for sig in range(10):
        xn = dmaX(sig + 2) if sig + 2 < 10 else []
        extra = [[], [], []]
        if sig == 8:
            extra = [wphi, [], []]
            pendW = [("tag", cld, "cfl")]
            if "--earlypois" not in sys.argv: xn = allpois
        if sig == 9:
            extra = [rphi[:7], rphi[7:14], rphi[14:]]
        if sig == GO: xn = xn + [None] * (3 - len(xn)) + [f"buffer_store_dword v{vNon}, off, s[{rWS}:{rWS+3}], s39 sc1" if OLDGO else f"buffer_store_dword v{vNon}, v{vFl}, s[{rWS}:{rWS+3}], s39 offen sc1"]
        xn = [x for x in xn if x is not None]
        FR = ([a[8:] for a in sys.argv if a.startswith('--front=')] + ['0'])[0]
        if FR == "1" and sig < 8:
            pendW = pendW + [("group", [("waitlg", "xr")] + xn[:2]), ("group", xn[2:])]; xn = []
        if FR == "2" and sig < 8:
            E(weave(mm(sig, 0), rdW(sig, 1) + extra[0], []))
            E(weave(mm(sig, 1), rdW(sig, 2) + extra[1], [("group", pendW[:2]), ("group", pendW[2:])]))
            E(weave(mm(sig, 2), rdW(sig, 3) + extra[2], [("group", xn[:2]), ("group", xn[2:])]))
        else:
            E(weave(mm(sig, 0), rdW(sig, 1) + extra[0], pendW))
            E(weave(mm(sig, 1), rdW(sig, 2) + extra[1], xn[:2]))
            E(weave(mm(sig, 2), rdW(sig, 3) + extra[2], xn[2:]))
        if sig < 9:
            E.wait_vm(f"S{sig+1}")
            if sig == GO - 1: G.snonce(E, vNon, issued=True)
            E.wait_lg()
            E("s_barrier")
            if "--stages" in sys.argv: ST(E, f"B{sig+1}")
            if sig == GO - 2: G.snonce_issue(E)
            wn = dmaW(sig + 3) if sig + 3 < 10 else []
            xr_ = rdX(sig + 1); xr_[-1] = ("tag", xr_[-1], "xr")
            if FR == "1":
                E(weave(mm(sig, 3), xr_[:1] + rdW(sig + 1, 0) + xr_[1:], [("group", wn[:2]), ("group", wn[2:])])); pendW = []
            elif FR == "2":
                E(weave(mm(sig, 3), xr_[:1] + rdW(sig + 1, 0) + xr_[1:], [])); pendW = wn
            else:
                E(weave(mm(sig, 3), xr_[:1] + rdW(sig + 1, 0) + xr_[1:], wn[:2]))
                pendW = wn[2:]
        else:
            E(mm(sig, 3))
    ST(E, "gemm")
    if "--gemmonly" in sys.argv:
        ST.dump(E, sW, ACC)
        E("s_endpgm")
        return ST

    def acc(sec, j):
        for T in range(4):
            for g_, e in enumerate(TA[T]):
                if e == (sec, j): return ACC + 16 * T + 4 * g_
    QB = XF
    PD = WF
    EE = TM
    def pack(sec, dst):
        return [f"v_cvt_pk_bf16_f32 v{dst+2*j+e}, v{acc(sec,j)+2*e}, v{acc(sec,j)+2*e+1}" for j in range(5) for e in range(2)]
    def premm(qb, i):
        L = []
        for c in range(3):
            for t in range(2):
                d = v(PD + 16 * t, 16)
                L.append(f"{M32} {d}, {v(PF+24*i+8*c+4*t,4)}, {v(qb+4*c,4)}, {d if c else 0}")
        return L
    def softmax(out_plus, out_minus, after_plus):
        PP = PD
        mx, mn, m = MP, vMn, MP
        L = [f"v_max3_f32 v{mx}, v{PP}, v{PP+1}, v{PP+2}", f"v_min3_f32 v{mn}, v{PP}, v{PP+1}, v{PP+2}"]
        for i in range(3, 19, 2):
            L += [f"v_max3_f32 v{mx}, v{mx}, v{PP+i}, v{PP+i+1}", f"v_min3_f32 v{mn}, v{mn}, v{PP+i}, v{PP+i+1}"]
        L += [f"v_max_f32 v{mx}, v{mx}, v{PP+19}", f"v_min_f32 v{mn}, v{mn}, v{PP+19}"]
        for sgn, dst, src, outp in ((1, EE, mx, out_plus), (-1, PP, mn, out_minus)):
            L.append(f"v_mul_f32 v{m}, s94, v{src}")
            for i in range(20):
                L.append(f"v_fma_f32 v{dst+i}, v{PP+i}, s94, -v{m}" if sgn > 0 else f"v_fma_f32 v{dst+i}, -v{PP+i}, s94, v{m}")
            for i in range(20):
                L.append(f"v_exp_f32 v{dst+i}, v{dst+i}")
                if i == 2: L.append(f"v_add_f32 v{m}, v{dst}, v{dst+1}")
                if i > 2: L.append(f"v_add_f32 v{m}, v{m}, v{dst+i-1}")
            L += [f"v_add_f32 v{m}, v{m}, v{dst+19}", f"v_rcp_f32 v{m}, v{m}"]
            for i in range(10):
                L.append(f"v_mul_f32 v{dst+2*i}, v{m}, v{dst+2*i}")
                L.append(f"v_mul_f32 v{dst+2*i+1}, v{m}, v{dst+2*i+1}")
                L.append(f"v_cvt_pk_bf16_f32 v{outp+i}, v{dst+2*i}, v{dst+2*i+1}")
            if sgn > 0: L += after_plus
        return L
    E(f"v_mov_b32 v{QB+10}, 0"); E(f"v_mov_b32 v{QB+11}, 0")
    E(pack(1, QB))
    VP = XF + 12
    QB2 = TM + 20
    side = pack(2, VP) + [f"v_mov_b32 v{VP+10}, 0x3f80", f"v_mov_b32 v{VP+11}, 0"] + \
           [f"ds_write_b128 v{vVw}, {v(VP+4*i,4)} offset:{5120+16*i}" for i in range(3)] + \
           pack(0, QB2) + [f"v_mov_b32 v{QB2+10}, 0", f"v_mov_b32 v{QB2+11}, 0"]
    E(merge(premm(QB, 0), side[:15])); E(side[15:])
    spin(E, ["s_sleep 2", cld], [f"v_cmp_ne_u32 vcc, s{sN}, v{vFc}"], "cfl")
    WOr = [ACC + 4 * i for i in range(16)] + [vXo[0], vWo[0], vWt[0]] + [XF + 20 + 4 * i for i in range(3)] + [TM + 4 * i for i in range(3)]
    assert all(r % 4 == 0 for r in WOr)
    vL4k = vVw
    NW1, NW2 = [int(x) for x in ([a[5:] for a in sys.argv if a.startswith('--wo=')] + ['14,22'])[0].split(',')]
    E(f"v_add_u32 v{vL4k}, 4096, v{vL16}")
    def wo_ld(i):
        k, T = divmod(i, 5)
        return f"buffer_load_dwordx4 {v(WOr[i],4)}, v{vL16 if T < 4 else vL4k}, s[{rWS}:{rWS+3}], s{sWk[k]} offen offset:{1024*(T%4)} sc1"
    PHK = XF + 12
    smk = softmax(PHK, PHK + 10, [f"ds_write_b128 v{vPk}, {v(PHK,4)}", f"ds_write_b128 v{vPk}, {v(PHK+4,4)} offset:16"])
    E(merge(smk[:8*NW1], [wo_ld(i) for i in range(NW1)])); E(smk[8*NW1:])
    for i in range(2, 5): E(f"ds_write_b128 v{vPk}, {v(PHK+4*i,4)} offset:{16*i}")
    ST(E, "phik")
    vPu = vFl
    H1, H2 = [int(x) for x in ([a[7:] for a in sys.argv if a.startswith('--hint=')] + ['0,1'])[0].split(',')]
    def push(cond, mask, saddr):
        skip = newlabel("nopush")
        E(cond)
        E(f"s_cbranch_scc1 {skip}")
        E(f"s_mov_b64 exec, {mask}")
        E.raw(f"    buffer_store_dword v{vNon}, v{vPu}, s[{rWS}:{rWS+3}], s{saddr} offen sc1")
        E("s_mov_b64 exec, -1")
        E.label(skip)
    E(f"v_lshlrev_b32 v{vPu}, 9, v{vL}")
    E(premm(QB2, 1))
    E.wait_vm("pois")
    E.wait_lg()
    E("s_barrier")
    ST(E, "xbar")
    KQ = [PF + 4 * i for i in range(12)] + [TM + 20 + 4 * i for i in range(4)]
    KD = XF
    def rdk(i):
        j, k2 = divmod(i, 2)
        L = []
        for a in range(2):
            L.append(f"ds_read_b64_tr_b16 {v(KQ[2*i]+2*a,2)}, v{vA} offset:{8192*j + 80*(16*k2+4*a)}")
        for a in range(2):
            L.append(f"ds_read_b64_tr_b16 {v(KQ[2*i+1]+2*a,2)}, v{vB} offset:{8192*j + 48*(16*k2+4*a)}")
        return L
    E(rdk(0) + rdk(1) + rdk(2))
    for i in range(8):
        if i == H1: push(f"s_cmp_lg_u32 s{sW}, 3", 0xffff, sF1)
        if i + 3 < 8: E(rdk(i + 3))
        d = v(KD, 16)
        E(f"{M32} {d}, {v(KQ[2*i],4)}, {v(KQ[2*i+1],4)}, {d if i else 0}")
    SFL = 60
    PH = XF
    smq = softmax(PH, PH + 10, [])
    E(smq[:10])
    KP = XF + 16
    for i in range(8):
        E(f"v_cvt_pk_bf16_f32 v{KP+i}, v{KD+2*i}, v{KD+2*i+1}")
        if i == 3: E(f"buffer_store_dwordx4 {v(KP,4)}, v{vS1}, s[{rWS}:{rWS+3}], s{sPS} offen sc1")
    E(f"buffer_store_dwordx4 {v(KP+4,4)}, v{vS2}, s[{rWS}:{rWS+3}], s{sPS} offen sc1")
    if H1 == 9: push(f"s_cmp_lg_u32 s{sW}, 0", 0xffff, sF1)
    ST(E, "T0")
    PLr = KQ
    pld = []
    E(f"s_and_b32 s21, s{sR}, 3")
    E(f"s_lshl_b32 s21, s21, 14")
    E(f"s_add_u32 s21, s21, s{sPL}")
    for r in range(16):
        pld.append(f"s_xor_b32 s9, s21, {G.P_PITCH*r}")
        pld.append(f"buffer_load_dwordx4 {v(PLr[r],4)}, v{vPi}, s[{rWS}:{rWS+3}], s9 offen sc1")
    pg = [("group", [pld[2*r], ("tag", pld[2*r+1], "part")]) for r in range(16)]
    E(merge(smq[10:-40], [wo_ld(i) for i in range(NW1, NW2)]))
    E(G.sflag_loads(sFP, 1, 4, SFL))
    E(smq[-40:])
    ok1 = newlabel("f1ok")
    E.wait_lg()
    E(G.sflag_check(4, SFL))
    E(f"s_cbranch_scc0 {ok1}")
    G.sflag_wait(E, sFP, 1, 4, SFL)
    E.label(ok1)
    E("s_barrier")
    ST(E, "f1ok")
    E(pg)
    ST(E, "phiq")
    RD_ = WF
    vCk = MP
    def reduce_items():
        L = []
        for r in range(16):
            d = v(RD_, 16); p = PLr[r]
            L.append(f"{M32} {d}, {v(ID,4)}, {v(p,4)}, {d if r else 0}")
            L.append(f"v_max3_u32 v{vCk}, v{p}, v{p+1}, {'v%d' % vCk if r else 0}")
            L.append(f"v_max3_u32 v{vCk}, v{p+2}, v{p+3}, v{vCk}")
        L.append(f"v_cmp_eq_u32 vcc, -1, v{vCk}")
        return L
    def retry(loads, check):
        ok = newlabel("rok"); sp = newlabel("rsp")
        E(f"s_cbranch_vccz {ok}")
        E.raw("    s_mov_b32 s13, 0")
        E.label(sp)
        for t in ["s_sleep 2"] + loads + ["s_add_u32 s13, s13, 1", f"s_cmp_gt_u32 s13, {G.SPIN_MAX}", f"s_cbranch_scc1 {ok}", "s_waitcnt vmcnt(0)"] + check + [f"s_cbranch_vccnz {sp}"]:
            E.raw("    " + t)
        E.label(ok)
    E(reduce_items())
    retry(pld, reduce_items())
    ST(E, "part")
    SM = WF + 16
    for e in range(4): E(f"v_cvt_pk_bf16_f32 v{SM+e}, v{RD_+2*e}, v{RD_+2*e+1}")
    E(f"ds_write_b128 v{vPi}, {v(SM,4)} offset:{KVT}")
    E.wait_lg()
    E("s_barrier")
    OD = WF
    AF = PF
    fo = [(c, t) for c in range(5) for t in (1, 0)]
    for i, (c, t) in enumerate(fo): E(f"ds_read_b128 {v(AF+4*i,4)}, v{vKa} offset:{384*c + 256*t}")
    sTile = [72, 73, 74, 75]
    vOk = [vPk, vS1, vS2, vPi, vMn]
    pre = []
    for i in range(4):
        pre += [("group", [f"s_add_u32 s9, s22, {i+1}", f"s_and_b32 s9, s9, 3", f"s_mul_i32 s{sTile[i]}, s9, 20480", f"s_add_u32 s{sTile[i]}, s{sTile[i]}, s{sOL}",
                f"s_cmp_ge_u32 s9, 2", f"s_cselect_b32 s8, 18432, 0", f"s_mul_i32 s9, s9, 15360", f"s_add_u32 s9, s9, s8",
                f"v_add_u32 v{vXrs[i]}, s9, v{vL16}"])]
    pre += [("group", [f"v_add_u32 v{vOk[k]}, s{sKo[k]}, v{vL16}" for k in range(5)])]
    om = []
    for i, (c, t) in enumerate(fo):
        d = v(OD + 16 * t, 16)
        om.append(f"{M32} {d}, {v(AF+4*i,4)}, {v(PH+4*c,4)}, {d if c else 0}")
    if H2 == 0: push(f"s_cmp_lg_u32 s{sH}, 0", 0xff, sF2)
    E(merge(om, pre))
    if H2 == 1: push(f"s_cmp_lg_u32 s{sH}, 0", 0xff, sF2)
    E(f"v_add_f32 v{MP}, {f32(1e-6)}, v{OD+20}")
    E(f"v_rcp_f32 v{MP}, v{MP}")
    OP = TM + 20
    for i in (8, 9, 0, 1, 2, 3, 4, 5, 6, 7):
        E(f"v_mul_f32 v{OD+2*i}, v{MP}, v{OD+2*i}"); E(f"v_mul_f32 v{OD+2*i+1}, v{MP}, v{OD+2*i+1}")
        E(f"v_cvt_pk_bf16_f32 v{OP+i}, v{OD+2*i}, v{OD+2*i+1}")
        if i == 0:
            E(f"v_permlane32_swap_b32 v{OP+8}, v{OP+10}"); E(f"v_permlane32_swap_b32 v{OP+9}, v{OP+11}")
            E(f"buffer_store_dwordx4 {v(OP+8,4)}, v{vO3}, s[{rWS}:{rWS+3}], s{sOS} offen offset:512 sc1")
        if i == 3: E(f"buffer_store_dwordx4 {v(OP,4)}, v{vO1}, s[{rWS}:{rWS+3}], s{sOS} offen sc1")
    E(f"buffer_store_dwordx4 {v(OP+4,4)}, v{vO1}, s[{rWS}:{rWS+3}], s{sOS} offen offset:256 sc1")
    if H2 == 9: push(f"s_cmp_lg_u32 s{sH}, 0", 0xff, sF2)
    ST(E, "opub")
    for i in range(NW2, 25): E(wo_ld(i))
    OFr = [PF + 4 * i for i in range(12)] + [WF + 4 * i for i in range(8)]
    OA = [[XF + 4 * T for T in range(5)], [TM + 12 + 4 * T for T in range(5)]]
    G.sflag_wait(E, sFO, 1, 4, SFL)
    ST(E, "f2ok")
    def o_ld(i):
        return [f"buffer_load_dwordx4 {v(OFr[5*i+k],4)}, v{vOk[k]}, s[{rWS}:{rWS+3}], s{sTile[i]} offen sc1" for k in range(5)]
    for i in range(4):
        for t in o_ld(i): E(t, tag=f"of{i}")
    pend = []
    def chk_of(i):
        rg = [OFr[5 * i + k] + e for k in range(5) for e in range(4)]
        return [f"v_max_u32 v{MP}, v{rg[0]}, v{rg[1]}"] + [f"v_max3_u32 v{MP}, v{MP}, v{rg[e]}, v{rg[e+1]}" for e in range(2, 20, 2)] + [f"v_cmp_eq_u32 vcc, -1, v{MP}"]
    E(chk_of(0))
    for i in range(4):
        retry(sum([o_ld(k) for k in range(i, 4)], []), chk_of(i))
        if i == 0: ST(E, "ofr")
        M = []
        for k in range(5):
            for T in range(5):
                d = v(OA[i % 2][T], 4)
                M.append(f"{M16} {d}, {v(WOr[5*k+T],4)}, {v(OFr[5*i+k],4)}, {d if k else 0}")
        E(M[:4]); E(merge(M[4:14], pend)); E(merge(M[14:], chk_of(i + 1) if i < 3 else []))
        pend = [f"ds_write_b128 v{vXrs[i]}, {v(OA[i%2][T],4)} offset:{5120*i + 1024*T}" for T in range(5)] if i < 3 else []
    ST(E, "ogemm")
    E.wait_lg()
    E("s_barrier")
    RR = ACC
    for j in range(3):
        for T in range(5): E(f"ds_read_b128 {v(RR+20*j+4*T,4)}, v{vXrs[3]} offset:{5120*j + 1024*T}")
    RP = PF
    for j in range(3):
        for T in range(5):
            for e in (0, 2): E(f"v_pk_add_f32 {v(OA[1][T]+e,2)}, {v(OA[1][T]+e,2)}, {v(RR+20*j+4*T+e,2)}")
            if j == 2:
                E(f"v_cvt_pk_bf16_f32 v{RP+2*T}, v{OA[1][T]}, v{OA[1][T]+1}")
                E(f"v_cvt_pk_bf16_f32 v{RP+2*T+1}, v{OA[1][T]+2}, v{OA[1][T]+3}")
                E(f"ds_write_b64 v{vRw}, {v(RP+2*T,2)} offset:{8*T}")
    E(f"v_add_u32 v{vPk}, s93, v{vL16}")
    for m in range(3): E(f"ds_read_b128 {v(RP+12+4*m,4)}, v{vPk} offset:{30720 + 1024*m}")
    for m in range(3):
        if m == 2: E("s_mov_b32 exec_hi, 0")
        E(f"buffer_store_dwordx4 {v(RP+12+4*m,4)}, v{vSo[m]}, s[{rOUT}:{rOUT+3}], s{sOUT} offen {G.OUTA}")
    E("s_mov_b64 exec, -1")
    if G.PROFILE:
        E.wait_vm()
        ST(E, "end")
    PAD = [a[6:] for a in sys.argv if a.startswith("--pad=")]
    if PAD:
        E.label("L_pad")
        for t in ["s_memrealtime s[14:15]", "s_waitcnt lgkmcnt(0)", f"s_sub_u32 s14, s14, s{sN}", f"s_cmp_lt_u32 s14, {PAD[0]}", "s_cbranch_scc1 L_pad"]: E.raw("    " + t)
    ST.dump(E, sW, RP + 40)
    E("s_endpgm")
    return ST
```

```python
import math, sys
from asmlib import *
M16 = "v_mfma_f32_16x16x32_bf16"

def gen_B(E, G):
    f32, f32val, Alloc, srd, spin, newlabel, cmul, zipl = G.f32, G.f32val, G.Alloc, G.srd, G.spin, G.newlabel, G.cmul, G.zipl
    rWS, rOUT, rDBG, rIN = G.rWS, G.rOUT, G.rDBG, G.rIN
    sN = G.sN
    G.fresh(E)
    ST = G.Stamps(84)
    sW, sCG, sD, sTB, sCB, sSC, sKT, sT0, sT1, sT2 = 76, 77, 78, 79, 80, 81, 82, 4, 5, 6
    sUS, sUT, sFU, sFUp, sFY, sFYp, sUI, sYS, sYL, sYO = 64, 65, 66, 67, 68, 69, 70, 71, 72, 73
    U_IMG = 2048; KT_BASE = 18432; KT_SZ = 3072; SC_BASE = 30720; SC_SZ = 11 * 1040
    Y_OFF = 6144; Y_PITCH = SC_SZ + 144
    SIG_SZ = 136 * 17
    SIG2 = 2 * SIG_SZ; SIG2_SZ = 136 * 25
    A = Alloc(1, 256)
    vL = A(); vG = A(); vC = A()
    vt = [A() for _ in range(8)]
    big = A(160, 4)
    KG = A(32, 4)
    BN = A(16, 4)
    EPH = A(24, 4); X = Alloc(EPH, EPH + 26); A(2)
    P = [big + 124 + i for i in range(6)]
    assert P[0] == 136 and sCG == 77
    E.vmq += [(None, {("v", r)}) for r in P]
    E.lgq = [("__smem", {("s", 100), ("s", 101), ("s", 16), ("s", 17)})]
    E(f"v_and_b32 v{vL}, 63, v0")
    E(f"v_lshrrev_b32 v{vt[0]}, 6, v0")
    E(f"v_lshrrev_b32 v{vG}, 4, v{vL}")
    E(f"v_readfirstlane_b32 s{sW}, v{vt[0]}")
    E(f"v_and_b32 v{vC}, 15, v{vL}")
    E(f"s_mul_hi_u32 s{sTB}, s{sCG}, 0x33333334")
    E(f"s_mul_i32 s{sT0}, s{sTB}, 5")
    E(f"s_sub_u32 s{sCB}, s{sCG}, s{sT0}")
    vPo = vt[2]; vSo = X(); vL16 = A()
    SLAB = int(([a[7:] for a in sys.argv if a.startswith('--slab=')] + ['9'])[0])
    NWAIT = int(([a[8:] for a in sys.argv if a.startswith('--nwait=')] + ['160'])[0])
    PUBAT = int(([a[8:] for a in sys.argv if a.startswith('--pubat=')] + ['5'])[0])
    def slab_in():
        if "--xnomem" in sys.argv: return
        E("s_setprio 3")
        for i in range(4):
            E(f"s_add_u32 m0, s{sUS}, {1024*i}")
            E(f"s_add_u32 s{sT1}, s74, {4*1280*i}")
            E(f"buffer_load_dwordx4 v{vSo}, s[{rIN}:{rIN+3}], s{sT1} offen lds", tag="slab")
        E(f"s_setprio {G.BPRIO}")
    E(f"v_mul_u32_u24 v{vSo}, 1280, v{vG}")
    E(f"v_lshl_add_u32 v{vSo}, v{vC}, 4, v{vSo}")
    E(f"s_lshl_b32 s{sT0}, s{sTB}, 2")
    E(f"s_add_u32 s{sT0}, s{sT0}, s{sW}")
    E(f"s_mul_i32 s{sYO}, s{sT0}, {16*2560}")
    E(f"s_mul_i32 s{sT0}, s{sT0}, {16*1280}")
    E(f"s_lshl_b32 s{sT1}, s{sCB}, 8")
    E(f"s_add_u32 s74, s{sT0}, s{sT1}")
    E(f"s_add_u32 s{sYO}, s{sYO}, s{sT1}")
    E(f"s_add_u32 s{sYO}, s{sYO}, 1280")
    E(f"s_lshl_b32 s{sUS}, s{sW}, 12")
    E(f"s_add_u32 s{sUS}, s{sUS}, {U_IMG}")
    ST(E, "start")
    if "--noB0" not in sys.argv:
        srd(E, rIN, G.pU, 2621440)
        if SLAB in (0, 3, 5): slab_in()
    srd(E, rDBG, G.pDBG, 256)
    skip = newlabel("nonce")
    E(f"s_or_b32 s{sT0}, s{sCG}, s{sW}")
    E(f"s_cbranch_scc1 {skip}")
    E.raw("    s_or_b32 s10, s10, 1")
    E.raw(f"    v_mov_b32 v{vt[0]}, s10")
    E.raw("    s_mov_b64 exec, 1")
    E.raw(f"    buffer_store_dword v{vt[0]}, off, s[{rDBG}:{rDBG+3}], 0 offset:4 sc1")
    E.raw("    s_mov_b64 exec, -1")
    E.label(skip)
    srd(E, rWS, G.pWS, G.WS_SIZE)
    if "--noB0" in sys.argv:
        ST.dump(E, sW, big)
        E("s_endpgm")
        return ST
    srd(E, rOUT, G.pOUT, 5242880)
    E(f"s_setprio {G.BPRIO}")
    E(f"s_mul_i32 s{sSC}, s{sW}, {SC_SZ}")
    E(f"s_add_u32 s{sSC}, s{sSC}, {SC_BASE}")
    E(f"s_mul_i32 s{sKT}, s{sW}, {KT_SZ}")
    E(f"s_add_u32 s{sKT}, s{sKT}, {KT_BASE}")
    E(f"v_lshlrev_b32 v{vL16}, 4, v{vL}")
    vZ = big + 132
    E(f"v_mov_b32 v{vZ}, 0"); E(f"v_mov_b32 v{vZ+1}, 0")
    E(f"v_lshlrev_b32 v{vt[0]}, 3, v0")
    E(f"ds_write_b64 v{vt[0]}, {v(vZ,2)}")
    E(f"v_min_u32 v{vt[0]}, 8, v{vC}")
    E(f"v_lshl_add_u32 v{vt[0]}, v{vt[0]}, 2, s{sKT}")
    TA_POS = 672; TB_POS = TA_POS + 272
    for o in (0, 2 * TA_POS, 2 * TB_POS): E(f"ds_write_b32 v{vt[0]}, v{vZ} offset:{o}")
    CB = 1232
    E(f"v_lshl_add_u32 v{vt[1]}, v{vL}, 3, s{sKT}")
    E(f"ds_write_b64 v{vt[1]}, {v(vZ,2)} offset:{2*CB}")
    E(f"ds_write_b32 v{vt[0]}, v{vZ} offset:{2*CB + 512}")
    E(f"ds_write_b32 v{vt[0]}, v{vZ} offset:{2*398 - 32}")
    vLm = vt[7]
    E(f"v_lshlrev_b32 v{vt[0]}, 3, v{vG}")
    E(f"v_sub_u32 v{vLm}, v{vC}, v{vt[0]}")
    E(f"v_add_u32 v{vLm}, 33, v{vLm}")
    vLf = vt[6]; vK1 = vt[5]
    E(f"v_cvt_f32_u32 v{vLf}, v{vLm}")
    E(f"s_mov_b32 s7, 0x0202")
    E(f"s_mov_b32 s8, 0x10001")
    E(f"v_mov_b32 v{vK1}, 0x01000100")
    sel = {}; adr = {}
    for name, srep, js in (("d", 5, [3]), ("1", 9, [3, 2])):
        base = 32 * srep - 24
        vb = vt[2]
        for j in js:
            r = X(); sel[(name, j)] = r
            E(f"v_add_f32 v{vt[0]}, {f32(base + 7 - 2*j)}, v{vLf}")
            E(f"v_add_f32 v{vt[1]}, {f32(base + 6 - 2*j)}, v{vLf}")
            E(f"v_cvt_pk_bf16_f32 v{r}, v{vt[0]}, v{vt[1]}")
            if j == 3:
                E(f"v_lshrrev_b32 v{vt[3]}, 17, v{r}")
                E(f"v_lshlrev_b32 v{vt[3]}, 1, v{vt[3]}")
                E(f"v_mul_u32_u24 v{vb}, s8, v{vt[3]}")
                a = X(); adr[name] = a
                if name == "d":
                    E(f"v_and_b32 v{a}, -2, v{vLm}")
                    E(f"v_lshl_add_u32 v{a}, v{a}, 1, s{sKT}")
                    E(f"v_subrev_u32 v{a}, 16, v{a}")
                else:
                    E(f"v_lshl_add_u32 v{a}, v{vt[3]}, 1, s{sKT}")
                    E(f"v_subrev_u32 v{a}, {2*(0x4300-272)}, v{a}")
            E(f"v_sub_u32 v{r}, v{r}, v{vb}")
            E(f"v_mad_u32_u24 v{r}, v{r}, s7, v{vK1}")
    E(f"v_subrev_u32 v{vt[0]}, 9, v{vLm}")
    E(f"v_min_u32 v{vt[0]}, 31, v{vt[0]}")
    E(f"s_movk_i32 s7, 0x3f80")
    for bI, mask in enumerate((0x1ff << 15, 0x7f << 16, 0x1f << 17, 0x7 << 18)):
        E(f"s_mov_b32 s8, {mask}")
        E(f"v_lshrrev_b32 v{vt[1]}, v{vt[0]}, s8")
        for j in range(4):
            E(f"v_bfe_u32 v{vt[2]}, v{vt[1]}, {7-2*j}, 1")
            E(f"v_bfe_u32 v{vt[3]}, v{vt[1]}, {6-2*j}, 1")
            E(f"v_lshl_or_b32 v{vt[2]}, v{vt[3]}, 16, v{vt[2]}")
            E(f"v_mul_u32_u24 v{BN+4*bI+j}, s7, v{vt[2]}")
    aT = X(); aS = A(); aW = A()
    E(f"v_and_b32 v{vt[0]}, 1, v{vG}")
    E(f"v_lshrrev_b32 v{vt[1]}, 1, v{vG}")
    E(f"v_lshlrev_b32 v{vt[2]}, 3, v{vt[0]}")
    E(f"v_sub_u32 v{aT}, v{vC}, v{vt[2]}")
    E(f"v_add_u32 v{aT}, {TA_POS + 11}, v{aT}")
    E(f"v_and_b32 v{aT}, -2, v{aT}")
    E(f"v_mul_u32_u24 v{vt[2]}, 272, v{vt[1]}")
    E(f"v_add_u32 v{aT}, v{aT}, v{vt[2]}")
    E(f"v_lshl_add_u32 v{aT}, v{aT}, 1, s{sKT}")
    E(f"v_lshlrev_b32 v{vt[2]}, 1, v{vt[1]}")
    E(f"v_sub_u32 v{vt[2]}, v{vC}, v{vt[2]}")
    E(f"v_add_u32 v{vt[2]}, 13, v{vt[2]}")
    E(f"v_lshrrev_b32 v{vt[3]}, 4, v{vt[2]}")
    E(f"v_add_lshl_u32 v{aS}, v{vt[2]}, v{vt[3]}, 3")
    E(f"v_mul_u32_u24 v{vt[2]}, 272, v{vt[0]}")
    E(f"v_mul_u32_u24 v{vt[3]}, {SIG_SZ}, v{vt[1]}")
    E(f"v_add3_u32 v{aS}, v{aS}, v{vt[2]}, v{vt[3]}")
    E(f"v_add_u32 v{aS}, s{sSC}, v{aS}")
    aT2 = X(); aS2 = A()
    E(f"v_add_u32 v{aT2}, {CB + 3}, v{vC}")
    E(f"v_and_b32 v{aT2}, -2, v{aT2}")
    E(f"v_mul_u32_u24 v{vt[2]}, 68, v{vG}")
    E(f"v_add_u32 v{aT2}, v{aT2}, v{vt[2]}")
    E(f"v_lshl_add_u32 v{aT2}, v{aT2}, 1, s{sKT}")
    E(f"v_sub_u32 v{vt[2]}, v{vC}, v{vG}")
    E(f"v_add_u32 v{vt[2]}, 13, v{vt[2]}")
    E(f"v_lshrrev_b32 v{vt[3]}, 4, v{vt[2]}")
    E(f"v_add_lshl_u32 v{aS2}, v{vt[2]}, v{vt[3]}, 3")
    E(f"v_mul_u32_u24 v{vt[2]}, {SIG2_SZ}, v{vt[0]}")
    E(f"v_add3_u32 v{aS2}, v{aS2}, v{vt[2]}, s{sSC}")
    E(f"v_lshl_add_u32 v{vt[2]}, v{vC}, 2, v{vG}")
    E(f"v_lshrrev_b32 v{vt[3]}, 2, v{vC}")
    E(f"v_add_lshl_u32 v{aW}, v{vt[2]}, v{vt[3]}, 3")
    E(f"v_add_u32 v{aW}, s{sSC}, v{aW}")
    vMa = X(); vMb = X(); vMw = X()
    E(f"v_lshlrev_b32 v{vt[0]}, 1, v{vL}")
    E(f"v_add_u32 v{vt[1]}, 256, v{vt[0]}")
    E(f"v_add_u32 v{vt[2]}, {496-32}, v{vt[0]}")
    E(f"v_cmp_lt_u32 vcc, 15, v{vL}")
    E(f"v_cndmask_b32 v{vt[1]}, v{vt[1]}, v{vt[2]}, vcc")
    E(f"v_add_u32 v{vt[2]}, {1008-80}, v{vt[0]}")
    E(f"v_cmp_lt_u32 vcc, 39, v{vL}")
    E(f"v_cndmask_b32 v{vt[1]}, v{vt[1]}, v{vt[2]}, vcc")
    E(f"s_sub_u32 s{sT0}, s{sKT}, {2*(0x4300-272)}")
    for h, dst in enumerate((vMa, vMb)):
        if h: E(f"v_add_u32 v{vt[1]}, 1, v{vt[1]}")
        E(f"v_cvt_f32_u32 v{vt[2]}, v{vt[1]}")
        E(f"v_subrev_u32 v{vt[3]}, 1027, v{vt[1]}")
        E(f"v_cvt_pk_bf16_f32 v{vt[2]}, v{vt[2]}, 0")
        E(f"v_cmp_gt_u32 s[14:15], 9, v{vt[3]}")
        E(f"v_cmp_gt_u32 vcc, 526, v{vt[1]}")
        E(f"v_lshl_add_u32 v{vt[2]}, v{vt[2]}, 1, s{sT0}")
        E(f"s_or_b64 vcc, vcc, s[14:15]")
        E(f"v_mov_b32 v{dst}, s{sKT}")
        E(f"v_cndmask_b32 v{dst}, v{dst}, v{vt[2]}, vcc")
    E(f"v_lshl_add_u32 v{vMw}, v{vL}, 2, s{sKT}")
    for dst, pos in ((vMa, 2 * 652), (vMb, 2 * 656), (vMw, 2 * (CB + 48) - 544)):
        E(f"s_add_u32 s{sT1}, s{sKT}, {pos}")
        E(f"v_writelane_b32 v{dst}, s{sT1}, 63")
    a0 = [X(), X()]; a1 = [X(), X()]; a2 = X(); a3 = X()
    st = vt[2]
    E(f"v_lshlrev_b32 v{a0[0]}, 4, v{vC}")
    E(f"v_lshl_add_u32 v{a0[0]}, v{vG}, 3, v{a0[0]}")
    E(f"v_add_u32 v{a0[0]}, 32, v{a0[0]}")
    E(f"v_mov_b32 v{st}, 256")
    E(f"v_lshlrev_b32 v{vt[3]}, 3, v{vC}")
    E(f"v_add_u32 v{vt[3]}, 800, v{vt[3]}")
    E(f"v_mov_b32 v{vt[4]}, 128")
    E(f"v_cmp_eq_u32 vcc, 2, v{vG}")
    E(f"v_cndmask_b32 v{a0[0]}, v{a0[0]}, v{vt[3]}, vcc")
    E(f"v_cndmask_b32 v{st}, v{st}, v{vt[4]}, vcc")
    E(f"v_lshlrev_b32 v{vt[3]}, 2, v{vC}")
    E(f"v_add_u32 v{vt[3]}, 1056, v{vt[3]}")
    E(f"v_mov_b32 v{vt[5]}, 64")
    E(f"v_cmp_eq_u32 vcc, 3, v{vG}")
    E(f"v_cndmask_b32 v{a0[0]}, v{a0[0]}, v{vt[3]}, vcc")
    E(f"v_cndmask_b32 v{st}, v{st}, v{vt[5]}, vcc")
    E(f"v_cndmask_b32 v{a1[0]}, 4, v{vt[4]}, vcc")
    E(f"v_add_u32 v{a0[0]}, s{sKT}, v{a0[0]}")
    E(f"v_add_u32 v{a1[0]}, v{a0[0]}, v{a1[0]}")
    E(f"v_add_u32 v{a0[1]}, v{a0[0]}, v{st}")
    E(f"v_add_u32 v{a1[1]}, v{a1[0]}, v{st}")
    E(f"v_and_b32 v{vt[0]}, 1, v{vC}")
    E(f"v_mul_u32_u24 v{vt[0]}, 272, v{vt[0]}")
    E(f"v_lshrrev_b32 v{vt[1]}, 1, v{vC}")
    E(f"v_lshl_add_u32 v{vt[1]}, v{vG}, 6, v{vt[1]}")
    E(f"v_add3_u32 v{vt[0]}, v{vt[0]}, v{vt[1]}, {17}")
    E(f"v_lshl_add_u32 v{a2}, v{vt[0]}, 1, s{sKT}")
    E(f"v_lshl_add_u32 v{vt[0]}, v{vL}, 1, s{sKT}")
    E(f"v_subrev_u32 v{vt[0]}, {2*(TA_POS-656)}, v{vt[0]}")
    E(f"v_cmp_gt_u32 vcc, 2, v{vL}")
    E(f"v_cndmask_b32 v{a3}, v{a2}, v{vt[0]}, vcc")
    a4 = X(); a5 = X()
    E(f"v_and_b32 v{vt[0]}, 1, v{vC}")
    E(f"v_mul_u32_u24 v{vt[0]}, 136, v{vt[0]}")
    E(f"v_lshrrev_b32 v{vt[1]}, 1, v{vC}")
    E(f"v_add3_u32 v{vt[0]}, v{vt[0]}, v{vt[1]}, 17")
    E(f"v_lshl_add_u32 v{vt[0]}, v{vt[0]}, 1, s{sKT}")
    E(f"s_sub_u32 s{sT0}, s{sKT}, {2*(CB - TB_POS - 120)}")
    E(f"v_mov_b32 v{vt[1]}, s{sT0}")
    E(f"v_cmp_lt_u32 vcc, 47, v{vL}")
    E(f"v_cndmask_b32 v{a4}, v{vt[1]}, v{vt[0]}, vcc")
    E(f"v_cmp_lt_u32 vcc, 49, v{vL}")
    E(f"v_cndmask_b32 v{a5}, v{vt[1]}, v{vt[0]}, vcc")
    vTa = X(); vUo = X()
    E(f"v_and_b32 v{vt[0]}, 1, v{vG}")
    E(f"v_lshrrev_b32 v{vt[1]}, 1, v{vG}")
    E(f"v_lshrrev_b32 v{vt[2]}, 2, v{vC}")
    E(f"v_and_b32 v{vt[3]}, 3, v{vC}")
    E(f"v_lshl_add_u32 v{vTa}, v{vt[0]}, 3, v{vt[2]}")
    E(f"v_lshlrev_b32 v{vTa}, 8, v{vTa}")
    E(f"v_lshl_add_u32 v{vTa}, v{vt[1]}, 5, v{vTa}")
    E(f"v_lshl_add_u32 v{vTa}, v{vt[3]}, 3, v{vTa}")
    E(f"v_add_u32 v{vTa}, s{sUS}, v{vTa}")
    E(f"s_lshl_b32 s{sT0}, s{sTB}, 1")
    E(f"s_lshr_b32 s{sT1}, s{sW}, 1")
    E(f"s_add_u32 s{sT0}, s{sT0}, s{sT1}")
    E(f"v_add_u32 v{vt[3]}, s{sT0}, v{vt[3]}")
    E(f"v_and_b32 v{vt[3]}, 3, v{vt[3]}")
    E(f"v_lshl_add_u32 v{vUo}, v{vt[1]}, 2, v{vt[2]}")
    E(f"v_lshlrev_b32 v{vUo}, 14, v{vUo}")
    E(f"v_lshl_add_u32 v{vUo}, v{vt[0]}, 6, v{vUo}")
    E(f"v_lshl_add_u32 v{vUo}, v{vt[3]}, 4, v{vUo}")
    E(f"s_lshl_b32 s{sUT}, s{sCB}, 19")
    E(f"s_lshl_b32 s{sT1}, s{sTB}, 9")
    E(f"s_add_u32 s{sUT}, s{sUT}, s{sT1}")
    E(f"s_lshl_b32 s{sT1}, s{sW}, 7")
    E(f"s_add_u32 s{sUT}, s{sUT}, s{sT1}")
    E(f"s_add_u32 s{sYL}, s{sUT}, {G.YT_BASE}")
    assert G.UT_BASE == 0
    E(f"s_lshl_b32 s{sFU}, s{sCB}, 14")
    E(f"s_lshl_b32 s{sT1}, s{sTB}, 9")
    E(f"s_add_u32 s{sFYp}, s{sFU}, s{sT1}")
    E(f"s_add_u32 s{sFYp}, s{sFYp}, {G.FLAGY_BASE}")
    E(G.word_off(sFU, sTB, 3, sT1))
    E(f"s_add_u32 s{sFU}, s{sFU}, {G.FLAG_BASE}")
    E(f"s_lshl_b32 s{sFUp}, s{sCG}, 9")
    E(f"s_add_u32 s{sFUp}, s{sFUp}, {G.FLAG_BASE}")
    E(f"s_lshr_b32 s{sFY}, s{sCG}, 5")
    E(f"s_lshl_b32 s{sFY}, s{sFY}, 14")
    E(f"s_and_b32 s{sT0}, s{sCG}, 31")
    E(G.word_off(sFY, sT0, 3, sT1))
    E(f"s_add_u32 s{sFY}, s{sFY}, {G.FLAGY_BASE}")
    E(f"s_lshl_b32 s{sT1}, s{sW}, 7")
    E(f"s_add_u32 s{sFUp}, s{sFUp}, s{sT1}")
    E(f"s_add_u32 s{sFYp}, s{sFYp}, s{sT1}")
    E(f"s_lshl_b32 s{sUI}, s{sCG}, 14")
    E(f"s_lshl_b32 s{sT1}, s{sW}, 12")
    E(f"s_add_u32 s{sUI}, s{sUI}, s{sT1}")
    E(f"s_add_u32 s{sYS}, s{sUI}, {G.YT_BASE}")
    vPu = A()
    E(f"v_lshlrev_b32 v{vPu}, 9, v{vL}")
    for sa in (sFUp, sFYp): E(f"s_buffer_load_dword s93, s[{rWS}:{rWS+3}], s{sa} glc")
    PP2 = 1024 + 16
    vWa = X(); vRa = X(); vRb = X()
    E(f"v_add_u32 v{vWa}, s{sSC}, v{vL16}")
    E(f"v_lshrrev_b32 v{vt[0]}, 1, v{vC}")
    E(f"v_mul_u32_u24 v{vRa}, {PP2}, v{vt[0]}")
    E(f"v_and_b32 v{vt[0]}, 1, v{vC}")
    E(f"v_lshl_add_u32 v{vRa}, v{vt[0]}, 3, v{vRa}")
    E(f"v_lshl_add_u32 v{vRa}, v{vG}, 5, v{vRa}")
    E(f"v_add_u32 v{vRa}, s{sSC}, v{vRa}")
    E(f"v_add_u32 v{vRb}, {8*PP2}, v{vRa}")
    vH = [A() for _ in range(4)]
    E(f"v_lshl_add_u32 v{vt[0]}, v{vC}, 1, v{vG}")
    for k in range(4):
        E(f"v_add_u32 v{vt[1]}, {30 - 16 - 4*k}, v{vt[0]}")
        E(f"v_lshrrev_b32 v{vt[2]}, 2, v{vt[1]}")
        E(f"v_add_u32 v{vt[2]}, s{sW}, v{vt[2]}")
        E(f"v_and_b32 v{vt[2]}, 3, v{vt[2]}")
        E(f"v_lshlrev_b32 v{vt[1]}, 6, v{vt[1]}")
        E(f"v_lshl_add_u32 v{vH[k]}, v{vt[2]}, 4, v{vt[1]}")
    L2E = math.log2(math.e); L2Eh = f32val(L2E); L2El = L2E - L2Eh
    I2P = 1 / (2 * math.pi); I2Ph = f32val(I2P); I2Pl = I2P - I2Ph
    vDt = vt[4]; vDsk = X(); vNon = A()
    E(f"s_mov_b32 s7, {f32(L2Eh)}")
    E(f"s_mov_b32 s8, {f32(I2Ph)}")
    E(f"s_lshl_b32 s{sT0}, s{sW}, 4")
    E(f"s_lshr_b64 s[100:101], s[100:101], s{sT0}")
    E(f"s_lshr_b64 s[16:17], s[16:17], s{sT0}")
    E(f"s_lshl_b32 s100, s100, 16")
    E(f"s_lshl_b32 s101, s16, 16")
    E(f"v_mov_b32 v{vt[0]}, s100")
    ST(E, "par")
    E(f"v_mul_f32 v{vt[1]}, s7, v{vt[0]}")
    E(f"v_fma_f32 v{vt[2]}, v{vt[0]}, s7, -v{vt[1]}")
    E(f"v_fmac_f32 v{vt[2]}, {f32(L2El)}, v{vt[0]}")
    E(f"v_exp_f32 v{vt[1]}, v{vt[1]}")
    E(f"v_mul_f32 v{vt[2]}, {f32(math.log(2))}, v{vt[2]}")
    E(f"v_fma_f32 v{vt[1]}, v{vt[1]}, v{vt[2]}, v{vt[1]}")
    E(f"v_cvt_pk_bf16_f32 v{vt[1]}, v{vt[1]}, v{vt[1]}")
    E(f"v_and_b32 v{vDt}, 0xffff0000, v{vt[1]}")
    A2 = Alloc(KG, KG + 32)
    PK = [A2(4, 4), A2(4, 4)]
    W1 = [A2(3, 1), A2(3, 1)]; W8 = [A2(3, 1), A2(3, 1)]; W256 = [A2(3, 1), A2(3, 1)]
    A3 = Alloc(big + 136, big + 160)
    XS = [[A3(2) for _ in range(4)] for _ in range(2)]
    XC = [A3(2), A3(2)]; XD = [A3(2), A3(2)]
    XU = [[big + 124, big + 126], [big + 128, big + 130]]
    tmp = big + 100
    per_n = []
    for n in range(2):
        t = [tmp + 12 * n + i for i in range(12)]
        un = (lambda d, src: f"v_lshlrev_b32 v{d}, 16, v{src}") if n == 0 else (lambda d, src: f"v_and_b32 v{d}, 0xffff0000, v{src}")
        L = [un(t[0], P[0]), un(t[1], P[1]),
             f"v_mul_f32 v{t[0]}, v{vDt}, v{t[0]}",
             f"v_mul_f32 v{t[1]}, v{vDt}, v{t[1]}",
             f"v_mul_f32 v{t[0]}, s7, v{t[0]}",
             f"v_mul_f32 v{t[6]}, s8, v{t[1]}",
             f"v_fma_f32 v{t[7]}, v{t[1]}, s8, -v{t[6]}",
             f"v_fmac_f32 v{t[7]}, {f32(I2Pl)}, v{t[1]}"]
        for e, Wd in ((1, W1[n]), (256, W256[n]), (8, W8[n])):
            if e == 1:
                L += [f"v_exp_f32 v{t[8]}, v{t[0]}", f"v_fract_f32 v{t[9]}, v{t[6]}", f"v_add_f32 v{t[9]}, v{t[9]}, v{t[7]}"]
            else:
                L += [f"v_mul_f32 v{t[8]}, {f32(e)}, v{t[0]}", f"v_mul_f32 v{t[9]}, {f32(e)}, v{t[6]}",
                      f"v_exp_f32 v{t[8]}, v{t[8]}", f"v_fract_f32 v{t[9]}, v{t[9]}", f"v_fmac_f32 v{t[9]}, {f32(e)}, v{t[7]}"]
            L += [f"v_cos_f32 v{t[10]}, v{t[9]}", f"v_sin_f32 v{t[11]}, v{t[9]}",
                  f"v_mul_f32 v{Wd}, v{t[8]}, v{t[10]}", f"v_mul_f32 v{Wd+1}, v{t[8]}, v{t[11]}", f"v_xor_b32 v{Wd+2}, 0x80000000, v{Wd+1}"]
        c0 = XS[n][0]
        L += [un(t[k], P[k]) for k in range(2, 6)]
        L += [f"v_mul_f32 v{t[2]}, v{vDt}, v{t[2]}", f"v_mul_f32 v{t[3]}, v{vDt}, v{t[3]}",
              f"v_mul_f32 v{c0}, v{t[4]}, v{t[2]}", f"v_mul_f32 v{c0+1}, v{t[5]}, v{t[2]}",
              f"v_fma_f32 v{c0}, -v{t[5]}, v{t[3]}, v{c0}", f"v_fmac_f32 v{c0+1}, v{t[4]}, v{t[3]}"]
        per_n.append(L)
    E(zipl(*per_n))
    E(f"v_cmp_eq_u32 vcc, 0, v{vL}")
    E(f"v_mov_b32 v{vDsk}, s101")
    E(f"v_cndmask_b32 v{vDsk}, 0, v{vDsk}, vcc")
    def put_row(row, regs, neg, last=False):
        p = PK[(row // 2) % 2]; q = p + 2 * (row % 2)
        sg = "-" if neg else ""
        L = [f"v_cvt_pk_bf16_f32 v{q}, v{regs[0]}, {sg}v{regs[0]+1}",
             f"v_cvt_pk_bf16_f32 v{q+1}, v{regs[1]}, {sg}v{regs[1]+1}"]
        if row % 2 or last: L.append(f"ds_write_b128 v{vWa}, {v(p,4)} offset:{(row//2)*PP2}")
        return L
    def step(dst, src, mul):
        return zipl(cmul(dst[0], src[0], mul[0]), cmul(dst[1], src[1], mul[1]))
    XSi = lambda i: [XS[0][i], XS[1][i]]
    XUi = lambda i: [XU[0][i], XU[1][i]]
    SG = KG if SLAB in (4, 5, 6, 8) else big if SLAB != 9 else big + 144
    def wait_go():
        skip = newlabel("nogo")
        E(f"s_lshl_b32 s{sT0}, s{sCG}, 7")
        E(f"s_add_u32 s{sT0}, s{sT0}, {G.FLAGG_BASE}")
        E(f"s_cmp_ge_u32 s{sCG}, {NWAIT}")
        E(f"s_cbranch_scc1 {skip}")
        ok = newlabel("gok"); sp = newlabel("gsp")
        E.raw("    s_mov_b32 s13, 0")
        E.label(sp)
        for t in [f"s_buffer_load_dword s16, s[{rWS}:{rWS+3}], s{sT0} glc", "s_add_u32 s13, s13, 1", "s_waitcnt lgkmcnt(0)", f"s_cmp_gt_u32 s13, {G.SPIN_MAX}",
                  f"s_cbranch_scc1 {skip}", f"s_cmp_eq_u32 s16, s{sN}", f"s_cbranch_scc1 {skip}", "s_sleep 3", f"s_branch {sp}"]:
            E.raw("    " + t)
        E.label(skip)

    def slab_out():
        if "--xnomem" in sys.argv or "--x1" in sys.argv: return None
        def slab_tr():
            E.wait_vm("slab")
            ST(E, "slab")
            for i in range(4):
                E(f"ds_read_b64_tr_b16 {v(SG+4*i,2)}, v{vTa} offset:{64*i}")
                E(f"ds_read_b64_tr_b16 {v(SG+4*i+2,2)}, v{vTa} offset:{64*i+1024}")
        if SLAB != 6: slab_tr()
        E("s_setprio 3")
        G.snonce(E, vNon)
        if SLAB in (4, 5, 6):
            wait_go()
            ST(E, "go")
            if SLAB == 6:
                slab_in(); E("s_setprio 3"); slab_tr()
        for i in range(4):
            E(f"s_add_u32 s{sT1}, s{sUT}, {8*16384*i}")
            E(f"buffer_store_dwordx4 {v(SG+4*i,4)}, v{vUo}, s[{rWS}:{rWS+3}], s{sT1} offen {'' if '--xplain' in sys.argv else 'sc1'}")
        E(f"s_setprio {G.BPRIO}")
        ST(E, "ust")
    def flag(saddr):
        skip = newlabel("nofl")
        E(f"s_cmp_lg_u32 s{sW}, 0")
        E(f"s_cbranch_scc1 {skip}")
        E("s_mov_b32 exec_hi, 0")
        E.raw(f"    buffer_store_dword v{vNon}, v{vPu}, s[{rWS}:{rWS+3}], s{saddr} offen sc1")
        E("s_mov_b64 exec, -1")
        E.label(skip)
    def wait_line(saddr):
        G.sflag_wait(E, saddr, 1, 8, 16, sleep=2)
        E("s_barrier")
    def publish():
        if "--xnomem" in sys.argv or "--x1" in sys.argv or "--x2" in sys.argv: return
        E("s_setprio 3")
        E.wait_vm()
        E("s_barrier")
        flag(sFU)
        E(f"s_setprio {G.BPRIO}")
        ST(E, "ack")
    if SLAB == 3: nld = slab_out()
    L = put_row(0, XSi(0), True)
    cur = XSi(0)
    for e in range(1, 8):
        dst = XSi(e // 2) if e % 2 == 0 else XC
        L += step(dst, cur, W1) + put_row(e, dst, True); cur = dst
    for i, dst in enumerate((XUi(0), XC, XUi(1), XC)):
        L += step(dst, XSi(i), W256) + put_row(8 + i, dst, True)
    for k in range(2): L += step(XSi(k), XUi(k), W256) + put_row(12 + k, XSi(k), True)
    for k in range(2): L += step(XUi(k), XSi(k), W256) + put_row(14 + k, XUi(k), True)
    cur = XUi(0)
    for r in range(16, 21):
        dst = XC if r % 2 == 0 else XD
        L += step(dst, cur, W256) + put_row(r, dst, True, last=(r == 20)); cur = dst
    E(L)
    XF = big + 16
    YF = big + 80
    KD = big + 112
    for tI in range(2):
        for k in range(8):
            E(f"ds_read2_b64 {v(XF+32*tI+4*k,4)}, v{vRb if tI else vRa} offset0:{16*k} offset1:{16*k+2}")
    ST(E, "X")
    if SLAB == 0: nld = slab_out()
    if SLAB in (1, 4, 7, 8, 9): slab_in()
    if SLAB == 3: publish()
    def yhalf(h):
        L = []
        for j in range(16):
            jj = 16 * h + j
            Yc, Yp = (XC, XD) if jj % 2 == 0 else (XD, XC)
            if jj == 0:
                L += [f"v_mov_b32 v{Yc[0]}, 1.0", f"v_mov_b32 v{Yc[0]+1}, 0", f"v_mov_b32 v{Yc[1]}, 1.0", f"v_mov_b32 v{Yc[1]+1}, 0"]
            else:
                L += step(Yc, Yp, W8)
            L += put_row(j, Yc, False)
        return L
    def yread(): return [f"ds_read2_b64 {v(YF+4*k,4)}, v{vRa} offset0:{16*k} offset1:{16*k+2}" for k in range(8)]
    def kmfma(h):
        L = []
        for k in range(8):
            for tI in range(2):
                d = KD + 8 * h + 4 * tI
                L.append(f"{M16} {v(d,4)}, {v(XF+32*tI+4*k,4)}, {v(YF+4*k,4)}, {v(d,4) if k else 0}")
        return L
    def tabw(h):
        d0 = KD + 8 * h; d1 = d0 + 4
        p = big + 128 + 4 * h if h == 0 else big + 136
        L = [f"v_add_f32 v{KD}, v{KD}, v{vDsk}"] if h == 0 else []
        L += [f"v_cvt_pk_bf16_f32 v{p}, v{d0}, v{d0+1}", f"v_cvt_pk_bf16_f32 v{p+1}, v{d0+2}, v{d0+3}",
              f"v_cvt_pk_bf16_f32 v{p+2}, v{d1}, v{d1+1}", f"v_cvt_pk_bf16_f32 v{p+3}, v{d1+2}, v{d1+3}",
              f"ds_write_b32 v{a0[h]}, v{p}", f"ds_write_b32 v{a1[h]}, v{p+1}"]
        for rho in range(4):
            op = "ds_write_b16" if rho % 2 == 0 else "ds_write_b16_d16_hi"
            L.append(f"{op} v{a5 if (rho < 2 and h == 0) else a4}, v{p+rho//2} offset:{2*CB + 136*(rho%2) + 16*h + 32*(rho//2)}")
            L.append(f"{op} v{a3 if (rho == 0 and h == 0) else a2}, v{p+2+rho//2} offset:{2*TA_POS + 32*rho + 16*h}")
        return L
    E(yhalf(0)); E(yread())
    if SLAB == 0: publish()
    if SLAB in (1, 7): nld = slab_out()
    if SLAB == 2: slab_in()
    y1 = yhalf(1)
    E(merge(y1, kmfma(0)))
    E(yread())
    if SLAB == 2: nld = slab_out()
    E(tabw(0)); E(kmfma(1))
    E(f"v_lshl_add_u32 v{vt[0]}, v{vC}, 2, s{sSC}")
    for o in (0, SIG_SZ, SIG2, SIG2 + SIG2_SZ): E(f"ds_write_b32 v{vt[0]}, v{vZ} offset:{o + 64}")
    ST(E, "Y")
    def get_u():
        if "--xnomem" in sys.argv or "--x1" in sys.argv or "--x2" in sys.argv or "--x3" in sys.argv: return
        E("s_setprio 3")
        if SLAB >= 7:
            G.sflag_wait(E, sFUp, 1, 16, 16, sleep=2, ncheck=10)
        else: G.sflag_wait(E, sFUp, 1, 8, 16, sleep=2)
        ST(E, "polled")
        if "--x4" in sys.argv: return
        E(f"s_mov_b32 m0, s{sUS}")
        for i in range(4):
            E(f"buffer_load_dwordx4 v{vL16}, s[{rWS}:{rWS+3}], s{sUI} offen offset:{1024*i} sc1 lds", tag="uimg")
        E(f"s_setprio {G.BPRIO}")
    if SLAB in (1, 7): publish()
    E(tabw(1))
    E(f"ds_read_u16 v{vt[5]}, v{vMa}")
    E(f"ds_read_u16 v{vt[4]}, v{vMb}")
    E(f"v_lshl_or_b32 v{vt[5]}, v{vt[4]}, 16, v{vt[5]}")
    E(f"ds_write_b32 v{vMw}, v{vt[5]} offset:544")
    ACC = KG
    MS = lambda s0: (0, 1, 2, 4) if s0 == 0 else (0, 1)
    Freg = {}; r_ = big
    for s0 in range(8):
        for m in MS(s0):
            Freg[(s0, m)] = r_; r_ += 4
    TFr = r_; r_ += 16
    T2r = r_; r_ += 24
    Hr = [r_ + 4 * i for i in range(8)]; r_ += 32
    WS = [[r_ + 4 * i for i in range(4)], [EPH + 4 * i for i in range(4)]]
    assert r_ + 16 == big + 160
    YS = big
    def dense(F, r, a, o):
        return ([f"ds_read2_b32 {v(r,2)}, v{a} offset0:{o} offset1:{o+1}",
                 f"ds_read2_b32 {v(r+2,2)}, v{a} offset0:{o+2} offset1:{o+3}",
                 f"ds_read_b32 v{r+4}, v{a} offset:{4*(o+4)}"],
                [f"v_perm_b32 v{F+j}, v{r+4-j}, v{r+3-j}, v{sel[('d',3)]}" for j in (3, 2, 1, 0)])
    def prepF(s0, r):
        rd = []; pm = []
        for m in MS(s0):
            sx = s0 + 8 * m
            F = Freg[(s0, m)]
            if sx <= 8 or sx == 16 or sx == 32:
                a, b = dense(F, r, adr['d'], {16: 152, 32: 176}.get(sx, 16 * sx))
                rd += a; pm += b; r += 6
            else:
                o = 8 * (sx - 9)
                rd += [f"ds_read2_b32 {v(r,2)}, v{adr['1']} offset0:{o} offset1:{o+1}",
                       f"ds_read_b32 v{r+2}, v{adr['1']} offset:{4*(o+2)}"]
                pm += [f"v_perm_b32 v{F+3}, v{r+1}, v{r}, v{sel[('1',3)]}", f"v_perm_b32 v{F+2}, v{r+1}, v{r}, v{sel[('1',2)]}",
                       f"v_perm_b32 v{F+1}, v{r+2}, v{r+1}, v{sel[('1',3)]}", f"v_perm_b32 v{F}, v{r+2}, v{r+1}, v{sel[('1',2)]}"]
                r += 4
        return rd, pm
    def rdH(s0, dl):
        return f"ds_read_b128 {v(Hr[dl],4)}, v{vH[s0%4]} offset:{2048*dl + (1024 if s0 < 4 else 0)}"
    def build(hooks={}):
        raw = [KG, Hr[0]]
        def two(x, y): return x[0] + y[0], x[1] + y[1]
        jobs = [lambda r: two(two(prepF(1, r), prepF(2, r + 10)), prepF(3, r + 20)),
                lambda r: two(two(prepF(4, r), prepF(5, r + 10)), prepF(6, r + 20)),
                lambda r: two(prepF(7, r), two(dense(TFr, r + 10, aT, 0), two(dense(TFr + 4, r + 16, aT, 8), dense(TFr + 8, r + 22, aT, 16)))),
                lambda r: two(prepF(0, r), dense(TFr + 12, r + 24, aT, 24)),
                lambda r: two(two(dense(T2r, r, aT2, 0), dense(T2r + 4, r + 6, aT2, 4)), dense(T2r + 8, r + 12, aT2, 8)),
                lambda r: two(two(dense(T2r + 12, r, aT2, 12), dense(T2r + 16, r + 6, aT2, 16)), dense(T2r + 20, r + 12, aT2, 20))]
        prev = None
        for n, job in enumerate(jobs):
            if n in hooks: hooks[n]()
            rd, pm = job(raw[n % 2])
            E(rd)
            if prev: E(prev)
            prev = pm
        E(prev)
    if SLAB == 9:
        BP = [a[5:] for a in sys.argv if a.startswith('--p2=')]
        if BP: G.BPRIO = int(BP[0])
        slab_out()
        build({PUBAT: publish})
    elif SLAB not in (4, 8) or "--buildfirst" in sys.argv: build()
    ST(E, "tables")
    if SLAB in (4, 5, 6, 8): slab_out()
    if SLAB in (2, 4, 5, 6, 8): publish()
    if SLAB in (4, 8) and "--buildfirst" not in sys.argv: build()
    get_u()
    E.wait_vm("uimg")
    E.wait_lg()
    E("s_barrier")
    ST(E, "uimg")
    if "--xnoconv" in sys.argv:
        ST.dump(E, sW, big + 70)
        E("s_endpgm")
        return ST
    E(f"s_setprio {G.CPRIO}")
    for dl in range(8): E(rdH(0, dl))
    sigoff = [0, SIG_SZ, SIG2, SIG2 + SIG2_SZ]
    items = [(f"v{aS2} offset:%d", SIG2 + 272 * k, [(q, T2r + 4 * (2 * q - k - 3)) for q in range(8) if 3 <= 2 * q - k <= 8]) for k in range(12)]
    items += [(f"v{aS} offset:%d", 544 * k, [(q, TFr + 4 * (q - k - 4)) for q in range(4 + k, 8)]) for k in range(4)]
    chunks = [[items[i] for i in c] for c in ((0, 1, 2, 12), (3, 4, 5, 15), (6, 7, 13), (8, 9, 14), (10, 11))]
    ycv = lambda q: [f"v_cvt_pk_bf16_f32 v{YS+2*q}, v{ACC+4*q}, v{ACC+4*q+1}", f"v_cvt_pk_bf16_f32 v{YS+2*q+1}, v{ACC+4*q+2}, v{ACC+4*q+3}"]
    ya = vt[0]
    ywr = lambda q: f"ds_write_b64 v{ya}, {v(YS+2*q,2)} offset:{Y_OFF + 544*q}"
    E(f"s_mul_i32 s{sT0}, s{sW}, 144")
    E(f"v_add_u32 v{ya}, s{sT0}, v{aW}")
    yr = vt[1]
    E(f"v_lshrrev_b32 v{vt[3]}, 2, v{vC}")
    E(f"v_mul_u32_u24 v{yr}, {Y_PITCH}, v{vt[3]}")
    E(f"v_bfe_u32 v{vt[3]}, v{vL}, 1, 1")
    E(f"v_lshl_add_u32 v{yr}, v{vt[3]}, 5, v{yr}")
    E(f"v_and_b32 v{vt[3]}, 1, v{vL}")
    E(f"v_lshrrev_b32 v{vt[2]}, 5, v{vL}")
    E(f"v_add_lshl_u32 v{vt[3]}, v{vt[3]}, v{vt[2]}, 3")
    E(f"v_lshl_add_u32 v{vt[3]}, v{vG}, 6, v{vt[3]}")
    E(f"s_mul_i32 s{sT0}, s{sW}, 1088")
    E(f"s_add_u32 s{sT0}, s{sT0}, {SC_BASE + Y_OFF}")
    E(f"v_add3_u32 v{yr}, v{yr}, v{vt[3]}, s{sT0}")
    started = set(); carry = []
    for s0 in range(8):
        M = []; st = []; done = {}
        for dl in range(8):
            nb = 4 if dl < 4 else 2 if dl < 6 else 0
            if s0 == 0 and nb:
                bands = range(4) if nb == 4 else (2, 3)
                g0 = len(M)
                cv = []; wr = []
                for bI in bands:
                    d = WS[dl % 2][bI]
                    M.append(f"{M16} {v(d,4)}, {v(BN+4*bI,4)}, {v(Hr[dl],4)}, 0")
                    cv += [f"v_cvt_pk_bf16_f32 v{d}, v{d}, v{d+1}", f"v_cvt_pk_bf16_f32 v{d+1}, v{d+2}, v{d+3}"]
                    wr += [f"ds_write_b64 v{aW}, {v(d,2)} offset:{136 + sigoff[bI] + 544*dl}"]
                if dl < 5: st += [(cv, g0 + 5, g0 + 5 + len(cv) - 2), (wr, g0 + 8, g0 + 5 + len(cv))]
                else: carry = [(cv, 0, 1), (wr, 2, 3)]
            for m in MS(s0):
                q = m + dl
                if q > 7: continue
                M.append(f"{M16} {v(ACC+4*q,4)}, {v(Freg[(s0,m)],4)}, {v(Hr[dl],4)}, {v(ACC+4*q,4) if q in started else 0}")
                started.add(q); done[q] = len(M) - 1
            if s0 < 7: st.append(([rdH(s0 + 1, dl)], len(M) - 1, len(M) - 1))
        if 2 <= s0 <= 6:
            for i, (fmt, off, uses) in enumerate(chunks[s0 - 2]):
                for q, T in uses: M.append(f"{M16} {v(ACC+4*q,4)}, {v(WS[s0%2][i],4)}, {v(T,4)}, {v(ACC+4*q,4)}")
        if s0 == 1: st += carry
        if 1 <= s0 <= 5:
            rd = [f"ds_read_b64_tr_b16 {v(WS[(s0+1)%2][i]+2*a,2)}, " + fmt % (off + 136 * a) for i, (fmt, off, uses) in enumerate(chunks[s0 - 1]) for a in range(2)]
            st.append((rd, 4, len(M) - 1))
        if s0 == 7:
            for q in range(4): st += [(ycv(q), done[q] + 5, done[q] + 6), ([ywr(q)], done[q] + 8, done[q] + 8)]
        E(gaps(M, st))
    ST(E, "conv")
    if "--gemmonly" in sys.argv:
        ST.dump(E, sW, big + 70)
        E("s_endpgm")
        return ST
    for q in (4, 5, 6, 7): E(ycv(q))
    for q in (4, 5, 6, 7): E(ywr(q))
    E.wait_lg()
    E("s_barrier")
    E("s_setprio 3")
    for i in range(4):
        for e in range(2): E(f"ds_read_b64_tr_b16 {v(big+32+4*i+2*e,2)}, v{yr} offset:{272*i + 16*e}")
    for i in range(4):
        E(f"buffer_store_dwordx4 {v(big+32+4*i,4)}, v{vL16}, s[{rWS}:{rWS+3}], s{sYS} offen offset:{1024*i} sc1")
    d0, d1, ra, so = vt[0], vt[1], vt[2], vt[3]
    E(f"v_lshrrev_b32 v{vt[4]}, 3, v{vL}")
    E(f"v_lshlrev_b32 v{vt[4]}, 14, v{vt[4]}")
    E(f"v_and_b32 v{vt[5]}, 7, v{vL}")
    E(f"v_xor_b32 v{vt[5]}, v{vt[5]}, v{vG}")
    E(f"v_lshl_add_u32 v{d0}, v{vt[5]}, 4, v{vt[4]}")
    E(f"s_and_b32 s{sT0}, s{sW}, 1")
    E(f"s_lshl_b32 s{sT0}, s{sT0}, 6")
    E(f"v_xor_b32 v{d0}, s{sT0}, v{d0}")
    E(f"s_mul_i32 s{sT0}, s{sW}, {8*16384 - 128}")
    E(f"s_add_u32 s{sYL}, s{sYL}, s{sT0}")
    E(f"s_lshl_b32 s{sT0}, s{sW}, 12")
    E(f"s_add_u32 s{sFY}, s{sFY}, s{sT0}")
    E(f"s_lshl_b32 s{sT2}, s{sW}, 10")
    E(f"v_and_b32 v{vt[4]}, 7, v{vC}")
    E(f"v_xor_b32 v{vt[4]}, v{vt[4]}, v{vG}")
    E(f"v_lshlrev_b32 v{ra}, 8, v{vC}")
    E(f"v_lshl_add_u32 v{ra}, v{vt[4]}, 4, v{ra}")
    E(f"v_add_u32 v{ra}, s{sUS}, v{ra}")
    E(f"v_mul_u32_u24 v{so}, 2560, v{vG}")
    E(f"v_lshl_add_u32 v{so}, v{vC}, 4, v{so}")
    E(f"v_xor_b32 v{vt[4]}, 64, v{ra}")
    E.wait_vm()
    E("s_mov_b64 exec, 0xff")
    E(f"buffer_store_dword v{vNon}, v{vPu}, s[{rWS}:{rWS+3}], s{sFY} offen sc1")
    E("s_mov_b64 exec, -1")
    ST(E, "ypub")
    G.sflag_wait(E, sFYp, 1, 8, 16, sleep=2)
    ST(E, "ypoll")
    for i in range(4):
        E(f"s_add_u32 m0, s{sT2}, {U_IMG + 4096*i}")
        E(f"s_add_u32 s{sT1}, s{sYL}, {128*i}")
        E(f"buffer_load_dwordx4 v{d0}, s[{rWS}:{rWS+3}], s{sT1} offen sc1 lds")
    E.wait_vm()
    E("s_barrier")
    for i in range(4):
        E(f"ds_read2_b64 {v(big+4*i,4)}, v{vt[4] if i % 2 else ra} offset0:{i//2} offset1:{16 + i//2}")
    for i in range(4):
        E(f"s_add_u32 s{sT1}, s{sYO}, {4*2560*i}")
        E(f"buffer_store_dwordx4 {v(big+4*i,4)}, v{so}, s[{rOUT}:{rOUT+3}], s{sT1} offen {G.OUTB}")
    if G.PROFILE:
        E.wait_vm()
        ST(E, "end")
    ST.dump(E, sW, big + 70)
    E("s_endpgm")
    return ST
```

```python
import math, sys
from asmlib import *

TA = [[(0, 0), (0, 2), (0, 4), (1, 4)], [(0, 1), (0, 3), (1, 3), (2, 3)], [(1, 0), (1, 2), (2, 2), (2, 4)], [(1, 1), (2, 0), (2, 1), None]]
M16 = "v_mfma_f32_16x16x32_bf16"; M32 = "v_mfma_f32_32x32x16_bf16"

def div_const(dst, src, d):
    return [f"v_mul_u32_u24 v{dst}, {(65536 + d - 1)//d}, v{src}", f"v_lshrrev_b32 v{dst}, 16, v{dst}"]

def put_flag(E, G, sW, vNon, saddr):
    skip = G.newlabel("nofl")
    E(f"s_cmp_lg_u32 s{sW}, 0")
    E(f"s_cbranch_scc1 {skip}")
    E("s_mov_b64 exec, 1")
    E.raw(f"    buffer_store_dword v{vNon}, off, s[{G.rWS}:{G.rWS+3}], s{saddr} sc1")
    E("s_mov_b64 exec, -1")
    E.label(skip)

def flag_addr(dst, idx, base, t):
    return [f"s_lshr_b32 s{dst}, s{idx}, 3", f"s_lshl_b32 s{dst}, s{dst}, 7", f"s_and_b32 s{t}, s{idx}, 7", f"s_lshl_b32 s{t}, s{t}, 2",
            f"s_add_u32 s{dst}, s{dst}, s{t}", f"s_add_u32 s{dst}, s{dst}, {base}"]

def piece_voff(E, vL, dst, t, pitch):
    for m in range(3):
        if m: E(f"v_add_u32 v{t}, {64*m}, v{vL}")
        ci = t if m else vL
        E(div_const(t + 1, ci, 20))
        E(f"v_mul_u32_u24 v{t+1}, {pitch - 320}, v{t+1}")
        E(f"v_lshl_add_u32 v{dst[m]}, v{vL}, 4, v{t+1}")

def gen_C(E, G):
    rWS, rDBG, rWO = G.rWS, G.rDBG, G.rWO
    G.fresh(E)
    sW, sU = 76, 77
    vL, vo, t, vT, vS, D, vNon = 1, [2, 3, 4], 6, [8, 9, 10], [11, 12, 13], 16, 14
    E(f"v_and_b32 v{vL}, 63, v0")
    E(f"v_lshrrev_b32 v{t}, 6, v0")
    E(f"s_sub_u32 s{sU}, s2, {G.NB + G.NA}")
    E(f"v_readfirstlane_b32 s{sW}, v{t}")
    piece_voff(E, vL, vo, t, 1280)
    E(f"s_mul_i32 s4, s{sU}, {8*1280}")
    E(f"s_mul_i32 s5, s{sW}, 320")
    E(f"s_add_u32 s4, s4, s5")
    E(f"s_lshl_b32 s6, s{sW}, 12")
    E(f"s_mov_b32 m0, s6")
    E.wait_lg()
    G.srd(E, rWO, G.pWO, 819200)
    for m in range(3):
        if m == 2: E("s_mov_b32 exec_hi, 0")
        E(f"buffer_load_dwordx4 v{vo[m]}, s[{rWO}:{rWO+3}], s4 offen offset:{1024*m} lds")
    E("s_mov_b64 exec, -1")
    if "--upf" in sys.argv:
        E(f"s_lshr_b32 s5, s{sW}, 1")
        E(f"s_mul_i32 s5, s5, 80")
        E(f"s_add_u32 s5, s5, s{sU}")
        E(f"s_mul_hi_u32 s8, s5, 0x33333334")
        E(f"s_mul_i32 s9, s8, 5")
        E(f"s_sub_u32 s5, s5, s9")
        E(f"s_lshl_b32 s5, s5, 8")
        E(f"s_lshl_b32 s8, s8, 1")
        E(f"s_and_b32 s9, s{sW}, 1")
        E(f"s_add_u32 s8, s8, s9")
        E(f"s_mul_i32 s8, s8, {32*1280}")
        E(f"s_add_u32 s5, s5, s8")
        E(f"v_lshrrev_b32 v{t}, 1, v{vL}")
        E(f"v_mul_u32_u24 v{t}, 1280, v{t}")
        E(f"v_and_b32 v{t+1}, 1, v{vL}")
        E(f"v_lshl_add_u32 v{t}, v{t+1}, 7, v{t}")
        E(f"v_add_u32 v{t}, s5, v{t}")
        E(f"global_load_dword v40, v{t}, s[{G.pU}:{G.pU+1}]")
    G.srd(E, rWS, G.pWS, G.WS_SIZE)
    G.srd(E, rDBG, G.pDBG, 256)
    for m in range(3):
        E(f"v_lshrrev_b32 v{t}, 4, v{vL}")
        E(f"v_add_u32 v{t}, {4*m}, v{t}")
        E(f"v_min_u32 v{t}, 9, v{t}")
        E(f"v_cmp_lt_u32 vcc, 4, v{t}")
        E(f"v_lshlrev_b32 v{vT[m]}, 3, v{t}")
        E(f"v_add_u32 v{t+1}, 120, v{vT[m]}")
        E(f"v_cndmask_b32 v{vT[m]}, v{vT[m]}, v{t+1}, vcc")
        E(f"v_lshlrev_b32 v{vS[m]}, 10, v{t}")
        E(f"v_add_u32 v{t+1}, {95*1024}, v{vS[m]}")
        E(f"v_cndmask_b32 v{vS[m]}, v{vS[m]}, v{t+1}, vcc")
        E(f"v_and_b32 v{t}, 3, v{vL}")
        E(f"v_mul_u32_u24 v{t}, 40, v{t}")
        E(f"v_bfe_u32 v{t+1}, v{vL}, 2, 2")
        E(f"v_mul_u32_u24 v{t+1}, 320, v{t+1}")
        E(f"v_add3_u32 v{vT[m]}, v{vT[m]}, v{t}, v{t+1}")
        E(f"v_add_u32 v{vT[m]}, s6, v{vT[m]}")
        E(f"v_and_b32 v{t}, 15, v{vL}")
        E(f"v_lshl_add_u32 v{vS[m]}, v{t}, 4, v{vS[m]}")
    E(f"s_mul_i32 s4, s{sW}, {200*1024}")
    E(f"s_lshr_b32 s5, s{sU}, 2")
    E(f"s_mul_i32 s5, s5, 5120")
    E(f"s_add_u32 s4, s4, s5")
    E(f"s_and_b32 s5, s{sU}, 3")
    E(f"s_lshl_b32 s5, s5, 8")
    E(f"s_add_u32 s4, s4, s5")
    E(f"s_add_u32 s4, s4, {G.PWO_BASE}")
    E(flag_addr(7, sU, G.FLAGC_BASE, 5))
    E.wait_vm()
    for m in range(3):
        for a in range(2): E(f"ds_read_b64_tr_b16 {v(D+4*m+2*a,2)}, v{vT[m]} offset:{1280*a}")
    for m in range(3):
        if m == 2:
            E.wait_lg()
            E("s_mov_b32 exec_hi, 0")
        E(f"buffer_store_dwordx4 {v(D+4*m,4)}, v{vS[m]}, s[{rWS}:{rWS+3}], s4 offen sc1")
    E("s_mov_b64 exec, -1")
    nld = G.nonce_load(E, vNon)
    G.nonce_get(E, nld, vNon)
    E.wait_vm()
    E("s_barrier")
    put_flag(E, G, sW, vNon, 7)
    E("s_endpgm")

def gen_A(E, G):
    f32, Alloc, srd, spin, newlabel = G.f32, G.Alloc, G.srd, G.spin, G.newlabel
    rWS, rOUT, rDBG, rIN, rW, rPHI = G.rWS, G.rOUT, G.rDBG, G.rIN, G.rW, G.rPHI
    sN = G.sN
    G.fresh(E)
    ST = G.Stamps(24)
    sW, sR, sP, sPQ, sTBo, sCT, sROT = 76, 77, 78, 79, 80, 81, 82
    sT0, sT1, sT2 = 4, 5, 6
    sWO, sXO, sWE, sXE = 84, 85, 86, 87
    sW4, sXR, sH, sFT = 88, 89, 90, 91
    sPS, sOS, sFO, sPL, sOL, sWL, sFC, sOUT, sFP, sF1, sF2 = 96, 97, 98, 99, 100, 101, 45, 46, 92, 47, 3
    XR = 49152
    TAB = 36864; ZTAB = TAB + 3200; KVT = 45056; ZKV = ZTAB
    def wslot(sig): return 16384 * ((sig + 1) % 3)
    E(f"s_setprio {G.APRIO}")
    A = Alloc(1, 256)
    vL = A(); vHH = A(); vL16 = A()
    ACC = A(64, 4)
    WF = A(32, 4)
    XF = A(32, 4)
    PF = A(48, 4)
    TM = A(36, 4)
    ID = A(4, 4)
    vXo = [A() for _ in range(4)]
    vWo = [A() for _ in range(4)]
    vWt = [A() for _ in range(4)]
    vXrs = [A() for _ in range(4)]
    MP = A(); vMn = A(); vNon = A()
    vPk = A(); vVw = A(); vA = A(); vB = A(); vS1 = A(); vS2 = A(); vPi = A(); vKa = A(); vO1 = A(); vO3 = A(); vC4 = A()
    vRw = A(); vSo = [A() for _ in range(3)]
    vFl = A(); vFc = A()
    vt = [TM + 20 + i for i in range(12)]
    vG, vC, vGam, vR4 = vt[8], vt[9], vt[10], vt[11]
    E(f"v_and_b32 v{vL}, 63, v0")
    E(f"v_lshrrev_b32 v{vt[0]}, 6, v0")
    E(f"v_lshrrev_b32 v{vG}, 4, v{vL}")
    E(f"v_readfirstlane_b32 s{sW}, v{vt[0]}")
    E(f"s_and_b32 s{sT0}, s2, 7")
    E(f"s_lshr_b32 s{sT1}, s2, 3")
    E(f"s_lshr_b32 s{sCT}, s{sT1}, 2")
    E(f"s_and_b32 s{sT1}, s{sT1}, 3")
    E(f"s_lshl_b32 s{sTBo}, s{sT0}, 2")
    E(f"s_add_u32 s{sTBo}, s{sTBo}, s{sT1}")
    E(f"s_lshr_b32 s{sR}, s{sT0}, 1")
    E(f"s_lshl_b32 s{sR}, s{sR}, 2")
    E(f"s_add_u32 s{sR}, s{sR}, s{sT1}")
    E(f"s_lshl_b32 s{sT2}, s{sCT}, 2")
    E(f"s_lshr_b32 s{sT2}, 0x64317520, s{sT2}")
    E(f"s_and_b32 s{sT2}, s{sT2}, 7")
    E(f"s_and_b32 s{sP}, s{sT0}, 1")
    E(f"s_lshl_b32 s{sP}, s{sP}, 3")
    E(f"s_add_u32 s{sP}, s{sP}, s{sT2}")
    E(f"s_xor_b32 s{sPQ}, s{sP}, 1")
    if "--newrot" not in sys.argv:
        E(f"s_mul_i32 s{sROT}, s{sT1}, 3")
        E(f"s_add_u32 s{sROT}, s{sROT}, s{sT2}")
        E(f"s_sub_u32 s{sT0}, s{sROT}, 10")
        E(f"s_cmp_ge_u32 s{sROT}, 10")
        E(f"s_cselect_b32 s{sROT}, s{sT0}, s{sROT}")
    else:
        E(f"s_mov_b32 s14, 0x97453618"); E(f"s_mov_b32 s15, 0x21984036")
        E(f"s_bitcmp1_b32 s{sT1}, 1")
        E(f"s_cselect_b32 s14, 0x30219857, s14"); E(f"s_cselect_b32 s15, 0x85362704, s15")
        E(f"s_lshl_b32 s{sROT}, s{sT1}, 3")
        E(f"s_add_u32 s{sROT}, s{sROT}, s{sT2}")
        E(f"s_lshl_b32 s{sROT}, s{sROT}, 2")
        E(f"s_lshr_b64 s[14:15], s[14:15], s{sROT}")
        E(f"s_and_b32 s{sROT}, s14, 15")
    E(f"s_mul_i32 s{sT0}, s{sPQ}, 80")
    E(f"s_mul_i32 s{sT2}, s{sP}, 80")
    E(f"s_sub_u32 s{sT2}, s{sT2}, s{sT0}")
    E(f"v_lshlrev_b32 v{vt[0]}, 2, v{vG}")
    E(f"v_sub_u32 v{vt[0]}, v{vL}, v{vt[0]}")
    E(f"v_and_b32 v{vt[0]}, 15, v{vt[0]}")
    E(f"v_min_u32 v{vt[0]}, 14, v{vt[0]}")
    E(f"v_mul_u32_u24 v{vt[1]}, 52, v{vt[0]}")
    E(f"v_lshrrev_b32 v{vt[1]}, 8, v{vt[1]}")
    E(f"v_mul_u32_u24 v{vt[2]}, 3840, v{vG}")
    E(f"v_lshl_add_u32 v{vt[2]}, v{vt[0]}, 4, v{vt[2]}")
    E(f"v_min_u32 v{vt[0]}, 1, v{vt[1]}")
    E(f"v_mul_u32_u24 v{vt[1]}, 1200, v{vt[1]}")
    E(f"v_mad_i32_i24 v{vt[2]}, v{vt[0]}, s{sT2}, v{vt[2]}")
    E(f"v_add_u32 v{vWo[0]}, v{vt[1]}, v{vt[2]}")
    for m in range(1, 4): E(f"v_add_u32 v{vWo[m]}, {m*(4*3840-1024)}, v{vWo[0]}")
    E(f"v_lshrrev_b32 v{vt[0]}, 3, v{vL}")
    E(f"v_and_b32 v{vt[1]}, 7, v{vL}")
    E(f"v_xor_b32 v{vt[1]}, v{vt[1]}, v{vG}")
    E(f"v_mul_u32_u24 v{vt[0]}, 1280, v{vt[0]}")
    E(f"v_lshl_add_u32 v{vXo[0]}, v{vt[1]}, 4, v{vt[0]}")
    E(f"v_xor_b32 v{vt[1]}, 4, v{vt[1]}")
    E(f"v_lshl_add_u32 v{vXo[1]}, v{vt[1]}, 4, v{vt[0]}")
    E(f"v_add_u32 v{vXo[2]}, {2*(8*1280-1024)}, v{vXo[0]}")
    E(f"v_add_u32 v{vXo[3]}, {3*(8*1280-1024)}, v{vXo[1]}")
    E(f"v_add_u32 v{vXo[1]}, {1*(8*1280-1024)}, v{vXo[1]}")
    E(f"s_mul_i32 s{sWE}, s{sW}, {16*3840}")
    E(f"s_add_u32 s{sWE}, s{sWE}, s{sT0}")
    E(f"s_mul_i32 s{sWO}, s{sROT}, {64*3840}")
    E(f"s_add_u32 s{sWO}, s{sWO}, s{sWE}")
    E(f"s_add_u32 s{sWE}, s{sWE}, {640*3840}")
    E(f"s_lshl_b32 s{sXE}, s{sR}, 2")
    E(f"s_add_u32 s{sXE}, s{sXE}, s{sW}")
    E(f"s_mul_i32 s{sXE}, s{sXE}, {32*1280}")
    E(f"s_lshl_b32 s{sXO}, s{sROT}, 7")
    E(f"s_add_u32 s{sXO}, s{sXO}, s{sXE}")
    E(f"s_add_u32 s{sXE}, s{sXE}, 1280")
    E(f"s_lshl_b32 s{sW4}, s{sW}, 12")
    E(f"s_lshl_b32 s{sXR}, s{sW}, 13")
    E(f"s_add_u32 s{sXR}, s{sXR}, {XR}")
    E.wait_lg()
    ST(E, "start")
    if "--noA" in sys.argv:
        srd(E, rWS, G.pWS, G.WS_SIZE)
        ST(E, "end")
        ST.dump(E, sW, ACC)
        E("s_endpgm")
        return ST
    srd(E, rW, G.pW, 2457600)
    srd(E, rIN, G.pX, 2621440)

    PACE = int(([a[7:] for a in sys.argv if a.startswith('--pace=')] + ['0'])[0])
    def dmaW(sig):
        L = []
        for m in range(4):
            g = []
            if m == 0: g.append(f"s_add_u32 m0, s{sW4}, {wslot(sig)}")
            if PACE and sig < 2: g.append(lambda E: E._wait(vm=PACE) if len(E.vmq) > PACE else None)
            g.append(("tag", f"buffer_load_dwordx4 v{vWo[m]}, s[{rW}:{rW+3}], s{sWO} offen offset:{1024*m} lds", f"S{sig}"))
            if m == 3: g += [f"s_add_u32 s{sWO}, s{sWO}, {64*3840}", f"s_cmp_ge_u32 s{sWO}, s{sWE}", f"s_cselect_b32 s9, {640*3840}, 0", f"s_sub_u32 s{sWO}, s{sWO}, s9"]
            L.append(("group", g))
        return L
    def dmaX(sig):
        L = []
        for i in range(4):
            g = []
            if i == 0: g.append(f"s_add_u32 m0, s{sXR}, {4096*(sig%2)}")
            if PACE and sig < 2: g.append(lambda E: E._wait(vm=PACE) if len(E.vmq) > PACE else None)
            g.append(("tag", f"buffer_load_dwordx4 v{vXo[i]}, s[{rIN}:{rIN+3}], s{sXO} offen offset:{1024*i} lds", f"S{sig}"))
            if i == 3: g += [f"s_add_u32 s{sXO}, s{sXO}, 128", f"s_cmp_ge_u32 s{sXO}, s{sXE}", f"s_cselect_b32 s9, 1280, 0", f"s_sub_u32 s{sXO}, s{sXO}, s9"]
            L.append(("group", g))
        return L
    ORD = ([a[6:] for a in sys.argv if a.startswith('--ord=')] + ['wx'])[0]
    if ORD == "touch":
        E(f"buffer_load_dword v{ACC}, off, s[{rIN}:{rIN+3}], s{sXO}")
        E(f"s_mov_b32 s9, {2200000}")
        E(f"buffer_load_dword v{ACC+1}, off, s[{rW}:{rW+3}], s9")
        E(f"buffer_load_dword v{ACC+2}, off, s[{rW}:{rW+3}], 0 offset:3072")
    if ORD == "xw": E(dmaX(0)); E(dmaW(0))
    elif ORD == "mix":
        w_, x_ = dmaW(0), dmaX(0)
        for a_, b_ in zip(x_, w_):
            E(f"s_add_u32 m0, s{sXR}, 0"); E([a_]); E(f"s_add_u32 m0, s{sW4}, {wslot(0)}"); E([b_])
    else: E(dmaW(0)); E(dmaX(0))
    srd(E, rPHI, G.pPHI, 25600)
    vPhi = TM + 18
    E(f"v_lshlrev_b32 v{vPhi}, 4, v0")
    E(f"v_cmp_gt_u32 vcc, 200, v0")
    E(f"v_mov_b32 v{vPhi+1}, 0x100000")
    E(f"s_lshr_b32 s{sT0}, s{sP}, 1")
    E(f"s_mul_i32 s{sT0}, s{sT0}, 3200")
    E(f"v_cndmask_b32 v{vPhi+1}, v{vPhi+1}, v{vPhi}, vcc")
    E(f"buffer_load_dwordx4 {v(TM,4)}, v{vPhi+1}, s[{rPHI}:{rPHI+3}], s{sT0} offen")
    E(dmaW(1)); E(dmaX(1))
    srd(E, rWS, G.pWS, G.WS_SIZE)
    PN = TM + 32
    for i in range(4): E(f"v_mov_b32 v{PN+i}, -1")
    E(f"v_lshlrev_b32 v{vL16}, 4, v{vL}")
    E(f"s_lshl_b32 s{sPL}, s{sPQ}, 16")
    E(f"s_add_u32 s{sPL}, s{sPL}, {G.P_BASE}")
    E(f"s_lshl_b32 s{sPS}, s{sP}, 4")
    E(f"s_add_u32 s{sPS}, s{sPS}, s{sR}")
    E(f"s_lshl_b32 s{sPS}, s{sPS}, 12")
    E(f"s_add_u32 s{sPS}, s{sPS}, {G.P_BASE}")
    E(f"s_lshl_b32 s{sT0}, s{sW}, 10")
    E(f"s_add_u32 s95, s{sT0}, s{sPS}")
    srd(E, rDBG, G.pDBG, 256)
    srd(E, rOUT, G.pOUT, 5242880)
    E(f"v_and_b32 v{vC}, 15, v{vL}")
    E(f"v_bfe_u32 v{vGam}, v{vL}, 4, 1")
    E(f"v_bfe_u32 v{vt[0]}, v{vL}, 1, 1")
    E(f"v_lshl_add_u32 v{vGam}, v{vGam}, 1, v{vt[0]}")
    E(f"v_bfe_u32 v{vR4}, v{vL}, 2, 2")
    E(f"v_lshrrev_b32 v{vHH}, 5, v{vL}")
    E(f"v_lshlrev_b32 v{vt[0]}, 3, v{vGam}")
    E(f"v_and_b32 v{vt[1]}, 1, v{vL}")
    E(f"v_mul_u32_u24 v{vt[1]}, 5, v{vt[1]}")
    E(f"v_lshlrev_b32 v{vt[2]}, 11, v{vHH}")
    E(f"v_lshl_add_u32 v{vt[2]}, v{vR4}, 8, v{vt[2]}")
    for T in range(4):
        pk = sum((30 if e is None else 10 * e[0] + e[1]) << (8 * i) for i, e in enumerate(TA[T]))
        E(f"s_mov_b32 s9, {pk}")
        E(f"v_bfe_u32 v{vt[3]}, s9, v{vt[0]}, 8")
        E(f"v_add_u32 v{vt[3]}, v{vt[3]}, v{vt[1]}")
        E(f"v_min_u32 v{vt[3]}, 31, v{vt[3]}")
        E(f"v_lshl_add_u32 v{vt[3]}, v{vR4}, 3, v{vt[3]}")
        E(f"v_and_b32 v{vt[3]}, 31, v{vt[3]}")
        E(f"v_lshl_add_u32 v{vWt[T]}, v{vt[3]}, 3, v{vt[2]}")
    E(f"v_and_b32 v{vt[0]}, 31, v{vL}")
    E(f"v_bfe_u32 v{vt[1]}, v{vL}, 1, 3")
    E(f"v_xor_b32 v{vt[1]}, v{vt[1]}, v{vHH}")
    E(f"v_lshlrev_b32 v{vt[0]}, 7, v{vt[0]}")
    E(f"v_lshl_add_u32 v{vt[0]}, v{vt[1]}, 4, v{vt[0]}")
    for j in range(4):
        E(f"v_xor_b32 v{vXrs[j]}, {32*j}, v{vt[0]}")
        E(f"v_add_u32 v{vXrs[j]}, s{sXR}, v{vXrs[j]}")
    E(f"s_and_b32 s{sH}, s{sW}, 1")
    E(f"s_lshr_b32 s{sFT}, s{sW}, 1")
    E(f"s_mov_b32 s94, {f32(math.log2(math.e))}")
    vPa = [TM + 16, TM + 17]
    E(f"v_mul_u32_u24 v{vt[0]}, 800, v{vHH}")
    E(f"v_mul_u32_u24 v{vt[1]}, 40, v{vR4}")
    E(f"v_lshl_add_u32 v{vt[1]}, v{vGam}, 3, v{vt[1]}")
    E(f"v_and_b32 v{vt[2]}, 1, v{vL}")
    E(f"v_cmp_eq_u32 vcc, v{vt[2]}, v{vHH}")
    for i, sp in enumerate((sP, sPQ)):
        E(f"s_and_b32 s{sT0}, s{sp}, 1")
        E(f"s_mul_i32 s{sT0}, s{sT0}, 1600")
        E(f"v_add3_u32 v{vt[3]}, v{vt[0]}, v{vt[1]}, s{sT0}")
        E(f"v_mov_b32 v{vPa[i]}, 3200")
        E(f"v_cndmask_b32 v{vPa[i]}, v{vPa[i]}, v{vt[3]}, vcc")
    E(f"v_lshlrev_b32 v{vPhi+1}, 2, v0")
    E(f"v_mov_b32 v{TM+4}, 0")
    if "--zop" in sys.argv:
        E(f"v_mov_b32 v{PF+16}, 0"); E(f"v_mov_b32 v{PF+17}, 0")
    for i in range(2):
        for t in range(2):
            E(f"v_mov_b32 v{PF+24*i+16+4*t+2}, 0"); E(f"v_mov_b32 v{PF+24*i+16+4*t+3}, 0")
    E(f"v_mul_u32_u24 v{vPk}, 80, v{vL}")
    E(f"v_add_u32 v{vPk}, s{sXR}, v{vPk}")
    E(f"v_mul_u32_u24 v{vVw}, 48, v{vL}")
    E(f"v_add_u32 v{vVw}, s{sXR}, v{vVw}")
    E(f"v_lshl_add_u32 v{vt[0]}, v{vHH}, 3, v{vR4}")
    E(f"v_bfe_u32 v{vt[1]}, v{vL}, 4, 1")
    E(f"v_lshlrev_b32 v{vt[1]}, 2, v{vt[1]}")
    E(f"v_and_b32 v{vt[2]}, 1, v{vL}")
    E(f"v_lshl_add_u32 v{vt[2]}, v{vt[2]}, 1, v{vt[1]}")
    E(f"v_bfe_u32 v{vt[3]}, v{vL}, 1, 1")
    E(f"v_add_u32 v{vt[2]}, v{vt[2]}, v{vt[3]}")
    E(f"v_mul_u32_u24 v{vA}, 80, v{vt[0]}")
    E(f"v_lshl_add_u32 v{vA}, v{vt[2]}, 3, v{vA}")
    E(f"s_mul_i32 s{sT0}, s{sH}, 2560")
    E(f"s_lshl_b32 s{sT1}, s{sFT}, 6")
    E(f"s_add_u32 s{sT0}, s{sT0}, s{sT1}")
    E(f"s_add_u32 s{sT0}, s{sT0}, {XR}")
    E(f"v_add_u32 v{vA}, s{sT0}, v{vA}")
    E(f"v_and_b32 v{vt[2]}, 3, v{vL}")
    E(f"v_add_u32 v{vt[2]}, v{vt[2]}, v{vt[1]}")
    E(f"v_mul_u32_u24 v{vB}, 48, v{vt[0]}")
    E(f"v_lshl_add_u32 v{vB}, v{vt[2]}, 3, v{vB}")
    E(f"s_mul_i32 s{sT0}, s{sH}, 1536")
    E(f"s_add_u32 s{sT0}, s{sT0}, {XR+5120}")
    E(f"v_add_u32 v{vB}, s{sT0}, v{vB}")
    E(f"v_and_b32 v{vt[0]}, 31, v{vL}")
    E(f"s_lshl_b32 s{sT0}, s{sH}, 4")
    E(f"v_add_u32 v{vt[1]}, s{sT0}, v{vt[0]}")
    E(f"v_subrev_u32 v{vt[2]}, 20, v{vt[1]}")
    E(f"v_min_u32 v{vt[1]}, v{vt[1]}, v{vt[2]}")
    E(f"v_cmp_gt_u32 vcc, 20, v{vt[0]}")
    E(f"v_mov_b32 v{vt[3]}, 0x4000000")
    E(f"v_cndmask_b32 v{vt[1]}, v{vt[0]}, v{vt[1]}, vcc")
    E(f"v_lshlrev_b32 v{vt[1]}, 4, v{vt[1]}")
    E(f"v_cmp_gt_u32 vcc, 24, v{vt[0]}")
    E(f"s_cmp_eq_u32 s{sFT}, 0")
    E(f"s_mov_b32 s9, 0x4000000")
    E(f"s_cselect_b32 s{sT0}, 384, s9")
    E(f"s_cselect_b32 s{sT1}, 768, s9")
    E(f"v_cndmask_b32 v{vt[1]}, v{vt[3]}, v{vt[1]}, vcc")
    E(f"v_mul_lo_u32 v{vS1}, v{vHH}, s{sT0}")
    E(f"v_add_u32 v{vS1}, v{vS1}, v{vt[1]}")
    E(f"v_add_u32 v{vS2}, s{sT1}, v{vS1}")
    E(f"s_mul_i32 s{sT0}, s{sH}, 1920")
    E(f"s_mul_i32 s{sT1}, s{sFT}, 1536")
    E(f"s_add_u32 s{sPS}, s{sPS}, s{sT0}")
    E(f"s_add_u32 s{sPS}, s{sPS}, s{sT1}")
    E(f"v_min_u32 v{vPi}, 239, v0")
    E(f"v_lshlrev_b32 v{vPi}, 4, v{vPi}")
    E(f"v_bfe_u32 v{vt[0]}, v{vL}, 3, 2")
    E(f"v_and_b32 v{vt[1]}, 3, v{vL}")
    E(f"v_lshl_add_u32 v{vt[0]}, v{vt[0]}, 2, v{vt[1]}")
    E(f"v_mul_u32_u24 v{vt[1]}, 1920, v{vHH}")
    E(f"v_lshl_add_u32 v{vt[2]}, v{vt[0]}, 4, v{vt[1]}")
    E(f"v_add_u32 v{vt[2]}, {KVT}, v{vt[2]}")
    E(f"v_bfe_u32 v{vt[1]}, v{vL}, 2, 1")
    E(f"v_cmp_eq_u32 vcc, v{vt[1]}, v{vHH}")
    E(f"v_mov_b32 v{vKa}, {ZKV}")
    E(f"v_cndmask_b32 v{vKa}, v{vKa}, v{vt[2]}, vcc")
    E(f"v_cndmask_b32 v{vt[0]}, 64, v{vt[0]}, vcc")
    E(f"v_and_b32 v{vt[1]}, 1, v{vt[0]}")
    E(f"v_lshlrev_b32 v{vt[1]}, 4, v{vt[1]}")
    E(f"v_mov_b32 v{vt[2]}, 0x3f80")
    E(f"v_lshlrev_b32 v{vt[1]}, v{vt[1]}, v{vt[2]}")
    E(f"v_lshrrev_b32 v{vt[0]}, 1, v{vt[0]}")
    for i in range(4):
        E(f"v_cmp_eq_u32 vcc, {i}, v{vt[0]}")
        E(f"v_cndmask_b32 v{ID+i}, 0, v{vt[1]}, vcc")
    E(f"v_and_b32 v{vt[1]}, 1, v{vG}")
    E(f"v_mul_u32_u24 v{vt[1]}, 20480, v{vt[1]}")
    E(f"v_lshl_add_u32 v{vt[1]}, v{vC}, 4, v{vt[1]}")
    E(f"v_mul_u32_u24 v{vO1}, 768, v{vHH}")
    E(f"v_add_u32 v{vO1}, v{vO1}, v{vt[1]}")
    E(f"v_lshl_add_u32 v{vO3}, v{vHH}, 26, v{vt[1]}")
    E(f"s_lshl_b32 s{sT0}, s{sR}, 2")
    E(f"s_add_u32 s{sT0}, s{sT0}, s{sW}")
    E(f"s_mul_i32 s{sT0}, s{sT0}, 40960")
    E(f"s_mul_i32 s{sT1}, s{sPQ}, 1280")
    E(f"s_add_u32 s{sT0}, s{sT0}, s{sT1}")
    E(f"s_add_u32 s{sOS}, s{sT0}, {G.O_BASE}")
    E(f"v_lshlrev_b32 v{vC4}, 2, v{vC}")
    E(f"s_lshl_b32 s{sFO}, s{sTBo}, 3")
    E(f"s_add_u32 s{sFO}, s{sFO}, s{sCT}")
    E(f"s_lshl_b32 s{sFO}, s{sFO}, 2")
    E(f"s_add_u32 s{sFO}, s{sFO}, s{sW}")
    E(f"s_lshl_b32 s{sFO}, s{sFO}, 7")
    E(f"s_add_u32 s{sFO}, s{sFO}, {G.FLAGO_BASE}")
    E(f"s_mul_i32 s{sOL}, s{sTBo}, 81920")
    E(f"s_mul_i32 s{sT0}, s{sW}, 5120")
    E(f"s_add_u32 s{sOL}, s{sOL}, s{sT0}")
    E(f"s_add_u32 s{sOL}, s{sOL}, {G.O_BASE}")
    E(f"s_lshl_b32 s{sWL}, s{sCT}, 2")
    E(f"s_add_u32 s{sWL}, s{sWL}, s{sW}")
    E(f"s_mul_i32 s{sWL}, s{sWL}, 25600")
    E(f"s_add_u32 s{sWL}, s{sWL}, {G.PWO_BASE}")
    E(f"v_mul_u32_u24 v{vRw}, 160, v{vC}")
    E(f"v_mul_u32_u24 v{vt[1]}, 40, v{vG}")
    E(f"s_mul_i32 s93, s{sW}, 2560")
    E(f"s_add_u32 s{sT0}, s93, 30720")
    E(f"v_add3_u32 v{vRw}, v{vRw}, v{vt[1]}, s{sT0}")
    for m in range(3):
        E(f"v_add_u32 v{vt[0]}, {64*m}, v{vL}")
        E(div_const(vt[1], vt[0], 10))
        E(f"v_mul_u32_u24 v{vt[1]}, 2400, v{vt[1]}")
        E(f"v_lshl_add_u32 v{vSo[m]}, v{vt[0]}, 4, v{vt[1]}")
    E(f"s_add_u32 s22, s{sW}, s{sCT}")
    E(f"s_and_b32 s22, s22, 3")
    E(f"s_lshl_b32 s{sOUT}, s{sTBo}, 2")
    E(f"s_add_u32 s{sOUT}, s{sOUT}, s22")
    E(f"s_mul_i32 s{sOUT}, s{sOUT}, {16*2560}")
    E(f"s_mul_i32 s{sT1}, s{sCT}, 160")
    E(f"s_add_u32 s{sOUT}, s{sOUT}, s{sT1}")
    E(f"s_lshl_b32 s{sF1}, s{sP}, 13")
    E(G.word_off(sF1, sR, 2, sT1))
    E(f"s_add_u32 s{sF1}, s{sF1}, {G.FLAGW_BASE}")
    E(f"s_lshl_b32 s{sFP}, s{sPQ}, 4")
    E(f"s_add_u32 s{sFP}, s{sFP}, s{sR}")
    E(f"s_lshl_b32 s{sFP}, s{sFP}, 9")
    E(f"s_add_u32 s{sFP}, s{sFP}, {G.FLAGW_BASE}")
    E(f"s_lshl_b32 s{sF2}, s{sR}, 1")
    E(f"s_add_u32 s{sF2}, s{sF2}, s{sFT}")
    E(f"s_lshl_b32 s{sF2}, s{sF2}, 12")
    E(G.word_off(sF2, sPQ, 2, sT1))
    E(f"s_add_u32 s{sF2}, s{sF2}, {G.FLAGO_BASE}")
    E(f"s_lshl_b32 s{sT1}, s{sW}, 7")
    E(f"s_add_u32 s{sFP}, s{sT1}, s{sFP}")
    for sa in (sFP, sFO): E(f"s_buffer_load_dword s23, s[{rWS}:{rWS+3}], s{sa} glc")
    vCo = TM + 15
    E(f"s_mul_i32 s{sT0}, s{sW}, 20")
    E(f"v_min_u32 v{vt[0]}, 19, v{vL}")
    E(f"v_add_u32 v{vt[0]}, s{sT0}, v{vt[0]}")
    E(f"v_lshrrev_b32 v{vt[1]}, 3, v{vt[0]}")
    E(f"v_and_b32 v{vt[0]}, 7, v{vt[0]}")
    E(f"v_lshlrev_b32 v{vt[0]}, 2, v{vt[0]}")
    E(f"v_lshl_add_u32 v{vCo}, v{vt[1]}, 7, v{vt[0]}")
    E(f"s_mov_b32 s{sFC}, {G.FLAGC_BASE}")
    GO = int(([a[5:] for a in sys.argv if a.startswith('--go=')] + ['7'])[0])
    OLDGO = any(a in sys.argv for a in ("--slab=4", "--slab=5", "--slab=6"))
    if OLDGO:
        E(f"s_lshl_b32 s39, s2, 7")
        E(f"s_add_u32 s39, s39, {G.FLAGG_BASE}")
        E(f"s_cmp_lg_u32 s{sW}, 0")
        E(f"s_cselect_b32 s39, {G.WS_SIZE}, s39")
    else:
        E(f"s_lshl_b32 s39, s2, 2")
        E(f"s_add_u32 s39, s39, s{sW}")
        E(f"s_lshl_b32 s39, s39, 7")
        E(f"s_add_u32 s39, s39, {G.FLAG_BASE + 32}")
        E(f"s_cmp_ge_u32 s2, {G.NB}")
        E(f"s_cselect_b32 s39, {G.WS_SIZE}, s39")
        E(f"v_and_b32 v{vFl}, 4, v{vC4}")
    sWk = [16, 17, 18, 19, 20]; sKo = [40, 41, 42, 43, 44]
    E(f"s_and_b32 s{sT0}, s{sTBo}, 3")
    for k in range(5):
        E(f"s_lshl_b32 s{sKo[k]}, s{sT0}, 10")
        E(f"s_mul_i32 s{sWk[k]}, s{sT0}, 5120")
        E(f"s_add_u32 s{sWk[k]}, s{sWk[k]}, s{sWL}")
        if k < 4:
            E(f"s_add_u32 s{sT0}, s{sT0}, 1")
            E(f"s_cmp_eq_u32 s{sT0}, 5")
            E(f"s_cselect_b32 s{sT0}, 0, s{sT0}")

    def rdW(sig, ks):
        b = WF + 16 * (ks % 2)
        return [f"ds_read_b64_tr_b16 {v(b+4*T+2*a,2)}, v{vWt[T]} offset:{wslot(sig) + 4096*ks + 1024*a}" for T in range(4) for a in range(2)]
    def rdX(sig):
        return [f"ds_read_b128 {v(XF+16*(sig%2)+4*j,4)}, v{vXrs[j]} offset:{4096*(sig%2)}" for j in range(4)]
    def mm(sig, ks):
        L = []
        for T in range(4):
            d = v(ACC + 16 * T, 16)
            if "--nomfma" in sys.argv:
                L.append(f"v_mov_b32 v{ACC+T}, v{WF+16*(ks%2)+4*T+3}"); continue
            if "--zop" in sys.argv:
                L.append(("group", [f"v_mov_b32 v{MP}, v{WF+16*(ks%2)+4*T+3}", f"{M32} {d}, {v(PF+16,4)}, {v(XF+16*(sig%2)+4*ks,4)}, {d if (sig or ks) else 0}"])); continue
            if "--swapab" in sys.argv:
                L.append(f"{M32} {d}, {v(XF+16*(sig%2)+4*ks,4)}, {v(WF+16*(ks%2)+4*T,4)}, {d if (sig or ks) else 0}"); continue
            if "--halfmfma" in sys.argv and T >= 2:
                L.append(f"v_mov_b32 v{MP}, v{WF+16*(ks%2)+4*T+3}"); continue
            if "--m16" in sys.argv:
                L.append(("group", [f"{M16} {v(ACC+16*T+4*(2*(ks%2)+e),4)}, {v(WF+16*(ks%2)+4*T,4)}, {v(XF+16*(sig%2)+4*((ks+e)%4),4)}, {v(ACC+16*T+4*(2*(ks%2)+e),4)}" for e in range(2)])); continue
            L.append(f"{M32} {d}, {v(WF+16*(ks%2)+4*T,4)}, {v(XF+16*(sig%2)+4*ks,4)}, {d if (sig or ks) else 0}")
        return L
    def weave(M, rd, vm):
        out = []
        n = (len(rd) + 2) // 3
        for i, x in enumerate(M):
            out.append(x)
            if i < 3: out += rd[n * i:n * (i + 1)]
            if i == 1 and len(vm) > 0: out.append(vm[0])
            if i == 3 and len(vm) > 1: out += vm[1:]
        return out
    wphi = [f"ds_write_b128 v{vPhi}, {v(TM,4)} offset:{TAB}", f"ds_write_b32 v{vPhi+1}, v{TM+4} offset:{TAB+4096}"]
    rphi = []
    for i in range(2):
        for c in range(3):
            for t in range(2):
                b = PF + 24 * i + 8 * c + 4 * t
                rphi.append(f"ds_read_b64_tr_b16 {v(b,2)}, v{vPa[i]} offset:{TAB + 320*c + 32*t}")
                if c < 2: rphi.append(f"ds_read_b64_tr_b16 {v(b+2,2)}, v{vPa[i]} offset:{TAB + 320*c + 160 + 32*t}")
    nld = f"buffer_load_dword v{vNon}, off, s[{rDBG}:{rDBG+3}], 0 offset:4 sc1"
    cld = f"buffer_load_dword v{vFc}, v{vCo}, s[{rWS}:{rWS+3}], s{sFC} offen sc1"
    opois = [f"buffer_store_dwordx4 {v(PN,4)}, v{vO1}, s[{rWS}:{rWS+3}], s{sOS} offen sc1",
             f"buffer_store_dwordx4 {v(PN,4)}, v{vO1}, s[{rWS}:{rWS+3}], s{sOS} offen offset:256 sc1",
             f"buffer_store_dwordx4 {v(PN,4)}, v{vO3}, s[{rWS}:{rWS+3}], s{sOS} offen offset:512 sc1"]
    allpois = [f"buffer_store_dwordx4 {v(PN,4)}, v{vL16}, s[{rWS}:{rWS+3}], s95 offen sc1"] + opois[:2] + [("tag", opois[2], "pois")]
    if "--earlypois" in sys.argv: E(allpois)
    if "--stages" in sys.argv: ST(E, "issued")
    E.wait_vm("S0")
    E("s_barrier")
    if "--stages" in sys.argv: ST(E, "B0")
    E(rdX(0)); E(rdW(0, 0))
    w2 = dmaW(2)
    E(w2[:2])
    pendW = w2[2:]
    for sig in range(10):
        xn = dmaX(sig + 2) if sig + 2 < 10 else []
        extra = [[], [], []]
        if sig == 8:
            extra = [wphi, [], []]
            pendW = [("tag", cld, "cfl")]
            if "--earlypois" not in sys.argv: xn = allpois
        if sig == 9:
            extra = [rphi[:7], rphi[7:14], rphi[14:]]
        if sig == GO: xn = xn + [None] * (3 - len(xn)) + [f"buffer_store_dword v{vNon}, off, s[{rWS}:{rWS+3}], s39 sc1" if OLDGO else f"buffer_store_dword v{vNon}, v{vFl}, s[{rWS}:{rWS+3}], s39 offen sc1"]
        xn = [x for x in xn if x is not None]
        FR = ([a[8:] for a in sys.argv if a.startswith('--front=')] + ['0'])[0]
        if FR == "1" and sig < 8:
            pendW = pendW + [("group", [("waitlg", "xr")] + xn[:2]), ("group", xn[2:])]; xn = []
        if FR == "2" and sig < 8:
            E(weave(mm(sig, 0), rdW(sig, 1) + extra[0], []))
            E(weave(mm(sig, 1), rdW(sig, 2) + extra[1], [("group", pendW[:2]), ("group", pendW[2:])]))
            E(weave(mm(sig, 2), rdW(sig, 3) + extra[2], [("group", xn[:2]), ("group", xn[2:])]))
        else:
            E(weave(mm(sig, 0), rdW(sig, 1) + extra[0], pendW))
            E(weave(mm(sig, 1), rdW(sig, 2) + extra[1], xn[:2]))
            E(weave(mm(sig, 2), rdW(sig, 3) + extra[2], xn[2:]))
        if sig < 9:
            E.wait_vm(f"S{sig+1}")
            if sig == GO - 1: G.snonce(E, vNon, issued=True)
            E.wait_lg()
            E("s_barrier")
            if "--stages" in sys.argv: ST(E, f"B{sig+1}")
            if sig == GO - 2: G.snonce_issue(E)
            wn = dmaW(sig + 3) if sig + 3 < 10 else []
            xr_ = rdX(sig + 1); xr_[-1] = ("tag", xr_[-1], "xr")
            if FR == "1":
                E(weave(mm(sig, 3), xr_[:1] + rdW(sig + 1, 0) + xr_[1:], [("group", wn[:2]), ("group", wn[2:])])); pendW = []
            elif FR == "2":
                E(weave(mm(sig, 3), xr_[:1] + rdW(sig + 1, 0) + xr_[1:], [])); pendW = wn
            else:
                E(weave(mm(sig, 3), xr_[:1] + rdW(sig + 1, 0) + xr_[1:], wn[:2]))
                pendW = wn[2:]
        else:
            E(mm(sig, 3))
    ST(E, "gemm")
    if "--gemmonly" in sys.argv:
        ST.dump(E, sW, ACC)
        E("s_endpgm")
        return ST

    def acc(sec, j):
        for T in range(4):
            for g_, e in enumerate(TA[T]):
                if e == (sec, j): return ACC + 16 * T + 4 * g_
    QB = XF
    PD = WF
    EE = TM
    def pack(sec, dst):
        return [f"v_cvt_pk_bf16_f32 v{dst+2*j+e}, v{acc(sec,j)+2*e}, v{acc(sec,j)+2*e+1}" for j in range(5) for e in range(2)]
    def premm(qb, i):
        L = []
        for c in range(3):
            for t in range(2):
                d = v(PD + 16 * t, 16)
                L.append(f"{M32} {d}, {v(PF+24*i+8*c+4*t,4)}, {v(qb+4*c,4)}, {d if c else 0}")
        return L
    def softmax(out_plus, out_minus, after_plus):
        PP = PD
        mx, mn, m = MP, vMn, MP
        L = [f"v_max3_f32 v{mx}, v{PP}, v{PP+1}, v{PP+2}", f"v_min3_f32 v{mn}, v{PP}, v{PP+1}, v{PP+2}"]
        for i in range(3, 19, 2):
            L += [f"v_max3_f32 v{mx}, v{mx}, v{PP+i}, v{PP+i+1}", f"v_min3_f32 v{mn}, v{mn}, v{PP+i}, v{PP+i+1}"]
        L += [f"v_max_f32 v{mx}, v{mx}, v{PP+19}", f"v_min_f32 v{mn}, v{mn}, v{PP+19}"]
        for sgn, dst, src, outp in ((1, EE, mx, out_plus), (-1, PP, mn, out_minus)):
            L.append(f"v_mul_f32 v{m}, s94, v{src}")
            for i in range(20):
                L.append(f"v_fma_f32 v{dst+i}, v{PP+i}, s94, -v{m}" if sgn > 0 else f"v_fma_f32 v{dst+i}, -v{PP+i}, s94, v{m}")
            for i in range(20):
                L.append(f"v_exp_f32 v{dst+i}, v{dst+i}")
                if i == 2: L.append(f"v_add_f32 v{m}, v{dst}, v{dst+1}")
                if i > 2: L.append(f"v_add_f32 v{m}, v{m}, v{dst+i-1}")
            L += [f"v_add_f32 v{m}, v{m}, v{dst+19}", f"v_rcp_f32 v{m}, v{m}"]
            for i in range(10):
                L.append(f"v_mul_f32 v{dst+2*i}, v{m}, v{dst+2*i}")
                L.append(f"v_mul_f32 v{dst+2*i+1}, v{m}, v{dst+2*i+1}")
                L.append(f"v_cvt_pk_bf16_f32 v{outp+i}, v{dst+2*i}, v{dst+2*i+1}")
            if sgn > 0: L += after_plus
        return L
    E(f"v_mov_b32 v{QB+10}, 0"); E(f"v_mov_b32 v{QB+11}, 0")
    E(pack(1, QB))
    VP = XF + 12
    QB2 = TM + 20
    side = pack(2, VP) + [f"v_mov_b32 v{VP+10}, 0x3f80", f"v_mov_b32 v{VP+11}, 0"] + \
           [f"ds_write_b128 v{vVw}, {v(VP+4*i,4)} offset:{5120+16*i}" for i in range(3)] + \
           pack(0, QB2) + [f"v_mov_b32 v{QB2+10}, 0", f"v_mov_b32 v{QB2+11}, 0"]
    E(merge(premm(QB, 0), side[:15])); E(side[15:])
    spin(E, ["s_sleep 2", cld], [f"v_cmp_ne_u32 vcc, s{sN}, v{vFc}"], "cfl")
    WOr = [ACC + 4 * i for i in range(16)] + [vXo[0], vWo[0], vWt[0]] + [XF + 20 + 4 * i for i in range(3)] + [TM + 4 * i for i in range(3)]
    assert all(r % 4 == 0 for r in WOr)
    vL4k = vVw
    NW1, NW2 = [int(x) for x in ([a[5:] for a in sys.argv if a.startswith('--wo=')] + ['14,22'])[0].split(',')]
    E(f"v_add_u32 v{vL4k}, 4096, v{vL16}")
    def wo_ld(i):
        k, T = divmod(i, 5)
        return f"buffer_load_dwordx4 {v(WOr[i],4)}, v{vL16 if T < 4 else vL4k}, s[{rWS}:{rWS+3}], s{sWk[k]} offen offset:{1024*(T%4)} sc1"
    PHK = XF + 12
    smk = softmax(PHK, PHK + 10, [f"ds_write_b128 v{vPk}, {v(PHK,4)}", f"ds_write_b128 v{vPk}, {v(PHK+4,4)} offset:16"])
    E(merge(smk[:8*NW1], [wo_ld(i) for i in range(NW1)])); E(smk[8*NW1:])
    for i in range(2, 5): E(f"ds_write_b128 v{vPk}, {v(PHK+4*i,4)} offset:{16*i}")
    ST(E, "phik")
    vPu = vFl
    H1, H2 = [int(x) for x in ([a[7:] for a in sys.argv if a.startswith('--hint=')] + ['0,1'])[0].split(',')]
    def push(cond, mask, saddr):
        skip = newlabel("nopush")
        E(cond)
        E(f"s_cbranch_scc1 {skip}")
        E(f"s_mov_b64 exec, {mask}")
        E.raw(f"    buffer_store_dword v{vNon}, v{vPu}, s[{rWS}:{rWS+3}], s{saddr} offen sc1")
        E("s_mov_b64 exec, -1")
        E.label(skip)
    E(f"v_lshlrev_b32 v{vPu}, 9, v{vL}")
    E(premm(QB2, 1))
    E.wait_vm("pois")
    E.wait_lg()
    E("s_barrier")
    ST(E, "xbar")
    KQ = [PF + 4 * i for i in range(12)] + [TM + 20 + 4 * i for i in range(4)]
    KD = XF
    def rdk(i):
        j, k2 = divmod(i, 2)
        L = []
        for a in range(2):
            L.append(f"ds_read_b64_tr_b16 {v(KQ[2*i]+2*a,2)}, v{vA} offset:{8192*j + 80*(16*k2+4*a)}")
        for a in range(2):
            L.append(f"ds_read_b64_tr_b16 {v(KQ[2*i+1]+2*a,2)}, v{vB} offset:{8192*j + 48*(16*k2+4*a)}")
        return L
    E(rdk(0) + rdk(1) + rdk(2))
    for i in range(8):
        if i == H1: push(f"s_cmp_lg_u32 s{sW}, 3", 0xffff, sF1)
        if i + 3 < 8: E(rdk(i + 3))
        d = v(KD, 16)
        E(f"{M32} {d}, {v(KQ[2*i],4)}, {v(KQ[2*i+1],4)}, {d if i else 0}")
    SFL = 60
    PH = XF
    smq = softmax(PH, PH + 10, [])
    E(smq[:10])
    KP = XF + 16
    for i in range(8):
        E(f"v_cvt_pk_bf16_f32 v{KP+i}, v{KD+2*i}, v{KD+2*i+1}")
        if i == 3: E(f"buffer_store_dwordx4 {v(KP,4)}, v{vS1}, s[{rWS}:{rWS+3}], s{sPS} offen sc1")
    E(f"buffer_store_dwordx4 {v(KP+4,4)}, v{vS2}, s[{rWS}:{rWS+3}], s{sPS} offen sc1")
    if H1 == 9: push(f"s_cmp_lg_u32 s{sW}, 0", 0xffff, sF1)
    ST(E, "T0")
    if "--qlow" in sys.argv: E("s_setprio 0")
    PLr = KQ
    pld = []
    E(f"s_and_b32 s21, s{sR}, 3")
    E(f"s_lshl_b32 s21, s21, 14")
    E(f"s_add_u32 s21, s21, s{sPL}")
    for r in range(16):
        pld.append(f"s_xor_b32 s9, s21, {G.P_PITCH*r}")
        pld.append(f"buffer_load_dwordx4 {v(PLr[r],4)}, v{vPi}, s[{rWS}:{rWS+3}], s9 offen sc1")
    pg = [("group", [pld[2*r], ("tag", pld[2*r+1], "part")]) for r in range(16)]
    E(merge(smq[10:-40], [wo_ld(i) for i in range(NW1, NW2)]))
    E(G.sflag_loads(sFP, 1, 4, SFL))
    E(smq[-40:])
    ok1 = newlabel("f1ok")
    E.wait_lg()
    E(G.sflag_check(4, SFL))
    E(f"s_cbranch_scc0 {ok1}")
    G.sflag_wait(E, sFP, 1, 4, SFL)
    E.label(ok1)
    if "--qlow" in sys.argv: E(f"s_setprio {G.APRIO}")
    E("s_barrier")
    ST(E, "f1ok")
    NP0 = int(([a[6:] for a in sys.argv if a.startswith('--np0=')] + ['16'])[0])
    E(pg[:NP0])
    RD_ = WF
    vCk = MP
    def reduce_items():
        L = []
        for r in range(16):
            d = v(RD_, 16); p = PLr[r]
            L.append(f"{M32} {d}, {v(ID,4)}, {v(p,4)}, {d if r else 0}")
            L.append(f"v_max3_u32 v{vCk}, v{p}, v{p+1}, {'v%d' % vCk if r else 0}")
            L.append(f"v_max3_u32 v{vCk}, v{p+2}, v{p+3}, v{vCk}")
        L.append(f"v_cmp_eq_u32 vcc, -1, v{vCk}")
        return L
    def retry(loads, check, left=0):
        ok = newlabel("rok"); sp = newlabel("rsp")
        E(f"s_cbranch_vccz {ok}")
        E.raw("    s_mov_b32 s13, 0")
        E.label(sp)
        for t in ["s_sleep 1" if left else "s_sleep 2"] + loads + ["s_add_u32 s13, s13, 1", f"s_cmp_gt_u32 s13, {G.SPIN_MAX}", f"s_cbranch_scc1 {ok}", f"s_waitcnt vmcnt({left})"] + check + [f"s_cbranch_vccnz {sp}"]:
            E.raw("    " + t)
        E.label(ok)
    ri = reduce_items()
    for r in range(16):
        E(ri[3 * r])
        if NP0 + r < 16: E([pg[NP0 + r]])
        E(ri[3 * r + 1:3 * r + 3])
    E(ri[48:])
    retry(pld, reduce_items())
    ST(E, "part")
    SM = WF + 16
    for e in range(4): E(f"v_cvt_pk_bf16_f32 v{SM+e}, v{RD_+2*e}, v{RD_+2*e+1}")
    E(f"ds_write_b128 v{vPi}, {v(SM,4)} offset:{KVT}")
    E.wait_lg()
    E("s_barrier")
    OD = WF
    AF = PF
    fo = [(c, t) for c in range(5) for t in (1, 0)]
    for i, (c, t) in enumerate(fo): E(f"ds_read_b128 {v(AF+4*i,4)}, v{vKa} offset:{384*c + 256*t}")
    sTile = [72, 73, 74, 75]
    vOk = [vPk, vS1, vS2, vPi, vMn]
    pre = []
    for i in range(4):
        pre += [("group", [f"s_add_u32 s9, s22, {i+1}", f"s_and_b32 s9, s9, 3", f"s_mul_i32 s{sTile[i]}, s9, 20480", f"s_add_u32 s{sTile[i]}, s{sTile[i]}, s{sOL}",
                f"s_cmp_ge_u32 s9, 2", f"s_cselect_b32 s8, 18432, 0", f"s_mul_i32 s9, s9, 15360", f"s_add_u32 s9, s9, s8",
                f"v_add_u32 v{vXrs[i]}, s9, v{vL16}"])]
    pre += [("group", [f"v_add_u32 v{vOk[k]}, s{sKo[k]}, v{vL16}" for k in range(5)])]
    om = []
    for i, (c, t) in enumerate(fo):
        d = v(OD + 16 * t, 16)
        om.append(f"{M32} {d}, {v(AF+4*i,4)}, {v(PH+4*c,4)}, {d if c else 0}")
    if H2 == 0: push(f"s_cmp_lg_u32 s{sH}, 0", 0xff, sF2)
    E(merge(om, pre))
    if H2 == 1: push(f"s_cmp_lg_u32 s{sH}, 0", 0xff, sF2)
    E(f"v_add_f32 v{MP}, {f32(1e-6)}, v{OD+20}")
    E(f"v_rcp_f32 v{MP}, v{MP}")
    OP = TM + 20
    for i in (8, 9, 0, 1, 2, 3, 4, 5, 6, 7):
        E(f"v_mul_f32 v{OD+2*i}, v{MP}, v{OD+2*i}"); E(f"v_mul_f32 v{OD+2*i+1}, v{MP}, v{OD+2*i+1}")
        E(f"v_cvt_pk_bf16_f32 v{OP+i}, v{OD+2*i}, v{OD+2*i+1}")
        if i == 0:
            E(f"v_permlane32_swap_b32 v{OP+8}, v{OP+10}"); E(f"v_permlane32_swap_b32 v{OP+9}, v{OP+11}")
            E(f"buffer_store_dwordx4 {v(OP+8,4)}, v{vO3}, s[{rWS}:{rWS+3}], s{sOS} offen offset:512 sc1")
        if i == 3: E(f"buffer_store_dwordx4 {v(OP,4)}, v{vO1}, s[{rWS}:{rWS+3}], s{sOS} offen sc1")
    E(f"buffer_store_dwordx4 {v(OP+4,4)}, v{vO1}, s[{rWS}:{rWS+3}], s{sOS} offen offset:256 sc1")
    if H2 == 9: push(f"s_cmp_lg_u32 s{sH}, 0", 0xff, sF2)
    ST(E, "opub")
    for i in range(NW2, 25): E(wo_ld(i))
    OFr = [PF + 4 * i for i in range(12)] + [WF + 4 * i for i in range(8)]
    OA = [[XF + 4 * T for T in range(5)], [TM + 12 + 4 * T for T in range(5)]]
    G.sflag_wait(E, sFO, 1, 4, SFL)
    ST(E, "f2ok")
    def o_ld(i):
        return [f"buffer_load_dwordx4 {v(OFr[5*i+k],4)}, v{vOk[k]}, s[{rWS}:{rWS+3}], s{sTile[i]} offen sc1" for k in range(5)]
    NO0 = int(([a[6:] for a in sys.argv if a.startswith('--no0=')] + ['10'])[0])
    oall = sum([o_ld(i) for i in range(4)], [])
    E(oall[:NO0])
    pend = []
    def chk_of(i):
        rg = [OFr[5 * i + k] + e for k in range(5) for e in range(4)]
        return [f"v_max_u32 v{MP}, v{rg[0]}, v{rg[1]}"] + [f"v_max3_u32 v{MP}, v{MP}, v{rg[e]}, v{rg[e+1]}" for e in range(2, 20, 2)] + [f"v_cmp_eq_u32 vcc, -1, v{MP}"]
    E(chk_of(0))
    for i in range(4):
        RT = int(([a[5:] for a in sys.argv if a.startswith('--rt=')] + ['4'])[0])
        retry(sum([o_ld(k) for k in range(i, min(4, i + RT))], []), chk_of(i), 5 if (RT == 2 and i == 0 and NO0 == 10) else 0)
        if i == 0: ST(E, "ofr")
        M = []
        for k in range(5):
            for T in range(5):
                d = v(OA[i % 2][T], 4)
                M.append(f"{M16} {d}, {v(WOr[5*k+T],4)}, {v(OFr[5*i+k],4)}, {d if k else 0}")
        if i == 0: pend = oall[NO0:]
        if i < 3:
            E(M[:4]); E(merge(M[4:14], pend)); E(merge(M[14:], chk_of(i + 1)))
            pend = [f"ds_write_b128 v{vXrs[i]}, {v(OA[i%2][T],4)} offset:{5120*i + 1024*T}" for T in range(5)]
        else:
            RRr = OFr[:15]
            E(M[:3]); E(merge(M[3:8], pend)); E(M[8:11])
            E.wait_lg()
            E("s_barrier")
            rds = [f"ds_read_b128 {v(RRr[5*j+T],4)}, v{vXrs[3]} offset:{5120*j + 1024*T}" for T in range(5) for j in range(3)]
            E(rds[:3]); E(merge(M[11:23], rds[3:])); E(M[23:])
    ST(E, "ogemm")
    RP = ACC
    for T in range(5):
        for e in range(4): E(f"v_add_f32 v{RRr[T]+e}, v{RRr[T]+e}, v{RRr[5+T]+e}") if T < 2 else None
        if T >= 2:
            for e in (0, 2): E(f"v_pk_add_f32 {v(RRr[T]+e,2)}, {v(RRr[T]+e,2)}, {v(RRr[5+T]+e,2)}")
    for T in range(5):
        for e in (0, 2):
            E(f"v_pk_add_f32 {v(OA[1][T]+e,2)}, {v(OA[1][T]+e,2)}, {v(RRr[10+T]+e,2)}")
            E(f"v_pk_add_f32 {v(OA[1][T]+e,2)}, {v(OA[1][T]+e,2)}, {v(RRr[T]+e,2)}")
        E(f"v_cvt_pk_bf16_f32 v{RP+2*T}, v{OA[1][T]}, v{OA[1][T]+1}")
        E(f"v_cvt_pk_bf16_f32 v{RP+2*T+1}, v{OA[1][T]+2}, v{OA[1][T]+3}")
    E(f"v_add_u32 v{vPk}, s93, v{vL16}")
    for T in range(5): E(f"ds_write_b64 v{vRw}, {v(RP+2*T,2)} offset:{8*T}")
    for m in range(3): E(f"ds_read_b128 {v(RP+12+4*m,4)}, v{vPk} offset:{30720 + 1024*m}")
    for m in range(3):
        if m == 2: E("s_mov_b32 exec_hi, 0")
        E(f"buffer_store_dwordx4 {v(RP+12+4*m,4)}, v{vSo[m]}, s[{rOUT}:{rOUT+3}], s{sOUT} offen {G.OUTA}")
    E("s_mov_b64 exec, -1")
    if G.PROFILE:
        E.wait_vm()
        ST(E, "end")
    PAD = [a[6:] for a in sys.argv if a.startswith("--pad=")]
    if PAD:
        E.label("L_pad")
        for t in ["s_memrealtime s[14:15]", "s_waitcnt lgkmcnt(0)", f"s_sub_u32 s14, s14, s{sN}", f"s_cmp_lt_u32 s14, {PAD[0]}", "s_cbranch_scc1 L_pad"]: E.raw("    " + t)
    ST.dump(E, sW, RP + 40)
    E("s_endpgm")
    return ST
```

```python
import math, sys
from asmlib import *
M16 = "v_mfma_f32_16x16x32_bf16"

def gen_B(E, G):
    f32, f32val, Alloc, srd, spin, newlabel, cmul, zipl = G.f32, G.f32val, G.Alloc, G.srd, G.spin, G.newlabel, G.cmul, G.zipl
    rWS, rOUT, rDBG, rIN = G.rWS, G.rOUT, G.rDBG, G.rIN
    sN = G.sN
    G.fresh(E)
    ST = G.Stamps(84)
    sW, sCG, sD, sTB, sCB, sSC, sKT, sT0, sT1, sT2 = 76, 77, 78, 79, 80, 81, 82, 4, 5, 6
    sUS, sUT, sFU, sFUp, sFY, sFYp, sUI, sYS, sYL, sYO = 64, 65, 66, 67, 68, 69, 70, 71, 72, 73
    U_IMG = 2048; KT_BASE = 18432; KT_SZ = 3072; SC_BASE = 30720; SC_SZ = 11 * 1040
    Y_OFF = 6144; Y_PITCH = SC_SZ + 144
    SIG_SZ = 136 * 17
    SIG2 = 2 * SIG_SZ; SIG2_SZ = 136 * 25
    A = Alloc(1, 256)
    vL = A(); vG = A(); vC = A()
    vt = [A() for _ in range(8)]
    big = A(160, 4)
    KG = A(32, 4)
    BN = A(16, 4)
    EPH = A(24, 4); X = Alloc(EPH, EPH + 26); A(2)
    P = [big + 124 + i for i in range(6)]
    assert P[0] == 136 and sCG == 77
    E.vmq += [(None, {("v", r)}) for r in P]
    E.lgq = [("__smem", {("s", 100), ("s", 101), ("s", 16), ("s", 17)})]
    E(f"v_and_b32 v{vL}, 63, v0")
    E(f"v_lshrrev_b32 v{vt[0]}, 6, v0")
    E(f"v_lshrrev_b32 v{vG}, 4, v{vL}")
    E(f"v_readfirstlane_b32 s{sW}, v{vt[0]}")
    E(f"v_and_b32 v{vC}, 15, v{vL}")
    E(f"s_mul_hi_u32 s{sTB}, s{sCG}, 0x33333334")
    E(f"s_mul_i32 s{sT0}, s{sTB}, 5")
    E(f"s_sub_u32 s{sCB}, s{sCG}, s{sT0}")
    vPo = vt[2]; vSo = X(); vL16 = A()
    SLAB = int(([a[7:] for a in sys.argv if a.startswith('--slab=')] + ['9'])[0])
    NWAIT = int(([a[8:] for a in sys.argv if a.startswith('--nwait=')] + ['160'])[0])
    PUBAT = int(([a[8:] for a in sys.argv if a.startswith('--pubat=')] + ['5'])[0])
    def slab_in():
        if "--xnomem" in sys.argv: return
        E("s_setprio 3")
        for i in range(4):
            E(f"s_add_u32 m0, s{sUS}, {1024*i}")
            E(f"s_add_u32 s{sT1}, s74, {4*1280*i}")
            E(f"buffer_load_dwordx4 v{vSo}, s[{rIN}:{rIN+3}], s{sT1} offen lds", tag="slab")
        E(f"s_setprio {G.BPRIO}")
    E(f"v_mul_u32_u24 v{vSo}, 1280, v{vG}")
    E(f"v_lshl_add_u32 v{vSo}, v{vC}, 4, v{vSo}")
    E(f"s_lshl_b32 s{sT0}, s{sTB}, 2")
    E(f"s_add_u32 s{sT0}, s{sT0}, s{sW}")
    E(f"s_mul_i32 s{sYO}, s{sT0}, {16*2560}")
    E(f"s_mul_i32 s{sT0}, s{sT0}, {16*1280}")
    E(f"s_lshl_b32 s{sT1}, s{sCB}, 8")
    E(f"s_add_u32 s74, s{sT0}, s{sT1}")
    E(f"s_add_u32 s{sYO}, s{sYO}, s{sT1}")
    E(f"s_add_u32 s{sYO}, s{sYO}, 1280")
    E(f"s_lshl_b32 s{sUS}, s{sW}, 12")
    E(f"s_add_u32 s{sUS}, s{sUS}, {U_IMG}")
    ST(E, "start")
    if "--noB0" not in sys.argv:
        srd(E, rIN, G.pU, 2621440)
        if SLAB in (0, 3, 5): slab_in()
    srd(E, rDBG, G.pDBG, 256)
    skip = newlabel("nonce")
    E(f"s_or_b32 s{sT0}, s{sCG}, s{sW}")
    E(f"s_cbranch_scc1 {skip}")
    E.raw("    s_or_b32 s10, s10, 1")
    E.raw(f"    v_mov_b32 v{vt[0]}, s10")
    E.raw("    s_mov_b64 exec, 1")
    E.raw(f"    buffer_store_dword v{vt[0]}, off, s[{rDBG}:{rDBG+3}], 0 offset:4 sc1")
    E.raw("    s_mov_b64 exec, -1")
    E.label(skip)
    srd(E, rWS, G.pWS, G.WS_SIZE)
    if "--noB0" in sys.argv:
        ST.dump(E, sW, big)
        E("s_endpgm")
        return ST
    srd(E, rOUT, G.pOUT, 5242880)
    E(f"s_setprio {G.BPRIO}")
    E(f"s_mul_i32 s{sSC}, s{sW}, {SC_SZ}")
    E(f"s_add_u32 s{sSC}, s{sSC}, {SC_BASE}")
    E(f"s_mul_i32 s{sKT}, s{sW}, {KT_SZ}")
    E(f"s_add_u32 s{sKT}, s{sKT}, {KT_BASE}")
    E(f"v_lshlrev_b32 v{vL16}, 4, v{vL}")
    vZ = big + 132
    E(f"v_mov_b32 v{vZ}, 0"); E(f"v_mov_b32 v{vZ+1}, 0")
    E(f"v_lshlrev_b32 v{vt[0]}, 3, v0")
    E(f"ds_write_b64 v{vt[0]}, {v(vZ,2)}")
    E(f"v_min_u32 v{vt[0]}, 8, v{vC}")
    E(f"v_lshl_add_u32 v{vt[0]}, v{vt[0]}, 2, s{sKT}")
    TA_POS = 672; TB_POS = TA_POS + 272
    for o in (0, 2 * TA_POS, 2 * TB_POS): E(f"ds_write_b32 v{vt[0]}, v{vZ} offset:{o}")
    CB = 1232
    E(f"v_lshl_add_u32 v{vt[1]}, v{vL}, 3, s{sKT}")
    E(f"ds_write_b64 v{vt[1]}, {v(vZ,2)} offset:{2*CB}")
    E(f"ds_write_b32 v{vt[0]}, v{vZ} offset:{2*CB + 512}")
    E(f"ds_write_b32 v{vt[0]}, v{vZ} offset:{2*398 - 32}")
    vLm = vt[7]
    E(f"v_lshlrev_b32 v{vt[0]}, 3, v{vG}")
    E(f"v_sub_u32 v{vLm}, v{vC}, v{vt[0]}")
    E(f"v_add_u32 v{vLm}, 33, v{vLm}")
    vLf = vt[6]; vK1 = vt[5]
    E(f"v_cvt_f32_u32 v{vLf}, v{vLm}")
    E(f"s_mov_b32 s7, 0x0202")
    E(f"s_mov_b32 s8, 0x10001")
    E(f"v_mov_b32 v{vK1}, 0x01000100")
    sel = {}; adr = {}
    for name, srep, js in (("d", 5, [3]), ("1", 9, [3, 2])):
        base = 32 * srep - 24
        vb = vt[2]
        for j in js:
            r = X(); sel[(name, j)] = r
            E(f"v_add_f32 v{vt[0]}, {f32(base + 7 - 2*j)}, v{vLf}")
            E(f"v_add_f32 v{vt[1]}, {f32(base + 6 - 2*j)}, v{vLf}")
            E(f"v_cvt_pk_bf16_f32 v{r}, v{vt[0]}, v{vt[1]}")
            if j == 3:
                E(f"v_lshrrev_b32 v{vt[3]}, 17, v{r}")
                E(f"v_lshlrev_b32 v{vt[3]}, 1, v{vt[3]}")
                E(f"v_mul_u32_u24 v{vb}, s8, v{vt[3]}")
                a = X(); adr[name] = a
                if name == "d":
                    E(f"v_and_b32 v{a}, -2, v{vLm}")
                    E(f"v_lshl_add_u32 v{a}, v{a}, 1, s{sKT}")
                    E(f"v_subrev_u32 v{a}, 16, v{a}")
                else:
                    E(f"v_lshl_add_u32 v{a}, v{vt[3]}, 1, s{sKT}")
                    E(f"v_subrev_u32 v{a}, {2*(0x4300-272)}, v{a}")
            E(f"v_sub_u32 v{r}, v{r}, v{vb}")
            E(f"v_mad_u32_u24 v{r}, v{r}, s7, v{vK1}")
    E(f"v_subrev_u32 v{vt[0]}, 9, v{vLm}")
    E(f"v_min_u32 v{vt[0]}, 31, v{vt[0]}")
    E(f"s_movk_i32 s7, 0x3f80")
    for bI, mask in enumerate((0x1ff << 15, 0x7f << 16, 0x1f << 17, 0x7 << 18)):
        E(f"s_mov_b32 s8, {mask}")
        E(f"v_lshrrev_b32 v{vt[1]}, v{vt[0]}, s8")
        for j in range(4):
            E(f"v_bfe_u32 v{vt[2]}, v{vt[1]}, {7-2*j}, 1")
            E(f"v_bfe_u32 v{vt[3]}, v{vt[1]}, {6-2*j}, 1")
            E(f"v_lshl_or_b32 v{vt[2]}, v{vt[3]}, 16, v{vt[2]}")
            E(f"v_mul_u32_u24 v{BN+4*bI+j}, s7, v{vt[2]}")
    aT = X(); aS = A(); aW = A()
    E(f"v_and_b32 v{vt[0]}, 1, v{vG}")
    E(f"v_lshrrev_b32 v{vt[1]}, 1, v{vG}")
    E(f"v_lshlrev_b32 v{vt[2]}, 3, v{vt[0]}")
    E(f"v_sub_u32 v{aT}, v{vC}, v{vt[2]}")
    E(f"v_add_u32 v{aT}, {TA_POS + 11}, v{aT}")
    E(f"v_and_b32 v{aT}, -2, v{aT}")
    E(f"v_mul_u32_u24 v{vt[2]}, 272, v{vt[1]}")
    E(f"v_add_u32 v{aT}, v{aT}, v{vt[2]}")
    E(f"v_lshl_add_u32 v{aT}, v{aT}, 1, s{sKT}")
    E(f"v_lshlrev_b32 v{vt[2]}, 1, v{vt[1]}")
    E(f"v_sub_u32 v{vt[2]}, v{vC}, v{vt[2]}")
    E(f"v_add_u32 v{vt[2]}, 13, v{vt[2]}")
    E(f"v_lshrrev_b32 v{vt[3]}, 4, v{vt[2]}")
    E(f"v_add_lshl_u32 v{aS}, v{vt[2]}, v{vt[3]}, 3")
    E(f"v_mul_u32_u24 v{vt[2]}, 272, v{vt[0]}")
    E(f"v_mul_u32_u24 v{vt[3]}, {SIG_SZ}, v{vt[1]}")
    E(f"v_add3_u32 v{aS}, v{aS}, v{vt[2]}, v{vt[3]}")
    E(f"v_add_u32 v{aS}, s{sSC}, v{aS}")
    aT2 = X(); aS2 = A()
    E(f"v_add_u32 v{aT2}, {CB + 3}, v{vC}")
    E(f"v_and_b32 v{aT2}, -2, v{aT2}")
    E(f"v_mul_u32_u24 v{vt[2]}, 68, v{vG}")
    E(f"v_add_u32 v{aT2}, v{aT2}, v{vt[2]}")
    E(f"v_lshl_add_u32 v{aT2}, v{aT2}, 1, s{sKT}")
    E(f"v_sub_u32 v{vt[2]}, v{vC}, v{vG}")
    E(f"v_add_u32 v{vt[2]}, 13, v{vt[2]}")
    E(f"v_lshrrev_b32 v{vt[3]}, 4, v{vt[2]}")
    E(f"v_add_lshl_u32 v{aS2}, v{vt[2]}, v{vt[3]}, 3")
    E(f"v_mul_u32_u24 v{vt[2]}, {SIG2_SZ}, v{vt[0]}")
    E(f"v_add3_u32 v{aS2}, v{aS2}, v{vt[2]}, s{sSC}")
    E(f"v_lshl_add_u32 v{vt[2]}, v{vC}, 2, v{vG}")
    E(f"v_lshrrev_b32 v{vt[3]}, 2, v{vC}")
    E(f"v_add_lshl_u32 v{aW}, v{vt[2]}, v{vt[3]}, 3")
    E(f"v_add_u32 v{aW}, s{sSC}, v{aW}")
    vMa = X(); vMb = X(); vMw = X()
    E(f"v_lshlrev_b32 v{vt[0]}, 1, v{vL}")
    E(f"v_add_u32 v{vt[1]}, 256, v{vt[0]}")
    E(f"v_add_u32 v{vt[2]}, {496-32}, v{vt[0]}")
    E(f"v_cmp_lt_u32 vcc, 15, v{vL}")
    E(f"v_cndmask_b32 v{vt[1]}, v{vt[1]}, v{vt[2]}, vcc")
    E(f"v_add_u32 v{vt[2]}, {1008-80}, v{vt[0]}")
    E(f"v_cmp_lt_u32 vcc, 39, v{vL}")
    E(f"v_cndmask_b32 v{vt[1]}, v{vt[1]}, v{vt[2]}, vcc")
    E(f"s_sub_u32 s{sT0}, s{sKT}, {2*(0x4300-272)}")
    for h, dst in enumerate((vMa, vMb)):
        if h: E(f"v_add_u32 v{vt[1]}, 1, v{vt[1]}")
        E(f"v_cvt_f32_u32 v{vt[2]}, v{vt[1]}")
        E(f"v_subrev_u32 v{vt[3]}, 1027, v{vt[1]}")
        E(f"v_cvt_pk_bf16_f32 v{vt[2]}, v{vt[2]}, 0")
        E(f"v_cmp_gt_u32 s[14:15], 9, v{vt[3]}")
        E(f"v_cmp_gt_u32 vcc, 526, v{vt[1]}")
        E(f"v_lshl_add_u32 v{vt[2]}, v{vt[2]}, 1, s{sT0}")
        E(f"s_or_b64 vcc, vcc, s[14:15]")
        E(f"v_mov_b32 v{dst}, s{sKT}")
        E(f"v_cndmask_b32 v{dst}, v{dst}, v{vt[2]}, vcc")
    E(f"v_lshl_add_u32 v{vMw}, v{vL}, 2, s{sKT}")
    for dst, pos in ((vMa, 2 * 652), (vMb, 2 * 656), (vMw, 2 * (CB + 48) - 544)):
        E(f"s_add_u32 s{sT1}, s{sKT}, {pos}")
        E(f"v_writelane_b32 v{dst}, s{sT1}, 63")
    a0 = [X(), X()]; a1 = [X(), X()]; a2 = X(); a3 = X()
    st = vt[2]
    E(f"v_lshlrev_b32 v{a0[0]}, 4, v{vC}")
    E(f"v_lshl_add_u32 v{a0[0]}, v{vG}, 3, v{a0[0]}")
    E(f"v_add_u32 v{a0[0]}, 32, v{a0[0]}")
    E(f"v_mov_b32 v{st}, 256")
    E(f"v_lshlrev_b32 v{vt[3]}, 3, v{vC}")
    E(f"v_add_u32 v{vt[3]}, 800, v{vt[3]}")
    E(f"v_mov_b32 v{vt[4]}, 128")
    E(f"v_cmp_eq_u32 vcc, 2, v{vG}")
    E(f"v_cndmask_b32 v{a0[0]}, v{a0[0]}, v{vt[3]}, vcc")
    E(f"v_cndmask_b32 v{st}, v{st}, v{vt[4]}, vcc")
    E(f"v_lshlrev_b32 v{vt[3]}, 2, v{vC}")
    E(f"v_add_u32 v{vt[3]}, 1056, v{vt[3]}")
    E(f"v_mov_b32 v{vt[5]}, 64")
    E(f"v_cmp_eq_u32 vcc, 3, v{vG}")
    E(f"v_cndmask_b32 v{a0[0]}, v{a0[0]}, v{vt[3]}, vcc")
    E(f"v_cndmask_b32 v{st}, v{st}, v{vt[5]}, vcc")
    E(f"v_cndmask_b32 v{a1[0]}, 4, v{vt[4]}, vcc")
    E(f"v_add_u32 v{a0[0]}, s{sKT}, v{a0[0]}")
    E(f"v_add_u32 v{a1[0]}, v{a0[0]}, v{a1[0]}")
    E(f"v_add_u32 v{a0[1]}, v{a0[0]}, v{st}")
    E(f"v_add_u32 v{a1[1]}, v{a1[0]}, v{st}")
    E(f"v_and_b32 v{vt[0]}, 1, v{vC}")
    E(f"v_mul_u32_u24 v{vt[0]}, 272, v{vt[0]}")
    E(f"v_lshrrev_b32 v{vt[1]}, 1, v{vC}")
    E(f"v_lshl_add_u32 v{vt[1]}, v{vG}, 6, v{vt[1]}")
    E(f"v_add3_u32 v{vt[0]}, v{vt[0]}, v{vt[1]}, {17}")
    E(f"v_lshl_add_u32 v{a2}, v{vt[0]}, 1, s{sKT}")
    E(f"v_lshl_add_u32 v{vt[0]}, v{vL}, 1, s{sKT}")
    E(f"v_subrev_u32 v{vt[0]}, {2*(TA_POS-656)}, v{vt[0]}")
    E(f"v_cmp_gt_u32 vcc, 2, v{vL}")
    E(f"v_cndmask_b32 v{a3}, v{a2}, v{vt[0]}, vcc")
    a4 = X(); a5 = X()
    E(f"v_and_b32 v{vt[0]}, 1, v{vC}")
    E(f"v_mul_u32_u24 v{vt[0]}, 136, v{vt[0]}")
    E(f"v_lshrrev_b32 v{vt[1]}, 1, v{vC}")
    E(f"v_add3_u32 v{vt[0]}, v{vt[0]}, v{vt[1]}, 17")
    E(f"v_lshl_add_u32 v{vt[0]}, v{vt[0]}, 1, s{sKT}")
    E(f"s_sub_u32 s{sT0}, s{sKT}, {2*(CB - TB_POS - 120)}")
    E(f"v_mov_b32 v{vt[1]}, s{sT0}")
    E(f"v_cmp_lt_u32 vcc, 47, v{vL}")
    E(f"v_cndmask_b32 v{a4}, v{vt[1]}, v{vt[0]}, vcc")
    E(f"v_cmp_lt_u32 vcc, 49, v{vL}")
    E(f"v_cndmask_b32 v{a5}, v{vt[1]}, v{vt[0]}, vcc")
    vTa = X(); vUo = X()
    E(f"v_and_b32 v{vt[0]}, 1, v{vG}")
    E(f"v_lshrrev_b32 v{vt[1]}, 1, v{vG}")
    E(f"v_lshrrev_b32 v{vt[2]}, 2, v{vC}")
    E(f"v_and_b32 v{vt[3]}, 3, v{vC}")
    E(f"v_lshl_add_u32 v{vTa}, v{vt[0]}, 3, v{vt[2]}")
    E(f"v_lshlrev_b32 v{vTa}, 8, v{vTa}")
    E(f"v_lshl_add_u32 v{vTa}, v{vt[1]}, 5, v{vTa}")
    E(f"v_lshl_add_u32 v{vTa}, v{vt[3]}, 3, v{vTa}")
    E(f"v_add_u32 v{vTa}, s{sUS}, v{vTa}")
    E(f"s_lshl_b32 s{sT0}, s{sTB}, 1")
    E(f"s_lshr_b32 s{sT1}, s{sW}, 1")
    E(f"s_add_u32 s{sT0}, s{sT0}, s{sT1}")
    E(f"v_add_u32 v{vt[3]}, s{sT0}, v{vt[3]}")
    E(f"v_and_b32 v{vt[3]}, 3, v{vt[3]}")
    E(f"v_lshl_add_u32 v{vUo}, v{vt[1]}, 2, v{vt[2]}")
    E(f"v_lshlrev_b32 v{vUo}, 14, v{vUo}")
    E(f"v_lshl_add_u32 v{vUo}, v{vt[0]}, 6, v{vUo}")
    E(f"v_lshl_add_u32 v{vUo}, v{vt[3]}, 4, v{vUo}")
    E(f"s_lshl_b32 s{sUT}, s{sCB}, 19")
    E(f"s_lshl_b32 s{sT1}, s{sTB}, 9")
    E(f"s_add_u32 s{sUT}, s{sUT}, s{sT1}")
    E(f"s_lshl_b32 s{sT1}, s{sW}, 7")
    E(f"s_add_u32 s{sUT}, s{sUT}, s{sT1}")
    E(f"s_add_u32 s{sYL}, s{sUT}, {G.YT_BASE}")
    assert G.UT_BASE == 0
    E(f"s_lshl_b32 s{sFU}, s{sCB}, 14")
    E(f"s_lshl_b32 s{sT1}, s{sTB}, 9")
    E(f"s_add_u32 s{sFYp}, s{sFU}, s{sT1}")
    E(f"s_add_u32 s{sFYp}, s{sFYp}, {G.FLAGY_BASE}")
    E(G.word_off(sFU, sTB, 3, sT1))
    E(f"s_add_u32 s{sFU}, s{sFU}, {G.FLAG_BASE}")
    E(f"s_lshl_b32 s{sFUp}, s{sCG}, 9")
    E(f"s_add_u32 s{sFUp}, s{sFUp}, {G.FLAG_BASE}")
    E(f"s_lshr_b32 s{sFY}, s{sCG}, 5")
    E(f"s_lshl_b32 s{sFY}, s{sFY}, 14")
    E(f"s_and_b32 s{sT0}, s{sCG}, 31")
    E(G.word_off(sFY, sT0, 3, sT1))
    E(f"s_add_u32 s{sFY}, s{sFY}, {G.FLAGY_BASE}")
    E(f"s_lshl_b32 s{sT1}, s{sW}, 7")
    E(f"s_add_u32 s{sFUp}, s{sFUp}, s{sT1}")
    E(f"s_add_u32 s{sFYp}, s{sFYp}, s{sT1}")
    E(f"s_lshl_b32 s{sUI}, s{sCG}, 14")
    E(f"s_lshl_b32 s{sT1}, s{sW}, 12")
    E(f"s_add_u32 s{sUI}, s{sUI}, s{sT1}")
    E(f"s_add_u32 s{sYS}, s{sUI}, {G.YT_BASE}")
    vPu = A()
    E(f"v_lshlrev_b32 v{vPu}, 9, v{vL}")
    for sa in (sFUp, sFYp): E(f"s_buffer_load_dword s93, s[{rWS}:{rWS+3}], s{sa} glc")
    PP2 = 1024 + 16
    vWa = X(); vRa = X(); vRb = X()
    E(f"v_add_u32 v{vWa}, s{sSC}, v{vL16}")
    E(f"v_lshrrev_b32 v{vt[0]}, 1, v{vC}")
    E(f"v_mul_u32_u24 v{vRa}, {PP2}, v{vt[0]}")
    E(f"v_and_b32 v{vt[0]}, 1, v{vC}")
    E(f"v_lshl_add_u32 v{vRa}, v{vt[0]}, 3, v{vRa}")
    E(f"v_lshl_add_u32 v{vRa}, v{vG}, 5, v{vRa}")
    E(f"v_add_u32 v{vRa}, s{sSC}, v{vRa}")
    E(f"v_add_u32 v{vRb}, {8*PP2}, v{vRa}")
    vH = [A() for _ in range(4)]
    E(f"v_lshl_add_u32 v{vt[0]}, v{vC}, 1, v{vG}")
    for k in range(4):
        E(f"v_add_u32 v{vt[1]}, {30 - 16 - 4*k}, v{vt[0]}")
        E(f"v_lshrrev_b32 v{vt[2]}, 2, v{vt[1]}")
        E(f"v_add_u32 v{vt[2]}, s{sW}, v{vt[2]}")
        E(f"v_and_b32 v{vt[2]}, 3, v{vt[2]}")
        E(f"v_lshlrev_b32 v{vt[1]}, 6, v{vt[1]}")
        E(f"v_lshl_add_u32 v{vH[k]}, v{vt[2]}, 4, v{vt[1]}")
    L2E = math.log2(math.e); L2Eh = f32val(L2E); L2El = L2E - L2Eh
    I2P = 1 / (2 * math.pi); I2Ph = f32val(I2P); I2Pl = I2P - I2Ph
    vDt = vt[4]; vDsk = X(); vNon = A()
    E(f"s_mov_b32 s7, {f32(L2Eh)}")
    E(f"s_mov_b32 s8, {f32(I2Ph)}")
    E(f"s_lshl_b32 s{sT0}, s{sW}, 4")
    E(f"s_lshr_b64 s[100:101], s[100:101], s{sT0}")
    E(f"s_lshr_b64 s[16:17], s[16:17], s{sT0}")
    E(f"s_lshl_b32 s100, s100, 16")
    E(f"s_lshl_b32 s101, s16, 16")
    E(f"v_mov_b32 v{vt[0]}, s100")
    ST(E, "par")
    E(f"v_mul_f32 v{vt[1]}, s7, v{vt[0]}")
    E(f"v_fma_f32 v{vt[2]}, v{vt[0]}, s7, -v{vt[1]}")
    E(f"v_fmac_f32 v{vt[2]}, {f32(L2El)}, v{vt[0]}")
    E(f"v_exp_f32 v{vt[1]}, v{vt[1]}")
    E(f"v_mul_f32 v{vt[2]}, {f32(math.log(2))}, v{vt[2]}")
    E(f"v_fma_f32 v{vt[1]}, v{vt[1]}, v{vt[2]}, v{vt[1]}")
    E(f"v_cvt_pk_bf16_f32 v{vt[1]}, v{vt[1]}, v{vt[1]}")
    E(f"v_and_b32 v{vDt}, 0xffff0000, v{vt[1]}")
    A2 = Alloc(KG, KG + 32)
    PK = [A2(4, 4), A2(4, 4)]
    W1 = [A2(3, 1), A2(3, 1)]; W8 = [A2(3, 1), A2(3, 1)]; W256 = [A2(3, 1), A2(3, 1)]
    A3 = Alloc(big + 136, big + 160)
    XS = [[A3(2) for _ in range(4)] for _ in range(2)]
    XC = [A3(2), A3(2)]; XD = [A3(2), A3(2)]
    XU = [[big + 124, big + 126], [big + 128, big + 130]]
    tmp = big + 100
    per_n = []
    for n in range(2):
        t = [tmp + 12 * n + i for i in range(12)]
        un = (lambda d, src: f"v_lshlrev_b32 v{d}, 16, v{src}") if n == 0 else (lambda d, src: f"v_and_b32 v{d}, 0xffff0000, v{src}")
        L = [un(t[0], P[0]), un(t[1], P[1]),
             f"v_mul_f32 v{t[0]}, v{vDt}, v{t[0]}",
             f"v_mul_f32 v{t[1]}, v{vDt}, v{t[1]}",
             f"v_mul_f32 v{t[0]}, s7, v{t[0]}",
             f"v_mul_f32 v{t[6]}, s8, v{t[1]}",
             f"v_fma_f32 v{t[7]}, v{t[1]}, s8, -v{t[6]}",
             f"v_fmac_f32 v{t[7]}, {f32(I2Pl)}, v{t[1]}"]
        for e, Wd in ((1, W1[n]), (256, W256[n]), (8, W8[n])):
            if e == 1:
                L += [f"v_exp_f32 v{t[8]}, v{t[0]}", f"v_fract_f32 v{t[9]}, v{t[6]}", f"v_add_f32 v{t[9]}, v{t[9]}, v{t[7]}"]
            else:
                L += [f"v_mul_f32 v{t[8]}, {f32(e)}, v{t[0]}", f"v_mul_f32 v{t[9]}, {f32(e)}, v{t[6]}",
                      f"v_exp_f32 v{t[8]}, v{t[8]}", f"v_fract_f32 v{t[9]}, v{t[9]}", f"v_fmac_f32 v{t[9]}, {f32(e)}, v{t[7]}"]
            L += [f"v_cos_f32 v{t[10]}, v{t[9]}", f"v_sin_f32 v{t[11]}, v{t[9]}",
                  f"v_mul_f32 v{Wd}, v{t[8]}, v{t[10]}", f"v_mul_f32 v{Wd+1}, v{t[8]}, v{t[11]}", f"v_xor_b32 v{Wd+2}, 0x80000000, v{Wd+1}"]
        c0 = XS[n][0]
        L += [un(t[k], P[k]) for k in range(2, 6)]
        L += [f"v_mul_f32 v{t[2]}, v{vDt}, v{t[2]}", f"v_mul_f32 v{t[3]}, v{vDt}, v{t[3]}",
              f"v_mul_f32 v{c0}, v{t[4]}, v{t[2]}", f"v_mul_f32 v{c0+1}, v{t[5]}, v{t[2]}",
              f"v_fma_f32 v{c0}, -v{t[5]}, v{t[3]}, v{c0}", f"v_fmac_f32 v{c0+1}, v{t[4]}, v{t[3]}"]
        per_n.append(L)
    E(zipl(*per_n))
    E(f"v_cmp_eq_u32 vcc, 0, v{vL}")
    E(f"v_mov_b32 v{vDsk}, s101")
    E(f"v_cndmask_b32 v{vDsk}, 0, v{vDsk}, vcc")
    def put_row(row, regs, neg, last=False):
        p = PK[(row // 2) % 2]; q = p + 2 * (row % 2)
        sg = "-" if neg else ""
        L = [f"v_cvt_pk_bf16_f32 v{q}, v{regs[0]}, {sg}v{regs[0]+1}",
             f"v_cvt_pk_bf16_f32 v{q+1}, v{regs[1]}, {sg}v{regs[1]+1}"]
        if row % 2 or last: L.append(f"ds_write_b128 v{vWa}, {v(p,4)} offset:{(row//2)*PP2}")
        return L
    def step(dst, src, mul):
        return zipl(cmul(dst[0], src[0], mul[0]), cmul(dst[1], src[1], mul[1]))
    XSi = lambda i: [XS[0][i], XS[1][i]]
    XUi = lambda i: [XU[0][i], XU[1][i]]
    SG = KG if SLAB in (4, 5, 6, 8) else big if SLAB not in (9, 12) else big + 144
    def wait_go():
        skip = newlabel("nogo")
        E(f"s_lshl_b32 s{sT0}, s{sCG}, 7")
        E(f"s_add_u32 s{sT0}, s{sT0}, {G.FLAGG_BASE}")
        E(f"s_cmp_ge_u32 s{sCG}, {NWAIT}")
        E(f"s_cbranch_scc1 {skip}")
        ok = newlabel("gok"); sp = newlabel("gsp")
        E.raw("    s_mov_b32 s13, 0")
        E.label(sp)
        for t in [f"s_buffer_load_dword s16, s[{rWS}:{rWS+3}], s{sT0} glc", "s_add_u32 s13, s13, 1", "s_waitcnt lgkmcnt(0)", f"s_cmp_gt_u32 s13, {G.SPIN_MAX}",
                  f"s_cbranch_scc1 {skip}", f"s_cmp_eq_u32 s16, s{sN}", f"s_cbranch_scc1 {skip}", "s_sleep 3", f"s_branch {sp}"]:
            E.raw("    " + t)
        E.label(skip)

    def slab_out():
        if "--xnomem" in sys.argv or "--x1" in sys.argv: return None
        def slab_tr():
            E.wait_vm("slab")
            ST(E, "slab")
            for i in range(4):
                E(f"ds_read_b64_tr_b16 {v(SG+4*i,2)}, v{vTa} offset:{64*i}")
                E(f"ds_read_b64_tr_b16 {v(SG+4*i+2,2)}, v{vTa} offset:{64*i+1024}")
        if SLAB != 6: slab_tr()
        E("s_setprio 3")
        G.snonce(E, vNon)
        if SLAB in (4, 5, 6):
            wait_go()
            ST(E, "go")
            if SLAB == 6:
                slab_in(); E("s_setprio 3"); slab_tr()
        for i in range(4):
            E(f"s_add_u32 s{sT1}, s{sUT}, {8*16384*i}")
            E(f"buffer_store_dwordx4 {v(SG+4*i,4)}, v{vUo}, s[{rWS}:{rWS+3}], s{sT1} offen {'' if '--xplain' in sys.argv else 'sc1'}")
        E(f"s_setprio {G.BPRIO}")
        ST(E, "ust")
    def flag(saddr):
        skip = newlabel("nofl")
        E(f"s_cmp_lg_u32 s{sW}, 0")
        E(f"s_cbranch_scc1 {skip}")
        E("s_mov_b32 exec_hi, 0")
        E.raw(f"    buffer_store_dword v{vNon}, v{vPu}, s[{rWS}:{rWS+3}], s{saddr} offen sc1")
        E("s_mov_b64 exec, -1")
        E.label(skip)
    def wait_line(saddr):
        G.sflag_wait(E, saddr, 1, 8, 16, sleep=2)
        E("s_barrier")
    def publish():
        if "--xnomem" in sys.argv or "--x1" in sys.argv or "--x2" in sys.argv: return
        E("s_setprio 3")
        E.wait_vm()
        E("s_barrier")
        flag(sFU)
        E(f"s_setprio {G.BPRIO}")
        ST(E, "ack")
    if SLAB == 3: nld = slab_out()
    L = put_row(0, XSi(0), True)
    cur = XSi(0)
    for e in range(1, 8):
        dst = XSi(e // 2) if e % 2 == 0 else XC
        L += step(dst, cur, W1) + put_row(e, dst, True); cur = dst
    for i, dst in enumerate((XUi(0), XC, XUi(1), XC)):
        L += step(dst, XSi(i), W256) + put_row(8 + i, dst, True)
    for k in range(2): L += step(XSi(k), XUi(k), W256) + put_row(12 + k, XSi(k), True)
    for k in range(2): L += step(XUi(k), XSi(k), W256) + put_row(14 + k, XUi(k), True)
    cur = XUi(0)
    for r in range(16, 21):
        dst = XC if r % 2 == 0 else XD
        L += step(dst, cur, W256) + put_row(r, dst, True, last=(r == 20)); cur = dst
    E(L)
    XF = big + 16
    YF = big + 80
    KD = big + 112
    for tI in range(2):
        for k in range(8):
            E(f"ds_read2_b64 {v(XF+32*tI+4*k,4)}, v{vRb if tI else vRa} offset0:{16*k} offset1:{16*k+2}")
    ST(E, "X")
    if SLAB == 0: nld = slab_out()
    if SLAB in (1, 4, 7, 8, 9, 11, 12): slab_in()
    if SLAB == 3: publish()
    def yhalf(h):
        L = []
        for j in range(16):
            jj = 16 * h + j
            Yc, Yp = (XC, XD) if jj % 2 == 0 else (XD, XC)
            if jj == 0:
                L += [f"v_mov_b32 v{Yc[0]}, 1.0", f"v_mov_b32 v{Yc[0]+1}, 0", f"v_mov_b32 v{Yc[1]}, 1.0", f"v_mov_b32 v{Yc[1]+1}, 0"]
            else:
                L += step(Yc, Yp, W8)
            L += put_row(j, Yc, False)
        return L
    def yread(): return [f"ds_read2_b64 {v(YF+4*k,4)}, v{vRa} offset0:{16*k} offset1:{16*k+2}" for k in range(8)]
    def kmfma(h):
        L = []
        for k in range(8):
            for tI in range(2):
                d = KD + 8 * h + 4 * tI
                L.append(f"{M16} {v(d,4)}, {v(XF+32*tI+4*k,4)}, {v(YF+4*k,4)}, {v(d,4) if k else 0}")
        return L
    def tabw(h):
        d0 = KD + 8 * h; d1 = d0 + 4
        p = big + 128 + 4 * h if h == 0 else big + 136
        L = [f"v_add_f32 v{KD}, v{KD}, v{vDsk}"] if h == 0 else []
        L += [f"v_cvt_pk_bf16_f32 v{p}, v{d0}, v{d0+1}", f"v_cvt_pk_bf16_f32 v{p+1}, v{d0+2}, v{d0+3}",
              f"v_cvt_pk_bf16_f32 v{p+2}, v{d1}, v{d1+1}", f"v_cvt_pk_bf16_f32 v{p+3}, v{d1+2}, v{d1+3}",
              f"ds_write_b32 v{a0[h]}, v{p}", f"ds_write_b32 v{a1[h]}, v{p+1}"]
        for rho in range(4):
            op = "ds_write_b16" if rho % 2 == 0 else "ds_write_b16_d16_hi"
            L.append(f"{op} v{a5 if (rho < 2 and h == 0) else a4}, v{p+rho//2} offset:{2*CB + 136*(rho%2) + 16*h + 32*(rho//2)}")
            L.append(f"{op} v{a3 if (rho == 0 and h == 0) else a2}, v{p+2+rho//2} offset:{2*TA_POS + 32*rho + 16*h}")
        return L
    def get_u():
        if "--xnomem" in sys.argv or "--x1" in sys.argv or "--x2" in sys.argv or "--x3" in sys.argv: return
        E("s_setprio 3")
        if SLAB >= 7:
            G.sflag_wait(E, sFUp, 1, 16, 16, sleep=2, ncheck=10)
        else: G.sflag_wait(E, sFUp, 1, 8, 16, sleep=2)
        ST(E, "polled")
        if "--x4" in sys.argv: return
        E(f"s_mov_b32 m0, s{sUS}")
        for i in range(4):
            E(f"buffer_load_dwordx4 v{vL16}, s[{rWS}:{rWS+3}], s{sUI} offen offset:{1024*i} sc1 lds", tag="uimg")
        E(f"s_setprio {G.BPRIO}")
    E(yhalf(0)); E(yread())
    if SLAB == 0: publish()
    if SLAB in (1, 7): nld = slab_out()
    if SLAB == 2: slab_in()
    y1 = yhalf(1)
    E(merge(y1, kmfma(0)))
    E(yread())
    if SLAB == 2: nld = slab_out()
    if SLAB == 11:
        E(kmfma(1)); slab_out(); publish(); get_u()
        E(tabw(0))
    else:
        E(tabw(0)); E(kmfma(1))
    E(f"v_lshl_add_u32 v{vt[0]}, v{vC}, 2, s{sSC}")
    for o in (0, SIG_SZ, SIG2, SIG2 + SIG2_SZ): E(f"ds_write_b32 v{vt[0]}, v{vZ} offset:{o + 64}")
    ST(E, "Y")
    if SLAB in (1, 7): publish()
    E(tabw(1))
    E(f"ds_read_u16 v{vt[5]}, v{vMa}")
    E(f"ds_read_u16 v{vt[4]}, v{vMb}")
    E(f"v_lshl_or_b32 v{vt[5]}, v{vt[4]}, 16, v{vt[5]}")
    E(f"ds_write_b32 v{vMw}, v{vt[5]} offset:544")
    ACC = KG
    MS = lambda s0: (0, 1, 2, 4) if s0 == 0 else (0, 1)
    Freg = {}; r_ = big
    for s0 in range(8):
        for m in MS(s0):
            Freg[(s0, m)] = r_; r_ += 4
    TFr = r_; r_ += 16
    T2r = r_; r_ += 24
    Hr = [r_ + 4 * i for i in range(8)]; r_ += 32
    WS = [[r_ + 4 * i for i in range(4)], [EPH + 4 * i for i in range(4)]]
    assert r_ + 16 == big + 160
    YS = big
    def dense(F, r, a, o):
        return ([f"ds_read2_b32 {v(r,2)}, v{a} offset0:{o} offset1:{o+1}",
                 f"ds_read2_b32 {v(r+2,2)}, v{a} offset0:{o+2} offset1:{o+3}",
                 f"ds_read_b32 v{r+4}, v{a} offset:{4*(o+4)}"],
                [f"v_perm_b32 v{F+j}, v{r+4-j}, v{r+3-j}, v{sel[('d',3)]}" for j in (3, 2, 1, 0)])
    def prepF(s0, r):
        rd = []; pm = []
        for m in MS(s0):
            sx = s0 + 8 * m
            F = Freg[(s0, m)]
            if sx <= 8 or sx == 16 or sx == 32:
                a, b = dense(F, r, adr['d'], {16: 152, 32: 176}.get(sx, 16 * sx))
                rd += a; pm += b; r += 6
            else:
                o = 8 * (sx - 9)
                rd += [f"ds_read2_b32 {v(r,2)}, v{adr['1']} offset0:{o} offset1:{o+1}",
                       f"ds_read_b32 v{r+2}, v{adr['1']} offset:{4*(o+2)}"]
                pm += [f"v_perm_b32 v{F+3}, v{r+1}, v{r}, v{sel[('1',3)]}", f"v_perm_b32 v{F+2}, v{r+1}, v{r}, v{sel[('1',2)]}",
                       f"v_perm_b32 v{F+1}, v{r+2}, v{r+1}, v{sel[('1',3)]}", f"v_perm_b32 v{F}, v{r+2}, v{r+1}, v{sel[('1',2)]}"]
                r += 4
        return rd, pm
    def rdH(s0, dl):
        return f"ds_read_b128 {v(Hr[dl],4)}, v{vH[s0%4]} offset:{2048*dl + (1024 if s0 < 4 else 0)}"
    def build(hooks={}):
        raw = [KG, Hr[0]]
        def two(x, y): return x[0] + y[0], x[1] + y[1]
        jobs = [lambda r: two(two(prepF(1, r), prepF(2, r + 10)), prepF(3, r + 20)),
                lambda r: two(two(prepF(4, r), prepF(5, r + 10)), prepF(6, r + 20)),
                lambda r: two(prepF(7, r), two(dense(TFr, r + 10, aT, 0), two(dense(TFr + 4, r + 16, aT, 8), dense(TFr + 8, r + 22, aT, 16)))),
                lambda r: two(prepF(0, r), dense(TFr + 12, r + 24, aT, 24)),
                lambda r: two(two(dense(T2r, r, aT2, 0), dense(T2r + 4, r + 6, aT2, 4)), dense(T2r + 8, r + 12, aT2, 8)),
                lambda r: two(two(dense(T2r + 12, r, aT2, 12), dense(T2r + 16, r + 6, aT2, 16)), dense(T2r + 20, r + 12, aT2, 20))]
        prev = None
        for n, job in enumerate(jobs):
            if n in hooks: hooks[n]()
            rd, pm = job(raw[n % 2])
            E(rd)
            if prev: E(prev)
            prev = pm
        E(prev)
    if SLAB == 9:
        BP = [a[5:] for a in sys.argv if a.startswith('--p2=')]
        if BP: G.BPRIO = int(BP[0])
        slab_out()
        build({PUBAT: publish})
    elif SLAB == 12:
        slab_out(); publish(); get_u(); build()
    elif SLAB not in (4, 8) or "--buildfirst" in sys.argv: build()
    ST(E, "tables")
    if SLAB in (4, 5, 6, 8): slab_out()
    if SLAB in (2, 4, 5, 6, 8): publish()
    if SLAB in (4, 8) and "--buildfirst" not in sys.argv: build()
    if SLAB < 11: get_u()
    E.wait_vm("uimg")
    E.wait_lg()
    E("s_barrier")
    ST(E, "uimg")
    if "--xnoconv" in sys.argv:
        ST.dump(E, sW, big + 70)
        E("s_endpgm")
        return ST
    E(f"s_setprio {G.CPRIO}")
    for dl in range(8): E(rdH(0, dl))
    sigoff = [0, SIG_SZ, SIG2, SIG2 + SIG2_SZ]
    items = [(f"v{aS2} offset:%d", SIG2 + 272 * k, [(q, T2r + 4 * (2 * q - k - 3)) for q in range(8) if 3 <= 2 * q - k <= 8]) for k in range(12)]
    items += [(f"v{aS} offset:%d", 544 * k, [(q, TFr + 4 * (q - k - 4)) for q in range(4 + k, 8)]) for k in range(4)]
    chunks = [[items[i] for i in c] for c in ((0, 1, 2, 12), (3, 4, 5, 15), (6, 7, 13), (8, 9, 14), (10, 11))]
    ycv = lambda q: [f"v_cvt_pk_bf16_f32 v{YS+2*q}, v{ACC+4*q}, v{ACC+4*q+1}", f"v_cvt_pk_bf16_f32 v{YS+2*q+1}, v{ACC+4*q+2}, v{ACC+4*q+3}"]
    ya = vt[0]
    ywr = lambda q: f"ds_write_b64 v{ya}, {v(YS+2*q,2)} offset:{Y_OFF + 544*q}"
    E(f"s_mul_i32 s{sT0}, s{sW}, 144")
    E(f"v_add_u32 v{ya}, s{sT0}, v{aW}")
    yr = vt[1]
    E(f"v_lshrrev_b32 v{vt[3]}, 2, v{vC}")
    E(f"v_mul_u32_u24 v{yr}, {Y_PITCH}, v{vt[3]}")
    E(f"v_bfe_u32 v{vt[3]}, v{vL}, 1, 1")
    E(f"v_lshl_add_u32 v{yr}, v{vt[3]}, 5, v{yr}")
    E(f"v_and_b32 v{vt[3]}, 1, v{vL}")
    E(f"v_lshrrev_b32 v{vt[2]}, 5, v{vL}")
    E(f"v_add_lshl_u32 v{vt[3]}, v{vt[3]}, v{vt[2]}, 3")
    E(f"v_lshl_add_u32 v{vt[3]}, v{vG}, 6, v{vt[3]}")
    E(f"s_mul_i32 s{sT0}, s{sW}, 1088")
    E(f"s_add_u32 s{sT0}, s{sT0}, {SC_BASE + Y_OFF}")
    E(f"v_add3_u32 v{yr}, v{yr}, v{vt[3]}, s{sT0}")
    started = set(); carry = []
    for s0 in range(8):
        M = []; st = []; done = {}
        for dl in range(8):
            nb = 4 if dl < 4 else 2 if dl < 6 else 0
            if s0 == 0 and nb:
                bands = range(4) if nb == 4 else (2, 3)
                g0 = len(M)
                cv = []; wr = []
                for bI in bands:
                    d = WS[dl % 2][bI]
                    M.append(f"{M16} {v(d,4)}, {v(BN+4*bI,4)}, {v(Hr[dl],4)}, 0")
                    cv += [f"v_cvt_pk_bf16_f32 v{d}, v{d}, v{d+1}", f"v_cvt_pk_bf16_f32 v{d+1}, v{d+2}, v{d+3}"]
                    wr += [f"ds_write_b64 v{aW}, {v(d,2)} offset:{136 + sigoff[bI] + 544*dl}"]
                if dl < 5: st += [(cv, g0 + 5, g0 + 5 + len(cv) - 2), (wr, g0 + 8, g0 + 5 + len(cv))]
                else: carry = [(cv, 0, 1), (wr, 2, 3)]
            for m in MS(s0):
                q = m + dl
                if q > 7: continue
                M.append(f"{M16} {v(ACC+4*q,4)}, {v(Freg[(s0,m)],4)}, {v(Hr[dl],4)}, {v(ACC+4*q,4) if q in started else 0}")
                started.add(q); done[q] = len(M) - 1
            if s0 < 7: st.append(([rdH(s0 + 1, dl)], len(M) - 1, len(M) - 1))
        if 2 <= s0 <= 6:
            for i, (fmt, off, uses) in enumerate(chunks[s0 - 2]):
                for q, T in uses: M.append(f"{M16} {v(ACC+4*q,4)}, {v(WS[s0%2][i],4)}, {v(T,4)}, {v(ACC+4*q,4)}")
        if s0 == 1: st += carry
        if 1 <= s0 <= 5:
            rd = [f"ds_read_b64_tr_b16 {v(WS[(s0+1)%2][i]+2*a,2)}, " + fmt % (off + 136 * a) for i, (fmt, off, uses) in enumerate(chunks[s0 - 1]) for a in range(2)]
            st.append((rd, 4, len(M) - 1))
        if s0 == 7:
            for q in range(4): st += [(ycv(q), done[q] + 5, done[q] + 6), ([ywr(q)], done[q] + 8, done[q] + 8)]
        E(gaps(M, st))
    ST(E, "conv")
    if "--gemmonly" in sys.argv:
        ST.dump(E, sW, big + 70)
        E("s_endpgm")
        return ST
    for q in (4, 5, 6, 7): E(ycv(q))
    for q in (4, 5, 6, 7): E(ywr(q))
    E.wait_lg()
    E("s_barrier")
    if "--ylow" not in sys.argv: E("s_setprio 3")
    for i in range(4):
        for e in range(2): E(f"ds_read_b64_tr_b16 {v(big+32+4*i+2*e,2)}, v{yr} offset:{272*i + 16*e}")
    for i in range(4):
        E(f"buffer_store_dwordx4 {v(big+32+4*i,4)}, v{vL16}, s[{rWS}:{rWS+3}], s{sYS} offen offset:{1024*i} sc1")
    d0, d1, ra, so = vt[0], vt[1], vt[2], vt[3]
    E(f"v_lshrrev_b32 v{vt[4]}, 3, v{vL}")
    E(f"v_lshlrev_b32 v{vt[4]}, 14, v{vt[4]}")
    E(f"v_and_b32 v{vt[5]}, 7, v{vL}")
    E(f"v_xor_b32 v{vt[5]}, v{vt[5]}, v{vG}")
    E(f"v_lshl_add_u32 v{d0}, v{vt[5]}, 4, v{vt[4]}")
    E(f"s_and_b32 s{sT0}, s{sW}, 1")
    E(f"s_lshl_b32 s{sT0}, s{sT0}, 6")
    E(f"v_xor_b32 v{d0}, s{sT0}, v{d0}")
    E(f"s_mul_i32 s{sT0}, s{sW}, {8*16384 - 128}")
    E(f"s_add_u32 s{sYL}, s{sYL}, s{sT0}")
    E(f"s_lshl_b32 s{sT0}, s{sW}, 12")
    E(f"s_add_u32 s{sFY}, s{sFY}, s{sT0}")
    E(f"s_lshl_b32 s{sT2}, s{sW}, 10")
    E(f"v_and_b32 v{vt[4]}, 7, v{vC}")
    E(f"v_xor_b32 v{vt[4]}, v{vt[4]}, v{vG}")
    E(f"v_lshlrev_b32 v{ra}, 8, v{vC}")
    E(f"v_lshl_add_u32 v{ra}, v{vt[4]}, 4, v{ra}")
    E(f"v_add_u32 v{ra}, s{sUS}, v{ra}")
    E(f"v_mul_u32_u24 v{so}, 2560, v{vG}")
    E(f"v_lshl_add_u32 v{so}, v{vC}, 4, v{so}")
    E(f"v_xor_b32 v{vt[4]}, 64, v{ra}")
    E.wait_vm()
    E("s_mov_b64 exec, 0xff")
    E(f"buffer_store_dword v{vNon}, v{vPu}, s[{rWS}:{rWS+3}], s{sFY} offen sc1")
    E("s_mov_b64 exec, -1")
    ST(E, "ypub")
    G.sflag_wait(E, sFYp, 1, 8, 16, sleep=2)
    ST(E, "ypoll")
    for i in range(4):
        E(f"s_add_u32 m0, s{sT2}, {U_IMG + 4096*i}")
        E(f"s_add_u32 s{sT1}, s{sYL}, {128*i}")
        E(f"buffer_load_dwordx4 v{d0}, s[{rWS}:{rWS+3}], s{sT1} offen sc1 lds")
    E.wait_vm()
    E("s_barrier")
    for i in range(4):
        E(f"ds_read2_b64 {v(big+4*i,4)}, v{vt[4] if i % 2 else ra} offset0:{i//2} offset1:{16 + i//2}")
    for i in range(4):
        E(f"s_add_u32 s{sT1}, s{sYO}, {4*2560*i}")
        E(f"buffer_store_dwordx4 {v(big+4*i,4)}, v{so}, s[{rOUT}:{rOUT+3}], s{sT1} offen {G.OUTB}")
    if G.PROFILE:
        E.wait_vm()
        ST(E, "end")
    ST.dump(E, sW, big + 70)
    E("s_endpgm")
    return ST
```

```python
import sys, struct, math
from asmlib import *

NAME = "concat_heads__linear_kernel_hedgehog__ssm_conv_s4__prompt"
NB, NA, NC = 160, 256, 80
UT_BASE = 0
YT_BASE = 2621440
O_BASE = 2 * 2621440
PWO_BASE = 3 * 2621440
P_BASE = PWO_BASE + 851968
assert P_BASE % 65536 == 0
P_PITCH = 4096
WS_SIZE = 16 << 20
STAMP_BASE = 13 << 20
SPIN_MAX = 30000
FLAG_BASE = P_BASE + 256 * P_PITCH
FLAGY_BASE = FLAG_BASE + 131072
FLAGW_BASE = FLAG_BASE + 2 * 131072
FLAGO_BASE = FLAG_BASE + 3 * 131072
FLAGG_BASE = FLAG_BASE + 4 * 131072 + 4096
FLAGC_BASE = FLAG_BASE + 4 * 131072
sN = 83

def f32(x): return "0x%08x" % struct.unpack("<I", struct.pack("<f", x))[0]
def f32val(x): return struct.unpack("<f", struct.pack("<f", x))[0]

class Alloc:
    def __init__(self, start, end): self.n = start; self.end = end
    def __call__(self, c=1, al=None):
        al = al or (2 if c >= 2 else 1)
        self.n = (self.n + al - 1) // al * al
        r = self.n; self.n += c
        assert self.n <= self.end, f"out of registers {self.n}"
        return r

pX, pW, pPHI, pWO, pU, pARE, pAIM, pBRE, pBIM, pCRE, pCIM, pLDT, pDSK, pOUT, pDBG, pWS = [16 + 2 * i for i in range(16)]
rWS, rOUT, rDBG, rIN, rW, rWO, rPHI = 48, 52, 56, 60, 64, 68, 72

def srd(E, r, p, size):
    E(f"s_mov_b32 s{r}, s{p}")
    E(f"s_and_b32 s{r+1}, s{p+1}, 0xffff")
    E(f"s_mov_b32 s{r+2}, {size}")
    E(f"s_mov_b32 s{r+3}, 0x00020000")

PROFILE = False
BPRIO = int(([a[8:] for a in sys.argv if a.startswith('--bprio=')] + ['0'])[0])
CPRIO = int(([a[8:] for a in sys.argv if a.startswith('--cprio=')] + ['0'])[0])
OUTA = ([a[7:] for a in sys.argv if a.startswith('--outa=')] + [''])[0].replace('+', ' ')
OUTB = ([a[7:] for a in sys.argv if a.startswith('--outb=')] + ['sc1'])[0].replace('+', ' ')
APRIO = int(([a[8:] for a in sys.argv if a.startswith('--aprio=')] + ['2'])[0])
class Stamps:
    def __init__(self, first): self.first = first; self.n = 0; self.names = []
    def __call__(self, E, name):
        role = "B" if self.first == 84 else "A"
        if f"--padat={role}.{name}" in sys.argv:
            E("s_memrealtime s[14:15]"); E.wait_lg(); E(f"s_mov_b32 s{self.first}, s14"); self.pad = True
        if name == "start" and f"--padat={role}.entry" in sys.argv:
            E(f"s_mov_b32 s{self.first}, s10"); self.pad = True
        if not PROFILE: return
        if "--endonly" in sys.argv and name not in ("start", "tile", "gemm", "T0", "opub", "ack", "uimg", "conv", "ypub", "end"): return
        r = self.first + self.n
        if name == "start" and "--cyc" not in sys.argv and "--both" not in sys.argv:
            E(f"s_mov_b32 s{r}, s10")
            self.n += 1; self.names.append("entry"); r += 1
        E("s_memtime s[14:15]" if "--cyc" in sys.argv else "s_memrealtime s[14:15]")
        if "--both" in sys.argv:
            E("s_memtime s[12:13]")
            E.wait_lg()
            E("s_lshr_b32 s12, s12, 2")
            E("s_pack_ll_b32_b16 s14, s12, s14")
        E.wait_lg()
        E(f"s_mov_b32 s{r}, s14")
        self.n += 1; self.names.append(name)
    def dump(self, E, sW, vt):
        if getattr(self, "pad", False):
            l = newlabel("pad")
            E.label(l)
            for t in ["s_sleep 16", "s_memrealtime s[14:15]", "s_waitcnt lgkmcnt(0)", f"s_sub_u32 s14, s14, s{self.first}", "s_cmp_lt_u32 s14, 3000", f"s_cbranch_scc1 {l}"]: E.raw("    " + t)
        if not PROFILE: return
        E(f"v_mov_b32 v{vt}, 0")
        for i in range(self.n):
            E(f"v_writelane_b32 v{vt}, s{self.first+i}, {i}")
        E(f"s_lshl_b32 s3, s2, 2")
        E(f"s_add_u32 s3, s3, s{sW}")
        E(f"s_lshl_b32 s3, s3, 6")
        E(f"s_add_u32 s3, s3, {STAMP_BASE}")
        E(f"v_and_b32 v{vt+1}, 63, v0")
        E(f"v_lshlrev_b32 v{vt+1}, 2, v{vt+1}")
        E("s_mov_b64 exec, 0xffff")
        E(f"buffer_store_dword v{vt}, v{vt+1}, s[{rWS}:{rWS+3}], s3 offen")
        if "--dbg" in sys.argv:
            E(f"v_subrev_u32 v{vt}, s{sN}, v{vt}")
            E(f"v_add_u32 v{vt}, 1000, v{vt}")
            if self.first == 84:
                E(f"s_mov_b64 exec, {1 << (self.n - 1)}")
                E(f"buffer_atomic_umax v{vt}, off, s[{rDBG}:{rDBG+3}], 0 offset:4")
            else:
                E(f"s_mov_b64 exec, {(1 << self.n) - 1}")
                E(f"buffer_atomic_umax v{vt}, v{vt+1}, s[{rDBG}:{rDBG+3}], 0 offen offset:8")
        E("s_mov_b64 exec, -1")

_lbl = [0]
def newlabel(p):
    _lbl[0] += 1
    return f"L_{p}_{_lbl[0]}"

def poll_check(E, load_text, vdst, expect_sgpr_or_const, first_tag):
    ok = newlabel("ok"); sp = newlabel("spin")
    E.wait_vm(first_tag)
    E(f"v_cmp_ne_u32 vcc, {expect_sgpr_or_const}, v{vdst}")
    E(f"s_cbranch_vccz {ok}")
    E(f"s_mov_b32 s13, 0")
    E.label(sp)
    E.raw("    " + load_text)
    E.raw("    s_add_u32 s13, s13, 1")
    E.raw(f"    s_cmp_gt_u32 s13, {SPIN_MAX}")
    E.raw(f"    s_cbranch_scc1 {ok}")
    E.raw("    s_waitcnt vmcnt(0)")
    E.raw(f"    v_cmp_ne_u32 vcc, {expect_sgpr_or_const}, v{vdst}")
    E.raw(f"    s_cbranch_vccnz {sp}")
    E.label(ok)

def spin(E, load_texts, check_texts, first_tag):
    ok = newlabel("ok"); sp = newlabel("spin")
    E.wait_vm(first_tag)
    E(check_texts)
    E(f"s_cbranch_vccz {ok}")
    E(f"s_mov_b32 s13, 0")
    E.label(sp)
    for t in load_texts: E.raw("    " + t)
    E.raw("    s_add_u32 s13, s13, 1")
    E.raw(f"    s_cmp_gt_u32 s13, {SPIN_MAX}")
    E.raw(f"    s_cbranch_scc1 {ok}")
    E.raw("    s_waitcnt vmcnt(0)")
    for t in check_texts: E.raw("    " + t)
    E.raw(f"    s_cbranch_vccnz {sp}")
    E.label(ok)

def snonce(E, vd, issued=False):
    ok = newlabel("nok"); sp = newlabel("nsp")
    if not issued: snonce_issue(E)
    E.wait_lg()
    E(f"s_cmp_lg_u32 s{sN}, 0")
    E(f"s_cbranch_scc1 {ok}")
    E.raw("    s_mov_b32 s13, 0")
    E.label(sp)
    for t in [f"buffer_load_dword v{vd}, off, s[{rDBG}:{rDBG+3}], 0 offset:4 sc1", "s_add_u32 s13, s13, 1", "s_waitcnt vmcnt(0)", f"v_readfirstlane_b32 s{sN}, v{vd}",
              f"s_cmp_gt_u32 s13, {SPIN_MAX}", f"s_cbranch_scc1 {ok}", f"s_cmp_eq_u32 s{sN}, 0", f"s_cbranch_scc1 {sp}", "s_nop 1"]:
        E.raw("    " + t)
    E.label(ok)
    E(f"v_mov_b32 v{vd}, s{sN}")
def snonce_issue(E):
    E.raw(f"    s_buffer_load_dword s{sN}, s[{rDBG}:{rDBG+3}], 4")

def nonce_load(E, vd):
    ld = f"buffer_load_dword v{vd}, off, s[{rDBG}:{rDBG+3}], 0 offset:4 sc1"
    E(ld, tag="nonce")
    return ld
def nonce_get(E, ld, vd):
    spin(E, [ld], [f"v_cmp_eq_u32 vcc, 0, v{vd}"], "nonce")
    E(f"v_readfirstlane_b32 s{sN}, v{vd}")

def touch(E, items):
    if "--touch" not in sys.argv: return
    for p, off in items:
        if off < (1 << 20): E(f"s_load_dword s93, s[{p}:{p+1}], {off}")
        else:
            E(f"s_mov_b32 s12, {off}")
            E(f"s_load_dword s93, s[{p}:{p+1}], s12")

def fresh(E):
    E.reset()
    E.lgq = [("__smem", set())]
    E.vmq = [("code", {("v", 255)})]

def sflag_loads(saddr, nlines, words, first):
    L = []
    for k in range(nlines):
        r = first + words * k
        if k: L.append(f"s_add_u32 s12, s{saddr}, {128*k}")
        L.append(f"s_buffer_load_dwordx{words} s[{r}:{r+words-1}], s[{rWS}:{rWS+3}], s{saddr if k == 0 else 12} glc")
    return L
def sflag_check(n, first):
    L = [f"s_mov_b32 s14, s{sN}", f"s_mov_b32 s15, s{sN}", f"s_xor_b64 s[8:9], s[{first}:{first+1}], s[14:15]"]
    for k in range(first + 2, first + n, 2): L += [f"s_xor_b64 s[{first}:{first+1}], s[{k}:{k+1}], s[14:15]", f"s_or_b64 s[8:9], s[8:9], s[{first}:{first+1}]"]
    return L
def sflag_wait(E, saddr, nlines, words, first, sleep=1, ncheck=None):
    ok = newlabel("sok"); sp = newlabel("ssp")
    E.wait_lg()
    E.raw("    s_mov_b32 s13, 0")
    E.label(sp)
    for t in sflag_loads(saddr, nlines, words, first) + ["s_add_u32 s13, s13, 1", "s_waitcnt lgkmcnt(0)", f"s_cmp_gt_u32 s13, {SPIN_MAX}", f"s_cbranch_scc1 {ok}"] + \
             sflag_check(ncheck or nlines * words, first) + [f"s_cbranch_scc0 {ok}", f"s_sleep {sleep}", f"s_branch {sp}"]:
        E.raw("    " + t)
    E.label(ok)
def word_off(dst, idx, sh, t):
    return [f"s_lshr_b32 s{t}, s{idx}, {sh}", f"s_lshl_b32 s{t}, s{t}, 7", f"s_add_u32 s{dst}, s{dst}, s{t}",
            f"s_and_b32 s{t}, s{idx}, {(1<<sh)-1}", f"s_lshl_b32 s{t}, s{t}, 2", f"s_add_u32 s{dst}, s{dst}, s{t}"]

def cmul(dst, a, b):
    assert dst != a
    return [f"v_mul_f32 v{dst}, v{a}, v{b}", f"v_mul_f32 v{dst+1}, v{a+1}, v{b}",
            f"v_fmac_f32 v{dst}, v{a+1}, v{b+2}", f"v_fmac_f32 v{dst+1}, v{a}, v{b+1}"]

def zipl(*ls):
    out = []
    for i in range(max(len(l) for l in ls)):
        for l in ls:
            if i < len(l): out.append(l[i])
    return out

def main():
    global PROFILE
    PROFILE = "--profile" in sys.argv
    head = open(f"cdna_kernels/{NAME}.s.ref").read().split("\n")
    hdr = [l for l in head if l.startswith(";") and "@launch" not in l]
    E = Emitter()
    for l in hdr: E.raw(l)
    E.raw(f"; @launch grid=({NB+NA+NC},1,1) block=(256,1,1) lds=81920")
    for l in """
 One launch, three kinds of 4-wave workgroups, two per CU (generated by the author's own scripts):
   id   0..255  128 tokens x one head pair: q/k/v projection (MFMA, LDS-DMA ring), dual softmax feature maps,
                partial kv/z -> d_ws, summed kv -> o -> d_ws, then a 64x80 tile of o @ wo
   id 256..415  four SSM channels: kernel taps at the 641 distinct bf16 lags as an MFMA product of power tables,
                causal convolution as Toeplitz / dilated-window MFMAs; u and y change layout through d_ws
   id 416..495  wo into MFMA fragment order
 Hand-offs: write-through stores, words tagged with a per-launch value published through d_debug, payload areas
 pre-filled with a marker that the readers verify.""".split("\n"): E.raw(";" + l)
    E.raw('.amdgcn_target "amdgcn-amd-amdhsa--gfx950"')
    E.raw(".text")
    E.raw(f".globl {NAME}_kernel")
    E.raw(".p2align 8")
    E.raw(f".type {NAME}_kernel,@function")
    E.label(f"{NAME}_kernel")
    E("s_load_dwordx16 s[16:31], s[0:1], 0")
    E("s_load_dwordx16 s[32:47], s[0:1], 64")
    E("s_memrealtime s[10:11]")
    if "--nocodepf" not in sys.argv:
        E("s_getpc_b64 s[12:13]")
        E.label("L_pc")
        E("s_lshl_b32 s3, s2, 7")
        E("s_and_b32 s3, s3, 0x7c00")
        E("v_lshrrev_b32 v254, 5, v0")
        E("v_lshl_add_u32 v254, v254, 7, s3")
        E("v_min_u32 v254, L_code_end-L_pc-4, v254")
        E("global_load_dword v255, v254, s[12:13]")
    E(f"s_sub_u32 s77, s2, {NA}")
    E(f"s_cmp_ge_u32 s77, {NB}")
    E("s_cbranch_scc1 L_notB")
    E("s_setprio 3")
    E("s_lshl_b32 s4, s77, 10")
    E("v_lshl_add_u32 v6, v0, 2, s4")
    E("s_lshl_b32 s5, s77, 3")
    E.wait_lg()
    PAR = ([a[6:] for a in sys.argv if a.startswith('--par=')] + ['early'])[0]
    if "--noB0" not in sys.argv and PAR == "early":
        for k, p in enumerate((pARE, pAIM, pBRE, pBIM, pCRE, pCIM)):
            E(f"global_load_dword v{136+k}, v6, s[{p}:{p+1}]")
    if PAR == "touch":
        for k, p in enumerate((pARE, pAIM, pBRE, pBIM, pCRE, pCIM)):
            E(f"s_load_dword s93, s[{p}:{p+1}], s4")
    E(f"s_load_dwordx2 s[100:101], s[{pLDT}:{pLDT+1}], s5")
    E(f"s_load_dwordx2 s[16:17], s[{pDSK}:{pDSK+1}], s5")
    E("s_branch L_B")
    E.label("L_notB")
    E(f"s_cmp_ge_u32 s2, {NA}")
    E("s_cbranch_scc1 L_notA")
    from genA import gen_A, gen_C
    from genB import gen_B
    me = sys.modules[__name__]
    stA = gen_A(E, me)
    E.label("L_B")
    if PAR != "early":
        if PAR == "touch": E.raw("    s_waitcnt lgkmcnt(0)")
        for k, p in enumerate((pARE, pAIM, pBRE, pBIM, pCRE, pCIM)):
            E.raw(f"    global_load_dword v{136+k}, v6, s[{p}:{p+1}]")
    stB = gen_B(E, me)
    E.label("L_notA")
    E(f"s_cmp_lt_u32 s2, {NB + NA + NC}")
    E("s_cbranch_scc1 L_goC")
    E("s_endpgm")
    E.label("L_goC")
    gen_C(E, me)
    E.label("L_code_end")
    E.raw('.section .rodata,"a"')
    E.raw(".p2align 6")
    E.raw(f".amdhsa_kernel {NAME}_kernel")
    for l in ("next_free_vgpr 256", "next_free_sgpr 102", "accum_offset 256", "group_segment_fixed_size 0", "kernarg_size 128",
              "user_sgpr_count 2", "user_sgpr_kernarg_segment_ptr 1", "system_sgpr_workgroup_id_x 1"):
        E.raw("  .amdhsa_" + l)
    E.raw(".end_amdhsa_kernel")
    outp = [a for a in sys.argv[1:] if not a.startswith("--")]
    if "--noalign" not in sys.argv:
        from align import align
        E.out, st = align(E.out)
        print("align: widened/nops/left", st, file=sys.stderr)
    open(outp[0] if outp else "k.s", "w").write(E.text())
    print("instrs", E.count, "nops", E.nops, file=sys.stderr)
    import json
    json.dump({"B": stB.names, "A": stA.names if stA else []}, open((outp[0] if outp else "k.s") + ".json", "w"))

if __name__ == "__main__":
    main()
```

```python
import math, sys
from asmlib import *

TA = [[(0, 0), (0, 2), (0, 4), (1, 4)], [(0, 1), (0, 3), (1, 3), (2, 3)], [(1, 0), (1, 2), (2, 2), (2, 4)], [(1, 1), (2, 0), (2, 1), None]]
M16 = "v_mfma_f32_16x16x32_bf16"; M32 = "v_mfma_f32_32x32x16_bf16"

def div_const(dst, src, d):
    return [f"v_mul_u32_u24 v{dst}, {(65536 + d - 1)//d}, v{src}", f"v_lshrrev_b32 v{dst}, 16, v{dst}"]

def put_flag(E, G, sW, vNon, saddr):
    skip = G.newlabel("nofl")
    E(f"s_cmp_lg_u32 s{sW}, 0")
    E(f"s_cbranch_scc1 {skip}")
    E("s_mov_b64 exec, 1")
    E.raw(f"    buffer_store_dword v{vNon}, off, s[{G.rWS}:{G.rWS+3}], s{saddr} sc1")
    E("s_mov_b64 exec, -1")
    E.label(skip)

def flag_addr(dst, idx, base, t):
    return [f"s_lshr_b32 s{dst}, s{idx}, 3", f"s_lshl_b32 s{dst}, s{dst}, 7", f"s_and_b32 s{t}, s{idx}, 7", f"s_lshl_b32 s{t}, s{t}, 2",
            f"s_add_u32 s{dst}, s{dst}, s{t}", f"s_add_u32 s{dst}, s{dst}, {base}"]

def piece_voff(E, vL, dst, t, pitch):
    for m in range(3):
        if m: E(f"v_add_u32 v{t}, {64*m}, v{vL}")
        ci = t if m else vL
        E(div_const(t + 1, ci, 20))
        E(f"v_mul_u32_u24 v{t+1}, {pitch - 320}, v{t+1}")
        E(f"v_lshl_add_u32 v{dst[m]}, v{vL}, 4, v{t+1}")

def gen_C(E, G):
    rWS, rDBG, rWO = G.rWS, G.rDBG, G.rWO
    G.fresh(E)
    sW, sU = 76, 77
    vL, vo, t, vT, vS, D, vNon = 1, [2, 3, 4], 6, [8, 9, 10], [11, 12, 13], 16, 14
    E(f"v_and_b32 v{vL}, 63, v0")
    E(f"v_lshrrev_b32 v{t}, 6, v0")
    E(f"s_sub_u32 s{sU}, s2, {G.NB + G.NA}")
    E(f"v_readfirstlane_b32 s{sW}, v{t}")
    piece_voff(E, vL, vo, t, 1280)
    E(f"s_mul_i32 s4, s{sU}, {8*1280}")
    E(f"s_mul_i32 s5, s{sW}, 320")
    E(f"s_add_u32 s4, s4, s5")
    E(f"s_lshl_b32 s6, s{sW}, 12")
    E(f"s_mov_b32 m0, s6")
    E.wait_lg()
    G.srd(E, rWO, G.pWO, 819200)
    for m in range(3):
        if m == 2: E("s_mov_b32 exec_hi, 0")
        E(f"buffer_load_dwordx4 v{vo[m]}, s[{rWO}:{rWO+3}], s4 offen offset:{1024*m} lds")
    E("s_mov_b64 exec, -1")
    if "--upf" in sys.argv:
        E(f"s_lshr_b32 s5, s{sW}, 1")
        E(f"s_mul_i32 s5, s5, 80")
        E(f"s_add_u32 s5, s5, s{sU}")
        E(f"s_mul_hi_u32 s8, s5, 0x33333334")
        E(f"s_mul_i32 s9, s8, 5")
        E(f"s_sub_u32 s5, s5, s9")
        E(f"s_lshl_b32 s5, s5, 8")
        E(f"s_lshl_b32 s8, s8, 1")
        E(f"s_and_b32 s9, s{sW}, 1")
        E(f"s_add_u32 s8, s8, s9")
        E(f"s_mul_i32 s8, s8, {32*1280}")
        E(f"s_add_u32 s5, s5, s8")
        E(f"v_lshrrev_b32 v{t}, 1, v{vL}")
        E(f"v_mul_u32_u24 v{t}, 1280, v{t}")
        E(f"v_and_b32 v{t+1}, 1, v{vL}")
        E(f"v_lshl_add_u32 v{t}, v{t+1}, 7, v{t}")
        E(f"v_add_u32 v{t}, s5, v{t}")
        E(f"global_load_dword v40, v{t}, s[{G.pU}:{G.pU+1}]")
    G.srd(E, rWS, G.pWS, G.WS_SIZE)
    G.srd(E, rDBG, G.pDBG, 256)
    for m in range(3):
        E(f"v_lshrrev_b32 v{t}, 4, v{vL}")
        E(f"v_add_u32 v{t}, {4*m}, v{t}")
        E(f"v_min_u32 v{t}, 9, v{t}")
        E(f"v_cmp_lt_u32 vcc, 4, v{t}")
        E(f"v_lshlrev_b32 v{vT[m]}, 3, v{t}")
        E(f"v_add_u32 v{t+1}, 120, v{vT[m]}")
        E(f"v_cndmask_b32 v{vT[m]}, v{vT[m]}, v{t+1}, vcc")
        E(f"v_lshlrev_b32 v{vS[m]}, 10, v{t}")
        E(f"v_add_u32 v{t+1}, {95*1024}, v{vS[m]}")
        E(f"v_cndmask_b32 v{vS[m]}, v{vS[m]}, v{t+1}, vcc")
        E(f"v_and_b32 v{t}, 3, v{vL}")
        E(f"v_mul_u32_u24 v{t}, 40, v{t}")
        E(f"v_bfe_u32 v{t+1}, v{vL}, 2, 2")
        E(f"v_mul_u32_u24 v{t+1}, 320, v{t+1}")
        E(f"v_add3_u32 v{vT[m]}, v{vT[m]}, v{t}, v{t+1}")
        E(f"v_add_u32 v{vT[m]}, s6, v{vT[m]}")
        E(f"v_and_b32 v{t}, 15, v{vL}")
        E(f"v_lshl_add_u32 v{vS[m]}, v{t}, 4, v{vS[m]}")
    E(f"s_mul_i32 s4, s{sW}, {200*1024}")
    E(f"s_lshr_b32 s5, s{sU}, 2")
    E(f"s_mul_i32 s5, s5, 5120")
    E(f"s_add_u32 s4, s4, s5")
    E(f"s_and_b32 s5, s{sU}, 3")
    E(f"s_lshl_b32 s5, s5, 8")
    E(f"s_add_u32 s4, s4, s5")
    E(f"s_add_u32 s4, s4, {G.PWO_BASE}")
    E(flag_addr(7, sU, G.FLAGC_BASE, 5))
    E.wait_vm()
    for m in range(3):
        for a in range(2): E(f"ds_read_b64_tr_b16 {v(D+4*m+2*a,2)}, v{vT[m]} offset:{1280*a}")
    for m in range(3):
        if m == 2:
            E.wait_lg()
            E("s_mov_b32 exec_hi, 0")
        E(f"buffer_store_dwordx4 {v(D+4*m,4)}, v{vS[m]}, s[{rWS}:{rWS+3}], s4 offen sc1")
    E("s_mov_b64 exec, -1")
    nld = G.nonce_load(E, vNon)
    G.nonce_get(E, nld, vNon)
    E.wait_vm()
    E("s_barrier")
    put_flag(E, G, sW, vNon, 7)
    E("s_endpgm")

def gen_A(E, G):
    f32, Alloc, srd, spin, newlabel = G.f32, G.Alloc, G.srd, G.spin, G.newlabel
    rWS, rOUT, rDBG, rIN, rW, rPHI = G.rWS, G.rOUT, G.rDBG, G.rIN, G.rW, G.rPHI
    sN = G.sN
    G.fresh(E)
    ST = G.Stamps(24)
    sW, sR, sP, sPQ, sTBo, sCT, sROT = 76, 77, 78, 79, 80, 81, 82
    sT0, sT1, sT2 = 4, 5, 6
    sWO, sXO, sWE, sXE = 84, 85, 86, 87
    sW4, sXR, sH, sFT = 88, 89, 90, 91
    sPS, sOS, sFO, sPL, sOL, sWL, sFC, sOUT, sFP, sF1, sF2 = 96, 97, 98, 99, 100, 101, 45, 46, 92, 47, 3
    XR = 49152
    TAB = 36864; ZTAB = TAB + 3200; KVT = 45056; ZKV = ZTAB
    def wslot(sig): return 16384 * ((sig + 1) % 3)
    E(f"s_setprio {G.APRIO}")
    A = Alloc(1, 256)
    vL = A(); vHH = A(); vL16 = A()
    ACC = A(64, 4)
    WF = A(32, 4)
    XF = A(32, 4)
    PF = A(48, 4)
    TM = A(36, 4)
    ID = A(4, 4)
    vXo = [A() for _ in range(4)]
    vWo = [A() for _ in range(4)]
    vWt = [A() for _ in range(4)]
    vXrs = [A() for _ in range(4)]
    MP = A(); vMn = A(); vNon = A()
    vPk = A(); vVw = A(); vA = A(); vB = A(); vS1 = A(); vS2 = A(); vPi = A(); vKa = A(); vO1 = A(); vO3 = A(); vC4 = A()
    vRw = A(); vSo = [A() for _ in range(3)]
    vFl = A(); vFc = A()
    vt = [TM + 20 + i for i in range(12)]
    vG, vC, vGam, vR4 = vt[8], vt[9], vt[10], vt[11]
    E(f"v_and_b32 v{vL}, 63, v0")
    E(f"v_lshrrev_b32 v{vt[0]}, 6, v0")
    E(f"v_lshrrev_b32 v{vG}, 4, v{vL}")
    E(f"v_readfirstlane_b32 s{sW}, v{vt[0]}")
    E(f"s_and_b32 s{sT0}, s2, 7")
    E(f"s_lshr_b32 s{sT1}, s2, 3")
    E(f"s_lshr_b32 s{sCT}, s{sT1}, 2")
    E(f"s_and_b32 s{sT1}, s{sT1}, 3")
    E(f"s_lshl_b32 s{sTBo}, s{sT0}, 2")
    E(f"s_add_u32 s{sTBo}, s{sTBo}, s{sT1}")
    E(f"s_lshr_b32 s{sR}, s{sT0}, 1")
    E(f"s_lshl_b32 s{sR}, s{sR}, 2")
    E(f"s_add_u32 s{sR}, s{sR}, s{sT1}")
    E(f"s_lshl_b32 s{sT2}, s{sCT}, 2")
    MAP2 = "--map2" in sys.argv
    E(f"s_lshr_b32 s{sT2}, {'0x43167520' if MAP2 else '0x64317520'}, s{sT2}")
    E(f"s_and_b32 s{sT2}, s{sT2}, 7")
    E(f"s_and_b32 s{sP}, s{sT0}, 1")
    E(f"s_lshl_b32 s{sP}, s{sP}, 3")
    E(f"s_add_u32 s{sP}, s{sP}, s{sT2}")
    if MAP2:
        E(f"s_lshr_b32 s{sPQ}, 24, s{sCT}")
        E(f"s_and_b32 s{sPQ}, s{sPQ}, 1")
        E(f"s_xor_b32 s{sPQ}, s{sP}, s{sPQ}")
    else:
        E(f"s_xor_b32 s{sPQ}, s{sP}, 1")
    if "--newrot" not in sys.argv:
        E(f"s_mul_i32 s{sROT}, s{sT1}, 3")
        E(f"s_add_u32 s{sROT}, s{sROT}, s{sT2}")
        E(f"s_sub_u32 s{sT0}, s{sROT}, 10")
        E(f"s_cmp_ge_u32 s{sROT}, 10")
        E(f"s_cselect_b32 s{sROT}, s{sT0}, s{sROT}")
    else:
        E(f"s_mov_b32 s14, 0x97453618"); E(f"s_mov_b32 s15, 0x21984036")
        E(f"s_bitcmp1_b32 s{sT1}, 1")
        E(f"s_cselect_b32 s14, 0x30219857, s14"); E(f"s_cselect_b32 s15, 0x85362704, s15")
        E(f"s_lshl_b32 s{sROT}, s{sT1}, 3")
        E(f"s_add_u32 s{sROT}, s{sROT}, s{sT2}")
        E(f"s_lshl_b32 s{sROT}, s{sROT}, 2")
        E(f"s_lshr_b64 s[14:15], s[14:15], s{sROT}")
        E(f"s_and_b32 s{sROT}, s14, 15")
    E(f"s_mul_i32 s{sT0}, s{sPQ}, 80")
    E(f"s_mul_i32 s{sT2}, s{sP}, 80")
    E(f"s_sub_u32 s{sT2}, s{sT2}, s{sT0}")
    E(f"v_lshlrev_b32 v{vt[0]}, 2, v{vG}")
    E(f"v_sub_u32 v{vt[0]}, v{vL}, v{vt[0]}")
    E(f"v_and_b32 v{vt[0]}, 15, v{vt[0]}")
    E(f"v_min_u32 v{vt[0]}, 14, v{vt[0]}")
    E(f"v_mul_u32_u24 v{vt[1]}, 52, v{vt[0]}")
    E(f"v_lshrrev_b32 v{vt[1]}, 8, v{vt[1]}")
    E(f"v_mul_u32_u24 v{vt[2]}, 3840, v{vG}")
    E(f"v_lshl_add_u32 v{vt[2]}, v{vt[0]}, 4, v{vt[2]}")
    E(f"v_min_u32 v{vt[0]}, 1, v{vt[1]}")
    E(f"v_mul_u32_u24 v{vt[1]}, 1200, v{vt[1]}")
    E(f"v_mad_i32_i24 v{vt[2]}, v{vt[0]}, s{sT2}, v{vt[2]}")
    E(f"v_add_u32 v{vWo[0]}, v{vt[1]}, v{vt[2]}")
    for m in range(1, 4): E(f"v_add_u32 v{vWo[m]}, {m*(4*3840-1024)}, v{vWo[0]}")
    E(f"v_lshrrev_b32 v{vt[0]}, 3, v{vL}")
    E(f"v_and_b32 v{vt[1]}, 7, v{vL}")
    E(f"v_xor_b32 v{vt[1]}, v{vt[1]}, v{vG}")
    E(f"v_mul_u32_u24 v{vt[0]}, 1280, v{vt[0]}")
    E(f"v_lshl_add_u32 v{vXo[0]}, v{vt[1]}, 4, v{vt[0]}")
    E(f"v_xor_b32 v{vt[1]}, 4, v{vt[1]}")
    E(f"v_lshl_add_u32 v{vXo[1]}, v{vt[1]}, 4, v{vt[0]}")
    E(f"v_add_u32 v{vXo[2]}, {2*(8*1280-1024)}, v{vXo[0]}")
    E(f"v_add_u32 v{vXo[3]}, {3*(8*1280-1024)}, v{vXo[1]}")
    E(f"v_add_u32 v{vXo[1]}, {1*(8*1280-1024)}, v{vXo[1]}")
    E(f"s_mul_i32 s{sWE}, s{sW}, {16*3840}")
    E(f"s_add_u32 s{sWE}, s{sWE}, s{sT0}")
    E(f"s_mul_i32 s{sWO}, s{sROT}, {64*3840}")
    E(f"s_add_u32 s{sWO}, s{sWO}, s{sWE}")
    E(f"s_add_u32 s{sWE}, s{sWE}, {640*3840}")
    E(f"s_lshl_b32 s{sXE}, s{sR}, 2")
    E(f"s_add_u32 s{sXE}, s{sXE}, s{sW}")
    E(f"s_mul_i32 s{sXE}, s{sXE}, {32*1280}")
    E(f"s_lshl_b32 s{sXO}, s{sROT}, 7")
    E(f"s_add_u32 s{sXO}, s{sXO}, s{sXE}")
    E(f"s_add_u32 s{sXE}, s{sXE}, 1280")
    E(f"s_lshl_b32 s{sW4}, s{sW}, 12")
    E(f"s_lshl_b32 s{sXR}, s{sW}, 13")
    E(f"s_add_u32 s{sXR}, s{sXR}, {XR}")
    E.wait_lg()
    ST(E, "start")
    if "--noA" in sys.argv:
        srd(E, rWS, G.pWS, G.WS_SIZE)
        ST(E, "end")
        ST.dump(E, sW, ACC)
        E("s_endpgm")
        return ST
    srd(E, rW, G.pW, 2457600)
    srd(E, rIN, G.pX, 2621440)

    PACE = int(([a[7:] for a in sys.argv if a.startswith('--pace=')] + ['0'])[0])
    def dmaW(sig):
        L = []
        for m in range(4):
            g = []
            if m == 0: g.append(f"s_add_u32 m0, s{sW4}, {wslot(sig)}")
            if PACE and sig < 2: g.append(lambda E: E._wait(vm=PACE) if len(E.vmq) > PACE else None)
            g.append(("tag", f"buffer_load_dwordx4 v{vWo[m]}, s[{rW}:{rW+3}], s{sWO} offen offset:{1024*m} lds", f"S{sig}"))
            if m == 3: g += [f"s_add_u32 s{sWO}, s{sWO}, {64*3840}", f"s_cmp_ge_u32 s{sWO}, s{sWE}", f"s_cselect_b32 s9, {640*3840}, 0", f"s_sub_u32 s{sWO}, s{sWO}, s9"]
            L.append(("group", g))
        return L
    def dmaX(sig):
        L = []
        for i in range(4):
            g = []
            if i == 0: g.append(f"s_add_u32 m0, s{sXR}, {4096*(sig%2)}")
            if PACE and sig < 2: g.append(lambda E: E._wait(vm=PACE) if len(E.vmq) > PACE else None)
            g.append(("tag", f"buffer_load_dwordx4 v{vXo[i]}, s[{rIN}:{rIN+3}], s{sXO} offen offset:{1024*i} lds", f"S{sig}"))
            if i == 3: g += [f"s_add_u32 s{sXO}, s{sXO}, 128", f"s_cmp_ge_u32 s{sXO}, s{sXE}", f"s_cselect_b32 s9, 1280, 0", f"s_sub_u32 s{sXO}, s{sXO}, s9"]
            L.append(("group", g))
        return L
    ORD = ([a[6:] for a in sys.argv if a.startswith('--ord=')] + ['wx'])[0]
    if ORD == "touch":
        E(f"buffer_load_dword v{ACC}, off, s[{rIN}:{rIN+3}], s{sXO}")
        E(f"s_mov_b32 s9, {2200000}")
        E(f"buffer_load_dword v{ACC+1}, off, s[{rW}:{rW+3}], s9")
        E(f"buffer_load_dword v{ACC+2}, off, s[{rW}:{rW+3}], 0 offset:3072")
    if ORD == "xw": E(dmaX(0)); E(dmaW(0))
    elif ORD == "mix":
        w_, x_ = dmaW(0), dmaX(0)
        for a_, b_ in zip(x_, w_):
            E(f"s_add_u32 m0, s{sXR}, 0"); E([a_]); E(f"s_add_u32 m0, s{sW4}, {wslot(0)}"); E([b_])
    else: E(dmaW(0)); E(dmaX(0))
    srd(E, rPHI, G.pPHI, 25600)
    vPhi = TM + 18
    E(f"v_lshlrev_b32 v{vPhi}, 4, v0")
    E(f"v_cmp_gt_u32 vcc, 200, v0")
    E(f"v_mov_b32 v{vPhi+1}, 0x100000")
    E(f"s_lshr_b32 s{sT0}, s{sP}, 1")
    E(f"s_mul_i32 s{sT0}, s{sT0}, 3200")
    E(f"v_cndmask_b32 v{vPhi+1}, v{vPhi+1}, v{vPhi}, vcc")
    E(f"buffer_load_dwordx4 {v(TM,4)}, v{vPhi+1}, s[{rPHI}:{rPHI+3}], s{sT0} offen")
    E(dmaW(1)); E(dmaX(1))
    srd(E, rWS, G.pWS, G.WS_SIZE)
    PN = TM + 32
    for i in range(4): E(f"v_mov_b32 v{PN+i}, -1")
    E(f"v_lshlrev_b32 v{vL16}, 4, v{vL}")
    E(f"s_lshl_b32 s{sPL}, s{sPQ}, 16")
    E(f"s_add_u32 s{sPL}, s{sPL}, {G.P_BASE}")
    E(f"s_lshl_b32 s{sPS}, s{sP}, 4")
    E(f"s_add_u32 s{sPS}, s{sPS}, s{sR}")
    E(f"s_lshl_b32 s{sPS}, s{sPS}, 12")
    E(f"s_add_u32 s{sPS}, s{sPS}, {G.P_BASE}")
    E(f"s_lshl_b32 s{sT0}, s{sW}, 10")
    E(f"s_add_u32 s95, s{sT0}, s{sPS}")
    srd(E, rDBG, G.pDBG, 256)
    srd(E, rOUT, G.pOUT, 5242880)
    E(f"v_and_b32 v{vC}, 15, v{vL}")
    E(f"v_bfe_u32 v{vGam}, v{vL}, 4, 1")
    E(f"v_bfe_u32 v{vt[0]}, v{vL}, 1, 1")
    E(f"v_lshl_add_u32 v{vGam}, v{vGam}, 1, v{vt[0]}")
    E(f"v_bfe_u32 v{vR4}, v{vL}, 2, 2")
    E(f"v_lshrrev_b32 v{vHH}, 5, v{vL}")
    E(f"v_lshlrev_b32 v{vt[0]}, 3, v{vGam}")
    E(f"v_and_b32 v{vt[1]}, 1, v{vL}")
    E(f"v_mul_u32_u24 v{vt[1]}, 5, v{vt[1]}")
    E(f"v_lshlrev_b32 v{vt[2]}, 11, v{vHH}")
    E(f"v_lshl_add_u32 v{vt[2]}, v{vR4}, 8, v{vt[2]}")
    for T in range(4):
        pk = sum((30 if e is None else 10 * e[0] + e[1]) << (8 * i) for i, e in enumerate(TA[T]))
        E(f"s_mov_b32 s9, {pk}")
        E(f"v_bfe_u32 v{vt[3]}, s9, v{vt[0]}, 8")
        E(f"v_add_u32 v{vt[3]}, v{vt[3]}, v{vt[1]}")
        E(f"v_min_u32 v{vt[3]}, 31, v{vt[3]}")
        E(f"v_lshl_add_u32 v{vt[3]}, v{vR4}, 3, v{vt[3]}")
        E(f"v_and_b32 v{vt[3]}, 31, v{vt[3]}")
        E(f"v_lshl_add_u32 v{vWt[T]}, v{vt[3]}, 3, v{vt[2]}")
    E(f"v_and_b32 v{vt[0]}, 31, v{vL}")
    E(f"v_bfe_u32 v{vt[1]}, v{vL}, 1, 3")
    E(f"v_xor_b32 v{vt[1]}, v{vt[1]}, v{vHH}")
    E(f"v_lshlrev_b32 v{vt[0]}, 7, v{vt[0]}")
    E(f"v_lshl_add_u32 v{vt[0]}, v{vt[1]}, 4, v{vt[0]}")
    for j in range(4):
        E(f"v_xor_b32 v{vXrs[j]}, {32*j}, v{vt[0]}")
        E(f"v_add_u32 v{vXrs[j]}, s{sXR}, v{vXrs[j]}")
    E(f"s_and_b32 s{sH}, s{sW}, 1")
    E(f"s_lshr_b32 s{sFT}, s{sW}, 1")
    E(f"s_mov_b32 s94, {f32(math.log2(math.e))}")
    vPa = [TM + 16, TM + 17]
    E(f"v_mul_u32_u24 v{vt[0]}, 800, v{vHH}")
    E(f"v_mul_u32_u24 v{vt[1]}, 40, v{vR4}")
    E(f"v_lshl_add_u32 v{vt[1]}, v{vGam}, 3, v{vt[1]}")
    E(f"v_and_b32 v{vt[2]}, 1, v{vL}")
    E(f"v_cmp_eq_u32 vcc, v{vt[2]}, v{vHH}")
    for i, sp in enumerate((sP, sPQ)):
        E(f"s_and_b32 s{sT0}, s{sp}, 1")
        E(f"s_mul_i32 s{sT0}, s{sT0}, 1600")
        E(f"v_add3_u32 v{vt[3]}, v{vt[0]}, v{vt[1]}, s{sT0}")
        E(f"v_mov_b32 v{vPa[i]}, 3200")
        E(f"v_cndmask_b32 v{vPa[i]}, v{vPa[i]}, v{vt[3]}, vcc")
    E(f"v_lshlrev_b32 v{vPhi+1}, 2, v0")
    E(f"v_mov_b32 v{TM+4}, 0")
    if "--zop" in sys.argv:
        E(f"v_mov_b32 v{PF+16}, 0"); E(f"v_mov_b32 v{PF+17}, 0")
    for i in range(2):
        for t in range(2):
            E(f"v_mov_b32 v{PF+24*i+16+4*t+2}, 0"); E(f"v_mov_b32 v{PF+24*i+16+4*t+3}, 0")
    E(f"v_mul_u32_u24 v{vPk}, 80, v{vL}")
    E(f"v_add_u32 v{vPk}, s{sXR}, v{vPk}")
    E(f"v_mul_u32_u24 v{vVw}, 48, v{vL}")
    E(f"v_add_u32 v{vVw}, s{sXR}, v{vVw}")
    E(f"v_lshl_add_u32 v{vt[0]}, v{vHH}, 3, v{vR4}")
    E(f"v_bfe_u32 v{vt[1]}, v{vL}, 4, 1")
    E(f"v_lshlrev_b32 v{vt[1]}, 2, v{vt[1]}")
    E(f"v_and_b32 v{vt[2]}, 1, v{vL}")
    E(f"v_lshl_add_u32 v{vt[2]}, v{vt[2]}, 1, v{vt[1]}")
    E(f"v_bfe_u32 v{vt[3]}, v{vL}, 1, 1")
    E(f"v_add_u32 v{vt[2]}, v{vt[2]}, v{vt[3]}")
    E(f"v_mul_u32_u24 v{vA}, 80, v{vt[0]}")
    E(f"v_lshl_add_u32 v{vA}, v{vt[2]}, 3, v{vA}")
    E(f"s_mul_i32 s{sT0}, s{sH}, 2560")
    E(f"s_lshl_b32 s{sT1}, s{sFT}, 6")
    E(f"s_add_u32 s{sT0}, s{sT0}, s{sT1}")
    E(f"s_add_u32 s{sT0}, s{sT0}, {XR}")
    E(f"v_add_u32 v{vA}, s{sT0}, v{vA}")
    E(f"v_and_b32 v{vt[2]}, 3, v{vL}")
    E(f"v_add_u32 v{vt[2]}, v{vt[2]}, v{vt[1]}")
    E(f"v_mul_u32_u24 v{vB}, 48, v{vt[0]}")
    E(f"v_lshl_add_u32 v{vB}, v{vt[2]}, 3, v{vB}")
    E(f"s_mul_i32 s{sT0}, s{sH}, 1536")
    E(f"s_add_u32 s{sT0}, s{sT0}, {XR+5120}")
    E(f"v_add_u32 v{vB}, s{sT0}, v{vB}")
    E(f"v_and_b32 v{vt[0]}, 31, v{vL}")
    E(f"s_lshl_b32 s{sT0}, s{sH}, 4")
    E(f"v_add_u32 v{vt[1]}, s{sT0}, v{vt[0]}")
    E(f"v_subrev_u32 v{vt[2]}, 20, v{vt[1]}")
    E(f"v_min_u32 v{vt[1]}, v{vt[1]}, v{vt[2]}")
    E(f"v_cmp_gt_u32 vcc, 20, v{vt[0]}")
    E(f"v_mov_b32 v{vt[3]}, 0x4000000")
    E(f"v_cndmask_b32 v{vt[1]}, v{vt[0]}, v{vt[1]}, vcc")
    E(f"v_lshlrev_b32 v{vt[1]}, 4, v{vt[1]}")
    E(f"v_cmp_gt_u32 vcc, 24, v{vt[0]}")
    E(f"s_cmp_eq_u32 s{sFT}, 0")
    E(f"s_mov_b32 s9, 0x4000000")
    E(f"s_cselect_b32 s{sT0}, 384, s9")
    E(f"s_cselect_b32 s{sT1}, 768, s9")
    E(f"v_cndmask_b32 v{vt[1]}, v{vt[3]}, v{vt[1]}, vcc")
    E(f"v_mul_lo_u32 v{vS1}, v{vHH}, s{sT0}")
    E(f"v_add_u32 v{vS1}, v{vS1}, v{vt[1]}")
    E(f"v_add_u32 v{vS2}, s{sT1}, v{vS1}")
    E(f"s_mul_i32 s{sT0}, s{sH}, 1920")
    E(f"s_mul_i32 s{sT1}, s{sFT}, 1536")
    E(f"s_add_u32 s{sPS}, s{sPS}, s{sT0}")
    E(f"s_add_u32 s{sPS}, s{sPS}, s{sT1}")
    E(f"v_min_u32 v{vPi}, 239, v0")
    E(f"v_lshlrev_b32 v{vPi}, 4, v{vPi}")
    E(f"v_bfe_u32 v{vt[0]}, v{vL}, 3, 2")
    E(f"v_and_b32 v{vt[1]}, 3, v{vL}")
    E(f"v_lshl_add_u32 v{vt[0]}, v{vt[0]}, 2, v{vt[1]}")
    E(f"v_mul_u32_u24 v{vt[1]}, 1920, v{vHH}")
    E(f"v_lshl_add_u32 v{vt[2]}, v{vt[0]}, 4, v{vt[1]}")
    E(f"v_add_u32 v{vt[2]}, {KVT}, v{vt[2]}")
    E(f"v_bfe_u32 v{vt[1]}, v{vL}, 2, 1")
    E(f"v_cmp_eq_u32 vcc, v{vt[1]}, v{vHH}")
    E(f"v_mov_b32 v{vKa}, {ZKV}")
    E(f"v_cndmask_b32 v{vKa}, v{vKa}, v{vt[2]}, vcc")
    E(f"v_cndmask_b32 v{vt[0]}, 64, v{vt[0]}, vcc")
    E(f"v_and_b32 v{vt[1]}, 1, v{vt[0]}")
    E(f"v_lshlrev_b32 v{vt[1]}, 4, v{vt[1]}")
    E(f"v_mov_b32 v{vt[2]}, 0x3f80")
    E(f"v_lshlrev_b32 v{vt[1]}, v{vt[1]}, v{vt[2]}")
    E(f"v_lshrrev_b32 v{vt[0]}, 1, v{vt[0]}")
    for i in range(4):
        E(f"v_cmp_eq_u32 vcc, {i}, v{vt[0]}")
        E(f"v_cndmask_b32 v{ID+i}, 0, v{vt[1]}, vcc")
    E(f"v_and_b32 v{vt[1]}, 1, v{vG}")
    E(f"v_mul_u32_u24 v{vt[1]}, 20480, v{vt[1]}")
    E(f"v_lshl_add_u32 v{vt[1]}, v{vC}, 4, v{vt[1]}")
    E(f"v_mul_u32_u24 v{vO1}, 768, v{vHH}")
    E(f"v_add_u32 v{vO1}, v{vO1}, v{vt[1]}")
    E(f"v_lshl_add_u32 v{vO3}, v{vHH}, 26, v{vt[1]}")
    E(f"s_lshl_b32 s{sT0}, s{sR}, 2")
    E(f"s_add_u32 s{sT0}, s{sT0}, s{sW}")
    E(f"s_mul_i32 s{sT0}, s{sT0}, 40960")
    E(f"s_mul_i32 s{sT1}, s{sPQ}, 1280")
    E(f"s_add_u32 s{sT0}, s{sT0}, s{sT1}")
    E(f"s_add_u32 s{sOS}, s{sT0}, {G.O_BASE}")
    E(f"v_lshlrev_b32 v{vC4}, 2, v{vC}")
    E(f"s_lshl_b32 s{sFO}, s{sTBo}, 3")
    E(f"s_add_u32 s{sFO}, s{sFO}, s{sCT}")
    E(f"s_lshl_b32 s{sFO}, s{sFO}, 2")
    E(f"s_add_u32 s{sFO}, s{sFO}, s{sW}")
    E(f"s_lshl_b32 s{sFO}, s{sFO}, 7")
    E(f"s_add_u32 s{sFO}, s{sFO}, {G.FLAGO_BASE}")
    E(f"s_mul_i32 s{sOL}, s{sTBo}, 81920")
    E(f"s_mul_i32 s{sT0}, s{sW}, 5120")
    E(f"s_add_u32 s{sOL}, s{sOL}, s{sT0}")
    E(f"s_add_u32 s{sOL}, s{sOL}, {G.O_BASE}")
    E(f"s_lshl_b32 s{sWL}, s{sCT}, 2")
    E(f"s_add_u32 s{sWL}, s{sWL}, s{sW}")
    E(f"s_mul_i32 s{sWL}, s{sWL}, 25600")
    E(f"s_add_u32 s{sWL}, s{sWL}, {G.PWO_BASE}")
    E(f"v_mul_u32_u24 v{vRw}, 160, v{vC}")
    E(f"v_mul_u32_u24 v{vt[1]}, 40, v{vG}")
    E(f"s_mul_i32 s93, s{sW}, 2560")
    E(f"s_add_u32 s{sT0}, s93, 30720")
    E(f"v_add3_u32 v{vRw}, v{vRw}, v{vt[1]}, s{sT0}")
    for m in range(3):
        E(f"v_add_u32 v{vt[0]}, {64*m}, v{vL}")
        E(div_const(vt[1], vt[0], 10))
        E(f"v_mul_u32_u24 v{vt[1]}, 2400, v{vt[1]}")
        E(f"v_lshl_add_u32 v{vSo[m]}, v{vt[0]}, 4, v{vt[1]}")
    E(f"s_add_u32 s22, s{sW}, s{sCT}")
    E(f"s_and_b32 s22, s22, 3")
    E(f"s_lshl_b32 s{sOUT}, s{sTBo}, 2")
    E(f"s_add_u32 s{sOUT}, s{sOUT}, s22")
    E(f"s_mul_i32 s{sOUT}, s{sOUT}, {16*2560}")
    E(f"s_mul_i32 s{sT1}, s{sCT}, 160")
    E(f"s_add_u32 s{sOUT}, s{sOUT}, s{sT1}")
    E(f"s_lshl_b32 s{sF1}, s{sP}, 13")
    E(G.word_off(sF1, sR, 2, sT1))
    E(f"s_add_u32 s{sF1}, s{sF1}, {G.FLAGW_BASE}")
    E(f"s_lshl_b32 s{sFP}, s{sPQ}, 4")
    E(f"s_add_u32 s{sFP}, s{sFP}, s{sR}")
    E(f"s_lshl_b32 s{sFP}, s{sFP}, 9")
    E(f"s_add_u32 s{sFP}, s{sFP}, {G.FLAGW_BASE}")
    E(f"s_lshl_b32 s{sF2}, s{sR}, 1")
    E(f"s_add_u32 s{sF2}, s{sF2}, s{sFT}")
    E(f"s_lshl_b32 s{sF2}, s{sF2}, 12")
    E(G.word_off(sF2, sPQ, 2, sT1))
    E(f"s_add_u32 s{sF2}, s{sF2}, {G.FLAGO_BASE}")
    E(f"s_lshl_b32 s{sT1}, s{sW}, 7")
    E(f"s_add_u32 s{sFP}, s{sT1}, s{sFP}")
    for sa in (sFP, sFO): E(f"s_buffer_load_dword s23, s[{rWS}:{rWS+3}], s{sa} glc")
    vCo = TM + 15
    E(f"s_mul_i32 s{sT0}, s{sW}, 20")
    E(f"v_min_u32 v{vt[0]}, 19, v{vL}")
    E(f"v_add_u32 v{vt[0]}, s{sT0}, v{vt[0]}")
    E(f"v_lshrrev_b32 v{vt[1]}, 3, v{vt[0]}")
    E(f"v_and_b32 v{vt[0]}, 7, v{vt[0]}")
    E(f"v_lshlrev_b32 v{vt[0]}, 2, v{vt[0]}")
    E(f"v_lshl_add_u32 v{vCo}, v{vt[1]}, 7, v{vt[0]}")
    E(f"s_mov_b32 s{sFC}, {G.FLAGC_BASE}")
    GO = int(([a[5:] for a in sys.argv if a.startswith('--go=')] + ['7'])[0])
    OLDGO = any(a in sys.argv for a in ("--slab=4", "--slab=5", "--slab=6"))
    if OLDGO:
        E(f"s_lshl_b32 s39, s2, 7")
        E(f"s_add_u32 s39, s39, {G.FLAGG_BASE}")
        E(f"s_cmp_lg_u32 s{sW}, 0")
        E(f"s_cselect_b32 s39, {G.WS_SIZE}, s39")
    else:
        E(f"s_lshl_b32 s39, s2, 2")
        E(f"s_add_u32 s39, s39, s{sW}")
        E(f"s_lshl_b32 s39, s39, 7")
        E(f"s_add_u32 s39, s39, {G.FLAG_BASE + 32}")
        E(f"s_cmp_ge_u32 s2, {G.NB}")
        E(f"s_cselect_b32 s39, {G.WS_SIZE}, s39")
        E(f"v_and_b32 v{vFl}, 4, v{vC4}")
    sWk = [16, 17, 18, 19, 20]; sKo = [40, 41, 42, 43, 44]
    E(f"s_and_b32 s{sT0}, s{sTBo}, 3")
    for k in range(5):
        E(f"s_lshl_b32 s{sKo[k]}, s{sT0}, 10")
        E(f"s_mul_i32 s{sWk[k]}, s{sT0}, 5120")
        E(f"s_add_u32 s{sWk[k]}, s{sWk[k]}, s{sWL}")
        if k < 4:
            E(f"s_add_u32 s{sT0}, s{sT0}, 1")
            E(f"s_cmp_eq_u32 s{sT0}, 5")
            E(f"s_cselect_b32 s{sT0}, 0, s{sT0}")

    def rdW(sig, ks):
        b = WF + 16 * (ks % 2)
        return [f"ds_read_b64_tr_b16 {v(b+4*T+2*a,2)}, v{vWt[T]} offset:{wslot(sig) + 4096*ks + 1024*a}" for T in range(4) for a in range(2)]
    def rdX(sig):
        return [f"ds_read_b128 {v(XF+16*(sig%2)+4*j,4)}, v{vXrs[j]} offset:{4096*(sig%2)}" for j in range(4)]
    def mm(sig, ks):
        L = []
        for T in range(4):
            d = v(ACC + 16 * T, 16)
            if "--nomfma" in sys.argv:
                L.append(f"v_mov_b32 v{ACC+T}, v{WF+16*(ks%2)+4*T+3}"); continue
            if "--zop" in sys.argv:
                L.append(("group", [f"v_mov_b32 v{MP}, v{WF+16*(ks%2)+4*T+3}", f"{M32} {d}, {v(PF+16,4)}, {v(XF+16*(sig%2)+4*ks,4)}, {d if (sig or ks) else 0}"])); continue
            if "--swapab" in sys.argv:
                L.append(f"{M32} {d}, {v(XF+16*(sig%2)+4*ks,4)}, {v(WF+16*(ks%2)+4*T,4)}, {d if (sig or ks) else 0}"); continue
            if "--halfmfma" in sys.argv and T >= 2:
                L.append(f"v_mov_b32 v{MP}, v{WF+16*(ks%2)+4*T+3}"); continue
            if "--m16" in sys.argv:
                L.append(("group", [f"{M16} {v(ACC+16*T+4*(2*(ks%2)+e),4)}, {v(WF+16*(ks%2)+4*T,4)}, {v(XF+16*(sig%2)+4*((ks+e)%4),4)}, {v(ACC+16*T+4*(2*(ks%2)+e),4)}" for e in range(2)])); continue
            L.append(f"{M32} {d}, {v(WF+16*(ks%2)+4*T,4)}, {v(XF+16*(sig%2)+4*ks,4)}, {d if (sig or ks) else 0}")
        return L
    def weave(M, rd, vm):
        out = []
        n = (len(rd) + 2) // 3
        for i, x in enumerate(M):
            out.append(x)
            if i < 3: out += rd[n * i:n * (i + 1)]
            if i == 1 and len(vm) > 0: out.append(vm[0])
            if i == 3 and len(vm) > 1: out += vm[1:]
        return out
    wphi = [f"ds_write_b128 v{vPhi}, {v(TM,4)} offset:{TAB}", f"ds_write_b32 v{vPhi+1}, v{TM+4} offset:{TAB+4096}"]
    rphi = []
    for i in range(2):
        for c in range(3):
            for t in range(2):
                b = PF + 24 * i + 8 * c + 4 * t
                rphi.append(f"ds_read_b64_tr_b16 {v(b,2)}, v{vPa[i]} offset:{TAB + 320*c + 32*t}")
                if c < 2: rphi.append(f"ds_read_b64_tr_b16 {v(b+2,2)}, v{vPa[i]} offset:{TAB + 320*c + 160 + 32*t}")
    nld = f"buffer_load_dword v{vNon}, off, s[{rDBG}:{rDBG+3}], 0 offset:4 sc1"
    cld = f"buffer_load_dword v{vFc}, v{vCo}, s[{rWS}:{rWS+3}], s{sFC} offen sc1"
    opois = [f"buffer_store_dwordx4 {v(PN,4)}, v{vO1}, s[{rWS}:{rWS+3}], s{sOS} offen sc1",
             f"buffer_store_dwordx4 {v(PN,4)}, v{vO1}, s[{rWS}:{rWS+3}], s{sOS} offen offset:256 sc1",
             f"buffer_store_dwordx4 {v(PN,4)}, v{vO3}, s[{rWS}:{rWS+3}], s{sOS} offen offset:512 sc1"]
    allpois = [f"buffer_store_dwordx4 {v(PN,4)}, v{vL16}, s[{rWS}:{rWS+3}], s95 offen sc1"] + opois[:2] + [("tag", opois[2], "pois")]
    if "--earlypois" in sys.argv: E(allpois)
    if "--stages" in sys.argv: ST(E, "issued")
    E.wait_vm("S0")
    E("s_barrier")
    if "--stages" in sys.argv: ST(E, "B0")
    E(rdX(0)); E(rdW(0, 0))
    w2 = dmaW(2)
    E(w2[:2])
    pendW = w2[2:]
    for sig in range(10):
        xn = dmaX(sig + 2) if sig + 2 < 10 else []
        extra = [[], [], []]
        if sig == 8:
            extra = [wphi, [], []]
            pendW = [("tag", cld, "cfl")]
            if "--earlypois" not in sys.argv and "--pois9" not in sys.argv: xn = allpois
        if sig == 9:
            extra = [rphi[:7], rphi[7:14], rphi[14:]]
            if "--pois9" in sys.argv: xn = allpois
        if sig == GO: xn = xn + [None] * (3 - len(xn)) + [f"buffer_store_dword v{vNon}, off, s[{rWS}:{rWS+3}], s39 sc1" if OLDGO else f"buffer_store_dword v{vNon}, v{vFl}, s[{rWS}:{rWS+3}], s39 offen sc1"]
        xn = [x for x in xn if x is not None]
        FR = ([a[8:] for a in sys.argv if a.startswith('--front=')] + ['0'])[0]
        if FR == "1" and sig < 8:
            pendW = pendW + [("group", [("waitlg", "xr")] + xn[:2]), ("group", xn[2:])]; xn = []
        if FR == "2" and sig < 8:
            E(weave(mm(sig, 0), rdW(sig, 1) + extra[0], []))
            E(weave(mm(sig, 1), rdW(sig, 2) + extra[1], [("group", pendW[:2]), ("group", pendW[2:])]))
            E(weave(mm(sig, 2), rdW(sig, 3) + extra[2], [("group", xn[:2]), ("group", xn[2:])]))
        else:
            E(weave(mm(sig, 0), rdW(sig, 1) + extra[0], pendW))
            E(weave(mm(sig, 1), rdW(sig, 2) + extra[1], xn[:2]))
            E(weave(mm(sig, 2), rdW(sig, 3) + extra[2], xn[2:]))
        if sig < 9:
            E.wait_vm(f"S{sig+1}")
            if sig == GO - 1: G.snonce(E, vNon, issued=True)
            E.wait_lg()
            E("s_barrier")
            if "--stages" in sys.argv: ST(E, f"B{sig+1}")
            if sig == GO - 2: G.snonce_issue(E)
            wn = dmaW(sig + 3) if sig + 3 < 10 else []
            xr_ = rdX(sig + 1); xr_[-1] = ("tag", xr_[-1], "xr")
            if FR == "1":
                E(weave(mm(sig, 3), xr_[:1] + rdW(sig + 1, 0) + xr_[1:], [("group", wn[:2]), ("group", wn[2:])])); pendW = []
            elif FR == "2":
                E(weave(mm(sig, 3), xr_[:1] + rdW(sig + 1, 0) + xr_[1:], [])); pendW = wn
            else:
                E(weave(mm(sig, 3), xr_[:1] + rdW(sig + 1, 0) + xr_[1:], wn[:2]))
                pendW = wn[2:]
        else:
            E(mm(sig, 3))
    ST(E, "gemm")
    if "--gemmonly" in sys.argv:
        ST.dump(E, sW, ACC)
        E("s_endpgm")
        return ST

    def acc(sec, j):
        for T in range(4):
            for g_, e in enumerate(TA[T]):
                if e == (sec, j): return ACC + 16 * T + 4 * g_
    QB = XF
    PD = WF
    EE = TM
    def pack(sec, dst):
        return [f"v_cvt_pk_bf16_f32 v{dst+2*j+e}, v{acc(sec,j)+2*e}, v{acc(sec,j)+2*e+1}" for j in range(5) for e in range(2)]
    def premm(qb, i):
        L = []
        for c in range(3):
            for t in range(2):
                d = v(PD + 16 * t, 16)
                L.append(f"{M32} {d}, {v(PF+24*i+8*c+4*t,4)}, {v(qb+4*c,4)}, {d if c else 0}")
        return L
    def softmax(out_plus, out_minus, after_plus):
        PP = PD
        mx, mn, m = MP, vMn, MP
        L = [f"v_max3_f32 v{mx}, v{PP}, v{PP+1}, v{PP+2}", f"v_min3_f32 v{mn}, v{PP}, v{PP+1}, v{PP+2}"]
        for i in range(3, 19, 2):
            L += [f"v_max3_f32 v{mx}, v{mx}, v{PP+i}, v{PP+i+1}", f"v_min3_f32 v{mn}, v{mn}, v{PP+i}, v{PP+i+1}"]
        L += [f"v_max_f32 v{mx}, v{mx}, v{PP+19}", f"v_min_f32 v{mn}, v{mn}, v{PP+19}"]
        for sgn, dst, src, outp in ((1, EE, mx, out_plus), (-1, PP, mn, out_minus)):
            L.append(f"v_mul_f32 v{m}, s94, v{src}")
            for i in range(20):
                L.append(f"v_fma_f32 v{dst+i}, v{PP+i}, s94, -v{m}" if sgn > 0 else f"v_fma_f32 v{dst+i}, -v{PP+i}, s94, v{m}")
            for i in range(20):
                L.append(f"v_exp_f32 v{dst+i}, v{dst+i}")
                if i == 2: L.append(f"v_add_f32 v{m}, v{dst}, v{dst+1}")
                if i > 2: L.append(f"v_add_f32 v{m}, v{m}, v{dst+i-1}")
            L += [f"v_add_f32 v{m}, v{m}, v{dst+19}", f"v_rcp_f32 v{m}, v{m}"]
            for i in range(10):
                L.append(f"v_mul_f32 v{dst+2*i}, v{m}, v{dst+2*i}")
                L.append(f"v_mul_f32 v{dst+2*i+1}, v{m}, v{dst+2*i+1}")
                L.append(f"v_cvt_pk_bf16_f32 v{outp+i}, v{dst+2*i}, v{dst+2*i+1}")
            if sgn > 0: L += after_plus
        return L
    E(f"v_mov_b32 v{QB+10}, 0"); E(f"v_mov_b32 v{QB+11}, 0")
    E(pack(1, QB))
    VP = XF + 12
    QB2 = TM + 20
    side = pack(2, VP) + [f"v_mov_b32 v{VP+10}, 0x3f80", f"v_mov_b32 v{VP+11}, 0"] + \
           [f"ds_write_b128 v{vVw}, {v(VP+4*i,4)} offset:{5120+16*i}" for i in range(3)] + \
           pack(0, QB2) + [f"v_mov_b32 v{QB2+10}, 0", f"v_mov_b32 v{QB2+11}, 0"]
    E(merge(premm(QB, 0), side[:15])); E(side[15:])
    spin(E, ["s_sleep 2", cld], [f"v_cmp_ne_u32 vcc, s{sN}, v{vFc}"], "cfl")
    WOr = [ACC + 4 * i for i in range(16)] + [vXo[0], vWo[0], vWt[0]] + [XF + 20 + 4 * i for i in range(3)] + [TM + 4 * i for i in range(3)]
    assert all(r % 4 == 0 for r in WOr)
    vL4k = vVw
    NW1, NW2 = [int(x) for x in ([a[5:] for a in sys.argv if a.startswith('--wo=')] + ['14,22'])[0].split(',')]
    E(f"v_add_u32 v{vL4k}, 4096, v{vL16}")
    def wo_ld(i):
        k, T = divmod(i, 5)
        return f"buffer_load_dwordx4 {v(WOr[i],4)}, v{vL16 if T < 4 else vL4k}, s[{rWS}:{rWS+3}], s{sWk[k]} offen offset:{1024*(T%4)} sc1"
    PHK = XF + 12
    smk = softmax(PHK, PHK + 10, [f"ds_write_b128 v{vPk}, {v(PHK,4)}", f"ds_write_b128 v{vPk}, {v(PHK+4,4)} offset:16"])
    E(merge(smk[:8*NW1], [wo_ld(i) for i in range(NW1)])); E(smk[8*NW1:])
    for i in range(2, 5): E(f"ds_write_b128 v{vPk}, {v(PHK+4*i,4)} offset:{16*i}")
    ST(E, "phik")
    vPu = vFl
    H1, H2 = [int(x) for x in ([a[7:] for a in sys.argv if a.startswith('--hint=')] + ['0,1'])[0].split(',')]
    def push(cond, mask, saddr):
        skip = newlabel("nopush")
        E(cond)
        E(f"s_cbranch_scc1 {skip}")
        E(f"s_mov_b64 exec, {mask}")
        E.raw(f"    buffer_store_dword v{vNon}, v{vPu}, s[{rWS}:{rWS+3}], s{saddr} offen sc1")
        E("s_mov_b64 exec, -1")
        E.label(skip)
    E(f"v_lshlrev_b32 v{vPu}, 9, v{vL}")
    E(premm(QB2, 1))
    E.wait_vm("pois")
    E.wait_lg()
    E("s_barrier")
    ST(E, "xbar")
    KQ = [PF + 4 * i for i in range(12)] + [TM + 20 + 4 * i for i in range(4)]
    KD = XF
    def rdk(i):
        j, k2 = divmod(i, 2)
        L = []
        for a in range(2):
            L.append(f"ds_read_b64_tr_b16 {v(KQ[2*i]+2*a,2)}, v{vA} offset:{8192*j + 80*(16*k2+4*a)}")
        for a in range(2):
            L.append(f"ds_read_b64_tr_b16 {v(KQ[2*i+1]+2*a,2)}, v{vB} offset:{8192*j + 48*(16*k2+4*a)}")
        return L
    E(rdk(0) + rdk(1) + rdk(2))
    for i in range(8):
        if i == H1: push(f"s_cmp_lg_u32 s{sW}, 3", 0xffff, sF1)
        if i + 3 < 8: E(rdk(i + 3))
        d = v(KD, 16)
        E(f"{M32} {d}, {v(KQ[2*i],4)}, {v(KQ[2*i+1],4)}, {d if i else 0}")
    SFL = 60
    PH = XF
    smq = softmax(PH, PH + 10, [])
    E(smq[:10])
    KP = XF + 16
    for i in range(8):
        E(f"v_cvt_pk_bf16_f32 v{KP+i}, v{KD+2*i}, v{KD+2*i+1}")
        if i == 3: E(f"buffer_store_dwordx4 {v(KP,4)}, v{vS1}, s[{rWS}:{rWS+3}], s{sPS} offen sc1")
    E(f"buffer_store_dwordx4 {v(KP+4,4)}, v{vS2}, s[{rWS}:{rWS+3}], s{sPS} offen sc1")
    if H1 == 9: push(f"s_cmp_lg_u32 s{sW}, 0", 0xffff, sF1)
    ST(E, "T0")
    if "--qlow" in sys.argv: E("s_setprio 0")
    PLr = KQ
    pld = []
    E(f"s_and_b32 s21, s{sR}, 3")
    E(f"s_lshl_b32 s21, s21, 14")
    E(f"s_add_u32 s21, s21, s{sPL}")
    for r in range(16):
        pld.append(f"s_xor_b32 s9, s21, {G.P_PITCH*r}")
        pld.append(f"buffer_load_dwordx4 {v(PLr[r],4)}, v{vPi}, s[{rWS}:{rWS+3}], s9 offen sc1")
    pg = [("group", [pld[2*r], ("tag", pld[2*r+1], "part")]) for r in range(16)]
    E(merge(smq[10:-40], [wo_ld(i) for i in range(NW1, NW2)]))
    E(G.sflag_loads(sFP, 1, 4, SFL))
    E(smq[-40:])
    ok1 = newlabel("f1ok")
    E.wait_lg()
    E(G.sflag_check(4, SFL))
    E(f"s_cbranch_scc0 {ok1}")
    G.sflag_wait(E, sFP, 1, 4, SFL)
    E.label(ok1)
    if "--qlow" in sys.argv: E(f"s_setprio {G.APRIO}")
    E("s_barrier")
    ST(E, "f1ok")
    NP0 = int(([a[6:] for a in sys.argv if a.startswith('--np0=')] + ['16'])[0])
    E(pg[:NP0])
    RD_ = WF
    vCk = MP
    def reduce_items():
        L = []
        for r in range(16):
            d = v(RD_, 16); p = PLr[r]
            L.append(f"{M32} {d}, {v(ID,4)}, {v(p,4)}, {d if r else 0}")
            L.append(f"v_max3_u32 v{vCk}, v{p}, v{p+1}, {'v%d' % vCk if r else 0}")
            L.append(f"v_max3_u32 v{vCk}, v{p+2}, v{p+3}, v{vCk}")
        L.append(f"v_cmp_eq_u32 vcc, -1, v{vCk}")
        return L
    def retry(loads, check, left=0):
        ok = newlabel("rok"); sp = newlabel("rsp")
        E(f"s_cbranch_vccz {ok}")
        E.raw("    s_mov_b32 s13, 0")
        E.label(sp)
        for t in ["s_sleep 1" if left else "s_sleep 2"] + loads + ["s_add_u32 s13, s13, 1", f"s_cmp_gt_u32 s13, {G.SPIN_MAX}", f"s_cbranch_scc1 {ok}", f"s_waitcnt vmcnt({left})"] + check + [f"s_cbranch_vccnz {sp}"]:
            E.raw("    " + t)
        E.label(ok)
    ri = reduce_items()
    for r in range(16):
        E(ri[3 * r])
        if NP0 + r < 16: E([pg[NP0 + r]])
        E(ri[3 * r + 1:3 * r + 3])
    E(ri[48:])
    retry(pld, reduce_items())
    ST(E, "part")
    SM = WF + 16
    for e in range(4): E(f"v_cvt_pk_bf16_f32 v{SM+e}, v{RD_+2*e}, v{RD_+2*e+1}")
    E(f"ds_write_b128 v{vPi}, {v(SM,4)} offset:{KVT}")
    E.wait_lg()
    E("s_barrier")
    OD = WF
    AF = PF
    fo = [(c, t) for c in range(5) for t in (1, 0)]
    for i, (c, t) in enumerate(fo): E(f"ds_read_b128 {v(AF+4*i,4)}, v{vKa} offset:{384*c + 256*t}")
    sTile = [72, 73, 74, 75]
    vOk = [vPk, vS1, vS2, vPi, vMn]
    pre = []
    for i in range(4):
        pre += [("group", [f"s_add_u32 s9, s22, {i+1}", f"s_and_b32 s9, s9, 3", f"s_mul_i32 s{sTile[i]}, s9, 20480", f"s_add_u32 s{sTile[i]}, s{sTile[i]}, s{sOL}",
                f"s_cmp_ge_u32 s9, 2", f"s_cselect_b32 s8, 18432, 0", f"s_mul_i32 s9, s9, 15360", f"s_add_u32 s9, s9, s8",
                f"v_add_u32 v{vXrs[i]}, s9, v{vL16}"])]
    pre += [("group", [f"v_add_u32 v{vOk[k]}, s{sKo[k]}, v{vL16}" for k in range(5)])]
    om = []
    for i, (c, t) in enumerate(fo):
        d = v(OD + 16 * t, 16)
        om.append(f"{M32} {d}, {v(AF+4*i,4)}, {v(PH+4*c,4)}, {d if c else 0}")
    if H2 == 0: push(f"s_cmp_lg_u32 s{sH}, 0", 0xff, sF2)
    E(merge(om, pre))
    if H2 == 1: push(f"s_cmp_lg_u32 s{sH}, 0", 0xff, sF2)
    E(f"v_add_f32 v{MP}, {f32(1e-6)}, v{OD+20}")
    E(f"v_rcp_f32 v{MP}, v{MP}")
    OP = TM + 20
    for i in (8, 9, 0, 1, 2, 3, 4, 5, 6, 7):
        E(f"v_mul_f32 v{OD+2*i}, v{MP}, v{OD+2*i}"); E(f"v_mul_f32 v{OD+2*i+1}, v{MP}, v{OD+2*i+1}")
        E(f"v_cvt_pk_bf16_f32 v{OP+i}, v{OD+2*i}, v{OD+2*i+1}")
        if i == 0:
            E(f"v_permlane32_swap_b32 v{OP+8}, v{OP+10}"); E(f"v_permlane32_swap_b32 v{OP+9}, v{OP+11}")
            E(f"buffer_store_dwordx4 {v(OP+8,4)}, v{vO3}, s[{rWS}:{rWS+3}], s{sOS} offen offset:512 sc1")
        if i == 3: E(f"buffer_store_dwordx4 {v(OP,4)}, v{vO1}, s[{rWS}:{rWS+3}], s{sOS} offen sc1")
    E(f"buffer_store_dwordx4 {v(OP+4,4)}, v{vO1}, s[{rWS}:{rWS+3}], s{sOS} offen offset:256 sc1")
    if H2 == 9: push(f"s_cmp_lg_u32 s{sH}, 0", 0xff, sF2)
    ST(E, "opub")
    for i in range(NW2, 25): E(wo_ld(i))
    OFr = [PF + 4 * i for i in range(12)] + [WF + 4 * i for i in range(8)]
    OA = [[XF + 4 * T for T in range(5)], [TM + 12 + 4 * T for T in range(5)]]
    G.sflag_wait(E, sFO, 1, 4, SFL)
    ST(E, "f2ok")
    def o_ld(i):
        return [f"buffer_load_dwordx4 {v(OFr[5*i+k],4)}, v{vOk[k]}, s[{rWS}:{rWS+3}], s{sTile[i]} offen sc1" for k in range(5)]
    NO0 = int(([a[6:] for a in sys.argv if a.startswith('--no0=')] + ['10'])[0])
    oall = sum([o_ld(i) for i in range(4)], [])
    E(oall[:NO0])
    pend = []
    def chk_of(i):
        rg = [OFr[5 * i + k] + e for k in range(5) for e in range(4)]
        return [f"v_max_u32 v{MP}, v{rg[0]}, v{rg[1]}"] + [f"v_max3_u32 v{MP}, v{MP}, v{rg[e]}, v{rg[e+1]}" for e in range(2, 20, 2)] + [f"v_cmp_eq_u32 vcc, -1, v{MP}"]
    E(chk_of(0))
    for i in range(4):
        RT = int(([a[5:] for a in sys.argv if a.startswith('--rt=')] + ['4'])[0])
        retry(sum([o_ld(k) for k in range(i, min(4, i + RT))], []), chk_of(i), 5 if (RT == 2 and i == 0 and NO0 == 10) else 0)
        if i == 0: ST(E, "ofr")
        M = []
        for k in range(5):
            for T in range(5):
                d = v(OA[i % 2][T], 4)
                M.append(f"{M16} {d}, {v(WOr[5*k+T],4)}, {v(OFr[5*i+k],4)}, {d if k else 0}")
        if i == 0: pend = oall[NO0:]
        if i < 3:
            E(M[:4]); E(merge(M[4:14], pend)); E(merge(M[14:], chk_of(i + 1)))
            pend = [f"ds_write_b128 v{vXrs[i]}, {v(OA[i%2][T],4)} offset:{5120*i + 1024*T}" for T in range(5)]
        else:
            RRr = OFr[:15]
            E(M[:3]); E(merge(M[3:8], pend)); E(M[8:11])
            E.wait_lg()
            E("s_barrier")
            rds = [f"ds_read_b128 {v(RRr[5*j+T],4)}, v{vXrs[3]} offset:{5120*j + 1024*T}" for T in range(5) for j in range(3)]
            E(rds[:3]); E(merge(M[11:23], rds[3:])); E(M[23:])
    ST(E, "ogemm")
    RP = ACC
    for T in range(5):
        for e in range(4): E(f"v_add_f32 v{RRr[T]+e}, v{RRr[T]+e}, v{RRr[5+T]+e}") if T < 2 else None
        if T >= 2:
            for e in (0, 2): E(f"v_pk_add_f32 {v(RRr[T]+e,2)}, {v(RRr[T]+e,2)}, {v(RRr[5+T]+e,2)}")
    for T in range(5):
        for e in (0, 2):
            E(f"v_pk_add_f32 {v(OA[1][T]+e,2)}, {v(OA[1][T]+e,2)}, {v(RRr[10+T]+e,2)}")
            E(f"v_pk_add_f32 {v(OA[1][T]+e,2)}, {v(OA[1][T]+e,2)}, {v(RRr[T]+e,2)}")
        E(f"v_cvt_pk_bf16_f32 v{RP+2*T}, v{OA[1][T]}, v{OA[1][T]+1}")
        E(f"v_cvt_pk_bf16_f32 v{RP+2*T+1}, v{OA[1][T]+2}, v{OA[1][T]+3}")
    E(f"v_add_u32 v{vPk}, s93, v{vL16}")
    for T in range(5): E(f"ds_write_b64 v{vRw}, {v(RP+2*T,2)} offset:{8*T}")
    for m in range(3): E(f"ds_read_b128 {v(RP+12+4*m,4)}, v{vPk} offset:{30720 + 1024*m}")
    for m in range(3):
        if m == 2: E("s_mov_b32 exec_hi, 0")
        E(f"buffer_store_dwordx4 {v(RP+12+4*m,4)}, v{vSo[m]}, s[{rOUT}:{rOUT+3}], s{sOUT} offen {G.OUTA}")
    E("s_mov_b64 exec, -1")
    if G.PROFILE:
        E.wait_vm()
        ST(E, "end")
    PAD = [a[6:] for a in sys.argv if a.startswith("--pad=")]
    if PAD:
        E.label("L_pad")
        for t in ["s_memrealtime s[14:15]", "s_waitcnt lgkmcnt(0)", f"s_sub_u32 s14, s14, s{sN}", f"s_cmp_lt_u32 s14, {PAD[0]}", "s_cbranch_scc1 L_pad"]: E.raw("    " + t)
    ST.dump(E, sW, RP + 40)
    E("s_endpgm")
    return ST
```

```python
import math, sys
from asmlib import *
M16 = "v_mfma_f32_16x16x32_bf16"

def gen_B(E, G):
    f32, f32val, Alloc, srd, spin, newlabel, cmul, zipl = G.f32, G.f32val, G.Alloc, G.srd, G.spin, G.newlabel, G.cmul, G.zipl
    rWS, rOUT, rDBG, rIN = G.rWS, G.rOUT, G.rDBG, G.rIN
    sN = G.sN
    G.fresh(E)
    ST = G.Stamps(84)
    sW, sCG, sD, sTB, sCB, sSC, sKT, sT0, sT1, sT2 = 76, 77, 78, 79, 80, 81, 82, 4, 5, 6
    sUS, sUT, sFU, sFUp, sFY, sFYp, sUI, sYS, sYL, sYO = 64, 65, 66, 67, 68, 69, 70, 71, 72, 73
    U_IMG = 2048; KT_BASE = 18432; KT_SZ = 3072; SC_BASE = 30720; SC_SZ = 11 * 1040
    Y_OFF = 6144; Y_PITCH = SC_SZ + 144
    SIG_SZ = 136 * 17
    SIG2 = 2 * SIG_SZ; SIG2_SZ = 136 * 25
    A = Alloc(1, 256)
    vL = A(); vG = A(); vC = A()
    vt = [A() for _ in range(8)]
    big = A(160, 4)
    KG = A(32, 4)
    BN = A(16, 4)
    EPH = A(24, 4); X = Alloc(EPH, EPH + 26); A(2)
    P = [big + 124 + i for i in range(6)]
    assert P[0] == 136 and sCG == 77
    E.vmq += [(None, {("v", r)}) for r in P]
    E.lgq = [("__smem", {("s", 100), ("s", 101), ("s", 16), ("s", 17)})]
    E(f"v_and_b32 v{vL}, 63, v0")
    E(f"v_lshrrev_b32 v{vt[0]}, 6, v0")
    E(f"v_lshrrev_b32 v{vG}, 4, v{vL}")
    E(f"v_readfirstlane_b32 s{sW}, v{vt[0]}")
    E(f"v_and_b32 v{vC}, 15, v{vL}")
    E(f"s_mul_hi_u32 s{sTB}, s{sCG}, 0x33333334")
    E(f"s_mul_i32 s{sT0}, s{sTB}, 5")
    E(f"s_sub_u32 s{sCB}, s{sCG}, s{sT0}")
    vPo = vt[2]; vSo = X(); vL16 = A()
    SLAB = int(([a[7:] for a in sys.argv if a.startswith('--slab=')] + ['9'])[0])
    NWAIT = int(([a[8:] for a in sys.argv if a.startswith('--nwait=')] + ['160'])[0])
    PUBAT = int(([a[8:] for a in sys.argv if a.startswith('--pubat=')] + ['5'])[0])
    def slab_in():
        if "--xnomem" in sys.argv: return
        E("s_setprio 3")
        for i in range(4):
            E(f"s_add_u32 m0, s{sUS}, {1024*i}")
            E(f"s_add_u32 s{sT1}, s74, {4*1280*i}")
            E(f"buffer_load_dwordx4 v{vSo}, s[{rIN}:{rIN+3}], s{sT1} offen lds", tag="slab")
        E(f"s_setprio {G.BPRIO}")
    E(f"v_mul_u32_u24 v{vSo}, 1280, v{vG}")
    E(f"v_lshl_add_u32 v{vSo}, v{vC}, 4, v{vSo}")
    E(f"s_lshl_b32 s{sT0}, s{sTB}, 2")
    E(f"s_add_u32 s{sT0}, s{sT0}, s{sW}")
    E(f"s_mul_i32 s{sYO}, s{sT0}, {16*2560}")
    E(f"s_mul_i32 s{sT0}, s{sT0}, {16*1280}")
    E(f"s_lshl_b32 s{sT1}, s{sCB}, 8")
    E(f"s_add_u32 s74, s{sT0}, s{sT1}")
    E(f"s_add_u32 s{sYO}, s{sYO}, s{sT1}")
    E(f"s_add_u32 s{sYO}, s{sYO}, 1280")
    E(f"s_lshl_b32 s{sUS}, s{sW}, 12")
    E(f"s_add_u32 s{sUS}, s{sUS}, {U_IMG}")
    ST(E, "start")
    if "--noB0" not in sys.argv:
        srd(E, rIN, G.pU, 2621440)
        if SLAB in (0, 3, 5): slab_in()
    srd(E, rDBG, G.pDBG, 256)
    skip = newlabel("nonce")
    E(f"s_or_b32 s{sT0}, s{sCG}, s{sW}")
    E(f"s_cbranch_scc1 {skip}")
    E.raw("    s_or_b32 s10, s10, 1")
    E.raw(f"    v_mov_b32 v{vt[0]}, s10")
    E.raw("    s_mov_b64 exec, 1")
    E.raw(f"    buffer_store_dword v{vt[0]}, off, s[{rDBG}:{rDBG+3}], 0 offset:4 sc1")
    E.raw("    s_mov_b64 exec, -1")
    E.label(skip)
    srd(E, rWS, G.pWS, G.WS_SIZE)
    if "--noB0" in sys.argv:
        ST.dump(E, sW, big)
        E("s_endpgm")
        return ST
    srd(E, rOUT, G.pOUT, 5242880)
    E(f"s_setprio {G.BPRIO}")
    E(f"s_mul_i32 s{sSC}, s{sW}, {SC_SZ}")
    E(f"s_add_u32 s{sSC}, s{sSC}, {SC_BASE}")
    E(f"s_mul_i32 s{sKT}, s{sW}, {KT_SZ}")
    E(f"s_add_u32 s{sKT}, s{sKT}, {KT_BASE}")
    E(f"v_lshlrev_b32 v{vL16}, 4, v{vL}")
    vZ = big + 132
    for k in range(4): E(f"v_mov_b32 v{vZ+k}, 0")
    E(f"v_lshlrev_b32 v{vt[0]}, 3, v0")
    E(f"ds_write_b64 v{vt[0]}, {v(vZ,2)}")
    CB = 656; TA_POS = CB + 272; TB_POS = TA_POS + 136
    E(f"v_min_u32 v{vt[0]}, 42, v{vL}")
    E(f"v_lshl_add_u32 v{vt[0]}, v{vt[0]}, 4, s{sKT}")
    for lim, add in ((1, 720), (4, 512), (40, 240)):
        E(f"v_cmp_lt_u32 vcc, {lim}, v{vL}")
        E(f"v_add_u32 v{vt[1]}, {add}, v{vt[0]}")
        E(f"v_cndmask_b32 v{vt[0]}, v{vt[0]}, v{vt[1]}, vcc")
    E(f"ds_write_b128 v{vt[0]}, {v(vZ,4)}")
    vLm = vt[7]
    E(f"v_lshlrev_b32 v{vt[0]}, 3, v{vG}")
    E(f"v_sub_u32 v{vLm}, v{vC}, v{vt[0]}")
    E(f"v_add_u32 v{vLm}, 33, v{vLm}")
    vLf = vt[6]; vK1 = vt[5]
    E(f"v_cvt_f32_u32 v{vLf}, v{vLm}")
    E(f"s_mov_b32 s7, 0x0202")
    E(f"s_mov_b32 s8, 0x10001")
    E(f"v_mov_b32 v{vK1}, 0x01000100")
    sel = {}; adr = {}
    for name, srep, js in (("d", 5, [3]), ("1", 9, [3, 2])):
        base = 32 * srep - 24
        vb = vt[2]
        for j in js:
            r = X(); sel[(name, j)] = r
            E(f"v_add_f32 v{vt[0]}, {f32(base + 7 - 2*j)}, v{vLf}")
            E(f"v_add_f32 v{vt[1]}, {f32(base + 6 - 2*j)}, v{vLf}")
            E(f"v_cvt_pk_bf16_f32 v{r}, v{vt[0]}, v{vt[1]}")
            if j == 3:
                E(f"v_lshrrev_b32 v{vt[3]}, 17, v{r}")
                E(f"v_lshlrev_b32 v{vt[3]}, 1, v{vt[3]}")
                E(f"v_mul_u32_u24 v{vb}, s8, v{vt[3]}")
                a = X(); adr[name] = a
                if name == "d":
                    E(f"v_and_b32 v{a}, -2, v{vLm}")
                    E(f"v_lshl_add_u32 v{a}, v{a}, 1, s{sKT}")
                    E(f"v_subrev_u32 v{a}, 16, v{a}")
                else:
                    E(f"v_lshl_add_u32 v{a}, v{vt[3]}, 1, s{sKT}")
                    E(f"v_subrev_u32 v{a}, {2*(0x4300-272)}, v{a}")
            E(f"v_sub_u32 v{r}, v{r}, v{vb}")
            E(f"v_mad_u32_u24 v{r}, v{r}, s7, v{vK1}")
    selT = X()
    E(f"v_sub_u32 v{selT}, {2*0x01000100 + 3*0x0202 + 0x02020000}, v{sel[('d',3)]}")
    E(f"v_subrev_u32 v{vt[0]}, 9, v{vLm}")
    E(f"v_min_u32 v{vt[0]}, 31, v{vt[0]}")
    E(f"s_movk_i32 s7, 0x3f80")
    for bI, mask in enumerate((0x1ff << 15, 0x7f << 16, 0x1f << 17, 0x7 << 18)):
        E(f"s_mov_b32 s8, {mask}")
        E(f"v_lshrrev_b32 v{vt[1]}, v{vt[0]}, s8")
        for j in range(4):
            E(f"v_bfe_u32 v{vt[2]}, v{vt[1]}, {7-2*j}, 1")
            E(f"v_bfe_u32 v{vt[3]}, v{vt[1]}, {6-2*j}, 1")
            E(f"v_lshl_or_b32 v{vt[2]}, v{vt[3]}, 16, v{vt[2]}")
            E(f"v_mul_u32_u24 v{BN+4*bI+j}, s7, v{vt[2]}")
    aT = X(); aS = A(); aW = A()
    E(f"v_and_b32 v{vt[0]}, 1, v{vG}")
    E(f"v_lshrrev_b32 v{vt[1]}, 1, v{vG}")
    E(f"v_lshlrev_b32 v{vt[2]}, 3, v{vt[0]}")
    E(f"v_sub_u32 v{aT}, v{vC}, v{vt[2]}")
    E(f"v_add_u32 v{aT}, {TA_POS + 10}, v{aT}")
    E(f"v_and_b32 v{aT}, -2, v{aT}")
    E(f"v_mul_u32_u24 v{vt[2]}, 136, v{vt[1]}")
    E(f"v_add_u32 v{aT}, v{aT}, v{vt[2]}")
    E(f"v_lshl_add_u32 v{aT}, v{aT}, 1, s{sKT}")
    E(f"v_lshlrev_b32 v{vt[2]}, 1, v{vt[1]}")
    E(f"v_sub_u32 v{vt[2]}, v{vC}, v{vt[2]}")
    E(f"v_add_u32 v{vt[2]}, 13, v{vt[2]}")
    E(f"v_lshrrev_b32 v{vt[3]}, 4, v{vt[2]}")
    E(f"v_add_lshl_u32 v{aS}, v{vt[2]}, v{vt[3]}, 3")
    E(f"v_mul_u32_u24 v{vt[2]}, 272, v{vt[0]}")
    E(f"v_mul_u32_u24 v{vt[3]}, {SIG_SZ}, v{vt[1]}")
    E(f"v_add3_u32 v{aS}, v{aS}, v{vt[2]}, v{vt[3]}")
    E(f"v_add_u32 v{aS}, s{sSC}, v{aS}")
    aT2 = X(); aS2 = A()
    E(f"v_add_u32 v{aT2}, {CB + 2}, v{vC}")
    E(f"v_and_b32 v{aT2}, -2, v{aT2}")
    E(f"v_mul_u32_u24 v{vt[2]}, 68, v{vG}")
    E(f"v_add_u32 v{aT2}, v{aT2}, v{vt[2]}")
    E(f"v_lshl_add_u32 v{aT2}, v{aT2}, 1, s{sKT}")
    E(f"v_sub_u32 v{vt[2]}, v{vC}, v{vG}")
    E(f"v_add_u32 v{vt[2]}, 13, v{vt[2]}")
    E(f"v_lshrrev_b32 v{vt[3]}, 4, v{vt[2]}")
    E(f"v_add_lshl_u32 v{aS2}, v{vt[2]}, v{vt[3]}, 3")
    E(f"v_mul_u32_u24 v{vt[2]}, {SIG2_SZ}, v{vt[0]}")
    E(f"v_add3_u32 v{aS2}, v{aS2}, v{vt[2]}, s{sSC}")
    E(f"v_lshl_add_u32 v{vt[2]}, v{vC}, 2, v{vG}")
    E(f"v_lshrrev_b32 v{vt[3]}, 2, v{vC}")
    E(f"v_add_lshl_u32 v{aW}, v{vt[2]}, v{vt[3]}, 3")
    E(f"v_add_u32 v{aW}, s{sSC}, v{aW}")
    vMa = X(); vMb = X(); vMw = X()
    E(f"v_lshlrev_b32 v{vt[0]}, 1, v{vL}")
    E(f"v_add_u32 v{vt[1]}, 256, v{vt[0]}")
    E(f"v_add_u32 v{vt[2]}, {496-32}, v{vt[0]}")
    E(f"v_cmp_lt_u32 vcc, 15, v{vL}")
    E(f"v_cndmask_b32 v{vt[1]}, v{vt[1]}, v{vt[2]}, vcc")
    E(f"v_add_u32 v{vt[2]}, {1008-80}, v{vt[0]}")
    E(f"v_cmp_lt_u32 vcc, 39, v{vL}")
    E(f"v_cndmask_b32 v{vt[1]}, v{vt[1]}, v{vt[2]}, vcc")
    E(f"s_sub_u32 s{sT0}, s{sKT}, {2*(0x4300-272)}")
    for h, dst in enumerate((vMa, vMb)):
        if h: E(f"v_add_u32 v{vt[1]}, 1, v{vt[1]}")
        E(f"v_cvt_f32_u32 v{vt[2]}, v{vt[1]}")
        E(f"v_subrev_u32 v{vt[3]}, 1027, v{vt[1]}")
        E(f"v_cvt_pk_bf16_f32 v{vt[2]}, v{vt[2]}, 0")
        E(f"v_lshl_add_u32 v{vt[2]}, v{vt[2]}, 1, s{sT0}")
        E(f"v_cmp_lt_u32 vcc, 517, v{vt[1]}")
        E(f"v_add_u32 v{vt[4]}, 4, v{vt[2]}")
        E(f"v_cndmask_b32 v{vt[2]}, v{vt[2]}, v{vt[4]}, vcc")
        E(f"v_cmp_gt_u32 vcc, 526, v{vt[1]}")
        E(f"v_mov_b32 v{dst}, s{sKT}")
        E(f"v_cndmask_b32 v{vt[2]}, v{dst}, v{vt[2]}, vcc")
        E(f"v_cmp_gt_u32 vcc, 9, v{vt[3]}")
        E(f"v_add_u32 v{vt[4]}, {2*(TB_POS+16)}, v{dst}")
        E(f"v_cndmask_b32 v{vt[2]}, v{vt[2]}, v{vt[4]}, vcc")
        E(f"v_cmp_gt_u32 vcc, 2, v{vt[3]}")
        E(f"v_add_u32 v{vt[4]}, {2*(TA_POS+16)}, v{dst}")
        E(f"v_cndmask_b32 v{dst}, v{vt[2]}, v{vt[4]}, vcc")
    E(f"v_lshl_add_u32 v{vMw}, v{vL}, 2, s{sKT}")
    fix = [(None, pos + 1, pos) for pos in [CB + 68 * k + 16 for k in range(4)] + [TA_POS + 16, TB_POS + 16]] + [(TA_POS + 16, None, CB + 48)]
    for n, (lo, hi, dstp) in enumerate(fix):
        for dst, off in ((vMa, lo), (vMb, hi), (vMw, dstp - 272)):
            if off is None: continue
            E(f"s_add_u32 s{sT1}, s{sKT}, {2*off}")
            E(f"v_writelane_b32 v{dst}, s{sT1}, {57 + n}")
    a0 = [X(), X()]; a2 = X()
    E(f"v_lshlrev_b32 v{vt[0]}, 4, v{vC}")
    E(f"v_lshl_add_u32 v{vt[0]}, v{vG}, 3, v{vt[0]}")
    E(f"v_lshlrev_b32 v{vt[1]}, 3, v{vC}")
    E(f"v_lshl_add_u32 v{vt[1]}, v{vG}, 8, v{vt[1]}")
    E(f"v_cmp_lt_u32 vcc, 1, v{vG}")
    for h in range(2):
        E(f"v_add_u32 v{vt[2]}, {32 + 256*h}, v{vt[0]}")
        E(f"v_add_u32 v{vt[3]}, {800 - 512 + 128*h}, v{vt[1]}")
        E(f"v_cndmask_b32 v{vt[2]}, v{vt[2]}, v{vt[3]}, vcc")
        E(f"v_add_u32 v{a0[h]}, s{sKT}, v{vt[2]}")
    E(f"v_and_b32 v{vt[0]}, 1, v{vC}")
    E(f"v_mul_u32_u24 v{vt[0]}, 60, v{vt[0]}")
    E(f"v_lshl_add_u32 v{vt[0]}, v{vC}, 3, v{vt[0]}")
    E(f"v_add_u32 v{vt[0]}, {CB + 16}, v{vt[0]}")
    E(f"v_lshlrev_b32 v{vt[1]}, 4, v{vC}")
    E(f"v_min_u32 v{vt[1]}, {16*9 + 8}, v{vt[1]}")
    E(f"v_add_u32 v{vt[1]}, {TA_POS + 16 - 64}, v{vt[1]}")
    E(f"v_cmp_lt_u32 vcc, 3, v{vC}")
    E(f"v_cndmask_b32 v{vt[0]}, v{vt[0]}, v{vt[1]}, vcc")
    E(f"v_lshl_add_u32 v{vt[0]}, v{vG}, 1, v{vt[0]}")
    E(f"v_lshl_add_u32 v{a2}, v{vt[0]}, 1, s{sKT}")
    vTa = X(); vUo = X()
    E(f"v_and_b32 v{vt[0]}, 1, v{vG}")
    E(f"v_lshrrev_b32 v{vt[1]}, 1, v{vG}")
    E(f"v_lshrrev_b32 v{vt[2]}, 2, v{vC}")
    E(f"v_and_b32 v{vt[3]}, 3, v{vC}")
    E(f"v_lshl_add_u32 v{vTa}, v{vt[0]}, 3, v{vt[2]}")
    E(f"v_lshlrev_b32 v{vTa}, 8, v{vTa}")
    E(f"v_lshl_add_u32 v{vTa}, v{vt[1]}, 5, v{vTa}")
    E(f"v_lshl_add_u32 v{vTa}, v{vt[3]}, 3, v{vTa}")
    E(f"v_add_u32 v{vTa}, s{sUS}, v{vTa}")
    E(f"s_lshl_b32 s{sT0}, s{sTB}, 1")
    E(f"s_lshr_b32 s{sT1}, s{sW}, 1")
    E(f"s_add_u32 s{sT0}, s{sT0}, s{sT1}")
    E(f"v_add_u32 v{vt[3]}, s{sT0}, v{vt[3]}")
    E(f"v_and_b32 v{vt[3]}, 3, v{vt[3]}")
    E(f"v_lshl_add_u32 v{vUo}, v{vt[1]}, 2, v{vt[2]}")
    E(f"v_lshlrev_b32 v{vUo}, 14, v{vUo}")
    E(f"v_lshl_add_u32 v{vUo}, v{vt[0]}, 6, v{vUo}")
    E(f"v_lshl_add_u32 v{vUo}, v{vt[3]}, 4, v{vUo}")
    E(f"s_lshl_b32 s{sUT}, s{sCB}, 19")
    E(f"s_lshl_b32 s{sT1}, s{sTB}, 9")
    E(f"s_add_u32 s{sUT}, s{sUT}, s{sT1}")
    E(f"s_lshl_b32 s{sT1}, s{sW}, 7")
    E(f"s_add_u32 s{sUT}, s{sUT}, s{sT1}")
    E(f"s_add_u32 s{sYL}, s{sUT}, {G.YT_BASE}")
    assert G.UT_BASE == 0
    E(f"s_lshl_b32 s{sFU}, s{sCB}, 14")
    E(f"s_lshl_b32 s{sT1}, s{sTB}, 9")
    E(f"s_add_u32 s{sFYp}, s{sFU}, s{sT1}")
    E(f"s_add_u32 s{sFYp}, s{sFYp}, {G.FLAGY_BASE}")
    E(G.word_off(sFU, sTB, 3, sT1))
    E(f"s_add_u32 s{sFU}, s{sFU}, {G.FLAG_BASE}")
    E(f"s_lshl_b32 s{sFUp}, s{sCG}, 9")
    E(f"s_add_u32 s{sFUp}, s{sFUp}, {G.FLAG_BASE}")
    E(f"s_lshr_b32 s{sFY}, s{sCG}, 5")
    E(f"s_lshl_b32 s{sFY}, s{sFY}, 14")
    E(f"s_and_b32 s{sT0}, s{sCG}, 31")
    E(G.word_off(sFY, sT0, 3, sT1))
    E(f"s_add_u32 s{sFY}, s{sFY}, {G.FLAGY_BASE}")
    E(f"s_lshl_b32 s{sT1}, s{sW}, 7")
    E(f"s_add_u32 s{sFUp}, s{sFUp}, s{sT1}")
    E(f"s_add_u32 s{sFYp}, s{sFYp}, s{sT1}")
    E(f"s_lshl_b32 s{sUI}, s{sCG}, 14")
    E(f"s_lshl_b32 s{sT1}, s{sW}, 12")
    E(f"s_add_u32 s{sUI}, s{sUI}, s{sT1}")
    E(f"s_add_u32 s{sYS}, s{sUI}, {G.YT_BASE}")
    vPu = A()
    E(f"v_lshlrev_b32 v{vPu}, 9, v{vL}")
    for sa in (sFUp, sFYp): E(f"s_buffer_load_dword s93, s[{rWS}:{rWS+3}], s{sa} glc")
    PP2 = 1024 + 16
    vWa = X(); vRa = X(); vRb = X()
    E(f"v_add_u32 v{vWa}, s{sSC}, v{vL16}")
    E(f"v_lshrrev_b32 v{vt[0]}, 1, v{vC}")
    E(f"v_mul_u32_u24 v{vRa}, {PP2}, v{vt[0]}")
    E(f"v_and_b32 v{vt[0]}, 1, v{vC}")
    E(f"v_lshl_add_u32 v{vRa}, v{vt[0]}, 3, v{vRa}")
    E(f"v_lshl_add_u32 v{vRa}, v{vG}, 5, v{vRa}")
    E(f"v_add_u32 v{vRa}, s{sSC}, v{vRa}")
    E(f"v_add_u32 v{vRb}, {6*PP2}, v{vRa}")
    vH = [A() for _ in range(4)]
    E(f"v_lshl_add_u32 v{vt[0]}, v{vC}, 1, v{vG}")
    for k in range(4):
        E(f"v_add_u32 v{vt[1]}, {30 - 16 - 4*k}, v{vt[0]}")
        E(f"v_lshrrev_b32 v{vt[2]}, 2, v{vt[1]}")
        E(f"v_add_u32 v{vt[2]}, s{sW}, v{vt[2]}")
        E(f"v_and_b32 v{vt[2]}, 3, v{vt[2]}")
        E(f"v_lshlrev_b32 v{vt[1]}, 6, v{vt[1]}")
        E(f"v_lshl_add_u32 v{vH[k]}, v{vt[2]}, 4, v{vt[1]}")
    L2E = math.log2(math.e); L2Eh = f32val(L2E); L2El = L2E - L2Eh
    I2P = 1 / (2 * math.pi); I2Ph = f32val(I2P); I2Pl = I2P - I2Ph
    vDt = vt[4]; vDsk = X(); vNon = A()
    E(f"s_mov_b32 s7, {f32(L2Eh)}")
    E(f"s_mov_b32 s8, {f32(I2Ph)}")
    E(f"s_lshl_b32 s{sT0}, s{sW}, 4")
    E(f"s_lshr_b64 s[100:101], s[100:101], s{sT0}")
    E(f"s_lshr_b64 s[16:17], s[16:17], s{sT0}")
    E(f"s_lshl_b32 s100, s100, 16")
    E(f"s_lshl_b32 s101, s16, 16")
    E(f"v_mov_b32 v{vt[0]}, s100")
    ST(E, "par")
    E(f"v_mul_f32 v{vt[1]}, s7, v{vt[0]}")
    E(f"v_fma_f32 v{vt[2]}, v{vt[0]}, s7, -v{vt[1]}")
    E(f"v_fmac_f32 v{vt[2]}, {f32(L2El)}, v{vt[0]}")
    E(f"v_exp_f32 v{vt[1]}, v{vt[1]}")
    E(f"v_mul_f32 v{vt[2]}, {f32(math.log(2))}, v{vt[2]}")
    E(f"v_fma_f32 v{vt[1]}, v{vt[1]}, v{vt[2]}, v{vt[1]}")
    E(f"v_cvt_pk_bf16_f32 v{vt[1]}, v{vt[1]}, v{vt[1]}")
    E(f"v_and_b32 v{vDt}, 0xffff0000, v{vt[1]}")
    A2 = Alloc(KG, KG + 32)
    PK = [A2(4, 4), A2(4, 4)]
    W1 = [A2(3, 1), A2(3, 1)]; W8 = [A2(3, 1), A2(3, 1)]; W256 = [A2(3, 1), A2(3, 1)]
    A3 = Alloc(big + 136, big + 160)
    XS = [[A3(2) for _ in range(4)] for _ in range(2)]
    XC = [A3(2), A3(2)]; XD = [A3(2), A3(2)]
    XU = [[big + 124, big + 126], [big + 128, big + 130]]
    tmp = big + 100
    per_n = []
    for n in range(2):
        t = [tmp + 12 * n + i for i in range(12)]
        un = (lambda d, src: f"v_lshlrev_b32 v{d}, 16, v{src}") if n == 0 else (lambda d, src: f"v_and_b32 v{d}, 0xffff0000, v{src}")
        L = [un(t[0], P[0]), un(t[1], P[1]),
             f"v_mul_f32 v{t[0]}, v{vDt}, v{t[0]}",
             f"v_mul_f32 v{t[1]}, v{vDt}, v{t[1]}",
             f"v_mul_f32 v{t[0]}, s7, v{t[0]}",
             f"v_mul_f32 v{t[6]}, s8, v{t[1]}",
             f"v_fma_f32 v{t[7]}, v{t[1]}, s8, -v{t[6]}",
             f"v_fmac_f32 v{t[7]}, {f32(I2Pl)}, v{t[1]}"]
        for e, Wd in ((1, W1[n]), (256, W256[n]), (8, W8[n])):
            if e == 1:
                L += [f"v_exp_f32 v{t[8]}, v{t[0]}", f"v_fract_f32 v{t[9]}, v{t[6]}", f"v_add_f32 v{t[9]}, v{t[9]}, v{t[7]}"]
            else:
                L += [f"v_mul_f32 v{t[8]}, {f32(e)}, v{t[0]}", f"v_mul_f32 v{t[9]}, {f32(e)}, v{t[6]}",
                      f"v_exp_f32 v{t[8]}, v{t[8]}", f"v_fract_f32 v{t[9]}, v{t[9]}", f"v_fmac_f32 v{t[9]}, {f32(e)}, v{t[7]}"]
            L += [f"v_cos_f32 v{t[10]}, v{t[9]}", f"v_sin_f32 v{t[11]}, v{t[9]}",
                  f"v_mul_f32 v{Wd}, v{t[8]}, v{t[10]}", f"v_mul_f32 v{Wd+1}, v{t[8]}, v{t[11]}", f"v_xor_b32 v{Wd+2}, 0x80000000, v{Wd+1}"]
        c0 = XS[n][0]
        L += [un(t[k], P[k]) for k in range(2, 6)]
        L += [f"v_mul_f32 v{t[2]}, v{vDt}, v{t[2]}", f"v_mul_f32 v{t[3]}, v{vDt}, v{t[3]}",
              f"v_mul_f32 v{c0}, v{t[4]}, v{t[2]}", f"v_mul_f32 v{c0+1}, v{t[5]}, v{t[2]}",
              f"v_fma_f32 v{c0}, -v{t[5]}, v{t[3]}, v{c0}", f"v_fmac_f32 v{c0+1}, v{t[4]}, v{t[3]}"]
        per_n.append(L)
    E(zipl(*per_n))
    E(f"v_cmp_eq_u32 vcc, 0, v{vL}")
    E(f"v_mov_b32 v{vDsk}, s101")
    E(f"v_cndmask_b32 v{vDsk}, 0, v{vDsk}, vcc")
    def put_row(row, regs, neg, last=False):
        p = PK[(row // 2) % 2]; q = p + 2 * (row % 2)
        sg = "-" if neg else ""
        L = [f"v_cvt_pk_bf16_f32 v{q}, v{regs[0]}, {sg}v{regs[0]+1}",
             f"v_cvt_pk_bf16_f32 v{q+1}, v{regs[1]}, {sg}v{regs[1]+1}"]
        if row % 2 or last: L.append(f"ds_write_b128 v{vWa}, {v(p,4)} offset:{(row//2)*PP2}")
        return L
    def step(dst, src, mul):
        return zipl(cmul(dst[0], src[0], mul[0]), cmul(dst[1], src[1], mul[1]))
    XSi = lambda i: [XS[0][i], XS[1][i]]
    XUi = lambda i: [XU[0][i], XU[1][i]]
    SG = KG if SLAB in (4, 5, 6, 8) else big if SLAB not in (9, 12) else big + 144
    def wait_go():
        skip = newlabel("nogo")
        E(f"s_lshl_b32 s{sT0}, s{sCG}, 7")
        E(f"s_add_u32 s{sT0}, s{sT0}, {G.FLAGG_BASE}")
        E(f"s_cmp_ge_u32 s{sCG}, {NWAIT}")
        E(f"s_cbranch_scc1 {skip}")
        ok = newlabel("gok"); sp = newlabel("gsp")
        E.raw("    s_mov_b32 s13, 0")
        E.label(sp)
        for t in [f"s_buffer_load_dword s16, s[{rWS}:{rWS+3}], s{sT0} glc", "s_add_u32 s13, s13, 1", "s_waitcnt lgkmcnt(0)", f"s_cmp_gt_u32 s13, {G.SPIN_MAX}",
                  f"s_cbranch_scc1 {skip}", f"s_cmp_eq_u32 s16, s{sN}", f"s_cbranch_scc1 {skip}", "s_sleep 3", f"s_branch {sp}"]:
            E.raw("    " + t)
        E.label(skip)

    def slab_out():
        if "--xnomem" in sys.argv or "--x1" in sys.argv: return None
        def slab_tr():
            E.wait_vm("slab")
            ST(E, "slab")
            for i in range(4):
                E(f"ds_read_b64_tr_b16 {v(SG+4*i,2)}, v{vTa} offset:{64*i}")
                E(f"ds_read_b64_tr_b16 {v(SG+4*i+2,2)}, v{vTa} offset:{64*i+1024}")
        if SLAB != 6: slab_tr()
        E("s_setprio 3")
        G.snonce(E, vNon)
        if SLAB in (4, 5, 6):
            wait_go()
            ST(E, "go")
            if SLAB == 6:
                slab_in(); E("s_setprio 3"); slab_tr()
        for i in range(4):
            E(f"s_add_u32 s{sT1}, s{sUT}, {8*16384*i}")
            E(f"buffer_store_dwordx4 {v(SG+4*i,4)}, v{vUo}, s[{rWS}:{rWS+3}], s{sT1} offen {'' if '--xplain' in sys.argv else 'sc1'}")
        E(f"s_setprio {G.BPRIO}")
        ST(E, "ust")
    def flag(saddr):
        skip = newlabel("nofl")
        E(f"s_cmp_lg_u32 s{sW}, 0")
        E(f"s_cbranch_scc1 {skip}")
        E("s_mov_b32 exec_hi, 0")
        E.raw(f"    buffer_store_dword v{vNon}, v{vPu}, s[{rWS}:{rWS+3}], s{saddr} offen sc1")
        E("s_mov_b64 exec, -1")
        E.label(skip)
    def wait_line(saddr):
        G.sflag_wait(E, saddr, 1, 8, 16, sleep=2)
        E("s_barrier")
    def publish():
        if "--xnomem" in sys.argv or "--x1" in sys.argv or "--x2" in sys.argv: return
        E("s_setprio 3")
        E.wait_vm()
        E("s_barrier")
        flag(sFU)
        E(f"s_setprio {G.BPRIO}")
        ST(E, "ack")
    if SLAB == 3: nld = slab_out()
    L = put_row(0, XSi(0), True)
    cur = XSi(0)
    for e in range(1, 8):
        dst = XSi(e // 2) if e % 2 == 0 else XC
        L += step(dst, cur, W1) + put_row(e, dst, True); cur = dst
    for i, dst in enumerate((XUi(0), XC, XUi(1), XC)):
        L += step(dst, XSi(i), W256) + put_row(8 + i, dst, True)
    for k in range(2): L += step(XSi(k), XUi(k), W256) + put_row(12 + k, XSi(k), True)
    for k in range(2): L += step(XUi(k), XSi(k), W256) + put_row(14 + k, XUi(k), True)
    cur = XUi(0)
    for r in range(16, 21):
        dst = XC if r % 2 == 0 else XD
        L += step(dst, cur, W256) + put_row(r, dst, True, last=(r == 20)); cur = dst
    E(L)
    XF = big + 16
    YF = big + 80
    KD = big + 112
    for tI in range(2):
        for k in range(8):
            E(f"ds_read2_b64 {v(XF+32*tI+4*k,4)}, v{vRb if tI else vRa} offset0:{16*k} offset1:{16*k+2}")
    ST(E, "X")
    if SLAB == 0: nld = slab_out()
    if SLAB in (1, 4, 7, 8, 9, 11, 12): slab_in()
    if SLAB == 3: publish()
    def yhalf(h):
        L = []
        for j in range(16):
            jj = 16 * h + j
            Yc, Yp = (XC, XD) if jj % 2 == 0 else (XD, XC)
            if jj == 0:
                L += [f"v_mov_b32 v{Yc[0]}, 1.0", f"v_mov_b32 v{Yc[0]+1}, 0", f"v_mov_b32 v{Yc[1]}, 1.0", f"v_mov_b32 v{Yc[1]+1}, 0"]
            else:
                L += step(Yc, Yp, W8)
            L += put_row(j, Yc, False)
        return L
    def yread(): return [f"ds_read2_b64 {v(YF+4*k,4)}, v{vRa} offset0:{16*k} offset1:{16*k+2}" for k in range(8)]
    def kmfma(h):
        L = []
        for k in range(8):
            for tI in range(2):
                d = KD + 8 * h + 4 * tI
                xa, ya_ = v(XF+32*tI+4*k,4), v(YF+4*k,4)
                L.append(f"{M16} {v(d,4)}, {ya_ if tI else xa}, {xa if tI else ya_}, {v(d,4) if k else 0}")
        return L
    def tabw(h):
        d0 = KD + 8 * h; d1 = d0 + 4
        p = big + 128 + 4 * h if h == 0 else big + 136
        L = [f"v_add_f32 v{KD}, v{KD}, v{vDsk}"] if h == 0 else []
        L += [f"v_cvt_pk_bf16_f32 v{p}, v{d0}, v{d0+1}", f"v_cvt_pk_bf16_f32 v{p+1}, v{d0+2}, v{d0+3}",
              f"v_cvt_pk_bf16_f32 v{p+2}, v{d1}, v{d1+2}", f"v_cvt_pk_bf16_f32 v{p+3}, v{d1+1}, v{d1+3}",
              f"ds_write_b64 v{a0[h]}, {v(p,2)}", f"ds_write2_b32 v{a2}, v{p+2}, v{p+3} offset0:{4*h} offset1:{4*h + 68}"]
        return L
    def get_u():
        if "--xnomem" in sys.argv or "--x1" in sys.argv or "--x2" in sys.argv or "--x3" in sys.argv: return
        E("s_setprio 3")
        if SLAB >= 7:
            G.sflag_wait(E, sFUp, 1, 16, 16, sleep=2, ncheck=10)
        else: G.sflag_wait(E, sFUp, 1, 8, 16, sleep=2)
        ST(E, "polled")
        if "--x4" in sys.argv: return
        E(f"s_mov_b32 m0, s{sUS}")
        for i in range(4):
            E(f"buffer_load_dwordx4 v{vL16}, s[{rWS}:{rWS+3}], s{sUI} offen offset:{1024*i} sc1 lds", tag="uimg")
        E(f"s_setprio {G.BPRIO}")
    E(yhalf(0)); E(yread())
    if SLAB == 0: publish()
    if SLAB in (1, 7): nld = slab_out()
    if SLAB == 2: slab_in()
    y1 = yhalf(1)
    E(merge(y1, kmfma(0)))
    E(yread())
    if SLAB == 2: nld = slab_out()
    if SLAB == 11:
        E(kmfma(1)); slab_out(); publish(); get_u()
        E(tabw(0))
    else:
        E(tabw(0)); E(kmfma(1))
    E(f"v_mul_u32_u24 v{vt[0]}, {SIG_SZ}, v{vG}")
    E(f"v_cmp_eq_u32 vcc, 3, v{vG}")
    E(f"v_add_u32 v{vt[1]}, {SIG2_SZ - SIG_SZ}, v{vt[0]}")
    E(f"v_cndmask_b32 v{vt[0]}, v{vt[0]}, v{vt[1]}, vcc")
    E(f"v_lshl_add_u32 v{vt[1]}, v{vC}, 2, s{sSC}")
    E(f"v_add_u32 v{vt[0]}, v{vt[0]}, v{vt[1]}")
    E(f"ds_write_b32 v{vt[0]}, v{vZ} offset:64")
    ST(E, "Y")
    if SLAB in (1, 7): publish()
    E(tabw(1))
    E(f"ds_read_u16 v{vt[5]}, v{vMa}")
    E(f"ds_read_u16 v{vt[4]}, v{vMb}")
    E(f"v_lshl_or_b32 v{vt[5]}, v{vt[4]}, 16, v{vt[5]}")
    E(f"ds_write_b32 v{vMw}, v{vt[5]} offset:544")
    ACC = KG
    MS = lambda s0: (0, 1, 2, 4) if s0 == 0 else (0, 1)
    Freg = {}; r_ = big
    for s0 in range(8):
        for m in MS(s0):
            Freg[(s0, m)] = r_; r_ += 4
    TFr = r_; r_ += 16
    T2r = r_; r_ += 24
    Hr = [r_ + 4 * i for i in range(8)]; r_ += 32
    WS = [[r_ + 4 * i for i in range(4)], [EPH + 4 * i for i in range(4)]]
    assert r_ + 16 == big + 160
    YS = big
    def dense(F, r, a, o):
        return ([f"ds_read2_b32 {v(r,2)}, v{a} offset0:{o} offset1:{o+1}",
                 f"ds_read2_b32 {v(r+2,2)}, v{a} offset0:{o+2} offset1:{o+3}",
                 f"ds_read_b32 v{r+4}, v{a} offset:{4*(o+4)}"],
                [f"v_perm_b32 v{F+j}, v{r+4-j}, v{r+3-j}, v{sel[('d',3)] if a == adr['d'] else selT}" for j in (3, 2, 1, 0)])
    def prepF(s0, r):
        rd = []; pm = []
        for m in MS(s0):
            sx = s0 + 8 * m
            F = Freg[(s0, m)]
            if sx <= 8 or sx == 16 or sx == 32:
                a, b = dense(F, r, adr['d'], {16: 152, 32: 176}.get(sx, 16 * sx))
                rd += a; pm += b; r += 6
            else:
                o = 8 * (sx - 9)
                rd += [f"ds_read2_b32 {v(r,2)}, v{adr['1']} offset0:{o} offset1:{o+1}",
                       f"ds_read_b32 v{r+2}, v{adr['1']} offset:{4*(o+2)}"]
                pm += [f"v_perm_b32 v{F+3}, v{r+1}, v{r}, v{sel[('1',3)]}", f"v_perm_b32 v{F+2}, v{r+1}, v{r}, v{sel[('1',2)]}",
                       f"v_perm_b32 v{F+1}, v{r+2}, v{r+1}, v{sel[('1',3)]}", f"v_perm_b32 v{F}, v{r+2}, v{r+1}, v{sel[('1',2)]}"]
                r += 4
        return rd, pm
    def rdH(s0, dl):
        return f"ds_read_b128 {v(Hr[dl],4)}, v{vH[s0%4]} offset:{2048*dl + (1024 if s0 < 4 else 0)}"
    def build(hooks={}):
        raw = [KG, Hr[0]]
        def two(x, y): return x[0] + y[0], x[1] + y[1]
        jobs = [lambda r: two(two(prepF(1, r), prepF(2, r + 10)), prepF(3, r + 20)),
                lambda r: two(two(prepF(4, r), prepF(5, r + 10)), prepF(6, r + 20)),
                lambda r: two(prepF(7, r), two(dense(TFr, r + 10, aT, 0), two(dense(TFr + 4, r + 16, aT, 8), dense(TFr + 8, r + 22, aT, 16)))),
                lambda r: two(prepF(0, r), dense(TFr + 12, r + 24, aT, 24)),
                lambda r: two(two(dense(T2r, r, aT2, 0), dense(T2r + 4, r + 6, aT2, 4)), dense(T2r + 8, r + 12, aT2, 8)),
                lambda r: two(two(dense(T2r + 12, r, aT2, 12), dense(T2r + 16, r + 6, aT2, 16)), dense(T2r + 20, r + 12, aT2, 20))]
        prev = None
        for n, job in enumerate(jobs):
            if n in hooks: hooks[n]()
            rd, pm = job(raw[n % 2])
            E(rd)
            if prev: E(prev)
            prev = pm
        E(prev)
    if SLAB == 9:
        BP = [a[5:] for a in sys.argv if a.startswith('--p2=')]
        if BP: G.BPRIO = int(BP[0])
        slab_out()
        build({PUBAT: publish})
    elif SLAB == 12:
        slab_out(); publish(); get_u(); build()
    elif SLAB not in (4, 8) or "--buildfirst" in sys.argv: build()
    ST(E, "tables")
    if SLAB in (4, 5, 6, 8): slab_out()
    if SLAB in (2, 4, 5, 6, 8): publish()
    if SLAB in (4, 8) and "--buildfirst" not in sys.argv: build()
    if SLAB < 11: get_u()
    E.wait_vm("uimg")
    E.wait_lg()
    E("s_barrier")
    ST(E, "uimg")
    if "--xnoconv" in sys.argv:
        ST.dump(E, sW, big + 70)
        E("s_endpgm")
        return ST
    E(f"s_setprio {G.CPRIO}")
    for dl in range(8): E(rdH(0, dl))
    sigoff = [0, SIG_SZ, SIG2, SIG2 + SIG2_SZ]
    items = [(f"v{aS2} offset:%d", SIG2 + 272 * k, [(q, T2r + 4 * (2 * q - k - 3)) for q in range(8) if 3 <= 2 * q - k <= 8]) for k in range(12)]
    items += [(f"v{aS} offset:%d", 544 * k, [(q, TFr + 4 * (q - k - 4)) for q in range(4 + k, 8)]) for k in range(4)]
    chunks = [[items[i] for i in c] for c in ((0, 1, 2, 12), (3, 4, 5, 15), (6, 7, 13), (8, 9, 14), (10, 11))]
    ycv = lambda q: [f"v_cvt_pk_bf16_f32 v{YS+2*q}, v{ACC+4*q}, v{ACC+4*q+1}", f"v_cvt_pk_bf16_f32 v{YS+2*q+1}, v{ACC+4*q+2}, v{ACC+4*q+3}"]
    ya = vt[0]
    ywr = lambda q: f"ds_write_b64 v{ya}, {v(YS+2*q,2)} offset:{Y_OFF + 544*q}"
    E(f"s_mul_i32 s{sT0}, s{sW}, 144")
    E(f"v_add_u32 v{ya}, s{sT0}, v{aW}")
    yr = vt[1]
    E(f"v_lshrrev_b32 v{vt[3]}, 2, v{vC}")
    E(f"v_mul_u32_u24 v{yr}, {Y_PITCH}, v{vt[3]}")
    E(f"v_bfe_u32 v{vt[3]}, v{vL}, 1, 1")
    E(f"v_lshl_add_u32 v{yr}, v{vt[3]}, 5, v{yr}")
    E(f"v_and_b32 v{vt[3]}, 1, v{vL}")
    E(f"v_lshrrev_b32 v{vt[2]}, 5, v{vL}")
    E(f"v_add_lshl_u32 v{vt[3]}, v{vt[3]}, v{vt[2]}, 3")
    E(f"v_lshl_add_u32 v{vt[3]}, v{vG}, 6, v{vt[3]}")
    E(f"s_mul_i32 s{sT0}, s{sW}, 1088")
    E(f"s_add_u32 s{sT0}, s{sT0}, {SC_BASE + Y_OFF}")
    E(f"v_add3_u32 v{yr}, v{yr}, v{vt[3]}, s{sT0}")
    started = set(); carry = []
    for s0 in range(8):
        M = []; st = []; done = {}
        for dl in range(8):
            nb = 4 if dl < 4 else 2 if dl < 6 else 0
            if s0 == 0 and nb:
                bands = range(4) if nb == 4 else (2, 3)
                g0 = len(M)
                cv = []; wr = []
                for bI in bands:
                    d = WS[dl % 2][bI]
                    M.append(f"{M16} {v(d,4)}, {v(BN+4*bI,4)}, {v(Hr[dl],4)}, 0")
                    cv += [f"v_cvt_pk_bf16_f32 v{d}, v{d}, v{d+1}", f"v_cvt_pk_bf16_f32 v{d+1}, v{d+2}, v{d+3}"]
                    wr += [f"ds_write_b64 v{aW}, {v(d,2)} offset:{136 + sigoff[bI] + 544*dl}"]
                if dl < 5: st += [(cv, g0 + 5, g0 + 5 + len(cv) - 2), (wr, g0 + 8, g0 + 5 + len(cv))]
                else: carry = [(cv, 0, 1), (wr, 2, 3)]
            for m in MS(s0):
                q = m + dl
                if q > 7: continue
                M.append(f"{M16} {v(ACC+4*q,4)}, {v(Freg[(s0,m)],4)}, {v(Hr[dl],4)}, {v(ACC+4*q,4) if q in started else 0}")
                started.add(q); done[q] = len(M) - 1
            if s0 < 7: st.append(([rdH(s0 + 1, dl)], len(M) - 1, len(M) - 1))
        if 2 <= s0 <= 6:
            for i, (fmt, off, uses) in enumerate(chunks[s0 - 2]):
                for q, T in uses: M.append(f"{M16} {v(ACC+4*q,4)}, {v(WS[s0%2][i],4)}, {v(T,4)}, {v(ACC+4*q,4)}")
        if s0 == 1: st += carry
        if 1 <= s0 <= 5:
            rd = [f"ds_read_b64_tr_b16 {v(WS[(s0+1)%2][i]+2*a,2)}, " + fmt % (off + 136 * a) for i, (fmt, off, uses) in enumerate(chunks[s0 - 1]) for a in range(2)]
            st.append((rd, 4, len(M) - 1))
        if s0 == 7:
            for q in range(4): st += [(ycv(q), done[q] + 5, done[q] + 6), ([ywr(q)], done[q] + 8, done[q] + 8)]
        E(gaps(M, st))
    ST(E, "conv")
    if "--gemmonly" in sys.argv:
        ST.dump(E, sW, big + 70)
        E("s_endpgm")
        return ST
    for q in (4, 5, 6, 7): E(ycv(q))
    for q in (4, 5, 6, 7): E(ywr(q))
    E.wait_lg()
    E("s_barrier")
    if "--ylow" not in sys.argv: E("s_setprio 3")
    for i in range(4):
        for e in range(2): E(f"ds_read_b64_tr_b16 {v(big+32+4*i+2*e,2)}, v{yr} offset:{272*i + 16*e}")
    for i in range(4):
        E(f"buffer_store_dwordx4 {v(big+32+4*i,4)}, v{vL16}, s[{rWS}:{rWS+3}], s{sYS} offen offset:{1024*i} sc1")
    d0, d1, ra, so = vt[0], vt[1], vt[2], vt[3]
    E(f"v_lshrrev_b32 v{vt[4]}, 3, v{vL}")
    E(f"v_lshlrev_b32 v{vt[4]}, 14, v{vt[4]}")
    E(f"v_and_b32 v{vt[5]}, 7, v{vL}")
    E(f"v_xor_b32 v{vt[5]}, v{vt[5]}, v{vG}")
    E(f"v_lshl_add_u32 v{d0}, v{vt[5]}, 4, v{vt[4]}")
    E(f"s_and_b32 s{sT0}, s{sW}, 1")
    E(f"s_lshl_b32 s{sT0}, s{sT0}, 6")
    E(f"v_xor_b32 v{d0}, s{sT0}, v{d0}")
    E(f"s_mul_i32 s{sT0}, s{sW}, {8*16384 - 128}")
    E(f"s_add_u32 s{sYL}, s{sYL}, s{sT0}")
    E(f"s_lshl_b32 s{sT0}, s{sW}, 12")
    E(f"s_add_u32 s{sFY}, s{sFY}, s{sT0}")
    E(f"s_lshl_b32 s{sT2}, s{sW}, 10")
    E(f"v_and_b32 v{vt[4]}, 7, v{vC}")
    E(f"v_xor_b32 v{vt[4]}, v{vt[4]}, v{vG}")
    E(f"v_lshlrev_b32 v{ra}, 8, v{vC}")
    E(f"v_lshl_add_u32 v{ra}, v{vt[4]}, 4, v{ra}")
    E(f"v_add_u32 v{ra}, s{sUS}, v{ra}")
    E(f"v_mul_u32_u24 v{so}, 2560, v{vG}")
    E(f"v_lshl_add_u32 v{so}, v{vC}, 4, v{so}")
    E(f"v_xor_b32 v{vt[4]}, 64, v{ra}")
    E.wait_vm()
    E("s_mov_b64 exec, 0xff")
    E(f"buffer_store_dword v{vNon}, v{vPu}, s[{rWS}:{rWS+3}], s{sFY} offen sc1")
    E("s_mov_b64 exec, -1")
    ST(E, "ypub")
    G.sflag_wait(E, sFYp, 1, 8, 16, sleep=2)
    ST(E, "ypoll")
    for i in range(4):
        E(f"s_add_u32 m0, s{sT2}, {U_IMG + 4096*i}")
        E(f"s_add_u32 s{sT1}, s{sYL}, {128*i}")
        E(f"buffer_load_dwordx4 v{d0}, s[{rWS}:{rWS+3}], s{sT1} offen sc1 lds")
    E.wait_vm()
    E("s_barrier")
    for i in range(4):
        E(f"ds_read2_b64 {v(big+4*i,4)}, v{vt[4] if i % 2 else ra} offset0:{i//2} offset1:{16 + i//2}")
    for i in range(4):
        E(f"s_add_u32 s{sT1}, s{sYO}, {4*2560*i}")
        E(f"buffer_store_dwordx4 {v(big+4*i,4)}, v{so}, s[{rOUT}:{rOUT+3}], s{sT1} offen {G.OUTB}")
    if G.PROFILE:
        E.wait_vm()
        ST(E, "end")
    ST.dump(E, sW, big + 70)
    E("s_endpgm")
    return ST
```
